```python
import torch

def _softmax(x, axis=-1):
    return torch.softmax(x, dim=axis)
def _gelu(x):
    return torch.nn.functional.gelu(x, approximate="tanh")
def _silu(x):
    return torch.nn.functional.silu(x)
def _sigmoid(x):
    return torch.sigmoid(x)
def _layernorm(x, axis=-1, eps=1e-5):
    m = x.mean(dim=axis, keepdim=True)
    v = x.var(dim=axis, keepdim=True, unbiased=False)
    return (x - m) / torch.sqrt(v + eps)
def _scatter_add(tgt, idx, src, axis=0):
    return tgt.clone().index_add_(axis, idx, src)
def _segment_sum(src, seg, n):
    out = torch.zeros((n,) + src.shape[1:], dtype=src.dtype)
    return out.index_add_(0, seg, src)
def _pad(x, pw):
    flat = tuple(v for pair in reversed(pw) for v in pair)
    return torch.nn.functional.pad(x, flat)

kernel_name = 'recurrent_scan__gqa_block_cached__mixer_s_mlp__prompt'

def setup_inputs():

    _w = (lambda a: (lambda t: t.to(torch.bfloat16) if t.is_floating_point() else t)(torch.as_tensor(a)))
    def _A_setup():
        B, Sq, D = 1, 2048, 512
        Hq, Hkv, Sk, Dh = 32, 8, 2048, 128
        assert Hq % Hkv == 0, (Hq, Hkv)
        return {
            "x": _w((lambda *s: torch.randn(*s, dtype=torch.bfloat16) * 0.05)(B, Sq, D)),
            "k_cache": _w((lambda *s: torch.randn(*s, dtype=torch.bfloat16) * 0.8)(B, Hkv, Sk, Dh)),
            "v_cache": _w((lambda *s: torch.randn(*s, dtype=torch.bfloat16) * 0.8)(B, Hkv, Sk, Dh)),
            "wq": _w((lambda *s: torch.randn(*s, dtype=torch.bfloat16) * 0.8)(D, Hq * Dh) * (D ** -0.5)),
            "wo": _w((lambda *s: torch.randn(*s, dtype=torch.bfloat16) * 0.8)(Hq * Dh, D) * ((Hq * Dh) ** -0.5)),
        }
    _A_in = _A_setup()

    def _B_setup():
        B, S, D, F = 1, 2048, 512, 1792
        return {
            "x":  _w((lambda *s: torch.randn(*s, dtype=torch.bfloat16) * 0.05)(B, S, D)),
            "w1": _w((lambda *s: torch.randn(*s, dtype=torch.bfloat16) * 3.2)(D, D) * (D ** -0.5)),
            "w2": _w((lambda *s: torch.randn(*s, dtype=torch.bfloat16) * 3.2)(D, D) * (D ** -0.5)),
            "w3": _w((lambda *s: torch.randn(*s, dtype=torch.bfloat16) * 3.2)(D, F) * (D ** -0.5)),
            "w4": _w((lambda *s: torch.randn(*s, dtype=torch.bfloat16) * 1.6)(F, D) * (F ** -0.5)),
        }
    _B_in = _B_setup()

    return {
        "A_x": _A_in["x"],
        "A_k_cache": _A_in["k_cache"],
        "A_v_cache": _A_in["v_cache"],
        "A_wq": _A_in["wq"],
        "A_wo": _A_in["wo"],
        "B_x": _B_in["x"],
        "B_w1": _B_in["w1"],
        "B_w2": _B_in["w2"],
        "B_w3": _B_in["w3"],
        "B_w4": _B_in["w4"],
    }

def reference(A_x, A_k_cache, A_v_cache, A_wq, A_wo, B_x, B_w1, B_w2, B_w3, B_w4):
    def _A_ref(x, k_cache, v_cache, wq, wo):
        B, Sq, D = x.shape
        Hq, Dh = 32, 128
        Hkv = k_cache.shape[1]
        rep = Hq // Hkv
        q = (lambda x, *d: x.permute(*d))((x @ wq).reshape(B, Sq, Hq, Dh), 0, 2, 1, 3)
        k = (lambda x, n, axis: torch.repeat_interleave(x, n, dim=axis))(k_cache, rep, axis=1)
        v = (lambda x, n, axis: torch.repeat_interleave(x, n, dim=axis))(v_cache, rep, axis=1)
        scores = torch.einsum("bhqd,bhkd->bhqk", q, k) * (Dh ** -0.5)
        p = _softmax(scores, axis=-1)
        o = torch.einsum("bhqk,bhkd->bhqd", p, v)
        return (lambda x, *d: x.permute(*d))(o, 0, 2, 1, 3).reshape(B, Sq, Hq * Dh) @ wo

    def _B_ref(x, w1, w2, w3, w4):
        B, S, D = x.shape
        h = _gelu(_layernorm(x, axis=-1) @ w1)
        c = D // 4
        g0 = _pad(h[:, :, 0*c:1*c], ((0, 0), (1, 0), (0, 0)))[:, :S, :]
        g1 = _pad(h[:, :, 1*c:2*c], ((0, 0), (0, 1), (0, 0)))[:, 1:, :]
        g2 = _pad(h[:, :, 2*c:3*c], ((0, 0), (2, 0), (0, 0)))[:, :S, :]
        g3 = _pad(h[:, :, 3*c:   ], ((0, 0), (0, 2), (0, 0)))[:, 2:, :]
        hs = torch.concatenate([g0, g1, g2, g3], axis=-1) @ w2
        x1 = x + hs
        h2 = _gelu(_layernorm(x1, axis=-1) @ w3) @ w4
        return x1 + h2

    x = A_x
    xn = _layernorm(x, axis=-1)
    s = _A_ref(xn, A_k_cache, A_v_cache, A_wq, A_wo)
    g = _silu(_B_ref(xn, B_w1, B_w2, B_w3, B_w4))
    return x + s * g
```

```python
import re

vr = lambda b, n=1: f"v{b}" if n == 1 else f"v[{b}:{b+n-1}]"
ar = lambda b, n=1: f"a{b}" if n == 1 else f"a[{b}:{b+n-1}]"
sr = lambda b, n=1: f"s{b}" if n == 1 else f"s[{b}:{b+n-1}]"


class It:
    __slots__ = ("t", "k", "tag", "need")

    def __init__(self, t, k, tag=None, need=()):
        self.t, self.k, self.tag, self.need = t, k, tag, tuple(need)

    @property
    def cost(self):
        return {"s": 0, "l": 4, "g": 4, "v": 4, "x": 8, "m": 8}[self.k]


class Prog:
    def __init__(self):
        self.L = []
        self.lq = []
        self.vq = []

    def raw(self, s):
        self.L.append(s)

    def lab(self, s):
        self.L.append(s + ":")

    def cmt(self, s):
        self.L.append("    ; " + s)

    @staticmethod
    def _cut(q, tags):
        idx = [i for i, t in enumerate(q) if t in tags]
        if not idx:
            return None, q
        last = max(idx)
        return len(q) - 1 - last, q[last + 1:]

    def wait(self, tags):
        tags = set(tags)
        if not tags:
            return
        nl, lq = self._cut(self.lq, tags)
        nv, vq = self._cut(self.vq, tags)
        parts = []
        if nv is not None:
            nv = min(nv, 63)
            self.vq = vq[len(vq) - nv:] if nv else []
            parts.append(f"vmcnt({nv})")
        if nl is not None:
            nl = min(nl, 15)
            self.lq = lq[len(lq) - nl:] if nl else []
            parts.append(f"lgkmcnt({nl})")
        if parts:
            self.L.append("    s_waitcnt " + " ".join(parts))

    def wait_all(self, lgkm=True, vm=True):
        parts = []
        if vm:
            parts.append("vmcnt(0)"); self.vq = []
        if lgkm:
            parts.append("lgkmcnt(0)"); self.lq = []
        self.L.append("    s_waitcnt " + " ".join(parts))

    def e(self, s, need=()):
        self.wait(need)
        self.L.append("    " + s)

    def lds(self, s, tag=None, need=()):
        self.e(s, need)
        self.lq.append(tag)

    def vm(self, s, tag=None, need=()):
        self.e(s, need)
        self.vq.append(tag)

    def put(self, it):
        if it.k == "l":
            self.lds(it.t, it.tag, it.need)
        elif it.k == "g":
            self.vm(it.t, it.tag, it.need)
        elif it.t is None:
            self.wait(it.need)
        else:
            self.e(it.t, it.need)

    def puts(self, its):
        for it in its:
            self.put(it)

    def run_gaps(self, ms, gaps, fill=None, next_need=()):
        order = {"s": 0, "l": 1, "g": 1, "v": 2, "x": 2}
        for g, m in enumerate(ms):
            self.put(m)
            items = sorted(gaps.get(g, []), key=lambda it: order[it.k])
            nxt = ms[g + 1].need if g + 1 < len(ms) else tuple(next_need)
            own = {it.tag for it in items}
            if nxt and not (set(nxt) & own):
                self.wait(nxt)
            budget = 8 - sum(it.cost for it in items)
            pre, post = [], []
            only_mem_so_far = True
            while fill and fill[0].cost <= budget:
                it = fill[0]
                if it.k in "lg" and not only_mem_so_far:
                    break
                if it.k in "vx":
                    only_mem_so_far = False
                fill.pop(0)
                budget -= it.cost
                (post if not only_mem_so_far else pre).append(it)
            self.puts([it for it in items if it.k in "slg"])
            self.puts(pre)
            self.puts([it for it in items if it.k in "vx"])
            self.puts(post)


_REG = re.compile(r"\b([vas])(\d+)\b|\b([vas])\[(\d+):(\d+)\]")
_TRANS = ("v_exp_", "v_log_", "v_rcp_", "v_rsq_", "v_sqrt_", "v_sin_", "v_cos_")


def _regs(op):
    out = set()
    for m in _REG.finditer(op):
        if m.group(1):
            out.add((m.group(1), int(m.group(2))))
        else:
            out |= {(m.group(3), i) for i in range(int(m.group(4)), int(m.group(5)) + 1)}
    if re.search(r"\bvcc\b", op):
        out.add(("s", "vcc"))
    if re.search(r"\bm0\b", op):
        out.add(("s", "m0"))
    return out


class Ins:
    def __init__(self, line):
        s = line.split(";")[0].strip()
        self.text = s
        p = s.split(None, 1)
        self.op = op = p[0]
        rest = p[1] if len(p) > 1 else ""
        ops = [x.strip() for x in re.split(r",(?![^\[]*\])", rest)] if rest else []
        R = [_regs(o) for o in ops]
        allr = set().union(*R) if R else set()
        self.states = 1
        self.w, self.r = set(), set()
        self.mfma = op.startswith("v_mfma")
        self.valu = op.startswith("v_") and not self.mfma
        self.trans = op.startswith(_TRANS)
        self.dot = op.startswith("v_dot")
        self.vmem = op.startswith(("buffer_", "global_"))
        self.ds = op.startswith("ds_")
        self.salu = op.startswith("s_")
        self.perm = op.startswith("v_permlane") or "dpp" in op
        self.rdlane = op.startswith(("v_readlane", "v_readfirstlane"))
        self.dma = self.vmem and bool(re.search(r"\blds\b", rest))
        self.wide_store = self.vmem and "store" in op and op.endswith(("x3", "x4"))
        self.ab, self.c, self.data = set(), set(), set()
        if op == "s_nop":
            self.states = int(rest) + 1
        elif self.mfma:
            self.w, self.ab, self.c = R[0], R[1] | R[2], R[3]
            self.r = self.ab | self.c
            self.passes = 8 if "32x32" in op else 4
        elif self.valu:
            if op.startswith("v_permlane"):
                self.w = self.r = allr
            else:
                self.w = set(R[0])
                self.r = set().union(*R[1:]) if len(R) > 1 else set()
                if op.startswith(("v_add_co", "v_addc_co", "v_sub_co")):
                    self.w |= R[1]
                    self.r = set().union(*R[2:])
                if op.startswith(("v_fmac", "v_dot2c", "v_writelane")):
                    self.r |= R[0]
                if self.dot:
                    self.ab = R[1] | R[2]
        elif self.vmem:
            if op.startswith(("buffer_inv", "buffer_wbl2")):
                pass
            elif self.dma:
                self.r = allr | {("s", "m0")}
            elif "load" in op:
                self.w, self.r = R[0], set().union(*R[1:])
            else:
                self.r = allr
                self.data = R[0] if op.startswith("buffer") else R[1]
        elif self.ds:
            if "read" in op or "permute" in op:
                self.w, self.r = R[0], set().union(*R[1:])
            else:
                self.r = allr
        elif self.salu and ops and not op.startswith(("s_cmp", "s_cbranch", "s_branch", "s_waitcnt", "s_sleep", "s_setprio")):
            self.w = R[0]
            self.r = set().union(*R[1:]) if len(R) > 1 else set()
        elif self.salu:
            self.r = allr


def _need(p, c):
    n = 0
    pv = {x for x in p.w if x[0] != "s"}
    ps = {x for x in p.w if x[0] == "s"}
    if p.valu:
        if c.mfma and pv & c.r: n = max(n, 2)
        if c.perm and pv & c.r: n = max(n, 2)
        if c.rdlane and pv & c.r: n = max(n, 1)
        if p.trans and c.valu and not c.trans and pv & c.r: n = max(n, 1)
        if p.dot and pv & (c.r | c.w):
            if c.op != p.op or pv & c.ab: n = max(n, 3)
        if ps & c.r:
            n = max(n, 5 if c.vmem else (4 if c.rdlane or c.op.startswith("v_writelane") else 2))
        if ps and c.op.startswith("s_cbranch_vcc"): n = max(n, 2)
    if p.mfma:
        big = {4: 8, 8: 12}[p.passes]
        if c.mfma:
            if p.w & c.ab: n = max(n, big)
            if p.w & c.c and p.w != c.c: n = max(n, big - 2)
            if p.w & c.w and p.w != c.w: n = max(n, big - 2)
        elif (c.valu or c.vmem or c.ds) and p.w & (c.r | c.w):
            n = max(n, big)
        if c.valu and p.c & c.w: n = max(n, {4: 3, 8: 7}[p.passes])
    if p.wide_store and p.data & c.w: n = max(n, 2)
    if p.salu and ("s", "m0") in p.w and c.dma: n = max(n, 1)
    return n


def _is_ins(line):
    s = line.split(";")[0].strip()
    return bool(s) and not s.endswith(":") and not s.startswith(".")


def fix_hazards(lines, window=14):
    out, hist, added = [], [], 0
    for line in lines:
        if not _is_ins(line):
            out.append(line)
            continue
        c = Ins(line)
        dist, short = 0, 0
        for p in reversed(hist):
            short = max(short, _need(p, c) - dist)
            dist += p.states
            if dist > window: break
        if short > 0:
            out.append(f"    s_nop {short-1}")
            hist.append(Ins(f"s_nop {short-1}"))
            added += short
        out.append(line)
        hist.append(c)
        hist = hist[-window - 2:]
    labels = {l.split(":")[0].strip(): i for i, l in enumerate(out) if l.split(";")[0].strip().endswith(":")}
    for i, l in enumerate(out):
        if not _is_ins(l): continue
        b = Ins(l)
        if not b.op.startswith(("s_cbranch", "s_branch")): continue
        tgt = labels[b.text.split()[1]]
        before = [Ins(x) for x in out[max(0, i - 3 * window):i + 1] if _is_ins(x)][-window:]
        after = [Ins(x) for x in out[tgt:tgt + 3 * window] if _is_ins(x)][:window]
        off = 0
        for c in after:
            dist = off
            for p in reversed(before):
                assert _need(p, c) <= dist, f"hazard across branch '{b.text}': '{p.text}' -> '{c.text}'"
                dist += p.states
            off += c.states
            if c.op in ("s_branch", "s_endpgm"): break
    return out, added
```

```python
import math
import struct
import sys
from asmlib import *

OUT_PATH = sys.argv[1]
opt = dict(a.split("=") for a in sys.argv[2:])
STAMP = int(opt.get("stamp", 0))
FORCE_REDO = int(opt.get("redo", 0))
TOUCH = int(opt.get("touch", 1))
CODEPF = int(opt.get("codepf", 1))
AHEAD = int(opt.get("ahead", 12))

NAME = "recurrent_scan__gqa_block_cached__mixer_s_mlp__prompt_kernel"
MF = "v_mfma_f32_16x16x32_bf16"
f2u = lambda x: "0x%08x" % struct.unpack("<I", struct.pack("<f", x))[0]
LOG2E = math.log2(math.e)
QSCALE = LOG2E / math.sqrt(128.0)
GC1 = -2.0 * math.sqrt(2.0 / math.pi) * LOG2E
GC2 = GC1 * 0.044715

SX, SK, SV, SWS, SWQ, SWO, SW1, SW2, SW3, SW4, SOUT, SDBG = range(4, 52, 4)
sG, sM, sW = 52, 53, 54
sT = 55
sKM0, sVM0, sKOFF, sVOFF, sCNT, sREDO, sRING, sSO = 60, 64, 68, 69, 70, 71, 72, 73
sLO, sHI, sONE2, sC1, sC2, sNL2E = 74, 75, 76, 77, 78, 79
sPP, sPC, sFL, sSPIN, sHO = 80, 81, 82, 83, 84
sST = 92
srd = lambda b: sr(b, 4)

WS_H, WS_X1, WS_PS, WS_PH, WS_FL, WS_ST = 0, 0x200000, 0x400000, 0x1400000, 0x2400000, 0x4000000
PLANE = 131072

vBA, vTOK, vNMEAN, vRSTD = 255, 254, 253, 252
vAA2, vAA, vAS = 248, 244, 240
vDW, vDW2, vPOLL, vPA, vSTAMP, vONE, vLANE = 239, 238, 237, 236, 235, 234, 233
vT = 208
XR = 128
G12 = 192
S = lambda buf, kb, qb: buf * 64 + ((kb >> 1) * 4 + qb) * 8 + (kb & 1) * 4
PR = lambda buf, ks, qb: buf * 64 + (ks * 4 + qb) * 8
Q = lambda qb, s: 128 + (qb * 4 + s) * 4
NM = lambda qb: 192 + 4 * qb
KA = lambda s: 208 + s
VA = lambda db: 212 + db
KG = lambda i: 220 + i
VG = lambda i: 224 + (i & 1)
PM = lambda qb: 226 + qb
vTA = 230
O = lambda db, qb: (db * 4 + qb) * 4
FR = lambda f: 128 + (f % 16) * 4
LACC = lambda qb: 192 + 4 * qb
aONES, aXS, aX1 = 208, 212, 220
AF = lambda f: 128 + (f % 8) * 4
BF = lambda kp, ks, tb: 64 + (kp & 1) * 32 + (ks * 4 + tb) * 4
ACC = lambda nh, nb, tb: ((nh * 4 + tb) * 4 + nb) * 4
HB = lambda ks: ks * 4

RING, VOFF = 65536, 65536

P = Prog()
e, lab = P.e, P.lab
slow_paths = []
nstamp = [0]


def stamp():
    if not STAMP:
        return
    i = nstamp[0]; nstamp[0] += 1
    e(f"s_memtime {sr(sST,2)}"); e(f"s_memrealtime {sr(sST+2,2)}")
    P.wait_all(vm=False)
    e(f"v_writelane_b32 v{vSTAMP}, s{sST}, {2*i}")
    e(f"v_writelane_b32 v{vSTAMP}, s{sST+2}, {2*i+1}")


def allreduce(op, regs, tmps):
    for sw in ("v_permlane32_swap_b32", "v_permlane16_swap_b32"):
        for r, t in zip(regs, tmps): e(f"v_mov_b32 v{t}, v{r}")
        for r, t in zip(regs, tmps): e(f"{sw} v{r}, v{t}")
        for r, t in zip(regs, tmps): e(f"{op} v{r}, v{r}, v{t}")


def poll_issue(s_rd, soff, tag):
    return It(f"buffer_load_dword v{vPOLL}, v{vPA}, {srd(s_rd)}, {soff} offen sc1", "g", tag)


def poll_check(name, s_rd, soff, tag, target):
    slow_paths.append((name, s_rd, soff, target))
    return [It(f"v_cmp_gt_u32 vcc, {target}, v{vPOLL}", "v", need=[tag]),
            It(f"s_cbranch_vccnz L_slow_{name}\nL_back_{name}:", "v")]


def set_flags(line, nlanes, need):
    return [It(None, "s", need=need),
            It(f"s_add_u32 s{sSO}, s{sFL}, {line * 128}", "s"),
            It(f"s_mov_b64 exec, {(1 << nlanes) - 1}\n"
               f"    buffer_store_dword v{vONE}, v{vLANE}, {srd(SWS)}, s{sSO} offen sc1\n"
               f"    s_mov_b64 exec, -1", "g")]


def layernorm(tags, first):
    a = vT
    for i in range(64):
        c = f"v{a + i % 4}" if i >= 4 else "0"
        e(f"v_dot2_f32_bf16 v{a + i % 4}, v{XR+i}, s{sONE2}, {c}", need=[tags[i // 4]])
    e(f"v_add_f32 v{a}, v{a}, v{a+1}"); e(f"v_add_f32 v{a+2}, v{a+2}, v{a+3}"); e(f"v_add_f32 v{a}, v{a}, v{a+2}")
    allreduce("v_add_f32", [a], [a + 1])
    e(f"v_mul_f32 v{vNMEAN}, {f2u(-1/512)}, v{a}")
    for i in range(64):
        e(f"v_dot2_f32_bf16 v{2*i}, v{XR+i}, s{sLO}, v{vNMEAN}")
        e(f"v_dot2_f32_bf16 v{2*i+1}, v{XR+i}, s{sHI}, v{vNMEAN}")
    for i in range(64):
        d = vr(a + 2 * (i % 2), 2)
        if i < 2: e(f"v_pk_mul_f32 {d}, {vr(2*i,2)}, {vr(2*i,2)}")
        else: e(f"v_pk_fma_f32 {d}, {vr(2*i,2)}, {vr(2*i,2)}, {d}")
    e(f"v_pk_add_f32 {vr(a,2)}, {vr(a,2)}, {vr(a+2,2)}"); e(f"v_add_f32 v{a}, v{a}, v{a+1}")
    allreduce("v_add_f32", [a], [a + 1])
    e(f"v_mul_f32 v{a}, {f2u(1/512)}, v{a}")
    e(f"v_add_f32 v{a+1}, {f2u(1e-5)}, v{a}")
    e(f"v_rsq_f32 v{vRSTD}, v{a+1}")
    if first:
        e(f"v_mul_f32 v{a+2}, {f2u(QSCALE)}, v{vRSTD}")
        e(f"v_mul_f32 v{a}, v{a}, v{vRSTD}"); e(f"v_mul_f32 v{a}, v{a}, v{vRSTD}")
        e(f"v_add_f32 v{a}, {f2u(1e-5)}, v{a}")
        e(f"v_rsq_f32 v{a+4}, v{a}")
        e(f"v_mul_f32 v{a+4}, {f2u(1/QSCALE)}, v{a+4}")
    else:
        e(f"v_mov_b32 v{a+2}, v{vRSTD}")
    for i in range(65):
        if i < 64: e(f"v_pk_mul_f32 {vr(2*i,2)}, {vr(2*i,2)}, {vr(a+2,2)} op_sel_hi:[1,0]")
        if i: e(f"v_cvt_pk_bf16_f32 v{XR+i-1}, v{2*i-2}, v{2*i-1}")


def gelu(base, n, tmp, dst, scale=None):
    pairs = range(0, n, 2)
    if scale is not None:
        for i in pairs: e(f"v_pk_mul_f32 {vr(base+i,2)}, {vr(base+i,2)}, {vr(scale,2)} op_sel_hi:[1,0]")
    for i in pairs: e(f"v_pk_mul_f32 {vr(tmp+i,2)}, {vr(base+i,2)}, {vr(base+i,2)}")
    for i in range(n): e(f"v_fma_f32 v{tmp+i}, v{tmp+i}, s{sC2}, v{vTC1}")
    for i in pairs: e(f"v_pk_mul_f32 {vr(tmp+i,2)}, {vr(tmp+i,2)}, {vr(base+i,2)}")
    for i in range(n): e(f"v_exp_f32 v{tmp+i}, v{tmp+i}")
    for i in pairs: e(f"v_pk_add_f32 {vr(tmp+i,2)}, {vr(tmp+i,2)}, 1.0 op_sel_hi:[1,0]")
    for i in range(n): e(f"v_rcp_f32 v{tmp+i}, v{tmp+i}")
    for i in pairs: e(f"v_pk_mul_f32 {vr(tmp+i,2)}, {vr(tmp+i,2)}, {vr(base+i,2)}")
    for i in pairs: e(f"v_cvt_pk_bf16_f32 v{dst(i//2)}, v{tmp+i}, v{tmp+i+1}")


vTC1 = 232


class Tile:
    def __init__(self, s_rd, voff, base, stride, perm, m0, tag, rows=64, kp=0, nh=0, slot=0):
        self.__dict__.update(locals())

    def dma(self):
        out = []
        for i in range(self.rows // 8):
            row = ((0, 16, 4, 20)[i & 3] + 32 * (i >> 2)) if self.perm else 8 * i
            so = self.base + row * self.stride - (i & 3) * 1024
            pre = [It(f"s_add_u32 m0, {self.m0[0]}, {self.m0[1] + (i >> 2) * 4096}", "s")] if i % 4 == 0 else []
            out.append((pre, [It(f"s_mov_b32 s{sSO}, {so}", "s"),
                              It(f"buffer_load_dwordx4 v{self.voff}, {srd(self.s_rd)}, s{sSO} offen "
                                 f"offset:{(i & 3) * 1024} lds", "g", self.tag)]))
        return out

    def issue(self):
        for pre, its in self.dma():
            P.puts(pre + its)


def ring_tile(s_rd, voff, base, stride, perm, slot, tag, **kw):
    return Tile(s_rd, voff, base, stride, perm, (f"s{sRING}", slot * 32768), tag, slot=slot, **kw)


def dma_voff(dst, stride, perm, s_base):
    a, b = vTA, vTA + 1
    e(f"v_lshrrev_b32 v{a}, 10, v{vLANE}")
    e(f"v_bfe_u32 v{b}, v{vBA}, 4, 3")
    e(f"v_and_b32 v{dst}, 6, v{a}"); e(f"v_xor_b32 v{b}, v{b}, v{dst}")
    if perm:
        e(f"v_and_b32 v{dst}, 4, v{a}"); e(f"v_add_u32 v{a}, v{a}, v{dst}")
    e(f"v_mul_u32_u24 v{a}, {stride}, v{a}")
    e(f"v_lshl_add_u32 v{a}, v{b}, 4, v{a}")
    e(f"v_add_u32 v{dst}, {s_base}, v{a}")


def a_reads(t, ti, nb):
    base = (vAA2 if t.slot == 2 else vAA) + nb
    off = (t.slot % 2) * 32768 if t.slot < 2 else 0
    out = []
    for ks in range(t.rows // 32):
        f = AF(nb * 2 + ks)
        for h in range(2):
            out.append(It(f"ds_read_b64_tr_b16 {ar(f + 2*h, 2)}, v{base} offset:{off + ks*4096 + h*2048}", "l",
                          ("A", ti, nb), need=[t.tag]))
    return out


def b_reads(t, phase):
    return [It(f"ds_read_b128 {ar(BF(t.kp, ks, tb), 4)}, v{vBA} offset:{((2*t.kp + ks)*4 + tb) * 1024}", "l",
               ("B", phase, t.kp, tb)) for tb in range(4) for ks in range(t.rows // 32)]


def gemm_pre(tiles, i0):
    P.puts(a_reads(tiles[i0], i0, 0))


def gemm(tiles, i0, n, phase, pending, extra=None, fill=None):
    ms, gaps, start = [], {}, []
    seen = set()
    for ti in range(i0, i0 + n):
        t = tiles[ti]
        start.append(len(ms))
        nks = t.rows // 32
        for nb in range(4):
            for tb in range(4):
                order = range(nks) if not tb & 1 else range(nks - 1, -1, -1)
                for ks in order:
                    d = vr(ACC(t.nh, nb, tb), 4)
                    c = d if (t.nh, nb, tb) in seen else "0"
                    seen.add((t.nh, nb, tb))
                    ms.append(It(f"{MF} {d}, {ar(AF(nb*2+ks),4)}, {ar(BF(t.kp,ks,tb),4)}, {c}", "m",
                                 need=[("A", ti, nb), ("B", phase, t.kp, tb)]))
    start.append(len(ms))
    add = lambda g, it: gaps.setdefault(g, []).append(it)
    pre = b_reads(tiles[i0], phase)
    release = {}
    for s in range(n):
        ti = i0 + s; t = tiles[ti]
        per = (start[s + 1] - start[s]) // 4
        for nb in range(4):
            if s == 0 and nb == 0: continue
            rd = a_reads(t, ti, nb)
            for k, it in enumerate(rd):
                g = start[s] + per * nb - 6 - 2 * (len(rd) - 1 - k)
                if g < 0: pre.append(it)
                else: add(g, it)
        if ti + 3 < len(tiles): release[start[s] + 3 * per] = tiles[ti + 3]
        if s + 1 < n and tiles[ti + 1].kp != t.kp:
            s0 = s
            while s0 > 0 and tiles[i0 + s0 - 1].kp == t.kp: s0 -= 1
            rd = b_reads(tiles[ti + 1], phase)
            cand = [g for g in range(start[s0], start[s + 1] - 6) if g % 4 == 3]
            if len(cand) < len(rd): cand = sorted(cand + [start[s0] + 2 * k for k in range(len(rd) - len(cand))])
            step = len(cand) / len(rd)
            for k, it in enumerate(rd): add(cand[int(k * step)], it)
    for g in range(len(ms)):
        if g in release: pending += release[g].dma()
        if g % 4 == 1 and pending:
            a, b = pending.pop(0)
            for it in a: add(g - 1, it)
            for it in b: add(g, it)
    for g, its in (extra or {}).items():
        for it in its: add(g, it)
    P.puts(pre)
    P.run_gaps(ms, gaps, fill)


def flush(pending):
    while pending:
        a, b = pending.pop(0)
        P.puts(a + b)


def gemm_shared(breg, bneed, name, extra=None):
    ms, gaps, pre = [], {}, []
    for nb in range(4):
        for ks in range(16):
            i = nb * 16 + ks
            d = vr(G12 + 4 * nb, 4)
            ms.append(It(f"{MF} {d}, {ar(FR(i),4)}, {breg(ks)}, {d if ks else 0}", "m",
                         need=[(name, i)] + list(bneed(ks))))
            for h in range(2):
                it = It(f"ds_read_b64_tr_b16 {ar(FR(i)+2*h,2)}, v{vAS+nb} offset:{ks*4096 + h*2048}", "l", (name, i))
                if i < 6: pre.append(it)
                else: gaps.setdefault(i - 6, []).append(it)
    for g, its in (extra or {}).items(): gaps.setdefault(g, []).extend(its)
    P.puts(pre)
    P.run_gaps(ms, gaps)


def pack_store_partials(ws_base, tag):
    for nh in range(2):
        for tb in range(4):
            for s in range(2):
                b = ACC(nh, 2 * s, tb)
                for j in range(4): e(f"v_cvt_pk_bf16_f32 v{b+j}, v{b+2*j}, v{b+2*j+1}")
                k = tb * 2 + s
                if k % 4 == 0: e(f"s_add_u32 s{sSO}, s{sPP}, {ws_base + nh*65536 + (k//4)*4096}")
                P.vm(f"buffer_store_dwordx4 {vr(b,4)}, v{vBA}, {srd(SWS)}, s{sSO} offen offset:{(k%4)*1024} sc1", tag)


def load_partials(ws_base, reg, tag):
    its = []
    for g in range(8):
        its.append(It(f"s_add_u32 s{sSO}, s{sPC}, {ws_base + g*8192}", "s"))
        for s in range(2):
            its.append(It(f"buffer_load_dwordx4 {vr(reg(g,s),4)}, v{vBA}, {srd(SWS)}, s{sSO} offen offset:{s*1024} sc1",
                          "g", (tag, g, s)))
    return its


def frag_reads(t, f, tail=False):
    if f < 16:
        kb, s = f // 4, f % 4
        off = ((t + 1) % 4) * 16384 + kb * 4096
        return [It(f"ds_read_b128 {ar(FR(f),4)}, v{KA(s)} offset:{off}", "l", ("F", t, f))]
    db, ks = ((f - 16) // 2, (f - 16) % 2) if not tail else ((f - 16) % 8, (f - 16) // 8)
    off = (t % 4) * 16384 + ks * 8192
    return [It(f"ds_read_b64_tr_b16 {ar(FR(f)+2*h,2)}, v{VA(db)} offset:{off + 4096*h}", "l", ("F", t, f))
            for h in range(2)]


def qk_mfmas(t, zero=False):
    out = []
    for kb in range(4):
        for qb in range(4):
            for n, s in enumerate(range(4) if not qb & 1 else range(3, -1, -1)):
                d = vr(S((t + 1) & 1, kb, qb), 4)
                c = d if n else ("0" if zero else vr(NM(qb), 4))
                out.append((It(f"{MF} {d}, {ar(FR(kb*4+s),4)}, {vr(Q(qb,s),4)}, {c}", "m",
                               need=[("F", t, kb * 4 + k) for k in range(4)]), kb * 4 + s))
    return out


def pv_one(t, db, qb, ks, f, need):
    o = ar(O(db, qb), 4)
    return (It(f"{MF} {o}, {ar(FR(f),4)}, {vr(PR(t&1,ks,qb),4)}, {o}", "m", need=need), f)


def sum_one(t, qb, ks):
    l = ar(LACC(qb), 4)
    return (It(f"{MF} {l}, {ar(aONES,4)}, {vr(PR(t&1,ks,qb),4)}, {l}", "m"), None)


def pv_mfmas(t):
    out = []
    for db in range(8):
        need = [("F", t, 16 + db * 2), ("F", t, 17 + db * 2)]
        for qb in range(4):
            for ks in (range(2) if not qb & 1 else range(1, -1, -1)):
                out.append(pv_one(t, db, qb, ks, 16 + db * 2 + ks, need))
        if db % 2 == 1:
            out += [sum_one(t, db // 2, ks) for ks in range(2)]
    return out


def pv_mfmas_tail(t):
    out = []
    for ks in range(2):
        out += [sum_one(t, qb, ks) for qb in range(4)]
        for db in range(8):
            f = 16 + ks * 8 + db
            out += [pv_one(t, db, qb, ks, f, [("F", t, f)]) for qb in range(4)]
    return out


def sm_stream(buf, half):
    ex, post = [], []
    for qb in range(4):
        b = PR(buf, half, qb)
        for j in range(8):
            ex.append(It(f"v_exp_f32 v{b+j}, v{b+j}", "x"))
            post.append([It(f"v_cvt_pk_bf16_f32 v{b + j//2}, v{b+j-1}, v{b+j}", "v")] if j & 1 else [])
    return ex, post


def kv_dma(kind, tile):
    m0, reg, s_rd, so = (sKM0, KG, SK, sKOFF) if kind == "K" else (sVM0, VG, SV, sVOFF)
    out = []
    for i in range(4):
        pre = [It(f"s_mov_b32 m0, s{m0 + tile % 4}", "s")] if i == 0 else []
        out.append((pre, [It(f"buffer_load_dwordx4 v{reg(i)}, {srd(s_rd)}, s{so} offen offset:{i*1024} lds", "g",
                             (kind, tile))]))
    adv = [It(f"s_add_u32 s{so}, s{so}, 16384", "s"), It(f"s_and_b32 s{so}, s{so}, 0x7ffff", "s")]
    return out, adv


def kv_issue(kind, tile):
    groups, adv = kv_dma(kind, tile)
    for a, b in groups: P.puts(a + b)
    P.puts(adv)


issued = set()


def attn_iter(t, dmas, last=False, tail_scalar=(), extra=None):
    mf = pv_mfmas_tail(t) if last else qk_mfmas(t) + pv_mfmas(t)
    ms = [m for m, _ in mf]
    n = len(ms)
    first_use = {}
    for i, (_, f) in enumerate(mf):
        if f is not None: first_use.setdefault(f, i)
    reads = []
    for f in sorted(first_use):
        if (t, f) in issued: continue
        reads += [(first_use[f] - AHEAD, it) for it in frag_reads(t, f, last)]
    nxt_need = ()
    if t < 30:
        for f in range(4):
            reads += [(n + f - AHEAD, it) for it in frag_reads(t + 1, f)]
            issued.add((t + 1, f))
        nxt_need = [("F", t + 1, f) for f in range(4)]
    gaps = {}
    add = lambda g, it: gaps.setdefault(g, []).append(it)
    exg = {}
    if last:
        ex, post = sm_stream(t & 1, 1)
        for i in range(32): exg[i] = (ex[i], post[i])
    else:
        exA, postA = sm_stream(t & 1, 1)
        exB, postB = sm_stream((t + 1) & 1, 0)
        nB = n - 64
        for i in range(32):
            exg[2 * i] = (exA[i], postA[i])
            exg[64 + 2 * ((i * (nB // 2)) // 32)] = (exB[i], postB[i])
    for g, (x, post) in exg.items():
        add(g, x)
    for g, (x, post) in exg.items():
        for it in post: add(g + 1, it)
    free = set(range(n)) if last else {g for g in range(n) if g not in exg}
    prev, pre = n, []
    for dl, it in reversed(reads):
        c = [g for g in free if g <= dl and g < prev]
        if c:
            prev = max(c); free.discard(prev); add(prev, it)
        else:
            prev = -1; pre.insert(0, it)
    groups = [grp for gs, _ in dmas for grp in gs]
    if groups:
        lo = 36 if last else 1
        light = [g for g in sorted(free) if lo <= g < n - 6 and g not in gaps]
        fr = light if len(light) >= len(groups) else [g for g in sorted(free) if lo <= g < n - 6]
        step = len(fr) / len(groups)
        k = 0
        for gs, adv in dmas:
            for a, b in gs:
                g = fr[int(k * step)]; k += 1
                for it in a: add(g - 1, it)
                for it in b: add(g, it)
            for j, it in enumerate(adv): add(g + 1 + j, it)
    if not last:
        add(n - 3, It(None, "s", need=[("K", t + 3), ("V", t + 1)]))
        add(n - 2, It("s_barrier", "s"))
    for i, x in enumerate(tail_scalar): add(n - 1, It(x, "s"))
    for g, its in (extra or {}).items():
        for it in its: add(g, it)
    P.puts(pre)
    P.run_gaps(ms, gaps, next_need=nxt_need)


hdr = [l.rstrip("\n") for l in open("recurrent_scan__gqa_block_cached__mixer_s_mlp__prompt.s.ref")]
hdr = hdr[:[i for i, l in enumerate(hdr) if "@launch" in l][0]]
P.L += hdr + ["; @launch grid=(256,1,1) block=(256,1,1) lds=163840",
              '.amdgcn_target "amdgcn-amd-amdhsa--gfx950"', ".text", f".globl {NAME}", ".p2align 8",
              f".type {NAME},@function"]
lab(NAME)
e("s_cmp_ge_u32 s2, 256"); e("s_cbranch_scc1 L_end")
e("s_load_dwordx16 s[64:79], s[0:1], 0"); e("s_load_dwordx8 s[80:87], s[0:1], 64"); e("s_load_dwordx2 s[88:89], s[0:1], 96")
e(f"s_and_b32 s{sG}, s2, 7"); e(f"s_lshr_b32 s{sM}, s2, 3")
e("v_lshrrev_b32 v1, 6, v0"); e("v_and_b32 v0, 63, v0"); e(f"v_readfirstlane_b32 s{sW}, v1")
e(f"v_lshlrev_b32 v{vBA}, 4, v0"); e(f"v_lshlrev_b32 v{vLANE}, 7, v0")
e("v_and_b32 v1, 15, v0"); e("v_lshrrev_b32 v2, 4, v0")
e(f"s_lshl_b32 s{sT}, s{sM}, 6"); e(f"s_lshl_b32 s{sT+1}, s{sW}, 4"); e(f"s_add_u32 s{sT}, s{sT}, s{sT+1}")
e(f"v_add_u32 v3, s{sT}, v1")
e("v_lshlrev_b32 v4, 4, v2")
e(f"v_lshl_add_u32 v{vTOK}, v3, 6, v4"); e("v_lshl_add_u32 v5, v3, 10, v4")
if STAMP: e(f"v_mov_b32 v{vSTAMP}, 0")
e("s_waitcnt lgkmcnt(0)")
for d, p, size in ((SX, 64, 0x200000), (SWQ, 70, 0x400000), (SW1, 76, 0x80000), (SWS, 88, 0x10000000)):
    e(f"s_mov_b32 s{d}, s{p}"); e(f"s_mov_b32 s{d+1}, s{p+1}"); e(f"s_mov_b32 s{d+2}, {size}"); e(f"s_mov_b32 s{d+3}, 0x20000")
stamp()
for ks in range(16):
    P.vm(f"buffer_load_dwordx4 {vr(XR+4*ks,4)}, v5, {srd(SX)}, 0 offen offset:{ks*64}", ("x", ks))
if TOUCH:
    P.cmt("spread the first touch of this group's wq slice over the token blocks")
    e(f"s_lshl_b32 s{sT}, s{sM}, 2"); e(f"s_add_u32 s{sT}, s{sT}, s{sW}"); e(f"s_lshl_b32 s{sT}, s{sT}, 15")
    e(f"s_lshl_b32 s{sT+1}, s{sG}, 10"); e(f"s_add_u32 s{sT}, s{sT}, s{sT+1}")
    e("v_bfe_u32 v6, v0, 3, 2"); e("v_and_b32 v7, 7, v0"); e("v_lshlrev_b32 v6, 13, v6"); e("v_lshl_add_u32 v6, v7, 7, v6")
    P.vm(f"buffer_load_dword a255, v6, {srd(SWQ)}, s{sT} offen")
if CODEPF:
    P.cmt("pull the kernel's own code into L2")
    e(f"s_getpc_b64 {sr(sT+1,2)}")
    lab("L_pc")
    e(f"s_lshl_b32 s{sT}, s{sM}, 2"); e(f"s_add_u32 s{sT}, s{sT}, s{sW}"); e(f"s_and_b32 s{sT}, s{sT}, 15")
    e(f"s_lshl_b32 s{sT}, s{sT}, 13")
    e(f"v_add_u32 v6, s{sT}, v{vLANE}"); e("v_min_u32 v6, L_end-L_pc, v6")
    e(f"v_mov_b32 v7, s{sT+2}"); e(f"v_add_co_u32 v6, vcc, s{sT+1}, v6"); e("v_addc_co_u32 v7, vcc, 0, v7, vcc")
    P.vm("global_load_dword a255, v[6:7], off")
e(f"s_lshl_b32 s{sT}, s{sW}, 17"); e(f"s_lshl_b32 s{sT+1}, s{sG}, 7"); e(f"s_add_u32 s{sT}, s{sT}, s{sT+1}")
dma_voff(vDW2, 1024, True, f"s{sT}")
e(f"s_lshl_b32 s{sT+2}, s{sW}, 14")
for d, p in ((SK, 66), (SV, 68)):
    e(f"s_lshl_b32 s{sT}, s{sG}, 19")
    e(f"s_add_u32 s{d}, s{p}, s{sT}"); e(f"s_addc_u32 s{d+1}, s{p+1}, 0"); e(f"s_mov_b32 s{d+2}, 0x80000"); e(f"s_mov_b32 s{d+3}, 0x20000")
for d, p, size in ((SWO, 72, 0x400000), (SW2, 78, 0x80000), (SW3, 80, 1835008), (SW4, 82, 1835008),
                   (SOUT, 84, 0x200000), (SDBG, 86, 256)):
    e(f"s_mov_b32 s{d}, s{p}"); e(f"s_mov_b32 s{d+1}, s{p+1}"); e(f"s_mov_b32 s{d+2}, {size}"); e(f"s_mov_b32 s{d+3}, 0x20000")
for k in range(2):
    Tile(SW1, vDW2, k * 65536, 1024, True, (f"s{sT+2}", k * 8192), "w1").issue()
e(f"s_lshl_b32 s{sRING}, s{sW}, 13"); e(f"s_add_u32 s{sRING}, s{sRING}, {RING}")
e(f"s_lshl_b32 s{sT}, s{sG}, 10"); e(f"s_lshl_b32 s{sT+1}, s{sW}, 8"); e(f"s_add_u32 s{sT}, s{sT}, s{sT+1}")
dma_voff(vDW, 8192, True, f"s{sT}")
qt = [ring_tile(SWQ, vDW, (i // 2) * 64 * 8192 + (i % 2) * 128, 8192, True, i % 3, ("wq", i), kp=i // 2, nh=i % 2)
      for i in range(16)]
qt += [ring_tile(SW2, vDW2, k * 4 * 65536, 1024, False, 1 + k, "w2") for k in range(2)]
for i in range(3): qt[i].issue()
for r, v in ((sLO, "0x00003f80"), (sHI, "0x3f800000"), (sONE2, "0x3f803f80"), (sC1, f2u(GC1)), (sC2, f2u(GC2)),
             (sNL2E, f2u(-LOG2E)), (sREDO, 0), (sSPIN, 0)):
    e(f"s_mov_b32 s{r}, {v}")
e(f"v_mov_b32 v{vTC1}, s{sC1}")
e(f"s_mul_i32 s{sFL}, s{sM}, 24"); e(f"s_lshl_b32 s{sT}, s{sW}, 1"); e(f"s_add_u32 s{sFL}, s{sFL}, s{sT}")
e(f"s_lshl_b32 s{sFL}, s{sFL}, 7"); e(f"s_lshl_b32 s{sT}, s{sG}, 2"); e(f"s_add_u32 s{sFL}, s{sFL}, s{sT}")
e(f"s_add_u32 s{sFL}, s{sFL}, {WS_FL}")
e("v_lshrrev_b32 v6, 1, v0"); e("v_and_b32 v7, 1, v0"); e("v_lshlrev_b32 v6, 10, v6"); e("v_lshl_add_u32 v6, v7, 7, v6")
e(f"v_mov_b32 v{vONE}, 0")
e("s_mov_b64 exec, 63")
P.vm(f"buffer_store_dword v{vONE}, v6, {srd(SWS)}, s{sFL} offen sc1", "clr")
e("s_mov_b64 exec, -1")
e(f"s_lshl_b32 s{sT}, s{sM}, 19"); e(f"s_lshl_b32 s{sPP}, s{sW}, 17"); e(f"s_add_u32 s{sPP}, s{sPP}, s{sT}")
e(f"s_lshl_b32 s{sT+1}, s{sG}, 13"); e(f"s_add_u32 s{sPP}, s{sPP}, s{sT+1}")
e(f"s_lshl_b32 s{sPC}, s{sG}, 16"); e(f"s_add_u32 s{sPC}, s{sPC}, s{sT}")
e(f"s_lshl_b32 s{sT+1}, s{sW}, 11"); e(f"s_add_u32 s{sPC}, s{sPC}, s{sT+1}")
e(f"s_lshl_b32 s{sHO}, s{sG}, 18")
e("v_lshrrev_b32 v6, 2, v0"); e("v_and_b32 v7, 3, v0"); e("v_lshlrev_b32 v7, 3, v7"); e("v_lshl_add_u32 v7, v6, 7, v7")
e("v_bfe_u32 v6, v0, 3, 2")
for nb in range(4):
    e(f"v_xor_b32 v10, {nb}, v6"); e(f"v_lshl_add_u32 v{vAS+nb}, v10, 5, v7")
    e(f"v_add_u32 v{vAA+nb}, s{sRING}, v{vAS+nb}"); e(f"v_add_u32 v{vAA2+nb}, 0x10000, v{vAA+nb}")
e("v_min_u32 v6, 2, v0"); e(f"v_add_u32 v6, s{sM}, v6"); e("v_add_u32 v6, -1, v6"); e("v_med3_i32 v6, v6, 0, 31")
e(f"v_lshlrev_b32 v{vPA}, 3, v6")
e(f"s_lshl_b32 s{sT}, s{sW}, 16"); e(f"s_lshl_b32 s{sT+1}, s{sG}, 7"); e(f"s_add_u32 s{sT}, s{sT}, s{sT+1}")
dma_voff(vDW2, 1024, False, f"s{sT}")
e(f"v_mov_b32 v{vONE}, 1")

layernorm([("x", ks) for ks in range(16)], True)
vSC1 = vT + 4
stamp()
P.wait(["w1"]); e("s_barrier")
gemm_shared(lambda ks: vr(XR + 4 * ks, 4), lambda ks: (), "g1")
e("s_barrier")
e(f"s_lshl_b32 s{sT}, s{sW}, 10"); e(f"v_add_u32 v{vTA}, s{sT}, v{vBA}")
for ks in range(16):
    P.lds(f"ds_write_b128 v{vTA}, {vr(XR+4*ks,4)} offset:{ks*4096}", "xw")
gemm_pre(qt, 0)
gelu(G12, 16, 0, lambda i: 16 + i, scale=vSC1)
for s in range(2):
    e(f"s_add_u32 s{sSO}, s{sHO}, {WS_H + s*PLANE}")
    P.vm(f"buffer_store_dwordx4 {vr(16+4*s,4)}, v{vTOK}, {srd(SWS)}, s{sSO} offen sc1", "hst")
for nb in range(4): e(f"v_add_u32 v{vAS+nb}, {RING + 32768}, v{vAS+nb}")
vHS = vT + 8
e(f"v_lshrrev_b32 v{vTA}, 6, v{vTOK}")
for k, d in enumerate((-1, 1, -2, 2)):
    e(f"v_add_u32 v{vTA+1}, {d}, v{vTA}"); e(f"v_cmp_gt_u32 vcc, 0x800, v{vTA+1}")
    e(f"v_add_u32 v{vTA+1}, {64*d}, v{vTOK}"); e(f"v_mov_b32 v{vHS+k}, 0x7f000000")
    e(f"v_cndmask_b32 v{vHS+k}, v{vHS+k}, v{vTA+1}, vcc")
vXSO, vXS = vT + 12, vT + 14
e(f"v_lshlrev_b32 v{vXSO}, 10, v{vTA}"); e(f"v_bfe_u32 v{vTA+1}, v{vBA}, 8, 2"); e(f"v_lshl_add_u32 v{vXSO}, v{vTA+1}, 3, v{vXSO}")
e(f"s_lshl_b32 s{sT}, s{sG}, 7"); e(f"v_add_u32 v{vXSO}, s{sT}, v{vXSO}")
P.wait(["xw"]); e("s_barrier")
stamp()

extra = {}
add = lambda g, its: extra.setdefault(g, []).extend(its)
add(3 * 32 + 2, [It(None, "s", need=["hst", "clr"])])
add(3 * 32 + 3, [It("s_barrier", "s")])
add(3 * 32 + 6, [It(f"s_lshl_b32 s{sT}, s{sM}, 3", "s")])
add(3 * 32 + 7, [It(f"s_cmp_lg_u32 s{sW}, 0\n    s_cbranch_scc1 L_noarr\n    s_mov_b64 exec, 1\n"
                    f"    buffer_atomic_add v{vONE}, off, {srd(SDBG)}, s{sT} sc1\n    s_mov_b64 exec, -1\nL_noarr:", "s")])
if TOUCH:
    add(5 * 32 + 6, [It(f"s_lshl_b32 s{sT}, s{sM}, 14", "s")])
    add(5 * 32 + 8, [It(f"s_and_b32 s{sT+1}, s{sW}, 1", "s")])
    add(5 * 32 + 10, [It(f"s_lshl_b32 s{sT+1}, s{sT+1}, 13", "s")])
    add(5 * 32 + 12, [It(f"s_add_u32 s{sT}, s{sT}, s{sT+1}", "s")])
    add(5 * 32 + 15, [It(f"buffer_load_dword a255, v{vLANE}, {srd(SK)}, s{sT} offen", "g")])
    add(5 * 32 + 19, [It(f"buffer_load_dword a255, v{vLANE}, {srd(SV)}, s{sT} offen", "g")])
for nb in range(4):
    add(8 * 32 + 3 + 8 * nb, [It(f"buffer_load_dwordx2 {vr(vXS+2*nb,2)}, v{vXSO}, {srd(SX)}, 0 offen offset:{nb*32}", "g", "xs")])
add(12 * 32 + 23, [poll_issue(SDBG, 0, "p1")])
add(13 * 32 + 22, poll_check("h", SDBG, 0, "p1", 8))
for ks in range(16):
    g = 13 * 32 + 27 + 4 * ks
    add(g, [It(f"s_mov_b32 s{sT}, {WS_H + ks*PLANE}", "s"),
            It(f"buffer_load_dwordx4 {ar(HB(ks),4)}, v{vHS + ks//4}, {srd(SWS)}, s{sT} offen sc1", "g", ("h", ks))])
pending = []
gemm(qt, 0, 16, "q", pending, extra)
flush(pending)
stamp()
for tb in range(4):
    for s in range(4):
        b = ACC(s // 2, 2 * (s % 2), tb)
        for j in range(4): e(f"v_cvt_pk_bf16_f32 v{Q(tb,s)+j}, v{b+2*j}, v{b+2*j+1}")
    for sw in ("v_permlane32_swap_b32", "v_permlane16_swap_b32"):
        for s in range(4):
            for j in range(2): e(f"{sw} v{Q(tb,s)+j}, v{Q(tb,s)+2+j}")
for i in range(8):
    e(f"v_dot2_f32_bf16 v{2*i}, v{vXS+i}, s{sLO}, v{vNMEAN}", need=["xs"])
    e(f"v_dot2_f32_bf16 v{2*i+1}, v{vXS+i}, s{sHI}, v{vNMEAN}")
for i in range(8): e(f"v_accvgpr_write_b32 a{aXS+i}, v{vXS+i}")
e(f"v_lshrrev_b32 v16, 4, v{vBA}"); e("v_and_b32 v17, 15, v16"); e("v_lshrrev_b32 v18, 4, v16")
e("v_xor_b32 v19, v18, v17")
for s in range(4):
    e(f"v_xor_b32 v20, {4*s}, v19"); e("v_lshlrev_b32 v20, 4, v20"); e(f"v_lshl_add_u32 v{KA(s)}, v17, 8, v20")
e("v_lshrrev_b32 v19, 2, v16"); e("v_lshlrev_b32 v20, 8, v19"); e("v_and_b32 v21, 3, v16")
e("v_lshl_add_u32 v20, v21, 3, v20"); e(f"v_add_u32 v20, {VOFF}, v20"); e("v_and_b32 v19, 7, v19")
for db in range(8):
    e(f"v_xor_b32 v21, {db}, v19"); e(f"v_lshl_add_u32 v{VA(db)}, v21, 5, v20")
e(f"s_lshl_b32 s{sT}, s{sW}, 12"); e(f"v_lshl_add_u32 v20, v18, 8, s{sT}")
for i in range(4):
    e(f"v_add_u32 v19, {4*i}, v18"); e("v_xor_b32 v21, v19, v17"); e(f"v_lshl_add_u32 v{KG(i)}, v21, 4, v20")
    if i < 2:
        e("v_lshlrev_b32 v19, 1, v19"); e("v_xor_b32 v21, v19, v17"); e(f"v_lshl_add_u32 v{VG(i)}, v21, 4, v20")
for i in range(4):
    e(f"s_add_u32 s{sKM0+i}, s{sT}, {i*16384}"); e(f"s_add_u32 s{sVM0+i}, s{sT}, {VOFF + i*16384}")
e(f"s_lshl_b32 s{sKOFF}, s{sM}, 14"); e(f"s_mov_b32 s{sVOFF}, s{sKOFF}")
for qb in range(4): e(f"v_mov_b32 v{PM(qb)}, 0xff800000")
e(f"s_lshl_b32 s{sT}, s{sG}, 19"); e(f"s_lshl_b32 s{sT+1}, s{sW}, 8"); e(f"s_add_u32 s{sT}, s{sT}, s{sT+1}")
dma_voff(vDW, 1024, False, f"s{sT}")
P.wait(["w2"]); e("s_barrier")
stamp()

extra = {}
g = 1
for kind, tile in (("K", 0), ("K", 1), ("V", 0), ("K", 2), ("V", 1), ("K", 3)):
    gs, adv = kv_dma(kind, tile)
    for a, b in gs:
        add(g - 1, a); add(g, b); g += 2
    add(g - 1, adv[:1]); add(g, adv[1:]); g += 2
gemm_shared(lambda ks: ar(HB(ks), 4), lambda ks: [("h", ks)], "g2", extra)
for i in range(16): e(f"v_fma_f32 v{i}, v{i}, v{vRSTD}, v{G12+i}")
for i in range(8): e(f"v_cvt_pk_bf16_f32 v{16+i}, v{2*i}, v{2*i+1}")
for s in range(2):
    e(f"s_add_u32 s{sSO}, s{sHO}, {WS_X1 + s*PLANE}")
    P.vm(f"buffer_store_dwordx4 {vr(16+4*s,4)}, v{vTOK}, {srd(SWS)}, s{sSO} offen sc1", "x1st")
for i in range(8): e(f"v_accvgpr_write_b32 a{aX1+i}, v{16+i}")
e(f"v_mov_b32 v{vTA}, s{sONE2}")
for i in range(4): e(f"v_accvgpr_write_b32 a{aONES+i}, v{vTA}")
P.wait([("K", 1)]); e("s_barrier")
ot = [ring_tile(SWO, vDW, (i // 2) * 65536 + (i % 2) * 128, 1024, False, (i + 2) % 3, ("wo", i), kp=i // 2, nh=i % 2)
      for i in range(16)]
ot += [ring_tile(SW3, vDW2, k * 64 * 3584, 3584, False, (16 + k + 2) % 3, ("w3", k), kp=k) for k in range(8)]
ot += [ring_tile(SW4, vDW, (i // 2) * 65536 + (i % 2) * 128, 1024, False, (24 + i + 2) % 3, ("w4", i),
                 rows=64 if i < 6 else 32, kp=i // 2, nh=i % 2) for i in range(8)]
kv_issue("V", 2)
ot[0].issue()
if TOUCH:
    P.cmt("first touch of the weights used after attention")
    e(f"s_lshl_b32 s{sT}, s{sG}, 19"); e(f"s_lshl_b32 s{sT+1}, s{sM}, 14"); e(f"s_add_u32 s{sT}, s{sT}, s{sT+1}")
    e(f"s_and_b32 s{sT+1}, s{sW}, 1"); e(f"s_lshl_b32 s{sT+1}, s{sT+1}, 13"); e(f"s_add_u32 s{sT}, s{sT}, s{sT+1}")
    P.vm(f"buffer_load_dword a255, v{vLANE}, {srd(SWO)}, s{sT} offen")
    e(f"s_mul_i32 s{sT}, s{sG}, {224*1024}"); e(f"s_mul_i32 s{sT+1}, s{sM}, 7168"); e(f"s_add_u32 s{sT}, s{sT}, s{sT+1}")
    P.vm(f"buffer_load_dword a255, v{vLANE}, {srd(SW4)}, s{sT} offen")
    e(f"v_lshrrev_b32 v16, 6, v{vBA}"); e("v_mul_u32_u24 v16, 3584, v16"); e(f"v_bfe_u32 v17, v{vBA}, 4, 2")
    e("v_lshl_add_u32 v16, v17, 7, v16")
    e(f"s_mul_i32 s{sT}, s{sG}, 448"); e(f"s_mul_i32 s{sT+1}, s{sM}, {16*3584}"); e(f"s_add_u32 s{sT}, s{sT}, s{sT+1}")
    P.vm(f"buffer_load_dword a255, v16, {srd(SW3)}, s{sT} offen")
stamp()

lab("L_attn")
mf = qk_mfmas(-1, zero=True)
gaps = {}
pre = []
for f in range(16):
    it = frag_reads(-1, f)[0]
    if f < 4: pre.append(it)
    else: gaps.setdefault(((f // 4) - 1) * 16 + 1 + 2 * (f % 4), []).append(it)
for f in range(4):
    gaps.setdefault(50 + 2 * f, []).extend(frag_reads(0, f)); issued.add((0, f))
fill = [It(f"v_accvgpr_write_b32 a{i}, 0", "v") for i in list(range(128)) + list(range(192, 208))]
P.puts(pre)
P.run_gaps([m for m, _ in mf], gaps, fill)
P.puts(fill)
for qb in range(4):
    regs = [S(0, kb, qb) + i for kb in range(4) for i in range(4)]
    d = NM(qb)
    e(f"v_max3_f32 v{d}, v{regs[0]}, v{regs[1]}, v{PM(qb)}")
    for i in range(2, 16, 2): e(f"v_max3_f32 v{d}, v{d}, v{regs[i]}, v{regs[i+1]}")
allreduce("v_max_f32", [NM(qb) for qb in range(4)], [NM(qb) + 1 for qb in range(4)])
for qb in range(4):
    for i in (1, 2, 3, 0): e(f"v_sub_f32 v{NM(qb)+i}, 0, v{NM(qb)}")
    for ks in range(2):
        for i in range(0, 8, 2):
            r = vr(PR(0, ks, qb) + i, 2)
            e(f"v_pk_add_f32 {r}, {r}, {vr(NM(qb),2)}")
ex, post = sm_stream(0, 0)
for i in range(33):
    if i < 32: P.put(ex[i])
    if i: P.puts(post[i - 1])
P.puts(set_flags(0, 1, ["x1st"]))
e(f"s_mov_b32 s{sCNT}, 0")
P.wait([("K", 2), ("V", 0)] + [("F", 0, f) for f in range(4)]); e("s_barrier")
stamp()
P.lq = []
P.vq = [("V", 1)] * 4 + [("K", 3)] * 4 + [("V", 2)] * 4
entry = list(P.vq)
P.raw(".p2align 6")
lab("L_loop")
for t in range(4):
    ts = [f"s_add_u32 s{sCNT}, s{sCNT}, 1", f"s_cmp_lt_u32 s{sCNT}, 7"] if t == 3 else []
    attn_iter(t, [kv_dma("K", t + 4), kv_dma("V", t + 3)], tail_scalar=ts)
assert [(k, n - 4) for k, n in P.vq] == entry and not P.lq, (P.vq, P.lq)
e("s_cbranch_scc1 L_loop")
P.vq = [(k, n + 24) for k, n in P.vq]
issued |= {(28, f) for f in range(4)}
attn_iter(28, [kv_dma("V", 31)])
attn_iter(29, [])
attn_iter(30, [])
vR = NM(0)
extra = {}
chk = [It(f"v_accvgpr_read_b32 v{vR+qb}, a{LACC(qb)}", "v") for qb in range(4)]
chk += [It(f"v_add_f32 v{vR+5}, v{vR}, v{vR+1}", "v"),
        It(f"v_add_f32 v{vR+4}, v{vR+2}, v{vR+3}", "v"), It(f"v_add_f32 v{vR+4}, v{vR+4}, v{vR+5}", "v"),
        It(f"v_cmp_nle_f32 vcc, v{vR+4}, v{vR+6}", "v"),
        It(f"v_lshlrev_b32 v{vR+5}, 7, v{vLANE}", "v"),
        It(f"s_cmp_lg_u64 vcc, 0\n    s_cselect_b32 s{sT}, 1, 0\n    s_lshl_b32 s{sT+1}, s{sW}, 2", "v"),
        It(f"v_mov_b32 v{vR+4}, s{sT}", "v"), It(f"v_add_u32 v{vR+5}, s{sT+1}, v{vR+5}", "v")]
add(40, [It(f"v_mov_b32 v{vR+6}, {f2u(0.0 if FORCE_REDO else 2.0**40)}", "v")])
for i, it in enumerate(chk): add(44 + i // 2, [it])
add(51, [It(f"s_mov_b64 exec, 15\n    ds_write_b32 v{vR+5}, v{vR+4}\n    s_mov_b64 exec, -1", "l", "vote")])
for qb in range(4): add(52 + qb, [It(f"v_rcp_f32 v{vR+8+2*qb}, v{vR+qb}", "x")])
add(57, [It(f"s_lshl_b32 s{sT}, s{sW}, 14", "s"), It(f"v_mov_b32 v{vR+5}, s{sT}", "v")])
add(60, [It(None, "s", need=["vote"])])
add(61, [It("s_barrier", "s")])
add(62, [It(f"ds_read_b128 {vr(vR,4)}, v{vR+5}", "l", "votes")])
attn_iter(31, [(ot[1].dma(), [])], last=True, extra=extra)
e(f"v_or3_b32 v{vR}, v{vR}, v{vR+1}, v{vR+2}", need=["votes"]); e(f"v_or_b32 v{vR}, v{vR}, v{vR+3}")
e(f"v_readfirstlane_b32 s{sT}, v{vR}")
e(f"s_andn2_b32 s{sT}, s{sT}, s{sREDO}"); e("s_cbranch_scc1 L_redo")
stamp()

e(f"s_lshl_b32 s{sT}, s{sW}, 14"); e(f"v_add_u32 v{vTA}, s{sT}, v{vBA}")
e(f"v_and_b32 v{vPA}, 0x70, v{vBA}"); e(f"v_lshrrev_b32 v{vPA}, 2, v{vPA}")
e(f"s_mul_i32 s{sT+2}, s{sM}, {24*128}"); e(f"s_add_u32 s{sT+2}, s{sT+2}, {WS_FL}")
e(f"s_lshl_b32 s{sT}, s{sW}, 8"); e(f"s_add_u32 s{sT+3}, s{sT+2}, s{sT}")
e(f"s_lshl_b32 s{sT}, s{sG}, 7"); e(f"s_add_u32 s{sT+2}, s{sT+2}, s{sT}")
e(f"s_add_u32 s{sKOFF}, s{sT+2}, 1024"); e(f"s_add_u32 s{sVOFF}, s{sT+2}, 2048")
P.put(poll_issue(SWS, f"s{sT+3}", "p2"))
for s in range(4):
    for qb in range(4):
        b = (s * 4 + qb) * 8
        for h in range(2):
            for j in range(4): e(f"v_accvgpr_read_b32 v{b+4*h+j}, a{O(2*s+h,qb)+j}")
        for j in range(0, 8, 2): e(f"v_pk_mul_f32 {vr(b+j,2)}, {vr(b+j,2)}, {vr(vR+8+2*qb,2)} op_sel_hi:[1,0]")
        for j in range(4): e(f"v_cvt_pk_bf16_f32 v{b+j}, v{b+2*j}, v{b+2*j+1}")
        P.lds(f"ds_write_b128 v{vTA}, {vr(b,4)} offset:{(s*4+qb)*1024}", "ow")
gemm_pre(ot, 0)
P.puts(poll_check("x1", SWS, f"s{sT+3}", "p2", 1))
e(f"s_mul_i32 s{sT}, s{sG}, 448"); e(f"s_lshl_b32 s{sT+1}, s{sW}, 7"); e(f"s_add_u32 s{sT}, s{sT}, s{sT+1}")
dma_voff(vDW2, 3584, False, f"s{sT}")
P.wait(["ow"]); e("s_barrier")
stamp()
extra = {}
for ks in range(16):
    add(8 * 32 + 3 + 8 * ks, [It(f"s_mov_b32 s{sT}, {WS_X1 + ks*PLANE}", "s"),
                              It(f"buffer_load_dwordx4 {vr(XR+4*ks,4)}, v{vTOK}, {srd(SWS)}, s{sT} offen sc1", "g", ("x1", ks))])
pending = ot[2].dma()
gemm(ot, 0, 16, "o", pending, extra)
flush(pending)
stamp()
pack_store_partials(WS_PS, "ps")
e(f"s_mul_i32 s{sT}, s{sG}, {224*1024}"); e(f"s_lshl_b32 s{sT+1}, s{sW}, 8"); e(f"s_add_u32 s{sT}, s{sT}, s{sT+1}")
dma_voff(vDW, 1024, False, f"s{sT}")
e("s_barrier")
layernorm([("x1", ks) for ks in range(16)], False)
e(f"s_lshl_b32 s{sT}, s{sW}, 10"); e(f"v_add_u32 v{vTA}, s{sT}, v{vBA}")
for ks in range(16):
    P.lds(f"ds_write_b128 v{vTA}, {vr(XR+4*ks,4)} offset:{ks*4096}", "xw2")
gemm_pre(ot, 16)
P.puts(set_flags(8, 2, ["ps"]))
P.wait(["xw2"]); e("s_barrier")
stamp()
gemm(ot, 16, 8, "g3", pending)
flush(pending)
e("s_barrier")
stamp()
P.put(poll_issue(SWS, f"s{sKOFF}", "p3"))
gelu(0, 64, 64, lambda i: 128 + i)
e(f"s_lshl_b32 s{sT}, s{sW}, 13"); e(f"v_add_u32 v{vTA}, s{sT}, v{vBA}")
for tb in range(4):
    for s in range(2):
        P.lds(f"ds_write_b128 v{vTA}, {vr(128 + tb*8 + 4*s,4)} offset:{(s*4+tb)*1024}", "hw")
gemm_pre(ot, 24)
P.puts(poll_check("ps", SWS, f"s{sKOFF}", "p3", 1))
P.wait(["hw"]); e("s_barrier")
stamp()
extra = {}
psr = lambda g, s: 128 + (g * 2 + s) * 4
its = load_partials(WS_PS, psr, "psl")
for g in range(8):
    its[3 * g].t = its[3 * g].t.replace(f"s{sSO},", f"s{sT},")
    for s in range(2): its[3 * g + 1 + s].t = its[3 * g + 1 + s].t.replace(f"s{sSO} ", f"s{sT} ")
    add(64 + 16 * g + 3, its[3 * g:3 * g + 2]); add(64 + 16 * g + 11, its[3 * g + 2:3 * g + 3])
gemm(ot, 24, 8, "g4", pending, extra)
stamp()
pack_store_partials(WS_PH, "ph")
vS, vY = 192, 208
for g in range(8):
    for s in range(2):
        for j in range(4):
            for h, sel in enumerate((sLO, sHI)):
                d = vS + s * 8 + 2 * j + h
                e(f"v_dot2_f32_bf16 v{d}, v{psr(g,s)+j}, s{sel}, {'v%d' % d if g else 0}", need=[("psl", g, s)])
P.puts(set_flags(16, 2, ["ph"]))
P.put(poll_issue(SWS, f"s{sVOFF}", "p4"))
for i in range(8): e(f"v_accvgpr_read_b32 v{128+i}, a{aX1+i}")
for i in range(8): e(f"v_accvgpr_read_b32 v{136+i}, a{aXS+i}")
for i in range(8):
    e(f"v_lshlrev_b32 v{vY+2*i}, 16, v{128+i}"); e(f"v_and_b32 v{vY+2*i+1}, 0xffff0000, v{128+i}")
    e(f"v_lshlrev_b32 v{144+2*i}, 16, v{136+i}"); e(f"v_and_b32 v{145+2*i}, 0xffff0000, v{136+i}")
e(f"v_lshrrev_b32 v160, 6, v{vTOK}"); e("v_lshlrev_b32 v160, 10, v160"); e(f"v_bfe_u32 v161, v{vBA}, 8, 2")
e("v_lshl_add_u32 v160, v161, 4, v160"); e(f"s_lshl_b32 s{sT+1}, s{sG}, 7")
P.puts(poll_check("ph", SWS, f"s{sVOFF}", "p4", 1))
stamp()
phr = lambda g, s: (g * 2 + s) * 4
P.puts(load_partials(WS_PH, phr, "phl"))
for g in range(8):
    for s in range(2):
        for j in range(4):
            for h, sel in enumerate((sLO, sHI)):
                d = vY + s * 8 + 2 * j + h
                e(f"v_dot2_f32_bf16 v{d}, v{phr(g,s)+j}, s{sel}, v{d}", need=[("phl", g, s)])
for i in range(16): e(f"v_mul_f32 v{64+i}, s{sNL2E}, v{vY+i}")
for i in range(16): e(f"v_exp_f32 v{64+i}, v{64+i}")
for i in range(0, 16, 2): e(f"v_pk_add_f32 {vr(64+i,2)}, {vr(64+i,2)}, 1.0 op_sel_hi:[1,0]")
for i in range(16): e(f"v_rcp_f32 v{64+i}, v{64+i}")
for i in range(0, 16, 2): e(f"v_pk_mul_f32 {vr(64+i,2)}, {vr(64+i,2)}, {vr(vY+i,2)}")
for i in range(0, 16, 2): e(f"v_pk_fma_f32 {vr(64+i,2)}, {vr(64+i,2)}, {vr(vS+i,2)}, {vr(144+i,2)}")
for i in range(8): e(f"v_cvt_pk_bf16_f32 v{80+i}, v{64+2*i}, v{65+2*i}")
for sw in ("v_permlane32_swap_b32", "v_permlane16_swap_b32"):
    for s in range(2):
        for j in range(2): e(f"{sw} v{80+4*s+j}, v{82+4*s+j}")
for s in range(2):
    P.vm(f"buffer_store_dwordx4 {vr(80+4*s,4)}, v160, {srd(SOUT)}, s{sT+1} offen offset:{s*64}")
if STAMP:
    P.wait_all()
    stamp()
    e(f"s_lshl_b32 s{sT}, s2, 2"); e(f"s_add_u32 s{sT}, s{sT}, s{sW}"); e(f"s_lshl_b32 s{sT}, s{sT}, 8")
    e(f"s_add_u32 s{sT}, s{sT}, {WS_ST}"); e(f"v_lshrrev_b32 v0, 2, v{vBA}")
    P.vm(f"buffer_store_dword v{vSTAMP}, v0, {srd(SWS)}, s{sT} offen")
e("s_endpgm")

for name, s_rd, soff, target in slow_paths:
    lab(f"L_slow_{name}")
    e("s_sleep 1")
    e(f"buffer_load_dword v{vPOLL}, v{vPA}, {srd(s_rd)}, {soff} offen sc1")
    e(f"s_add_u32 s{sSPIN}, s{sSPIN}, 1")
    e("s_waitcnt vmcnt(0)")
    e(f"v_cmp_gt_u32 vcc, {target}, v{vPOLL}")
    e(f"s_cmp_gt_u32 s{sSPIN}, 0x200000"); e(f"s_cbranch_scc1 L_back_{name}")
    e(f"s_cbranch_vccnz L_slow_{name}")
    e(f"s_branch L_back_{name}")

lab("L_redo")
e(f"s_mov_b32 s{sREDO}, 1"); e(f"s_mov_b32 s{sCNT}, 0"); e(f"s_mov_b32 s{sKOFF}, 0")
lab("L_rmax")
P.wait_all(); e("s_barrier")
kv_issue("K", 0)
P.wait_all(); e("s_barrier")
for f in range(16): P.puts(frag_reads(-1, f))
P.puts([m for m, _ in qk_mfmas(-1, zero=True)])
for qb in range(4):
    regs = [S(0, kb, qb) + i for kb in range(4) for i in range(4)]
    for i in range(0, 16, 2): e(f"v_max3_f32 v{PM(qb)}, v{PM(qb)}, v{regs[i]}, v{regs[i+1]}")
e(f"s_add_u32 s{sCNT}, s{sCNT}, 1"); e(f"s_cmp_lt_u32 s{sCNT}, 32"); e("s_cbranch_scc1 L_rmax")
e("s_barrier")
e(f"s_lshl_b32 s{sKOFF}, s{sM}, 14"); e(f"s_mov_b32 s{sVOFF}, s{sKOFF}")
for kind, tile in (("K", 0), ("K", 1), ("V", 0), ("K", 2), ("V", 1), ("K", 3), ("V", 2)): kv_issue(kind, tile)
P.wait_all(); e("s_barrier")
e("s_branch L_attn")
lab("L_end")
e("s_endpgm")
P.L += ['.section .rodata,"a"', ".p2align 6", f".amdhsa_kernel {NAME}",
        "  .amdhsa_next_free_vgpr 512", "  .amdhsa_next_free_sgpr 102", "  .amdhsa_accum_offset 256",
        "  .amdhsa_group_segment_fixed_size 0", "  .amdhsa_kernarg_size 104", "  .amdhsa_user_sgpr_count 2",
        "  .amdhsa_user_sgpr_kernarg_segment_ptr 1", "  .amdhsa_system_sgpr_workgroup_id_x 1",
        "  .amdhsa_float_denorm_mode_32 3", ".end_amdhsa_kernel"]
lines = "\n".join(P.L).split("\n")
lines, added = fix_hazards(lines)
open(OUT_PATH, "w").write("\n".join(lines) + "\n")
print(f"{OUT_PATH}: {len(lines)} lines, {added} wait states padded, {nstamp[0]} stamps", file=sys.stderr)
```

```python
import math
import struct
import sys
from asmlib import *

OUT_PATH = sys.argv[1]
opt = dict(a.split("=") for a in sys.argv[2:])
STAMP = int(opt.get("stamp", 0))
FORCE_REDO = int(opt.get("redo", 0))
TOUCH = int(opt.get("touch", 1))
CODEPF = int(opt.get("codepf", 1))
AHEAD = int(opt.get("ahead", 12))

NAME = "recurrent_scan__gqa_block_cached__mixer_s_mlp__prompt_kernel"
MF = "v_mfma_f32_16x16x32_bf16"
f2u = lambda x: "0x%08x" % struct.unpack("<I", struct.pack("<f", x))[0]
LOG2E = math.log2(math.e)
QSCALE = LOG2E / math.sqrt(128.0)
GC1 = -2.0 * math.sqrt(2.0 / math.pi) * LOG2E
GC2 = GC1 * 0.044715

SX, SK, SV, SWS, SWQ, SWO, SW1, SW2, SW3, SW4, SOUT, SDBG = range(4, 52, 4)
sG, sM, sW = 52, 53, 54
sT = 55
sKM0, sVM0, sKOFF, sVOFF, sCNT, sREDO, sRING, sSO = 60, 64, 68, 69, 70, 71, 72, 73
sLO, sHI, sONE2, sC1, sC2, sNL2E = 74, 75, 76, 77, 78, 79
sPP, sPC, sFL, sSPIN, sHO, sHK, sF1, sF2, sF3 = 80, 81, 82, 83, 84, 85, 86, 87, 88
sST = 92
srd = lambda b: sr(b, 4)

WS_H, WS_X1, WS_PS, WS_PH, WS_FL, WS_ST = 0, 0x200000, 0x400000, 0x1400000, 0x2400000, 0x4000000
PLANE = 131072

vBA, vTOK, vNMEAN, vRSTD = 255, 254, 253, 252
vAA2, vAA, vAS = 248, 244, 240
vDW, vDW2, vPOLL, vPA, vSTAMP, vONE, vLANE = 239, 238, 237, 236, 235, 234, 233
vT = 208
XR = 128
G12 = 192
S = lambda buf, kb, qb: buf * 64 + ((kb >> 1) * 4 + qb) * 8 + (kb & 1) * 4
PR = lambda buf, ks, qb: buf * 64 + (ks * 4 + qb) * 8
Q = lambda qb, s: 128 + (qb * 4 + s) * 4
NM = lambda qb: 192 + 4 * qb
KA = lambda s: 208 + s
VA = lambda db: 212 + db
KG = lambda i: 220 + i
VG = lambda i: 224 + (i & 1)
PM = lambda qb: 226 + qb
vTA = 230
O = lambda db, qb: (db * 4 + qb) * 4
FR = lambda f: 128 + (f % 8) * 4
LACC = lambda qb: 192 + 4 * qb
aONES, aXS, aX1, aG2 = 208, 212, 220, 228
AF = lambda f: 128 + (f % 8) * 4
BF = lambda kp, ks, tb: 64 + (kp & 1) * 32 + (ks * 4 + tb) * 4
accbase = [0]
ACC = lambda nh, nb, tb: accbase[0] + ((nh * 4 + tb) * 4 + nb) * 4
HB = lambda ks: 160 + (ks % 8) * 4

RING, VOFF = 65536, 65536

P = Prog()
e, lab = P.e, P.lab
slow_paths = []
nstamp = [0]


def stamp():
    if not STAMP:
        return
    i = nstamp[0]; nstamp[0] += 1
    e(f"s_memtime {sr(sST,2)}"); e(f"s_memrealtime {sr(sST+2,2)}")
    P.wait_all(vm=False)
    e(f"v_writelane_b32 v{vSTAMP}, s{sST}, {2*i}")
    e(f"v_writelane_b32 v{vSTAMP}, s{sST+2}, {2*i+1}")


def allreduce(op, regs, tmps):
    for sw in ("v_permlane32_swap_b32", "v_permlane16_swap_b32"):
        for r, t in zip(regs, tmps): e(f"v_mov_b32 v{t}, v{r}")
        for r, t in zip(regs, tmps): e(f"{sw} v{r}, v{t}")
        for r, t in zip(regs, tmps): e(f"{op} v{r}, v{r}, v{t}")


def poll_issue(s_rd, soff, tag):
    return It(f"buffer_load_dword v{vPOLL}, v{vPA}, {srd(s_rd)}, {soff} offen sc1", "g", tag)


def poll_check(name, s_rd, soff, tag, target):
    slow_paths.append((name, s_rd, soff, target))
    return [It(f"v_cmp_gt_u32 vcc, {target}, v{vPOLL}", "v", need=[tag]),
            It(f"s_cbranch_vccnz L_slow_{name}\nL_back_{name}:", "v")]


def set_flags(line, nlanes, need):
    return [It(None, "s", need=need),
            It(f"s_add_u32 s{sSO}, s{sFL}, {line * 128}", "s"),
            It(f"s_mov_b64 exec, {(1 << nlanes) - 1}\n"
               f"    buffer_store_dword v{vONE}, v{vLANE}, {srd(SWS)}, s{sSO} offen sc1\n"
               f"    s_mov_b64 exec, -1", "g")]


def layernorm(tags, first, raw, scr, side=()):
    a = vT
    side = list(side)
    cnt = [0]

    def ev(txt):
        e(txt)
        cnt[0] += 1
        if side and cnt[0] % 10 == 0:
            x, y = side.pop(0); P.puts(x + y)

    def reduce():
        if first:
            for qp in ("[1,0,3,2]", "[2,3,0,1]"):
                e(f"v_add_f32_dpp v{a}, v{a}, v{a} quad_perm:{qp} row_mask:0xf bank_mask:0xf")
        else:
            allreduce("v_add_f32", [a], [a + 1])

    for i in range(64):
        c = f"v{a + i % 4}" if i >= 4 else "0"
        e(f"v_dot2_f32_bf16 v{a + i % 4}, v{raw+i}, s{sONE2}, {c}", need=[tags[i // 4]])
    e(f"v_add_f32 v{a}, v{a}, v{a+1}"); e(f"v_add_f32 v{a+2}, v{a+2}, v{a+3}"); e(f"v_add_f32 v{a}, v{a}, v{a+2}")
    reduce()
    e(f"v_mul_f32 v{vNMEAN}, {f2u(-1/512)}, v{a}")
    for i in range(64):
        ev(f"v_dot2_f32_bf16 v{scr+2*i}, v{raw+i}, s{sLO}, v{vNMEAN}")
        ev(f"v_dot2_f32_bf16 v{scr+2*i+1}, v{raw+i}, s{sHI}, v{vNMEAN}")
    for i in range(64):
        d, c = vr(a + 2 * (i % 2), 2), vr(scr + 2 * i, 2)
        ev(f"v_pk_mul_f32 {d}, {c}, {c}" if i < 2 else f"v_pk_fma_f32 {d}, {c}, {c}, {d}")
    e(f"v_pk_add_f32 {vr(a,2)}, {vr(a,2)}, {vr(a+2,2)}"); e(f"v_add_f32 v{a}, v{a}, v{a+1}")
    reduce()
    e(f"v_mul_f32 v{a}, {f2u(1/512)}, v{a}")
    e(f"v_add_f32 v{a+1}, {f2u(1e-5)}, v{a}")
    e(f"v_rsq_f32 v{vRSTD}, v{a+1}")
    if first:
        e(f"v_mul_f32 v{a+2}, {f2u(QSCALE)}, v{vRSTD}")
        e(f"v_mul_f32 v{a}, v{a}, v{vRSTD}"); e(f"v_mul_f32 v{a}, v{a}, v{vRSTD}")
        e(f"v_add_f32 v{a}, {f2u(1e-5)}, v{a}")
        e(f"v_rsq_f32 v{a+4}, v{a}")
        e(f"v_mul_f32 v{a+4}, {f2u(1/QSCALE)}, v{a+4}")
    else:
        e(f"v_mov_b32 v{a+2}, v{vRSTD}")
    for i in range(65):
        if i < 64: ev(f"v_pk_mul_f32 {vr(scr+2*i,2)}, {vr(scr+2*i,2)}, {vr(a+2,2)} op_sel_hi:[1,0]")
        if i: ev(f"v_cvt_pk_bf16_f32 v{raw+i-1}, v{scr+2*i-2}, v{scr+2*i-1}")
        if i and i % 4 == 0: yield i // 4 - 1
    flush(side)


def gelu(base, n, tmp, dst, scale=None, side=(), every=16):
    pairs = range(0, n, 2)
    c = []
    if scale is not None:
        c += [f"v_pk_mul_f32 {vr(base+i,2)}, {vr(base+i,2)}, {vr(scale,2)} op_sel_hi:[1,0]" for i in pairs]
    c += [f"v_pk_mul_f32 {vr(tmp+i,2)}, {vr(base+i,2)}, {vr(base+i,2)}" for i in pairs]
    c += [f"v_pk_fma_f32 {vr(tmp+i,2)}, {vr(tmp+i,2)}, {vr(vTC1,2)}, {vr(vTC1,2)} op_sel:[0,1,0] op_sel_hi:[1,1,0]" for i in pairs]
    c += [f"v_pk_mul_f32 {vr(tmp+i,2)}, {vr(tmp+i,2)}, {vr(base+i,2)}" for i in pairs]
    c += [f"v_exp_f32 v{tmp+i}, v{tmp+i}" for i in range(n)]
    c += [f"v_pk_add_f32 {vr(tmp+i,2)}, {vr(tmp+i,2)}, 1.0 op_sel_hi:[1,0]" for i in pairs]
    c += [f"v_rcp_f32 v{tmp+i}, v{tmp+i}" for i in range(n)]
    c += [f"v_pk_mul_f32 {vr(tmp+i,2)}, {vr(tmp+i,2)}, {vr(base+i,2)}" for i in pairs]
    c += [f"v_cvt_pk_bf16_f32 v{dst(i//2)}, v{tmp+i}, v{tmp+i+1}" for i in pairs]
    side = list(side)
    e(f"v_mov_b32 v{vTC1}, s{sC1}"); e(f"v_mov_b32 v{vTC1+1}, s{sC2}")
    for k, x in enumerate(c):
        if side and k % every == 0: P.puts(side.pop(0))
        e(x)
    for x in side: P.puts(x)


vTC1 = vTA


class Tile:
    def __init__(self, s_rd, voff, base, stride, perm, m0, tag, rows=64, kp=0, nh=0, slot=0):
        self.__dict__.update(locals())

    def dma(self):
        out = []
        for i in range(self.rows // 8):
            row = ((0, 16, 4, 20)[i & 3] + 32 * (i >> 2)) if self.perm else 8 * i
            so = self.base + row * self.stride - (i & 3) * 1024
            pre = [It(f"s_add_u32 m0, {self.m0[0]}, {self.m0[1] + (i >> 2) * 4096}", "s")] if i % 4 == 0 else []
            out.append((pre, [It(f"s_mov_b32 s{sSO}, {so}", "s"),
                              It(f"buffer_load_dwordx4 v{self.voff}, {srd(self.s_rd)}, s{sSO} offen "
                                 f"offset:{(i & 3) * 1024} lds", "g", self.tag)]))
        return out

    def issue(self):
        for pre, its in self.dma():
            P.puts(pre + its)


def ring_tile(s_rd, voff, base, stride, perm, slot, tag, **kw):
    return Tile(s_rd, voff, base, stride, perm, (f"s{sRING}", slot * 32768), tag, slot=slot, **kw)


def dma_voff(dst, stride, perm, s_base):
    a, b = vTA, vTA + 1
    e(f"v_lshrrev_b32 v{a}, 10, v{vLANE}")
    e(f"v_bfe_u32 v{b}, v{vBA}, 4, 3")
    e(f"v_and_b32 v{dst}, 6, v{a}"); e(f"v_xor_b32 v{b}, v{b}, v{dst}")
    if perm:
        e(f"v_and_b32 v{dst}, 4, v{a}"); e(f"v_add_u32 v{a}, v{a}, v{dst}")
    e(f"v_mul_u32_u24 v{a}, {stride}, v{a}")
    e(f"v_lshl_add_u32 v{a}, v{b}, 4, v{a}")
    e(f"v_add_u32 v{dst}, {s_base}, v{a}")


def a_reads(t, ti, nb):
    base = (vAA2 if t.slot == 2 else vAA) + nb
    off = (t.slot % 2) * 32768 if t.slot < 2 else 0
    out = []
    for ks in range(t.rows // 32):
        f = AF(nb * 2 + ks)
        for h in range(2):
            out.append(It(f"ds_read_b64_tr_b16 {ar(f + 2*h, 2)}, v{base} offset:{off + ks*4096 + h*2048}", "l",
                          ("A", ti, nb), need=[t.tag]))
    return out


def b_reads(t, phase):
    return [It(f"ds_read_b128 {ar(BF(t.kp, ks, tb), 4)}, v{vBX if phase == 'q' else vBA} offset:{((2*t.kp + ks)*4 + tb) * 1024}", "l",
               ("B", phase, t.kp, tb)) for tb in range(4) for ks in range(t.rows // 32)]


def gemm_pre(tiles, i0):
    P.puts(a_reads(tiles[i0], i0, 0))


def gemm(tiles, i0, n, phase, pending, extra=None, fill=None):
    ms, gaps, start = [], {}, []
    seen = set()
    for ti in range(i0, i0 + n):
        t = tiles[ti]
        start.append(len(ms))
        nks = t.rows // 32
        for nb in range(4):
            for tb in range(4):
                order = range(nks) if not tb & 1 else range(nks - 1, -1, -1)
                for ks in order:
                    d = vr(ACC(t.nh, nb, tb), 4)
                    c = d if (t.nh, nb, tb) in seen else "0"
                    seen.add((t.nh, nb, tb))
                    ms.append(It(f"{MF} {d}, {ar(AF(nb*2+ks),4)}, {ar(BF(t.kp,ks,tb),4)}, {c}", "m",
                                 need=[("A", ti, nb), ("B", phase, t.kp, tb)]))
    start.append(len(ms))
    add = lambda g, it: gaps.setdefault(g, []).append(it)
    pre = b_reads(tiles[i0], phase)
    release = {}
    for s in range(n):
        ti = i0 + s; t = tiles[ti]
        per = (start[s + 1] - start[s]) // 4
        for nb in range(4):
            if s == 0 and nb == 0: continue
            rd = a_reads(t, ti, nb)
            for k, it in enumerate(rd):
                g = start[s] + per * nb - 6 - 2 * (len(rd) - 1 - k)
                if g < 0: pre.append(it)
                else: add(g, it)
        if ti + 3 < len(tiles): release[start[s] + 3 * per] = tiles[ti + 3]
        if s + 1 < n and tiles[ti + 1].kp != t.kp:
            s0 = s
            while s0 > 0 and tiles[i0 + s0 - 1].kp == t.kp: s0 -= 1
            rd = b_reads(tiles[ti + 1], phase)
            cand = [g for g in range(start[s0], start[s + 1] - 6) if g % 4 == 3]
            if len(cand) < len(rd): cand = sorted(cand + [start[s0] + 2 * k for k in range(len(rd) - len(cand))])
            step = len(cand) / len(rd)
            for k, it in enumerate(rd): add(cand[int(k * step)], it)
    for g in range(len(ms)):
        if g in release: pending += release[g].dma()
        if g % 4 == 1 and pending:
            a, b = pending.pop(0)
            for it in a: add(g - 1, it)
            for it in b: add(g, it)
    for g, its in (extra or {}).items():
        for it in its: add(g, it)
    P.puts(pre)
    P.run_gaps(ms, gaps, fill)


def flush(pending):
    while pending:
        a, b = pending.pop(0)
        P.puts(a + b)


def gemm_shared(nks, acc, zero, afr, breg, bneed, name, extra=None):
    ms, gaps, pre = [], {}, []
    for nb in range(4):
        for ks in range(nks):
            i = nb * nks + ks
            d = acc(nb)
            ms.append(It(f"{MF} {d}, {afr(i, 0, 4)}, {breg(ks)}, {0 if zero and not ks else d}", "m",
                         need=[(name, i)] + list(bneed(ks))))
            for h in range(2):
                it = It(f"ds_read_b64_tr_b16 {afr(i, 2*h, 2)}, v{vAS+nb} offset:{ks*4096 + h*2048}", "l", (name, i))
                if i < 6: pre.append(it)
                else: gaps.setdefault(i - 6, []).append(it)
    for g, its in (extra or {}).items(): gaps.setdefault(g, []).extend(its)
    P.puts(pre)
    P.run_gaps(ms, gaps)


def pack_store_partials(ws_base, tag):
    for nh in range(2):
        for tb in range(4):
            for s in range(2):
                b = ACC(nh, 2 * s, tb)
                for j in range(4): e(f"v_cvt_pk_bf16_f32 v{b+j}, v{b+2*j}, v{b+2*j+1}")
                k = tb * 2 + s
                if k % 4 == 0: e(f"s_add_u32 s{sSO}, s{sPP}, {ws_base + nh*65536 + (k//4)*4096}")
                P.vm(f"buffer_store_dwordx4 {vr(b,4)}, v{vBA}, {srd(SWS)}, s{sSO} offen offset:{(k%4)*1024} sc1", tag)


def load_partials(ws_base, reg, tag):
    its = []
    for g in range(8):
        its.append(It(f"s_add_u32 s{sSO}, s{sPC}, {ws_base + g*8192}", "s"))
        for s in range(2):
            its.append(It(f"buffer_load_dwordx4 {vr(reg(g,s),4)}, v{vBA}, {srd(SWS)}, s{sSO} offen offset:{s*1024} sc1",
                          "g", (tag, g, s)))
    return its


def frag_reads(t, f, tail=False):
    if f < 16:
        kb, s = f // 4, f % 4
        off = ((t + 1) % 4) * 16384 + kb * 4096
        return [It(f"ds_read_b128 {ar(FR(f),4)}, v{KA(s)} offset:{off}", "l", ("F", t, f))]
    db, ks = ((f - 16) // 2, (f - 16) % 2) if not tail else ((f - 16) % 8, (f - 16) // 8)
    off = (t % 4) * 16384 + ks * 8192
    return [It(f"ds_read_b64_tr_b16 {ar(FR(f)+2*h,2)}, v{VA(db)} offset:{off + 4096*h}", "l", ("F", t, f))
            for h in range(2)]


def qk_mfmas(t, zero=False):
    out = []
    for kb in range(4):
        for qb in range(4):
            for n, s in enumerate(range(4) if not qb & 1 else range(3, -1, -1)):
                d = vr(S((t + 1) & 1, kb, qb), 4)
                c = d if n else ("0" if zero else vr(NM(qb), 4))
                out.append((It(f"{MF} {d}, {ar(FR(kb*4+s),4)}, {vr(Q(qb,s),4)}, {c}", "m",
                               need=[("F", t, kb * 4 + k) for k in range(4)]), kb * 4 + s))
    return out


def pv_one(t, db, qb, ks, f, need):
    o = ar(O(db, qb), 4)
    return (It(f"{MF} {o}, {ar(FR(f),4)}, {vr(PR(t&1,ks,qb),4)}, {o}", "m", need=need), f)


def sum_one(t, qb, ks):
    l = ar(LACC(qb), 4)
    return (It(f"{MF} {l}, {ar(aONES,4)}, {vr(PR(t&1,ks,qb),4)}, {l}", "m"), None)


def pv_mfmas(t):
    out = []
    for db in range(8):
        need = [("F", t, 16 + db * 2), ("F", t, 17 + db * 2)]
        for qb in range(4):
            for ks in (range(2) if not qb & 1 else range(1, -1, -1)):
                out.append(pv_one(t, db, qb, ks, 16 + db * 2 + ks, need))
        if db % 2 == 1:
            out += [sum_one(t, db // 2, ks) for ks in range(2)]
    return out


def pv_mfmas_tail(t):
    out = []
    for ks in range(2):
        out += [sum_one(t, qb, ks) for qb in range(4)]
        for db in range(8):
            f = 16 + ks * 8 + db
            out += [pv_one(t, db, qb, ks, f, [("F", t, f)]) for qb in range(4)]
    return out


def sm_stream(buf, half):
    ex, post = [], []
    for qb in range(4):
        b = PR(buf, half, qb)
        for j in range(8):
            ex.append(It(f"v_exp_f32 v{b+j}, v{b+j}", "x"))
            post.append([It(f"v_cvt_pk_bf16_f32 v{b + j//2}, v{b+j-1}, v{b+j}", "v")] if j & 1 else [])
    return ex, post


def kv_dma(kind, tile):
    m0, reg, s_rd, so = (sKM0, KG, SK, sKOFF) if kind == "K" else (sVM0, VG, SV, sVOFF)
    out = []
    for i in range(4):
        pre = [It(f"s_mov_b32 m0, s{m0 + tile % 4}", "s")] if i == 0 else []
        out.append((pre, [It(f"buffer_load_dwordx4 v{reg(i)}, {srd(s_rd)}, s{so} offen offset:{i*1024} lds", "g",
                             (kind, tile))]))
    adv = [It(f"s_add_u32 s{so}, s{so}, 16384", "s"), It(f"s_and_b32 s{so}, s{so}, 0x7ffff", "s")]
    return out, adv


def kv_issue(kind, tile):
    groups, adv = kv_dma(kind, tile)
    for a, b in groups: P.puts(a + b)
    P.puts(adv)


issued = set()


def attn_iter(t, dmas, last=False, tail_scalar=(), extra=None):
    mf = pv_mfmas_tail(t) if last else qk_mfmas(t) + pv_mfmas(t)
    ms = [m for m, _ in mf]
    n = len(ms)
    first_use, last_use = {}, {}
    for i, (_, f) in enumerate(mf):
        if f is not None:
            first_use.setdefault(f, i); last_use[f] = i
    reads = []
    for f in sorted(first_use):
        if (t, f) in issued: continue
        reads += [(first_use[f] - AHEAD, last_use.get(f - 8, -1), it) for it in frag_reads(t, f, last)]
    nxt_need = ()
    if t < 30:
        for f in range(4):
            reads += [(n + f - AHEAD, last_use[24 + f], it) for it in frag_reads(t + 1, f)]
            issued.add((t + 1, f))
        nxt_need = [("F", t + 1, f) for f in range(4)]
    gaps = {}
    add = lambda g, it: gaps.setdefault(g, []).append(it)
    exg = {}
    if last:
        ex, post = sm_stream(t & 1, 1)
        for i in range(32): exg[i] = (ex[i], post[i])
    else:
        exA, postA = sm_stream(t & 1, 1)
        exB, postB = sm_stream((t + 1) & 1, 0)
        nB = n - 64
        for i in range(32):
            exg[2 * i] = (exA[i], postA[i])
            exg[64 + 2 * ((i * (nB // 2)) // 32)] = (exB[i], postB[i])
    for g, (x, post) in exg.items():
        add(g, x)
    for g, (x, post) in exg.items():
        for it in post: add(g + 1, it)
    free = set(range(n)) if last else {g for g in range(n) if g not in exg}
    prev, pre = n, []
    for dl, early, it in reversed(reads):
        c = [g for g in free if g <= dl and g < prev]
        if c:
            prev = max(c); free.discard(prev); add(prev, it)
        else:
            prev = -1; pre.insert(0, it)
        assert prev >= early, (t, it.t, prev, early)
    groups = [grp for gs, _ in dmas for grp in gs]
    if groups:
        lo = 1
        light = [g for g in sorted(free) if lo <= g < n - 6 and g not in gaps]
        fr = light if len(light) >= len(groups) else [g for g in sorted(free) if lo <= g < n - 6]
        step = len(fr) / len(groups)
        k = 0
        for gs, adv in dmas:
            for a, b in gs:
                g = fr[int(k * step)]; k += 1
                for it in a: add(g - 1, it)
                for it in b: add(g, it)
            for j, it in enumerate(adv): add(g + 1 + j, it)
    if not last:
        add(n - 3, It(None, "s", need=[("K", t + 3), ("V", t + 1)]))
        add(n - 2, It("s_barrier", "s"))
    for i, x in enumerate(tail_scalar): add(n - 1, It(x, "s"))
    for g, its in (extra or {}).items():
        for it in its: add(g, it)
    P.puts(pre)
    P.run_gaps(ms, gaps, next_need=nxt_need)


def mk_srd(d, p, size):
    e(f"s_mov_b32 s{d}, s{p}"); e(f"s_mov_b32 s{d+1}, s{p+1}"); e(f"s_mov_b32 s{d+2}, {size}"); e(f"s_mov_b32 s{d+3}, 0x20000")


def sum_terms(dst, *terms):
    first = True
    for t in terms:
        if isinstance(t, int):
            e(f"s_add_u32 s{dst}, s{dst}, {t}"); continue
        r, k = t
        d = dst if first else sT + 4
        e(f"s_lshl_b32 s{d}, s{r}, {k.bit_length()-1}" if k & (k - 1) == 0 else f"s_mul_i32 s{d}, s{r}, {k}")
        if not first: e(f"s_add_u32 s{dst}, s{dst}, s{d}")
        first = False


hdr = [l.rstrip("\n") for l in open("recurrent_scan__gqa_block_cached__mixer_s_mlp__prompt.s.ref")]
hdr = hdr[:[i for i, l in enumerate(hdr) if "@launch" in l][0]]
P.L += hdr + ["; @launch grid=(256,1,1) block=(256,1,1) lds=163840",
              '.amdgcn_target "amdgcn-amd-amdhsa--gfx950"', ".text", f".globl {NAME}", ".p2align 8",
              f".type {NAME},@function"]
lab(NAME)
vBX, vWA, vSC1, vXSO = vT + 6, vT + 8, vT + 4, vT + 10
e("s_cmp_ge_u32 s2, 256"); e("s_cbranch_scc1 L_end")
e("s_load_dwordx16 s[64:79], s[0:1], 0"); e("s_load_dwordx8 s[80:87], s[0:1], 64"); e("s_load_dwordx2 s[88:89], s[0:1], 96")
e(f"s_and_b32 s{sG}, s2, 7"); e(f"s_lshr_b32 s{sM}, s2, 3")
e("v_lshrrev_b32 v1, 6, v0"); e("v_and_b32 v0, 63, v0"); e(f"v_readfirstlane_b32 s{sW}, v1")
e(f"v_lshlrev_b32 v{vBA}, 4, v0"); e(f"v_lshlrev_b32 v{vLANE}, 7, v0")
e("v_lshrrev_b32 v1, 2, v0"); e("v_and_b32 v2, 3, v0")
sum_terms(sT, (sM, 64), (sW, 16))
e(f"v_add_u32 v3, s{sT}, v1"); e("v_lshlrev_b32 v3, 10, v3"); e("v_lshl_add_u32 v3, v2, 4, v3")
e(f"s_and_b32 s{sT+1}, s{sG}, 1"); e(f"s_lshl_b32 s{sT+2}, s{sT+1}, 9"); e(f"s_xor_b32 s{sT+3}, s{sT+2}, 512")
if TOUCH:
    e("v_bfe_u32 v6, v0, 3, 2"); e("v_and_b32 v7, 7, v0"); e("v_lshlrev_b32 v6, 13, v6"); e("v_lshl_add_u32 v6, v7, 7, v6")
    sum_terms(sKM0, (sM, 1 << 17), (sW, 1 << 15), (sG, 1024))
if STAMP: e(f"v_mov_b32 v{vSTAMP}, 0")
e("s_waitcnt lgkmcnt(0)")
mk_srd(SX, 64, 0x200000); mk_srd(SWQ, 70, 0x400000)
stamp()
if TOUCH:
    P.cmt("spread the first touch of this group's wq slice over the token blocks")
    e("s_mov_b64 exec, 0xffffffff")
    P.vm(f"buffer_load_dword a255, v6, {srd(SWQ)}, s{sKM0} offen")
    e("s_mov_b64 exec, -1")
for i in range(16):
    P.vm(f"buffer_load_dwordx4 {vr(XR+4*i,4)}, v3, {srd(SX)}, s{sT+2+i//8} offen offset:{(i%8)*64}", ("x", i))
e("v_lshlrev_b32 v4, 1, v2"); e("v_xor_b32 v4, v4, v1"); e("v_lshlrev_b32 v4, 4, v4"); e("v_lshl_add_u32 v4, v2, 8, v4")
sum_terms(sT + 2, (sT + 1, 32768), (sW, 1024))
e(f"v_add_u32 v{vWA}, s{sT+2}, v4"); e(f"v_xor_b32 v{vWA+1}, 0x8000, v{vWA}")
e("v_and_b32 v1, 15, v0"); e("v_lshrrev_b32 v2, 4, v0")
e("v_lshlrev_b32 v4, 1, v2"); e("v_xor_b32 v4, v4, v1"); e("v_lshlrev_b32 v4, 4, v4"); e(f"v_lshl_add_u32 v{vBX}, v2, 8, v4")
e(f"v_add_u32 v3, s{sT}, v1")
e("v_lshlrev_b32 v4, 15, v2"); e(f"v_lshl_add_u32 v{vTOK}, v3, 4, v4")
e("v_lshlrev_b32 v4, 3, v2"); e(f"v_lshl_add_u32 v{vXSO}, v3, 10, v4")
for d, p in ((SK, 66), (SV, 68)):
    e(f"s_lshl_b32 s{sT}, s{sG}, 19")
    e(f"s_add_u32 s{d}, s{p}, s{sT}"); e(f"s_addc_u32 s{d+1}, s{p+1}, 0"); e(f"s_mov_b32 s{d+2}, 0x80000"); e(f"s_mov_b32 s{d+3}, 0x20000")
for d, p, size in ((SW1, 76, 0x80000), (SWS, 88, 0x10000000), (SWO, 72, 0x400000), (SW2, 78, 0x80000),
                   (SW3, 80, 1835008), (SW4, 82, 1835008), (SOUT, 84, 0x200000), (SDBG, 86, 256)):
    mk_srd(d, p, size)
if TOUCH:
    sum_terms(sT, (sM, 16384), (sW, 4096), (sG, 128))
    e(f"v_lshlrev_b32 v6, 3, v{vLANE}")
    e("s_mov_b64 exec, 15")
    P.vm(f"buffer_load_dword a255, v6, {srd(SW1)}, s{sT} offen")
    e("s_mov_b64 exec, -1")
if CODEPF:
    P.cmt("pull the kernel's own code into L2")
    e(f"s_getpc_b64 {sr(sT+1,2)}")
    lab("L_pc")
    sum_terms(sT, (sM, 4096), (sW, 1024))
    e(f"v_add_u32 v6, s{sT}, v{vLANE}"); e("v_min_u32 v6, L_end-L_pc, v6")
    e(f"v_mov_b32 v7, s{sT+2}"); e(f"v_add_co_u32 v6, vcc, s{sT+1}, v6"); e("v_addc_co_u32 v7, vcc, 0, v7, vcc")
    e("s_mov_b64 exec, 255")
    P.vm("global_load_dword a255, v[6:7], off")
    e("s_mov_b64 exec, -1")
sum_terms(sRING, (sW, 8192), RING)
sum_terms(sT, (sG, 1024), (sW, 256))
dma_voff(vDW, 8192, True, f"s{sT}")
sum_terms(sT, (sW, 65536), (sG, 128))
dma_voff(vDW2, 1024, True, f"s{sT}")
qt = [ring_tile(SWQ, vDW, (i // 2) * 64 * 8192 + (i % 2) * 128, 8192, True, i % 3, ("wq", i), kp=i // 2, nh=i % 2)
      for i in range(16)]
qt += [ring_tile(SW1, vDW2, k * 4 * 65536, 1024, True, 1 + k, "w1") for k in range(2)]
for r, v in ((sLO, "0x00003f80"), (sHI, "0x3f800000"), (sONE2, "0x3f803f80"), (sC1, f2u(GC1)), (sC2, f2u(GC2)),
             (sNL2E, f2u(-LOG2E)), (sREDO, 0), (sSPIN, 0), (sHK, 0)):
    e(f"s_mov_b32 s{r}, {v}")
sum_terms(sFL, (sM, 24 * 128), (sW, 256), (sG, 4), WS_FL)
sum_terms(sF1, (sM, 24 * 128), (sW, 256), WS_FL)
sum_terms(sF2, (sM, 24 * 128), (sG, 128), WS_FL + 1024)
e(f"s_add_u32 s{sF3}, s{sF2}, 1024")
sum_terms(sPP, (sM, 1 << 19), (sW, 1 << 17), (sG, 1 << 13))
sum_terms(sPC, (sM, 1 << 19), (sG, 1 << 16), (sW, 1 << 11))
e(f"s_lshl_b32 s{sHO}, s{sG}, 18")
e("v_lshrrev_b32 v6, 2, v0"); e("v_and_b32 v7, 3, v0"); e("v_lshlrev_b32 v7, 3, v7"); e("v_lshl_add_u32 v7, v6, 7, v7")
e("v_bfe_u32 v6, v0, 3, 2")
for nb in range(4):
    e(f"v_xor_b32 v10, {nb}, v6"); e("v_lshl_add_u32 v10, v10, 5, v7")
    e(f"v_add_u32 v{vAS+nb}, {RING + 32768}, v10")
    e(f"v_add_u32 v{vAA+nb}, s{sRING}, v10"); e(f"v_add_u32 v{vAA2+nb}, 0x10000, v{vAA+nb}")
e("v_min_u32 v6, 2, v0"); e(f"v_add_u32 v6, s{sM}, v6"); e("v_add_u32 v6, -1, v6"); e("v_med3_i32 v6, v6, 0, 31")
e(f"v_lshlrev_b32 v{vPA}, 3, v6")
e(f"v_lshlrev_b32 v{vPOLL}, 4, v1"); e("v_mov_b32 v232, 0")

if STAMP > 1:
    P.wait([("x", 15)]); stamp()
for i in layernorm([("x", i) for i in range(16)], True, XR, 0, qt[0].dma() + qt[1].dma() + qt[2].dma()):
    if i == 0:
        for r in (vNMEAN, vRSTD, vSC1): P.lds(f"ds_bpermute_b32 v{r}, v{vPOLL}, v{r}", "stat")
    P.lds(f"ds_write_b128 v{vWA + i//8}, {vr(XR+4*i,4)} offset:{(i%8)*4096}", "xw")
gemm_pre(qt, 0)
P.wait(["xw"]); e("s_barrier")
stamp()

extra = {}
add = lambda g, its: extra.setdefault(g, []).extend(its)
add(2, [It(f"s_lshl_b32 s{sT}, s{sW}, 10", "s"), It(f"v_add_u32 v{vWA}, s{sT}, v{vBX}", "v")])
for ks in range(16):
    add(14 * 32 + 3 + 4 * ks - 8, [It(f"ds_read_b128 {ar(4*ks,4)}, v{vWA} offset:{ks*4096}", "l", ("xb", ks))])
pending = []
gemm(qt, 0, 16, "q", pending, extra)
flush(pending)
if TOUCH:
    e(f"s_and_b32 s{sT+1}, s{sW}, 1")
    sum_terms(sT, (sM, 16384), (sT + 1, 8192))
    e(f"s_cmp_lt_u32 s{sW}, 2"); e("s_cbranch_scc1 L_tk")
    e(f"buffer_load_dword a255, v{vLANE}, {srd(SV)}, s{sT} offen"); e("s_branch L_tv")
    lab("L_tk")
    e(f"buffer_load_dword a255, v{vLANE}, {srd(SK)}, s{sT} offen")
    lab("L_tv")
    P.vq.append(None)
e(f"s_lshl_b32 s{sT}, s{sG}, 7")
for nb in range(4):
    P.vm(f"buffer_load_dwordx2 {ar(aXS+2*nb,2)}, v{vXSO}, {srd(SX)}, s{sT} offen offset:{nb*32}")
e(f"v_lshrrev_b32 v{vTA}, 5, v{vBA}"); e(f"v_and_b32 v{vTA+1}, 128, v{vLANE}"); e(f"v_lshl_add_u32 v{vTA}, v{vTA}, 10, v{vTA+1}")
e(f"v_mov_b32 v{vONE}, 0"); e("s_mov_b64 exec, 63")
P.vm(f"buffer_store_dword v{vONE}, v{vTA}, {srd(SWS)}, s{sFL} offen sc1")
e("s_mov_b64 exec, -1")
stamp()
for tb in range(4):
    for s in range(4):
        b = ACC(s // 2, 2 * (s % 2), tb)
        for j in range(4): e(f"v_cvt_pk_bf16_f32 v{Q(tb,s)+j}, v{b+2*j}, v{b+2*j+1}")
    for sw in ("v_permlane32_swap_b32", "v_permlane16_swap_b32"):
        for s in range(4):
            for j in range(2): e(f"{sw} v{Q(tb,s)+j}, v{Q(tb,s)+2+j}")
e(f"v_mov_b32 v32, v{vSC1}"); e(f"v_mov_b32 v{vONE}, 1")
e(f"v_lshrrev_b32 v16, 4, v{vBA}"); e("v_and_b32 v17, 15, v16"); e("v_lshrrev_b32 v18, 4, v16")
e("v_xor_b32 v19, v18, v17")
for s in range(4):
    e(f"v_xor_b32 v20, {4*s}, v19"); e("v_lshlrev_b32 v20, 4, v20"); e(f"v_lshl_add_u32 v{KA(s)}, v17, 8, v20")
e("v_lshrrev_b32 v19, 2, v16"); e("v_lshlrev_b32 v20, 8, v19"); e("v_and_b32 v21, 3, v16")
e("v_lshl_add_u32 v20, v21, 3, v20"); e(f"v_add_u32 v20, {VOFF}, v20"); e("v_and_b32 v19, 7, v19")
for db in range(8):
    e(f"v_xor_b32 v21, {db}, v19"); e(f"v_lshl_add_u32 v{VA(db)}, v21, 5, v20")
e(f"s_lshl_b32 s{sT}, s{sW}, 12"); e(f"v_lshl_add_u32 v20, v18, 8, s{sT}")
for i in range(4):
    e(f"v_add_u32 v19, {4*i}, v18"); e("v_xor_b32 v21, v19, v17"); e(f"v_lshl_add_u32 v{KG(i)}, v21, 4, v20")
    if i < 2:
        e("v_lshlrev_b32 v19, 1, v19"); e("v_xor_b32 v21, v19, v17"); e(f"v_lshl_add_u32 v{VG(i)}, v21, 4, v20")
for i in range(4):
    e(f"s_add_u32 s{sKM0+i}, s{sT}, {i*16384}"); e(f"s_add_u32 s{sVM0+i}, s{sT}, {VOFF + i*16384}")
e(f"s_lshl_b32 s{sKOFF}, s{sM}, 14"); e(f"s_mov_b32 s{sVOFF}, s{sKOFF}")
for qb in range(4): e(f"v_mov_b32 v{PM(qb)}, 0xff800000")
sum_terms(sT, (sG, 1 << 19), (sW, 256))
dma_voff(vDW, 1024, False, f"s{sT}")
sum_terms(sT, (sW, 65536), (sG, 128))
dma_voff(vDW2, 1024, False, f"s{sT}")
P.wait(["w1", ("xb", 15)]); e("s_barrier")
stamp()

extra = {}
g = 1
for kind, tile in (("K", 0), ("K", 1), ("V", 0), ("K", 2), ("V", 1), ("K", 3)):
    gs, adv = kv_dma(kind, tile)
    for a, b in gs:
        add(g - 1, a); add(g, b); g += 2
    add(g - 1, adv[:1]); add(g, adv[1:]); g += 2
gemm_shared(16, lambda nb: vr(G12 + 4 * nb, 4), True, lambda i, o, n: ar(128 + (i % 16) * 4 + o, n),
            lambda ks: ar(4 * ks, 4), lambda ks: (), "g1", extra)
gelu(G12, 16, 0, lambda i: 16 + i, scale=32)
for s in range(2):
    e(f"s_add_u32 s{sSO}, s{sHO}, {WS_H + s*PLANE}")
    P.vm(f"buffer_store_dwordx4 {vr(16+4*s,4)}, v{vTOK}, {srd(SWS)}, s{sSO} offen sc1", "hst")
for nb in range(4): e(f"v_add_u32 v{vAS+nb}, 32768, v{vAS+nb}")
e(f"v_mov_b32 v{vTA}, s{sONE2}")
for i in range(4): e(f"v_accvgpr_write_b32 a{aONES+i}, v{vTA}")
P.wait([("K", 1)]); e("s_barrier")
w2t = [ring_tile(SW2, vDW2, k * 4 * 65536, 1024, False, 2, "w2") for k in range(2)]
ot = [ring_tile(SWO, vDW, (i // 2) * 65536 + (i % 2) * 128, 1024, False, (i + 2) % 3, ("wo", i), kp=i // 2, nh=i % 2)
      for i in range(16)]
ot += [ring_tile(SW3, vDW2, k * 64 * 3584, 3584, False, (16 + k + 2) % 3, ("w3", k), kp=k) for k in range(8)]
ot += [ring_tile(SW4, vDW, (i // 2) * 65536 + (i % 2) * 128, 1024, False, (24 + i + 2) % 3, ("w4", i),
                 rows=64 if i < 6 else 32, kp=i // 2, nh=i % 2) for i in range(8)]
kv_issue("V", 2)
stamp()

lab("L_attn")
mf = qk_mfmas(-1, zero=True)
gaps = {}
pre = []
for f in range(16):
    it = frag_reads(-1, f)[0]
    if f < 4: pre.append(it)
    else: gaps.setdefault(((f // 4) - 1) * 16 + 1 + 2 * (f % 4), []).append(it)
for f in range(4):
    gaps.setdefault(50 + 2 * f, []).extend(frag_reads(0, f)); issued.add((0, f))
fill = [It(f"v_accvgpr_write_b32 a{i}, 0", "v") for i in list(range(128)) + list(range(192, 208))]
P.puts(pre)
P.run_gaps([m for m, _ in mf], gaps, fill)
P.puts(fill)
for qb in range(4):
    regs = [S(0, kb, qb) + i for kb in range(4) for i in range(4)]
    d = NM(qb)
    e(f"v_max3_f32 v{d}, v{regs[0]}, v{regs[1]}, v{PM(qb)}")
    for i in range(2, 16, 2): e(f"v_max3_f32 v{d}, v{d}, v{regs[i]}, v{regs[i+1]}")
allreduce("v_max_f32", [NM(qb) for qb in range(4)], [NM(qb) + 1 for qb in range(4)])
for qb in range(4):
    for i in (1, 2, 3, 0): e(f"v_sub_f32 v{NM(qb)+i}, 0, v{NM(qb)}")
    for ks in range(2):
        for i in range(0, 8, 2):
            r = vr(PR(0, ks, qb) + i, 2)
            e(f"v_pk_add_f32 {r}, {r}, {vr(NM(qb),2)}")
ex, post = sm_stream(0, 0)
for i in range(33):
    if i < 32: P.put(ex[i])
    if i: P.puts(post[i - 1])
e(f"s_mov_b32 s{sCNT}, 0")
P.wait([("K", 2), ("V", 0)] + [("F", 0, f) for f in range(4)]); e("s_barrier")
stamp()
P.lq = []
P.vq = [("V", 1)] * 4 + [("K", 3)] * 4 + [("V", 2)] * 4
entry = list(P.vq)
P.raw(".p2align 6")
lab("L_loop")
for t in range(4):
    ts = [f"s_cmp_lt_u32 s{sHK}, 8"] if t & 1 else []
    attn_iter(t, [kv_dma("K", t + 4), kv_dma("V", t + 3)], tail_scalar=ts)
    if t & 1:
        assert not P.lq
        e(f"s_cbranch_scc1 L_hook{t//2}")
        lab(f"L_hooked{t//2}")
assert [(k, n - 4) for k, n in P.vq] == entry and not P.lq, (P.vq, P.lq)
e(f"s_add_u32 s{sCNT}, s{sCNT}, 1"); e(f"s_cmp_lt_u32 s{sCNT}, 7"); e("s_cbranch_scc1 L_loop")
P.vq = [(k, n + 24) for k, n in P.vq]
issued |= {(28, f) for f in range(4)}
extra = {}
if TOUCH:
    LT = int(opt.get("lt", 97))
    add(LT, [It(f"buffer_load_dword a255, v{vLANE}, {srd(SWO)}, s89 offen", "g")])
    add(LT + 8, [It(f"buffer_load_dword a255, v232, {srd(SW3)}, s91 offen", "g")])
    add(LT + 16, [It(f"buffer_load_dword a255, v{vLANE}, {srd(SW4)}, s90 offen", "g")])
attn_iter(28, [kv_dma("V", 31)], extra=extra)
extra = {3: [It(f"v_bfe_u32 v{vPA}, v{vBA}, 4, 3", "v")], 5: [It(f"v_lshlrev_b32 v{vPA}, 2, v{vPA}", "v")],
         9: [poll_issue(SWS, f"s{sF1}", "p2")]}
attn_iter(29, [], extra=extra)
attn_iter(30, [(ot[1].dma(), [])], extra={101: poll_check("x1", SWS, f"s{sF1}", "p2", 1)})
vR = NM(0)
extra = {}
chk = [It(f"v_accvgpr_read_b32 v{vR+qb}, a{LACC(qb)}", "v") for qb in range(4)]
chk += [It(f"v_add_f32 v{vR+5}, v{vR}, v{vR+1}", "v"),
        It(f"v_add_f32 v{vR+4}, v{vR+2}, v{vR+3}", "v"), It(f"v_add_f32 v{vR+4}, v{vR+4}, v{vR+5}", "v"),
        It(f"v_cmp_nle_f32 vcc, v{vR+4}, v{vR+6}", "v"),
        It(f"v_lshlrev_b32 v{vR+5}, 7, v{vLANE}", "v"),
        It(f"s_cmp_lg_u64 vcc, 0\n    s_cselect_b32 s{sT}, 1, 0\n    s_lshl_b32 s{sT+1}, s{sW}, 2", "v"),
        It(f"v_mov_b32 v{vR+4}, s{sT}", "v"), It(f"v_add_u32 v{vR+5}, s{sT+1}, v{vR+5}", "v")]
add(40, [It(f"v_mov_b32 v{vR+6}, {f2u(0.0 if FORCE_REDO else 2.0**40)}", "v")])
for i, it in enumerate(chk): add(44 + i // 2, [it])
add(51, [It(f"s_mov_b64 exec, 15\n    ds_write_b32 v{vR+5}, v{vR+4}\n    s_mov_b64 exec, -1", "l", "vote")])
for qb in range(4): add(52 + qb, [It(f"v_rcp_f32 v{vR+8+2*qb}, v{vR+qb}", "x")])
add(57, [It(f"s_lshl_b32 s{sT}, s{sW}, 14", "s"), It(f"v_mov_b32 v{vR+5}, s{sT}", "v")])
add(60, [It(None, "s", need=["vote"])])
add(61, [It("s_barrier", "s")])
add(62, [It(f"ds_read_b128 {vr(vR,4)}, v{vR+5}", "l", "votes")])
x1l = [([], [It(f"s_mov_b32 s{sSO}, {WS_X1 + ks*PLANE}", "s"),
             It(f"buffer_load_dwordx4 {vr(4*ks,4)}, v{vTOK}, {srd(SWS)}, s{sSO} offen sc1", "g", ("x1", ks))])
       for ks in range(16)]
attn_iter(31, [(x1l[:6], [])], last=True, extra=extra)
e(f"v_or3_b32 v{vR}, v{vR}, v{vR+1}, v{vR+2}", need=["votes"]); e(f"v_or_b32 v{vR}, v{vR}, v{vR+3}")
e(f"v_readfirstlane_b32 s{sT}, v{vR}")
e(f"s_andn2_b32 s{sT}, s{sT}, s{sREDO}"); e("s_cbranch_scc1 L_redo")
stamp()

accbase[0] = 64
e(f"s_lshl_b32 s{sT}, s{sW}, 14"); e(f"v_add_u32 v{vTA}, s{sT}, v{vBA}")
for s in range(4):
    for qb in range(4):
        b = 64 + (s * 4 + qb) * 8
        k = s * 4 + qb
        if (k * 10) // 16 != (k * 10 - 10) // 16: P.puts(x1l[6 + (k * 10) // 16][1])
        for h in range(2):
            for j in range(4): e(f"v_accvgpr_read_b32 v{b+4*h+j}, a{O(2*s+h,qb)+j}")
        for j in range(0, 8, 2): e(f"v_pk_mul_f32 {vr(b+j,2)}, {vr(b+j,2)}, {vr(vR+8+2*qb,2)} op_sel_hi:[1,0]")
        for j in range(4): e(f"v_cvt_pk_bf16_f32 v{b+j}, v{b+2*j}, v{b+2*j+1}")
        P.lds(f"ds_write_b128 v{vTA}, {vr(b,4)} offset:{(s*4+qb)*1024}", "ow")
gemm_pre(ot, 0)
P.wait(["ow"]); e("s_barrier")
stamp()
pending = ot[2].dma()
gemm(ot, 0, 16, "o", pending)
flush(pending)
stamp()
pack_store_partials(WS_PS, "ps")
sum_terms(sT, (sG, 224 * 1024), (sW, 256))
dma_voff(vDW, 1024, False, f"s{sT}")
e("s_barrier")
e(f"s_lshl_b32 s{sT}, s{sW}, 10"); e(f"v_add_u32 v{vTA}, s{sT}, v{vBA}")
for i in layernorm([("x1", ks) for ks in range(16)], False, 0, 64):
    P.lds(f"ds_write_b128 v{vTA}, {vr(4*i,4)} offset:{i*4096}", "xw2")
gemm_pre(ot, 16)
P.puts(set_flags(8, 2, ["ps"]))
P.wait(["xw2"]); e("s_barrier")
stamp()
gemm(ot, 16, 8, "g3", pending, {7 * 32 + 3: [poll_issue(SWS, f"s{sF2}", "p3")]})
flush(pending)
e("s_barrier")
stamp()
P.puts(poll_check("ps", SWS, f"s{sF2}", "p3", 1))
psr = lambda g, s: (g * 2 + s) * 4
its = load_partials(WS_PS, psr, "psl")
gelu(64, 64, 128, lambda i: 192 + i, side=[x for g in range(8) for x in (its[3*g:3*g+2], its[3*g+2:3*g+3])], every=18)
e(f"s_and_b32 s{sT+1}, s{sG}, 1"); e(f"s_lshl_b32 s{sT}, s{sW}, 1"); e(f"s_sub_u32 s{sT}, s{sT}, s{sT+1}")
for s in range(2):
    e(f"s_and_b32 s{sT+1}, s{sT}, 7"); e(f"s_lshl_b32 s{sT+1}, s{sT+1}, 12"); e(f"v_add_u32 v{vTA+s}, s{sT+1}, v{vBA}")
    e(f"s_add_u32 s{sT}, s{sT}, 1")
for tb in range(4):
    for s in range(2):
        P.lds(f"ds_write_b128 v{vTA+s}, {vr(192 + tb*8 + 4*s,4)} offset:{tb*1024}", "hw")
gemm_pre(ot, 24)
P.wait(["hw"]); e("s_barrier")
stamp()
gemm(ot, 24, 8, "g4", pending)
stamp()
pack_store_partials(WS_PH, "ph")
vS, vY = 192, 208
for g in range(8):
    for s in range(2):
        for j in range(4):
            for h, sel in enumerate((sLO, sHI)):
                d = vS + s * 8 + 2 * j + h
                e(f"v_dot2_f32_bf16 v{d}, v{psr(g,s)+j}, s{sel}, {'v%d' % d if g else 0}", need=[("psl", g, s)])
P.puts(set_flags(16, 2, ["ph"]))
P.put(poll_issue(SWS, f"s{sF3}", "p4"))
for i in range(8): e(f"v_accvgpr_read_b32 v{128+i}, a{aX1+i}")
for i in range(8): e(f"v_accvgpr_read_b32 v{136+i}, a{aXS+i}")
for i in range(8):
    e(f"v_lshlrev_b32 v{vY+2*i}, 16, v{128+i}"); e(f"v_and_b32 v{vY+2*i+1}, 0xffff0000, v{128+i}")
    e(f"v_lshlrev_b32 v{144+2*i}, 16, v{136+i}"); e(f"v_and_b32 v{145+2*i}, 0xffff0000, v{136+i}")
e(f"v_bfe_u32 v160, v{vTOK}, 4, 11"); e("v_lshlrev_b32 v160, 10, v160"); e(f"v_bfe_u32 v161, v{vBA}, 8, 2")
e("v_lshl_add_u32 v160, v161, 4, v160"); e(f"s_lshl_b32 s{sT+1}, s{sG}, 7")
if STAMP > 1: stamp()
P.puts(poll_check("ph", SWS, f"s{sF3}", "p4", 1))
stamp()
P.puts(load_partials(WS_PH, psr, "phl"))
for g in range(8):
    for s in range(2):
        for j in range(4):
            for h, sel in enumerate((sLO, sHI)):
                d = vY + s * 8 + 2 * j + h
                e(f"v_dot2_f32_bf16 v{d}, v{psr(g,s)+j}, s{sel}, v{d}", need=[("phl", g, s)])
for i in range(16): e(f"v_mul_f32 v{64+i}, s{sNL2E}, v{vY+i}")
for i in range(16): e(f"v_exp_f32 v{64+i}, v{64+i}")
for i in range(0, 16, 2): e(f"v_pk_add_f32 {vr(64+i,2)}, {vr(64+i,2)}, 1.0 op_sel_hi:[1,0]")
for i in range(16): e(f"v_rcp_f32 v{64+i}, v{64+i}")
for i in range(0, 16, 2): e(f"v_pk_mul_f32 {vr(64+i,2)}, {vr(64+i,2)}, {vr(vY+i,2)}")
for i in range(0, 16, 2): e(f"v_pk_fma_f32 {vr(64+i,2)}, {vr(64+i,2)}, {vr(vS+i,2)}, {vr(144+i,2)}")
for i in range(8): e(f"v_cvt_pk_bf16_f32 v{80+i}, v{64+2*i}, v{65+2*i}")
for sw in ("v_permlane32_swap_b32", "v_permlane16_swap_b32"):
    for s in range(2):
        for j in range(2): e(f"{sw} v{80+4*s+j}, v{82+4*s+j}")
for s in range(2):
    P.vm(f"buffer_store_dwordx4 {vr(80+4*s,4)}, v160, {srd(SOUT)}, s{sT+1} offen offset:{s*64}")
if STAMP:
    P.wait_all()
    stamp()
    e(f"s_lshl_b32 s{sT}, s2, 2"); e(f"s_add_u32 s{sT}, s{sT}, s{sW}"); e(f"s_lshl_b32 s{sT}, s{sT}, 8")
    e(f"s_add_u32 s{sT}, s{sT}, {WS_ST}"); e(f"v_lshrrev_b32 v0, 2, v{vBA}")
    P.vm(f"buffer_store_dword v{vSTAMP}, v0, {srd(SWS)}, s{sT} offen")
e("s_endpgm")



def h_loads(half):
    e(f"v_bfe_u32 v64, v{vTOK}, 4, 11")
    for k, d in enumerate(((-1, 1), (-2, 2))[half]):
        e(f"v_add_u32 v65, {d}, v64"); e("v_cmp_gt_u32 vcc, 0x800, v65")
        e(f"v_add_u32 v65, {16*d}, v{vTOK}"); e(f"v_mov_b32 v{66+k}, 0x7f000000")
        e(f"v_cndmask_b32 v{66+k}, v{66+k}, v65, vcc")
    for ks in range(8 * half, 8 * half + 8):
        e(f"s_mov_b32 s{sSO}, {WS_H + ks*PLANE}")
        e(f"buffer_load_dwordx4 {ar(HB(ks),4)}, v{66 + (ks%8)//4}, {srd(SWS)}, s{sSO} offen sc1")


def g2_half(half):
    gemm_shared(8, lambda nb: ar(aG2 + 4 * nb, 4), half == 0, lambda i, o, n: vr(64 + (i % 16) * 4 + o, n),
                lambda ks: ar(HB(ks), 4), lambda ks: (), f"g2{half}")


def hook0():
    w2t[0].issue()
    e(f"s_cmp_lg_u32 s{sW}, 0"); e("s_cbranch_scc1 L_noarr")
    e(f"s_lshl_b32 s{sT}, s{sM}, 3"); e("s_mov_b64 exec, 1")
    e(f"buffer_atomic_add v{vONE}, off, {srd(SDBG)}, s{sT} sc1")
    e("s_mov_b64 exec, -1")
    lab("L_noarr")


def hook1():
    pass


def hook2():
    e(poll_issue(SDBG, 0, None).t)


def hook3():
    P.puts(poll_check("h", SDBG, 0, None, 8))
    h_loads(0)


def hook4():
    g2_half(0)
    h_loads(1)


def hook5():
    w2t[1].issue()
    e(f"s_and_b32 s{sT+1}, s{sG}, 1")
    sum_terms(sT, (sG, 448), (sW, 128)); e(f"s_lshl_b32 s{sT+1}, s{sT+1}, 6"); e(f"s_sub_u32 s{sT}, s{sT}, s{sT+1}")
    dma_voff(vDW2, 3584, False, f"s{sT}")


def hook6():
    P.cmt("x1 = xn + shift(hidden) @ w2, 64 columns")
    g2_half(1)
    for i in range(8): e(f"v_accvgpr_read_b32 v{64+i}, a{aXS+i}")
    for i in range(8):
        e(f"v_dot2_f32_bf16 v{80+2*i}, v{64+i}, s{sLO}, v{vNMEAN}"); e(f"v_dot2_f32_bf16 v{81+2*i}, v{64+i}, s{sHI}, v{vNMEAN}")
    for i in range(16): e(f"v_accvgpr_read_b32 v{96+i}, a{aG2+i}")
    for i in range(16): e(f"v_fma_f32 v{80+i}, v{80+i}, v{vRSTD}, v{96+i}")
    for i in range(8): e(f"v_cvt_pk_bf16_f32 v{64+i}, v{80+2*i}, v{81+2*i}")
    for s in range(2):
        e(f"s_add_u32 s{sSO}, s{sHO}, {WS_X1 + s*PLANE}")
        e(f"buffer_store_dwordx4 {vr(64+4*s,4)}, v{vTOK}, {srd(SWS)}, s{sSO} offen sc1")
    for i in range(8): e(f"v_accvgpr_write_b32 a{aX1+i}, v{64+i}")


def hook7():
    P.puts(set_flags(0, 1, []))
    ot[0].issue()
    e(f"s_and_b32 s{sT+1}, s{sW}, 1")
    sum_terms(89, (sG, 1 << 19), (sM, 16384), (sT + 1, 8192))
    sum_terms(90, (sG, 224 * 1024), (sM, 7168))
    e(f"v_lshrrev_b32 v64, 6, v{vBA}"); e("v_mul_u32_u24 v64, 3584, v64"); e(f"v_bfe_u32 v65, v{vBA}, 4, 2")
    e("v_lshl_add_u32 v232, v65, 7, v64")
    sum_terms(91, (sG, 448), (sM, 16 * 3584))


hooks = [hook0, hook1, hook2, hook3, hook4, hook5, hook6, hook7]
for par in range(2):
    lab(f"L_hook{par}")
    e(f"s_add_u32 s{sHK}, s{sHK}, 1")
    for k in range(par + 2, 8, 2):
        e(f"s_cmp_eq_u32 s{sHK}, {k+1}"); e(f"s_cbranch_scc1 L_hk{k}")
    for k in range(par, 8, 2):
        lab(f"L_hk{k}")
        P.lq, P.vq = [], []
        hooks[k]()
        assert not P.lq
        e(f"s_branch L_hooked{par}")

for name, s_rd, soff, target in slow_paths:
    lab(f"L_slow_{name}")
    e("s_sleep 1")
    e(f"buffer_load_dword v{vPOLL}, v{vPA}, {srd(s_rd)}, {soff} offen sc1")
    e(f"s_add_u32 s{sSPIN}, s{sSPIN}, 1")
    e("s_waitcnt vmcnt(0)")
    e(f"v_cmp_gt_u32 vcc, {target}, v{vPOLL}")
    e(f"s_cmp_gt_u32 s{sSPIN}, 0x200000"); e(f"s_cbranch_scc1 L_back_{name}")
    e(f"s_cbranch_vccnz L_slow_{name}")
    e(f"s_branch L_back_{name}")

lab("L_redo")
e(f"s_mov_b32 s{sREDO}, 1"); e(f"s_mov_b32 s{sCNT}, 0"); e(f"s_mov_b32 s{sKOFF}, 0")
lab("L_rmax")
P.wait_all(); e("s_barrier")
kv_issue("K", 0)
P.wait_all(); e("s_barrier")
mf = [m for m, _ in qk_mfmas(-1, zero=True)]
for half in range(2):
    for f in range(8 * half, 8 * half + 8): P.puts(frag_reads(-1, f))
    P.puts(mf[32 * half:32 * half + 32])
for qb in range(4):
    regs = [S(0, kb, qb) + i for kb in range(4) for i in range(4)]
    for i in range(0, 16, 2): e(f"v_max3_f32 v{PM(qb)}, v{PM(qb)}, v{regs[i]}, v{regs[i+1]}")
e(f"s_add_u32 s{sCNT}, s{sCNT}, 1"); e(f"s_cmp_lt_u32 s{sCNT}, 32"); e("s_cbranch_scc1 L_rmax")
e("s_barrier")
e(f"s_lshl_b32 s{sKOFF}, s{sM}, 14"); e(f"s_mov_b32 s{sVOFF}, s{sKOFF}")
for kind, tile in (("K", 0), ("K", 1), ("V", 0), ("K", 2), ("V", 1), ("K", 3), ("V", 2)): kv_issue(kind, tile)
P.wait_all(); e("s_barrier")
e("s_branch L_attn")
lab("L_end")
e("s_endpgm")
P.L += ['.section .rodata,"a"', ".p2align 6", f".amdhsa_kernel {NAME}",
        "  .amdhsa_next_free_vgpr 512", "  .amdhsa_next_free_sgpr 102", "  .amdhsa_accum_offset 256",
        "  .amdhsa_group_segment_fixed_size 0", "  .amdhsa_kernarg_size 104", "  .amdhsa_user_sgpr_count 2",
        "  .amdhsa_user_sgpr_kernarg_segment_ptr 1", "  .amdhsa_system_sgpr_workgroup_id_x 1",
        "  .amdhsa_float_denorm_mode_32 3", ".end_amdhsa_kernel"]
lines = "\n".join(P.L).split("\n")
lines, added = fix_hazards(lines)
open(OUT_PATH, "w").write("\n".join(lines) + "\n")
print(f"{OUT_PATH}: {len(lines)} lines, {added} wait states padded, {nstamp[0]} stamps", file=sys.stderr)
```

```python
import re

vr = lambda b, n=1: f"v{b}" if n == 1 else f"v[{b}:{b+n-1}]"
ar = lambda b, n=1: f"a{b}" if n == 1 else f"a[{b}:{b+n-1}]"
sr = lambda b, n=1: f"s{b}" if n == 1 else f"s[{b}:{b+n-1}]"


_TRANS = ("v_exp_", "v_log_", "v_rcp_", "v_rsq_", "v_sqrt_", "v_sin_", "v_cos_")
_SLOW = _TRANS + ("v_permlane",)


class It:
    __slots__ = ("t", "k", "tag", "need", "at")

    def __init__(self, t, k, tag=None, need=(), at=None):
        self.t, self.k, self.tag, self.need, self.at = t, k, tag, tuple(need), at

    @property
    def cost(self):
        return {"s": 0, "l": 4, "g": 8, "v": 4, "x": 8, "m": 8}[self.k]


def gate(*at):
    return It(None, "s", at=at)


class Prog:
    def __init__(self):
        self.L = []
        self.lq = []
        self.vq = []
        self.rec = None
        self.ever, self.used = set(), set()

    def capture(self, fn, *a, **kw):
        assert self.rec is None
        self.rec = []
        fn(*a, **kw)
        out, self.rec = self.rec, None
        return out

    def raw(self, s):
        self.L.append(s)

    def lab(self, s):
        self.L.append(s + ":")

    def cmt(self, s):
        if self.rec is None:
            self.L.append("    ; " + s)

    @staticmethod
    def _cut(q, tags):
        idx = [i for i, t in enumerate(q) if t in tags]
        if not idx:
            return None, q
        last = max(idx)
        return len(q) - 1 - last, q[last + 1:]

    def wait(self, tags):
        tags = set(tags)
        if not tags:
            return False
        if self.rec is not None:
            self.rec.append(It(None, "s", need=tags))
            return False
        assert tags <= self.ever, f"needed before issue: {tags - self.ever}"
        self.used |= tags
        nl, lq = self._cut(self.lq, tags)
        nv, vq = self._cut(self.vq, tags)
        parts = []
        if nv is not None:
            nv = min(nv, 63)
            self.vq = vq[len(vq) - nv:] if nv else []
            parts.append(f"vmcnt({nv})")
        if nl is not None:
            nl = min(nl, 15)
            self.lq = lq[len(lq) - nl:] if nl else []
            parts.append(f"lgkmcnt({nl})")
        if parts:
            self.L.append("    s_waitcnt " + " ".join(parts))
        return bool(parts)

    def wait_all(self, lgkm=True, vm=True):
        parts = []
        if vm:
            parts.append("vmcnt(0)"); self.vq = []
        if lgkm:
            parts.append("lgkmcnt(0)"); self.lq = []
        self.L.append("    s_waitcnt " + " ".join(parts))

    def e(self, s, need=(), k=None):
        if self.rec is not None:
            k = k or ("s" if s.startswith("s_") else "x" if s.startswith(_SLOW) else "v")
            self.rec.append(It(s, k, need=need))
            return
        self.wait(need)
        self.L.append("    " + s)

    def lds(self, s, tag=None, need=()):
        if self.rec is not None:
            self.rec.append(It(s, "l", tag, need))
            return
        self.e(s, need)
        assert tag not in self.used, f"issued after a consumer relied on it: {tag}"
        self.lq.append(tag); self.ever.add(tag)

    def vm(self, s, tag=None, need=()):
        if self.rec is not None:
            self.rec.append(It(s, "g", tag, need))
            return
        self.e(s, need)
        assert tag not in self.used, f"issued after a consumer relied on it: {tag}"
        self.vq.append(tag); self.ever.add(tag)

    def put(self, it):
        if self.rec is not None:
            self.rec.append(it)
        elif it.k == "l":
            self.lds(it.t, it.tag, it.need)
        elif it.k == "g":
            self.vm(it.t, it.tag, it.need)
        elif it.t is None:
            self.wait(it.need)
        else:
            self.e(it.t, it.need)

    def puts(self, its):
        for it in its:
            self.put(it)

    def drain(self, fill):
        while fill:
            self.put(fill.pop(0))

    def run_gaps(self, ms, gaps, fill=None, next_need=(), pos=0, gmin=8, over=0):
        for g, m in enumerate(ms):
            self.put(m)
            items = gaps.get(g, [])
            nxt = ms[g + 1].need if g + 1 < len(ms) else tuple(next_need)
            own = {it.tag for it in items}
            nscal = sum(it.k == "s" for it in items)
            if nxt and not (set(nxt) & own):
                nscal += self.wait(nxt)
            budget = 8 + (over if g % 2 else 0) - sum(it.cost for it in items) - 4 * max(0, nscal - 1)
            head, pre, post = [], [], []
            while fill:
                it = fill[0]
                if it.at is not None:
                    if (pos, g) < it.at: break
                    fill.pop(0); continue
                if it.k == "s" and not nscal and not pre and not post:
                    head.append(fill.pop(0)); nscal = 1; continue
                cost = it.cost or 4
                if it.k == "g":
                    if head or pre or post or budget < gmin or any(x.k == "g" for x in items): break
                elif cost > budget or (it.k == "l" and post): break
                budget -= cost
                (post if post or it.k in "vx" else pre).append(fill.pop(0))
            self.puts([it for it in items if it.k == "s"] + head)
            self.puts([it for it in items if it.k in "lg"] + pre)
            self.puts([it for it in items if it.k in "vx"] + post)


_REG = re.compile(r"\b([vas])(\d+)\b|\b([vas])\[(\d+):(\d+)\]")


def _regs(op):
    out = set()
    for m in _REG.finditer(op):
        if m.group(1):
            out.add((m.group(1), int(m.group(2))))
        else:
            out |= {(m.group(3), i) for i in range(int(m.group(4)), int(m.group(5)) + 1)}
    if re.search(r"\bvcc\b", op):
        out.add(("s", "vcc"))
    if re.search(r"\bm0\b", op):
        out.add(("s", "m0"))
    return out


class Ins:
    def __init__(self, line):
        s = line.split(";")[0].strip()
        self.text = s
        p = s.split(None, 1)
        self.op = op = p[0]
        rest = p[1] if len(p) > 1 else ""
        ops = [x.strip() for x in re.split(r",(?![^\[]*\])", rest)] if rest else []
        R = [_regs(o) for o in ops]
        allr = set().union(*R) if R else set()
        self.states = 1
        self.w, self.r = set(), set()
        self.mfma = op.startswith("v_mfma")
        self.valu = op.startswith("v_") and not self.mfma
        self.trans = op.startswith(_TRANS)
        self.dot = op.startswith("v_dot")
        self.vmem = op.startswith(("buffer_", "global_"))
        self.ds = op.startswith("ds_")
        self.salu = op.startswith("s_")
        self.perm = op.startswith("v_permlane") or "dpp" in op
        self.rdlane = op.startswith(("v_readlane", "v_readfirstlane"))
        self.dma = self.vmem and bool(re.search(r"\blds\b", rest))
        self.wide_store = self.vmem and "store" in op and op.endswith(("x3", "x4"))
        self.ab, self.c, self.data = set(), set(), set()
        if op == "s_nop":
            self.states = int(rest) + 1
        elif self.mfma:
            self.w, self.ab, self.c = R[0], R[1] | R[2], R[3]
            self.r = self.ab | self.c
            self.passes = 8 if "32x32" in op else 4
        elif self.valu:
            if op.startswith("v_permlane"):
                self.w = self.r = allr
            else:
                self.w = set(R[0])
                self.r = set().union(*R[1:]) if len(R) > 1 else set()
                if op.startswith(("v_add_co", "v_addc_co", "v_sub_co")):
                    self.w |= R[1]
                    self.r = set().union(*R[2:])
                if op.startswith(("v_fmac", "v_dot2c", "v_writelane")):
                    self.r |= R[0]
                if self.dot:
                    self.ab = R[1] | R[2]
        elif self.vmem:
            if op.startswith(("buffer_inv", "buffer_wbl2")):
                pass
            elif self.dma:
                self.r = allr | {("s", "m0")}
            elif "load" in op:
                self.w, self.r = R[0], set().union(*R[1:])
            else:
                self.r = allr
                self.data = R[0] if op.startswith("buffer") else R[1]
        elif self.ds:
            if "read" in op or "permute" in op:
                self.w, self.r = R[0], set().union(*R[1:])
            else:
                self.r = allr
        elif self.salu and ops and not op.startswith(("s_cmp", "s_cbranch", "s_branch", "s_waitcnt", "s_sleep", "s_setprio")):
            self.w = R[0]
            self.r = set().union(*R[1:]) if len(R) > 1 else set()
        elif self.salu:
            self.r = allr


def _need(p, c):
    n = 0
    pv = {x for x in p.w if x[0] != "s"}
    ps = {x for x in p.w if x[0] == "s"}
    if p.valu:
        if c.mfma and pv & c.r: n = max(n, 2)
        if c.perm and pv & c.r: n = max(n, 2)
        if c.rdlane and pv & c.r: n = max(n, 1)
        if p.trans and c.valu and not c.trans and pv & c.r: n = max(n, 1)
        if p.dot and pv & (c.r | c.w):
            if c.op != p.op or pv & c.ab: n = max(n, 3)
        if ps & c.r:
            n = max(n, 5 if c.vmem else (4 if c.rdlane or c.op.startswith("v_writelane") else 2))
        if ps and c.op.startswith("s_cbranch_vcc"): n = max(n, 2)
    if p.mfma:
        big = {4: 8, 8: 12}[p.passes]
        if c.mfma:
            if p.w & c.ab: n = max(n, big)
            if p.w & c.c and p.w != c.c: n = max(n, big - 2)
            if p.w & c.w and p.w != c.w: n = max(n, big - 2)
        elif (c.valu or c.vmem or c.ds) and p.w & (c.r | c.w):
            n = max(n, big)
        if c.valu and p.c & c.w: n = max(n, {4: 3, 8: 7}[p.passes])
    if p.wide_store and p.data & c.w: n = max(n, 2)
    if p.salu and ("s", "m0") in p.w and c.dma: n = max(n, 1)
    return n


def _is_ins(line):
    s = line.split(";")[0].strip()
    return bool(s) and not s.endswith(":") and not s.startswith(".")


def fix_hazards(lines, window=14):
    out, hist, added = [], [], 0
    for line in lines:
        if not _is_ins(line):
            out.append(line)
            continue
        c = Ins(line)
        dist, short = 0, 0
        for p in reversed(hist):
            short = max(short, _need(p, c) - dist)
            dist += p.states
            if dist > window: break
        if short > 0:
            out.append(f"    s_nop {short-1}")
            hist.append(Ins(f"s_nop {short-1}"))
            added += short
        out.append(line)
        hist.append(c)
        hist = hist[-window - 2:]
    labels = {l.split(":")[0].strip(): i for i, l in enumerate(out) if l.split(";")[0].strip().endswith(":")}
    for i, l in enumerate(out):
        if not _is_ins(l): continue
        b = Ins(l)
        if not b.op.startswith(("s_cbranch", "s_branch")): continue
        tgt = labels[b.text.split()[1]]
        before = [Ins(x) for x in out[max(0, i - 3 * window):i + 1] if _is_ins(x)][-window:]
        after = [Ins(x) for x in out[tgt:tgt + 3 * window] if _is_ins(x)][:window]
        off = 0
        for c in after:
            dist = off
            for p in reversed(before):
                assert _need(p, c) <= dist, f"hazard across branch '{b.text}': '{p.text}' -> '{c.text}'"
                dist += p.states
            off += c.states
            if c.op in ("s_branch", "s_endpgm"): break
    return out, added


SHORT = (("mf", "v_mfma_f32_16x16x32_bf16"), ("rt", "ds_read_b64_tr_b16"), ("pk", "v_cvt_pk_bf16_f32"),
         ("bl", "buffer_load_dwordx4"), ("rq", "ds_read_b128"))


def compress(lines):
    out, done = [], False
    for l in lines:
        if l.startswith(".text") and not done:
            for a, b in SHORT:
                out += [f".macro {a} x:vararg", f" {b} \\x", ".endm"]
            done = True
        if _is_ins(l):
            t = l.strip()
            for a, b in SHORT:
                if t.startswith(b + " "):
                    t = a + t[len(b):]
            l = " " + t.replace(", ", ",")
        out.append(l)
    return out
```

```python
import math
import struct
import sys
from asmlib import *

OUT_PATH = sys.argv[1]
opt = dict(a.split("=") for a in sys.argv[2:])
O_ = lambda k, d: int(opt.get(k, d))
STAMP = O_("stamp", 0)
SSET = opt.get("sset", "")
FORCE_REDO = O_("redo", 0)
AHEAD = O_("ahead", 12)
AMP = [int(x) for x in opt["amp"].split(",")] if "amp" in opt else None

NAME = "recurrent_scan__gqa_block_cached__mixer_s_mlp__prompt_kernel"
MF = "v_mfma_f32_16x16x32_bf16"
f2u = lambda x: "0x%08x" % struct.unpack("<I", struct.pack("<f", x))[0]
LOG2E = math.log2(math.e)
QSCALE = LOG2E / math.sqrt(128.0)
GC1 = -2.0 * math.sqrt(2.0 / math.pi) * LOG2E
GC2 = GC1 * 0.044715
EPS = 1e-5

SX, SK, SV, SWS, SWQ, SWO, SW1, SW2, SW3, SW4, SOUT, SDBG = range(4, 52, 4)
sG, sM, sW = 52, 53, 54
sT = 55
sW1K, sW4K, sRING, sSO = 60, 61, 62, 63
sSF, sCNT, sSPIN, sHO, sPP, sPC, sFL, sF0, sF1, sSTP, sSTC = range(64, 75)
sLO, sHI, sONE2, sC1, sC2, sNL2E, sF2, sF3, sKS = range(75, 84)
sST = 92
srd = lambda b: sr(b, 4)

WS_H, WS_X1, WS_PS, WS_PH, WS_FL, WS_SS, WS_ST = 0, 0x200000, 0x400000, 0x1400000, 0x2400000, 0x2500000, 0x4000000
PLANE = 131072

vBA, vTOK, vNMEAN, vRSTD, vLANE, vSTAMP, vCODE, vAS, vDW2 = 255, 254, 253, 252, 251, 250, 248, 244, 243
T = 226
vAA, vAA2 = T, T + 4
vBX, vWA, vSC1, vDWQ, vDW1 = T + 8, T + 9, T + 12, T + 14, T + 15
vPA, vPOLL, vONE, vDW4, vDWO = T + 16, T + 15, T + 14, T + 13, T + 12
vTC = T + 10
XR = 128
G12 = 192
S = lambda buf, kb, qb: buf * 64 + ((kb >> 1) * 4 + qb) * 8 + (kb & 1) * 4
PR = lambda buf, ks, qb: buf * 64 + (ks * 4 + qb) * 8
Q = lambda qb, s: 128 + (qb * 4 + s) * 4
NM = lambda qb: 192 + 4 * qb
KA = lambda s: 208 + s
VA = lambda db: 212 + db
KG = lambda i: 220 + i
VG = lambda i: 224 + (i & 1)
vR = NM(0)
RINV = lambda qb: vR + 8 + 2 * qb
OP = lambda s, qb: (s * 4 + qb) * 4
O = lambda db, qb: (db * 4 + qb) * 4
FR = lambda f: 128 + (f % 8) * 4
HB = lambda ks: 160 + (ks % 8) * 4
LACC = lambda qb: 192 + 4 * qb
aONES, aG2, aXN = 208, 212, 244
GA = lambda i: 228 + (i % 4) * 4
AF = lambda f: 128 + (f % 8) * 4
PHA = lambda k: (160, 212)[k // 8] + (k % 8) * 4
T0 = 22
RING, VOFF = 65536, 65536

P = Prog()
e, lab, cap = P.e, P.lab, P.capture
slow_paths = []
nstamp = [0]


def stamp(level=1):
    if AMP and level == 1:
        i = nstamp[0]; nstamp[0] += 1
        if i in AMP[:2]:
            e(f"{'s_memtime' if AMP[3] else 's_memrealtime'} {sr(sST + 2*AMP.index(i),2)}"); P.wait_all(vm=False)
        return
    if STAMP < level or (SSET and level != 0):
        return
    i = nstamp[0]; nstamp[0] += 1
    e(f"s_memtime {sr(sST,2)}"); e(f"s_memrealtime {sr(sST+2,2)}")
    P.wait_all(vm=False)
    e(f"v_writelane_b32 v{vSTAMP}, s{sST}, {2*i}")
    e(f"v_writelane_b32 v{vSTAMP}, s{sST+2}, {2*i+1}")


def stamp_item():
    i = nstamp[0]; nstamp[0] += 1
    return It(f"s_memtime {sr(sST,2)}\n    s_memrealtime {sr(sST+2,2)}\n    s_waitcnt lgkmcnt(0)\n"
              f"    v_writelane_b32 v{vSTAMP}, s{sST}, {2*i}\n    v_writelane_b32 v{vSTAMP}, s{sST+2}, {2*i+1}", "s")


def mk_srd(d, p, size):
    e(f"s_mov_b32 s{d}, s{p}"); e(f"s_mov_b32 s{d+1}, s{p+1}"); e(f"s_mov_b32 s{d+2}, {size}"); e(f"s_mov_b32 s{d+3}, 0x20000")


def sum_terms(dst, *terms):
    first = True
    for t in terms:
        if isinstance(t, int):
            e(f"s_add_u32 s{dst}, s{dst}, {t}"); continue
        r, k = t
        if k == 0:
            e(f"s_mov_b32 s{dst}, 0"); first = False; continue
        d = dst if first else sT + 4
        e(f"s_lshl_b32 s{d}, s{r}, {k.bit_length()-1}" if k & (k - 1) == 0 else f"s_mul_i32 s{d}, s{r}, {k}")
        if not first: e(f"s_add_u32 s{dst}, s{dst}, s{d}")
        first = False


def allreduce(op, regs, tmps, k=None):
    for sw in ("v_permlane32_swap_b32", "v_permlane16_swap_b32"):
        for r, t in zip(regs, tmps): e(f"v_mov_b32 v{t}, v{r}")
        for r, t in zip(regs, tmps): e(f"{sw} v{r}, v{t}", k=k)
        for r, t in zip(regs, tmps): e(f"{op} v{r}, v{r}, v{t}")


def masked(mask, txt, tag=None, lds=False):
    (P.lds if lds else P.vm)(f"s_mov_b64 exec, {mask}\n    {txt}\n    s_mov_b64 exec, -1", tag)


class Poll:
    def __init__(self, name, loads, tests):
        self.name, self.loads, self.tests = name, loads, tests
        slow_paths.append(self)

    def issue(self):
        for l in self.loads: P.vm(l, self.name)

    def check(self):
        for i, t in enumerate(self.tests): e(t, need=[self.name] if i == 0 else ())
        e(f"s_cbranch_vccnz L_slow_{self.name}\nL_back_{self.name}:", k="v")


def flag_poll(name, s_rd, soff, target):
    return Poll(name, [f"buffer_load_dword v{vPOLL}, v{vPA}, {srd(s_rd)}, {soff} offen sc1"],
                [f"v_cmp_gt_u32 vcc, {target}, v{vPOLL}"])


def set_flags(stage, nlanes, need):
    e(f"v_mov_b32 v{vONE}, 1")
    e(f"s_add_u32 s{sSF}, s{sFL}, {stage * 1024}")
    P.wait(need)
    masked((1 << nlanes) - 1, f"buffer_store_dword v{vONE}, v{vLANE}, {srd(SWS)}, s{sSF} offen sc1")


def interleave(code, side, every):
    side = list(side)
    for k, it in enumerate(code):
        if side and k % every == 0: P.puts(side.pop(0))
        P.put(it)
    for x in side: P.puts(x)


def gelu(base, n, tmp, dst, first):
    pairs = range(0, n, 2)
    if first:
        e(f"v_mov_b32 v{vTC}, s{sC1}"); e(f"v_mov_b32 v{vTC+1}, s{sC2}")
    for i in pairs: e(f"v_pk_mul_f32 {vr(tmp+i,2)}, {vr(base+i,2)}, {vr(base+i,2)}")
    for i in pairs: e(f"v_pk_fma_f32 {vr(tmp+i,2)}, {vr(tmp+i,2)}, {vr(vTC,2)}, {vr(vTC,2)} op_sel:[0,1,0] op_sel_hi:[1,1,0]")
    for i in pairs: e(f"v_pk_mul_f32 {vr(tmp+i,2)}, {vr(tmp+i,2)}, {vr(base+i,2)}")
    for i in range(n): e(f"v_exp_f32 v{tmp+i}, v{tmp+i}")
    for i in pairs: e(f"v_pk_add_f32 {vr(tmp+i,2)}, {vr(tmp+i,2)}, 1.0 op_sel_hi:[1,0]")
    for i in range(n): e(f"v_rcp_f32 v{tmp+i}, v{tmp+i}")
    for i in pairs: e(f"v_pk_mul_f32 {vr(tmp+i,2)}, {vr(tmp+i,2)}, {vr(base+i,2)}")
    for i in pairs: e(f"v_cvt_pk_bf16_f32 v{dst(i//2)}, v{tmp+i}, v{tmp+i+1}")


class Tile:
    def __init__(self, s_rd, voff, base, stride, perm, slot, tag, rows=64, kp=0, nh=0, half=32):
        self.__dict__.update(locals())

    def dma(self):
        out = []
        for i in range(self.rows // 8):
            row = ((0, 16, 4, 20)[i & 3] if self.perm else 8 * (i & 3)) + self.half * (i >> 2)
            so = self.base + row * self.stride - (i & 3) * 1024
            pre = [It(f"s_add_u32 m0, s{sRING}, {self.slot * 32768 + (i >> 2) * 4096}", "s")] if i % 4 == 0 else []
            out.append((pre + [It(f"s_mov_b32 s{sSO}, {so}", "s")],
                        [It(f"buffer_load_dwordx4 v{self.voff}, {srd(self.s_rd)}, s{sSO} offen "
                            f"offset:{(i & 3) * 1024} lds", "g", self.tag)]))
        return out


def place(add, g, grp, prev):
    pre, its = grp
    for k, it in enumerate(pre): add(max(g - len(pre) + k, prev + 1, 0), it)
    for it in its: add(g, it)


def dma_voff(dst, stride, perm, s_base, a):
    b = a + 1
    e(f"v_lshrrev_b32 v{a}, 10, v{vLANE}")
    e(f"v_bfe_u32 v{b}, v{vBA}, 4, 3")
    e(f"v_and_b32 v{dst}, 6, v{a}"); e(f"v_xor_b32 v{b}, v{b}, v{dst}")
    if perm:
        e(f"v_and_b32 v{dst}, 4, v{a}"); e(f"v_add_u32 v{a}, v{a}, v{dst}")
    e(f"v_mul_u32_u24 v{a}, {stride}, v{a}")
    e(f"v_lshl_add_u32 v{a}, v{b}, 4, v{a}")
    e(f"v_add_u32 v{dst}, {s_base}, v{a}")


def a_reads(t, ti, nb):
    base = (vAA2 if t.slot == 2 else vAA) + nb
    off = (t.slot % 2) * 32768 if t.slot < 2 else 0
    return [It(f"ds_read_b64_tr_b16 {ar(AF(nb*2+ks) + 2*h, 2)}, v{base} offset:{off + ks*4096 + h*2048}", "l",
               ("A", t.tag, nb), need=[t.tag]) for ks in range(t.rows // 32) for h in range(2)]


def gemm_pre(tiles, i0):
    P.puts(a_reads(tiles[i0], i0, 0))


def gemm(tiles, i0, n, acc, pending, bf, breg=vBA, extra=None, fill=None, over=0):
    BF = lambda par, ks, tb: bf[par] + (ks * 4 + tb) * 4
    ms, gaps, start, grp = [], {}, [], []
    seen = set()
    for ti in range(i0, i0 + n):
        t = tiles[ti]
        grp.append(0 if ti == i0 else grp[-1] + (t.kp != tiles[ti - 1].kp))
        start.append(len(ms))
        nks = t.rows // 32
        for nb in range(4):
            for tb in range(4):
                for ks in (range(nks) if not tb & 1 else range(nks - 1, -1, -1)):
                    d = vr(acc(t.nh, nb, tb), 4)
                    c = d if (t.nh, nb, tb) in seen else "0"
                    seen.add((t.nh, nb, tb))
                    ms.append(It(f"{MF} {d}, {ar(AF(nb*2+ks),4)}, {ar(BF(grp[-1]&1,ks,tb),4)}, {c}", "m",
                                 need=[("A", t.tag, nb), ("B", tiles[i0].tag, grp[-1], tb)]))
    start.append(len(ms))

    def b_reads(s):
        t = tiles[i0 + s]
        return [It(f"ds_read_b128 {ar(BF(grp[s]&1,ks,tb),4)}, v{breg} offset:{t.kp*8192 + ks*4096 + tb*1024}", "l",
                   ("B", tiles[i0].tag, grp[s], tb)) for tb in range(4) for ks in range(t.rows // 32)]

    add = lambda g, it: gaps.setdefault(g, []).append(it)
    pre = b_reads(0)
    release = {}
    for s in range(n):
        ti = i0 + s; t = tiles[ti]
        per = (start[s + 1] - start[s]) // 4
        for nb in range(4):
            if s == 0 and nb == 0: continue
            rd = a_reads(t, ti, nb)
            for k, it in enumerate(rd):
                g = start[s] + per * nb - 6 - 2 * (len(rd) - 1 - k)
                if g < 0: pre.append(it)
                else: add(g, it)
        if ti + 3 < len(tiles) and tiles[ti + 3]: release[start[s] + 3 * per] = tiles[ti + 3]
        if s + 1 < n and grp[s + 1] != grp[s]:
            s0 = grp.index(grp[s])
            rd = b_reads(s + 1)
            cand = [g for g in range(start[s0], start[s + 1] - 6) if g % 4 == 3]
            if len(cand) < len(rd): cand = sorted(cand + [start[s0] + 2 * k for k in range(len(rd) - len(cand))])
            step = len(cand) / len(rd)
            for k, it in enumerate(rd): add(cand[int(k * step)], it)
    prev = -1
    for g in range(len(ms)):
        if g in release: pending += release[g].dma()
        nxt = min([r for r in release if r > g], default=len(ms) + 24)
        if pending and (g % 4 == 1 or (g % 4 == 3 and len(pending) > (nxt - g + 1) // 4)):
            place(add, g, pending.pop(0), prev); prev = g
    for g, its in (extra or {}).items():
        for it in its: add(g, it)
    if SSET == "gemm" and tiles is not qt or SSET == "q" and tiles is qt:
        for g in start[:-1]: add(g, stamp_item())
    P.puts(pre)
    P.run_gaps(ms, gaps, fill, gmin=4, over=over)


def flush(pending):
    while pending:
        a, b = pending.pop(0)
        P.puts(a + b)


def shared_ops(kss, koff, acc, zero, afr, breg, bneed, name, i0=0):
    out = []
    for nb in range(4):
        for ks in kss:
            i = i0 + len(out)
            d = acc(nb)
            out.append((It(f"{MF} {d}, {ar(afr(i),4)}, {breg(ks)}, {0 if zero and not ks else d}", "m",
                           need=[(name, i)] + list(bneed(ks))),
                        [It(f"ds_read_b64_tr_b16 {ar(afr(i)+2*h,2)}, v{vAS+nb} offset:{(ks-koff)*4096 + h*2048}", "l",
                            (name, i)) for h in range(2)]))
    return out


def pack(acc, nh, tb, s):
    a, b = acc(nh, 2 * s, tb), acc(nh, 2 * s + 1, tb)
    for j, r in enumerate((a, a + 2, b, b + 2)): e(f"v_cvt_pk_bf16_f32 v{a+j}, v{r}, v{r+1}")


def store_piece(src, ws_base, nh, tb, s, tag):
    e(f"s_add_u32 s{sSF}, s{sPP}, {ws_base + s*65536 + tb*2048}")
    P.vm(f"buffer_store_dwordx4 {src}, v{vBA}, {srd(SWS)}, s{sSF} offen offset:{nh*1024} sc1", tag)


def load_piece(ws_base, dst, g, nh, tag):
    e(f"s_add_u32 s{sSF}, s{sPC}, {ws_base + g*8192}")
    P.vm(f"buffer_load_dwordx4 {dst}, v{vBA}, {srd(SWS)}, s{sSF} offen offset:{nh*1024} sc1", (tag, g, nh))


def add_piece(dst, reg, first, need):
    for j in range(4):
        for h, sel in enumerate((sLO, sHI)):
            d = dst + 2 * j + h
            e(f"v_dot2_f32_bf16 v{d}, v{reg+j}, s{sel}, {0 if first else 'v%d' % d}", need=need)


def frag_reads(t, f, tail=False):
    if f < 16:
        kb, s = f // 4, f % 4
        off = ((t + 1) % 4) * 16384 + kb * 4096
        return [It(f"ds_read_b128 {ar(FR(f),4)}, v{KA(s)} offset:{off}", "l", ("F", t, f))]
    db, ks = ((f - 16) // 2, (f - 16) % 2) if not tail else ((f - 16) % 8, (f - 16) // 8)
    off = (t % 4) * 16384 + ks * 8192
    return [It(f"ds_read_b64_tr_b16 {ar(FR(f)+2*h,2)}, v{VA(db)} offset:{off + 4096*h}", "l", ("F", t, f))
            for h in range(2)]


def qk_mfmas(t, zero=False):
    out = []
    for kb in range(4):
        for qb in range(4):
            for n, s in enumerate(range(4) if not qb & 1 else range(3, -1, -1)):
                d = vr(S((t + 1) & 1, kb, qb), 4)
                c = d if n else ("0" if zero else vr(NM(qb), 4))
                out.append((It(f"{MF} {d}, {ar(FR(kb*4+s),4)}, {vr(Q(qb,s),4)}, {c}", "m",
                               need=[("F", t, kb * 4 + k) for k in range(4)]), kb * 4 + s))
    return out


def pv_one(t, db, qb, ks, f, need, zero=False):
    o = ar(O(db, qb), 4)
    return (It(f"{MF} {o}, {ar(FR(f),4)}, {vr(PR(t&1,ks,qb),4)}, {0 if zero else o}", "m", need=need), f)


def sum_one(t, qb, ks, zero=False):
    l = ar(LACC(qb), 4)
    return (It(f"{MF} {l}, {ar(aONES,4)}, {vr(PR(t&1,ks,qb),4)}, {0 if zero else l}", "m"), None)


def pv_mfmas(t, zero=False):
    out = []
    for db in range(8):
        need = [("F", t, 16 + db * 2), ("F", t, 17 + db * 2)]
        for qb in range(4):
            for n, ks in enumerate(range(2) if not qb & 1 else range(1, -1, -1)):
                out.append(pv_one(t, db, qb, ks, 16 + db * 2 + ks, need, zero and not n))
        if db % 2 == 1:
            out += [sum_one(t, db // 2, ks, zero and not ks) for ks in range(2)]
    return out


def pv_mfmas_tail(t):
    out = []
    for ks in range(2):
        out += [sum_one(t, qb, ks) for qb in range(4)]
        for db in range(8):
            f = 16 + ks * 8 + db
            out += [pv_one(t, db, qb, ks, f, [("F", t, f)]) for qb in range(4)]
    return out


def sm_stream(buf, half):
    ex, post = [], []
    for qb in range(4):
        b = PR(buf, half, qb)
        for j in range(8):
            ex.append(It(f"v_exp_f32 v{b+j}, v{b+j}", "x"))
            post.append([It(f"v_cvt_pk_bf16_f32 v{b + j//2}, v{b+j-1}, v{b+j}", "v")] if j & 1 else [])
    return ex, post


def kv_dma(kind, tile, lds=None, so=None):
    reg, s_rd, base = (KG, SK, 0) if kind == "K" else (VG, SV, VOFF)
    lds = base + (tile % 4) * 16384 if lds is None else lds
    out = []
    for i in range(4):
        pre = [It(f"s_add_u32 m0, s{sW4K}, {lds}", "s"),
               It(f"s_mov_b32 s{sSO}, {tile * 16384 if so is None else so}", "s")] if i == 0 else []
        out.append((pre, [It(f"buffer_load_dwordx4 v{reg(i)}, {srd(s_rd)}, s{sSO} offen offset:{i*1024} lds",
                             "g", (kind, tile))]))
    return out


issued = set()


def attn_iter(t, groups, fill, endwait=(), extra=None, ins=None):
    end = T0 - 1 if t < T0 else 31
    last = t == end
    mf = pv_mfmas_tail(t) if last else qk_mfmas(t) + pv_mfmas(t, zero=t == 0)
    ms = [m for m, _ in mf]
    n = len(ms)
    first_use, last_use = {}, {}
    for i, (_, f) in enumerate(mf):
        if f is not None:
            first_use.setdefault(f, i); last_use[f] = i
    reads = []
    for f in sorted(first_use):
        if (t, f) in issued: continue
        reads += [(first_use[f] - AHEAD, last_use.get(f - 8, -1), it) for it in frag_reads(t, f, last)]
    nxt_need = ()
    if t < end - 1:
        for f in range(4):
            reads += [(n + f - AHEAD, last_use[24 + f], it) for it in frag_reads(t + 1, f)]
            issued.add((t + 1, f))
        nxt_need = [("F", t + 1, f) for f in range(4)]
    elif t == end - 1:
        for f in range(16, 18):
            reads += [(n + 4 * (f - 15) - AHEAD, last_use[8 + f], it) for it in frag_reads(end, f, True)]
            issued.add((end, f))
    gaps = {}
    add = lambda g, it: gaps.setdefault(g, []).append(it)
    exg = {}
    if last:
        ex, post = sm_stream(t & 1, 1)
        for i in range(32): exg[i] = (ex[i], post[i])
    else:
        exA, postA = sm_stream(t & 1, 1)
        exB, postB = sm_stream((t + 1) & 1, 0)
        nB = n - 64
        for i in range(32):
            exg[2 * i] = (exA[i], postA[i])
            exg[64 + 2 * ((i * (nB // 2)) // 32)] = (exB[i], postB[i])
    for g, (x, post) in exg.items():
        add(g, x)
    for g, (x, post) in exg.items():
        for it in post: add(g + 1, it)
    free = set(range(n)) if last else {g for g in range(n) if g not in exg}
    prev, pre = n, []
    for dl, early, it in reversed(reads):
        c = [g for g in free if g <= dl and g < prev]
        if c:
            prev = max(c); free.discard(prev); add(prev, it)
        else:
            prev = -1; pre.insert(0, it)
        assert prev >= early, (t, it.t, prev, early)
    if groups:
        def spaced(c):
            out = []
            for g in c:
                if not out or g - out[-1] >= 2: out.append(g)
            return out
        light = spaced([g for g in sorted(free) if 1 <= g < n - 6 and g not in gaps])
        fr = light if len(light) >= len(groups) else spaced([g for g in sorted(free) if 1 <= g < n - 6])
        assert len(fr) >= len(groups), (t, len(fr), len(groups))
        step = len(fr) / len(groups)
        for k, grp in enumerate(groups):
            place(add, fr[int(k * step)], grp, fr[int((k - 1) * step)] if k else -1)
    if not last:
        add(n - 3, It(None, "s", need=[("K", min(t + 3, end)), ("V", end if t == end - 2 else t + 1)] + list(endwait)))
        add(n - 2, It("s_barrier", "s"))
    for g, its in (extra or {}).items():
        for it in its: add(g, it)
    if SSET == "attn": add(0, stamp_item())
    if ins:
        for k in range(3):
            for h, it in enumerate(ins[k][1]): add(1 + 4 * k + 2 * h, it)
        pos = {(13 + (k * (n - 24)) // (len(ins) - 1)) | 1: k for k in range(len(ins))}
        assert len(pos) == len(ins)
        ms2, gaps2 = [], {}
        for g, m in enumerate(ms):
            gaps2[len(ms2)] = gaps.get(g, []); ms2.append(m)
            if g in pos:
                k = pos[g]
                gaps2[len(ms2)] = list(ins[k + 3][1]) if k + 3 < len(ins) else []
                ms2.append(ins[k][0])
        ms, gaps = ms2, gaps2
    P.puts(pre)
    P.run_gaps(ms, gaps, fill, next_need=nxt_need, pos=t, gmin=4)


hdr = [l.rstrip("\n") for l in open("header.txt")]
hdr = hdr[:[i for i, l in enumerate(hdr) if "@launch" in l][0]]
P.L += hdr + ["; @launch grid=(256,1,1) block=(256,1,1) lds=163840",
              '.amdgcn_target "amdgcn-amd-amdhsa--gfx950"', ".text", f".globl {NAME}", ".p2align 8",
              f".type {NAME},@function"]
lab(NAME)
e("s_cmp_lt_u32 s2, 256"); e("s_cbranch_scc1 L_go"); e("s_endpgm")
lab("L_go")
e("s_load_dwordx16 s[64:79], s[0:1], 0"); e("s_load_dwordx8 s[80:87], s[0:1], 64"); e("s_load_dwordx2 s[88:89], s[0:1], 96")
PAIR = O_("pair", 0)
NS = 16 if PAIR else 32
sMI, sWV = 90, 91
if PAIR:
    e(f"s_and_b32 s{sG}, s2, 3"); e(f"s_lshl_b32 s{sG}, s{sG}, 1"); e(f"s_bfe_u32 s{sT}, s2, 0x10003"); e(f"s_add_u32 s{sG}, s{sG}, s{sT}")
    e(f"s_lshr_b32 s{sMI}, s2, 4"); e(f"s_and_b32 s{sM}, s2, 4"); e(f"s_lshl_b32 s{sM}, s{sM}, 2"); e(f"s_add_u32 s{sM}, s{sM}, s{sMI}")
else:
    e(f"s_and_b32 s{sG}, s2, 7"); e(f"s_lshr_b32 s{sM}, s2, 3"); e(f"s_lshr_b32 s{sMI}, s2, 3")
e("v_lshrrev_b32 v1, 6, v0"); e("v_and_b32 v0, 63, v0"); e(f"v_readfirstlane_b32 s{sW}, v1")
e(f"v_lshlrev_b32 v{vBA}, 4, v0"); e(f"v_lshlrev_b32 v{vLANE}, 7, v0")
e(f"s_getpc_b64 {sr(sT+1,2)}")
lab("L_pc")
NCL = 8
e(f"s_lshr_b32 s{sT+3}, s2, 3")
sum_terms(sT, (sT + 3, 512), (sW, 128))
e(f"v_min_u32 v6, {NCL-1}, v0"); e(f"v_lshl_add_u32 v6, v6, 14, s{sT}"); e("v_min_u32 v6, L_end-L_pc, v6")
e(f"v_mov_b32 v{vCODE+1}, s{sT+2}"); e(f"v_add_co_u32 v{vCODE}, vcc, s{sT+1}, v6")
e(f"v_addc_co_u32 v{vCODE+1}, vcc, 0, v{vCODE+1}, vcc")
code_touch = lambda: P.vm(f"global_load_dword a255, {vr(vCODE,2)}, off")
masked(1, f"global_load_dword a255, {vr(vCODE,2)}, off")
sum_terms(sWV, (sMI, 4), (sW, 1))


def touch_off(d, nrows, lines, stride, base_terms, t):
    per = -(-nrows // (NS * 4))
    assert per * lines <= 64 and lines & (lines - 1) == 0
    sh = lines.bit_length() - 1
    e(f"v_lshrrev_b32 v{d}, {7 + sh}, v{vLANE}"); e(f"v_min_u32 v{d}, {per - 1}, v{d}")
    e(f"s_mul_i32 s{sT}, s{sWV}, {per}"); e(f"v_add_u32 v{d}, s{sT}, v{d}")
    if per * NS * 4 != nrows: e(f"v_min_u32 v{d}, {nrows - 1}, v{d}")
    e(f"v_mul_u32_u24 v{d}, {stride}, v{d}")
    sum_terms(sT, *base_terms)
    if lines > 1:
        e(f"v_and_b32 v{t}, {(lines - 1) * 128}, v{vLANE}"); e(f"v_add3_u32 v{d}, v{d}, v{t}, s{sT}")
    else:
        e(f"v_add_u32 v{d}, s{sT}, v{d}")


WQ0 = O_("wq0", 128)
vTQ, vT1, vTK = G12 + 10, G12 + 11, G12 + 12
touch_off(6, WQ0, 8, 8192, [(sG, 1024)], 7)
touch_off(vT1, 512, 1, 1024, [(sG, 128)], 7)
e("v_and_b32 v2, 3, v0")
e("v_lshrrev_b32 v1, 2, v0")
sum_terms(sT, (sM, 64), (sW, 16))
e(f"v_add_u32 v3, s{sT}, v1"); e("v_lshlrev_b32 v3, 10, v3"); e("v_lshl_add_u32 v3, v2, 4, v3")
e(f"s_and_b32 s{sT+1}, s{sG}, 1"); e(f"s_lshl_b32 s{sT+2}, s{sT+1}, 9")
e(f"v_add_u32 v3, s{sT+2}, v3"); e("v_xor_b32 v4, 0x200, v3")
if STAMP: e(f"v_mov_b32 v{vSTAMP}, 0")
e("s_waitcnt lgkmcnt(0)")
stamp()
P.vm(f"global_load_dword a255, v{vT1}, s[76:77]")
P.vm("global_load_dword a255, v6, s[70:71]")
for i in range(16):
    P.vm(f"global_load_dwordx4 {vr(XR+4*i,4)}, v{3 + i//8}, s[64:65] offset:{(i%8)*64}", ("x", i))
e("v_lshlrev_b32 v4, 1, v2"); e("v_xor_b32 v4, v4, v1"); e("v_lshlrev_b32 v4, 4, v4"); e("v_lshl_add_u32 v4, v2, 8, v4")
sum_terms(sT + 2, (sT + 1, 32768), (sW, 1024))
e(f"v_add_u32 v{vWA}, s{sT+2}, v4"); e(f"v_xor_b32 v{vWA+1}, 0x8000, v{vWA}")
e("v_and_b32 v1, 15, v0"); e("v_lshrrev_b32 v2, 4, v0")
e("v_lshlrev_b32 v4, 1, v2"); e("v_xor_b32 v4, v4, v1"); e("v_lshlrev_b32 v4, 4, v4"); e(f"v_lshl_add_u32 v{vBX}, v2, 8, v4")
e(f"v_add_u32 v3, s{sT}, v1"); e("v_lshlrev_b32 v4, 15, v2"); e(f"v_lshl_add_u32 v{vTOK}, v3, 4, v4")
for d, p in ((SK, 66), (SV, 68)):
    e(f"s_lshl_b32 s{sT}, s{sG}, 19")
    e(f"s_add_u32 s{d}, s{p}, s{sT}"); e(f"s_addc_u32 s{d+1}, s{p+1}, 0"); e(f"s_mov_b32 s{d+2}, 0x80000"); e(f"s_mov_b32 s{d+3}, 0x20000")
for d, p, size in ((SX, 64, 0x200000), (SWQ, 70, 0x400000), (SW1, 76, 0x80000), (SWS, 88, 0x10000000),
                   (SWO, 72, 0x400000), (SW2, 78, 0x80000), (SW3, 80, 1835008), (SW4, 82, 1835008),
                   (SOUT, 84, 0x200000), (SDBG, 86, 256)):
    mk_srd(d, p, size)
sum_terms(sRING, (sW, 8192), RING); sum_terms(sW1K, (sW, 1024)); sum_terms(sW4K, (sW, 4096))
sum_terms(sT, (sG, 1024), (sW, 256)); dma_voff(vDWQ, 8192, True, f"s{sT}", 10)
sum_terms(sT, (sW, 65536), (sG, 128)); dma_voff(vDW1, 1024, True, f"s{sT}", 10); dma_voff(vDW2, 1024, False, f"s{sT}", 10)
for r, v in ((sLO, "0x00003f80"), (sHI, "0x3f800000"), (sONE2, "0x3f803f80"), (sC1, f2u(GC1)), (sC2, f2u(GC2)),
             (sNL2E, f2u(-LOG2E)), (sSPIN, opt.get("spin0", 0))):
    e(f"s_mov_b32 s{r}, {v}")
sum_terms(sF0, (sM, 4096), (sW, 256), WS_FL)
sum_terms(sFL, (sG, 4), (sF0, 1))
sum_terms(sF1, (sM, 4096), (sG, 128), WS_FL + 1024)
e(f"s_add_u32 s{sF2}, s{sF1}, 1024"); e(f"s_add_u32 s{sF3}, s{sF1}, 2048")
sum_terms(sSTC, (sM, 4096), (sW, 1024), WS_SS)
sum_terms(sSTP, (sG, 128), (sSTC, 1))
sum_terms(sPP, (sM, 1 << 19), (sW, 1 << 17), (sG, 1 << 13))
sum_terms(sPC, (sM, 1 << 19), (sG, 1 << 16), (sW, 1 << 11))
e(f"s_lshl_b32 s{sHO}, s{sG}, 18")
e(f"s_and_b32 s{sKS}, s{sG}, 6"); e(f"s_add_u32 s{sKS}, s{sKS}, s{sG}")
e("v_lshrrev_b32 v6, 2, v0"); e("v_and_b32 v7, 3, v0"); e("v_lshlrev_b32 v7, 3, v7"); e("v_lshl_add_u32 v7, v6, 7, v7")
e("v_bfe_u32 v6, v0, 3, 2")
for nb in range(4):
    e(f"v_xor_b32 v10, {nb}, v6"); e("v_lshl_add_u32 v10, v10, 5, v7")
    e(f"v_add_u32 v{vAS+nb}, {RING + 32768}, v10")
    e(f"v_add_u32 v{vAA+nb}, s{sRING}, v10"); e(f"v_add_u32 v{vAA2+nb}, 0x10000, v{vAA+nb}")
e("v_xor_b32 v9, v2, v1")
for s in range(4):
    e(f"v_xor_b32 v10, {4*s}, v9"); e("v_lshlrev_b32 v10, 4, v10"); e(f"v_lshl_add_u32 v{KA(s)}, v1, 8, v10")
e("v_lshrrev_b32 v9, 2, v0"); e("v_lshlrev_b32 v10, 8, v9"); e("v_and_b32 v11, 3, v0")
e("v_lshl_add_u32 v10, v11, 3, v10"); e(f"v_add_u32 v10, {VOFF}, v10"); e("v_and_b32 v9, 7, v9")
for db in range(8):
    e(f"v_xor_b32 v11, {db}, v9"); e(f"v_lshl_add_u32 v{VA(db)}, v11, 5, v10")
e(f"v_lshl_add_u32 v10, v2, 8, s{sW4K}")
for i in range(4):
    e(f"v_add_u32 v9, {4*i}, v2"); e("v_xor_b32 v11, v9, v1"); e(f"v_lshl_add_u32 v{KG(i)}, v11, 4, v10")
    if i < 2:
        e("v_lshlrev_b32 v9, 1, v9"); e("v_xor_b32 v11, v9, v1"); e(f"v_lshl_add_u32 v{VG(i)}, v11, 4, v10")
e(f"v_lshlrev_b32 v{G12+8}, 4, v1")
if WQ0 < 512: touch_off(vTQ, 512 - WQ0, 8, 8192, [(sG, 1024), WQ0 * 8192], 7)
touch_off(vTK, 512, 1, 128, [(sG, 0)], 7)


def late_touch():
    if WQ0 < 512: P.vm(f"buffer_load_dword a255, v{vTQ}, {srd(SWQ)}, 0 offen")
    code_touch()
    P.vm(f"buffer_load_dword a255, v{vT1}, {srd(SW2)}, 0 offen")
    P.vm(f"buffer_load_dword a255, v{vTK}, {srd(SK)}, 0 offen"); P.vm(f"buffer_load_dword a255, v{vTK}, {srd(SV)}, 0 offen")


w1t = [Tile(SW1, vDW1, k * 4 * 65536, 1024, True, 1 + k, "w1") for k in range(2)]
w2t = [Tile(SW2, vDW2, k * 4 * 65536, 1024, False, 2, ("w2", k)) for k in range(2)]
qt = [Tile(SWQ, vDWQ, (i // 2) * 64 * 8192 + (i % 2) * 128, 8192, True, i % 3, ("wq", i), kp=i // 2, nh=i % 2)
      for i in range(16)] + [None, w2t[0]]
mt = [Tile(SW3, vDW2, kp * 64 * 3584, 3584, False, (2 - i) % 3, ("w3", kp), kp=kp)
      for i, kp in enumerate((4, 5, 6, 7, 0, 1, 2, 3))]
mt += [Tile(SW4, vDW4, (i // 2) * 65536 + (i % 2) * 128, 1024, False, (2 - 8 - i) % 3, ("w4", i),
            rows=64 if i < 6 else 32, kp=i // 2, nh=i % 2) for i in range(8)]
ot = [Tile(SWO, vDWO, ((kp & 1) * 256 + (kp >> 1) * 32) * 1024 + nh * 128, 1024, False, (nh * 8 + kp + 2) % 3,
           ("wo", nh, kp), kp=kp, nh=nh, half=128) for nh in range(2) for kp in range(8)]

a = G12


def quad_sum(regs):
    for qp in ("[1,0,3,2]", "[2,3,0,1]"):
        for r in regs: e(f"v_add_f32_dpp v{r}, v{r}, v{r} quad_perm:{qp} row_mask:0xf bank_mask:0xf")


def ln_stats(lo, hi):
    for i in range(lo, hi):
        c = lambda r: f"v{r}" if i >= 2 else 0
        e(f"v_dot2_f32_bf16 v{a + i % 2}, v{XR+i}, s{sONE2}, {c(a + i % 2)}", need=[("x", i // 4)])
        e(f"v_dot2_f32_bf16 v{a + 2 + i % 2}, v{XR+i}, v{XR+i}, {c(a + 2 + i % 2)}")


def ln_rest():
    ln_stats(48, 64)
    e(f"v_add_f32 v{a}, v{a}, v{a+1}"); e(f"v_add_f32 v{a+2}, v{a+2}, v{a+3}")
    quad_sum([a, a + 2])
    e(f"v_mul_f32 v{a+4}, {f2u(-1/512)}, v{a}"); e(f"v_mul_f32 v{a+2}, {f2u(1/512)}, v{a+2}")
    e(f"v_fma_f32 v{a}, -v{a+4}, v{a+4}, v{a+2}"); e(f"v_max_f32 v{a}, 0, v{a}")
    e(f"v_add_f32 v{a+1}, {f2u(EPS)}, v{a}")
    e(f"v_rsq_f32 v{vRSTD}, v{a+1}")
    for k in range(17):
        if k < 16:
            for i in range(4 * k, 4 * k + 4):
                e(f"v_dot2_f32_bf16 v{2*i}, v{XR+i}, s{sLO}, v{a+4}")
                e(f"v_dot2_f32_bf16 v{2*i+1}, v{XR+i}, s{sHI}, v{a+4}")
        if k == 0:
            e(f"v_mul_f32 v{a+2}, {f2u(QSCALE)}, v{vRSTD}")
            continue
        for i in range(4 * k - 4, 4 * k): e(f"v_pk_mul_f32 {vr(2*i,2)}, {vr(2*i,2)}, {vr(a+2,2)} op_sel_hi:[1,0]")
        for i in range(4 * k - 4, 4 * k): e(f"v_cvt_pk_bf16_f32 v{XR+i}, v{2*i}, v{2*i+1}")
        P.lds(f"ds_write_b128 v{vWA + (k-1)//8}, {vr(XR+4*k-4,4)} offset:{((k-1)%8)*4096}", "xw")
    e(f"v_mul_f32 v{a}, v{a}, v{vRSTD}"); e(f"v_mul_f32 v{a}, v{a}, v{vRSTD}")
    e(f"v_add_f32 v{a}, {f2u(EPS)}, v{a}")
    e(f"v_rsq_f32 v{vSC1}, v{a}")
    e(f"v_mul_f32 v{vNMEAN}, v{a+4}, v{vRSTD}")
    e(f"v_mul_f32 v{vSC1}, {f2u(1/QSCALE)}, v{vSC1}")
    e(f"v_add_u32 v{vWA}, s{sW1K}, v{vBX}")


ln_stats(0, 48)
stamp(2)
side = [x + y for t in w1t + qt[:1] for x, y in t.dma()]
k = O_("ltpos", 24)
side[k:k] = [[it] for it in cap(late_touch)]
interleave(cap(ln_rest), side, O_("lnev", 11))
for r in (vNMEAN, vRSTD, vSC1): P.lds(f"ds_bpermute_b32 v{r}, v{G12+8}, v{r}", "stat")
xb = [It(f"ds_read_b128 {ar(4*ks,4)}, v{vWA} offset:{ks*4096}", "l", ("xb", ks)) for ks in range(16)]
P.puts(xb[:8])
stamp(2)
P.wait(["xw", "w1"]); e("s_barrier")
stamp()

g1 = lambda h: shared_ops(range(8 * h, 8 * h + 8), 0, lambda nb: vr(G12 + 4 * nb, 4), True, lambda i: 128 + (i % 16) * 4,
                          lambda ks: ar(4 * ks, 4), lambda ks: [("xb", ks)], "g1", 32 * h)
ops = g1(0) + g1(1)
gaps = {g: [] for g in range(64)}
add1 = lambda g, it: gaps[g].append(it)
for i in range(6, 64): gaps[i - 6] += ops[i][1]
for k in range(8): add1(2 + 3 * k, xb[8 + k])
add1(31, It("s_barrier", "s"))
for k, grp in enumerate(qt[1].dma()): place(add1, 34 + 4 * k, grp, 31 + 4 * k)
for i in range(6): P.puts(ops[i][1])
P.run_gaps([m for m, _ in ops], gaps)
gemm_pre(qt, 0)
e("s_barrier")
stamp()

ACC = lambda nh, nb, tb: ((nh * 4 + tb) * 4 + nb) * 4


def q_side():
    x, t, c = G12, XR, XR + 24
    P.put(gate(0, 8))
    e(f"v_mov_b32 v{c}, s{sC1}")
    for i in range(16): e(f"v_mul_f32 v{x+i}, v{x+i}, v{vSC1}", need=["stat"])
    for i in range(16): e(f"v_mul_f32 v{t+i}, v{x+i}, v{x+i}")
    for i in range(16): e(f"v_fma_f32 v{t+i}, v{t+i}, s{sC2}, v{c}")
    for i in range(16): e(f"v_mul_f32 v{t+i}, v{t+i}, v{x+i}")
    for i in range(16): e(f"v_exp_f32 v{t+i}, v{t+i}", k="v")
    for i in range(16): e(f"v_add_f32 v{t+i}, 1.0, v{t+i}")
    for i in range(16): e(f"v_rcp_f32 v{t+i}, v{t+i}", k="v")
    for i in range(16): e(f"v_mul_f32 v{t+i}, v{t+i}, v{x+i}")
    for i in range(8): e(f"v_cvt_pk_bf16_f32 v{t+16+i}, v{t+2*i}, v{t+2*i+1}")
    e(f"v_lshrrev_b32 v{t}, 5, v{vBA}"); e(f"v_and_b32 v{t+1}, 128, v{vLANE}"); e(f"v_lshl_add_u32 v{t}, v{t}, 10, v{t+1}")
    e(f"v_mov_b32 v{t+1}, 0"); e(f"v_mov_b32 v{t+2}, -1"); e(f"v_mov_b32 v{t+3}, -1"); e(f"v_lshrrev_b32 v{t+4}, 1, v{vBA}")
    for nb in range(4): e(f"v_add_u32 v{vAS+nb}, 32768, v{vAS+nb}")
    e(f"v_mov_b32 v{t+5}, s{sONE2}")
    for i in range(4): e(f"v_accvgpr_write_b32 a{aONES+i}, v{t+5}")
    P.put(gate(0, O_("hgate", 13 * 32 + 21)))
    for s in range(2):
        e(f"s_add_u32 s{sSF}, s{sHO}, {WS_H + s*PLANE}")
        P.vm(f"buffer_store_dwordx4 {vr(t+16+4*s,4)}, v{vTOK}, {srd(SWS)}, s{sSF} offen sc1", "hst")
    masked(255, f"buffer_store_dword v{t+1}, v{t}, {srd(SWS)}, s{sFL} offen sc1", "hst")
    masked(0xffff, f"buffer_store_dwordx2 {vr(t+2,2)}, v{t+4}, {srd(SWS)}, s{sSTP} offen sc1", "hst")


fill = cap(q_side)
pending = qt[2].dma()
gemm(qt, 0, 16, ACC, pending, (64, 96), breg=vBX, fill=fill)
assert not fill and not pending
e("s_barrier")
stamp()


def q_pack():
    for tb in range(4):
        for s in range(4):
            b = ACC(s // 2, 2 * (s % 2), tb)
            for j in range(4): e(f"v_cvt_pk_bf16_f32 v{Q(tb,s)+j}, v{b+2*j}, v{b+2*j+1}")
        for sw in ("v_permlane32_swap_b32", "v_permlane16_swap_b32"):
            for s in range(4):
                for j in range(2): e(f"{sw} v{Q(tb,s)+j}, v{Q(tb,s)+2+j}")


interleave(cap(q_pack), [x + y for k in (("K", 0), ("K", 1), ("V", 0)) for x, y in kv_dma(*k)], 10)
P.wait(["hst", ("K", 0)]); e("s_barrier")
stamp()

for f in range(8): P.puts(frag_reads(-1, f))
gaps = {g: [] for g in range(64)}
for k, grp in enumerate(kv_dma("K", 2)): place(add1, 2 + 4 * k, grp, -1)
P.run_gaps([m for m, _ in qk_mfmas(-1, zero=True)[:16]], gaps)
for f in range(8, 12): P.puts(frag_reads(-1, f))
for qb in range(4): e(f"v_max3_f32 v{NM(qb)}, v{S(0,0,qb)}, v{S(0,0,qb)+1}, v{S(0,0,qb)+2}")
for qb in range(4): e(f"v_max_f32 v{NM(qb)}, v{NM(qb)}, v{S(0,0,qb)+3}")
allreduce("v_max_f32", [NM(qb) for qb in range(4)], [NM(qb) + 1 for qb in range(4)])
for qb in range(4):
    for i in (1, 2, 3, 0): e(f"v_sub_f32 v{NM(qb)+i}, 0, v{NM(qb)}")


def first_half(shift, gates):
    for kb in range(2):
        P.put(gate(0, gates[kb]))
        for qb in range(4):
            b = S(0, kb, qb)
            if shift and not kb:
                for j in range(4): e(f"v_add_f32 v{b+j}, v{b+j}, v{NM(qb)}")
            for j in range(4): e(f"v_exp_f32 v{b+j}, v{b+j}")
        for qb in range(4):
            b = S(0, kb, qb)
            for j in range(2): e(f"v_cvt_pk_bf16_f32 v{PR(0,0,qb)+2*kb+j}, v{b+2*j}, v{b+2*j+1}")


gaps = {g: [] for g in range(64)}
for f in range(12, 16): gaps[16 + (f - 12)] += frag_reads(-1, f)
add1(30, It(None, "s", need=[("K", 1)])); add1(31, It("s_barrier", "s"))
for f in range(4):
    gaps[32 + f] += frag_reads(0, f); issued.add((0, f))
for k, grp in enumerate(kv_dma("V", 1) + kv_dma("K", 3)): place(add1, 3 + 6 * k, grp, 6 * k - 3)
fill = cap(first_half, True, (0, 20))
P.run_gaps([m for m, _ in qk_mfmas(-1)[16:]], gaps, fill)
P.drain(fill)
e(f"v_mov_b32 v{T}, 1"); e(f"s_lshl_b32 s{sSF}, s{sM}, 3")
e(f"s_cmp_lg_u32 s{sW}, 0"); e("s_cbranch_scc1 L_noarr"); e("s_mov_b64 exec, 1")
e(f"buffer_atomic_add v{T}, off, {srd(SDBG)}, s{sSF} sc1"); e("s_mov_b64 exec, -1")
lab("L_noarr")
P.wait([("K", 2), ("V", 0)] + [("F", 0, f) for f in range(4)]); e("s_barrier")
stamp()

p_h = flag_poll("h", SDBG, 0, 8)
p_x = flag_poll("x1", SWS, f"s{sF0}", 1)
p_st = Poll("st", [f"buffer_load_dwordx2 {vr(T+2*j,2)}, v{vPA}, {srd(SWS)}, s{sSTC} offen offset:{128*j} sc1" for j in range(2)],
            [f"v_max3_u32 v{T+4}, v{T}, v{T+1}, v{T+2}", f"v_max_u32 v{T+4}, v{T+4}, v{T+3}",
             f"v_cmp_eq_u32 vcc, -1, v{T+4}"])
p_ph, p_s0, p_s1 = (flag_poll(n, SWS, f"s{r}", 1) for n, r in (("ph", sF1), ("s0", sF2), ("s1", sF3)))


def x_offset(d):
    e(f"v_bfe_u32 v{d}, v{vTOK}, 4, 11"); e(f"v_lshlrev_b32 v{d}, 10, v{d}")
    e(f"v_bfe_u32 v{d+1}, v{vBA}, 8, 2"); e(f"v_lshl_add_u32 v{d}, v{d+1}, 3, v{d}")


def paced(t, g, step, fns):
    for k, fn in enumerate(fns):
        p = g + k * step
        P.put(gate(t + p // 136, p % 136)); fn()


def h_loads(half, t, g):
    e(f"v_bfe_u32 v{T}, v{vTOK}, 4, 11")
    for k, d in enumerate(((-1, 1), (-2, 2))[half]):
        e(f"v_add_u32 v{T+1}, {d}, v{T}"); e(f"v_cmp_gt_u32 vcc, 0x800, v{T+1}")
        e(f"v_add_u32 v{T+1}, {16*d}, v{vTOK}"); e(f"v_mov_b32 v{T+2+k}, 0x7f000000")
        e(f"v_cndmask_b32 v{T+2+k}, v{T+2+k}, v{T+1}, vcc")

    def one(ks):
        e(f"s_mov_b32 s{sSF}, {WS_H + ks*PLANE}")
        P.vm(f"buffer_load_dwordx4 {ar(HB(ks),4)}, v{T + 2 + (ks%8)//4}, {srd(SWS)}, s{sSF} offen sc1", ("h", ks))
    paced(t, g, O_("hstep", 18), [lambda ks=ks: one(ks) for ks in range(8 * half, 8 * half + 8)])


def side1():
    P.put(gate(0, 40))
    x_offset(T + 5); e(f"s_lshl_b32 s{sSF}, s{sG}, 7")
    for nb in range(4):
        P.vm(f"buffer_load_dwordx2 {vr(T+6+2*nb,2)}, v{T+5}, {srd(SX)}, s{sSF} offen offset:{nb*32}", "xs")
    e(f"v_lshrrev_b32 v{T}, 4, v{vBA}"); e(f"v_min_u32 v{T}, 2, v{T}"); e(f"v_add_u32 v{T}, s{sM}, v{T}")
    e(f"v_add_u32 v{T}, -1, v{T}"); e(f"v_med3_i32 v{T}, v{T}, 0, 31"); e(f"v_lshlrev_b32 v{vPA}, 3, v{T}")
    P.put(gate(2, 0))
    p_h.issue()
    for i in range(8):
        d = T + 2 * (i % 2)
        e(f"v_lshlrev_b32 v{d}, 16, v{T+6+i}", need=["xs"]); e(f"v_and_b32 v{d+1}, 0xffff0000, v{T+6+i}")
        for h in range(2): e(f"v_fma_f32 v{d+h}, v{d+h}, v{vRSTD}, v{vNMEAN}")
        for h in range(2): e(f"v_accvgpr_write_b32 a{aG2+2*i+h}, v{d+h}")
    P.put(gate(3, 0))
    p_h.check(); h_loads(0, 3, 30)
    P.put(gate(6, 0))
    h_loads(1, 6, 24)
    e(f"s_and_b32 s{sT+1}, s{sG}, 1"); sum_terms(sT, (sG, 448), (sW, 128))
    e(f"s_lshl_b32 s{sT+1}, s{sT+1}, 6"); e(f"s_sub_u32 s{sT}, s{sT}, s{sT+1}")
    dma_voff(vDW2, 3584, False, f"s{sT}", T)
    P.put(gate(8, 164))
    m, q = vRSTD, vNMEAN
    for i in range(16): e(f"v_accvgpr_read_b32 v{T+i}, a{aG2+i}")
    e(f"v_add_f32 v{m}, v{T}, v{T+1}"); e(f"v_mul_f32 v{q}, v{T}, v{T}")
    for i in range(1, 16):
        e(f"v_fmac_f32 v{q}, v{T+i}, v{T+i}")
        if i > 1: e(f"v_add_f32 v{m}, v{m}, v{T+i}")
    allreduce("v_add_f32", [m, q], [T, T + 1], k="v")
    e(f"v_lshrrev_b32 v{T}, 1, v{vBA}")
    masked(0xffff, f"buffer_store_dwordx2 {vr(m,2)}, v{T}, {srd(SWS)}, s{sSTP} offen sc1")
    code_touch()
    e(f"v_and_b32 v{T}, 0xf0, v{vBA}"); e(f"v_lshrrev_b32 v{T}, 1, v{T}"); e(f"v_and_b32 v{T+1}, 0x300, v{vBA}")
    e(f"v_add_u32 v{vPA}, v{T}, v{T+1}")
    P.put(gate(12, 0))
    p_st.issue()
    P.put(gate(13, 0))
    p_st.check()
    e(f"v_add_f32 v{q}, v{T}, v{T+2}"); e(f"v_add_f32 v{m}, v{T+1}, v{T+3}")
    allreduce("v_add_f32", [m, q], [T, T + 1], k="v")
    e(f"v_mul_f32 v{q}, {f2u(1/512)}, v{q}"); e(f"v_mul_f32 v{m}, {f2u(1/512)}, v{m}")
    e(f"v_fma_f32 v{m}, -v{q}, v{q}, v{m}"); e(f"v_max_f32 v{m}, 0, v{m}"); e(f"v_add_f32 v{m}, {f2u(EPS)}, v{m}")
    e(f"v_rsq_f32 v{T+16}, v{m}", k="v")
    for i in range(15): e(f"v_accvgpr_read_b32 v{T+i}, a{aG2+i}")
    e(f"v_mul_f32 v{m}, v{m}, v{T+16}")
    e(f"v_mul_f32 v{T+15}, v{q}, v{T+16}")
    for i in range(15): e(f"v_fma_f32 v{T+i}, v{T+i}, v{T+16}, -v{T+15}")
    e(f"v_accvgpr_read_b32 v{T+15}, a{aG2+15}"); e(f"v_sub_f32 v{T+15}, v{T+15}, v{q}"); e(f"v_mul_f32 v{T+15}, v{T+15}, v{T+16}")
    for i in range(8): e(f"v_cvt_pk_bf16_f32 v{T+i}, v{T+2*i}, v{T+2*i+1}")
    for s in range(2):
        e(f"s_add_u32 s{sSF}, s{sHO}, {WS_X1 + s*PLANE}")
        P.vm(f"buffer_store_dwordx4 {vr(T+4*s,4)}, v{vTOK}, {srd(SWS)}, s{sSF} offen sc1", "x1st")
    e(f"v_bfe_u32 v{vPA}, v{vBA}, 4, 3"); e(f"v_lshlrev_b32 v{vPA}, 2, v{vPA}")
    P.put(gate(15, 70))
    set_flags(0, 1, ["x1st"])
    touch_off(T, 512, 4, 3584, [(sG, 448)], T + 1)
    P.vm(f"buffer_load_dword a255, v{T}, {srd(SW3)}, 0 offen")
    touch_off(T, 1792, 1, 128, [(sG, 224 * 1024)], T + 1)
    P.vm(f"buffer_load_dword a255, v{T}, {srd(SW4)}, 0 offen")
    sum_terms(sT, (sG, 224 * 1024), (sW, 256)); dma_voff(vDW4, 1024, False, f"s{sT}", T)
    sum_terms(sT, (sG, (512 - 224) * 1024)); e(f"v_add_u32 v{vDWO}, s{sT}, v{vDW4}")
    e(f"s_sub_u32 s{sT}, s{sRING}, {RING + 65536}")
    for nb in range(4):
        e(f"v_add_u32 v{vAA+nb}, s{sT}, v{vAS+nb}"); e(f"v_add_u32 v{vAA2+nb}, 0x10000, v{vAA+nb}")
    P.put(gate(17, 60))
    p_x.issue(); code_touch()
    P.put(gate(18, 60))
    p_x.check()
    if O_("kvt", 1):
        touch_off(T + 8, (32 - T0) * 128, 1, 128, [(sG, 0), T0 * 16384], T + 9)
        P.vm(f"buffer_load_dword a255, v{T+8}, {srd(SK)}, 0 offen"); P.vm(f"buffer_load_dword a255, v{T+8}, {srd(SV)}, 0 offen")


def x1n_dma(j):
    return [([It(f"s_add_u32 m0, s{sW1K}, {ks*4096}", "s"), It(f"s_mov_b32 s{sSO}, {WS_X1 + ks*PLANE}", "s")],
             [It(f"buffer_load_dwordx4 v{vTOK}, {srd(SWS)}, s{sSO} offen sc1 lds", "g", ("xn", j))])
            for ks in range(4 * j, 4 * j + 4)]


def run_tiles(t0, t1, fill, more, endw, ins, must):
    end = T0 - 1 if t0 < T0 else 31
    for t in range(t0, t1):
        groups = (kv_dma("K", t + 4) if t + 4 <= end else []) + (kv_dma("V", t + 3) if t + 3 <= end else [])
        groups = more.get(-t - 1, []) + groups + more.get(t, [])
        attn_iter(t, groups, fill, endw.get(t, ()), ins=ins.get(t))
        head = fill[0].at if fill else (99, 0)
        if O_("showfill", 0): print(t, len(fill), head, file=sys.stderr)
        if t in must: assert head and head[0] >= must[t], (t, head, len(fill))


g2 = lambda h: shared_ops(range(8 * h, 8 * h + 8), 8 * h, lambda nb: ar(aG2 + 4 * nb, 4), False, GA,
                          lambda ks: ar(HB(ks), 4), lambda ks: [("h", ks)], f"g2{h}")
fill = cap(side1)
run_tiles(0, T0, fill,
          {-1: kv_dma("V", 2), 6: w2t[1].dma(), 17: mt[0].dma(), 19: x1n_dma(2) + x1n_dma(3),
           20: x1n_dma(0) + mt[1].dma(), 21: x1n_dma(1)},
          {7: [("w2", 1)]}, {5: g2(0), 8: g2(1)}, {4: 6, 7: 8, 16: 17, 18: 99})
stamp()

gemm_pre(mt, 0)
P.wait([("xn", 0)]); e("s_barrier")
extra = {}
add = lambda g, its: extra.setdefault(g, []).extend(its)
add(3 * 32 + 10, [It(None, "s", need=[("xn", 1)])])
add(3 * 32 + 11, [It("s_barrier", "s")])
add(4 * 32 + 6, [It(f"s_lshl_b32 s{sT}, s{sKS}, 12", "s")])
add(4 * 32 + 7, [It(f"s_add_u32 s{sT}, s{sT}, s{sW1K}", "s"), It(f"v_add_u32 v{T+9}, s{sT}, v{vBA}", "v")])
for j in range(2):
    add(7 * 32 + 3 + 4 * j, [It(f"ds_read_b128 {ar(aXN+4*j,4)}, v{T+9} offset:{j*8192}", "l", "xnr")])


def h3_addr():
    P.put(gate(0, 7 * 32 + 10))
    e(f"s_and_b32 s{sT+1}, s{sG}, 1"); e(f"s_lshl_b32 s{sT}, s{sW}, 1"); e(f"s_sub_u32 s{sT}, s{sT}, s{sT+1}")
    for s in range(2):
        e(f"s_and_b32 s{sT+1}, s{sT}, 7"); e(f"s_lshl_b32 s{sT+1}, s{sT+1}, 12"); e(f"v_add_u32 v{T+8+s}, s{sT+1}, v{vBA}")
        e(f"s_add_u32 s{sT}, s{sT}, 1")


fill = cap(h3_addr)
pending = mt[2].dma()
gemm(mt, 0, 8, ACC, pending, (160, 212), extra=extra, fill=fill)
P.drain(fill)
P.wait(["xnr"]); e("s_barrier")
stamp()


def mlp_act():
    for tb in range(4):
        gelu(16 * tb, 16, 64 + 16 * tb, lambda i: 16 * tb + i, first=tb == 0)
        for s in range(2):
            P.lds(f"ds_write_b128 v{T+8+s}, {vr(16*tb + 4*s,4)} offset:{tb*1024}", "hw")


interleave(cap(mlp_act), [x + y for x, y in pending + kv_dma("K", T0) + kv_dma("K", T0 + 1)], 20)
pending = []
gemm_pre(mt, 8)
P.wait(["hw"]); e("s_barrier")
stamp()
gemm(mt, 8, 8, ACC, pending, (160, 212))
P.wait([("K", T0 + 1)]); e("s_barrier")
stamp()

pieces = [(nh, tb, s) for nh in range(2) for tb in range(4) for s in range(2)]


def ph_pack(ks):
    for k in ks:
        pack(ACC, *pieces[k])
        for j in range(4): e(f"v_accvgpr_write_b32 a{PHA(k)+j}, v{ACC(pieces[k][0], 2*pieces[k][2], pieces[k][1])+j}")


for f in range(8): P.puts(frag_reads(T0 - 1, f))
interleave(cap(ph_pack, range(8)), [x + y for x, y in kv_dma("V", T0)], 16)
gaps = {g: [] for g in range(64)}
for f in range(8, 16): gaps[16 * (f // 4 - 1) + f % 4] += frag_reads(T0 - 1, f)
for f in range(4):
    gaps[48 + f] += frag_reads(T0, f); issued.add((T0, f))
for k, grp in enumerate(kv_dma("K", T0 + 2) + kv_dma("V", T0 + 1) + kv_dma("K", T0 + 3)): place(add1, 4 + 5 * k, grp, 5 * k - 1)
fill = cap(ph_pack, range(8, 12)) + cap(first_half, False, (20, 36)) + cap(ph_pack, range(12, 16))
P.run_gaps([m for m, _ in qk_mfmas(T0 - 1)], gaps, fill)
P.drain(fill)
P.wait([("K", T0 + 2), ("V", T0)] + [("F", T0, f) for f in range(4)]); e("s_barrier")
stamp()


XF = [244, 245, 246, 247, 248, 249, T + 10, T + 11]


def side2():
    paced(T0, 20, O_("sstep", 24), [lambda k=k: store_piece(ar(PHA(k), 4), WS_PH, *pieces[k], "phs") for k in range(16)])
    touch_off(T + 8, 4096, 1, 128, [(sG, 1 << 19)], T + 9)
    P.vm(f"buffer_load_dword a255, v{T+8}, {srd(SWO)}, 0 offen")
    code_touch()
    P.put(gate(26, 0)); set_flags(1, 2, ["phs"])
    x_offset(T + 8); e(f"s_lshl_b32 s{sT}, s{sKS}, 6")
    paced(26, 50, 20, [lambda i=i: P.vm(f"buffer_load_dwordx2 {vr(XF[2*i],2)}, v{T+8}, {srd(SX)}, s{sT} offen "
                                        f"offset:{(i//2)*128 + (i%2)*32}", "xf") for i in range(4)])
    P.put(gate(27, 40)); p_ph.issue()
    P.put(gate(28, 20)); p_ph.check()
    paced(28, 30, O_("lstep", 22), [lambda k=k: load_piece(WS_PH, ar(PHA(k), 4), k // 2, k % 2, "phl") for k in range(16)])
    e(f"v_add_u32 v{T+8}, s{sW4K}, v{vBA}")


fill = cap(side2)
run_tiles(T0, 31, fill, {-T0 - 1: kv_dma("V", T0 + 2), O_("wo0", 29): ot[0].dma(), 30: ot[1].dma()}, {}, {}, {30: 99})


def o_norm(s, qbs, packed):
    for qb in qbs:
        b = 208 + 8 * (qb % 2) if s >= 2 else 32 + 8 * qb
        for h in range(2):
            for j in range(4): e(f"v_accvgpr_read_b32 v{b+4*h+j}, a{O(2*s+h,qb)+j}")
        if packed:
            for j in range(0, 8, 2): e(f"v_pk_mul_f32 {vr(b+j,2)}, {vr(b+j,2)}, {vr(RINV(qb),2)} op_sel_hi:[1,0]")
        else:
            for j in range(8): e(f"v_mul_f32 v{b+j}, v{b+j}, v{RINV(qb)}")
        for j in range(4): e(f"v_cvt_pk_bf16_f32 v{OP(s,qb)+j}, v{b+2*j}, v{b+2*j+1}")
        P.lds(f"ds_write_b128 v{T+8}, {vr(OP(s,qb),4)} offset:{s*16384 + qb*1024}", ("ow", s))


extra = {}
chk = [It(f"v_accvgpr_read_b32 v{vR+qb}, a{LACC(qb)}", "v") for qb in range(4)]
chk += [It(f"v_add_f32 v{vR+5}, v{vR}, v{vR+1}", "v"),
        It(f"v_add_f32 v{vR+4}, v{vR+2}, v{vR+3}", "v"), It(f"v_add_f32 v{vR+4}, v{vR+4}, v{vR+5}", "v"),
        It(f"v_cmp_nle_f32 vcc, v{vR+4}, v{vR+6}", "v"),
        It(f"v_mov_b32 v{vR+5}, s{sT+1}", "v"),
        It(f"s_cmp_lg_u64 vcc, 0\n    s_cselect_b32 s{sT}, 1, 0", "v"),
        It(f"v_mov_b32 v{vR+4}, s{sT}", "v")]
add(38, [It(f"s_lshl_b32 s{sT+1}, s{sW}, 2", "s")])
add(39, [It(f"s_add_u32 s{sT+1}, s{sT+1}, {RING + 32768}", "s")])
add(40, [It(f"v_mov_b32 v{vR+6}, {f2u(0.0 if FORCE_REDO else 2.0**40)}", "v")])
for i, it in enumerate(chk): add(44 + i // 2, [it])
add(51, [It(f"ds_write_b32 v{vR+5}, v{vR+4}", "l", "vote")])
for qb in range(4): add(52 + qb, [It(f"v_rcp_f32 v{RINV(qb)}, v{vR+qb}", "x")])
add(57, [It(f"v_mov_b32 v{vR+5}, {RING + 32768}", "v")])
add(58, [It(None, "s", need=["vote"])])
add(59, [It("s_barrier", "s")])
add(60, [It(f"ds_read_b128 {vr(vR,4)}, v{vR+5}", "l", "votes")])
add(68, [It(f"v_or3_b32 v{vR}, v{vR}, v{vR+1}, v{vR+2}", "v", need=["votes"]), It(f"v_or_b32 v{vR}, v{vR}, v{vR+3}", "v")])
add(69, [It(f"v_readfirstlane_b32 s{sT}, v{vR}", "v")])
fill = [gate(31, 57)] + cap(o_norm, 0, [0], False)
attn_iter(31, [], fill, extra=extra)
P.drain(fill)
e(f"s_cmp_lg_u32 s{sT}, 0"); e("s_cbranch_scc1 L_redo")
lab("L_att_done")
stamp()

OEX = O_("oex", 4)
o_norm(0, [1, 2, 3], True)
for s in range(1, OEX): o_norm(s, range(4), True)
gemm_pre(ot, 0)
P.wait([("ow", OEX - 1)]); e("s_barrier")
stamp()
OACC = lambda nh, nb, tb: 64 + ACC(nh, nb, tb)
PSR = lambda g, nh: nh * 32 + g * 4


def o_side():
    for s in range(OEX, 4): o_norm(s, range(4), False)
    P.put(gate(0, 32 * 8 + 4))
    for p in pieces[:8]: pack(OACC, *p)
    for p, g in zip(pieces, [int(x) for x in opt.get("s0g", "309,341,373,405,437,450,465,480").split(",")]):
        P.put(gate(0, g))
        store_piece(vr(OACC(0, 2 * p[2], p[1]), 4), WS_PS, *p, "s0s")


extra = {}
for s, g in ((2, 3 * 32 - 2), (3, 5 * 32 - 2)):
    if s >= OEX:
        add(g, [It(None, "s", need=[("ow", s)])]); add(g + 1, [It("s_barrier", "s")])
fill = cap(o_side)
pending = ot[2].dma()
gemm(ot, 0, 16, OACC, pending, (0, 32), extra=extra, fill=fill, over=O_("over", 0))
P.drain(fill)
stamp()
for k, p in enumerate(pieces[8:]):
    pack(OACC, *p); store_piece(vr(OACC(1, 2 * p[2], p[1]), 4), WS_PS, *p, "s1s")
    if k == O_("f0k", 3): set_flags(2, 2, ["s0s"])
vY, vS, vG, vX = 64, 80, 96, 112
for i in range(8): e(f"v_accvgpr_read_b32 v{vG+i}, a{aXN+i}")
for i in range(8):
    e(f"v_lshlrev_b32 v{vY+2*i}, 16, v{vG+i}"); e(f"v_and_b32 v{vY+2*i+1}, 0xffff0000, v{vG+i}")
for i in range(16): e(f"v_fma_f32 v{vY+i}, v{vY+i}, v{vRSTD}, v{vNMEAN}")
for k in range(17):
    if k < 16:
        for j in range(4): e(f"v_accvgpr_read_b32 v{vG + 4*(k%2) + j}, a{PHA(k)+j}", need=[("phl", k // 2, k % 2)])
    if k: add_piece(vY + 8 * ((k - 1) % 2), vG + 4 * ((k - 1) % 2), False, ())
p_s0.issue()
for i in range(16): e(f"v_mul_f32 v{vG+i}, s{sNL2E}, v{vY+i}")
for i in range(16): e(f"v_exp_f32 v{vG+i}, v{vG+i}")
for i in range(0, 16, 2): e(f"v_pk_add_f32 {vr(vG+i,2)}, {vr(vG+i,2)}, 1.0 op_sel_hi:[1,0]")
for i in range(16): e(f"v_rcp_f32 v{vG+i}, v{vG+i}")
for i in range(0, 16, 2): e(f"v_pk_mul_f32 {vr(vG+i,2)}, {vr(vG+i,2)}, {vr(vY+i,2)}")
for i in range(8):
    e(f"v_lshlrev_b32 v{vX+2*i}, 16, v{XF[i]}", need=["xf"]); e(f"v_and_b32 v{vX+2*i+1}, 0xffff0000, v{XF[i]}")
e(f"v_bfe_u32 v200, v{vTOK}, 4, 11"); e("v_lshlrev_b32 v200, 10, v200"); e(f"v_bfe_u32 v201, v{vBA}, 8, 2")
e("v_lshl_add_u32 v200, v201, 4, v200"); e(f"s_lshl_b32 s{sT+1}, s{sKS}, 6")
set_flags(3, 2, ["s1s"])
stamp(2)
p_s0.check()
for g in range(8): load_piece(WS_PS, vr(PSR(g, 0), 4), g, 0, "psl")
p_s1.issue()


def finish(nh):
    for g in range(8): add_piece(vS + 8 * nh, PSR(g, nh), g == 0, [("psl", g, nh)])
    for i in range(8 * nh, 8 * nh + 8, 2): e(f"v_pk_fma_f32 {vr(vG+i,2)}, {vr(vG+i,2)}, {vr(vS+i,2)}, {vr(vX+i,2)}")
    d = 204 + 4 * nh
    for i in range(4): e(f"v_cvt_pk_bf16_f32 v{d+i}, v{vG+8*nh+2*i}, v{vG+8*nh+2*i+1}")
    for sw in ("v_permlane32_swap_b32", "v_permlane16_swap_b32"):
        for j in range(2): e(f"{sw} v{d+j}, v{d+2+j}")
    P.vm(f"buffer_store_dwordx4 {vr(d,4)}, v200, {srd(SOUT)}, s{sT+1} offen offset:{nh*128} {opt.get('outcf', '')}")


p_s1.check()
stamp()
for g in range(8): load_piece(WS_PS, vr(PSR(g, 1), 4), g, 1, "psl")
finish(0)
finish(1)
if AMP:
    P.wait_all(); stamp()
    e(f"s_sub_u32 s{sST}, s{sST+2}, s{sST}")
    e(f"s_lshr_b32 s{sST}, s{sST}, 5" if AMP[3] else f"s_lshl_b32 s{sST}, s{sST}, {AMP[2]}")
    e(f"s_memrealtime {sr(sST+2,2)}"); e("s_waitcnt lgkmcnt(0)")
    lab("L_amp")
    e(f"s_memrealtime {sr(sST+4,2)}"); e("s_waitcnt lgkmcnt(0)")
    e(f"s_sub_u32 s{sST+4}, s{sST+4}, s{sST+2}"); e(f"s_cmp_lt_u32 s{sST+4}, s{sST}"); e("s_cbranch_scc1 L_amp")
if STAMP:
    P.wait_all()
    stamp()
    e(f"s_lshl_b32 s{sT}, s2, 2"); e(f"s_add_u32 s{sT}, s{sT}, s{sW}"); e(f"s_lshl_b32 s{sT}, s{sT}, 8")
    e(f"s_add_u32 s{sT}, s{sT}, {WS_ST}"); e(f"v_lshrrev_b32 v0, 2, v{vBA}")
    P.vm(f"buffer_store_dword v{vSTAMP}, v0, {srd(SWS)}, s{sT} offen")
e("s_endpgm")

for p in slow_paths:
    lab(f"L_slow_{p.name}")
    e("s_sleep 1")
    for l in p.loads: e(l)
    e(f"s_add_u32 s{sSPIN}, s{sSPIN}, 1")
    e("s_waitcnt vmcnt(0)")
    for t in p.tests: e(t)
    e(f"s_cmp_gt_u32 s{sSPIN}, 0x200000"); e(f"s_cbranch_scc1 L_back_{p.name}")
    e(f"s_cbranch_vccnz L_slow_{p.name}")
    e(f"s_branch L_back_{p.name}")

lab("L_redo")
P.lq, P.vq = [], []
for s in range(4): e(f"v_add_u32 v{KA(s)}, 49152, v{KA(s)}")
for qb in range(4): e(f"v_mov_b32 v{NM(qb)}, 0xff800000")


def redo_tile(kinds, zero):
    P.used = set()
    P.wait_all(); e("s_barrier")
    for kind, lds in kinds: flush(kv_dma(kind, 0, lds=lds, so=f"s{sCNT}"))
    P.wait_all(); e("s_barrier")
    mf = [m for m, _ in qk_mfmas(2, zero=zero)]
    for half in range(2):
        for f in range(8 * half, 8 * half + 8): P.puts(frag_reads(2, f))
        P.puts(mf[32 * half:32 * half + 32])


e(f"s_mov_b32 s{sCNT}, 0")
lab("L_rmax")
redo_tile([("K", 98304)], True)
for qb in range(4):
    regs = [S(1, kb, qb) + i for kb in range(4) for i in range(4)]
    for i in range(0, 16, 2): e(f"v_max3_f32 v{NM(qb)}, v{NM(qb)}, v{regs[i]}, v{regs[i+1]}")
e(f"s_add_u32 s{sCNT}, s{sCNT}, 16384"); e(f"s_cmp_lt_u32 s{sCNT}, 0x80000"); e("s_cbranch_scc1 L_rmax")
allreduce("v_max_f32", [NM(qb) for qb in range(4)], [NM(qb) + 1 for qb in range(4)])
for qb in range(4):
    for i in (1, 2, 3, 0): e(f"v_sub_f32 v{NM(qb)+i}, 0, v{NM(qb)}")
for i in list(range(128)) + list(range(192, 208)): e(f"v_accvgpr_write_b32 a{i}, 0")
e(f"s_mov_b32 s{sCNT}, 0")
lab("L_rpv")
redo_tile([("K", 98304), ("V", 114688)], False)
for half in range(2):
    ex, post = sm_stream(1, half)
    P.puts(ex); P.puts([x for p in post for x in p])
mf = [m for m, _ in pv_mfmas(3)]
for half in range(2):
    for f in range(16 + 8 * half, 24 + 8 * half): P.puts(frag_reads(3, f))
    P.puts(mf[36 * half:36 * half + 36])
e(f"s_add_u32 s{sCNT}, s{sCNT}, 16384"); e(f"s_cmp_lt_u32 s{sCNT}, 0x80000"); e("s_cbranch_scc1 L_rpv")
for qb in range(4): e(f"v_accvgpr_read_b32 v{vR+qb}, a{LACC(qb)}")
for qb in range(4): e(f"v_rcp_f32 v{RINV(qb)}, v{vR+qb}")
o_norm(0, [0], False)
e("s_branch L_att_done")
lab("L_end")
e("s_endpgm")
P.L += ['.section .rodata,"a"', ".p2align 6", f".amdhsa_kernel {NAME}",
        "  .amdhsa_next_free_vgpr 512", "  .amdhsa_next_free_sgpr 102", "  .amdhsa_accum_offset 256",
        "  .amdhsa_group_segment_fixed_size 0", "  .amdhsa_kernarg_size 104", "  .amdhsa_user_sgpr_count 2",
        "  .amdhsa_user_sgpr_kernarg_segment_ptr 1", "  .amdhsa_system_sgpr_workgroup_id_x 1",
        "  .amdhsa_float_denorm_mode_32 3", ".end_amdhsa_kernel"]
lines = "\n".join(P.L).split("\n")
lines, added = fix_hazards(lines)
if O_("short", 1): lines = compress(lines)
text = "\n".join(lines) + "\n"
open(OUT_PATH, "w").write(text)
print(f"{OUT_PATH}: {len(lines)} lines, {len(text)} bytes, {added} wait states padded, {nstamp[0]} stamps", file=sys.stderr)
```

```python
import re

vr = lambda b, n=1: f"v{b}" if n == 1 else f"v[{b}:{b+n-1}]"
ar = lambda b, n=1: f"a{b}" if n == 1 else f"a[{b}:{b+n-1}]"
sr = lambda b, n=1: f"s{b}" if n == 1 else f"s[{b}:{b+n-1}]"


_TRANS = ("v_exp_", "v_log_", "v_rcp_", "v_rsq_", "v_sqrt_", "v_sin_", "v_cos_")
_SLOW = _TRANS + ("v_permlane",)


class It:
    __slots__ = ("t", "k", "tag", "need", "at")

    def __init__(self, t, k, tag=None, need=(), at=None):
        self.t, self.k, self.tag, self.need, self.at = t, k, tag, tuple(need), at

    @property
    def cost(self):
        return {"s": 0, "l": 4, "g": 8, "v": 4, "x": 8, "m": 8}[self.k]


def gate(*at):
    return It(None, "s", at=at)


class Prog:
    def __init__(self):
        self.L = []
        self.lq = []
        self.vq = []
        self.rec = None
        self.ever, self.used = set(), set()

    def capture(self, fn, *a, **kw):
        assert self.rec is None
        self.rec = []
        fn(*a, **kw)
        out, self.rec = self.rec, None
        return out

    def raw(self, s):
        self.L.append(s)

    def lab(self, s):
        self.L.append(s + ":")

    def cmt(self, s):
        if self.rec is None:
            self.L.append("    ; " + s)

    @staticmethod
    def _cut(q, tags):
        idx = [i for i, t in enumerate(q) if t in tags]
        if not idx:
            return None, q
        last = max(idx)
        return len(q) - 1 - last, q[last + 1:]

    def wait(self, tags):
        tags = set(tags)
        if not tags:
            return False
        if self.rec is not None:
            self.rec.append(It(None, "s", need=tags))
            return False
        assert tags <= self.ever, f"needed before issue: {tags - self.ever}"
        self.used |= tags
        nl, lq = self._cut(self.lq, tags)
        nv, vq = self._cut(self.vq, tags)
        parts = []
        if nv is not None:
            nv = min(nv, 63)
            self.vq = vq[len(vq) - nv:] if nv else []
            parts.append(f"vmcnt({nv})")
        if nl is not None:
            nl = min(nl, 15)
            self.lq = lq[len(lq) - nl:] if nl else []
            parts.append(f"lgkmcnt({nl})")
        if parts:
            self.L.append("    s_waitcnt " + " ".join(parts))
        return bool(parts)

    def wait_all(self, lgkm=True, vm=True):
        parts = []
        if vm:
            parts.append("vmcnt(0)"); self.vq = []
        if lgkm:
            parts.append("lgkmcnt(0)"); self.lq = []
        self.L.append("    s_waitcnt " + " ".join(parts))

    def e(self, s, need=(), k=None):
        if self.rec is not None:
            k = k or ("s" if s.startswith("s_") else "x" if s.startswith(_SLOW) else "v")
            self.rec.append(It(s, k, need=need))
            return
        self.wait(need)
        self.L.append("    " + s)

    def lds(self, s, tag=None, need=()):
        if self.rec is not None:
            self.rec.append(It(s, "l", tag, need))
            return
        self.e(s, need)
        assert tag not in self.used, f"issued after a consumer relied on it: {tag}"
        self.lq.append(tag); self.ever.add(tag)

    def vm(self, s, tag=None, need=()):
        if self.rec is not None:
            self.rec.append(It(s, "g", tag, need))
            return
        self.e(s, need)
        assert tag not in self.used, f"issued after a consumer relied on it: {tag}"
        self.vq.append(tag); self.ever.add(tag)

    def put(self, it):
        if self.rec is not None:
            self.rec.append(it)
        elif it.k == "l":
            self.lds(it.t, it.tag, it.need)
        elif it.k == "g":
            self.vm(it.t, it.tag, it.need)
        elif it.t is None:
            self.wait(it.need)
        else:
            self.e(it.t, it.need)

    def puts(self, its):
        for it in its:
            self.put(it)

    def drain(self, fill):
        while fill:
            self.put(fill.pop(0))

    def run_gaps(self, ms, gaps, fill=None, next_need=(), pos=0, gmin=8, over=0, quiet=()):
        for g, m in enumerate(ms):
            self.put(m)
            items = gaps.get(g, [])
            nxt = ms[g + 1].need if g + 1 < len(ms) else tuple(next_need)
            own = {it.tag for it in items}
            nscal = sum(it.k == "s" and not (it.t or "").startswith(";") for it in items)
            if nxt and not (set(nxt) & own):
                nscal += self.wait(nxt)
            budget = 8 + (over if g % 2 else 0) - sum(it.cost for it in items) - 4 * max(0, nscal - 1)
            head, pre, post = [], [], []
            while fill and g not in quiet:
                it = fill[0]
                if it.at is not None:
                    if (pos, g) < it.at: break
                    fill.pop(0); continue
                if it.k == "s" and not nscal and not pre and not post:
                    head.append(fill.pop(0)); nscal = 1; continue
                cost = it.cost or 4
                if it.k == "g":
                    if head or pre or post or budget < gmin or any(x.k == "g" for x in items): break
                elif cost > budget or (it.k == "l" and post): break
                budget -= cost
                (post if post or it.k in "vx" else pre).append(fill.pop(0))
            self.puts([it for it in items if it.k == "s"] + head)
            self.puts([it for it in items if it.k in "lg"] + pre)
            self.puts([it for it in items if it.k in "vx"] + post)


_REG = re.compile(r"\b([vas])(\d+)\b|\b([vas])\[(\d+):(\d+)\]")


def _regs(op):
    out = set()
    for m in _REG.finditer(op):
        if m.group(1):
            out.add((m.group(1), int(m.group(2))))
        else:
            out |= {(m.group(3), i) for i in range(int(m.group(4)), int(m.group(5)) + 1)}
    if re.search(r"\bvcc(_lo|_hi)?\b", op):
        out.add(("s", "vcc"))
    if re.search(r"\bm0\b", op):
        out.add(("s", "m0"))
    return out


class Ins:
    def __init__(self, line):
        s = line.split(";")[0].strip()
        self.text = s
        p = s.split(None, 1)
        self.op = op = p[0]
        rest = p[1] if len(p) > 1 else ""
        ops = [x.strip() for x in re.split(r",(?![^\[]*\])", rest)] if rest else []
        R = [_regs(o) for o in ops]
        allr = set().union(*R) if R else set()
        self.states = 1
        self.w, self.r = set(), set()
        self.mfma = op.startswith("v_mfma")
        self.valu = op.startswith("v_") and not self.mfma
        self.trans = op.startswith(_TRANS)
        self.dot = op.startswith("v_dot")
        self.vmem = op.startswith(("buffer_", "global_"))
        self.ds = op.startswith("ds_")
        self.salu = op.startswith("s_")
        self.perm = op.startswith("v_permlane") or "dpp" in op
        self.rdlane = op.startswith(("v_readlane", "v_readfirstlane"))
        self.dma = self.vmem and bool(re.search(r"\blds\b", rest))
        self.wide_store = self.vmem and "store" in op and op.endswith(("x3", "x4"))
        self.ab, self.c, self.data = set(), set(), set()
        if op == "s_nop":
            self.states = int(rest) + 1
        elif self.mfma:
            self.w, self.ab, self.c = R[0], R[1] | R[2], R[3]
            self.r = self.ab | self.c
            self.passes = 8 if "32x32" in op else 4
        elif self.valu:
            if op.startswith("v_permlane"):
                self.w = self.r = allr
            else:
                self.w = set(R[0])
                self.r = set().union(*R[1:]) if len(R) > 1 else set()
                if op.startswith(("v_add_co", "v_addc_co", "v_sub_co")):
                    self.w |= R[1]
                    self.r = set().union(*R[2:])
                if op.startswith(("v_fmac", "v_dot2c", "v_writelane")):
                    self.r |= R[0]
                if self.dot:
                    self.ab = R[1] | R[2]
        elif self.vmem:
            if op.startswith(("buffer_inv", "buffer_wbl2")):
                pass
            elif self.dma:
                self.r = allr | {("s", "m0")}
            elif "load" in op:
                self.w, self.r = R[0], set().union(*R[1:])
            else:
                self.r = allr
                self.data = R[0] if op.startswith("buffer") else R[1]
        elif self.ds:
            if "read" in op or "permute" in op:
                self.w, self.r = R[0], set().union(*R[1:])
            else:
                self.r = allr
        elif self.salu and ops and not op.startswith(("s_cmp", "s_bitcmp", "s_cbranch", "s_branch", "s_waitcnt", "s_sleep", "s_setprio")):
            self.w = R[0]
            self.r = set().union(*R[1:]) if len(R) > 1 else set()
        elif self.salu:
            self.r = allr


def _need(p, c):
    n = 0
    pv = {x for x in p.w if x[0] != "s"}
    ps = {x for x in p.w if x[0] == "s"}
    if p.valu:
        if c.mfma and pv & c.r: n = max(n, 2)
        if c.perm and pv & c.r: n = max(n, 2)
        if c.rdlane and pv & c.r: n = max(n, 1)
        if p.trans and c.valu and not c.trans and pv & c.r: n = max(n, 1)
        if p.dot and pv & (c.r | c.w):
            if c.op != p.op or pv & c.ab: n = max(n, 3)
        if ps & c.r:
            n = max(n, 5 if c.vmem else (4 if c.rdlane or c.op.startswith("v_writelane") else 2))
        if ps and c.op.startswith("s_cbranch_vcc"): n = max(n, 2)
    if p.mfma:
        big = {4: 8, 8: 12}[p.passes]
        if c.mfma:
            if p.w & c.ab: n = max(n, big)
            if p.w & c.c and p.w != c.c: n = max(n, big - 2)
            if p.w & c.w and p.w != c.w: n = max(n, big - 2)
        elif (c.valu or c.vmem or c.ds) and p.w & (c.r | c.w):
            n = max(n, big)
        if c.valu and p.c & c.w: n = max(n, {4: 3, 8: 7}[p.passes])
    if p.wide_store and p.data & c.w: n = max(n, 2)
    if p.salu and ("s", "m0") in p.w and c.dma: n = max(n, 1)
    return n


def _is_ins(line):
    s = line.split(";")[0].strip()
    return bool(s) and not s.endswith(":") and not s.startswith(".")


def fix_hazards(lines, window=14):
    out, hist, added = [], [], 0
    for line in lines:
        if not _is_ins(line):
            out.append(line)
            continue
        c = Ins(line)
        dist, short = 0, 0
        for p in reversed(hist):
            short = max(short, _need(p, c) - dist)
            dist += p.states
            if dist > window: break
        if short > 0:
            out.append(f"    s_nop {short-1}")
            hist.append(Ins(f"s_nop {short-1}"))
            added += short
        out.append(line)
        hist.append(c)
        hist = hist[-window - 2:]
    labels = {l.split(":")[0].strip(): i for i, l in enumerate(out) if l.split(";")[0].strip().endswith(":")}
    for i, l in enumerate(out):
        if not _is_ins(l): continue
        b = Ins(l)
        if not b.op.startswith(("s_cbranch", "s_branch")): continue
        tgt = labels[b.text.split()[1]]
        before = [Ins(x) for x in out[max(0, i - 3 * window):i + 1] if _is_ins(x)][-window:]
        after = [Ins(x) for x in out[tgt:tgt + 3 * window] if _is_ins(x)][:window]
        off = 0
        for c in after:
            dist = off
            for p in reversed(before):
                assert _need(p, c) <= dist, f"hazard across branch '{b.text}': '{p.text}' -> '{c.text}'"
                dist += p.states
            off += c.states
            if c.op in ("s_branch", "s_endpgm"): break
    return out, added


SHORT = (("mf", "v_mfma_f32_16x16x32_bf16"), ("rt", "ds_read_b64_tr_b16"), ("pk", "v_cvt_pk_bf16_f32"),
         ("bl", "buffer_load_dwordx4"), ("rq", "ds_read_b128"))


def compress(lines):
    out, done = [], False
    for l in lines:
        if l.startswith(".text") and not done:
            for a, b in SHORT:
                out += [f".macro {a} x:vararg", f" {b} \\x", ".endm"]
            done = True
        if _is_ins(l):
            t = l.strip()
            for a, b in SHORT:
                if t.startswith(b + " "):
                    t = a + t[len(b):]
            l = " " + t.replace(", ", ",")
        out.append(l)
    return out


def instr_sizes(lines, start_label):
    import subprocess, tempfile, os
    d = tempfile.mkdtemp()
    src, obj = os.path.join(d, "a.s"), os.path.join(d, "a.o")
    open(src, "w").write("\n".join(lines) + "\n")
    b = "bin/"
    subprocess.check_call([b + "clang", "-x", "assembler", "-target", "amdgcn-amd-amdhsa", "-mcpu=gfx950", "-c", src, "-o", obj])
    out = subprocess.check_output([b + "llvm-objdump", "-d", "--mcpu=gfx950", obj], text=True).split("\n")
    i = next(k for k, l in enumerate(out) if l.endswith(f"<{start_label}>:"))
    return [4 * len(l.split("//")[1].split(":")[1].split("<")[0].split()) for l in out[i:] if "//" in l]


def add_page_hops(lines, start_label, stop_label, s_wave):
    sizes = instr_sizes(lines, start_label)
    i0 = lines.index(start_label + ":"); i1 = lines.index(stop_label + ":")
    body, k = [], 0
    for l in lines[i0:i1]:
        if _is_ins(l):
            body.append((l, sizes[k])); k += 1
        else:
            body.append((l, 0))
    total = sum(sz for _, sz in body)
    marks = [j for j, (l, _) in enumerate(body) if l.strip().startswith("; @hop")]
    cum = [0]
    for _, sz in body: cum.append(cum[-1] + sz)
    out, addr, covered, owner, nhop, padded = [], 0, 0, {}, 0, 0
    last_page = lambda: (total + (addr - cum[j]) + 200) // 4096
    for j, (l, sz) in enumerate(body):
        page = addr // 4096
        if page > padded and sz:
            prev = next(x for x in reversed(out) if _is_ins(x)).strip()
            room = 64 - addr % 4096
            if (prev.startswith("v_mfma") and not l.strip().startswith("s_")) or room - sz < 12:
                if page in owner:
                    out += [f"L_pad{page}:", f"    s_cbranch_execz L_hop{owner[page]}"]; addr += 4
                padded = page
        if j in marks:
            rounds = int((l.split("@hop")[1].strip() or "0"))
            nxt = next((m for m in marks if m > j), len(body))
            covered = max(covered, page)
            if not rounds and (addr + cum[nxt] - cum[j] + 64) // 4096 > covered: rounds = 1
            for _ in range(rounds):
                pages = [p for p in range(covered + 1, covered + 5) if p <= last_page() - 0 and p * 4096 + 128 < total]
                if not pages: break
                out.append("    s_mov_b64 exec, 0"); addr += 4
                for w, p in enumerate(pages):
                    owner[p] = nhop
                    if w < 3:
                        out += [f"    s_cmp_eq_u32 s{s_wave}, {w}", f"    s_cbranch_scc1 L_pad{p}"]; addr += 8
                    else:
                        out.append(f"    s_branch L_pad{p}"); addr += 4
                out += [f"L_hop{nhop}:", "    s_mov_b64 exec, -1"]; addr += 4
                covered = pages[-1]; nhop += 1
            continue
        out.append(l); addr += sz
    return lines[:i0] + out + lines[i1:], nhop
```

```python
import math
import struct
import sys
from asmlib import *

OUT_PATH = sys.argv[1]
opt = dict(a.split("=") for a in sys.argv[2:])
O_ = lambda k, d: int(opt.get(k, d))
STAMP = O_("stamp", 0)
SSET = opt.get("sset", "")
FORCE_REDO = O_("redo", 0)
QPERM = O_("qperm", 1)
SPARSE = O_("sparse", 1)
AHEAD = O_("ahead", 10)
AMP = [int(x) for x in opt["amp"].split(",")] if "amp" in opt else None

NAME = "recurrent_scan__gqa_block_cached__mixer_s_mlp__prompt_kernel"
MF = "v_mfma_f32_16x16x32_bf16"
f2u = lambda x: "0x%08x" % struct.unpack("<I", struct.pack("<f", x))[0]
LOG2E = math.log2(math.e)
QSCALE = LOG2E / math.sqrt(128.0)
GC1 = -2.0 * math.sqrt(2.0 / math.pi) * LOG2E
GC2 = GC1 * 0.044715
EPS = 1e-5

SX, SK, SV, SWS, SWQ, SWO, SW1, SW2, SW3, SW4, SOUT, SDBG = range(4, 52, 4)
sG, sM, sW = 52, 53, 54
sT = 55
sW1K, sW4K, sRING, sSO = 60, 61, 62, 63
sSF, sCNT, sSPIN, sHO, sPP, sPC, sFL, sF0, sF1, sSTP, sSTC = range(64, 75)
sLO, sHI, sONE2, sC1, sC2, sNL2E, sF2, sMSK, sKS, sF3 = range(75, 85)
sST = 92
srd = lambda b: sr(b, 4)

WS_H, WS_X1, WS_PS, WS_PH, WS_FL, WS_SS, WS_ST = 0, 0x200000, 0x400000, 0x1400000, 0x2400000, 0x2500000, 0x4000000
PLANE = 131072

vBA, vTOK, vNMEAN, vRSTD, vLANE, vSTAMP, vCODE, vAS, vDW2 = 255, 254, 253, 252, 251, 250, 248, 244, 243
T = 226
vAA, vAA2 = T, T + 4
vBX, vWA, vSC1, vDWQ, vDW1 = T + 8, T + 9, T + 12, T + 14, T + 15
vPA, vPOLL, vONE, vDW4, vDWO = T + 16, T + 15, T + 14, T + 13, T + 12
vTC = T + 10
XR = 128
G12 = 192
S = lambda buf, kb, qb: buf * 64 + ((kb >> 1) * 4 + qb) * 8 + (kb & 1) * 4
PR = lambda buf, ks, qb: buf * 64 + (ks * 4 + qb) * 8
Q = lambda qb, s: 128 + (qb * 4 + s) * 4
NM = lambda qb: 192 + 4 * qb
KA = lambda s: 208 + s
VA = lambda db: 212 + db
KG = lambda i: 220 + i
VG = lambda i: 224 + (i & 1)
vR = NM(0)
RINV = lambda qb: vR + 8 + 2 * qb
OP = lambda s, qb: (s * 4 + qb) * 4
O = lambda db, qb: (db * 4 + qb) * 4
FR = lambda f: 128 + (f % 8) * 4
HB = lambda ks: 160 + (ks % 8) * 4
LACC = lambda qb: 192 + 4 * qb
aONES, aG2, aXN = 208, 212, 244
GA = lambda i: 228 + (i % 4) * 4
AF = lambda f: 128 + (f % 8) * 4
PHA = lambda k: (160, 212)[k // 8] + (k % 8) * 4
T0 = 22
RING, VOFF = 65536, 65536

P = Prog()
e, lab, cap = P.e, P.lab, P.capture
slow_paths = []
nstamp = [0]


def stamp(level=1):
    if AMP and level == 1:
        i = nstamp[0]; nstamp[0] += 1
        if i in AMP[:2]:
            e(f"{'s_memtime' if AMP[3] else 's_memrealtime'} {sr(sST + 2*AMP.index(i),2)}"); P.wait_all(vm=False)
        return
    if STAMP < level or (SSET and level != 0):
        return
    i = nstamp[0]; nstamp[0] += 1
    e(f"s_memtime {sr(sST,2)}"); e(f"s_memrealtime {sr(sST+2,2)}")
    P.wait_all(vm=False)
    e(f"v_writelane_b32 v{vSTAMP}, s{sST}, {2*i}")
    e(f"v_writelane_b32 v{vSTAMP}, s{sST+2}, {2*i+1}")


def stamp_item():
    i = nstamp[0]; nstamp[0] += 1
    return It(f"s_memtime {sr(sST,2)}\n    s_memrealtime {sr(sST+2,2)}\n    s_waitcnt lgkmcnt(0)\n"
              f"    v_writelane_b32 v{vSTAMP}, s{sST}, {2*i}\n    v_writelane_b32 v{vSTAMP}, s{sST+2}, {2*i+1}", "s")


def mk_srd(d, p, size):
    e(f"s_mov_b32 s{d}, s{p}"); e(f"s_mov_b32 s{d+1}, s{p+1}"); e(f"s_mov_b32 s{d+2}, {size}"); e(f"s_mov_b32 s{d+3}, 0x20000")


def sum_terms(dst, *terms):
    first = True
    for t in terms:
        if isinstance(t, int):
            e(f"s_add_u32 s{dst}, s{dst}, {t}"); continue
        r, k = t
        if k == 0:
            e(f"s_mov_b32 s{dst}, 0"); first = False; continue
        d = dst if first else sT + 4
        e(f"s_lshl_b32 s{d}, s{r}, {k.bit_length()-1}" if k & (k - 1) == 0 else f"s_mul_i32 s{d}, s{r}, {k}")
        if not first: e(f"s_add_u32 s{dst}, s{dst}, s{d}")
        first = False


def allreduce(op, regs, tmps, k=None):
    for sw in ("v_permlane32_swap_b32", "v_permlane16_swap_b32"):
        for r, t in zip(regs, tmps): e(f"v_mov_b32 v{t}, v{r}")
        for r, t in zip(regs, tmps): e(f"{sw} v{r}, v{t}", k=k)
        for r, t in zip(regs, tmps): e(f"{op} v{r}, v{r}, v{t}")


def masked(mask, txt, tag=None, lds=False):
    (P.lds if lds else P.vm)(f"s_mov_b64 exec, {mask}\n    {txt}\n    s_mov_b64 exec, -1", tag)


class Poll:
    def __init__(self, name, loads, tests):
        self.name, self.loads, self.tests = name, loads, tests
        slow_paths.append(self)

    def issue(self):
        for l in self.loads: P.vm(l, self.name)

    def check(self):
        for i, t in enumerate(self.tests): e(t, need=[self.name] if i == 0 else ())
        e(f"s_cbranch_vccnz L_slow_{self.name}\nL_back_{self.name}:", k="v")


def flag_poll(name, s_rd, soff, target):
    return Poll(name, [f"buffer_load_dword v{vPOLL}, v{vPA}, {srd(s_rd)}, {soff} offen sc1"],
                [f"v_cmp_gt_u32 vcc, {target}, v{vPOLL}"])


def set_flags(stage, nlanes, need, val=1):
    e(f"v_mov_b32 v{vONE}, {val}")
    e(f"s_add_u32 s{sSF}, s{sFL}, {stage * 1024}")
    P.wait(need)
    masked((1 << nlanes) - 1, f"buffer_store_dword v{vONE}, v{vLANE}, {srd(SWS)}, s{sSF} offen sc1")


def interleave(code, side, every):
    side = list(side)
    for k, it in enumerate(code):
        if side and k % every == 0: P.puts(side.pop(0))
        P.put(it)
    for x in side: P.puts(x)


def gelu(base, n, tmp, dst, first):
    pairs = range(0, n, 2)
    if first:
        e(f"v_mov_b32 v{vTC}, s{sC1}"); e(f"v_mov_b32 v{vTC+1}, s{sC2}")
    for i in pairs: e(f"v_pk_mul_f32 {vr(tmp+i,2)}, {vr(base+i,2)}, {vr(base+i,2)}")
    for i in pairs: e(f"v_pk_fma_f32 {vr(tmp+i,2)}, {vr(tmp+i,2)}, {vr(vTC,2)}, {vr(vTC,2)} op_sel:[0,1,0] op_sel_hi:[1,1,0]")
    for i in pairs: e(f"v_pk_mul_f32 {vr(tmp+i,2)}, {vr(tmp+i,2)}, {vr(base+i,2)}")
    for i in range(n): e(f"v_exp_f32 v{tmp+i}, v{tmp+i}")
    for i in pairs: e(f"v_pk_add_f32 {vr(tmp+i,2)}, {vr(tmp+i,2)}, 1.0 op_sel_hi:[1,0]")
    for i in range(n): e(f"v_rcp_f32 v{tmp+i}, v{tmp+i}")
    for i in pairs: e(f"v_pk_mul_f32 {vr(tmp+i,2)}, {vr(tmp+i,2)}, {vr(base+i,2)}")
    for i in pairs: e(f"v_cvt_pk_bf16_f32 v{dst(i//2)}, v{tmp+i}, v{tmp+i+1}")


class Tile:
    def __init__(self, s_rd, voff, base, stride, perm, slot, tag, rows=64, kp=0, nh=0, half=32):
        self.__dict__.update(locals())

    def dma(self):
        out = []
        for i in range(self.rows // 8):
            row = ((0, 16, 4, 20)[i & 3] if self.perm else 8 * (i & 3)) + self.half * (i >> 2)
            so = self.base + row * self.stride - (i & 3) * 1024
            pre = [It(f"s_add_u32 m0, s{sRING}, {self.slot * 32768 + (i >> 2) * 4096}", "s")] if i % 4 == 0 else []
            out.append((pre + [It(f"s_mov_b32 s{sSO}, {so}", "s")],
                        [It(f"buffer_load_dwordx4 v{self.voff}, {srd(self.s_rd)}, s{sSO} offen "
                            f"offset:{(i & 3) * 1024} lds", "g", self.tag)]))
        return out


def place(add, g, grp, prev, avoid=()):
    pre, its = grp
    c = [h for h in range(max(prev + 1, 0), g) if h not in avoid][-len(pre):] if pre else []
    for k, it in enumerate(pre): add(c[k] if len(c) == len(pre) else max(g - len(pre) + k, prev + 1, 0), it)
    for it in its: add(g, it)


def dma_voff(dst, stride, perm, s_base, a):
    b = a + 1
    e(f"v_lshrrev_b32 v{a}, 10, v{vLANE}")
    e(f"v_bfe_u32 v{b}, v{vBA}, 4, 3")
    e(f"v_and_b32 v{dst}, 6, v{a}"); e(f"v_xor_b32 v{b}, v{b}, v{dst}")
    if perm:
        e(f"v_and_b32 v{dst}, 4, v{a}"); e(f"v_add_u32 v{a}, v{a}, v{dst}")
    e(f"v_mul_u32_u24 v{a}, {stride}, v{a}")
    e(f"v_lshl_add_u32 v{a}, v{b}, 4, v{a}")
    e(f"v_add_u32 v{dst}, {s_base}, v{a}")


def a_reads(t, ti, nb):
    base = (vAA2 if t.slot == 2 else vAA) + nb
    off = (t.slot % 2) * 32768 if t.slot < 2 else 0
    return [It(f"ds_read_b64_tr_b16 {ar(AF(nb*2+ks) + 2*h, 2)}, v{base} offset:{off + ks*4096 + h*2048}", "l",
               ("A", t.tag, nb), need=[t.tag]) for ks in range(t.rows // 32) for h in range(2)]


def gemm_pre(tiles, i0):
    P.puts(a_reads(tiles[i0], i0, 0))


def gemm(tiles, i0, n, acc, pending, bf, breg=vBA, extra=None, fill=None, over=0, opening=None, dma0=0):
    BF = lambda par, ks, tb: bf[par] + (ks * 4 + tb) * 4
    ms, gaps, start, grp = [], {}, [], []
    seen = set()
    for ti in range(i0, i0 + n):
        t = tiles[ti]
        grp.append(0 if ti == i0 else grp[-1] + (t.kp != tiles[ti - 1].kp))
        start.append(len(ms))
        nks = t.rows // 32
        for nb in range(4):
            for tb in range(4):
                for ks in (range(nks) if not tb & 1 else range(nks - 1, -1, -1)):
                    d = vr(acc(t.nh, nb, tb), 4)
                    c = d if (t.nh, nb, tb) in seen else "0"
                    seen.add((t.nh, nb, tb))
                    ms.append(It(f"{MF} {d}, {ar(AF(nb*2+ks),4)}, {ar(BF(grp[-1]&1,ks,tb),4)}, {c}", "m",
                                 need=[("A", t.tag, nb), ("B", tiles[i0].tag, grp[-1], tb)]))
    start.append(len(ms))

    def b_reads(s):
        t = tiles[i0 + s]
        return [It(f"ds_read_b128 {ar(BF(grp[s]&1,ks,tb),4)}, v{breg} offset:{t.kp*8192 + ks*4096 + tb*1024}", "l",
                   ("B", tiles[i0].tag, grp[s], tb)) for tb in range(4) for ks in range(t.rows // 32)]

    add = lambda g, it: gaps.setdefault(g, []).append(it)
    pre = b_reads(0)
    release = {}
    for s in range(n):
        ti = i0 + s; t = tiles[ti]
        per = (start[s + 1] - start[s]) // 4
        for nb in range(4):
            if s == 0 and nb == 0: continue
            rd = a_reads(t, ti, nb)
            for k, it in enumerate(rd):
                g = start[s] + per * nb - 6 - 2 * (len(rd) - 1 - k)
                if g < 0: pre.append(it)
                else: add(g, it)
        if ti + 3 < len(tiles) and tiles[ti + 3]: release[start[s] + 3 * per] = tiles[ti + 3]
        if s + 1 < n and grp[s + 1] != grp[s]:
            s0 = grp.index(grp[s])
            rd = b_reads(s + 1)
            cand = [g for g in range(start[s0], start[s + 1] - 6) if g % 4 == 3]
            if len(cand) < len(rd): cand = sorted(cand + [start[s0] + 2 * k for k in range(len(rd) - len(cand))])
            step = len(cand) / len(rd)
            for k, it in enumerate(rd): add(cand[int(k * step)], it)
    if opening == "get": return a_reads(tiles[i0], i0, 0) + pre
    if opening == "done": pre = []
    prev = dma0 - 1
    for g in range(dma0, len(ms)):
        if g in release: pending += release[g].dma()
        nxt = min([r for r in release if r > g], default=len(ms) + 24)
        if pending and (g % 4 == 1 or (g % 4 == 3 and len(pending) > (nxt - g + 1) // 4)):
            place(add, g, pending.pop(0), prev); prev = g
    for g, its in (extra or {}).items():
        for it in its: add(g, it)
    for g in start[:-1]: add(g + 10, hop())
    if SSET == {id(qt): "q", id(ot): "o"}.get(id(tiles), "mlp"):
        for g in start[:-1] + [len(ms) - 1]: add(g, stamp_item())
    P.puts(pre)
    P.run_gaps(ms, gaps, fill, gmin=4, over=over)


def flush(pending):
    while pending:
        a, b = pending.pop(0)
        P.puts(a + b)


def shared_ops(kss, koff, acc, zero, afr, breg, bneed, name, i0=0):
    out = []
    for nb in range(4):
        for ks in kss:
            i = i0 + len(out)
            d = acc(nb)
            out.append((It(f"{MF} {d}, {ar(afr(i),4)}, {breg(ks)}, {0 if zero and not ks else d}", "m",
                           need=[(name, i)] + list(bneed(ks))),
                        [It(f"ds_read_b64_tr_b16 {ar(afr(i)+2*h,2)}, v{vAS+nb} offset:{(ks-koff)*4096 + h*2048}", "l",
                            (name, i)) for h in range(2)]))
    return out


def pack(acc, nh, tb, s, second=False, guard=False):
    a, b = acc(nh, 2 * s, tb), acc(nh, 2 * s + 1, tb)
    order = list(enumerate((a, a + 2, b, b + 2)))
    d = b if second else a
    for j, r in reversed(order) if second else order: e(f"v_cvt_pk_bf16_f32 v{d+j}, v{r}, v{r+1}")
    if guard:
        for j in range(4): e(f"v_min_u32 v{d+j}, -2, v{d+j}")


def store_piece(src, ws_base, nh, tb, s, tag):
    e(f"s_add_u32 s{sSF}, s{sPP}, {ws_base + s*65536 + tb*2048}")
    P.vm(f"buffer_store_dwordx4 {src}, v{vBA}, {srd(SWS)}, s{sSF} offen offset:{nh*1024} sc1", tag)


def load_piece(ws_base, dst, g, nh, tag):
    e(f"s_add_u32 s{sSF}, s{sPC}, {ws_base + g*8192}")
    P.vm(f"buffer_load_dwordx4 {dst}, v{vBA}, {srd(SWS)}, s{sSF} offen offset:{nh*1024} sc1", (tag, g, nh))


def add_piece(dst, reg, first, need):
    for j in range(4):
        for h, sel in enumerate((sLO, sHI)):
            d = dst + 2 * j + h
            e(f"v_dot2_f32_bf16 v{d}, v{reg+j}, s{sel}, {0 if first else 'v%d' % d}", need=need)


def frag_reads(t, f, tail=False):
    if f < 16:
        kb, s = f // 4, f % 4
        off = ((t + 1) % 4) * 16384 + kb * 4096
        return [It(f"ds_read_b128 {ar(FR(f),4)}, v{KA(s)} offset:{off}", "l", ("F", t, f))]
    db, ks = ((f - 16) // 2, (f - 16) % 2) if not tail else ((f - 16) % 8, (f - 16) // 8)
    off = (t % 4) * 16384 + ks * 8192
    return [It(f"ds_read_b64_tr_b16 {ar(FR(f)+2*h,2)}, v{VA(db)} offset:{off + 4096*h}", "l", ("F", t, f))
            for h in range(2)]


def qk_mfmas(t, zero=False):
    out = []
    for kb in range(4):
        for qb in range(4):
            for n, s in enumerate(range(4) if not qb & 1 else range(3, -1, -1)):
                d = vr(S((t + 1) & 1, kb, qb), 4)
                c = d if n else ("0" if zero else vr(NM(qb), 4))
                out.append((It(f"{MF} {d}, {ar(FR(kb*4+s),4)}, {vr(Q(qb,s),4)}, {c}", "m",
                               need=[("F", t, kb * 4 + k) for k in range(4)]), kb * 4 + s))
    return out


def pv_one(t, db, qb, ks, f, need, zero=False):
    o = ar(O(db, qb), 4)
    return (It(f"{MF} {o}, {ar(FR(f),4)}, {vr(PR(t&1,ks,qb),4)}, {0 if zero else o}", "m", need=need), f)


def sum_one(t, qb, ks, zero=False):
    l = ar(LACC(qb), 4)
    return (It(f"{MF} {l}, {ar(aONES,4)}, {vr(PR(t&1,ks,qb),4)}, {0 if zero else l}", "m"), None)


def pv_mfmas(t, zero=False):
    out = []
    for db in range(8):
        need = [("F", t, 16 + db * 2), ("F", t, 17 + db * 2)]
        for qb in range(4):
            for n, ks in enumerate(range(2) if not qb & 1 else range(1, -1, -1)):
                out.append(pv_one(t, db, qb, ks, 16 + db * 2 + ks, need, zero and not n))
        if db % 2 == 1:
            out += [sum_one(t, db // 2, ks, zero and not ks) for ks in range(2)]
    return out


def pv_mfmas_tail(t):
    out = []
    for ks in range(2):
        out += [sum_one(t, qb, ks) for qb in range(4)]
        for db in range(8):
            f = 16 + ks * 8 + db
            out += [pv_one(t, db, qb, ks, f, [("F", t, f)]) for qb in range(4)]
    return out


def sm_stream(buf, half):
    ex, post = [], []
    for qb in range(4):
        b = PR(buf, half, qb)
        for j in range(8):
            ex.append(It(f"v_exp_f32 v{b+j}, v{b+j}", "x"))
            post.append([It(f"v_cvt_pk_bf16_f32 v{b + j//2}, v{b+j-1}, v{b+j}", "v")] if j & 1 else [])
    return ex, post


def kv_dma(kind, tile, lds=None, so=None):
    reg, s_rd, base = (KG, SK, 0) if kind == "K" else (VG, SV, VOFF)
    lds = base + (tile % 4) * 16384 if lds is None else lds
    out = []
    for i in range(4):
        pre = [It(f"s_add_u32 m0, s{sW4K}, {lds}", "s"),
               It(f"s_mov_b32 s{sSO}, {tile * 16384 if so is None else so}", "s")] if i == 0 else []
        out.append((pre, [It(f"buffer_load_dwordx4 v{reg(i)}, {srd(s_rd)}, s{sSO} offen offset:{i*1024} lds",
                             "g", (kind, tile))]))
    return out


issued = set()
CLUSTER = O_("cluster", 1)
WINS = [int(x) for x in opt.get("wins", "2,18,34,50,73,91,109,127").split(",")]
WPAT = [int(x) for x in opt.get("wpat", "1").split(",")]


def attn_iter(t, groups, fill, endwait=(), extra=None, ins=None):
    end = T0 - 1 if t < T0 else 31
    last = t == end
    mf = pv_mfmas_tail(t) if last else qk_mfmas(t) + pv_mfmas(t, zero=t == 0)
    ms = [m for m, _ in mf]
    n = len(ms)
    first_use, last_use = {}, {}
    for i, (_, f) in enumerate(mf):
        if f is not None:
            first_use.setdefault(f, i); last_use[f] = i
    reads = []
    for f in sorted(first_use):
        if (t, f) in issued: continue
        reads += [(first_use[f] - AHEAD, last_use.get(f - 8, -1), it) for it in frag_reads(t, f, last)]
    nxt_need = ()
    if t < end - 1:
        for f in range(4):
            reads += [(n + f - AHEAD, last_use[24 + f], it) for it in frag_reads(t + 1, f)]
            issued.add((t + 1, f))
        nxt_need = [("F", t + 1, f) for f in range(4)]
    elif t == end - 1:
        for f in range(16, 18):
            reads += [(n + 4 * (f - 15) - AHEAD, last_use[8 + f], it) for it in frag_reads(end, f, True)]
            issued.add((end, f))
    gaps = {}
    add = lambda g, it: gaps.setdefault(g, []).append(it)
    exg = {}
    wins = [] if last or not CLUSTER else WINS[:min(len(WINS), -(-len(groups) // len(WPAT)))]
    quiet = {w + k for w in wins for k in range(WPAT[-1] + 1)}
    dma_gaps = sorted(w + k for w in wins for k in WPAT)
    if last:
        ex, post = sm_stream(t & 1, 1)
        for i in range(32): exg[i] = (ex[i], post[i])
    else:
        for (ex, post), lo, hi in ((sm_stream(t & 1, 1), 0, 63), (sm_stream((t + 1) & 1, 0), 64, n - 2)):
            c = [g for g in range(lo, hi) if g not in quiet]
            for i in range(32): exg[c[(i * (len(c) + 1)) // 32]] = (ex[i], post[i])
    for g, (x, post) in exg.items():
        add(g, x)
    for g, (x, post) in exg.items():
        h = g + 1
        while not last and (h in exg or h in quiet): h += 1
        for it in post: add(h, it)
    free = set(range(n)) if last else {g for g in range(n) if g not in exg and g not in dma_gaps and len(gaps.get(g, [])) < 2}
    prev, pre, avail = n, [], sorted(free)
    for dl, early, it in reversed(reads):
        c = [g for g in free if g <= dl and g < prev]
        if c and max(c) >= early:
            prev = max(c); free.discard(prev); add(prev, it)
        elif early < 0:
            prev = -1; pre.insert(0, it)
        else:
            g = min(g for g in avail if g >= early and len(gaps.get(g, [])) < 2)
            assert g <= dl + AHEAD - 6, (t, it.t, g, dl)
            free.discard(g); gaps.setdefault(g, []).insert(0, it)
    if groups:
        def spaced(c):
            out = []
            for g in c:
                if not out or g - out[-1] >= 2: out.append(g)
            return out
        light = spaced([g for g in sorted(free) if 1 <= g < n - 6 and g not in gaps])
        fr = light if len(light) >= len(groups) - len(dma_gaps) + 4 else spaced([g for g in sorted(free) if 1 <= g < n - 6])
        rest = len(groups) - len(dma_gaps)
        if rest > 0:
            fr = [g for g in fr if not {g - 1, g, g + 1} & set(dma_gaps)]
            if len(fr) < rest: fr = spaced([g for g in range(1, n - 6) if g not in exg and not {g - 1, g, g + 1} & set(dma_gaps)])
            assert len(fr) >= rest, (t, len(fr), len(groups))
            dma_gaps = sorted(dma_gaps + [fr[int(k * len(fr) / rest)] for k in range(rest)])
        for k, grp in enumerate(groups): place(add, dma_gaps[k], grp, dma_gaps[k - 1] if k else -1, {u - 1 for u in first_use.values()})
    if not last:
        add(n - 3, It(None, "s", need=[("K", min(t + 3, end)), ("V", end if t == end - 2 else t + 1)] + list(endwait)))
        add(n - 2, It("s_barrier", "s"))
        add(n - 4, hop())
    for g, its in (extra or {}).items():
        for it in its: add(g, it)
    if SSET == "attn": add(0, stamp_item())
    if ins:
        for k in range(3):
            for h, it in enumerate(ins[k][1]): add(1 + 4 * k + 2 * h, it)
        pos = {(13 + (k * (n - 24)) // (len(ins) - 1)) | 1: k for k in range(len(ins))}
        assert len(pos) == len(ins)
        ms2, gaps2, old, quiet = [], {}, quiet, set()
        for g, m in enumerate(ms):
            if g in old: quiet.add(len(ms2))
            gaps2[len(ms2)] = gaps.get(g, []); ms2.append(m)
            if g in pos:
                k = pos[g]
                gaps2[len(ms2)] = list(ins[k + 3][1]) if k + 3 < len(ins) else []
                ms2.append(ins[k][0])
        ms, gaps = ms2, gaps2
    P.puts(pre)
    P.run_gaps(ms, gaps, fill, next_need=nxt_need, pos=t, gmin=4, quiet=quiet)


hdr = [l.rstrip("\n") for l in open("header.txt")]
hdr = hdr[:[i for i, l in enumerate(hdr) if "@launch" in l][0]]
P.L += hdr + ["; @launch grid=(256,1,1) block=(256,1,1) lds=163840",
              '.amdgcn_target "amdgcn-amd-amdhsa--gfx950"', ".text", f".globl {NAME}", ".p2align 8",
              f".type {NAME},@function"]
lab(NAME)
e("s_cmp_lt_u32 s2, 256"); e("s_cbranch_scc1 L_go"); e("s_endpgm")
lab("L_go")
e("s_load_dwordx16 s[64:79], s[0:1], 0"); e("s_load_dwordx8 s[80:87], s[0:1], 64"); e("s_load_dwordx2 s[88:89], s[0:1], 96")
PAIR = O_("pair", 1)
NS = 16 if PAIR else 32
sMI, sWV = 90, 91
if PAIR:
    e(f"s_and_b32 s{sG}, s2, 3"); e(f"s_lshl_b32 s{sG}, s{sG}, 1"); e(f"s_bfe_u32 s{sT}, s2, 0x10003"); e(f"s_add_u32 s{sG}, s{sG}, s{sT}")
    e(f"s_lshr_b32 s{sMI}, s2, 4"); e(f"s_and_b32 s{sM}, s2, 4"); e(f"s_lshl_b32 s{sM}, s{sM}, 2"); e(f"s_add_u32 s{sM}, s{sM}, s{sMI}")
else:
    e(f"s_and_b32 s{sG}, s2, 7"); e(f"s_lshr_b32 s{sM}, s2, 3"); e(f"s_lshr_b32 s{sMI}, s2, 3")
e("v_lshrrev_b32 v1, 6, v0"); e("v_and_b32 v0, 63, v0"); e(f"v_readfirstlane_b32 s{sW}, v1")
e(f"v_lshlrev_b32 v{vBA}, 4, v0"); e(f"v_lshlrev_b32 v{vLANE}, 7, v0")
e(f"s_getpc_b64 {sr(sT+1,2)}")
lab("L_pc")
NCL = 9
e(f"s_lshr_b32 s{sT+3}, s2, 3")
sum_terms(sT, (sT + 3, 512), (sW, 128))
e(f"v_min_u32 v6, {NCL-1}, v0"); e(f"v_lshl_add_u32 v6, v6, 14, s{sT}"); e("v_min_u32 v6, L_end-L_pc, v6")
e(f"v_mov_b32 v{vCODE+1}, s{sT+2}"); e(f"v_add_co_u32 v{vCODE}, vcc, s{sT+1}, v6")
e(f"v_addc_co_u32 v{vCODE+1}, vcc, 0, v{vCODE+1}, vcc")
code_touch = lambda: P.vm(f"global_load_dword a255, {vr(vCODE,2)}, off")
masked(3, f"global_load_dword a255, {vr(vCODE,2)}, off")
sum_terms(sWV, (sMI, 4), (sW, 1))


def touch_off(d, nrows, lines, stride, base_terms, t):
    per = -(-nrows // (NS * 4))
    assert per * lines <= 64 and lines & (lines - 1) == 0
    sh = lines.bit_length() - 1
    e(f"v_lshrrev_b32 v{d}, {7 + sh}, v{vLANE}"); e(f"v_min_u32 v{d}, {per - 1}, v{d}")
    e(f"s_mul_i32 s{sT}, s{sWV}, {per}"); e(f"v_add_u32 v{d}, s{sT}, v{d}")
    if per * NS * 4 != nrows: e(f"v_min_u32 v{d}, {nrows - 1}, v{d}")
    e(f"v_mul_u32_u24 v{d}, {stride}, v{d}")
    sum_terms(sT, *base_terms)
    if lines > 1:
        e(f"v_and_b32 v{t}, {(lines - 1) * 128}, v{vLANE}"); e(f"v_add3_u32 v{d}, v{d}, v{t}, s{sT}")
    else:
        e(f"v_add_u32 v{d}, s{sT}, v{d}")


WQ0 = O_("wq0", 128)
vTQ, vT1, vTK = T + 11, T + 13, T + 16
touch_off(6, WQ0, 8, 8192, [(sG, 1024)], 7)
touch_off(vT1, 512, 1, 1024, [(sG, 128)], 7)
e("v_and_b32 v2, 3, v0")
e("v_lshrrev_b32 v1, 2, v0")
sum_terms(sT, (sM, 64), (sW, 16))
e(f"v_add_u32 v3, s{sT}, v1"); e("v_lshlrev_b32 v3, 10, v3"); e("v_lshl_add_u32 v3, v2, 4, v3")
e(f"s_and_b32 s{sT+1}, s{sG}, 1"); e(f"s_lshl_b32 s{sT+2}, s{sT+1}, 9")
e(f"v_add_u32 v3, s{sT+2}, v3"); e(f"v_xor_b32 v{G12+13}, 0x200, v3")
if STAMP: e(f"v_mov_b32 v{vSTAMP}, 0")
e("s_waitcnt lgkmcnt(0)")
stamp()
if SSET == "ln": stamp(0)
P.vm(f"global_load_dword a255, v{vT1}, s[76:77]")
P.vm("global_load_dword a255, v6, s[70:71]")
for i in range(8):
    P.vm(f"global_load_dwordx4 {vr(XR+4*i,4)}, v3, s[64:65] offset:{i*64}", ("x", i))
HOP = O_("hop", 1)
hop = lambda n="": It(f"; @hop {n}", "s")
if HOP:
    e("s_branch L_main"); P.raw(".p2align 12")
lab("L_main")
e("v_lshlrev_b32 v4, 1, v2"); e("v_xor_b32 v4, v4, v1"); e("v_lshlrev_b32 v4, 4, v4"); e("v_lshl_add_u32 v4, v2, 8, v4")
sum_terms(sT + 2, (sT + 1, 32768), (sW, 1024))
e(f"v_add_u32 v{vWA}, s{sT+2}, v4"); e(f"v_xor_b32 v{vWA+1}, 0x8000, v{vWA}")
e("v_and_b32 v1, 15, v0"); e("v_lshrrev_b32 v2, 4, v0")
e("v_lshlrev_b32 v4, 1, v2"); e("v_xor_b32 v4, v4, v1"); e("v_lshlrev_b32 v4, 4, v4"); e(f"v_lshl_add_u32 v{vBX}, v2, 8, v4")
e(f"v_add_u32 v3, s{sT}, v1"); e("v_lshlrev_b32 v4, 15, v2"); e(f"v_lshl_add_u32 v{vTOK}, v3, 4, v4")
for d, p in ((SK, 66), (SV, 68)):
    e(f"s_lshl_b32 s{sT}, s{sG}, 19")
    e(f"s_add_u32 s{d}, s{p}, s{sT}"); e(f"s_addc_u32 s{d+1}, s{p+1}, 0"); e(f"s_mov_b32 s{d+2}, 0x80000"); e(f"s_mov_b32 s{d+3}, 0x20000")
for d, p, size in ((SX, 64, 0x200000), (SWQ, 70, 0x400000), (SW1, 76, 0x80000), (SWS, 88, 0x10000000),
                   (SWO, 72, 0x400000), (SW2, 78, 0x80000), (SW3, 80, 1835008), (SW4, 82, 1835008),
                   (SOUT, 84, 0x200000), (SDBG, 86, 256)):
    mk_srd(d, p, size)
sum_terms(sRING, (sW, 8192), RING); sum_terms(sW1K, (sW, 1024)); sum_terms(sW4K, (sW, 4096))
sum_terms(sT, (sG, 1024), (sW, 256)); dma_voff(vDWQ, 8192, True, f"s{sT}", 10)
sum_terms(sT, (sW, 65536), (sG, 128)); dma_voff(vDW1, 1024, True, f"s{sT}", 10); dma_voff(vDW2, 1024, False, f"s{sT}", 10)
for r, v in ((sLO, "0x00003f80"), (sHI, "0x3f800000"), (sONE2, "0x3f803f80"), (sC1, f2u(GC1)), (sC2, f2u(GC2)),
             (sNL2E, f2u(-LOG2E)), (sSPIN, opt.get("spin0", 0)), (sMSK, "0xffff0000")):
    e(f"s_mov_b32 s{r}, {v}")
sum_terms(sF0, (sM, 4096), (sW, 256), WS_FL)
sum_terms(sFL, (sG, 4), (sF0, 1))
sum_terms(sF1, (sM, 4096), (sG, 128), WS_FL + 1024)
e(f"s_add_u32 s{sF2}, s{sF1}, 1024"); e(f"s_add_u32 s{sF3}, s{sF1}, 2048")
sum_terms(sSTC, (sM, 4096), (sW, 1024), WS_SS)
sum_terms(sSTP, (sG, 128), (sSTC, 1))
sum_terms(sPP, (sM, 1 << 19), (sW, 1 << 17), (sG, 1 << 13))
sum_terms(sPC, (sM, 1 << 19), (sG, 1 << 16), (sW, 1 << 11))
e(f"s_lshl_b32 s{sHO}, s{sG}, 18")
e(f"s_and_b32 s{sKS}, s{sG}, 6"); e(f"s_add_u32 s{sKS}, s{sKS}, s{sG}")
e("v_lshrrev_b32 v6, 2, v0"); e("v_and_b32 v7, 3, v0"); e("v_lshlrev_b32 v7, 3, v7"); e("v_lshl_add_u32 v7, v6, 7, v7")
e("v_bfe_u32 v6, v0, 3, 2")
for nb in range(4):
    e(f"v_xor_b32 v10, {nb}, v6"); e("v_lshl_add_u32 v10, v10, 5, v7")
    e(f"v_add_u32 v{vAS+nb}, {RING + 32768}, v10")
    if QPERM:
        e("v_lshrrev_b32 v8, 2, v0"); e("v_and_b32 v9, 6, v8"); e("v_and_b32 v10, 3, v0"); e("v_xor_b32 v9, v9, v10")
        e(f"v_xor_b32 v9, {4*(nb>>1)}, v9"); e("v_lshlrev_b32 v9, 4, v9"); e("v_lshl_add_u32 v10, v8, 7, v9")
        if nb & 1: e("v_add_u32 v10, 8, v10")
    e(f"v_add_u32 v{vAA+nb}, s{sRING}, v10"); e(f"v_add_u32 v{vAA2+nb}, 0x10000, v{vAA+nb}")
e("v_xor_b32 v9, v2, v1")
for s in range(4):
    e(f"v_xor_b32 v10, {4*s}, v9"); e("v_lshlrev_b32 v10, 4, v10"); e(f"v_lshl_add_u32 v{KA(s)}, v1, 8, v10")
e("v_lshrrev_b32 v9, 2, v0"); e("v_lshlrev_b32 v10, 8, v9"); e("v_and_b32 v11, 3, v0")
e("v_lshl_add_u32 v10, v11, 3, v10"); e(f"v_add_u32 v10, {VOFF}, v10"); e("v_and_b32 v9, 7, v9")
for db in range(8):
    e(f"v_xor_b32 v11, {db}, v9"); e(f"v_lshl_add_u32 v{VA(db)}, v11, 5, v10")
e(f"v_lshl_add_u32 v10, v2, 8, s{sW4K}")
for i in range(4):
    e(f"v_add_u32 v9, {4*i}, v2"); e("v_xor_b32 v11, v9, v1"); e(f"v_lshl_add_u32 v{KG(i)}, v11, 4, v10")
    if i < 2:
        e("v_lshlrev_b32 v9, 1, v9"); e("v_xor_b32 v11, v9, v1"); e(f"v_lshl_add_u32 v{VG(i)}, v11, 4, v10")
e(f"v_lshlrev_b32 v{G12+8}, 4, v1")
if WQ0 < 512: touch_off(vTQ, 512 - WQ0, 8, 8192, [(sG, 1024), WQ0 * 8192], 7)
SLIM = O_("slim", 1)
touch_off(vTK, 256 if SLIM else 512, 1, 128, [(sG, 0)], 7)


def late_touch():
    P.vm(f"buffer_load_dword a255, v{vTK}, {srd(SK)}, 0 offen"); P.vm(f"buffer_load_dword a255, v{vTK}, {srd(SV)}, 0 offen")
    if not SLIM:
        P.vm(f"buffer_load_dword a255, v{vT1}, {srd(SW2)}, 0 offen")
        code_touch()


LTG = O_("ltg", 4)
XQ = O_("xq", 3)


w1t = [Tile(SW1, vDW1, k * 4 * 65536, 1024, True, 1 + k, "w1") for k in range(2)]
w2t = [Tile(SW2, vDW2, k * 4 * 65536, 1024, False, 2, ("w2", k)) for k in range(2)]
qt = [Tile(SWQ, vDWQ, (i // 2) * 64 * 8192 + (i % 2) * 128, 8192, True, i % 3, ("wq", i), kp=i // 2, nh=i % 2)
      for i in range(16)] + ([] if SLIM else [None, w2t[0]])
mt = [Tile(SW3, vDW2, kp * 64 * 3584, 3584, False, (2 - i) % 3, ("w3", kp), kp=kp)
      for i, kp in enumerate((4, 5, 6, 7, 0, 1, 2, 3))]
mt += [Tile(SW4, vDW4, kp * 65536 + nh * 128, 1024, False, (2 - 8 - i) % 3, ("w4", i), rows=64 if kp < 3 else 32, kp=kp, nh=nh)
       for i, (nh, kp) in enumerate([(0, 0), (1, 0), (0, 3), (1, 3), (0, 1), (1, 1), (0, 2), (1, 2)])]
ot = [Tile(SWO, vDWO, ((kp & 1) * 256 + (kp >> 1) * 32) * 1024 + nh * 128, 1024, False, (nh * 8 + kp + 2) % 3,
           ("wo", nh, kp), kp=kp, nh=nh, half=128) for nh in range(2) for kp in range(8)]

a = G12


def quad_sum(regs):
    for qp in ("[1,0,3,2]", "[2,3,0,1]"):
        for r in regs: e(f"v_add_f32_dpp v{r}, v{r}, v{r} quad_perm:{qp} row_mask:0xf bank_mask:0xf")


def ln_stats(lo, hi):
    for i in range(lo, hi):
        c = lambda r: f"v{r}" if i >= 2 else 0
        e(f"v_dot2_f32_bf16 v{a + i % 2}, v{XR+i}, s{sONE2}, {c(a + i % 2)}", need=[("x", i // 4)])
        e(f"v_dot2_f32_bf16 v{a + 2 + i % 2}, v{XR+i}, v{XR+i}, {c(a + 2 + i % 2)}")


def unpack(k):
    for i in range(4 * k, 4 * k + 4):
        e(f"v_lshlrev_b32 v{2*i}, 16, v{XR+i}"); e(f"v_and_b32 v{2*i+1}, s{sMSK}, v{XR+i}")


def ln_rest():
    ln_stats(32, 64)
    e(f"v_add_f32 v{a}, v{a}, v{a+1}"); e(f"v_add_f32 v{a+2}, v{a+2}, v{a+3}")
    quad_sum([a, a + 2])
    e(f"v_mul_f32 v{a+4}, {f2u(-1/512)}, v{a}"); e(f"v_mul_f32 v{a+2}, {f2u(1/512)}, v{a+2}")
    e(f"v_fma_f32 v{a}, -v{a+4}, v{a+4}, v{a+2}"); e(f"v_max_f32 v{a}, 0, v{a}")
    e(f"v_add_f32 v{a+1}, {f2u(EPS)}, v{a}")
    e(f"v_rsq_f32 v{vRSTD}, v{a+1}")
    unpack(8)
    e(f"v_mul_f32 v{a+2}, {f2u(QSCALE)}, v{vRSTD}"); e(f"v_mul_f32 v{a+3}, v{a+4}, v{a+2}")
    for k in range(17):
        if k < 16:
            for i in range(4 * k, 4 * k + 4):
                e(f"v_pk_fma_f32 {vr(2*i,2)}, {vr(2*i,2)}, {vr(a+2,2)}, {vr(a+2,2)} op_sel:[0,0,1] op_sel_hi:[1,0,1]")
        if k: P.lds(f"ds_write_b128 v{vWA + (k-1)//8}, {vr(XR+4*k-4,4)} offset:{((k-1)%8)*4096}", "xw")
        if k % 2 == 0 and 9 + k // 2 < 16: unpack(9 + k // 2)
        if k < 16:
            for i in range(4 * k, 4 * k + 4): e(f"v_cvt_pk_bf16_f32 v{XR+i}, v{2*i}, v{2*i+1}")
    e(f"v_mul_f32 v{a}, v{a}, v{vRSTD}"); e(f"v_mul_f32 v{a}, v{a}, v{vRSTD}")
    e(f"v_add_f32 v{a}, {f2u(EPS)}, v{a}")
    e(f"v_rsq_f32 v{vSC1}, v{a}")
    e(f"v_mul_f32 v{vNMEAN}, v{a+4}, v{vRSTD}")
    e(f"v_mul_f32 v{vSC1}, {f2u(1/QSCALE)}, v{vSC1}")
    e(f"v_add_u32 v{vWA}, s{sW1K}, v{vBX}")


if SSET == "ln": stamp(0)
P.put(hop(O_("hop00", 1)))
wq_rest = lambda: P.vm(f"buffer_load_dword a255, v{vTQ}, {srd(SWQ)}, 0 offen") if WQ0 < 512 else None
if LTG == 4: XQ = 4
if XQ == 0: wq_rest()
if LTG == 0: late_touch()
for i in range(8):
    P.vm(f"buffer_load_dwordx4 {vr(XR+32+4*i,4)}, v{G12+13}, {srd(SX)}, 0 offen offset:{i*64}", ("x", 8 + i))
if XQ == 1: wq_rest()
if LTG == 1: late_touch()
if SSET == "ln": stamp(0)
P.put(hop(O_("hop0", 1)))
for k in range(8):
    ln_stats(4 * k, 4 * k + 4); unpack(k)
stamp(2)
if SSET == "ln":
    stamp(0); P.wait([("x", 15)]); stamp(0)
code = cap(ln_rest)
k = O_("lnat", 40)
P.puts(code[:k])
Q0LN = O_("q0ln", 1)
side = [x + y for t in w1t + qt[:Q0LN] for x, y in t.dma()]
if LTG == 4:
    j = O_("ltpos", 24)
    side[j:j] = [[it] for it in cap(wq_rest) + cap(late_touch)]
interleave(code[k:], side, O_("lnev", 9))
if SSET == "ln":
    stamp(0); P.wait(["w1"]); stamp(0)
for r in (vNMEAN, vRSTD, vSC1): P.lds(f"ds_bpermute_b32 v{r}, v{G12+8}, v{r}", "stat")
xb = [It(f"ds_read_b128 {ar(4*ks,4)}, v{vWA} offset:{ks*4096}", "l", ("xb", ks)) for ks in range(16)]
P.puts(xb[:8])
stamp(2)
P.wait(["xw", "w1"]); e("s_barrier")
stamp()
if SSET == "ln": stamp(0)

g1 = lambda h: shared_ops(range(8 * h, 8 * h + 8), 0, lambda nb: vr(G12 + 4 * nb, 4), True, lambda i: 160 + (i % 16) * 4,
                          lambda ks: ar(4 * ks, 4), lambda ks: [("xb", ks)], "g1", 32 * h)
ops = g1(0) + g1(1)
gaps = {g: [] for g in range(64)}
add1 = lambda g, it: gaps[g].append(it)
for i in range(6, 64): gaps[i - 6] += ops[i][1]
for k in range(8): add1(2 + 3 * k, xb[8 + k])
if not Q0LN:
    for k, grp in enumerate(qt[0].dma()): place(add1, 1 + 3 * k, grp, 3 * k - 2)
for k, it in enumerate((cap(wq_rest) if XQ == 3 else []) + (cap(late_touch) if LTG == 3 else [])): add1(O_("ltat", 0) + 2 * k, it)
add1(31, It("s_barrier", "s"))
for k, grp in enumerate(qt[1].dma()): place(add1, 34 + 3 * k, grp, 31 + 3 * k)
ACC = lambda nh, nb, tb: ((nh * 4 + tb) * 4 + nb) * 4
op = gemm(qt, 0, 16, ACC, [], (64, 96), breg=vBX, opening="get")
for k, it in enumerate(op[4:12]): add1(40 + 2 * k, it)
for k, it in enumerate(op[:4] + op[12:]): add1(58 + k // 2, it)
for i in range(6): P.puts(ops[i][1])
P.run_gaps([m for m, _ in ops], gaps, next_need=[op[0].tag, op[4].tag])
stamp()



def q_side():
    x, t, c = G12, XR, XR + 24
    P.put(gate(0, 8))
    e(f"v_mov_b32 v{c}, s{sC1}")
    for i in range(16): e(f"v_mul_f32 v{x+i}, v{x+i}, v{vSC1}", need=["stat"])
    for i in range(16): e(f"v_mul_f32 v{t+i}, v{x+i}, v{x+i}")
    for i in range(16): e(f"v_fma_f32 v{t+i}, v{t+i}, s{sC2}, v{c}")
    for i in range(16): e(f"v_mul_f32 v{t+i}, v{t+i}, v{x+i}")
    for i in range(16): e(f"v_exp_f32 v{t+i}, v{t+i}", k="v")
    for i in range(16): e(f"v_add_f32 v{t+i}, 1.0, v{t+i}")
    for i in range(16): e(f"v_rcp_f32 v{t+i}, v{t+i}", k="v")
    for i in range(16): e(f"v_mul_f32 v{t+i}, v{t+i}, v{x+i}")
    for i in range(8): e(f"v_cvt_pk_bf16_f32 v{t+16+i}, v{t+2*i}, v{t+2*i+1}")
    e(f"v_lshrrev_b32 v{t}, 5, v{vBA}"); e(f"v_and_b32 v{t+1}, 128, v{vLANE}"); e(f"v_lshl_add_u32 v{t}, v{t}, 10, v{t+1}")
    e(f"v_mov_b32 v{t+1}, 0"); e(f"v_mov_b32 v{t+2}, -1"); e(f"v_mov_b32 v{t+3}, -1"); e(f"v_lshrrev_b32 v{t+4}, 1, v{vBA}")
    for nb in range(4): e(f"v_add_u32 v{vAS+nb}, 32768, v{vAS+nb}")
    e(f"v_mov_b32 v{t+5}, s{sONE2}")
    if SPARSE:
        e(f"v_and_b32 v{t+6}, 0x30, v{vBA}"); e(f"v_cmp_eq_u32 vcc, 0, v{t+6}"); e(f"v_cndmask_b32 v{t+5}, 0, v{t+5}, vcc")
    for i in range(4): e(f"v_accvgpr_write_b32 a{aONES+i}, v{t+5}")
    P.put(gate(0, O_("hgate", 13 * 32 + 23)))
    if LTG == 2: late_touch()
    for s in range(2):
        e(f"s_add_u32 s{sSF}, s{sHO}, {WS_H + s*PLANE}")
        P.vm(f"buffer_store_dwordx4 {vr(t+16+4*s,4)}, v{vTOK}, {srd(SWS)}, s{sSF} offen sc1", "hst")
    masked(255, f"buffer_store_dword v{t+1}, v{t}, {srd(SWS)}, s{sFL} offen sc1", "hst")
    masked(0xffff, f"buffer_store_dwordx2 {vr(t+2,2)}, v{t+4}, {srd(SWS)}, s{sSTP} offen sc1", "hst")


fill = cap(q_side)
pending = qt[2].dma()
gemm(qt, 0, 16, ACC, pending, (64, 96), breg=vBX, fill=fill, opening="done", extra={1: [It("s_barrier", "s")]}, dma0=2)
assert not fill and not pending
e("s_barrier")
stamp()


def q_pack():
    for tb in range(4):
        for s in range(4):
            b = ACC(s // 2, 2 * (s % 2), tb)
            for j in range(4): e(f"v_cvt_pk_bf16_f32 v{Q(tb,s)+j}, v{b+2*j}, v{b+2*j+1}")
        for sw in () if QPERM else ("v_permlane32_swap_b32", "v_permlane16_swap_b32"):
            for s in range(4):
                for j in range(2): e(f"{sw} v{Q(tb,s)+j}, v{Q(tb,s)+2+j}")


early = (("K", 0), ("K", 1)) if QPERM else (("K", 0), ("K", 1), ("V", 0))
interleave(cap(q_pack), [x + y for k in early for x, y in kv_dma(*k)], 8 if QPERM else 10)
P.wait(["hst", ("K", 0)]); e("s_barrier")
stamp()

for f in range(8): P.puts(frag_reads(-1, f))
gaps = {g: [] for g in range(64)}
for k, grp in enumerate(kv_dma("V", 0) if QPERM else kv_dma("K", 2)): place(add1, 2 + 4 * k, grp, -1)
P.run_gaps([m for m, _ in qk_mfmas(-1, zero=True)[:16]], gaps)
for f in range(8, 12): P.puts(frag_reads(-1, f))
for qb in range(4): e(f"v_max3_f32 v{NM(qb)}, v{S(0,0,qb)}, v{S(0,0,qb)+1}, v{S(0,0,qb)+2}")
for qb in range(4): e(f"v_max_f32 v{NM(qb)}, v{NM(qb)}, v{S(0,0,qb)+3}")
allreduce("v_max_f32", [NM(qb) for qb in range(4)], [NM(qb) + 1 for qb in range(4)])
for qb in range(4):
    for i in (1, 2, 3, 0): e(f"v_sub_f32 v{NM(qb)+i}, 0, v{NM(qb)}")


def first_half(shift, gates):
    for kb in range(2):
        P.put(gate(0, gates[kb]))
        for qb in range(4):
            b = S(0, kb, qb)
            if shift and not kb:
                for j in range(4): e(f"v_add_f32 v{b+j}, v{b+j}, v{NM(qb)}")
            for j in range(4): e(f"v_exp_f32 v{b+j}, v{b+j}")
        for qb in range(4):
            b = S(0, kb, qb)
            for j in range(2): e(f"v_cvt_pk_bf16_f32 v{PR(0,0,qb)+2*kb+j}, v{b+2*j}, v{b+2*j+1}")


gaps = {g: [] for g in range(64)}
for f in range(12, 16): gaps[16 + (f - 12)] += frag_reads(-1, f)
add1(30, It(None, "s", need=[("K", 1)])); add1(31, It("s_barrier", "s"))
for f in range(4):
    gaps[32 + f] += frag_reads(0, f); issued.add((0, f))
if QPERM:
    for k, grp in enumerate(kv_dma("K", 2) + kv_dma("V", 1) + kv_dma("K", 3)): place(add1, 2 + 4 * k, grp, 4 * k - 2)
else:
    for k, grp in enumerate(kv_dma("V", 1) + kv_dma("K", 3)): place(add1, 3 + 6 * k, grp, 6 * k - 3)
fill = cap(first_half, True, (0, 20))
P.run_gaps([m for m, _ in qk_mfmas(-1)[16:]], gaps, fill)
P.drain(fill)
e(f"v_mov_b32 v{T}, 1"); e(f"s_lshl_b32 s{sSF}, s{sM}, 3")
e(f"s_cmp_lg_u32 s{sW}, 0"); e("s_cbranch_scc1 L_noarr"); e("s_mov_b64 exec, 1")
e(f"buffer_atomic_add v{T}, off, {srd(SDBG)}, s{sSF} sc1"); e("s_mov_b64 exec, -1")
lab("L_noarr")
P.wait([("K", 2), ("V", 0)] + [("F", 0, f) for f in range(4)]); e("s_barrier")
stamp()

p_h = flag_poll("h", SDBG, 0, 8)
p_x = flag_poll("x1", SWS, f"s{sF0}", 1)
p_st = Poll("st", [f"buffer_load_dwordx2 {vr(T+2*j,2)}, v{vPA}, {srd(SWS)}, s{sSTC} offen offset:{128*j} sc1" for j in range(2)],
            [f"v_max3_u32 v{T+4}, v{T}, v{T+1}, v{T+2}", f"v_max_u32 v{T+4}, v{T+4}, v{T+3}",
             f"v_cmp_eq_u32 vcc, -1, v{T+4}"])
p_ph, p_s0, p_s1 = (flag_poll(n, SWS, f"s{r}", 1) for n, r in (("ph", sF1), ("s0", sF2), ("s1", sF3)))


pieces = [(nh, tb, s) for nh in range(2) for tb in range(4) for s in range(2)]


def x_offset(d):
    e(f"v_bfe_u32 v{d}, v{vTOK}, 4, 11"); e(f"v_lshlrev_b32 v{d}, 10, v{d}")
    e(f"v_bfe_u32 v{d+1}, v{vBA}, 8, 2"); e(f"v_lshl_add_u32 v{d}, v{d+1}, 3, v{d}")


def paced(t, g, step, fns):
    for k, fn in enumerate(fns):
        p = g + k * step
        P.put(gate(t + p // 136, p % 136)); fn()


def h_loads(half, t, g):
    e(f"v_bfe_u32 v{T}, v{vTOK}, 4, 11")
    for k, d in enumerate(((-1, 1), (-2, 2))[half]):
        e(f"v_add_u32 v{T+1}, {d}, v{T}"); e(f"v_cmp_gt_u32 vcc, 0x800, v{T+1}")
        e(f"v_add_u32 v{T+1}, {16*d}, v{vTOK}"); e(f"v_mov_b32 v{T+2+k}, 0x7f000000")
        e(f"v_cndmask_b32 v{T+2+k}, v{T+2+k}, v{T+1}, vcc")

    def one(ks):
        e(f"s_mov_b32 s{sSF}, {WS_H + ks*PLANE}")
        P.vm(f"buffer_load_dwordx4 {ar(HB(ks),4)}, v{T + 2 + (ks%8)//4}, {srd(SWS)}, s{sSF} offen sc1", ("h", ks))
    paced(t, g, O_("hstep", 18), [lambda ks=ks: one(ks) for ks in range(8 * half, 8 * half + 8)])


def side1():
    if SLIM:
        code_touch(); P.vm(f"buffer_load_dword a255, v{vT1}, {srd(SW2)}, 0 offen")
    P.put(gate(0, 40))
    x_offset(T + 5); e(f"s_lshl_b32 s{sSF}, s{sG}, 7")
    for nb in range(4):
        P.vm(f"buffer_load_dwordx2 {vr(T+6+2*nb,2)}, v{T+5}, {srd(SX)}, s{sSF} offen offset:{nb*32}", "xs")
    e(f"v_lshrrev_b32 v{T}, 4, v{vBA}"); e(f"v_min_u32 v{T}, 2, v{T}"); e(f"v_add_u32 v{T}, s{sM}, v{T}")
    e(f"v_add_u32 v{T}, -1, v{T}"); e(f"v_med3_i32 v{T}, v{T}, 0, 31"); e(f"v_lshlrev_b32 v{vPA}, 3, v{T}")
    if O_("kvt1", 0):
        touch_off(T, (T0 - 5) * 128, 1, 128, [(sG, 0), 5 * 16384], T + 1)
        P.vm(f"buffer_load_dword a255, v{T}, {srd(SK)}, 0 offen"); P.vm(f"buffer_load_dword a255, v{T}, {srd(SV)}, 0 offen")
    P.put(gate(2, 0))
    p_h.issue()
    for i in range(8):
        d = T + 2 * (i % 2)
        e(f"v_lshlrev_b32 v{d}, 16, v{T+6+i}", need=["xs"]); e(f"v_and_b32 v{d+1}, 0xffff0000, v{T+6+i}")
        for h in range(2): e(f"v_fma_f32 v{d+h}, v{d+h}, v{vRSTD}, v{vNMEAN}")
        for h in range(2): e(f"v_accvgpr_write_b32 a{aG2+2*i+h}, v{d+h}")
    P.put(gate(3, 0))
    p_h.check(); h_loads(0, 3, 30)
    P.put(gate(6, 0))
    h_loads(1, 6, 24)
    e(f"s_and_b32 s{sT+1}, s{sG}, 1"); sum_terms(sT, (sG, 448), (sW, 128))
    e(f"s_lshl_b32 s{sT+1}, s{sT+1}, 6"); e(f"s_sub_u32 s{sT}, s{sT}, s{sT+1}")
    dma_voff(vDW2, 3584, False, f"s{sT}", T)
    if O_("w3z", 1):
        e(f"s_lshl_b32 s{sT}, s{sW}, 3"); e(f"v_add_u32 v{T+1}, s{sT}, v{T+1}")
        e(f"s_lshr_b32 s{sT+1}, s{sT+1}, 4"); e(f"v_subrev_u32 v{T+1}, s{sT+1}, v{T+1}")
        e(f"v_cmp_gt_u32 vcc, 28, v{T+1}"); e(f"v_mov_b32 v{T}, 0x7f000000"); e(f"v_cndmask_b32 v{vDW2}, v{T}, v{vDW2}, vcc")
    P.put(gate(8, 164))
    m, q = vRSTD, vNMEAN
    for i in range(16): e(f"v_accvgpr_read_b32 v{T+i}, a{aG2+i}")
    e(f"v_add_f32 v{m}, v{T}, v{T+1}"); e(f"v_mul_f32 v{q}, v{T}, v{T}")
    for i in range(1, 16):
        e(f"v_fmac_f32 v{q}, v{T+i}, v{T+i}")
        if i > 1: e(f"v_add_f32 v{m}, v{m}, v{T+i}")
    allreduce("v_add_f32", [m, q], [T, T + 1], k="v")
    e(f"v_lshrrev_b32 v{T}, 1, v{vBA}")
    masked(0xffff, f"buffer_store_dwordx2 {vr(m,2)}, v{T}, {srd(SWS)}, s{sSTP} offen sc1")
    code_touch()
    e(f"v_and_b32 v{T}, 0xf0, v{vBA}"); e(f"v_lshrrev_b32 v{T}, 1, v{T}"); e(f"v_and_b32 v{T+1}, 0x300, v{vBA}")
    e(f"v_add_u32 v{vPA}, v{T}, v{T+1}")
    P.put(gate(12, 0))
    p_st.issue()
    P.put(gate(13, 0))
    p_st.check()
    e(f"v_add_f32 v{q}, v{T}, v{T+2}"); e(f"v_add_f32 v{m}, v{T+1}, v{T+3}")
    allreduce("v_add_f32", [m, q], [T, T + 1], k="v")
    e(f"v_mul_f32 v{q}, {f2u(1/512)}, v{q}"); e(f"v_mul_f32 v{m}, {f2u(1/512)}, v{m}")
    e(f"v_fma_f32 v{m}, -v{q}, v{q}, v{m}"); e(f"v_max_f32 v{m}, 0, v{m}"); e(f"v_add_f32 v{m}, {f2u(EPS)}, v{m}")
    e(f"v_rsq_f32 v{T+16}, v{m}", k="v")
    for i in range(15): e(f"v_accvgpr_read_b32 v{T+i}, a{aG2+i}")
    e(f"v_mul_f32 v{m}, v{m}, v{T+16}")
    e(f"v_mul_f32 v{T+15}, v{q}, v{T+16}")
    for i in range(15): e(f"v_fma_f32 v{T+i}, v{T+i}, v{T+16}, -v{T+15}")
    e(f"v_accvgpr_read_b32 v{T+15}, a{aG2+15}"); e(f"v_sub_f32 v{T+15}, v{T+15}, v{q}"); e(f"v_mul_f32 v{T+15}, v{T+15}, v{T+16}")
    for i in range(8): e(f"v_cvt_pk_bf16_f32 v{T+i}, v{T+2*i}, v{T+2*i+1}")
    for s in range(2):
        e(f"s_add_u32 s{sSF}, s{sHO}, {WS_X1 + s*PLANE}")
        P.vm(f"buffer_store_dwordx4 {vr(T+4*s,4)}, v{vTOK}, {srd(SWS)}, s{sSF} offen sc1", "x1st")
    e(f"v_bfe_u32 v{vPA}, v{vBA}, 4, 3"); e(f"v_lshlrev_b32 v{vPA}, 2, v{vPA}")
    P.put(gate(15, 70))
    set_flags(0, 1, ["x1st"])
    touch_off(T, 512, 4, 3584, [(sG, 448)], T + 1)
    P.vm(f"buffer_load_dword a255, v{T}, {srd(SW3)}, 0 offen")
    touch_off(T, 1792, 1, 128, [(sG, 224 * 1024)], T + 1)
    P.vm(f"buffer_load_dword a255, v{T}, {srd(SW4)}, 0 offen")
    sum_terms(sT, (sG, 224 * 1024), (sW, 256)); dma_voff(vDW4, 1024, False, f"s{sT}", T)
    sum_terms(sT, (sG, (512 - 224) * 1024)); e(f"v_add_u32 v{vDWO}, s{sT}, v{vDW4}")
    e(f"s_sub_u32 s{sT}, s{sRING}, {RING + 65536}")
    for nb in range(4):
        e(f"v_add_u32 v{vAA+nb}, s{sT}, v{vAS+nb}"); e(f"v_add_u32 v{vAA2+nb}, 0x10000, v{vAA+nb}")
    P.put(gate(17, 60))
    p_x.issue(); code_touch()
    P.put(gate(18, 60))
    p_x.check()
    if O_("xnt", 1):
        e(f"v_bfe_u32 v{T+8}, v{vBA}, 5, 2"); e(f"v_and_b32 v{T+9}, 0x1ff00, v{vTOK}"); e(f"v_lshl_add_u32 v{T+8}, v{T+8}, 17, v{T+9}")
        e(f"v_and_b32 v{T+9}, 128, v{vLANE}"); e(f"v_add_u32 v{T+8}, v{T+8}, v{T+9}"); e(f"s_mov_b32 s{sSF}, {WS_X1 + 4*PLANE}")
        P.vm(f"buffer_load_dword a255, v{T+8}, {srd(SWS)}, s{sSF} offen sc1")
    if O_("kvt", 1):
        touch_off(T + 8, (32 - T0) * 128, 1, 128, [(sG, 0), T0 * 16384], T + 9)
        P.vm(f"buffer_load_dword a255, v{T+8}, {srd(SK)}, 0 offen"); P.vm(f"buffer_load_dword a255, v{T+8}, {srd(SV)}, 0 offen")


def x1n_dma(j):
    return [([It(f"s_add_u32 m0, s{sW1K}, {ks*4096}", "s"), It(f"s_mov_b32 s{sSO}, {WS_X1 + ks*PLANE}", "s")],
             [It(f"buffer_load_dwordx4 v{vTOK}, {srd(SWS)}, s{sSO} offen sc1 lds", "g", ("xn", j))])
            for ks in range(4 * j, 4 * j + 4)]


def run_tiles(t0, t1, fill, over, more, endw, ins, must, xtra={}):
    end = T0 - 1 if t0 < T0 else 31
    for t in range(t0, t1):
        groups = (kv_dma("K", t + 4) if t + 4 <= end else []) + (kv_dma("V", t + 3) if t + 3 <= end else [])
        groups = over.get(t, groups) + more.get(t, [])
        attn_iter(t, groups, fill, endw.get(t, ()), ins=ins.get(t), extra=xtra.get(t))
        head = fill[0].at if fill else (99, 0)
        if O_("showfill", 0): print(t, len(fill), head, file=sys.stderr)
        if t in must: assert head and head[0] >= must[t], (t, head, len(fill))


g2 = lambda h: shared_ops(range(8 * h, 8 * h + 8), 8 * h, lambda nb: ar(aG2 + 4 * nb, 4), False, GA,
                          lambda ks: ar(HB(ks), 4), lambda ks: [("h", ks)], f"g2{h}")
op = gemm(mt, 0, 8, ACC, [], (160, 212), opening="get")
opx = {44 + 2 * k: [it] for k, it in enumerate(op[4:12])}
opx.update({62 + k: [it] for k, it in enumerate(op[:4] + op[12:])})
fill = cap(side1)
kv = lambda *a: [g for k in a for g in kv_dma(k[0], int(k[1:]))]
run_tiles(0, T0, fill, {0: kv("V2", "K4", "V3")},
          {1: w2t[0].dma() if SLIM else [], 6: w2t[1].dma(), 17: mt[0].dma(), 19: x1n_dma(2) + x1n_dma(3),
           20: x1n_dma(0) + mt[1].dma(), 21: x1n_dma(1)},
          {3: [("w2", 0)], 7: [("w2", 1)], 20: [("xn", 3)]}, {5: g2(0), 8: g2(1)}, {4: 6, 7: 8, 16: 17, 18: 99}, {T0 - 1: opx})
stamp()

extra = {}
add = lambda g, its: extra.setdefault(g, []).extend(its)
add(1, [It("s_barrier", "s")])
add(2 * 32 + 26, [It(None, "s", need=[("xn", 1)])])
add(2 * 32 + 27, [It("s_barrier", "s")])
add(4 * 32 + 6, [It(f"s_lshl_b32 s{sT}, s{sKS}, 12", "s")])
add(4 * 32 + 7, [It(f"s_add_u32 s{sT}, s{sT}, s{sW1K}", "s"), It(f"v_add_u32 v{T+9}, s{sT}, v{vBA}", "v")])
for j in range(2):
    add(7 * 32 + 3 + 4 * j, [It(f"ds_read_b128 {ar(aXN+4*j,4)}, v{T+9} offset:{j*8192}", "l", "xnr")])


def h3_addr():
    P.put(gate(0, 7 * 32 + 10))
    e(f"s_and_b32 s{sT+1}, s{sG}, 1"); e(f"s_lshl_b32 s{sT}, s{sW}, 1"); e(f"s_sub_u32 s{sT}, s{sT}, s{sT+1}")
    for s in range(2):
        e(f"s_and_b32 s{sT+1}, s{sT}, 7"); e(f"s_lshl_b32 s{sT+1}, s{sT+1}, 12"); e(f"v_add_u32 v{T+8+s}, s{sT+1}, v{vBA}")
        e(f"s_add_u32 s{sT}, s{sT}, 1")


fill = cap(h3_addr)
pending = mt[2].dma()
gemm(mt, 0, 8, ACC, pending, (160, 212), extra=extra, fill=fill, opening="done", dma0=2)
P.drain(fill)
P.wait(["xnr"]); e("s_barrier")
stamp()


def mlp_act():
    for tb in range(4):
        gelu(16 * tb, 16, 64 + 16 * tb, lambda i: 16 * tb + i, first=tb == 0)
        for s in range(2):
            P.lds(f"ds_write_b128 v{T+8+s}, {vr(16*tb + 4*s,4)} offset:{tb*1024}", "hw")


interleave(cap(mlp_act), [x + y for x, y in pending], 20)
pending = []
if SSET == "mlp": stamp(0)
gemm_pre(mt, 8)
P.wait(["hw"]); e("s_barrier")
if SSET == "mlp": stamp(0)
stamp()
class Extra:
    def __init__(self, groups): self.groups = groups
    def dma(self): return self.groups


def ph_pack(ks):
    for k in ks:
        pack(ACC, *pieces[k])
        for j in range(4): e(f"v_accvgpr_write_b32 a{PHA(k)+j}, v{ACC(pieces[k][0], 2*pieces[k][2], pieces[k][1])+j}")


fill = [gate(0, 180)] + cap(ph_pack, (0, 2, 4, 6)) + [gate(0, 196)] + cap(ph_pack, (1, 3, 5, 7))
gemm(mt + [Extra(kv_dma("K", T0) + kv_dma("K", T0 + 1))], 8, 8, ACC, pending, (160, 212), fill=fill)
assert not pending
P.wait([("K", T0 + 1)]); e("s_barrier")
if SSET == "mlp": stamp(0)
stamp()



for f in range(8): P.puts(frag_reads(T0 - 1, f))
P.drain(fill)
ph_pack(range(8, 10))
gaps = {g: [] for g in range(64)}
for f in range(8, 16): gaps[16 * (f // 4 - 1) + f % 4] += frag_reads(T0 - 1, f)
for f in range(4):
    gaps[48 + f] += frag_reads(T0, f); issued.add((T0, f))
for k, grp in enumerate(kv_dma("V", T0) + kv_dma("K", T0 + 2)): place(add1, 2 + 4 * k, grp, 4 * k - 2)
fill = cap(ph_pack, range(10, 14)) + cap(first_half, False, (20, 36)) + cap(ph_pack, range(14, 16))
P.run_gaps([m for m, _ in qk_mfmas(T0 - 1)], gaps, fill)
P.drain(fill)
if SSET == "mlp": stamp(0)
P.wait([("K", T0 + 2), ("V", T0)] + [("F", T0, f) for f in range(4)]); e("s_barrier")
if SSET == "mlp": stamp(0)
stamp()


XF = [244, 245, 246, 247, 248, 249, T + 10, T + 11]


def side2():
    paced(T0, 60, O_("sstep", 22), [lambda k=k: store_piece(ar(PHA(k), 4), WS_PH, *pieces[k], "phs") for k in range(16)])
    touch_off(T + 8, 4096, 1, 128, [(sG, 1 << 19)], T + 9)
    P.vm(f"buffer_load_dword a255, v{T+8}, {srd(SWO)}, 0 offen")
    code_touch()
    P.put(gate(26, 0)); set_flags(1, 2, ["phs"])
    x_offset(T + 8); e(f"s_lshl_b32 s{sT}, s{sKS}, 6")
    paced(26, 50, 20, [lambda i=i: P.vm(f"buffer_load_dwordx2 {vr(XF[2*i],2)}, v{T+8}, {srd(SX)}, s{sT} offen "
                                        f"offset:{(i//2)*128 + (i%2)*32}", "xf") for i in range(4)])
    P.put(gate(27, 40)); p_ph.issue()
    P.put(gate(28, 20)); p_ph.check()
    paced(28, 30, O_("lstep", 22), [lambda k=k: load_piece(WS_PH, ar(PHA(k), 4), k // 2, k % 2, "phl") for k in range(16)])
    e(f"v_add_u32 v{T+8}, s{sW4K}, v{vBA}")


fill = cap(side2)
run_tiles(T0, 31, fill, {T0: kv(f"V{T0+1}", f"K{T0+3}", f"K{T0+4}", f"V{T0+2}"), T0 + 1: kv(f"K{T0+5}", f"V{T0+3}", f"V{T0+4}")}, {O_("wo0", 29): ot[0].dma(), 30: ot[1].dma()}, {}, {}, {30: 99})


def o_norm(s, qbs, packed):
    for qb in qbs:
        b = 208 + 8 * (qb % 2) if s >= 2 else 32 + 8 * qb
        for h in range(2):
            for j in range(4): e(f"v_accvgpr_read_b32 v{b+4*h+j}, a{O(2*s+h,qb)+j}")
        if packed:
            for j in range(0, 8, 2): e(f"v_pk_mul_f32 {vr(b+j,2)}, {vr(b+j,2)}, {vr(RINV(qb),2)} op_sel_hi:[1,0]")
        else:
            for j in range(8): e(f"v_mul_f32 v{b+j}, v{b+j}, v{RINV(qb)}")
        for j in range(4): e(f"v_cvt_pk_bf16_f32 v{OP(s,qb)+j}, v{b+2*j}, v{b+2*j+1}")
        P.lds(f"ds_write_b128 v{T+8}, {vr(OP(s,qb),4)} offset:{s*16384 + qb*1024}", ("ow", s))


extra = {}
chk = [It(f"v_accvgpr_read_b32 v{vR+qb}, a{LACC(qb)}", "v") for qb in range(4)]
chk += [It(f"v_add_f32 v{vR+5}, v{vR}, v{vR+1}", "v"),
        It(f"v_add_f32 v{vR+4}, v{vR+2}, v{vR+3}", "v"), It(f"v_add_f32 v{vR+4}, v{vR+4}, v{vR+5}", "v"),
        It(f"v_cmp_nle_f32 vcc, v{vR+4}, v{vR+6}", "v"),
        It(f"v_mov_b32 v{vR+5}, s{sT+1}", "v"),
        It(f"s_cmp_lg_u64 vcc, 0\n    s_cselect_b32 s{sT}, 1, 0", "v"),
        It(f"v_mov_b32 v{vR+4}, s{sT}", "v")]
add(38, [It(f"s_lshl_b32 s{sT+1}, s{sW}, 2", "s")])
add(39, [It(f"s_add_u32 s{sT+1}, s{sT+1}, {RING + 32768}", "s")])
add(40, [It(f"v_mov_b32 v{vR+6}, {f2u(0.0 if FORCE_REDO else 2.0**40)}", "v")])
for i, it in enumerate(chk): add(44 + i // 2, [it])
add(51, [It(f"ds_write_b32 v{vR+5}, v{vR+4}", "l", "vote")])
for qb in range(4): add(52 + qb, [It(f"v_rcp_f32 v{RINV(qb)}, v{vR+qb}", "x")])
add(57, [It(f"v_mov_b32 v{vR+5}, {RING + 32768}", "v")])
add(58, [It(None, "s", need=["vote"])])
add(59, [It("s_barrier", "s")])
add(60, [It(f"ds_read_b128 {vr(vR,4)}, v{vR+5}", "l", "votes")])
add(68, [It(f"v_or3_b32 v{vR}, v{vR}, v{vR+1}, v{vR+2}", "v", need=["votes"]), It(f"v_or_b32 v{vR}, v{vR}, v{vR+3}", "v")])
add(69, [It(f"v_readfirstlane_b32 s{sT}, v{vR}", "v")])
fill = [gate(31, 57)] + cap(o_norm, 0, [0], False)
attn_iter(31, [], fill, extra=extra)
P.drain(fill)
e(f"s_cmp_lg_u32 s{sT}, 0"); e("s_cbranch_scc1 L_redo")
lab("L_att_done")
stamp()

OEX = O_("oex", 4)
o_norm(0, [1, 2, 3], True)
for s in range(1, OEX): o_norm(s, range(4), True)
if SSET == "o": stamp(0)
gemm_pre(ot, 0)
P.wait([("ow", OEX - 1)]); e("s_barrier")
if SSET == "o": stamp(0)
stamp()
OACC = lambda nh, nb, tb: 64 + ACC(nh, nb, tb)
PSR = lambda g, nh: nh * 32 + g * 4


def o_side():
    for s in range(OEX, 4): o_norm(s, range(4), False)
    P.put(gate(0, 32 * 8 + 4))
    for p in pieces[:8]: pack(OACC, *p)
    for p, g in zip(pieces, [int(x) for x in opt.get("s0g", "440,448,456,464,472,480,488,496").split(",")]):
        P.put(gate(0, g))
        store_piece(vr(OACC(0, 2 * p[2], p[1]), 4), WS_PS, *p, "s0s")


extra = {}
for s, g in ((2, 3 * 32 - 2), (3, 5 * 32 - 2)):
    if s >= OEX:
        add(g, [It(None, "s", need=[("ow", s)])]); add(g + 1, [It("s_barrier", "s")])
fill = cap(o_side)
pending = ot[2].dma()
gemm(ot, 0, 16, OACC, pending, (0, 32), extra=extra, fill=fill, over=O_("over", 0))
P.drain(fill)
stamp()
for k, p in enumerate(pieces[8:]):
    pack(OACC, *p); store_piece(vr(OACC(1, 2 * p[2], p[1]), 4), WS_PS, *p, "s1s")
    if k == O_("f0k", 3): set_flags(2, 2, ["s0s"])
vY, vS, vG, vX = 64, 80, 96, 112
for i in range(8): e(f"v_accvgpr_read_b32 v{vG+i}, a{aXN+i}")
for i in range(8):
    e(f"v_lshlrev_b32 v{vY+2*i}, 16, v{vG+i}"); e(f"v_and_b32 v{vY+2*i+1}, 0xffff0000, v{vG+i}")
for i in range(16): e(f"v_fma_f32 v{vY+i}, v{vY+i}, v{vRSTD}, v{vNMEAN}")
for k in range(17):
    if k < 16:
        for j in range(4): e(f"v_accvgpr_read_b32 v{vG + 4*(k%2) + j}, a{PHA(k)+j}", need=[("phl", k // 2, k % 2)])
    if k: add_piece(vY + 8 * ((k - 1) % 2), vG + 4 * ((k - 1) % 2), False, ())
p_s0.issue()
for i in range(16): e(f"v_mul_f32 v{vG+i}, s{sNL2E}, v{vY+i}")
for i in range(16): e(f"v_exp_f32 v{vG+i}, v{vG+i}")
for i in range(0, 16, 2): e(f"v_pk_add_f32 {vr(vG+i,2)}, {vr(vG+i,2)}, 1.0 op_sel_hi:[1,0]")
for i in range(16): e(f"v_rcp_f32 v{vG+i}, v{vG+i}")
for i in range(0, 16, 2): e(f"v_pk_mul_f32 {vr(vG+i,2)}, {vr(vG+i,2)}, {vr(vY+i,2)}")
for i in range(8):
    e(f"v_lshlrev_b32 v{vX+2*i}, 16, v{XF[i]}", need=["xf"]); e(f"v_and_b32 v{vX+2*i+1}, 0xffff0000, v{XF[i]}")
e(f"v_bfe_u32 v200, v{vTOK}, 4, 11"); e("v_lshlrev_b32 v200, 10, v200"); e(f"v_bfe_u32 v201, v{vBA}, 8, 2")
e("v_lshl_add_u32 v200, v201, 4, v200"); e(f"s_lshl_b32 s{sT+1}, s{sKS}, 6")
set_flags(3, 2, ["s1s"])
stamp(2)
p_s0.check()
for g in range(8): load_piece(WS_PS, vr(PSR(g, 0), 4), g, 0, "psl")
p_s1.issue()


def finish(nh):
    for g in range(8): add_piece(vS + 8 * nh, PSR(g, nh), g == 0, [("psl", g, nh)])
    for i in range(8 * nh, 8 * nh + 8, 2): e(f"v_pk_fma_f32 {vr(vG+i,2)}, {vr(vG+i,2)}, {vr(vS+i,2)}, {vr(vX+i,2)}")
    d = 204 + 4 * nh
    for i in range(4): e(f"v_cvt_pk_bf16_f32 v{d+i}, v{vG+8*nh+2*i}, v{vG+8*nh+2*i+1}")
    for sw in ("v_permlane32_swap_b32", "v_permlane16_swap_b32"):
        for j in range(2): e(f"{sw} v{d+j}, v{d+2+j}")
    P.vm(f"buffer_store_dwordx4 {vr(d,4)}, v200, {srd(SOUT)}, s{sT+1} offen offset:{nh*128} {opt.get('outcf', '')}")


p_s1.check()
stamp()
for g in range(8): load_piece(WS_PS, vr(PSR(g, 1), 4), g, 1, "psl")
finish(0)
finish(1)
if AMP:
    P.wait_all(); stamp()
    e(f"s_sub_u32 s{sST}, s{sST+2}, s{sST}")
    e(f"s_lshr_b32 s{sST}, s{sST}, 5" if AMP[3] else f"s_lshl_b32 s{sST}, s{sST}, {AMP[2]}")
    e(f"s_memrealtime {sr(sST+2,2)}"); e("s_waitcnt lgkmcnt(0)")
    lab("L_amp")
    e(f"s_memrealtime {sr(sST+4,2)}"); e("s_waitcnt lgkmcnt(0)")
    e(f"s_sub_u32 s{sST+4}, s{sST+4}, s{sST+2}"); e(f"s_cmp_lt_u32 s{sST+4}, s{sST}"); e("s_cbranch_scc1 L_amp")
if STAMP:
    P.wait_all()
    stamp()
    e(f"s_lshl_b32 s{sT}, s2, 2"); e(f"s_add_u32 s{sT}, s{sT}, s{sW}"); e(f"s_lshl_b32 s{sT}, s{sT}, 8")
    e(f"s_add_u32 s{sT}, s{sT}, {WS_ST}"); e(f"v_lshrrev_b32 v0, 2, v{vBA}")
    P.vm(f"buffer_store_dword v{vSTAMP}, v0, {srd(SWS)}, s{sT} offen")
e("s_endpgm")

lab("L_side")
for p in slow_paths:
    lab(f"L_slow_{p.name}")
    e("s_sleep 1")
    for l in p.loads: e(l)
    e(f"s_add_u32 s{sSPIN}, s{sSPIN}, 1")
    e("s_waitcnt vmcnt(0)")
    for t in p.tests: e(t)
    e(f"s_cmp_gt_u32 s{sSPIN}, 0x200000"); e(f"s_cbranch_scc1 L_back_{p.name}")
    e(f"s_cbranch_vccnz L_slow_{p.name}")
    e(f"s_branch L_back_{p.name}")

lab("L_redo")
P.lq, P.vq = [], []
for s in range(4): e(f"v_add_u32 v{KA(s)}, 49152, v{KA(s)}")
for qb in range(4): e(f"v_mov_b32 v{NM(qb)}, 0xff800000")


def redo_tile(kinds, zero):
    P.used = set()
    P.wait_all(); e("s_barrier")
    for kind, lds in kinds: flush(kv_dma(kind, 0, lds=lds, so=f"s{sCNT}"))
    P.wait_all(); e("s_barrier")
    mf = [m for m, _ in qk_mfmas(2, zero=zero)]
    for half in range(2):
        for f in range(8 * half, 8 * half + 8): P.puts(frag_reads(2, f))
        P.puts(mf[32 * half:32 * half + 32])


e(f"s_mov_b32 s{sCNT}, 0")
lab("L_rmax")
redo_tile([("K", 98304)], True)
for qb in range(4):
    regs = [S(1, kb, qb) + i for kb in range(4) for i in range(4)]
    for i in range(0, 16, 2): e(f"v_max3_f32 v{NM(qb)}, v{NM(qb)}, v{regs[i]}, v{regs[i+1]}")
e(f"s_add_u32 s{sCNT}, s{sCNT}, 16384"); e(f"s_cmp_lt_u32 s{sCNT}, 0x80000"); e("s_cbranch_scc1 L_rmax")
allreduce("v_max_f32", [NM(qb) for qb in range(4)], [NM(qb) + 1 for qb in range(4)])
for qb in range(4):
    for i in (1, 2, 3, 0): e(f"v_sub_f32 v{NM(qb)+i}, 0, v{NM(qb)}")
for i in list(range(128)) + list(range(192, 208)): e(f"v_accvgpr_write_b32 a{i}, 0")
e(f"s_mov_b32 s{sCNT}, 0")
lab("L_rpv")
redo_tile([("K", 98304), ("V", 114688)], False)
for half in range(2):
    ex, post = sm_stream(1, half)
    P.puts(ex); P.puts([x for p in post for x in p])
mf = [m for m, _ in pv_mfmas(3)]
for half in range(2):
    for f in range(16 + 8 * half, 24 + 8 * half): P.puts(frag_reads(3, f))
    P.puts(mf[36 * half:36 * half + 36])
e(f"s_add_u32 s{sCNT}, s{sCNT}, 16384"); e(f"s_cmp_lt_u32 s{sCNT}, 0x80000"); e("s_cbranch_scc1 L_rpv")
for qb in range(4): e(f"v_accvgpr_read_b32 v{vR+qb}, a{LACC(qb)}")
for qb in range(4): e(f"v_rcp_f32 v{RINV(qb)}, v{vR+qb}")
o_norm(0, [0], False)
e("s_branch L_att_done")
lab("L_end")
e("s_endpgm")
P.L += ['.section .rodata,"a"', ".p2align 6", f".amdhsa_kernel {NAME}",
        "  .amdhsa_next_free_vgpr 512", "  .amdhsa_next_free_sgpr 102", "  .amdhsa_accum_offset 256",
        "  .amdhsa_group_segment_fixed_size 0", "  .amdhsa_kernarg_size 104", "  .amdhsa_user_sgpr_count 2",
        "  .amdhsa_user_sgpr_kernarg_segment_ptr 1", "  .amdhsa_system_sgpr_workgroup_id_x 1",
        "  .amdhsa_float_denorm_mode_32 3", ".end_amdhsa_kernel"]
lines = "\n".join(P.L).split("\n")
if opt.get("tcf"): lines = [l + " " + opt["tcf"] if "_load_dword a255" in l and "sc1" not in l and ", off" not in l else l for l in lines]
lines, added = fix_hazards(lines)
nhop = 0
if HOP: lines, nhop = add_page_hops(lines, "L_main", "L_side", sW)
lines = [l for l in lines if "@hop" not in l]
if O_("short", 1): lines = compress(lines)
text = "\n".join(lines) + "\n"
open(OUT_PATH, "w").write(text)
print(f"{OUT_PATH}: {len(lines)} lines, {len(text)} bytes, {added} wait states padded, {nstamp[0]} stamps, {nhop} hops", file=sys.stderr)
```

```python
import math
import struct
import sys
from asmlib import *

OUT_PATH = sys.argv[1]
opt = dict(a.split("=") for a in sys.argv[2:])
O_ = lambda k, d: int(opt.get(k, d))
STAMP = O_("stamp", 0)
SSET = opt.get("sset", "")
FORCE_REDO = O_("redo", 0)
QPERM = O_("qperm", 1)
PA = O_("pa", 1)
SPARSE = O_("sparse", 1)
AHEAD = O_("ahead", 10)
AMP = [int(x) for x in opt["amp"].split(",")] if "amp" in opt else None

NAME = "recurrent_scan__gqa_block_cached__mixer_s_mlp__prompt_kernel"
MF = "v_mfma_f32_16x16x32_bf16"
f2u = lambda x: "0x%08x" % struct.unpack("<I", struct.pack("<f", x))[0]
LOG2E = math.log2(math.e)
QSCALE = LOG2E / math.sqrt(128.0)
GC1 = -2.0 * math.sqrt(2.0 / math.pi) * LOG2E
GC2 = GC1 * 0.044715
EPS = 1e-5

SX, SK, SV, SWS, SWQ, SWO, SW1, SW2, SW3, SW4, SOUT, SDBG = range(4, 52, 4)
sG, sM, sW = 52, 53, 54
sT = 55
sW1K, sW4K, sRING, sSO = 60, 61, 62, 63
sSF, sCNT, sSPIN, sHO, sPP, sPC, sFL, sF0, sF1, sSTP, sSTC = range(64, 75)
sLO, sHI, sONE2, sC1, sC2, sNL2E, sF2, sMSK, sKS, sF3, sTB, sSTF, sXF = range(75, 88)
sST = 92
srd = lambda b: sr(b, 4)

WS_H, WS_X1, WS_PS, WS_PH, WS_FL, WS_SS, WS_ST = 0, 0x200000, 0x400000, 0x1400000, 0x2400000, 0x2500000, 0x4000000
PLANE = 131072

vBA, vTOK, vNMEAN, vRSTD, vLANE, vSTAMP, vCODE, vAS, vDW2 = 255, 254, 253, 252, 251, 250, 248, 244, 243
T = 226
vAA, vAA2 = T, T + 4
vBX, vWA, vSC1, vDWQ, vDW1 = T + 8, T + 9, T + 12, T + 14, T + 15
vPA, vPOLL, vONE, vDW4, vDWO = T + 16, T + 15, T + 14, T + 13, T + 12
vTC = T + 10
XR = 128
G12 = 192
S = lambda buf, kb, qb: buf * 64 + ((kb >> 1) * 4 + qb) * 8 + (kb & 1) * 4
PR = lambda buf, ks, qb: buf * 64 + (ks * 4 + qb) * 8
Q = lambda qb, s: 128 + (qb * 4 + s) * 4
NM = lambda qb: 192 + 4 * qb
KA = lambda s: 208 + s
VA = lambda db: 212 + db
KG = lambda i: 220 + i
VG = lambda i: 224 + (i & 1)
vR = NM(0)
O = lambda db, qb: (db * 4 + qb) * 4
FR = lambda f: 128 + (f % 8) * 4
HB = lambda ks: 160 + (ks % 8) * 4
LACC = lambda qb: 192 + 4 * qb
aONES, aG2, aXN = 208, 212, 244
GA = lambda i: 228 + (i % 4) * 4
AF = lambda f: 128 + (f % 8) * 4
PHA = lambda k: (160, 212)[k // 8] + (k % 8) * 4
T0 = 22
RING, VOFF = 65536, 65536

P = Prog()
e, lab, cap = P.e, P.lab, P.capture
slow_paths = []
nstamp = [0]


JIT = O_("jitter", 0)
njit = [0]


def jitter():
    i = njit[0]; njit[0] += 1
    e(f"s_memrealtime {sr(96,2)}"); P.wait_all(vm=False)
    e(f"s_lshr_b32 s96, s96, 14"); e(f"s_lshl_b32 s97, s2, 2" if JIT & 1 else "s_mov_b32 s97, s2")
    if JIT & 1: e(f"s_add_u32 s97, s97, s{sW}")
    e(f"s_add_u32 s96, s96, s97"); e(f"s_add_u32 s96, s96, {i * 7919 + 13}"); e("s_mul_i32 s96, s96, 0x9e3779b1")
    e("s_mov_b32 s98, s96")
    e(f"s_lshr_b32 s96, s96, {32 - (JIT >> 1)}")
    lab(f"L_jit{i}")
    e("s_sleep 8"); e("s_sub_u32 s96, s96, 1"); e(f"s_cbranch_scc0 L_jit{i}")


def jitter_item():
    i = njit[0]; njit[0] += 1
    return It(f"s_mul_i32 s98, s98, 0x41c64e6d\n    s_add_u32 s98, s98, 12345\n    s_lshr_b32 s99, s98, 27\n"
              f"    s_sub_u32 s99, s99, 24\n    s_cbranch_scc1 L_jx{i}\nL_jw{i}:\n    s_sleep {O_('jit2', 0)}\n"
              f"    s_sub_u32 s99, s99, 1\n    s_cbranch_scc0 L_jw{i}\nL_jx{i}:", "s")


def stamp(level=1):
    if JIT and level == 1: jitter()
    if AMP and level == 1:
        i = nstamp[0]; nstamp[0] += 1
        if i in AMP[:2]:
            e(f"{'s_memtime' if AMP[3] else 's_memrealtime'} {sr(sST + 2*AMP.index(i),2)}"); P.wait_all(vm=False)
        return
    if STAMP < level or (SSET and level != 0):
        return
    i = nstamp[0]; nstamp[0] += 1
    e(f"s_memtime {sr(sST,2)}"); e(f"s_memrealtime {sr(sST+2,2)}")
    P.wait_all(vm=False)
    e(f"v_writelane_b32 v{vSTAMP}, s{sST}, {2*i}")
    e(f"v_writelane_b32 v{vSTAMP}, s{sST+2}, {2*i+1}")


def stamp_item():
    i = nstamp[0]; nstamp[0] += 1
    return It(f"s_memtime {sr(sST,2)}\n    s_memrealtime {sr(sST+2,2)}\n    s_waitcnt lgkmcnt(0)\n"
              f"    v_writelane_b32 v{vSTAMP}, s{sST}, {2*i}\n    v_writelane_b32 v{vSTAMP}, s{sST+2}, {2*i+1}", "s")


def mk_srd(d, p, size):
    e(f"s_mov_b32 s{d}, s{p}"); e(f"s_mov_b32 s{d+1}, s{p+1}"); e(f"s_mov_b32 s{d+2}, {size}"); e(f"s_mov_b32 s{d+3}, 0x20000")


def sum_terms(dst, *terms):
    first = True
    for t in terms:
        if isinstance(t, int):
            e(f"s_add_u32 s{dst}, s{dst}, {t}"); continue
        r, k = t
        if k == 0:
            e(f"s_mov_b32 s{dst}, 0"); first = False; continue
        d = dst if first else sT + 4
        e(f"s_lshl_b32 s{d}, s{r}, {k.bit_length()-1}" if k & (k - 1) == 0 else f"s_mul_i32 s{d}, s{r}, {k}")
        if not first: e(f"s_add_u32 s{dst}, s{dst}, s{d}")
        first = False


def allreduce(op, regs, tmps, k=None):
    for sw in ("v_permlane32_swap_b32", "v_permlane16_swap_b32"):
        for r, t in zip(regs, tmps): e(f"v_mov_b32 v{t}, v{r}")
        for r, t in zip(regs, tmps): e(f"{sw} v{r}, v{t}", k=k)
        for r, t in zip(regs, tmps): e(f"{op} v{r}, v{r}, v{t}")


def masked(mask, txt, tag=None, lds=False):
    (P.lds if lds else P.vm)(f"s_mov_b64 exec, {mask}\n    {txt}\n    s_mov_b64 exec, -1", tag)


class Poll:
    def __init__(self, name, loads, tests):
        self.name, self.loads, self.tests = name, loads, tests
        slow_paths.append(self)

    def issue(self):
        for l in self.loads: P.vm(l, self.name)

    def check(self):
        for i, t in enumerate(self.tests): e(t, need=[self.name] if i == 0 else ())
        e(f"s_cbranch_vccnz L_slow_{self.name}\nL_back_{self.name}:", k="v")


def flag_poll(name, s_rd, soff, target):
    return Poll(name, [f"buffer_load_dword v{vPOLL}, v{vPA}, {srd(s_rd)}, {soff} offen sc1"],
                [f"v_cmp_gt_u32 vcc, {target}, v{vPOLL}"])


def set_flags(stage, nlanes, need, val=1):
    e(f"v_mov_b32 v{vONE}, {val}")
    e(f"s_add_u32 s{sSF}, s{sFL}, {stage * 1024}")
    P.wait(need)
    masked((1 << nlanes) - 1, f"buffer_store_dword v{vONE}, v{vLANE}, {srd(SWS)}, s{sSF} offen sc1")


def interleave(code, side, every):
    side = list(side)
    for k, it in enumerate(code):
        if side and k % every == 0: P.puts(side.pop(0))
        P.put(it)
    for x in side: P.puts(x)


def gelu(base, n, tmp, dst, first):
    pairs = range(0, n, 2)
    if first:
        e(f"v_mov_b32 v{vTC}, s{sC1}"); e(f"v_mov_b32 v{vTC+1}, s{sC2}")
    for i in pairs: e(f"v_pk_mul_f32 {vr(tmp+i,2)}, {vr(base+i,2)}, {vr(base+i,2)}")
    for i in pairs: e(f"v_pk_fma_f32 {vr(tmp+i,2)}, {vr(tmp+i,2)}, {vr(vTC,2)}, {vr(vTC,2)} op_sel:[0,1,0] op_sel_hi:[1,1,0]")
    for i in pairs: e(f"v_pk_mul_f32 {vr(tmp+i,2)}, {vr(tmp+i,2)}, {vr(base+i,2)}")
    for i in range(n): e(f"v_exp_f32 v{tmp+i}, v{tmp+i}")
    for i in pairs: e(f"v_pk_add_f32 {vr(tmp+i,2)}, {vr(tmp+i,2)}, 1.0 op_sel_hi:[1,0]")
    for i in range(n): e(f"v_rcp_f32 v{tmp+i}, v{tmp+i}")
    for i in pairs: e(f"v_pk_mul_f32 {vr(tmp+i,2)}, {vr(tmp+i,2)}, {vr(base+i,2)}")
    for i in pairs: e(f"v_cvt_pk_bf16_f32 v{dst(i//2)}, v{tmp+i}, v{tmp+i+1}")


class Tile:
    def __init__(self, s_rd, voff, base, stride, perm, slot, tag, rows=64, kp=0, nh=0, half=32):
        self.__dict__.update(locals())

    def dma(self):
        out = []
        for i in range(self.rows // 8):
            row = ((0, 16, 4, 20)[i & 3] if self.perm else 8 * (i & 3)) + self.half * (i >> 2)
            so = self.base + row * self.stride - (i & 3) * 1024
            pre = [It(f"s_add_u32 m0, s{sRING}, {self.slot * 32768 + (i >> 2) * 4096}", "s")] if i % 4 == 0 else []
            out.append((pre + [It(f"s_mov_b32 s{sSO}, {so}", "s")],
                        [It(f"buffer_load_dwordx4 v{self.voff}, {srd(self.s_rd)}, s{sSO} offen "
                            f"offset:{(i & 3) * 1024} lds", "g", self.tag)]))
        return out


def place(add, g, grp, prev, avoid=()):
    pre, its = grp
    c = [h for h in range(max(prev + 1, 0), g) if h not in avoid][-len(pre):] if pre else []
    for k, it in enumerate(pre): add(c[k] if len(c) == len(pre) else max(g - len(pre) + k, prev + 1, 0), it)
    for it in its: add(g, it)


def dma_voff(dst, stride, perm, s_base, a):
    b = a + 1
    e(f"v_lshrrev_b32 v{a}, 10, v{vLANE}")
    e(f"v_bfe_u32 v{b}, v{vBA}, 4, 3")
    e(f"v_and_b32 v{dst}, 6, v{a}"); e(f"v_xor_b32 v{b}, v{b}, v{dst}")
    if perm:
        e(f"v_and_b32 v{dst}, 4, v{a}"); e(f"v_add_u32 v{a}, v{a}, v{dst}")
    e(f"v_mul_u32_u24 v{a}, {stride}, v{a}")
    e(f"v_lshl_add_u32 v{a}, v{b}, 4, v{a}")
    e(f"v_add_u32 v{dst}, {s_base}, v{a}")


def a_reads(t, ti, nb):
    base = (vAA2 if t.slot == 2 else vAA) + nb
    off = (t.slot % 2) * 32768 if t.slot < 2 else 0
    return [It(f"ds_read_b64_tr_b16 {ar(AF(nb*2+ks) + 2*h, 2)}, v{base} offset:{off + ks*4096 + h*2048}", "l",
               ("A", t.tag, nb), need=[t.tag]) for ks in range(t.rows // 32) for h in range(2)]


def gemm_pre(tiles, i0):
    P.puts(a_reads(tiles[i0], i0, 0))


def gemm(tiles, i0, n, acc, pending, bf, breg=vBA, extra=None, fill=None, over=0, opening=None, dma0=0, btr=False):
    BF = lambda par, ks, tb: bf[par] + (ks * 4 + tb) * 4
    ms, gaps, start, grp = [], {}, [], []
    seen = set()
    for ti in range(i0, i0 + n):
        t = tiles[ti]
        grp.append(0 if ti == i0 else grp[-1] + (t.kp != tiles[ti - 1].kp))
        start.append(len(ms))
        nks = t.rows // 32
        for nb in range(4):
            for tb in range(4):
                for ks in (range(nks) if not tb & 1 else range(nks - 1, -1, -1)):
                    d = vr(acc(t.nh, nb, tb), 4)
                    c = d if (t.nh, nb, tb) in seen else "0"
                    seen.add((t.nh, nb, tb))
                    ms.append(It(f"{MF} {d}, {ar(AF(nb*2+ks),4)}, {ar(BF(grp[-1]&1,ks,tb),4)}, {c}", "m",
                                 need=[("A", t.tag, nb), ("B", tiles[i0].tag, grp[-1], tb)]))
    start.append(len(ms))

    def b_reads(s):
        t = tiles[i0 + s]
        if btr:
            return [It(f"ds_read_b64_tr_b16 {ar(BF(grp[s]&1,ks,tb)+2*h,2)}, v{breg+tb} offset:{t.kp*8192 + ks*4096 + h*2048}",
                       "l", ("B", tiles[i0].tag, grp[s], tb)) for tb in range(4) for ks in range(2) for h in range(2)]
        return [It(f"ds_read_b128 {ar(BF(grp[s]&1,ks,tb),4)}, v{breg} offset:{t.kp*8192 + ks*4096 + tb*1024}", "l",
                   ("B", tiles[i0].tag, grp[s], tb)) for tb in range(4) for ks in range(t.rows // 32)]

    add = lambda g, it: gaps.setdefault(g, []).append(it)
    pre = b_reads(0)
    release = {}
    for s in range(n):
        ti = i0 + s; t = tiles[ti]
        per = (start[s + 1] - start[s]) // 4
        for nb in range(4):
            if s == 0 and nb == 0: continue
            rd = a_reads(t, ti, nb)
            for k, it in enumerate(rd):
                g = start[s] + per * nb - 6 - 2 * (len(rd) - 1 - k)
                if g < 0: pre.append(it)
                else: add(g, it)
        if ti + 3 < len(tiles) and tiles[ti + 3]: release[start[s] + 3 * per] = tiles[ti + 3]
        if s + 1 < n and grp[s + 1] != grp[s]:
            s0 = grp.index(grp[s])
            rd = b_reads(s + 1)
            cand = [g for g in range(start[s0], start[s + 1] - 6) if g % 4 == 3]
            if btr: cand = sorted(cand * 2)
            if len(cand) < len(rd): cand = sorted(cand + [start[s0] + 2 * k for k in range(len(rd) - len(cand))])
            step = len(cand) / len(rd)
            for k, it in enumerate(rd): add(cand[int(k * step)], it)
    if opening == "get": return a_reads(tiles[i0], i0, 0) + pre
    if opening == "done": pre = []
    prev = dma0 - 1
    for g in range(dma0, len(ms)):
        if g in release: pending += release[g].dma()
        nxt = min([r for r in release if r > g], default=len(ms) + 24)
        if pending and (g % 4 == 1 or (g % 4 == 3 and len(pending) > (nxt - g + 1) // 4)):
            place(add, g, pending.pop(0), prev); prev = g
    for g, its in (extra or {}).items():
        for it in its: add(g, it)
    for g in start[:-1]: add(g + 10, hop())
    if O_("jit2", 0):
        for g in start[:-1]: add(g + 4, jitter_item())
    if SSET == {id(qt): "q", id(ot): "o"}.get(id(tiles), "mlp"):
        for g in start[:-1] + [len(ms) - 1]: add(g, stamp_item())
    P.puts(pre)
    P.run_gaps(ms, gaps, fill, gmin=4, over=over)


def flush(pending):
    while pending:
        a, b = pending.pop(0)
        P.puts(a + b)


def shared_ops(kss, koff, acc, zero, afr, breg, bneed, name, i0=0):
    out = []
    for nb in range(4):
        for ks in kss:
            i = i0 + len(out)
            d = acc(nb)
            out.append((It(f"{MF} {d}, {ar(afr(i),4)}, {breg(ks)}, {0 if zero and not ks else d}", "m",
                           need=[(name, i)] + list(bneed(ks))),
                        [It(f"ds_read_b64_tr_b16 {ar(afr(i)+2*h,2)}, v{vAS+nb} offset:{(ks-koff)*4096 + h*2048}", "l",
                            (name, i)) for h in range(2)]))
    return out


def pack(acc, nh, tb, s, second=False, guard=False):
    a, b = acc(nh, 2 * s, tb), acc(nh, 2 * s + 1, tb)
    order = list(enumerate((a, a + 2, b, b + 2)))
    d = b if second else a
    for j, r in reversed(order) if second else order: e(f"v_cvt_pk_bf16_f32 v{d+j}, v{r}, v{r+1}")
    if guard:
        for j in range(4): e(f"v_min_u32 v{d+j}, -2, v{d+j}")


def store_piece(src, ws_base, nh, tb, s, tag):
    e(f"s_add_u32 s{sSF}, s{sPP}, {ws_base + (tb >> 1)*65536 + ((tb & 1) + 2*s)*2048}")
    P.vm(f"buffer_store_dwordx4 {src}, v{vBA}, {srd(SWS)}, s{sSF} offen offset:{nh*1024} sc1", tag)


def load_piece(ws_base, dst, g, nh, tag):
    e(f"s_add_u32 s{sSF}, s{sPC}, {ws_base + g*8192}")
    P.vm(f"buffer_load_dwordx4 {dst}, v{vBA}, {srd(SWS)}, s{sSF} offen offset:{nh*1024} sc1", (tag, g, nh))


def add_piece(dst, reg, first, need):
    for j in range(4):
        for h, sel in enumerate((sLO, sHI)):
            d = dst + 2 * j + h
            e(f"v_dot2_f32_bf16 v{d}, v{reg+j}, s{sel}, {0 if first else 'v%d' % d}", need=need)


def frag_reads(t, f, tail=False):
    if f < 16:
        kb, s = f // 4, f % 4
        off = ((t + 1) % 4) * 16384 + kb * 4096
        return [It(f"ds_read_b128 {ar(FR(f),4)}, v{KA(s)} offset:{off}", "l", ("F", t, f))]
    db, ks = ((f - 16) // 2, (f - 16) % 2) if not tail else ((f - 16) % 8, (f - 16) // 8)
    off = (t % 4) * 16384 + ks * 8192
    return [It(f"ds_read_b64_tr_b16 {ar(FR(f)+2*h,2)}, v{VA(db)} offset:{off + 4096*h}", "l", ("F", t, f))
            for h in range(2)]


def qk_mfmas(t, zero=False):
    out = []
    for kb in range(4):
        for qb in range(4):
            for n, s in enumerate(range(4) if not qb & 1 else range(3, -1, -1)):
                d = vr(S((t + 1) & 1, kb, qb), 4)
                c = d if n else ("0" if zero else vr(NM(qb), 4))
                out.append((It(f"{MF} {d}, {ar(FR(kb*4+s),4)}, {vr(Q(qb,s),4)}, {c}", "m",
                               need=[("F", t, kb * 4 + k) for k in range(4)]), kb * 4 + s))
    return out


def pv_one(t, db, qb, ks, f, need, zero=False):
    o = ar(O(db, qb), 4)
    ab = [ar(FR(f), 4), vr(PR(t & 1, ks, qb), 4)][::-1 if PA else 1]
    return (It(f"{MF} {o}, {ab[0]}, {ab[1]}, {0 if zero else o}", "m", need=need), f)


def sum_one(t, qb, ks, zero=False):
    l = ar(LACC(qb), 4)
    ab = [ar(aONES, 4), vr(PR(t & 1, ks, qb), 4)][::-1 if PA else 1]
    return (It(f"{MF} {l}, {ab[0]}, {ab[1]}, {0 if zero else l}", "m"), None)


def pv_mfmas(t, zero=False):
    out = []
    for db in range(8):
        need = [("F", t, 16 + db * 2), ("F", t, 17 + db * 2)]
        for qb in range(4):
            for n, ks in enumerate(range(2) if not qb & 1 else range(1, -1, -1)):
                out.append(pv_one(t, db, qb, ks, 16 + db * 2 + ks, need, zero and not n))
        if db % 2 == 1:
            out += [sum_one(t, db // 2, ks, zero and not ks) for ks in range(2)]
    return out


def pv_mfmas_tail(t):
    out = []
    for ks in range(2):
        out += [sum_one(t, qb, ks) for qb in range(4)]
        for db in range(8):
            f = 16 + ks * 8 + db
            out += [pv_one(t, db, qb, ks, f, [("F", t, f)]) for qb in range(4)]
    return out


def sm_stream(buf, half):
    ex, post = [], []
    for qb in range(4):
        b = PR(buf, half, qb)
        for j in range(8):
            ex.append(It(f"v_exp_f32 v{b+j}, v{b+j}", "x"))
            post.append([It(f"v_cvt_pk_bf16_f32 v{b + j//2}, v{b+j-1}, v{b+j}", "v")] if j & 1 else [])
    return ex, post


def kv_dma(kind, tile, lds=None, so=None):
    reg, s_rd, base = (KG, SK, 0) if kind == "K" else (VG, SV, VOFF)
    lds = base + (tile % 4) * 16384 if lds is None else lds
    out = []
    for i in range(4):
        pre = [It(f"s_add_u32 m0, s{sW4K}, {lds}", "s"),
               It(f"s_mov_b32 s{sSO}, {tile * 16384 if so is None else so}", "s")] if i == 0 else []
        out.append((pre, [It(f"buffer_load_dwordx4 v{reg(i)}, {srd(s_rd)}, s{sSO} offen offset:{i*1024} lds",
                             "g", (kind, tile))]))
    return out


issued = set()
CLUSTER = O_("cluster", 1)
WINS = [int(x) for x in opt.get("wins", "2,18,34,50,73,91,109,127").split(",")]
WPAT = [int(x) for x in opt.get("wpat", "1").split(",")]


def attn_iter(t, groups, fill, endwait=(), extra=None, ins=None):
    end = T0 - 1 if t < T0 else 31
    last = t == end
    mf = pv_mfmas_tail(t) if last else qk_mfmas(t) + pv_mfmas(t, zero=t == 0)
    ms = [m for m, _ in mf]
    n = len(ms)
    first_use, last_use = {}, {}
    for i, (_, f) in enumerate(mf):
        if f is not None:
            first_use.setdefault(f, i); last_use[f] = i
    reads = []
    for f in sorted(first_use):
        if (t, f) in issued: continue
        reads += [(first_use[f] - AHEAD, last_use.get(f - 8, -1), it) for it in frag_reads(t, f, last)]
    nxt_need = ()
    if t < end - 1:
        for f in range(4):
            reads += [(n + f - AHEAD, last_use[24 + f], it) for it in frag_reads(t + 1, f)]
            issued.add((t + 1, f))
        nxt_need = [("F", t + 1, f) for f in range(4)]
    elif t == end - 1:
        for f in range(16, 18):
            reads += [(n + 4 * (f - 15) - AHEAD, last_use[8 + f], it) for it in frag_reads(end, f, True)]
            issued.add((end, f))
    gaps = {}
    add = lambda g, it: gaps.setdefault(g, []).append(it)
    exg = {}
    wins = [] if last or not CLUSTER else WINS[:min(len(WINS), -(-len(groups) // len(WPAT)))]
    quiet = {w + k for w in wins for k in range(WPAT[-1] + 1)}
    dma_gaps = sorted(w + k for w in wins for k in WPAT)
    if last:
        ex, post = sm_stream(t & 1, 1)
        for i in range(32): exg[i] = (ex[i], post[i])
    else:
        for (ex, post), lo, hi in ((sm_stream(t & 1, 1), 0, 63), (sm_stream((t + 1) & 1, 0), 64, n - 2)):
            c = [g for g in range(lo, hi) if g not in quiet]
            for i in range(32): exg[c[(i * (len(c) + 1)) // 32]] = (ex[i], post[i])
    for g, (x, post) in exg.items():
        add(g, x)
    for g, (x, post) in exg.items():
        h = g + 1
        while not last and (h in exg or h in quiet): h += 1
        for it in post: add(h, it)
    free = set(range(n)) if last else {g for g in range(n) if g not in exg and g not in dma_gaps and len(gaps.get(g, [])) < 2}
    prev, pre, avail = n, [], sorted(free)
    for dl, early, it in reversed(reads):
        c = [g for g in free if g <= dl and g < prev]
        if c and max(c) >= early:
            prev = max(c); free.discard(prev); add(prev, it)
        elif early < 0:
            prev = -1; pre.insert(0, it)
        else:
            g = min(g for g in avail if g >= early and len(gaps.get(g, [])) < 2)
            assert g <= dl + AHEAD - 6, (t, it.t, g, dl)
            free.discard(g); gaps.setdefault(g, []).insert(0, it)
    if groups:
        def spaced(c):
            out = []
            for g in c:
                if not out or g - out[-1] >= 2: out.append(g)
            return out
        light = spaced([g for g in sorted(free) if 1 <= g < n - 6 and g not in gaps])
        fr = light if len(light) >= len(groups) - len(dma_gaps) + 4 else spaced([g for g in sorted(free) if 1 <= g < n - 6])
        rest = len(groups) - len(dma_gaps)
        if rest > 0:
            fr = [g for g in fr if not {g - 1, g, g + 1} & set(dma_gaps)]
            if len(fr) < rest: fr = spaced([g for g in range(1, n - 6) if g not in exg and not {g - 1, g, g + 1} & set(dma_gaps)])
            assert len(fr) >= rest, (t, len(fr), len(groups))
            dma_gaps = sorted(dma_gaps + [fr[int(k * len(fr) / rest)] for k in range(rest)])
        for k, grp in enumerate(groups): place(add, dma_gaps[k], grp, dma_gaps[k - 1] if k else -1, {u - 1 for u in first_use.values()})
    if not last:
        add(n - 3, It(None, "s", need=[("K", min(t + 3, end)), ("V", end if t == end - 2 else t + 1)] + list(endwait)))
        add(n - 2, It("s_barrier", "s"))
        add(n - 4, hop())
    for g, its in (extra or {}).items():
        for it in its: add(g, it)
    if SSET == "attn": add(0, stamp_item())
    if O_("jit2", 0):
        for g in (1, n // 2, n - 12): add(g, jitter_item())
    if ins:
        for k in range(3):
            for h, it in enumerate(ins[k][1]): add(1 + 4 * k + 2 * h, it)
        pos = {(13 + (k * (n - 24)) // (len(ins) - 1)) | 1: k for k in range(len(ins))}
        assert len(pos) == len(ins)
        ms2, gaps2, old, quiet = [], {}, quiet, set()
        for g, m in enumerate(ms):
            if g in old: quiet.add(len(ms2))
            gaps2[len(ms2)] = gaps.get(g, []); ms2.append(m)
            if g in pos:
                k = pos[g]
                gaps2[len(ms2)] = list(ins[k + 3][1]) if k + 3 < len(ins) else []
                ms2.append(ins[k][0])
        ms, gaps = ms2, gaps2
    P.puts(pre)
    P.run_gaps(ms, gaps, fill, next_need=nxt_need, pos=t, gmin=4, quiet=quiet)


hdr = [l.rstrip("\n") for l in open("header.txt")]
hdr = hdr[:[i for i, l in enumerate(hdr) if "@launch" in l][0]]
P.L += hdr + ["; @launch grid=(256,1,1) block=(256,1,1) lds=163840",
              '.amdgcn_target "amdgcn-amd-amdhsa--gfx950"', ".text", f".globl {NAME}", ".p2align 8",
              f".type {NAME},@function"]
lab(NAME)
e("s_cmp_lt_u32 s2, 256"); e("s_cbranch_scc1 L_go"); e("s_endpgm")
lab("L_go")
e("s_load_dwordx16 s[64:79], s[0:1], 0"); e("s_load_dwordx8 s[80:87], s[0:1], 64"); e("s_load_dwordx2 s[88:89], s[0:1], 96")
PAIR = O_("pair", 0)
NS = 16 if PAIR else 32
sMI, sWV = 90, 91
if PAIR:
    e(f"s_and_b32 s{sG}, s2, 3"); e(f"s_lshl_b32 s{sG}, s{sG}, 1"); e(f"s_bfe_u32 s{sT}, s2, 0x10003"); e(f"s_add_u32 s{sG}, s{sG}, s{sT}")
    e(f"s_lshr_b32 s{sMI}, s2, 4"); e(f"s_and_b32 s{sM}, s2, 4"); e(f"s_lshl_b32 s{sM}, s{sM}, 2"); e(f"s_add_u32 s{sM}, s{sM}, s{sMI}")
else:
    e(f"s_and_b32 s{sG}, s2, 7"); e(f"s_lshr_b32 s{sM}, s2, 3"); e(f"s_lshr_b32 s{sMI}, s2, 3")
e("v_lshrrev_b32 v1, 6, v0"); e("v_and_b32 v0, 63, v0"); e(f"v_readfirstlane_b32 s{sW}, v1")
e(f"v_lshlrev_b32 v{vBA}, 4, v0"); e(f"v_lshlrev_b32 v{vLANE}, 7, v0")
e(f"s_getpc_b64 {sr(sT+1,2)}")
lab("L_pc")
NCL = 9
e(f"s_lshr_b32 s{sT+3}, s2, 3")
sum_terms(sT, (sT + 3, 512), (sW, 128))
e(f"v_min_u32 v6, {NCL-1}, v0"); e(f"v_lshl_add_u32 v6, v6, 14, s{sT}"); e("v_min_u32 v6, L_end-L_pc, v6")
e(f"v_mov_b32 v{vCODE+1}, s{sT+2}"); e(f"v_add_co_u32 v{vCODE}, vcc, s{sT+1}, v6")
e(f"v_addc_co_u32 v{vCODE+1}, vcc, 0, v{vCODE+1}, vcc")
code_touch = lambda: P.vm(f"global_load_dword a255, {vr(vCODE,2)}, off")
masked(3, f"global_load_dword a255, {vr(vCODE,2)}, off")
sum_terms(sWV, (sMI, 4), (sW, 1))


def touch_off(d, nrows, lines, stride, base_terms, t):
    per = -(-nrows // (NS * 4))
    assert per * lines <= 64 and lines & (lines - 1) == 0
    sh = lines.bit_length() - 1
    e(f"v_lshrrev_b32 v{d}, {7 + sh}, v{vLANE}"); e(f"v_min_u32 v{d}, {per - 1}, v{d}")
    e(f"s_mul_i32 s{sT}, s{sWV}, {per}"); e(f"v_add_u32 v{d}, s{sT}, v{d}")
    if per * NS * 4 != nrows: e(f"v_min_u32 v{d}, {nrows - 1}, v{d}")
    e(f"v_mul_u32_u24 v{d}, {stride}, v{d}")
    sum_terms(sT, *base_terms)
    if lines > 1:
        e(f"v_and_b32 v{t}, {(lines - 1) * 128}, v{vLANE}"); e(f"v_add3_u32 v{d}, v{d}, v{t}, s{sT}")
    else:
        e(f"v_add_u32 v{d}, s{sT}, v{d}")


WQ0 = O_("wq0", 128)
vTQ, vT1, vTK = T + 11, T + 13, T + 16
touch_off(6, WQ0, 8, 8192, [(sG, 1024)], 7)
touch_off(vT1, 512, 1, 1024, [(sG, 128)], 7)
e("v_and_b32 v2, 3, v0")
e("v_lshrrev_b32 v1, 2, v0")
sum_terms(sT, (sM, 64), (sW, 16))
e(f"v_add_u32 v3, s{sT}, v1"); e("v_lshlrev_b32 v3, 10, v3"); e("v_lshl_add_u32 v3, v2, 4, v3")
e(f"s_and_b32 s{sT+1}, s{sG}, 1"); e(f"s_lshl_b32 s{sT+2}, s{sT+1}, 9")
e(f"v_add_u32 v3, s{sT+2}, v3"); e(f"v_xor_b32 v{G12+13}, 0x200, v3")
if STAMP: e(f"v_mov_b32 v{vSTAMP}, 0")
e("s_waitcnt lgkmcnt(0)")
stamp()
if SSET == "ln": stamp(0)
ENT = " nt" * O_("ent", 1)
P.vm(f"global_load_dword a255, v{vT1}, s[76:77]{ENT}")
P.vm(f"global_load_dword a255, v6, s[70:71]{ENT}")
for i in range(8):
    P.vm(f"global_load_dwordx4 {vr(XR+4*i,4)}, v3, s[64:65] offset:{i*64}", ("x", i))
HOP = O_("hop", 1)
hop = lambda n="": It(f"; @hop {n}", "s")
if HOP:
    e("s_branch L_main"); P.raw(".p2align 12")
lab("L_main")
e("v_lshlrev_b32 v4, 1, v2"); e("v_xor_b32 v4, v4, v1"); e("v_lshlrev_b32 v4, 4, v4"); e("v_lshl_add_u32 v4, v2, 8, v4")
sum_terms(sT + 2, (sT + 1, 32768), (sW, 1024))
e(f"v_add_u32 v{vWA}, s{sT+2}, v4"); e(f"v_xor_b32 v{vWA+1}, 0x8000, v{vWA}")
e("v_and_b32 v1, 15, v0"); e("v_lshrrev_b32 v2, 4, v0")
e("v_lshlrev_b32 v4, 1, v2"); e("v_xor_b32 v4, v4, v1"); e("v_lshlrev_b32 v4, 4, v4"); e(f"v_lshl_add_u32 v{vBX}, v2, 8, v4")
e(f"v_add_u32 v3, s{sT}, v1"); e("v_lshlrev_b32 v4, 15, v2"); e(f"v_lshl_add_u32 v{vTOK}, v3, 4, v4")
for d, p in ((SK, 66), (SV, 68)):
    e(f"s_lshl_b32 s{sT}, s{sG}, 19")
    e(f"s_add_u32 s{d}, s{p}, s{sT}"); e(f"s_addc_u32 s{d+1}, s{p+1}, 0"); e(f"s_mov_b32 s{d+2}, 0x80000"); e(f"s_mov_b32 s{d+3}, 0x20000")
for d, p, size in ((SX, 64, 0x200000), (SWQ, 70, 0x400000), (SW1, 76, 0x80000), (SWS, 88, 0x10000000),
                   (SWO, 72, 0x400000), (SW2, 78, 0x80000), (SW3, 80, 1835008), (SW4, 82, 1835008),
                   (SOUT, 84, 0x200000), (SDBG, 86, 256)):
    mk_srd(d, p, size)
sum_terms(sRING, (sW, 8192), RING); sum_terms(sW1K, (sW, 1024)); sum_terms(sW4K, (sW, 4096))
sum_terms(sT, (sG, 1024), (sW, 256)); dma_voff(vDWQ, 8192, True, f"s{sT}", 10)
sum_terms(sT, (sW, 65536), (sG, 128)); dma_voff(vDW1, 1024, True, f"s{sT}", 10); dma_voff(vDW2, 1024, False, f"s{sT}", 10)
for r, v in ((sLO, "0x00003f80"), (sHI, "0x3f800000"), (sONE2, "0x3f803f80"), (sC1, f2u(GC1)), (sC2, f2u(GC2)),
             (sNL2E, f2u(-LOG2E)), (sSPIN, opt.get("spin0", 0)), (sMSK, "0xffff0000")):
    e(f"s_mov_b32 s{r}, {v}")
sum_terms(sF0, (sM, 4096), (sW, 256), WS_FL)
sum_terms(sFL, (sG, 4), (sF0, 1))
sum_terms(sF1, (sM, 4096), (sG, 128), WS_FL + 1024)
e(f"s_add_u32 s{sF2}, s{sF1}, 1024"); e(f"s_add_u32 s{sF3}, s{sF1}, 2048")
sum_terms(sSTC, (sM, 4096), (sW, 1024), WS_SS)
sum_terms(sSTP, (sG, 128), (sSTC, 1))
sum_terms(sPP, (sM, 1 << 19), (sW, 1 << 17), (sG, 1 << 13))
sum_terms(sPC, (sM, 1 << 19), (sG, 1 << 16), (sW, 1 << 11))
e(f"s_lshl_b32 s{sHO}, s{sG}, 18")
e(f"s_and_b32 s{sKS}, s{sG}, 6"); e(f"s_lshl_b32 s{sKS}, s{sKS}, 1"); e(f"s_lshr_b32 s{sT}, s{sW}, 1"); e(f"s_add_u32 s{sKS}, s{sKS}, s{sT}")
e(f"s_and_b32 s{sTB}, s{sG}, 1"); e(f"s_lshl_b32 s{sTB}, s{sTB}, 1"); e(f"s_and_b32 s{sT}, s{sW}, 1"); e(f"s_add_u32 s{sTB}, s{sTB}, s{sT}")
sum_terms(sSTF, (sM, 4096), (sTB, 1024), WS_SS)
sum_terms(sXF, (sM, 65536), (sTB, 16384), (sKS, 64))
e("v_lshrrev_b32 v6, 2, v0"); e("v_and_b32 v7, 3, v0"); e("v_lshlrev_b32 v7, 3, v7"); e("v_lshl_add_u32 v7, v6, 7, v7")
e("v_bfe_u32 v6, v0, 3, 2")
for nb in range(4):
    e(f"v_xor_b32 v10, {nb}, v6"); e("v_lshl_add_u32 v10, v10, 5, v7")
    e(f"v_add_u32 v{vAS+nb}, {RING + 32768}, v10")
    if QPERM:
        e("v_lshrrev_b32 v8, 2, v0"); e("v_and_b32 v9, 6, v8"); e("v_and_b32 v10, 3, v0"); e("v_xor_b32 v9, v9, v10")
        e(f"v_xor_b32 v9, {4*(nb>>1)}, v9"); e("v_lshlrev_b32 v9, 4, v9"); e("v_lshl_add_u32 v10, v8, 7, v9")
        if nb & 1: e("v_add_u32 v10, 8, v10")
    e(f"v_add_u32 v{vAA+nb}, s{sRING}, v10"); e(f"v_add_u32 v{vAA2+nb}, 0x10000, v{vAA+nb}")
e("v_xor_b32 v9, v2, v1")
for s in range(4):
    e(f"v_xor_b32 v10, {4*s}, v9"); e("v_lshlrev_b32 v10, 4, v10"); e(f"v_lshl_add_u32 v{KA(s)}, v1, 8, v10")
e("v_lshrrev_b32 v9, 2, v0"); e("v_lshlrev_b32 v10, 8, v9"); e("v_and_b32 v11, 3, v0")
e("v_lshl_add_u32 v10, v11, 3, v10"); e(f"v_add_u32 v10, {VOFF}, v10"); e("v_and_b32 v9, 7, v9")
for db in range(8):
    e(f"v_xor_b32 v11, {db}, v9"); e(f"v_lshl_add_u32 v{VA(db)}, v11, 5, v10")
e(f"v_lshl_add_u32 v10, v2, 8, s{sW4K}")
for i in range(4):
    e(f"v_add_u32 v9, {4*i}, v2"); e("v_xor_b32 v11, v9, v1"); e(f"v_lshl_add_u32 v{KG(i)}, v11, 4, v10")
    if i < 2:
        e("v_lshlrev_b32 v9, 1, v9"); e("v_xor_b32 v11, v9, v1"); e(f"v_lshl_add_u32 v{VG(i)}, v11, 4, v10")
e(f"v_lshlrev_b32 v{G12+8}, 4, v1")
if WQ0 < 512: touch_off(vTQ, 512 - WQ0, 8, 8192, [(sG, 1024), WQ0 * 8192], 7)
SLIM = O_("slim", 1)
touch_off(vTK, 256 if SLIM else 512, 1, 128, [(sG, 0)], 7)


def late_touch():
    P.vm(f"buffer_load_dword a255, v{vTK}, {srd(SK)}, 0 offen"); P.vm(f"buffer_load_dword a255, v{vTK}, {srd(SV)}, 0 offen")
    if not SLIM:
        P.vm(f"buffer_load_dword a255, v{vT1}, {srd(SW2)}, 0 offen")
        code_touch()


LTG = O_("ltg", 4)
XQ = O_("xq", 3)


w1t = [Tile(SW1, vDW1, k * 4 * 65536, 1024, True, 1 + k, "w1") for k in range(2)]
w2t = [Tile(SW2, vDW2, k * 4 * 65536, 1024, False, 2, ("w2", k)) for k in range(2)]
qt = [Tile(SWQ, vDWQ, (i // 2) * 64 * 8192 + (i % 2) * 128, 8192, True, i % 3, ("wq", i), kp=i // 2, nh=i % 2)
      for i in range(16)] + ([] if SLIM else [None, w2t[0]])
mt = [Tile(SW3, vDW2, kp * 64 * 3584, 3584, False, (2 - i) % 3, ("w3", kp), kp=kp)
      for i, kp in enumerate((4, 5, 6, 7, 0, 1, 2, 3))]
mt += [Tile(SW4, vDW4, kp * 65536 + nh * 128, 1024, False, (2 - 8 - i) % 3, ("w4", i), rows=64 if kp < 3 else 32, kp=kp, nh=nh)
       for i, (nh, kp) in enumerate([(0, 0), (1, 0), (0, 3), (1, 3), (0, 1), (1, 1), (0, 2), (1, 2)])]
ot = [Tile(SWO, vDWO, ((kp & 1) * 256 + (kp >> 1) * 32) * 1024 + nh * 128, 1024, False, (nh * 8 + kp + 2) % 3,
           ("wo", nh, kp), kp=kp, nh=nh, half=128) for nh in range(2) for kp in range(8)]

a = G12


def quad_sum(regs):
    for qp in ("[1,0,3,2]", "[2,3,0,1]"):
        for r in regs: e(f"v_add_f32_dpp v{r}, v{r}, v{r} quad_perm:{qp} row_mask:0xf bank_mask:0xf")


def ln_stats(lo, hi):
    for i in range(lo, hi):
        c = lambda r: f"v{r}" if i >= 2 else 0
        e(f"v_dot2_f32_bf16 v{a + i % 2}, v{XR+i}, s{sONE2}, {c(a + i % 2)}", need=[("x", i // 4)])
        e(f"v_dot2_f32_bf16 v{a + 2 + i % 2}, v{XR+i}, v{XR+i}, {c(a + 2 + i % 2)}")


def unpack(k):
    for i in range(4 * k, 4 * k + 4):
        e(f"v_lshlrev_b32 v{2*i}, 16, v{XR+i}"); e(f"v_and_b32 v{2*i+1}, s{sMSK}, v{XR+i}")


def ln_rest():
    ln_stats(32, 64)
    e(f"v_add_f32 v{a}, v{a}, v{a+1}"); e(f"v_add_f32 v{a+2}, v{a+2}, v{a+3}")
    quad_sum([a, a + 2])
    e(f"v_mul_f32 v{a+4}, {f2u(-1/512)}, v{a}"); e(f"v_mul_f32 v{a+2}, {f2u(1/512)}, v{a+2}")
    e(f"v_fma_f32 v{a}, -v{a+4}, v{a+4}, v{a+2}"); e(f"v_max_f32 v{a}, 0, v{a}")
    e(f"v_add_f32 v{a+1}, {f2u(EPS)}, v{a}")
    e(f"v_rsq_f32 v{vRSTD}, v{a+1}")
    unpack(8)
    e(f"v_mul_f32 v{a+2}, {f2u(QSCALE)}, v{vRSTD}"); e(f"v_mul_f32 v{a+3}, v{a+4}, v{a+2}")
    for k in range(17):
        if k < 16:
            for i in range(4 * k, 4 * k + 4):
                e(f"v_pk_fma_f32 {vr(2*i,2)}, {vr(2*i,2)}, {vr(a+2,2)}, {vr(a+2,2)} op_sel:[0,0,1] op_sel_hi:[1,0,1]")
        if k: P.lds(f"ds_write_b128 v{vWA + (k-1)//8}, {vr(XR+4*k-4,4)} offset:{((k-1)%8)*4096}", "xw")
        if k % 2 == 0 and 9 + k // 2 < 16: unpack(9 + k // 2)
        if k < 16:
            for i in range(4 * k, 4 * k + 4): e(f"v_cvt_pk_bf16_f32 v{XR+i}, v{2*i}, v{2*i+1}")
    e(f"v_mul_f32 v{a}, v{a}, v{vRSTD}"); e(f"v_mul_f32 v{a}, v{a}, v{vRSTD}")
    e(f"v_add_f32 v{a}, {f2u(EPS)}, v{a}")
    e(f"v_rsq_f32 v{vSC1}, v{a}")
    e(f"v_mul_f32 v{vNMEAN}, v{a+4}, v{vRSTD}")
    e(f"v_mul_f32 v{vSC1}, {f2u(1/QSCALE)}, v{vSC1}")
    e(f"v_add_u32 v{vWA}, s{sW1K}, v{vBX}")


if SSET == "ln": stamp(0)
P.put(hop(O_("hop00", 1)))
wq_rest = lambda: P.vm(f"buffer_load_dword a255, v{vTQ}, {srd(SWQ)}, 0 offen{ENT}") if WQ0 < 512 else None
if LTG == 4: XQ = 4
if XQ == 0: wq_rest()
if LTG == 0: late_touch()
for i in range(8):
    P.vm(f"buffer_load_dwordx4 {vr(XR+32+4*i,4)}, v{G12+13}, {srd(SX)}, 0 offen offset:{i*64}", ("x", 8 + i))
if XQ == 1: wq_rest()
if LTG == 1: late_touch()
if SSET == "ln": stamp(0)
P.put(hop(O_("hop0", 1)))
for k in range(8):
    ln_stats(4 * k, 4 * k + 4); unpack(k)
stamp(2)
if SSET == "ln":
    stamp(0); P.wait([("x", 15)]); stamp(0)
code = cap(ln_rest)
k = O_("lnat", 40)
P.puts(code[:k])
Q0LN = O_("q0ln", 1)
side = [x + y for t in w1t + qt[:Q0LN] for x, y in t.dma()]
if LTG == 4:
    j = O_("ltpos", 24)
    side[j:j] = [[it] for it in cap(wq_rest) + cap(late_touch)]
interleave(code[k:], side, O_("lnev", 9))
if SSET == "ln":
    stamp(0); P.wait(["w1"]); stamp(0)
for r in (vNMEAN, vRSTD, vSC1): P.lds(f"ds_bpermute_b32 v{r}, v{G12+8}, v{r}", "stat")
xb = [It(f"ds_read_b128 {ar(4*ks,4)}, v{vWA} offset:{ks*4096}", "l", ("xb", ks)) for ks in range(16)]
P.puts(xb[:8])
stamp(2)
P.wait(["xw", "w1"]); e("s_barrier")
stamp()
if SSET == "ln": stamp(0)

g1 = lambda h: shared_ops(range(8 * h, 8 * h + 8), 0, lambda nb: vr(G12 + 4 * nb, 4), True, lambda i: 160 + (i % 16) * 4,
                          lambda ks: ar(4 * ks, 4), lambda ks: [("xb", ks)], "g1", 32 * h)
ops = g1(0) + g1(1)
gaps = {g: [] for g in range(64)}
add1 = lambda g, it: gaps[g].append(it)
for i in range(6, 64): gaps[i - 6] += ops[i][1]
for k in range(8): add1(2 + 3 * k, xb[8 + k])
if not Q0LN:
    for k, grp in enumerate(qt[0].dma()): place(add1, 1 + 3 * k, grp, 3 * k - 2)
for k, it in enumerate((cap(wq_rest) if XQ == 3 else []) + (cap(late_touch) if LTG == 3 else [])): add1(O_("ltat", 0) + 2 * k, it)
add1(31, It("s_barrier", "s"))
for k, grp in enumerate(qt[1].dma()): place(add1, 34 + 3 * k, grp, 31 + 3 * k)
ACC = lambda nh, nb, tb: ((nh * 4 + tb) * 4 + nb) * 4
op = gemm(qt, 0, 16, ACC, [], (64, 96), breg=vBX, opening="get")
for k, it in enumerate(op[4:12]): add1(40 + 2 * k, it)
for k, it in enumerate(op[:4] + op[12:]): add1(58 + k // 2, it)
for i in range(6): P.puts(ops[i][1])
P.run_gaps([m for m, _ in ops], gaps, next_need=[op[0].tag, op[4].tag])
stamp()



def q_side():
    x, t, c = G12, XR, XR + 24
    P.put(gate(0, 8))
    e(f"v_mov_b32 v{c}, s{sC1}")
    for i in range(16): e(f"v_mul_f32 v{x+i}, v{x+i}, v{vSC1}", need=["stat"])
    for i in range(16): e(f"v_mul_f32 v{t+i}, v{x+i}, v{x+i}")
    for i in range(16): e(f"v_fma_f32 v{t+i}, v{t+i}, s{sC2}, v{c}")
    for i in range(16): e(f"v_mul_f32 v{t+i}, v{t+i}, v{x+i}")
    for i in range(16): e(f"v_exp_f32 v{t+i}, v{t+i}", k="v")
    for i in range(16): e(f"v_add_f32 v{t+i}, 1.0, v{t+i}")
    for i in range(16): e(f"v_rcp_f32 v{t+i}, v{t+i}", k="v")
    for i in range(16): e(f"v_mul_f32 v{t+i}, v{t+i}, v{x+i}")
    for i in range(8): e(f"v_cvt_pk_bf16_f32 v{t+16+i}, v{t+2*i}, v{t+2*i+1}")
    e(f"v_lshrrev_b32 v{t}, 5, v{vBA}"); e(f"v_and_b32 v{t+1}, 128, v{vLANE}"); e(f"v_lshl_add_u32 v{t}, v{t}, 10, v{t+1}")
    e(f"v_mov_b32 v{t+1}, 0"); e(f"v_mov_b32 v{t+2}, -1"); e(f"v_mov_b32 v{t+3}, -1"); e(f"v_lshrrev_b32 v{t+4}, 1, v{vBA}")
    for nb in range(4): e(f"v_add_u32 v{vAS+nb}, 32768, v{vAS+nb}")
    e(f"v_mov_b32 v{t+5}, s{sONE2}")
    if SPARSE:
        e(f"v_and_b32 v{t+6}, {0xf0 if PA else 0x30}, v{vBA}"); e(f"v_cmp_eq_u32 vcc, 0, v{t+6}"); e(f"v_cndmask_b32 v{t+5}, 0, v{t+5}, vcc")
    for i in range(4): e(f"v_accvgpr_write_b32 a{aONES+i}, v{t+5}")
    P.put(gate(0, O_("hgate", 13 * 32 + 23)))
    if LTG == 2: late_touch()
    for s in range(2):
        e(f"s_add_u32 s{sSF}, s{sHO}, {WS_H + s*PLANE}")
        P.vm(f"buffer_store_dwordx4 {vr(t+16+4*s,4)}, v{vTOK}, {srd(SWS)}, s{sSF} offen sc1", "hst")
    masked(255, f"buffer_store_dword v{t+1}, v{t}, {srd(SWS)}, s{sFL} offen sc1", "hst")
    masked(0xffff, f"buffer_store_dwordx2 {vr(t+2,2)}, v{t+4}, {srd(SWS)}, s{sSTP} offen sc1", "hst")


fill = cap(q_side)
pending = qt[2].dma()
gemm(qt, 0, 16, ACC, pending, (64, 96), breg=vBX, fill=fill, opening="done", extra={1: [It("s_barrier", "s")]}, dma0=2)
assert not fill and not pending
e("s_barrier")
stamp()


def q_pack():
    for tb in range(4):
        for s in range(4):
            b = ACC(s // 2, 2 * (s % 2), tb)
            for j in range(4): e(f"v_cvt_pk_bf16_f32 v{Q(tb,s)+j}, v{b+2*j}, v{b+2*j+1}")
        for sw in () if QPERM else ("v_permlane32_swap_b32", "v_permlane16_swap_b32"):
            for s in range(4):
                for j in range(2): e(f"{sw} v{Q(tb,s)+j}, v{Q(tb,s)+2+j}")


early = (("K", 0), ("K", 1)) if QPERM else (("K", 0), ("K", 1), ("V", 0))
interleave(cap(q_pack), [x + y for k in early for x, y in kv_dma(*k)], 8 if QPERM else 10)
P.wait(["hst", ("K", 0)]); e("s_barrier")
stamp()

for f in range(8): P.puts(frag_reads(-1, f))
gaps = {g: [] for g in range(64)}
for k, grp in enumerate(kv_dma("V", 0) if QPERM else kv_dma("K", 2)): place(add1, 2 + 4 * k, grp, -1)
P.run_gaps([m for m, _ in qk_mfmas(-1, zero=True)[:16]], gaps)
for f in range(8, 12): P.puts(frag_reads(-1, f))
for qb in range(4): e(f"v_max3_f32 v{NM(qb)}, v{S(0,0,qb)}, v{S(0,0,qb)+1}, v{S(0,0,qb)+2}")
for qb in range(4): e(f"v_max_f32 v{NM(qb)}, v{NM(qb)}, v{S(0,0,qb)+3}")
allreduce("v_max_f32", [NM(qb) for qb in range(4)], [NM(qb) + 1 for qb in range(4)])
for qb in range(4):
    for i in (1, 2, 3, 0): e(f"v_sub_f32 v{NM(qb)+i}, 0, v{NM(qb)}")


def first_half(shift, gates):
    for kb in range(2):
        P.put(gate(0, gates[kb]))
        for qb in range(4):
            b = S(0, kb, qb)
            if shift and not kb:
                for j in range(4): e(f"v_add_f32 v{b+j}, v{b+j}, v{NM(qb)}")
            for j in range(4): e(f"v_exp_f32 v{b+j}, v{b+j}")
        for qb in range(4):
            b = S(0, kb, qb)
            for j in range(2): e(f"v_cvt_pk_bf16_f32 v{PR(0,0,qb)+2*kb+j}, v{b+2*j}, v{b+2*j+1}")


gaps = {g: [] for g in range(64)}
for f in range(12, 16): gaps[16 + (f - 12)] += frag_reads(-1, f)
add1(30, It(None, "s", need=[("K", 1)])); add1(31, It("s_barrier", "s"))
for f in range(4):
    gaps[32 + f] += frag_reads(0, f); issued.add((0, f))
if QPERM:
    for k, grp in enumerate(kv_dma("K", 2) + kv_dma("V", 1) + kv_dma("K", 3)): place(add1, 2 + 4 * k, grp, 4 * k - 2)
else:
    for k, grp in enumerate(kv_dma("V", 1) + kv_dma("K", 3)): place(add1, 3 + 6 * k, grp, 6 * k - 3)
fill = cap(first_half, True, (0, 20))
P.run_gaps([m for m, _ in qk_mfmas(-1)[16:]], gaps, fill)
P.drain(fill)
e(f"v_mov_b32 v{T}, 1"); e(f"s_lshl_b32 s{sSF}, s{sM}, 3")
e(f"s_cmp_lg_u32 s{sW}, 0"); e("s_cbranch_scc1 L_noarr"); e("s_mov_b64 exec, 1")
e(f"buffer_atomic_add v{T}, off, {srd(SDBG)}, s{sSF} sc1"); e("s_mov_b64 exec, -1")
lab("L_noarr")
P.wait([("K", 2), ("V", 0)] + [("F", 0, f) for f in range(4)]); e("s_barrier")
stamp()

p_h = flag_poll("h", SDBG, 0, 8)
p_x = flag_poll("x1", SWS, f"s{sF0}", 1)
p_st = Poll("st", [f"buffer_load_dwordx2 {vr(T+2*j,2)}, v{vPA}, {srd(SWS)}, s{(sSTC, sSTF)[j//2]} offen offset:{128*(j%2)} sc1"
                   for j in range(4)],
            [f"v_max3_u32 v{T+8}, v{T}, v{T+1}, v{T+2}", f"v_max3_u32 v{T+8}, v{T+8}, v{T+3}, v{T+4}",
             f"v_max3_u32 v{T+8}, v{T+8}, v{T+5}, v{T+6}", f"v_max_u32 v{T+8}, v{T+8}, v{T+7}",
             f"v_cmp_eq_u32 vcc, -1, v{T+8}"])
p_ph, p_s0, p_s1 = (flag_poll(n, SWS, f"s{r}", 1) for n, r in (("ph", sF1), ("s0", sF2), ("s1", sF3)))


pieces = [(nh, tb, s) for nh in range(2) for tb in range(4) for s in range(2)]


def x_offset(d, bits=11):
    e(f"v_bfe_u32 v{d}, v{vTOK}, 4, {bits}"); e(f"v_lshlrev_b32 v{d}, 10, v{d}")
    e(f"v_bfe_u32 v{d+1}, v{vBA}, 8, 2"); e(f"v_lshl_add_u32 v{d}, v{d+1}, 3, v{d}")


def paced(t, g, step, fns):
    for k, fn in enumerate(fns):
        p = g + k * step
        P.put(gate(t + p // 136, p % 136)); fn()


def h_loads(half, t, g):
    e(f"v_bfe_u32 v{T}, v{vTOK}, 4, 11")
    for k, d in enumerate(((-1, 1), (-2, 2))[half]):
        e(f"v_add_u32 v{T+1}, {d}, v{T}"); e(f"v_cmp_gt_u32 vcc, 0x800, v{T+1}")
        e(f"v_add_u32 v{T+1}, {16*d}, v{vTOK}"); e(f"v_mov_b32 v{T+2+k}, 0x7f000000")
        e(f"v_cndmask_b32 v{T+2+k}, v{T+2+k}, v{T+1}, vcc")

    def one(ks):
        e(f"s_mov_b32 s{sSF}, {WS_H + ks*PLANE}")
        P.vm(f"buffer_load_dwordx4 {ar(HB(ks),4)}, v{T + 2 + (ks%8)//4}, {srd(SWS)}, s{sSF} offen sc1", ("h", ks))
    paced(t, g, O_("hstep", 18), [lambda ks=ks: one(ks) for ks in range(8 * half, 8 * half + 8)])


def side1():
    if SLIM:
        code_touch(); P.vm(f"buffer_load_dword a255, v{vT1}, {srd(SW2)}, 0 offen")
    P.put(gate(0, 40))
    x_offset(T + 5); e(f"s_lshl_b32 s{sSF}, s{sG}, 7")
    for nb in range(4):
        P.vm(f"buffer_load_dwordx2 {vr(T+6+2*nb,2)}, v{T+5}, {srd(SX)}, s{sSF} offen offset:{nb*32}", "xs")
    e(f"v_lshrrev_b32 v{T}, 4, v{vBA}"); e(f"v_min_u32 v{T}, 2, v{T}"); e(f"v_add_u32 v{T}, s{sM}, v{T}")
    e(f"v_add_u32 v{T}, -1, v{T}"); e(f"v_med3_i32 v{T}, v{T}, 0, 31"); e(f"v_lshlrev_b32 v{vPA}, 3, v{T}")
    if O_("kvt1", 0):
        touch_off(T, (T0 - 5) * 128, 1, 128, [(sG, 0), 5 * 16384], T + 1)
        P.vm(f"buffer_load_dword a255, v{T}, {srd(SK)}, 0 offen"); P.vm(f"buffer_load_dword a255, v{T}, {srd(SV)}, 0 offen")
    P.put(gate(2, 0))
    p_h.issue()
    for i in range(8):
        d = T + 2 * (i % 2)
        e(f"v_lshlrev_b32 v{d}, 16, v{T+6+i}", need=["xs"]); e(f"v_and_b32 v{d+1}, 0xffff0000, v{T+6+i}")
        for h in range(2): e(f"v_fma_f32 v{d+h}, v{d+h}, v{vRSTD}, v{vNMEAN}")
        for h in range(2): e(f"v_accvgpr_write_b32 a{aG2+2*i+h}, v{d+h}")
    P.put(gate(3, 0))
    p_h.check(); h_loads(0, 3, 30)
    P.put(gate(6, 0))
    h_loads(1, 6, 24)
    e(f"s_and_b32 s{sT+1}, s{sG}, 1"); sum_terms(sT, (sG, 448), (sW, 128))
    e(f"s_lshl_b32 s{sT+1}, s{sT+1}, 6"); e(f"s_sub_u32 s{sT}, s{sT}, s{sT+1}")
    dma_voff(vDW2, 3584, False, f"s{sT}", T)
    if O_("w3z", 1):
        e(f"s_lshl_b32 s{sT}, s{sW}, 3"); e(f"v_add_u32 v{T+1}, s{sT}, v{T+1}")
        e(f"s_lshr_b32 s{sT+1}, s{sT+1}, 4"); e(f"v_subrev_u32 v{T+1}, s{sT+1}, v{T+1}")
        e(f"v_cmp_gt_u32 vcc, 28, v{T+1}"); e(f"v_mov_b32 v{T}, 0x7f000000"); e(f"v_cndmask_b32 v{vDW2}, v{T}, v{vDW2}, vcc")
    P.put(gate(8, 164))
    m, q = vRSTD, vNMEAN
    for i in range(16): e(f"v_accvgpr_read_b32 v{T+i}, a{aG2+i}")
    e(f"v_add_f32 v{m}, v{T}, v{T+1}"); e(f"v_mul_f32 v{q}, v{T}, v{T}")
    for i in range(1, 16):
        e(f"v_fmac_f32 v{q}, v{T+i}, v{T+i}")
        if i > 1: e(f"v_add_f32 v{m}, v{m}, v{T+i}")
    allreduce("v_add_f32", [m, q], [T, T + 1], k="v")
    e(f"v_lshrrev_b32 v{T}, 1, v{vBA}")
    masked(0xffff, f"buffer_store_dwordx2 {vr(m,2)}, v{T}, {srd(SWS)}, s{sSTP} offen sc1")
    code_touch()
    e(f"v_and_b32 v{T}, 0xf0, v{vBA}"); e(f"v_lshrrev_b32 v{T}, 1, v{T}"); e(f"v_and_b32 v{T+1}, 0x300, v{vBA}")
    e(f"v_add_u32 v{vPA}, v{T}, v{T+1}")
    P.put(gate(11, 70))
    p_st.issue()
    P.put(gate(12, 60))
    p_st.check()
    u, r = T + 15, T + 16
    e(f"v_add_f32 v{u}, v{T}, v{T+2}"); e(f"v_add_f32 v{r}, v{T+1}, v{T+3}")
    e(f"v_add_f32 v{q}, v{T+4}, v{T+6}"); e(f"v_add_f32 v{m}, v{T+5}, v{T+7}")
    allreduce("v_add_f32", [u, r, q, m], [T, T + 1, T + 2, T + 3], k="v")
    for x in (u, r, q, m): e(f"v_mul_f32 v{x}, {f2u(1/512)}, v{x}")
    for x, y in ((u, r), (q, m)):
        e(f"v_fma_f32 v{y}, -v{x}, v{x}, v{y}"); e(f"v_max_f32 v{y}, 0, v{y}"); e(f"v_add_f32 v{y}, {f2u(EPS)}, v{y}")
    e(f"v_rsq_f32 v{r}, v{r}", k="v"); e(f"v_sqrt_f32 v{m}, v{m}", k="v")
    for i in range(15): e(f"v_accvgpr_read_b32 v{T+i}, a{aG2+i}")
    e(f"v_mul_f32 v{u}, v{u}, v{r}")
    for i in range(15): e(f"v_fma_f32 v{T+i}, v{T+i}, v{r}, -v{u}")
    e(f"v_cvt_pk_bf16_f32 v{T}, v{T}, v{T+1}"); e(f"v_cvt_pk_bf16_f32 v{T+1}, v{T+2}, v{T+3}")
    e(f"v_accvgpr_read_b32 v{T+3}, a{aG2+15}"); e(f"v_fma_f32 v{u}, v{T+3}, v{r}, -v{u}")
    for i in range(2, 8): e(f"v_cvt_pk_bf16_f32 v{T+i}, v{T+2*i}, v{T+2*i+1}")
    for s in range(2):
        e(f"s_add_u32 s{sSF}, s{sHO}, {WS_X1 + s*PLANE}")
        P.vm(f"buffer_store_dwordx4 {vr(T+4*s,4)}, v{vTOK}, {srd(SWS)}, s{sSF} offen sc1", "x1st")
    e(f"v_bfe_u32 v{vPA}, v{vBA}, 4, 3"); e(f"v_lshlrev_b32 v{vPA}, 2, v{vPA}")
    P.put(gate(15, 70))
    set_flags(0, 1, ["x1st"])
    touch_off(T, 512, 4, 3584, [(sG, 448)], T + 1)
    P.vm(f"buffer_load_dword a255, v{T}, {srd(SW3)}, 0 offen")
    touch_off(T, 1792, 1, 128, [(sG, 224 * 1024)], T + 1)
    P.vm(f"buffer_load_dword a255, v{T}, {srd(SW4)}, 0 offen")
    sum_terms(sT, (sG, 224 * 1024), (sW, 256)); dma_voff(vDW4, 1024, False, f"s{sT}", T)
    sum_terms(sT, (sG, (512 - 224) * 1024)); e(f"v_add_u32 v{vDWO}, s{sT}, v{vDW4}")
    e(f"s_sub_u32 s{sT}, s{sRING}, {RING + 65536}")
    for nb in range(4):
        e(f"v_add_u32 v{vAA+nb}, s{sT}, v{vAS+nb}"); e(f"v_add_u32 v{vAA2+nb}, 0x10000, v{vAA+nb}")
    P.put(gate(17, 60))
    p_x.issue(); code_touch()
    P.put(gate(18, 60))
    p_x.check()
    if O_("xnt", 1):
        e(f"v_bfe_u32 v{T+8}, v{vBA}, 5, 2"); e(f"v_and_b32 v{T+9}, 0x1ff00, v{vTOK}"); e(f"v_lshl_add_u32 v{T+8}, v{T+8}, 17, v{T+9}")
        e(f"v_and_b32 v{T+9}, 128, v{vLANE}"); e(f"v_add_u32 v{T+8}, v{T+8}, v{T+9}"); e(f"s_mov_b32 s{sSF}, {WS_X1 + 4*PLANE}")
        P.vm(f"buffer_load_dword a255, v{T+8}, {srd(SWS)}, s{sSF} offen sc1")
    if O_("kvt", 1):
        touch_off(T + 8, (32 - T0) * 128, 1, 128, [(sG, 0), T0 * 16384], T + 9)
        P.vm(f"buffer_load_dword a255, v{T+8}, {srd(SK)}, 0 offen"); P.vm(f"buffer_load_dword a255, v{T+8}, {srd(SV)}, 0 offen")


def x1n_dma(j):
    return [([It(f"s_add_u32 m0, s{sW1K}, {ks*4096}", "s"), It(f"s_mov_b32 s{sSO}, {WS_X1 + ks*PLANE}", "s")],
             [It(f"buffer_load_dwordx4 v{vTOK}, {srd(SWS)}, s{sSO} offen sc1 lds", "g", ("xn", j))])
            for ks in range(4 * j, 4 * j + 4)]


def run_tiles(t0, t1, fill, over, more, endw, ins, must, xtra={}):
    end = T0 - 1 if t0 < T0 else 31
    for t in range(t0, t1):
        groups = (kv_dma("K", t + 4) if t + 4 <= end else []) + (kv_dma("V", t + 3) if t + 3 <= end else [])
        groups = over.get(t, groups) + more.get(t, [])
        attn_iter(t, groups, fill, endw.get(t, ()), ins=ins.get(t), extra=xtra.get(t))
        head = fill[0].at if fill else (99, 0)
        if O_("showfill", 0): print(t, len(fill), head, file=sys.stderr)
        if t in must: assert head and head[0] >= must[t], (t, head, len(fill))


g2 = lambda h: shared_ops(range(8 * h, 8 * h + 8), 8 * h, lambda nb: ar(aG2 + 4 * nb, 4), False, GA,
                          lambda ks: ar(HB(ks), 4), lambda ks: [("h", ks)], f"g2{h}")
op = gemm(mt, 0, 8, ACC, [], (160, 212), opening="get")
opx = {44 + 2 * k: [it] for k, it in enumerate(op[4:12])}
opx.update({62 + k: [it] for k, it in enumerate(op[:4] + op[12:])})
fill = cap(side1)
kv = lambda *a: [g for k in a for g in kv_dma(k[0], int(k[1:]))]
run_tiles(0, T0, fill, {0: kv("V2", "K4", "V3")},
          {1: w2t[0].dma() if SLIM else [], 6: w2t[1].dma(), 17: mt[0].dma(), 19: x1n_dma(2) + x1n_dma(3),
           20: x1n_dma(0) + mt[1].dma(), 21: x1n_dma(1)},
          {3: [("w2", 0)], 7: [("w2", 1)], 20: [("xn", 3)]}, {5: g2(0), 8: g2(1)}, {4: 6, 7: 8, 16: 17, 18: 99}, {T0 - 1: opx})
stamp()

extra = {}
add = lambda g, its: extra.setdefault(g, []).extend(its)
add(1, [It("s_barrier", "s")])
add(2 * 32 + 26, [It(None, "s", need=[("xn", 1)])])
add(2 * 32 + 27, [It("s_barrier", "s")])
add(4 * 32 + 2, [It(f"s_lshl2_add_u32 s{sT}, s{sKS}, s{sTB}", "s")])
add(4 * 32 + 6, [It(f"s_lshl_b32 s{sT}, s{sT}, 10", "s"), It(f"v_add_u32 v{T+9}, s{sT}, v{vBA}", "v")])
for j in range(2):
    add(7 * 32 + 3 + 4 * j, [It(f"ds_read_b128 {ar(aXN+4*j,4)}, v{T+9} offset:{j*8192}", "l", "xnr")])


def h3_addr():
    P.put(gate(0, 7 * 32 + 10))
    e(f"s_and_b32 s{sT+1}, s{sG}, 1"); e(f"s_lshl_b32 s{sT}, s{sW}, 1"); e(f"s_sub_u32 s{sT}, s{sT}, s{sT+1}")
    for s in range(2):
        e(f"s_and_b32 s{sT+1}, s{sT}, 7"); e(f"s_lshl_b32 s{sT+1}, s{sT+1}, 12"); e(f"v_add_u32 v{T+8+s}, s{sT+1}, v{vBA}")
        e(f"s_add_u32 s{sT}, s{sT}, 1")


fill = cap(h3_addr)
pending = mt[2].dma()
gemm(mt, 0, 8, ACC, pending, (160, 212), extra=extra, fill=fill, opening="done", dma0=2)
P.drain(fill)
P.wait(["xnr"]); e("s_barrier")
stamp()


def mlp_act():
    for tb in range(4):
        gelu(16 * tb, 16, 64 + 16 * tb, lambda i: 16 * tb + i, first=tb == 0)
        for s in range(2):
            P.lds(f"ds_write_b128 v{T+8+s}, {vr(16*tb + 4*s,4)} offset:{tb*1024}", "hw")


interleave(cap(mlp_act), [x + y for x, y in pending], 20)
pending = []
if SSET == "mlp": stamp(0)
gemm_pre(mt, 8)
P.wait(["hw"]); e("s_barrier")
if SSET == "mlp": stamp(0)
stamp()
class Extra:
    def __init__(self, groups): self.groups = groups
    def dma(self): return self.groups


def ph_pack(ks):
    for k in ks:
        pack(ACC, *pieces[k])
        for j in range(4): e(f"v_accvgpr_write_b32 a{PHA(k)+j}, v{ACC(pieces[k][0], 2*pieces[k][2], pieces[k][1])+j}")


fill = [gate(0, 180)] + cap(ph_pack, (0, 2, 4, 6)) + [gate(0, 196)] + cap(ph_pack, (1, 3, 5, 7))
gemm(mt + [Extra(kv_dma("K", T0) + kv_dma("K", T0 + 1))], 8, 8, ACC, pending, (160, 212), fill=fill)
assert not pending
P.wait([("K", T0 + 1)]); e("s_barrier")
if SSET == "mlp": stamp(0)
stamp()



for f in range(8): P.puts(frag_reads(T0 - 1, f))
P.drain(fill)
ph_pack(range(8, 10))
gaps = {g: [] for g in range(64)}
for f in range(8, 16): gaps[16 * (f // 4 - 1) + f % 4] += frag_reads(T0 - 1, f)
for f in range(4):
    gaps[48 + f] += frag_reads(T0, f); issued.add((T0, f))
for k, grp in enumerate(kv_dma("V", T0) + kv_dma("K", T0 + 2)): place(add1, 2 + 4 * k, grp, 4 * k - 2)
fill = cap(ph_pack, range(10, 14)) + cap(first_half, False, (20, 36)) + cap(ph_pack, range(14, 16))
P.run_gaps([m for m, _ in qk_mfmas(T0 - 1)], gaps, fill)
P.drain(fill)
if SSET == "mlp": stamp(0)
P.wait([("K", T0 + 2), ("V", T0)] + [("F", T0, f) for f in range(4)]); e("s_barrier")
if SSET == "mlp": stamp(0)
stamp()


XF = [244, 245, 246, 247, 248, 249, T + 10, T + 11]


def side2():
    paced(T0, 60, O_("sstep", 22), [lambda k=k: store_piece(ar(PHA(k), 4), WS_PH, *pieces[k], "phs") for k in range(16)])
    touch_off(T + 8, 4096, 1, 128, [(sG, 1 << 19)], T + 9)
    P.vm(f"buffer_load_dword a255, v{T+8}, {srd(SWO)}, 0 offen")
    code_touch()
    P.put(gate(26, 0)); set_flags(1, 2, ["phs"])
    x_offset(T + 8, 4)
    paced(26, 50, 20, [lambda i=i: P.vm(f"buffer_load_dwordx2 {vr(XF[2*i],2)}, v{T+8}, {srd(SX)}, s{sXF} offen "
                                        f"offset:{(i//2)*128 + (i%2)*32}", "xf") for i in range(4)])
    P.put(gate(27, 40)); p_ph.issue(); o_addr()
    P.put(gate(28, 20)); p_ph.check()
    paced(28, 30, O_("lstep", 22), [lambda k=k: load_piece(WS_PH, ar(PHA(k), 4), k // 2, k % 2, "phl") for k in range(16)])


def o_addr():
    if not PA:
        e(f"v_add_u32 v{T+8}, s{sW4K}, v{vBA}")
        return
    x, y = vDW2, vDW4
    for d, (ro, rb), (co, cb) in ((T + 8, (4, 4), (8, 2)), (T + 9, (6, 4), (4, 2))):
        e(f"v_bfe_u32 v{x}, v{vBA}, {ro}, {rb}"); e(f"v_bfe_u32 v{d}, v{vBA}, {co}, {cb}")
        e(f"v_and_b32 v{y}, 1, v{x}"); e(f"v_xor_b32 v{d}, v{d}, v{y}")
        e(f"v_lshrrev_b32 v{y}, 3, v{x}"); e(f"v_lshlrev_b32 v{y}, 1, v{y}"); e(f"v_xor_b32 v{d}, v{d}, v{y}")
        e(f"v_and_b32 v{y}, 6, v{x}"); e(f"v_lshl_add_u32 v{d}, v{y}, 1, v{d}")
        e(f"v_lshlrev_b32 v{d}, 3, v{d}"); e(f"v_lshl_add_u32 v{d}, v{x}, 7, v{d}")
    e(f"v_add_u32 v{T+8}, s{sW4K}, v{T+8}")


fill = cap(side2)
run_tiles(T0, 31, fill, {T0: kv(f"V{T0+1}", f"K{T0+3}", f"K{T0+4}", f"V{T0+2}"), T0 + 1: kv(f"K{T0+5}", f"V{T0+3}", f"V{T0+4}")}, {O_("wo0", 29): ot[0].dma(), 30: ot[1].dma()}, {}, {}, {30: 99})


vOW, vOR = 208, 212


def o_norm(s):
    for qb in range(4):
        b = 32 * (s % 2) + 8 * qb
        for h in range(2):
            for j in range(4): e(f"v_accvgpr_read_b32 v{b+4*h+j}, a{O(2*s+h,qb)+j}")
        for j in range(0, 8, 2):
            e(f"v_pk_mul_f32 {vr(b+j,2)}, {vr(b+j,2)}, {vr(NM(qb) + j%4,2)}" if PA else
              f"v_pk_mul_f32 {vr(b+j,2)}, {vr(b+j,2)}, {vr(NM(qb),2)} op_sel_hi:[1,0]")
        for j in range(4): e(f"v_cvt_pk_bf16_f32 v{b+j}, v{b+2*j}, v{b+2*j+1}")
        yield (It(f"ds_write2st64_b64 v{vOW+qb}, {vr(b,2)}, {vr(b+2,2)} offset0:{32*s} offset1:{32*s+4}", "l", "ow") if PA else
               It(f"ds_write_b128 v{T+8}, {vr(b,4)} offset:{s*16384 + qb*1024}", "l", "ow"))


LREGS = [4 * qb + j for qb in range(4) for j in range(4 if PA else 1)]


def row_sums():
    for i in LREGS: e(f"v_accvgpr_read_b32 v{vR+i}, a{LACC(0)+i}")


def row_inverses():
    for i in LREGS:
        e(f"v_rcp_f32_dpp v{vR+i}, v{vR+i} row_newbcast:0 row_mask:0xf bank_mask:0xf" if PA and SPARSE else f"v_rcp_f32 v{vR+i}, v{vR+i}")


def vote():
    v = 56
    P.put(gate(31, 36))
    e(f"s_lshl_b32 s{sT+1}, s{sW}, 2"); e(f"s_add_u32 s{sT+1}, s{sT+1}, {RING + 32768}")
    e(f"v_mov_b32 v{v+4}, {f2u(-1.0 if FORCE_REDO else 2.0**40)}"); e(f"v_mov_b32 v{v+5}, s{sT+1}"); e(f"v_mov_b32 v{v+6}, {RING + 32768}")
    P.put(gate(31, 42))
    row_sums()
    r = [vR + i for i in LREGS]
    e(f"v_maximum3_f32 v{v}, v{r[0]}, v{r[1]}, v{r[1]}")
    for i in range(2, len(r), 2): e(f"v_maximum3_f32 v{v}, v{v}, v{r[i]}, v{r[i+1]}")
    e(f"v_cmp_nle_f32 vcc, v{v}, v{v+4}")
    e(f"s_cmp_lg_u64 vcc, 0\n    s_cselect_b32 s{sT}, 1, 0", k="v")
    e(f"v_mov_b32 v{v}, s{sT}")
    P.lds(f"ds_write_b32 v{v+5}, v{v}", "vote")
    inv = P.rec; n0 = len(inv)
    row_inverses()
    k = n0 + min(6, len(LREGS))
    inv[k:k] = [It(None, "s", need=["vote"]), It("s_barrier", "s"), It(f"ds_read_b128 {vr(v,4)}, v{v+6}", "l", "votes")]
    e(f"v_or3_b32 v{v}, v{v}, v{v+1}, v{v+2}", need=["votes"]); e(f"v_or_b32 v{v}, v{v}, v{v+3}")
    e(f"v_readfirstlane_b32 s{sT}, v{v}")


fill = cap(vote)
attn_iter(31, [], fill)
P.drain(fill)
e(f"s_cmp_lg_u32 s{sT}, 0"); e("s_cbranch_scc1 L_redo")
lab("L_att_done")
stamp()

if PA:
    for qb in range(4):
        e(f"v_xor_b32 v{vOW+qb}, {32*qb}, v{T+8}"); e(f"v_xor_b32 v{vOR+qb}, {32*qb}, v{T+9}")
held = None
for s in range(4):
    for wr in o_norm(s):
        if held: P.put(held)
        held = wr
P.put(held)
if SSET == "o": stamp(0)
gemm_pre(ot, 0)
P.wait(["ow"]); e("s_barrier")
if SSET == "o": stamp(0)
stamp()
OACC = lambda nh, nb, tb: 64 + ACC(nh, nb, tb)
PSR = lambda g, nh: nh * 32 + g * 4


def o_side():
    P.put(gate(0, 32 * 8 + 4))
    for p in pieces[:8]: pack(OACC, *p)
    for p, g in zip(pieces, [int(x) for x in opt.get("s0g", "440,448,456,464,472,480,488,496").split(",")]):
        P.put(gate(0, g))
        store_piece(vr(OACC(0, 2 * p[2], p[1]), 4), WS_PS, *p, "s0s")


fill = cap(o_side)
pending = ot[2].dma()
gemm(ot, 0, 16, OACC, pending, (0, 32), fill=fill, breg=vOR if PA else vBA, btr=PA)
P.drain(fill)
stamp()
for k, p in enumerate(pieces[8:]):
    pack(OACC, *p); store_piece(vr(OACC(1, 2 * p[2], p[1]), 4), WS_PS, *p, "s1s")
    if k == O_("f0k", 3): set_flags(2, 2, ["s0s"])
vY, vS, vG, vX = 64, 80, 96, 112
for i in range(8): e(f"v_accvgpr_read_b32 v{vG+i}, a{aXN+i}")
for i in range(8):
    e(f"v_lshlrev_b32 v{vY+2*i}, 16, v{vG+i}"); e(f"v_and_b32 v{vY+2*i+1}, 0xffff0000, v{vG+i}")
for i in range(16): e(f"v_fma_f32 v{vY+i}, v{vY+i}, v{vRSTD}, v{vNMEAN}")
for k in range(17):
    if k < 16:
        for j in range(4): e(f"v_accvgpr_read_b32 v{vG + 4*(k%2) + j}, a{PHA(k)+j}", need=[("phl", k // 2, k % 2)])
    if k: add_piece(vY + 8 * ((k - 1) % 2), vG + 4 * ((k - 1) % 2), False, ())
p_s0.issue()
for i in range(16): e(f"v_mul_f32 v{vG+i}, s{sNL2E}, v{vY+i}")
for i in range(16): e(f"v_exp_f32 v{vG+i}, v{vG+i}")
for i in range(0, 16, 2): e(f"v_pk_add_f32 {vr(vG+i,2)}, {vr(vG+i,2)}, 1.0 op_sel_hi:[1,0]")
for i in range(16): e(f"v_rcp_f32 v{vG+i}, v{vG+i}")
for i in range(0, 16, 2): e(f"v_pk_mul_f32 {vr(vG+i,2)}, {vr(vG+i,2)}, {vr(vY+i,2)}")
for i in range(8):
    e(f"v_lshlrev_b32 v{vX+2*i}, 16, v{XF[i]}", need=["xf"]); e(f"v_and_b32 v{vX+2*i+1}, 0xffff0000, v{XF[i]}")
e(f"v_bfe_u32 v200, v{vTOK}, 4, 4"); e("v_lshlrev_b32 v200, 10, v200"); e(f"v_bfe_u32 v201, v{vBA}, 8, 2")
e("v_lshl_add_u32 v200, v201, 4, v200")
set_flags(3, 2, ["s1s"])
stamp(2)
p_s0.check()
for g in range(8): load_piece(WS_PS, vr(PSR(g, 0), 4), g, 0, "psl")
p_s1.issue()


def finish(nh):
    for g in range(8): add_piece(vS + 8 * nh, PSR(g, nh), g == 0, [("psl", g, nh)])
    for i in range(8 * nh, 8 * nh + 8, 2): e(f"v_pk_fma_f32 {vr(vG+i,2)}, {vr(vG+i,2)}, {vr(vS+i,2)}, {vr(vX+i,2)}")
    d = 204 + 4 * nh
    for i in range(4): e(f"v_cvt_pk_bf16_f32 v{d+i}, v{vG+8*nh+2*i}, v{vG+8*nh+2*i+1}")
    for sw in ("v_permlane32_swap_b32", "v_permlane16_swap_b32"):
        for j in range(2): e(f"{sw} v{d+j}, v{d+2+j}")
    P.vm(f"buffer_store_dwordx4 {vr(d,4)}, v200, {srd(SOUT)}, s{sXF} offen offset:{nh*128}")


p_s1.check()
stamp()
for g in range(8): load_piece(WS_PS, vr(PSR(g, 1), 4), g, 1, "psl")
finish(0)
finish(1)
if AMP:
    P.wait_all(); stamp()
    e(f"s_sub_u32 s{sST}, s{sST+2}, s{sST}")
    e(f"s_lshr_b32 s{sST}, s{sST}, 5" if AMP[3] else f"s_lshl_b32 s{sST}, s{sST}, {AMP[2]}")
    e(f"s_memrealtime {sr(sST+2,2)}"); e("s_waitcnt lgkmcnt(0)")
    lab("L_amp")
    e(f"s_memrealtime {sr(sST+4,2)}"); e("s_waitcnt lgkmcnt(0)")
    e(f"s_sub_u32 s{sST+4}, s{sST+4}, s{sST+2}"); e(f"s_cmp_lt_u32 s{sST+4}, s{sST}"); e("s_cbranch_scc1 L_amp")
if STAMP:
    P.wait_all()
    stamp()
    e(f"s_lshl_b32 s{sT}, s2, 2"); e(f"s_add_u32 s{sT}, s{sT}, s{sW}"); e(f"s_lshl_b32 s{sT}, s{sT}, 8")
    e(f"s_add_u32 s{sT}, s{sT}, {WS_ST}"); e(f"v_lshrrev_b32 v0, 2, v{vBA}")
    P.vm(f"buffer_store_dword v{vSTAMP}, v0, {srd(SWS)}, s{sT} offen")
e("s_endpgm")

lab("L_side")
for p in slow_paths:
    lab(f"L_slow_{p.name}")
    e("s_sleep 1")
    for l in p.loads: e(l)
    e(f"s_add_u32 s{sSPIN}, s{sSPIN}, 1")
    e("s_waitcnt vmcnt(0)")
    for t in p.tests: e(t)
    e(f"s_cmp_gt_u32 s{sSPIN}, 0x200000"); e(f"s_cbranch_scc1 L_back_{p.name}")
    e(f"s_cbranch_vccnz L_slow_{p.name}")
    e(f"s_branch L_back_{p.name}")

lab("L_redo")
P.lq, P.vq = [], []
for s in range(4): e(f"v_add_u32 v{KA(s)}, 49152, v{KA(s)}")
for qb in range(4): e(f"v_mov_b32 v{NM(qb)}, 0xff800000")


def redo_tile(kinds, zero):
    P.used = set()
    P.wait_all(); e("s_barrier")
    for kind, lds in kinds: flush(kv_dma(kind, 0, lds=lds, so=f"s{sCNT}"))
    P.wait_all(); e("s_barrier")
    mf = [m for m, _ in qk_mfmas(2, zero=zero)]
    for half in range(2):
        for f in range(8 * half, 8 * half + 8): P.puts(frag_reads(2, f))
        P.puts(mf[32 * half:32 * half + 32])


e(f"s_mov_b32 s{sCNT}, 0")
lab("L_rmax")
redo_tile([("K", 98304)], True)
for qb in range(4):
    regs = [S(1, kb, qb) + i for kb in range(4) for i in range(4)]
    for i in range(0, 16, 2): e(f"v_max3_f32 v{NM(qb)}, v{NM(qb)}, v{regs[i]}, v{regs[i+1]}")
e(f"s_add_u32 s{sCNT}, s{sCNT}, 16384"); e(f"s_cmp_lt_u32 s{sCNT}, 0x80000"); e("s_cbranch_scc1 L_rmax")
allreduce("v_max_f32", [NM(qb) for qb in range(4)], [NM(qb) + 1 for qb in range(4)])
for qb in range(4):
    for i in (1, 2, 3, 0): e(f"v_sub_f32 v{NM(qb)+i}, 0, v{NM(qb)}")
for i in list(range(128)) + list(range(192, 208)): e(f"v_accvgpr_write_b32 a{i}, 0")
e(f"s_mov_b32 s{sCNT}, 0")
lab("L_rpv")
redo_tile([("K", 98304), ("V", 114688)], False)
for half in range(2):
    ex, post = sm_stream(1, half)
    P.puts(ex); P.puts([x for p in post for x in p])
mf = [m for m, _ in pv_mfmas(3)]
for half in range(2):
    for f in range(16 + 8 * half, 24 + 8 * half): P.puts(frag_reads(3, f))
    P.puts(mf[36 * half:36 * half + 36])
e(f"s_add_u32 s{sCNT}, s{sCNT}, 16384"); e(f"s_cmp_lt_u32 s{sCNT}, 0x80000"); e("s_cbranch_scc1 L_rpv")
row_sums(); row_inverses()
e("s_branch L_att_done")
lab("L_end")
e("s_endpgm")
P.L += ['.section .rodata,"a"', ".p2align 6", f".amdhsa_kernel {NAME}",
        "  .amdhsa_next_free_vgpr 512", "  .amdhsa_next_free_sgpr 102", "  .amdhsa_accum_offset 256",
        "  .amdhsa_group_segment_fixed_size 0", "  .amdhsa_kernarg_size 104", "  .amdhsa_user_sgpr_count 2",
        "  .amdhsa_user_sgpr_kernarg_segment_ptr 1", "  .amdhsa_system_sgpr_workgroup_id_x 1",
        "  .amdhsa_float_denorm_mode_32 3", ".end_amdhsa_kernel"]
lines = "\n".join(P.L).split("\n")
ABL = opt.get("abl", "")
if ABL:
    i0 = next(i for i, l in enumerate(lines) if "output projection" in l); i1 = lines.index("L_side:")
    j0 = max(i for i in range(i0, i1) if MF in lines[i])
    keep = []
    for i, l in enumerate(lines):
        if i0 < i < i1:
            if "p" in ABL and "s_cbranch_vccnz L_slow_s" in l: continue
            if "w" in ABL and i > j0 and "vmcnt" in l and "v_dot2" not in lines[i + 1]: continue
            if "l" in ABL and "buffer_load_dwordx4" in l and "sc1" in l: continue
            if "s" in ABL and "buffer_store_dwordx4" in l and "sc1" in l: continue
        keep.append(l)
    lines = keep
if opt.get("tcf"): lines = [l + " " + opt["tcf"] if "_load_dword a255" in l and "sc1" not in l and ", off" not in l else l for l in lines]
lines, added = fix_hazards(lines)
nhop = 0
if HOP: lines, nhop = add_page_hops(lines, "L_main", "L_side", sW)
lines = [l for l in lines if "@hop" not in l]
if O_("short", 1): lines = compress(lines)
text = "\n".join(lines) + "\n"
open(OUT_PATH, "w").write(text)
print(f"{OUT_PATH}: {len(lines)} lines, {len(text)} bytes, {added} wait states padded, {nstamp[0]} stamps, {nhop} hops", file=sys.stderr)
```

```python
import math
import struct
import sys
from asmlib import *

OUT_PATH = sys.argv[1]
opt = dict(a.split("=") for a in sys.argv[2:])
O_ = lambda k, d: int(opt.get(k, d))
STAMP = O_("stamp", 0)
SSET = opt.get("sset", "")
FORCE_REDO = O_("redo", 0)
QPERM = O_("qperm", 1)
PA = O_("pa", 1)
XREG = O_("xreg", 1)
SPARSE = O_("sparse", 1)
AHEAD = O_("ahead", 10)
AMP = [int(x) for x in opt["amp"].split(",")] if "amp" in opt else None

NAME = "recurrent_scan__gqa_block_cached__mixer_s_mlp__prompt_kernel"
MF = "v_mfma_f32_16x16x32_bf16"
f2u = lambda x: "0x%08x" % struct.unpack("<I", struct.pack("<f", x))[0]
LOG2E = math.log2(math.e)
QSCALE = LOG2E / math.sqrt(128.0)
GC1 = -2.0 * math.sqrt(2.0 / math.pi) * LOG2E
GC2 = GC1 * 0.044715
EPS = 1e-5

SX, SK, SV, SWS, SWQ, SWO, SW1, SW2, SW3, SW4, SOUT, SDBG = range(4, 52, 4)
sG, sM, sW = 52, 53, 54
sT = 55
sW1K, sW4K, sRING, sSO = 60, 61, 62, 63
sSF, sCNT, sSPIN, sHO, sPP, sPC, sFL, sF0, sF1, sSTP, sSTC = range(64, 75)
sLO, sHI, sONE2, sC1, sC2, sNL2E, sF2, sMSK, sKS, sF3, sTB, sSTF, sXF = range(75, 88)
sST = 92
srd = lambda b: sr(b, 4)

WS_H, WS_X1, WS_PS, WS_PH, WS_FL, WS_SS, WS_ST = 0, 0x200000, 0x400000, 0x1400000, 0x2400000, 0x2500000, 0x4000000
PLANE = 131072

vBA, vTOK, vNMEAN, vRSTD, vLANE, vSTAMP, vCODE, vAS, vDW2 = 255, 254, 253, 252, 251, 250, 248, 244, 243
T = 226
vAA, vAA2 = T, T + 4
vBX, vWA, vSC1, vDWQ, vDW1 = T + 8, T + 9, T + 12, T + 14, T + 15
vPA, vPOLL, vONE, vDW4, vDWO = T + 16, T + 15, T + 14, T + 13, T + 12
vTC = T + 10
XR = 128
G12 = 192
S = lambda buf, kb, qb: buf * 64 + ((kb >> 1) * 4 + qb) * 8 + (kb & 1) * 4
PR = lambda buf, ks, qb: buf * 64 + (ks * 4 + qb) * 8
Q = lambda qb, s: 128 + (qb * 4 + s) * 4
NM = lambda qb: 192 + 4 * qb
KA = lambda s: 208 + s
VA = lambda db: 212 + db
KG = lambda i: 220 + i
VG = lambda i: 224 + (i & 1)
vR = NM(0)
O = lambda db, qb: (db * 4 + qb) * 4
FR = lambda f: 128 + (f % 8) * 4
HB = lambda ks: 160 + (ks % 8) * 4
LACC = lambda qb: 192 + 4 * qb
aONES, aG2, aXN = 208, 212, 244
GA = lambda i: 228 + (i % 4) * 4
AF = lambda f: 128 + (f % 8) * 4
PHA = lambda k: (160, 212)[k // 8] + (k % 8) * 4
T0 = 22
RING, VOFF = 65536, 65536

P = Prog()
e, lab, cap = P.e, P.lab, P.capture
slow_paths = []
nstamp = [0]


JIT = O_("jitter", 0)
njit = [0]


def jitter():
    i = njit[0]; njit[0] += 1
    e(f"s_memrealtime {sr(96,2)}"); P.wait_all(vm=False)
    e(f"s_lshr_b32 s96, s96, 14"); e(f"s_lshl_b32 s97, s2, 2" if JIT & 1 else "s_mov_b32 s97, s2")
    if JIT & 1: e(f"s_add_u32 s97, s97, s{sW}")
    e(f"s_add_u32 s96, s96, s97"); e(f"s_add_u32 s96, s96, {i * 7919 + 13}"); e("s_mul_i32 s96, s96, 0x9e3779b1")
    e("s_mov_b32 s98, s96")
    e(f"s_lshr_b32 s96, s96, {32 - (JIT >> 1)}")
    lab(f"L_jit{i}")
    e("s_sleep 8"); e("s_sub_u32 s96, s96, 1"); e(f"s_cbranch_scc0 L_jit{i}")


def jitter_item():
    i = njit[0]; njit[0] += 1
    return It(f"s_mul_i32 s98, s98, 0x41c64e6d\n    s_add_u32 s98, s98, 12345\n    s_lshr_b32 s99, s98, 27\n"
              f"    s_sub_u32 s99, s99, 24\n    s_cbranch_scc1 L_jx{i}\nL_jw{i}:\n    s_sleep {O_('jit2', 0)}\n"
              f"    s_sub_u32 s99, s99, 1\n    s_cbranch_scc0 L_jw{i}\nL_jx{i}:", "s")


def stamp(level=1):
    if JIT and level == 1: jitter()
    if AMP and level == 1:
        i = nstamp[0]; nstamp[0] += 1
        if i in AMP[:2]:
            e(f"{'s_memtime' if AMP[3] else 's_memrealtime'} {sr(sST + 2*AMP.index(i),2)}"); P.wait_all(vm=False)
        return
    if STAMP < level or (SSET and level != 0):
        return
    i = nstamp[0]; nstamp[0] += 1
    e(f"s_memtime {sr(sST,2)}"); e(f"s_memrealtime {sr(sST+2,2)}")
    P.wait_all(vm=False)
    e(f"v_writelane_b32 v{vSTAMP}, s{sST}, {2*i}")
    e(f"v_writelane_b32 v{vSTAMP}, s{sST+2}, {2*i+1}")


def stamp_item():
    i = nstamp[0]; nstamp[0] += 1
    return It(f"s_memtime {sr(sST,2)}\n    s_memrealtime {sr(sST+2,2)}\n    s_waitcnt lgkmcnt(0)\n"
              f"    v_writelane_b32 v{vSTAMP}, s{sST}, {2*i}\n    v_writelane_b32 v{vSTAMP}, s{sST+2}, {2*i+1}", "s")


def mk_srd(d, p, size):
    e(f"s_mov_b32 s{d}, s{p}"); e(f"s_mov_b32 s{d+1}, s{p+1}"); e(f"s_mov_b32 s{d+2}, {size}"); e(f"s_mov_b32 s{d+3}, 0x20000")


def sum_terms(dst, *terms):
    first = True
    for t in terms:
        if isinstance(t, int):
            e(f"s_add_u32 s{dst}, s{dst}, {t}"); continue
        r, k = t
        if k == 0:
            e(f"s_mov_b32 s{dst}, 0"); first = False; continue
        d = dst if first else sT + 4
        e(f"s_lshl_b32 s{d}, s{r}, {k.bit_length()-1}" if k & (k - 1) == 0 else f"s_mul_i32 s{d}, s{r}, {k}")
        if not first: e(f"s_add_u32 s{dst}, s{dst}, s{d}")
        first = False


def allreduce(op, regs, tmps, k=None):
    for sw in ("v_permlane32_swap_b32", "v_permlane16_swap_b32"):
        for r, t in zip(regs, tmps): e(f"v_mov_b32 v{t}, v{r}")
        for r, t in zip(regs, tmps): e(f"{sw} v{r}, v{t}", k=k)
        for r, t in zip(regs, tmps): e(f"{op} v{r}, v{r}, v{t}")


def masked(mask, txt, tag=None, lds=False):
    (P.lds if lds else P.vm)(f"s_mov_b64 exec, {mask}\n    {txt}\n    s_mov_b64 exec, -1", tag)


class Poll:
    def __init__(self, name, loads, tests):
        self.name, self.loads, self.tests = name, loads, tests
        slow_paths.append(self)

    def issue(self):
        for l in self.loads: P.vm(l, self.name)

    def check(self):
        for i, t in enumerate(self.tests): e(t, need=[self.name] if i == 0 else ())
        e(f"s_cbranch_vccnz L_slow_{self.name}\nL_back_{self.name}:", k="v")


def flag_poll(name, s_rd, soff, target):
    return Poll(name, [f"buffer_load_dword v{vPOLL}, v{vPA}, {srd(s_rd)}, {soff} offen sc1"],
                [f"v_cmp_gt_u32 vcc, {target}, v{vPOLL}"])


def set_flags(stage, nlanes, need, val=1):
    e(f"v_mov_b32 v{vONE}, {val}")
    e(f"s_add_u32 s{sSF}, s{sFL}, {stage * 1024}")
    P.wait(need)
    masked((1 << nlanes) - 1, f"buffer_store_dword v{vONE}, v{vLANE}, {srd(SWS)}, s{sSF} offen sc1")


def interleave(code, side, every):
    side = list(side)
    for k, it in enumerate(code):
        if side and k % every == 0: P.puts(side.pop(0))
        P.put(it)
    for x in side: P.puts(x)


def gelu(base, n, tmp, dst, first):
    pairs = range(0, n, 2)
    if first:
        e(f"v_mov_b32 v{vTC}, s{sC1}"); e(f"v_mov_b32 v{vTC+1}, s{sC2}")
    for i in pairs: e(f"v_pk_mul_f32 {vr(tmp+i,2)}, {vr(base+i,2)}, {vr(base+i,2)}")
    for i in pairs: e(f"v_pk_fma_f32 {vr(tmp+i,2)}, {vr(tmp+i,2)}, {vr(vTC,2)}, {vr(vTC,2)} op_sel:[0,1,0] op_sel_hi:[1,1,0]")
    for i in pairs: e(f"v_pk_mul_f32 {vr(tmp+i,2)}, {vr(tmp+i,2)}, {vr(base+i,2)}")
    for i in range(n): e(f"v_exp_f32 v{tmp+i}, v{tmp+i}")
    for i in pairs: e(f"v_pk_add_f32 {vr(tmp+i,2)}, {vr(tmp+i,2)}, 1.0 op_sel_hi:[1,0]")
    for i in range(n): e(f"v_rcp_f32 v{tmp+i}, v{tmp+i}")
    for i in pairs: e(f"v_pk_mul_f32 {vr(tmp+i,2)}, {vr(tmp+i,2)}, {vr(base+i,2)}")
    for i in pairs: e(f"v_cvt_pk_bf16_f32 v{dst(i//2)}, v{tmp+i}, v{tmp+i+1}")


class Tile:
    def __init__(self, s_rd, voff, base, stride, perm, slot, tag, rows=64, kp=0, nh=0, half=32):
        self.__dict__.update(locals())

    def dma(self):
        out = []
        for i in range(self.rows // 8):
            row = ((0, 16, 4, 20)[i & 3] if self.perm else 8 * (i & 3)) + self.half * (i >> 2)
            so = self.base + row * self.stride - (i & 3) * 1024
            pre = [It(f"s_add_u32 m0, s{sRING}, {self.slot * 32768 + (i >> 2) * 4096}", "s")] if i % 4 == 0 else []
            out.append((pre + [It(f"s_mov_b32 s{sSO}, {so}", "s")],
                        [It(f"buffer_load_dwordx4 v{self.voff}, {srd(self.s_rd)}, s{sSO} offen "
                            f"offset:{(i & 3) * 1024} lds", "g", self.tag)]))
        return out


def place(add, g, grp, prev, avoid=()):
    pre, its = grp
    c = [h for h in range(max(prev + 1, 0), g) if h not in avoid][-len(pre):] if pre else []
    for k, it in enumerate(pre): add(c[k] if len(c) == len(pre) else max(g - len(pre) + k, prev + 1, 0), it)
    for it in its: add(g, it)


def dma_voff(dst, stride, perm, s_base, a):
    b = a + 1
    e(f"v_lshrrev_b32 v{a}, 10, v{vLANE}")
    e(f"v_bfe_u32 v{b}, v{vBA}, 4, 3")
    e(f"v_and_b32 v{dst}, 6, v{a}"); e(f"v_xor_b32 v{b}, v{b}, v{dst}")
    if perm:
        e(f"v_and_b32 v{dst}, 4, v{a}"); e(f"v_add_u32 v{a}, v{a}, v{dst}")
    e(f"v_mul_u32_u24 v{a}, {stride}, v{a}")
    e(f"v_lshl_add_u32 v{a}, v{b}, 4, v{a}")
    e(f"v_add_u32 v{dst}, {s_base}, v{a}")


def a_reads(t, ti, nb):
    base = (vAA2 if t.slot == 2 else vAA) + nb
    off = (t.slot % 2) * 32768 if t.slot < 2 else 0
    return [It(f"ds_read_b64_tr_b16 {ar(AF(nb*2+ks) + 2*h, 2)}, v{base} offset:{off + ks*4096 + h*2048}", "l",
               ("A", t.tag, nb), need=[t.tag]) for ks in range(t.rows // 32) for h in range(2)]


def gemm_pre(tiles, i0):
    P.puts(a_reads(tiles[i0], i0, 0))


def gemm(tiles, i0, n, acc, pending, bf, breg=vBA, extra=None, fill=None, over=0, opening=None, dma0=0, btr=False):
    bf = [x if isinstance(x, tuple) else (ar, x) for x in bf]
    BF = lambda s, ks, tb, o=0, w=4: bf[grp[s] % len(bf)][0](bf[grp[s] % len(bf)][1] + (ks * 4 + tb) * 4 + o, w)
    ms, gaps, start, grp, held, fresh = [], {}, [], [], {}, []
    seen = set()
    for s, ti in enumerate(range(i0, i0 + n)):
        t = tiles[ti]
        fresh.append(t.kp not in held)
        if fresh[s]:
            k = max(grp, default=-1) + 1
            while s and k % len(bf) == grp[s - 1] % len(bf): k += 1
            held = {kp: g for kp, g in held.items() if g % len(bf) != k % len(bf)}
            held[t.kp] = k
        grp.append(held[t.kp])
        start.append(len(ms))
        nks = t.rows // 32
        for nb in range(4):
            for tb in range(4):
                for ks in (range(nks) if not tb & 1 else range(nks - 1, -1, -1)):
                    d = vr(acc(t.nh, nb, tb), 4)
                    c = d if (t.nh, nb, tb) in seen else "0"
                    seen.add((t.nh, nb, tb))
                    ms.append(It(f"{MF} {d}, {ar(AF(nb*2+ks),4)}, {BF(s,ks,tb)}, {c}", "m",
                                 need=[("A", t.tag, nb), ("B", tiles[i0].tag, grp[s], tb)]))
    start.append(len(ms))

    def b_reads(s):
        t = tiles[i0 + s]
        if btr:
            return [It(f"ds_read_b64_tr_b16 {BF(s,ks,tb,2*h,2)}, v{breg+tb} offset:{t.kp*8192 + ks*4096 + h*2048}",
                       "l", ("B", tiles[i0].tag, grp[s], tb)) for tb in range(4) for ks in range(2) for h in range(2)]
        return [It(f"ds_read_b128 {BF(s,ks,tb)}, v{breg} offset:{t.kp*8192 + ks*4096 + tb*1024}", "l",
                   ("B", tiles[i0].tag, grp[s], tb)) for tb in range(4) for ks in range(t.rows // 32)]

    add = lambda g, it: gaps.setdefault(g, []).append(it)
    pre = b_reads(0)
    release = {}
    for s in range(n):
        ti = i0 + s; t = tiles[ti]
        per = (start[s + 1] - start[s]) // 4
        for nb in range(4):
            if s == 0 and nb == 0: continue
            rd = a_reads(t, ti, nb)
            for k, it in enumerate(rd):
                g = start[s] + per * nb - 6 - 2 * (len(rd) - 1 - k)
                if g < 0: pre.append(it)
                else: add(g, it)
        if ti + 3 < len(tiles) and tiles[ti + 3]: release[start[s] + 3 * per] = tiles[ti + 3]
        if s + 1 < n and fresh[s + 1]:
            s0 = s - 1 if s and not fresh[s] and grp[s - 1] % len(bf) != grp[s + 1] % len(bf) else s
            rd = b_reads(s + 1)
            cand = [g for g in range(start[s0], start[s + 1] - 6) if g % 4 == 3]
            if btr: cand = sorted(cand * 2)
            if len(cand) < len(rd): cand = sorted(cand + [start[s0] + 2 * k for k in range(len(rd) - len(cand))])
            step = len(cand) / len(rd)
            for k, it in enumerate(rd): add(cand[int(k * step)], it)
    if opening == "get": return a_reads(tiles[i0], i0, 0) + pre
    if opening == "done": pre = []
    prev = dma0 - 1
    for g in range(dma0, len(ms)):
        if g in release: pending += release[g].dma()
        nxt = min([r for r in release if r > g], default=len(ms) + 24)
        if pending and (g % 4 == 1 or (g % 4 == 3 and len(pending) > (nxt - g + 1) // 4)):
            place(add, g, pending.pop(0), prev); prev = g
    for g, its in (extra or {}).items():
        for it in its: add(g, it)
    for g in start[:-1]: add(g + 10, hop())
    if O_("jit2", 0):
        for g in start[:-1]: add(g + 4, jitter_item())
    if SSET == {id(qt): "q", id(ot): "o"}.get(id(tiles), "mlp"):
        for g in start[:-1] + [len(ms) - 1]: add(g, stamp_item())
    P.puts(pre)
    P.run_gaps(ms, gaps, fill, gmin=4, over=over)


def flush(pending):
    while pending:
        a, b = pending.pop(0)
        P.puts(a + b)


def shared_ops(kss, koff, acc, zero, afr, breg, bneed, name, i0=0):
    out = []
    for nb in range(4):
        for ks in kss:
            i = i0 + len(out)
            d = acc(nb)
            out.append((It(f"{MF} {d}, {ar(afr(i),4)}, {breg(ks)}, {0 if zero and not ks else d}", "m",
                           need=[(name, i)] + list(bneed(ks))),
                        [It(f"ds_read_b64_tr_b16 {ar(afr(i)+2*h,2)}, v{vAS+nb} offset:{(ks-koff)*4096 + h*2048}", "l",
                            (name, i)) for h in range(2)]))
    return out


def pack(acc, nh, tb, s, second=False, guard=False):
    a, b = acc(nh, 2 * s, tb), acc(nh, 2 * s + 1, tb)
    order = list(enumerate((a, a + 2, b, b + 2)))
    d = b if second else a
    for j, r in reversed(order) if second else order: e(f"v_cvt_pk_bf16_f32 v{d+j}, v{r}, v{r+1}")
    if guard:
        for j in range(4): e(f"v_min_u32 v{d+j}, -2, v{d+j}")


def store_piece(src, ws_base, nh, tb, s, tag):
    e(f"s_add_u32 s{sSF}, s{sPP}, {ws_base + (tb >> 1)*65536 + ((tb & 1) + 2*s)*2048}")
    P.vm(f"buffer_store_dwordx4 {src}, v{vBA}, {srd(SWS)}, s{sSF} offen offset:{nh*1024} sc1", tag)


def load_piece(ws_base, dst, g, nh, tag):
    e(f"s_add_u32 s{sSF}, s{sPC}, {ws_base + g*8192}")
    P.vm(f"buffer_load_dwordx4 {dst}, v{vBA}, {srd(SWS)}, s{sSF} offen offset:{nh*1024} sc1", (tag, g, nh))


def add_piece(dst, reg, first, need):
    for j in range(4):
        for h, sel in enumerate((sLO, sHI)):
            d = dst + 2 * j + h
            e(f"v_dot2_f32_bf16 v{d}, v{reg+j}, s{sel}, {0 if first else 'v%d' % d}", need=need)


def frag_reads(t, f, tail=False):
    if f < 16:
        kb, s = f // 4, f % 4
        off = ((t + 1) % 4) * 16384 + kb * 4096
        return [It(f"ds_read_b128 {ar(FR(f),4)}, v{KA(s)} offset:{off}", "l", ("F", t, f))]
    db, ks = ((f - 16) // 2, (f - 16) % 2) if not tail else ((f - 16) % 8, (f - 16) // 8)
    off = (t % 4) * 16384 + ks * 8192
    return [It(f"ds_read_b64_tr_b16 {ar(FR(f)+2*h,2)}, v{VA(db)} offset:{off + 4096*h}", "l", ("F", t, f))
            for h in range(2)]


def qk_mfmas(t, zero=False):
    out = []
    for kb in range(4):
        for qb in range(4):
            for n, s in enumerate(range(4) if not qb & 1 else range(3, -1, -1)):
                d = vr(S((t + 1) & 1, kb, qb), 4)
                c = d if n else ("0" if zero else vr(NM(qb), 4))
                out.append((It(f"{MF} {d}, {ar(FR(kb*4+s),4)}, {vr(Q(qb,s),4)}, {c}", "m",
                               need=[("F", t, kb * 4 + k) for k in range(4)]), kb * 4 + s))
    return out


def pv_one(t, db, qb, ks, f, need, zero=False):
    o = ar(O(db, qb), 4)
    ab = [ar(FR(f), 4), vr(PR(t & 1, ks, qb), 4)][::-1 if PA else 1]
    return (It(f"{MF} {o}, {ab[0]}, {ab[1]}, {0 if zero else o}", "m", need=need), f)


def sum_one(t, qb, ks, zero=False):
    l = ar(LACC(qb), 4)
    ab = [ar(aONES, 4), vr(PR(t & 1, ks, qb), 4)][::-1 if PA else 1]
    return (It(f"{MF} {l}, {ab[0]}, {ab[1]}, {0 if zero else l}", "m"), None)


def pv_mfmas(t, zero=False):
    out = []
    for db in range(8):
        need = [("F", t, 16 + db * 2), ("F", t, 17 + db * 2)]
        for qb in range(4):
            for n, ks in enumerate(range(2) if not qb & 1 else range(1, -1, -1)):
                out.append(pv_one(t, db, qb, ks, 16 + db * 2 + ks, need, zero and not n))
        if db % 2 == 1:
            out += [sum_one(t, db // 2, ks, zero and not ks) for ks in range(2)]
    return out


def pv_mfmas_tail(t):
    out = []
    for ks in range(2):
        out += [sum_one(t, qb, ks) for qb in range(4)]
        for db in range(8):
            f = 16 + ks * 8 + db
            out += [pv_one(t, db, qb, ks, f, [("F", t, f)]) for qb in range(4)]
    return out


def sm_stream(buf, half):
    ex, post = [], []
    for qb in range(4):
        b = PR(buf, half, qb)
        for j in range(8):
            ex.append(It(f"v_exp_f32 v{b+j}, v{b+j}", "x"))
            post.append([It(f"v_cvt_pk_bf16_f32 v{b + j//2}, v{b+j-1}, v{b+j}", "v")] if j & 1 else [])
    return ex, post


def kv_dma(kind, tile, lds=None, so=None):
    reg, s_rd, base = (KG, SK, 0) if kind == "K" else (VG, SV, VOFF)
    lds = base + (tile % 4) * 16384 if lds is None else lds
    out = []
    for i in range(4):
        pre = [It(f"s_add_u32 m0, s{sW4K}, {lds}", "s"),
               It(f"s_mov_b32 s{sSO}, {tile * 16384 if so is None else so}", "s")] if i == 0 else []
        out.append((pre, [It(f"buffer_load_dwordx4 v{reg(i)}, {srd(s_rd)}, s{sSO} offen offset:{i*1024} lds",
                             "g", (kind, tile))]))
    return out


issued = set()
CLUSTER = O_("cluster", 1)
WINS = [int(x) for x in opt.get("wins", "2,18,34,50,73,91,109,127").split(",")]
WPAT = [int(x) for x in opt.get("wpat", "1").split(",")]


def attn_iter(t, groups, fill, endwait=(), extra=None, ins=None):
    end = T0 - 1 if t < T0 else 31
    last = t == end
    mf = pv_mfmas_tail(t) if last else qk_mfmas(t) + pv_mfmas(t, zero=t == 0)
    ms = [m for m, _ in mf]
    n = len(ms)
    first_use, last_use = {}, {}
    for i, (_, f) in enumerate(mf):
        if f is not None:
            first_use.setdefault(f, i); last_use[f] = i
    reads = []
    for f in sorted(first_use):
        if (t, f) in issued: continue
        reads += [(first_use[f] - AHEAD, last_use.get(f - 8, -1), it) for it in frag_reads(t, f, last)]
    nxt_need = ()
    if t < end - 1:
        for f in range(4):
            reads += [(n + f - AHEAD, last_use[24 + f], it) for it in frag_reads(t + 1, f)]
            issued.add((t + 1, f))
        nxt_need = [("F", t + 1, f) for f in range(4)]
    elif t == end - 1:
        for f in range(16, 18):
            reads += [(n + 4 * (f - 15) - AHEAD, last_use[8 + f], it) for it in frag_reads(end, f, True)]
            issued.add((end, f))
    gaps = {}
    add = lambda g, it: gaps.setdefault(g, []).append(it)
    exg = {}
    wins = [] if last or not CLUSTER else WINS[:min(len(WINS), -(-len(groups) // len(WPAT)))]
    quiet = {w + k for w in wins for k in range(WPAT[-1] + 1)}
    dma_gaps = sorted(w + k for w in wins for k in WPAT)
    if last:
        ex, post = sm_stream(t & 1, 1)
        for i in range(32): exg[i] = (ex[i], post[i])
    else:
        for (ex, post), lo, hi in ((sm_stream(t & 1, 1), 0, 63), (sm_stream((t + 1) & 1, 0), 64, n - 2)):
            c = [g for g in range(lo, hi) if g not in quiet]
            for i in range(32): exg[c[(i * (len(c) + 1)) // 32]] = (ex[i], post[i])
    for g, (x, post) in exg.items():
        add(g, x)
    for g, (x, post) in exg.items():
        h = g + 1
        while not last and (h in exg or h in quiet): h += 1
        for it in post: add(h, it)
    free = set(range(n)) if last else {g for g in range(n) if g not in exg and g not in dma_gaps and len(gaps.get(g, [])) < 2}
    prev, pre, avail = n, [], sorted(free)
    for dl, early, it in reversed(reads):
        c = [g for g in free if g <= dl and g < prev]
        if c and max(c) >= early:
            prev = max(c); free.discard(prev); add(prev, it)
        elif early < 0:
            prev = -1; pre.insert(0, it)
        else:
            g = min(g for g in avail if g >= early and len(gaps.get(g, [])) < 2)
            assert g <= dl + AHEAD - 6, (t, it.t, g, dl)
            free.discard(g); gaps.setdefault(g, []).insert(0, it)
    if groups:
        def spaced(c):
            out = []
            for g in c:
                if not out or g - out[-1] >= 2: out.append(g)
            return out
        light = spaced([g for g in sorted(free) if 1 <= g < n - 6 and g not in gaps])
        fr = light if len(light) >= len(groups) - len(dma_gaps) + 4 else spaced([g for g in sorted(free) if 1 <= g < n - 6])
        rest = len(groups) - len(dma_gaps)
        if rest > 0:
            fr = [g for g in fr if not {g - 1, g, g + 1} & set(dma_gaps)]
            if len(fr) < rest: fr = spaced([g for g in range(1, n - 6) if g not in exg and not {g - 1, g, g + 1} & set(dma_gaps)])
            assert len(fr) >= rest, (t, len(fr), len(groups))
            dma_gaps = sorted(dma_gaps + [fr[int(k * len(fr) / rest)] for k in range(rest)])
        for k, grp in enumerate(groups): place(add, dma_gaps[k], grp, dma_gaps[k - 1] if k else -1, {u - 1 for u in first_use.values()})
    if not last:
        add(n - 3, It(None, "s", need=[("K", min(t + 3, end)), ("V", end if t == end - 2 else t + 1)] + list(endwait)))
        add(n - 2, It("s_barrier", "s"))
        add(n - 4, hop())
    for g, its in (extra or {}).items():
        for it in its: add(g, it)
    if SSET == "attn": add(0, stamp_item())
    if O_("jit2", 0):
        for g in (1, n // 2, n - 12): add(g, jitter_item())
    if ins:
        for k in range(3):
            for h, it in enumerate(ins[k][1]): add(1 + 4 * k + 2 * h, it)
        pos = {(13 + (k * (n - 24)) // (len(ins) - 1)) | 1: k for k in range(len(ins))}
        assert len(pos) == len(ins)
        ms2, gaps2, old, quiet = [], {}, quiet, set()
        for g, m in enumerate(ms):
            if g in old: quiet.add(len(ms2))
            gaps2[len(ms2)] = gaps.get(g, []); ms2.append(m)
            if g in pos:
                k = pos[g]
                gaps2[len(ms2)] = list(ins[k + 3][1]) if k + 3 < len(ins) else []
                ms2.append(ins[k][0])
        ms, gaps = ms2, gaps2
    P.puts(pre)
    P.run_gaps(ms, gaps, fill, next_need=nxt_need, pos=t, gmin=4, quiet=quiet)


hdr = [l.rstrip("\n") for l in open("header.txt")]
hdr = hdr[:[i for i, l in enumerate(hdr) if "@launch" in l][0]]
P.L += hdr + ["; @launch grid=(256,1,1) block=(256,1,1) lds=163840",
              '.amdgcn_target "amdgcn-amd-amdhsa--gfx950"', ".text", f".globl {NAME}", ".p2align 8",
              f".type {NAME},@function"]
lab(NAME)
e("s_cmp_lt_u32 s2, 256"); e("s_cbranch_scc1 L_go"); e("s_endpgm")
lab("L_go")
if AMP and AMP[0] < 0: e(f"s_memrealtime {sr(sST,2)}")
e("s_load_dwordx16 s[64:79], s[0:1], 0"); e("s_load_dwordx8 s[80:87], s[0:1], 64"); e("s_load_dwordx2 s[88:89], s[0:1], 96")
PAIR = O_("pair", 0)
NS = 16 if PAIR else 32
sMI, sWV = 90, 91
if PAIR:
    e(f"s_and_b32 s{sG}, s2, 3"); e(f"s_lshl_b32 s{sG}, s{sG}, 1"); e(f"s_bfe_u32 s{sT}, s2, 0x10003"); e(f"s_add_u32 s{sG}, s{sG}, s{sT}")
    e(f"s_lshr_b32 s{sMI}, s2, 4"); e(f"s_and_b32 s{sM}, s2, 4"); e(f"s_lshl_b32 s{sM}, s{sM}, 2"); e(f"s_add_u32 s{sM}, s{sM}, s{sMI}")
else:
    e(f"s_and_b32 s{sG}, s2, 7"); e(f"s_lshr_b32 s{sM}, s2, 3"); e(f"s_lshr_b32 s{sMI}, s2, 3")
e("v_lshrrev_b32 v1, 6, v0"); e("v_and_b32 v0, 63, v0"); e(f"v_readfirstlane_b32 s{sW}, v1")
e(f"v_lshlrev_b32 v{vBA}, 4, v0"); e(f"v_lshlrev_b32 v{vLANE}, 7, v0")
e(f"s_getpc_b64 {sr(sT+1,2)}")
lab("L_pc")
NCL = 9
e(f"s_lshr_b32 s{sT+3}, s2, 3")
sum_terms(sT, (sT + 3, 512), (sW, 128))
e(f"v_min_u32 v6, {NCL-1}, v0"); e(f"v_lshl_add_u32 v6, v6, 14, s{sT}"); e("v_min_u32 v6, L_end-L_pc, v6")
e(f"v_mov_b32 v{vCODE+1}, s{sT+2}"); e(f"v_add_co_u32 v{vCODE}, vcc, s{sT+1}, v6")
e(f"v_addc_co_u32 v{vCODE+1}, vcc, 0, v{vCODE+1}, vcc")
code_touch = lambda: P.vm(f"global_load_dword a255, {vr(vCODE,2)}, off")
masked(3, f"global_load_dword a255, {vr(vCODE,2)}, off")
sum_terms(sWV, (sMI, 4), (sW, 1))


def touch_off(d, nrows, lines, stride, base_terms, t):
    per = -(-nrows // (NS * 4))
    assert per * lines <= 64 and lines & (lines - 1) == 0
    sh = lines.bit_length() - 1
    e(f"v_lshrrev_b32 v{d}, {7 + sh}, v{vLANE}"); e(f"v_min_u32 v{d}, {per - 1}, v{d}")
    e(f"s_mul_i32 s{sT}, s{sWV}, {per}"); e(f"v_add_u32 v{d}, s{sT}, v{d}")
    if per * NS * 4 != nrows: e(f"v_min_u32 v{d}, {nrows - 1}, v{d}")
    e(f"v_mul_u32_u24 v{d}, {stride}, v{d}")
    sum_terms(sT, *base_terms)
    if lines > 1:
        e(f"v_and_b32 v{t}, {(lines - 1) * 128}, v{vLANE}"); e(f"v_add3_u32 v{d}, v{d}, v{t}, s{sT}")
    else:
        e(f"v_add_u32 v{d}, s{sT}, v{d}")


WQ0 = O_("wq0", 128)
vTQ, vT1, vTK = T + 11, T + 13, T + 16
touch_off(6, WQ0, 8, 8192, [(sG, 1024)], 7)
touch_off(vT1, 512, 1, 1024, [(sG, 128)], 7)
e("v_and_b32 v2, 3, v0")
e("v_lshrrev_b32 v1, 2, v0")
sum_terms(sT, (sM, 64), (sW, 16))
e(f"v_add_u32 v3, s{sT}, v1"); e("v_lshlrev_b32 v3, 10, v3"); e("v_lshl_add_u32 v3, v2, 4, v3")
e(f"s_and_b32 s{sT+1}, s{sG}, 1"); e(f"s_lshl_b32 s{sT+2}, s{sT+1}, 9")
e(f"v_add_u32 v3, s{sT+2}, v3"); e(f"v_xor_b32 v{G12+13}, 0x200, v3")
if STAMP: e(f"v_mov_b32 v{vSTAMP}, 0")
e("s_waitcnt lgkmcnt(0)")
stamp()
if SSET == "ln": stamp(0)
ENT = " nt" * O_("ent", 0)
P.vm(f"global_load_dword a255, v{vT1}, s[76:77]{ENT}")
P.vm(f"global_load_dword a255, v6, s[70:71]{ENT}")
for i in range(8):
    P.vm(f"global_load_dwordx4 {vr(XR+4*i,4)}, v3, s[64:65] offset:{i*64}", ("x", i))
HOP = O_("hop", 1)
hop = lambda n="": It(f"; @hop {n}", "s")
if HOP:
    e("s_branch L_main"); P.raw(".p2align 12")
lab("L_main")
e("v_lshlrev_b32 v4, 1, v2"); e("v_xor_b32 v4, v4, v1"); e("v_lshlrev_b32 v4, 4, v4"); e("v_lshl_add_u32 v4, v2, 8, v4")
sum_terms(sT + 2, (sT + 1, 32768), (sW, 1024))
e(f"v_add_u32 v{vWA}, s{sT+2}, v4"); e(f"v_xor_b32 v{vWA+1}, 0x8000, v{vWA}")
e("v_and_b32 v1, 15, v0"); e("v_lshrrev_b32 v2, 4, v0")
e("v_lshlrev_b32 v4, 1, v2"); e("v_xor_b32 v4, v4, v1"); e("v_lshlrev_b32 v4, 4, v4"); e(f"v_lshl_add_u32 v{vBX}, v2, 8, v4")
e(f"v_add_u32 v3, s{sT}, v1"); e("v_lshlrev_b32 v4, 15, v2"); e(f"v_lshl_add_u32 v{vTOK}, v3, 4, v4")
for d, p in ((SK, 66), (SV, 68)):
    e(f"s_lshl_b32 s{sT}, s{sG}, 19")
    e(f"s_add_u32 s{d}, s{p}, s{sT}"); e(f"s_addc_u32 s{d+1}, s{p+1}, 0"); e(f"s_mov_b32 s{d+2}, 0x80000"); e(f"s_mov_b32 s{d+3}, 0x20000")
for d, p, size in ((SX, 64, 0x200000), (SWQ, 70, 0x400000), (SW1, 76, 0x80000), (SWS, 88, 0x10000000),
                   (SWO, 72, 0x400000), (SW2, 78, 0x80000), (SW3, 80, 1835008), (SW4, 82, 1835008),
                   (SOUT, 84, 0x200000), (SDBG, 86, 256)):
    mk_srd(d, p, size)
sum_terms(sRING, (sW, 8192), RING); sum_terms(sW1K, (sW, 1024)); sum_terms(sW4K, (sW, 4096))
sum_terms(sT, (sG, 1024), (sW, 256)); dma_voff(vDWQ, 8192, True, f"s{sT}", 10)
sum_terms(sT, (sW, 65536), (sG, 128)); dma_voff(vDW1, 1024, True, f"s{sT}", 10); dma_voff(vDW2, 1024, False, f"s{sT}", 10)
for r, v in ((sLO, "0x00003f80"), (sHI, "0x3f800000"), (sONE2, "0x3f803f80"), (sC1, f2u(GC1)), (sC2, f2u(GC2)),
             (sNL2E, f2u(-LOG2E)), (sSPIN, opt.get("spin0", 0)), (sMSK, "0xffff0000")):
    e(f"s_mov_b32 s{r}, {v}")
sum_terms(sF0, (sM, 4096), (sW, 256), WS_FL)
sum_terms(sFL, (sG, 4), (sF0, 1))
sum_terms(sF1, (sM, 4096), (sG, 128), WS_FL + 1024)
e(f"s_add_u32 s{sF2}, s{sF1}, 1024"); e(f"s_add_u32 s{sF3}, s{sF1}, 2048")
sum_terms(sSTC, (sM, 4096), (sW, 1024), WS_SS)
sum_terms(sSTP, (sG, 128), (sSTC, 1))
sum_terms(sPP, (sM, 1 << 19), (sW, 1 << 17), (sG, 1 << 13))
sum_terms(sPC, (sM, 1 << 19), (sG, 1 << 16), (sW, 1 << 11))
e(f"s_lshl_b32 s{sHO}, s{sG}, 18")
e(f"s_and_b32 s{sKS}, s{sG}, 6"); e(f"s_lshl_b32 s{sKS}, s{sKS}, 1"); e(f"s_lshr_b32 s{sT}, s{sW}, 1"); e(f"s_add_u32 s{sKS}, s{sKS}, s{sT}")
e(f"s_and_b32 s{sTB}, s{sG}, 1"); e(f"s_lshl_b32 s{sTB}, s{sTB}, 1"); e(f"s_and_b32 s{sT}, s{sW}, 1"); e(f"s_add_u32 s{sTB}, s{sTB}, s{sT}")
sum_terms(sSTF, (sM, 4096), (sTB, 1024), WS_SS)
sum_terms(sXF, (sM, 65536), (sTB, 16384), (sKS, 64))
e("v_lshrrev_b32 v6, 2, v0"); e("v_and_b32 v7, 3, v0"); e("v_lshlrev_b32 v7, 3, v7"); e("v_lshl_add_u32 v7, v6, 7, v7")
e("v_bfe_u32 v6, v0, 3, 2")
for nb in range(4):
    e(f"v_xor_b32 v10, {nb}, v6"); e("v_lshl_add_u32 v10, v10, 5, v7")
    e(f"v_add_u32 v{vAS+nb}, {RING + 32768}, v10")
    if QPERM:
        e("v_lshrrev_b32 v8, 2, v0"); e("v_and_b32 v9, 6, v8"); e("v_and_b32 v10, 3, v0"); e("v_xor_b32 v9, v9, v10")
        e(f"v_xor_b32 v9, {4*(nb>>1)}, v9"); e("v_lshlrev_b32 v9, 4, v9"); e("v_lshl_add_u32 v10, v8, 7, v9")
        if nb & 1: e("v_add_u32 v10, 8, v10")
    e(f"v_add_u32 v{vAA+nb}, s{sRING}, v10"); e(f"v_add_u32 v{vAA2+nb}, 0x10000, v{vAA+nb}")
e("v_xor_b32 v9, v2, v1")
for s in range(4):
    e(f"v_xor_b32 v10, {4*s}, v9"); e("v_lshlrev_b32 v10, 4, v10"); e(f"v_lshl_add_u32 v{KA(s)}, v1, 8, v10")
e("v_lshrrev_b32 v9, 2, v0"); e("v_lshlrev_b32 v10, 8, v9"); e("v_and_b32 v11, 3, v0")
e("v_lshl_add_u32 v10, v11, 3, v10"); e(f"v_add_u32 v10, {VOFF}, v10"); e("v_and_b32 v9, 7, v9")
for db in range(8):
    e(f"v_xor_b32 v11, {db}, v9"); e(f"v_lshl_add_u32 v{VA(db)}, v11, 5, v10")
e(f"v_lshl_add_u32 v10, v2, 8, s{sW4K}")
for i in range(4):
    e(f"v_add_u32 v9, {4*i}, v2"); e("v_xor_b32 v11, v9, v1"); e(f"v_lshl_add_u32 v{KG(i)}, v11, 4, v10")
    if i < 2:
        e("v_lshlrev_b32 v9, 1, v9"); e("v_xor_b32 v11, v9, v1"); e(f"v_lshl_add_u32 v{VG(i)}, v11, 4, v10")
e(f"v_lshlrev_b32 v{G12+8}, 4, v1")
if WQ0 < 512: touch_off(vTQ, 512 - WQ0, 8, 8192, [(sG, 1024), WQ0 * 8192], 7)
SLIM = O_("slim", 1)
touch_off(vTK, 256 if SLIM else 512, 1, 128, [(sG, 0)], 7)


def late_touch():
    P.vm(f"buffer_load_dword a255, v{vTK}, {srd(SK)}, 0 offen"); P.vm(f"buffer_load_dword a255, v{vTK}, {srd(SV)}, 0 offen")
    if not SLIM:
        P.vm(f"buffer_load_dword a255, v{vT1}, {srd(SW2)}, 0 offen")
        code_touch()


LTG = O_("ltg", 4)
XQ = O_("xq", 3)


w1t = [Tile(SW1, vDW1, k * 4 * 65536, 1024, True, 1 + k, "w1") for k in range(2)]
w2t = [Tile(SW2, vDW2, k * 4 * 65536, 1024, False, 2, ("w2", k)) for k in range(2)]
qt = [Tile(SWQ, vDWQ, (i // 2) * 64 * 8192 + (i % 2) * 128, 8192, True, i % 3, ("wq", i), kp=i // 2, nh=i % 2)
      for i in range(16)] + ([] if SLIM else [None, w2t[0]])
mt = [Tile(SW3, vDW2, kp * 64 * 3584, 3584, False, (2 - i) % 3, ("w3", kp), kp=kp)
      for i, kp in enumerate((4, 5, 6, 7, 0, 1, 2, 3))]
mt += [Tile(SW4, vDW4, kp * 65536 + nh * 128, 1024, False, (2 - 8 - i) % 3, ("w4", i), rows=64 if kp < 3 else 32, kp=kp, nh=nh)
       for i, (nh, kp) in enumerate([(0, 0), (1, 0), (0, 3), (1, 3), (0, 1), (1, 1), (0, 2), (1, 2)])]
ot = [Tile(SWO, vDWO, ((kp & 1) * 256 + (kp >> 1) * 32) * 1024 + nh * 128, 1024, False, (nh * 8 + i + 2) % 3,
           ("wo", nh, kp), kp=kp, nh=nh, half=128)
      for nh in range(2) for i, kp in enumerate(range(8) if nh == 0 else (2, 3, 4, 0, 5, 1, 6, 7))]

a = G12


def quad_sum(regs):
    for qp in ("[1,0,3,2]", "[2,3,0,1]"):
        for r in regs: e(f"v_add_f32_dpp v{r}, v{r}, v{r} quad_perm:{qp} row_mask:0xf bank_mask:0xf")


def ln_stats(lo, hi):
    for i in range(lo, hi):
        c = lambda r: f"v{r}" if i >= 2 else 0
        e(f"v_dot2_f32_bf16 v{a + i % 2}, v{XR+i}, s{sONE2}, {c(a + i % 2)}", need=[("x", i // 4)])
        e(f"v_dot2_f32_bf16 v{a + 2 + i % 2}, v{XR+i}, v{XR+i}, {c(a + 2 + i % 2)}")


def unpack(k):
    for i in range(4 * k, 4 * k + 4):
        e(f"v_lshlrev_b32 v{2*i}, 16, v{XR+i}"); e(f"v_and_b32 v{2*i+1}, s{sMSK}, v{XR+i}")


def ln_rest():
    ln_stats(32, 64)
    e(f"v_add_f32 v{a}, v{a}, v{a+1}"); e(f"v_add_f32 v{a+2}, v{a+2}, v{a+3}")
    quad_sum([a, a + 2])
    e(f"v_mul_f32 v{a+4}, {f2u(-1/512)}, v{a}"); e(f"v_mul_f32 v{a+2}, {f2u(1/512)}, v{a+2}")
    e(f"v_fma_f32 v{a}, -v{a+4}, v{a+4}, v{a+2}"); e(f"v_max_f32 v{a}, 0, v{a}")
    e(f"v_add_f32 v{a+1}, {f2u(EPS)}, v{a}")
    e(f"v_rsq_f32 v{vRSTD}, v{a+1}")
    unpack(8)
    e(f"v_mul_f32 v{a+2}, {f2u(QSCALE)}, v{vRSTD}"); e(f"v_mul_f32 v{a+3}, v{a+4}, v{a+2}")
    for k in range(17):
        if k < 16:
            for i in range(4 * k, 4 * k + 4):
                e(f"v_pk_fma_f32 {vr(2*i,2)}, {vr(2*i,2)}, {vr(a+2,2)}, {vr(a+2,2)} op_sel:[0,0,1] op_sel_hi:[1,0,1]")
        if k: P.lds(f"ds_write_b128 v{vWA + (k-1)//8}, {vr(XR+4*k-4,4)} offset:{((k-1)%8)*4096}", "xw")
        if k % 2 == 0 and 9 + k // 2 < 16: unpack(9 + k // 2)
        if k < 16:
            for i in range(4 * k, 4 * k + 4): e(f"v_cvt_pk_bf16_f32 v{XR+i}, v{2*i}, v{2*i+1}")
    e(f"v_mul_f32 v{a}, v{a}, v{vRSTD}"); e(f"v_mul_f32 v{a}, v{a}, v{vRSTD}")
    e(f"v_add_f32 v{a}, {f2u(EPS)}, v{a}")
    e(f"v_rsq_f32 v{vSC1}, v{a}")
    e(f"v_mul_f32 v{vNMEAN}, v{a+4}, v{vRSTD}")
    e(f"v_mul_f32 v{vSC1}, {f2u(1/QSCALE)}, v{vSC1}")
    e(f"v_add_u32 v{vWA}, s{sW1K}, v{vBX}")


if SSET == "ln": stamp(0)
P.put(hop(O_("hop00", 1)))
wq_rest = lambda: P.vm(f"buffer_load_dword a255, v{vTQ}, {srd(SWQ)}, 0 offen{ENT}") if WQ0 < 512 else None
if LTG == 4: XQ = 4
if XQ == 0: wq_rest()
if LTG == 0: late_touch()
for i in range(8):
    P.vm(f"buffer_load_dwordx4 {vr(XR+32+4*i,4)}, v{G12+13}, {srd(SX)}, 0 offen offset:{i*64}", ("x", 8 + i))
if XQ == 1: wq_rest()
if LTG == 1: late_touch()
if SSET == "ln": stamp(0)
P.put(hop(O_("hop0", 1)))
for k in range(8):
    ln_stats(4 * k, 4 * k + 4); unpack(k)
stamp(2)
if SSET == "ln":
    stamp(0); P.wait([("x", 15)]); stamp(0)
code = cap(ln_rest)
k = O_("lnat", 40)
P.puts(code[:k])
Q0LN = O_("q0ln", 1)
side = [x + y for t in w1t + qt[:Q0LN] for x, y in t.dma()]
if LTG == 4:
    j = O_("ltpos", 24)
    side[j:j] = [[it] for it in cap(wq_rest) + cap(late_touch)]
interleave(code[k:], side, O_("lnev", 9))
if SSET == "ln":
    stamp(0); P.wait(["w1"]); stamp(0)
for r in (vNMEAN, vRSTD, vSC1): P.lds(f"ds_bpermute_b32 v{r}, v{G12+8}, v{r}", "stat")
xb = [It(f"ds_read_b128 {ar(4*ks,4)}, v{vWA} offset:{ks*4096}", "l", ("xb", ks)) for ks in range(16)]
P.puts(xb[:8])
stamp(2)
P.wait(["xw", "w1"]); e("s_barrier")
stamp()
if SSET == "ln": stamp(0)

g1 = lambda h: shared_ops(range(8 * h, 8 * h + 8), 0, lambda nb: vr(G12 + 4 * nb, 4), True, lambda i: 160 + (i % 16) * 4,
                          lambda ks: ar(4 * ks, 4), lambda ks: [("xb", ks)], "g1", 32 * h)
ops = g1(0) + g1(1)
gaps = {g: [] for g in range(64)}
add1 = lambda g, it: gaps[g].append(it)
for i in range(6, 64): gaps[i - 6] += ops[i][1]
for k in range(8): add1(2 + 3 * k, xb[8 + k])
if not Q0LN:
    for k, grp in enumerate(qt[0].dma()): place(add1, 1 + 3 * k, grp, 3 * k - 2)
for k, it in enumerate((cap(wq_rest) if XQ == 3 else []) + (cap(late_touch) if LTG == 3 else [])): add1(O_("ltat", 0) + 2 * k, it)
add1(31, It("s_barrier", "s"))
for k, grp in enumerate(qt[1].dma()): place(add1, 34 + 3 * k, grp, 31 + 3 * k)
ACC = lambda nh, nb, tb: ((nh * 4 + tb) * 4 + nb) * 4
op = gemm(qt, 0, 16, ACC, [], (64, 96), breg=vBX, opening="get")
for k, it in enumerate(op[4:12]): add1(40 + 2 * k, it)
for k, it in enumerate(op[:4] + op[12:]): add1(58 + k // 2, it)
for i in range(6): P.puts(ops[i][1])
P.run_gaps([m for m, _ in ops], gaps, next_need=[op[0].tag, op[4].tag])
stamp()



def q_side():
    x, t, c = G12, XR, XR + 24
    P.put(gate(0, 8))
    e(f"v_mov_b32 v{c}, s{sC1}")
    for i in range(16): e(f"v_mul_f32 v{x+i}, v{x+i}, v{vSC1}", need=["stat"])
    for i in range(16): e(f"v_mul_f32 v{t+i}, v{x+i}, v{x+i}")
    for i in range(16): e(f"v_fma_f32 v{t+i}, v{t+i}, s{sC2}, v{c}")
    for i in range(16): e(f"v_mul_f32 v{t+i}, v{t+i}, v{x+i}")
    for i in range(16): e(f"v_exp_f32 v{t+i}, v{t+i}", k="v")
    for i in range(16): e(f"v_add_f32 v{t+i}, 1.0, v{t+i}")
    for i in range(16): e(f"v_rcp_f32 v{t+i}, v{t+i}", k="v")
    for i in range(16): e(f"v_mul_f32 v{t+i}, v{t+i}, v{x+i}")
    for i in range(8): e(f"v_cvt_pk_bf16_f32 v{t+16+i}, v{t+2*i}, v{t+2*i+1}")
    e(f"v_lshrrev_b32 v{t}, 5, v{vBA}"); e(f"v_and_b32 v{t+1}, 128, v{vLANE}"); e(f"v_lshl_add_u32 v{t}, v{t}, 10, v{t+1}")
    e(f"v_mov_b32 v{t+1}, 0"); e(f"v_mov_b32 v{t+2}, -1"); e(f"v_mov_b32 v{t+3}, -1"); e(f"v_lshrrev_b32 v{t+4}, 1, v{vBA}")
    for nb in range(4): e(f"v_add_u32 v{vAS+nb}, 32768, v{vAS+nb}")
    e(f"v_mov_b32 v{t+5}, s{sONE2}")
    if SPARSE:
        e(f"v_and_b32 v{t+6}, {0xf0 if PA else 0x30}, v{vBA}"); e(f"v_cmp_eq_u32 vcc, 0, v{t+6}"); e(f"v_cndmask_b32 v{t+5}, 0, v{t+5}, vcc")
    for i in range(4): e(f"v_accvgpr_write_b32 a{aONES+i}, v{t+5}")
    P.put(gate(0, O_("hgate", 13 * 32 + 23)))
    if LTG == 2: late_touch()
    for s in range(2):
        e(f"s_add_u32 s{sSF}, s{sHO}, {WS_H + s*PLANE}")
        P.vm(f"buffer_store_dwordx4 {vr(t+16+4*s,4)}, v{vTOK}, {srd(SWS)}, s{sSF} offen sc1", "hst")
    masked(255, f"buffer_store_dword v{t+1}, v{t}, {srd(SWS)}, s{sFL} offen sc1", "hst")
    masked(0xffff, f"buffer_store_dwordx2 {vr(t+2,2)}, v{t+4}, {srd(SWS)}, s{sSTP} offen sc1", "hst")


fill = cap(q_side)
pending = qt[2].dma()
gemm(qt, 0, 16, ACC, pending, (64, 96), breg=vBX, fill=fill, opening="done", extra={1: [It("s_barrier", "s")]}, dma0=2)
assert not fill and not pending
e("s_barrier")
stamp()


def q_pack():
    for tb in range(4):
        for s in range(4):
            b = ACC(s // 2, 2 * (s % 2), tb)
            for j in range(4): e(f"v_cvt_pk_bf16_f32 v{Q(tb,s)+j}, v{b+2*j}, v{b+2*j+1}")
        for sw in () if QPERM else ("v_permlane32_swap_b32", "v_permlane16_swap_b32"):
            for s in range(4):
                for j in range(2): e(f"{sw} v{Q(tb,s)+j}, v{Q(tb,s)+2+j}")


early = (("K", 0), ("K", 1)) if QPERM else (("K", 0), ("K", 1), ("V", 0))
interleave(cap(q_pack), [x + y for k in early for x, y in kv_dma(*k)], 8 if QPERM else 10)
P.wait(["hst", ("K", 0)]); e("s_barrier")
stamp()

for f in range(8): P.puts(frag_reads(-1, f))
gaps = {g: [] for g in range(64)}
for k, grp in enumerate(kv_dma("V", 0) if QPERM else kv_dma("K", 2)): place(add1, 2 + 4 * k, grp, -1)
P.run_gaps([m for m, _ in qk_mfmas(-1, zero=True)[:16]], gaps)
for f in range(8, 12): P.puts(frag_reads(-1, f))
for qb in range(4): e(f"v_max3_f32 v{NM(qb)}, v{S(0,0,qb)}, v{S(0,0,qb)+1}, v{S(0,0,qb)+2}")
for qb in range(4): e(f"v_max_f32 v{NM(qb)}, v{NM(qb)}, v{S(0,0,qb)+3}")
allreduce("v_max_f32", [NM(qb) for qb in range(4)], [NM(qb) + 1 for qb in range(4)])
for qb in range(4):
    for i in (1, 2, 3, 0): e(f"v_sub_f32 v{NM(qb)+i}, 0, v{NM(qb)}")


def first_half(shift, gates):
    for kb in range(2):
        P.put(gate(0, gates[kb]))
        for qb in range(4):
            b = S(0, kb, qb)
            if shift and not kb:
                for j in range(4): e(f"v_add_f32 v{b+j}, v{b+j}, v{NM(qb)}")
            for j in range(4): e(f"v_exp_f32 v{b+j}, v{b+j}")
        for qb in range(4):
            b = S(0, kb, qb)
            for j in range(2): e(f"v_cvt_pk_bf16_f32 v{PR(0,0,qb)+2*kb+j}, v{b+2*j}, v{b+2*j+1}")


gaps = {g: [] for g in range(64)}
for f in range(12, 16): gaps[16 + (f - 12)] += frag_reads(-1, f)
add1(30, It(None, "s", need=[("K", 1)])); add1(31, It("s_barrier", "s"))
for f in range(4):
    gaps[32 + f] += frag_reads(0, f); issued.add((0, f))
if QPERM:
    for k, grp in enumerate(kv_dma("K", 2) + kv_dma("V", 1) + kv_dma("K", 3)): place(add1, 2 + 4 * k, grp, 4 * k - 2)
else:
    for k, grp in enumerate(kv_dma("V", 1) + kv_dma("K", 3)): place(add1, 3 + 6 * k, grp, 6 * k - 3)
fill = cap(first_half, True, (0, 20))
P.run_gaps([m for m, _ in qk_mfmas(-1)[16:]], gaps, fill)
P.drain(fill)
e(f"v_mov_b32 v{T}, 1"); e(f"s_lshl_b32 s{sSF}, s{sM}, 3")
e(f"s_cmp_lg_u32 s{sW}, 0"); e("s_cbranch_scc1 L_noarr"); e("s_mov_b64 exec, 1")
e(f"buffer_atomic_add v{T}, off, {srd(SDBG)}, s{sSF} sc1"); e("s_mov_b64 exec, -1")
lab("L_noarr")
P.wait([("K", 2), ("V", 0)] + [("F", 0, f) for f in range(4)]); e("s_barrier")
stamp()

p_h = flag_poll("h", SDBG, 0, 8)
p_x = flag_poll("x1", SWS, f"s{sF0}", 1)
p_st = Poll("st", [f"buffer_load_dwordx2 {vr(T+2*j,2)}, v{vPA}, {srd(SWS)}, s{(sSTC, sSTF)[j//2]} offen offset:{128*(j%2)} sc1"
                   for j in range(4)],
            [f"v_max3_u32 v{T+8}, v{T}, v{T+1}, v{T+2}", f"v_max3_u32 v{T+8}, v{T+8}, v{T+3}, v{T+4}",
             f"v_max3_u32 v{T+8}, v{T+8}, v{T+5}, v{T+6}", f"v_max_u32 v{T+8}, v{T+8}, v{T+7}",
             f"v_cmp_eq_u32 vcc, -1, v{T+8}"])
p_ph, p_s0, p_s1 = (flag_poll(n, SWS, f"s{r}", 1) for n, r in (("ph", sF1), ("s0", sF2), ("s1", sF3)))


pieces = [(nh, tb, s) for nh in range(2) for tb in range(4) for s in range(2)]


def x_offset(d, bits=11):
    e(f"v_bfe_u32 v{d}, v{vTOK}, 4, {bits}"); e(f"v_lshlrev_b32 v{d}, 10, v{d}")
    e(f"v_bfe_u32 v{d+1}, v{vBA}, 8, 2"); e(f"v_lshl_add_u32 v{d}, v{d+1}, 3, v{d}")


def paced(t, g, step, fns):
    for k, fn in enumerate(fns):
        p = g + k * step
        P.put(gate(t + p // 136, p % 136)); fn()


def h_loads(half, t, g):
    e(f"v_bfe_u32 v{T}, v{vTOK}, 4, 11")
    for k, d in enumerate(((-1, 1), (-2, 2))[half]):
        e(f"v_add_u32 v{T+1}, {d}, v{T}"); e(f"v_cmp_gt_u32 vcc, 0x800, v{T+1}")
        e(f"v_add_u32 v{T+1}, {16*d}, v{vTOK}"); e(f"v_mov_b32 v{T+2+k}, 0x7f000000")
        e(f"v_cndmask_b32 v{T+2+k}, v{T+2+k}, v{T+1}, vcc")

    def one(ks):
        e(f"s_mov_b32 s{sSF}, {WS_H + ks*PLANE}")
        P.vm(f"buffer_load_dwordx4 {ar(HB(ks),4)}, v{T + 2 + (ks%8)//4}, {srd(SWS)}, s{sSF} offen sc1", ("h", ks))
    paced(t, g, O_("hstep", 18), [lambda ks=ks: one(ks) for ks in range(8 * half, 8 * half + 8)])


def side1():
    if SLIM:
        code_touch(); P.vm(f"buffer_load_dword a255, v{vT1}, {srd(SW2)}, 0 offen")
    P.put(gate(0, 40))
    x_offset(T + 5); e(f"s_lshl_b32 s{sSF}, s{sG}, 7")
    for nb in range(4):
        P.vm(f"buffer_load_dwordx2 {vr(T+6+2*nb,2)}, v{T+5}, {srd(SX)}, s{sSF} offen offset:{nb*32}", "xs")
    e(f"v_lshrrev_b32 v{T}, 4, v{vBA}"); e(f"v_min_u32 v{T}, 2, v{T}"); e(f"v_add_u32 v{T}, s{sM}, v{T}")
    e(f"v_add_u32 v{T}, -1, v{T}"); e(f"v_med3_i32 v{T}, v{T}, 0, 31"); e(f"v_lshlrev_b32 v{vPA}, 3, v{T}")
    if O_("kvt1", 0):
        touch_off(T, (T0 - 5) * 128, 1, 128, [(sG, 0), 5 * 16384], T + 1)
        P.vm(f"buffer_load_dword a255, v{T}, {srd(SK)}, 0 offen"); P.vm(f"buffer_load_dword a255, v{T}, {srd(SV)}, 0 offen")
    P.put(gate(2, 0))
    p_h.issue()
    for i in range(8):
        d = T + 2 * (i % 2)
        e(f"v_lshlrev_b32 v{d}, 16, v{T+6+i}", need=["xs"]); e(f"v_and_b32 v{d+1}, 0xffff0000, v{T+6+i}")
        for h in range(2): e(f"v_fma_f32 v{d+h}, v{d+h}, v{vRSTD}, v{vNMEAN}")
        for h in range(2): e(f"v_accvgpr_write_b32 a{aG2+2*i+h}, v{d+h}")
    P.put(gate(3, 0))
    p_h.check(); h_loads(0, 3, 30)
    P.put(gate(6, 0))
    h_loads(1, 6, 24)
    e(f"s_and_b32 s{sT+1}, s{sG}, 1"); sum_terms(sT, (sG, 448), (sW, 128))
    e(f"s_lshl_b32 s{sT+1}, s{sT+1}, 6"); e(f"s_sub_u32 s{sT}, s{sT}, s{sT+1}")
    dma_voff(vDW2, 3584, False, f"s{sT}", T)
    if O_("w3z", 1):
        e(f"s_lshl_b32 s{sT}, s{sW}, 3"); e(f"v_add_u32 v{T+1}, s{sT}, v{T+1}")
        e(f"s_lshr_b32 s{sT+1}, s{sT+1}, 4"); e(f"v_subrev_u32 v{T+1}, s{sT+1}, v{T+1}")
        e(f"v_cmp_gt_u32 vcc, 28, v{T+1}"); e(f"v_mov_b32 v{T}, 0x7f000000"); e(f"v_cndmask_b32 v{vDW2}, v{T}, v{vDW2}, vcc")
    P.put(gate(8, 164))
    m, q = vRSTD, vNMEAN
    for i in range(16): e(f"v_accvgpr_read_b32 v{T+i}, a{aG2+i}")
    e(f"v_add_f32 v{m}, v{T}, v{T+1}"); e(f"v_mul_f32 v{q}, v{T}, v{T}")
    for i in range(1, 16):
        e(f"v_fmac_f32 v{q}, v{T+i}, v{T+i}")
        if i > 1: e(f"v_add_f32 v{m}, v{m}, v{T+i}")
    allreduce("v_add_f32", [m, q], [T, T + 1], k="v")
    e(f"v_lshrrev_b32 v{T}, 1, v{vBA}")
    masked(0xffff, f"buffer_store_dwordx2 {vr(m,2)}, v{T}, {srd(SWS)}, s{sSTP} offen sc1")
    code_touch()
    e(f"v_and_b32 v{T}, 0xf0, v{vBA}"); e(f"v_lshrrev_b32 v{T}, 1, v{T}"); e(f"v_and_b32 v{T+1}, 0x300, v{vBA}")
    e(f"v_add_u32 v{vPA}, v{T}, v{T+1}")
    P.put(gate(11, 70))
    p_st.issue()
    P.put(gate(12, 60))
    p_st.check()
    u, r = T + 15, T + 16
    e(f"v_add_f32 v{u}, v{T}, v{T+2}"); e(f"v_add_f32 v{r}, v{T+1}, v{T+3}")
    e(f"v_add_f32 v{q}, v{T+4}, v{T+6}"); e(f"v_add_f32 v{m}, v{T+5}, v{T+7}")
    allreduce("v_add_f32", [u, r, q, m], [T, T + 1, T + 2, T + 3], k="v")
    for x in (u, r, q, m): e(f"v_mul_f32 v{x}, {f2u(1/512)}, v{x}")
    for x, y in ((u, r), (q, m)):
        e(f"v_fma_f32 v{y}, -v{x}, v{x}, v{y}"); e(f"v_max_f32 v{y}, 0, v{y}"); e(f"v_add_f32 v{y}, {f2u(EPS)}, v{y}")
    e(f"v_rsq_f32 v{r}, v{r}", k="v"); e(f"v_sqrt_f32 v{m}, v{m}", k="v")
    for i in range(15): e(f"v_accvgpr_read_b32 v{T+i}, a{aG2+i}")
    e(f"v_mul_f32 v{u}, v{u}, v{r}")
    for i in range(15): e(f"v_fma_f32 v{T+i}, v{T+i}, v{r}, -v{u}")
    e(f"v_cvt_pk_bf16_f32 v{T}, v{T}, v{T+1}"); e(f"v_cvt_pk_bf16_f32 v{T+1}, v{T+2}, v{T+3}")
    e(f"v_accvgpr_read_b32 v{T+3}, a{aG2+15}"); e(f"v_fma_f32 v{u}, v{T+3}, v{r}, -v{u}")
    for i in range(2, 8): e(f"v_cvt_pk_bf16_f32 v{T+i}, v{T+2*i}, v{T+2*i+1}")
    for s in range(2):
        e(f"s_add_u32 s{sSF}, s{sHO}, {WS_X1 + s*PLANE}")
        P.vm(f"buffer_store_dwordx4 {vr(T+4*s,4)}, v{vTOK}, {srd(SWS)}, s{sSF} offen sc1", "x1st")
    e(f"v_bfe_u32 v{vPA}, v{vBA}, 4, 3"); e(f"v_lshlrev_b32 v{vPA}, 2, v{vPA}")
    P.put(gate(15, 70))
    set_flags(0, 1, ["x1st"])
    touch_off(T, 512, 4, 3584, [(sG, 448)], T + 1)
    P.vm(f"buffer_load_dword a255, v{T}, {srd(SW3)}, 0 offen")
    touch_off(T, 1792, 1, 128, [(sG, 224 * 1024)], T + 1)
    P.vm(f"buffer_load_dword a255, v{T}, {srd(SW4)}, 0 offen")
    sum_terms(sT, (sG, 224 * 1024), (sW, 256)); dma_voff(vDW4, 1024, False, f"s{sT}", T)
    sum_terms(sT, (sG, (512 - 224) * 1024)); e(f"v_add_u32 v{vDWO}, s{sT}, v{vDW4}")
    e(f"s_sub_u32 s{sT}, s{sRING}, {RING + 65536}")
    for nb in range(4):
        e(f"v_add_u32 v{vAA+nb}, s{sT}, v{vAS+nb}"); e(f"v_add_u32 v{vAA2+nb}, 0x10000, v{vAA+nb}")
    P.put(gate(17, 60))
    p_x.issue(); code_touch()
    P.put(gate(18, 60))
    p_x.check()
    if XREG:
        def one(ks):
            e(f"s_mov_b32 s{sSF}, {WS_X1 + ks*PLANE}")
            P.vm(f"buffer_load_dwordx4 {ar(aG2 + 4*(ks-4),4)}, v{vTOK}, {srd(SWS)}, s{sSF} offen sc1", "xnl")
        paced(18, 70, 14, [lambda ks=ks: one(ks) for ks in range(4, 8)])
    if O_("kvt", 1):
        touch_off(T + 8, (32 - T0) * 128, 1, 128, [(sG, 0), T0 * 16384], T + 9)
        P.vm(f"buffer_load_dword a255, v{T+8}, {srd(SK)}, 0 offen"); P.vm(f"buffer_load_dword a255, v{T+8}, {srd(SV)}, 0 offen")
    if O_("w3t2", 0):
        P.put(gate(O_("w3t2", 0), 100))
        touch_off(T + 8, 512, 4, 3584, [(sG, 448)], T + 9)
        P.vm(f"buffer_load_dword a255, v{T+8}, {srd(SW3)}, 0 offen")
    if XREG:
        e(f"v_add_u32 v{T+9}, s{sW1K}, v{vBA}")
        paced(T0 - 1, 34, 6, [lambda ks=ks: P.lds(f"ds_write_b128 v{T+9}, {ar(aG2 + 4*(ks-4),4)} offset:{ks*4096}", ("xn", 1), need=["xnl"])
                              for ks in range(4, 8)])


def x1n_dma(j):
    return [([It(f"s_add_u32 m0, s{sW1K}, {ks*4096}", "s"), It(f"s_mov_b32 s{sSO}, {WS_X1 + ks*PLANE}", "s")],
             [It(f"buffer_load_dwordx4 v{vTOK}, {srd(SWS)}, s{sSO} offen sc1 lds", "g", ("xn", j), need=["x1"])])
            for ks in range(4 * j, 4 * j + 4)]


def run_tiles(t0, t1, fill, over, more, endw, ins, must, xtra={}):
    end = T0 - 1 if t0 < T0 else 31
    for t in range(t0, t1):
        groups = (kv_dma("K", t + 4) if t + 4 <= end else []) + (kv_dma("V", t + 3) if t + 3 <= end else [])
        groups = over.get(t, groups) + more.get(t, [])
        attn_iter(t, groups, fill, endw.get(t, ()), ins=ins.get(t), extra=xtra.get(t))
        head = fill[0].at if fill else (99, 0)
        if O_("showfill", 0): print(t, len(fill), head, file=sys.stderr)
        if t in must: assert head and head[0] >= must[t], (t, head, len(fill))


g2 = lambda h: shared_ops(range(8 * h, 8 * h + 8), 8 * h, lambda nb: ar(aG2 + 4 * nb, 4), False, GA,
                          lambda ks: ar(HB(ks), 4), lambda ks: [("h", ks)], f"g2{h}")
op = gemm(mt, 0, 8, ACC, [], (160, 212), opening="get")
opx = {44 + 2 * k: [it] for k, it in enumerate(op[4:12])}
opx.update({62 + k: [it] for k, it in enumerate(op[:4] + op[12:])})
fill = cap(side1)
kv = lambda *a: [g for k in a for g in kv_dma(k[0], int(k[1:]))]
run_tiles(0, T0, fill, {0: kv("V2", "K4", "V3")},
          {1: w2t[0].dma() if SLIM else [], 6: w2t[1].dma(), 17: mt[0].dma(), 19: x1n_dma(2) + x1n_dma(3),
           20: x1n_dma(0) + mt[1].dma(), 21: [] if XREG else x1n_dma(1)},
          {3: [("w2", 0)], 7: [("w2", 1)], 20: [("xn", 3)]}, {5: g2(0), 8: g2(1)}, {4: 6, 7: 8, 16: 17, 18: 19, 21: 99}, {T0 - 1: opx})
stamp()

extra = {}
add = lambda g, its: extra.setdefault(g, []).extend(its)
add(1, [It("s_barrier", "s")])
add(2 * 32 + 26, [It(None, "s", need=[("xn", 0), ("xn", 1)])])
add(2 * 32 + 27, [It("s_barrier", "s")])
add(4 * 32 + 2, [It(f"s_lshl2_add_u32 s{sT}, s{sKS}, s{sTB}", "s")])
add(4 * 32 + 6, [It(f"s_lshl_b32 s{sT}, s{sT}, 10", "s"), It(f"v_add_u32 v{T+9}, s{sT}, v{vBA}", "v")])
for j in range(2):
    add(7 * 32 + 3 + 4 * j, [It(f"ds_read_b128 {ar(aXN+4*j,4)}, v{T+9} offset:{j*8192}", "l", "xnr")])


def h3_addr():
    P.put(gate(0, 7 * 32 + 10))
    e(f"s_and_b32 s{sT+1}, s{sG}, 1"); e(f"s_lshl_b32 s{sT}, s{sW}, 1"); e(f"s_sub_u32 s{sT}, s{sT}, s{sT+1}")
    for s in range(2):
        e(f"s_and_b32 s{sT+1}, s{sT}, 7"); e(f"s_lshl_b32 s{sT+1}, s{sT+1}, 12"); e(f"v_add_u32 v{T+8+s}, s{sT+1}, v{vBA}")
        e(f"s_add_u32 s{sT}, s{sT}, 1")


fill = cap(h3_addr)
pending = mt[2].dma()
NW4 = O_("nw4", 3)
gemm(mt[:8 + NW4], 0, 8, ACC, pending, (160, 212), extra=extra, fill=fill, opening="done", dma0=2)
for t in mt[8 + NW4:11]: pending += t.dma()
P.drain(fill)
P.wait(["xnr"]); e("s_barrier")
stamp()


def mlp_act():
    for tb in range(4):
        gelu(16 * tb, 16, 64 + 16 * tb, lambda i: 16 * tb + i, first=tb == 0)
        for s in range(2):
            P.lds(f"ds_write_b128 v{T+8+s}, {vr(16*tb + 4*s,4)} offset:{tb*1024}", "hw")


interleave(cap(mlp_act), [x + y for x, y in pending], 300 // len(pending) if NW4 < 3 else 20)
pending = []
if SSET == "mlp": stamp(0)
gemm_pre(mt, 8)
P.wait(["hw"]); e("s_barrier")
if SSET == "mlp": stamp(0)
stamp()
class Extra:
    def __init__(self, groups): self.groups = groups
    def dma(self): return self.groups


def ph_pack(ks):
    for k in ks:
        pack(ACC, *pieces[k])
        for j in range(4): e(f"v_accvgpr_write_b32 a{PHA(k)+j}, v{ACC(pieces[k][0], 2*pieces[k][2], pieces[k][1])+j}")


fill = [gate(0, 180)] + cap(ph_pack, (0, 2, 4, 6)) + [gate(0, 196)] + cap(ph_pack, (1, 3, 5, 7))
gemm(mt + [Extra(kv_dma("K", T0) + kv_dma("K", T0 + 1))], 8, 8, ACC, pending, (160, 212), fill=fill)
assert not pending
P.wait([("K", T0 + 1)]); e("s_barrier")
if SSET == "mlp": stamp(0)
stamp()



for f in range(8): P.puts(frag_reads(T0 - 1, f))
P.drain(fill)
ph_pack(range(8, 10))
gaps = {g: [] for g in range(64)}
for f in range(8, 16): gaps[16 * (f // 4 - 1) + f % 4] += frag_reads(T0 - 1, f)
for f in range(4):
    gaps[48 + f] += frag_reads(T0, f); issued.add((T0, f))
for k, grp in enumerate(kv_dma("V", T0) + kv_dma("K", T0 + 2)): place(add1, 2 + 4 * k, grp, 4 * k - 2)
fill = cap(ph_pack, range(10, 14)) + cap(first_half, False, (20, 36)) + cap(ph_pack, range(14, 16))
P.run_gaps([m for m, _ in qk_mfmas(T0 - 1)], gaps, fill)
P.drain(fill)
if SSET == "mlp": stamp(0)
P.wait([("K", T0 + 2), ("V", T0)] + [("F", T0, f) for f in range(4)]); e("s_barrier")
if SSET == "mlp": stamp(0)
stamp()


XF = [244, 245, 246, 247, 248, 249, T + 10, T + 11]


def side2():
    paced(T0, 60, O_("sstep", 22), [lambda k=k: store_piece(ar(PHA(k), 4), WS_PH, *pieces[k], "phs") for k in range(16)])
    touch_off(T + 8, 4096, 1, 128, [(sG, 1 << 19)], T + 9)
    P.vm(f"buffer_load_dword a255, v{T+8}, {srd(SWO)}, 0 offen")
    code_touch()
    P.put(gate(26, 0)); set_flags(1, 2, ["phs"])
    x_offset(T + 8, 4)
    paced(26, 50, 20, [lambda i=i: P.vm(f"buffer_load_dwordx2 {vr(XF[2*i],2)}, v{T+8}, {srd(SX)}, s{sXF} offen "
                                        f"offset:{(i//2)*128 + (i%2)*32}", "xf") for i in range(4)])
    P.put(gate(27, 40)); p_ph.issue(); o_addr()
    P.put(gate(28, 20)); p_ph.check()
    paced(28, 30, O_("lstep", 22), [lambda k=k: load_piece(WS_PH, ar(PHA(k), 4), k // 2, k % 2, "phl") for k in range(16)])


def o_addr():
    if not PA:
        e(f"v_add_u32 v{T+8}, s{sW4K}, v{vBA}")
        return
    x, y = vDW2, vDW4
    for d, (ro, rb), (co, cb) in ((T + 8, (4, 4), (8, 2)), (T + 9, (6, 4), (4, 2))):
        e(f"v_bfe_u32 v{x}, v{vBA}, {ro}, {rb}"); e(f"v_bfe_u32 v{d}, v{vBA}, {co}, {cb}")
        e(f"v_and_b32 v{y}, 1, v{x}"); e(f"v_xor_b32 v{d}, v{d}, v{y}")
        e(f"v_lshrrev_b32 v{y}, 3, v{x}"); e(f"v_lshlrev_b32 v{y}, 1, v{y}"); e(f"v_xor_b32 v{d}, v{d}, v{y}")
        e(f"v_and_b32 v{y}, 6, v{x}"); e(f"v_lshl_add_u32 v{d}, v{y}, 1, v{d}")
        e(f"v_lshlrev_b32 v{d}, 3, v{d}"); e(f"v_lshl_add_u32 v{d}, v{x}, 7, v{d}")
    e(f"v_add_u32 v{T+8}, s{sW4K}, v{T+8}")


fill = cap(side2)
run_tiles(T0, 31, fill, {T0: kv(f"V{T0+1}", f"K{T0+3}", f"K{T0+4}", f"V{T0+2}"), T0 + 1: kv(f"K{T0+5}", f"V{T0+3}", f"V{T0+4}")}, {O_("wo0", 29): ot[0].dma(), 30: ot[1].dma()}, {}, {}, {30: 99})


vOW, vOR = 208, 212


def o_stage(k, st):
    s, qb = k // 4, k % 4
    b = 8 * (k % 8)
    if st == 0:
        for h in range(2):
            for j in range(4): e(f"v_accvgpr_read_b32 v{b+4*h+j}, a{O(2*s+h,qb)+j}")
    elif st == 1:
        for j in range(0, 8, 2):
            e(f"v_pk_mul_f32 {vr(b+j,2)}, {vr(b+j,2)}, {vr(NM(qb) + j%4,2)}" if PA else
              f"v_pk_mul_f32 {vr(b+j,2)}, {vr(b+j,2)}, {vr(NM(qb),2)} op_sel_hi:[1,0]")
    elif st == 2:
        for j in range(4): e(f"v_cvt_pk_bf16_f32 v{b+j}, v{b+2*j}, v{b+2*j+1}")
    elif PA:
        P.lds(f"ds_write2st64_b64 v{vOW+qb}, {vr(b,2)}, {vr(b+2,2)} offset0:{32*s} offset1:{32*s+4}", "ow")
    else:
        P.lds(f"ds_write_b128 v{T+8}, {vr(b,4)} offset:{s*16384 + qb*1024}", "ow")


LREGS = [4 * qb + j for qb in range(4) for j in range(4 if PA else 1)]


def row_sums():
    for i in LREGS: e(f"v_accvgpr_read_b32 v{vR+i}, a{LACC(0)+i}")


def row_inverses():
    for i in LREGS:
        e(f"v_rcp_f32_dpp v{vR+i}, v{vR+i} row_newbcast:0 row_mask:0xf bank_mask:0xf" if PA and SPARSE else f"v_rcp_f32 v{vR+i}, v{vR+i}")


def vote():
    v = 56
    P.put(gate(31, 36))
    e(f"s_lshl_b32 s{sT+1}, s{sW}, 2"); e(f"s_add_u32 s{sT+1}, s{sT+1}, {RING + 32768}")
    e(f"v_mov_b32 v{v+4}, {f2u(-1.0 if FORCE_REDO else 2.0**40)}"); e(f"v_mov_b32 v{v+5}, s{sT+1}"); e(f"v_mov_b32 v{v+6}, {RING + 32768}")
    P.put(gate(31, 42))
    row_sums()
    r = [vR + i for i in LREGS]
    e(f"v_maximum3_f32 v{v}, v{r[0]}, v{r[1]}, v{r[1]}")
    for i in range(2, len(r), 2): e(f"v_maximum3_f32 v{v}, v{v}, v{r[i]}, v{r[i+1]}")
    e(f"v_cmp_nle_f32 vcc, v{v}, v{v+4}")
    e(f"s_cmp_lg_u64 vcc, 0\n    s_cselect_b32 s{sT}, 1, 0", k="v")
    e(f"v_mov_b32 v{v}, s{sT}")
    P.lds(f"ds_write_b32 v{v+5}, v{v}", "vote")
    inv = P.rec; n0 = len(inv)
    row_inverses()
    k = n0 + min(6, len(LREGS))
    inv[k:k] = [It(None, "s", need=["vote"]), It("s_barrier", "s"), It(f"ds_read_b128 {vr(v,4)}, v{v+6}", "l", "votes")]
    e(f"v_or3_b32 v{v}, v{v}, v{v+1}, v{v+2}", need=["votes"]); e(f"v_or_b32 v{v}, v{v}, v{v+3}")
    e(f"v_readfirstlane_b32 s{sT}, v{v}")


fill = cap(vote)
attn_iter(31, [], fill)
P.drain(fill)
e(f"s_cmp_lg_u32 s{sT}, 0"); e("s_cbranch_scc1 L_redo")
lab("L_att_done")
stamp()

if PA:
    for qb in range(4):
        e(f"v_xor_b32 v{vOW+qb}, {32*qb}, v{T+8}"); e(f"v_xor_b32 v{vOR+qb}, {32*qb}, v{T+9}")
lag = [int(x) for x in opt.get("olag", "0,1,2,3").split(",")]
WG = O_("owg", 1)
for k in range(16 + lag[3] + WG):
    for st in range(3):
        if 0 <= k - lag[st] < 16: o_stage(k - lag[st], st)
    if (k - lag[3]) % WG == WG - 1:
        for j in range(k - lag[3] - WG + 1, k - lag[3] + 1):
            if 0 <= j < 16: o_stage(j, 3)
if SSET == "o": stamp(0)
gemm_pre(ot, 0)
P.wait(["ow"]); e("s_barrier")
if SSET == "o": stamp(0)
stamp()
OACC = lambda nh, nb, tb: 64 + ACC(nh, nb, tb)
PSR = lambda g, nh: nh * 32 + g * 4


def o_side():
    P.put(gate(0, 32 * 8 + 4))
    for p in pieces[:8]: pack(OACC, *p)
    for p, g in zip(pieces, [int(x) for x in opt.get("s0g", "440,448,456,464,472,480,488,496").split(",")]):
        P.put(gate(0, g))
        store_piece(vr(OACC(0, 2 * p[2], p[1]), 4), WS_PS, *p, "s0s")


fill = cap(o_side)
pending = ot[2].dma()
gemm(ot, 0, 16, OACC, pending, (0, 32, 64, 96, (vr, 0), (vr, 32))[:O_("obs", 6)], fill=fill, breg=vOR if PA else vBA, btr=PA)
P.drain(fill)
stamp()
for k, p in enumerate(pieces[8:]):
    pack(OACC, *p); store_piece(vr(OACC(1, 2 * p[2], p[1]), 4), WS_PS, *p, "s1s")
    if k == O_("f0k", 3): set_flags(2, 2, ["s0s"])
vY, vS, vG, vX = 64, 80, 96, 112
for i in range(8): e(f"v_accvgpr_read_b32 v{vG+i}, a{aXN+i}")
for i in range(8):
    e(f"v_lshlrev_b32 v{vY+2*i}, 16, v{vG+i}"); e(f"v_and_b32 v{vY+2*i+1}, 0xffff0000, v{vG+i}")
for i in range(16): e(f"v_fma_f32 v{vY+i}, v{vY+i}, v{vRSTD}, v{vNMEAN}")
for k in range(17):
    if k < 16:
        for j in range(4): e(f"v_accvgpr_read_b32 v{vG + 4*(k%2) + j}, a{PHA(k)+j}", need=[("phl", k // 2, k % 2)])
    if k: add_piece(vY + 8 * ((k - 1) % 2), vG + 4 * ((k - 1) % 2), False, ())
p_s0.issue()
for i in range(16): e(f"v_mul_f32 v{vG+i}, s{sNL2E}, v{vY+i}")
for i in range(16): e(f"v_exp_f32 v{vG+i}, v{vG+i}")
for i in range(0, 16, 2): e(f"v_pk_add_f32 {vr(vG+i,2)}, {vr(vG+i,2)}, 1.0 op_sel_hi:[1,0]")
for i in range(16): e(f"v_rcp_f32 v{vG+i}, v{vG+i}")
for i in range(0, 16, 2): e(f"v_pk_mul_f32 {vr(vG+i,2)}, {vr(vG+i,2)}, {vr(vY+i,2)}")
for i in range(8):
    e(f"v_lshlrev_b32 v{vX+2*i}, 16, v{XF[i]}", need=["xf"]); e(f"v_and_b32 v{vX+2*i+1}, 0xffff0000, v{XF[i]}")
e(f"v_bfe_u32 v200, v{vTOK}, 4, 4"); e("v_lshlrev_b32 v200, 10, v200"); e(f"v_bfe_u32 v201, v{vBA}, 8, 2")
e("v_lshl_add_u32 v200, v201, 4, v200")
set_flags(3, 2, ["s1s"])
stamp(2)
p_s0.check()
for g in range(8): load_piece(WS_PS, vr(PSR(g, 0), 4), g, 0, "psl")
p_s1.issue()


def finish(nh):
    for g in range(8): add_piece(vS + 8 * nh, PSR(g, nh), g == 0, [("psl", g, nh)])
    for i in range(8 * nh, 8 * nh + 8, 2): e(f"v_pk_fma_f32 {vr(vG+i,2)}, {vr(vG+i,2)}, {vr(vS+i,2)}, {vr(vX+i,2)}")
    d = 204 + 4 * nh
    for i in range(4): e(f"v_cvt_pk_bf16_f32 v{d+i}, v{vG+8*nh+2*i}, v{vG+8*nh+2*i+1}")
    for sw in ("v_permlane32_swap_b32", "v_permlane16_swap_b32"):
        for j in range(2): e(f"{sw} v{d+j}, v{d+2+j}")
    P.vm(f"buffer_store_dwordx4 {vr(d,4)}, v200, {srd(SOUT)}, s{sXF} offen offset:{nh*128}")


p_s1.check()
stamp()
for g in range(8): load_piece(WS_PS, vr(PSR(g, 1), 4), g, 1, "psl")
finish(0)
finish(1)
if AMP:
    P.wait_all(); stamp()
    e(f"s_sub_u32 s{sST}, s{sST+2}, s{sST}")
    e(f"s_lshr_b32 s{sST}, s{sST}, 5" if AMP[3] else f"s_lshl_b32 s{sST}, s{sST}, {AMP[2]}")
    e(f"s_memrealtime {sr(sST+2,2)}"); e("s_waitcnt lgkmcnt(0)")
    lab("L_amp")
    e(f"s_memrealtime {sr(sST+4,2)}"); e("s_waitcnt lgkmcnt(0)")
    e(f"s_sub_u32 s{sST+4}, s{sST+4}, s{sST+2}"); e(f"s_cmp_lt_u32 s{sST+4}, s{sST}"); e("s_cbranch_scc1 L_amp")
if STAMP:
    P.wait_all()
    stamp()
    e(f"s_lshl_b32 s{sT}, s2, 2"); e(f"s_add_u32 s{sT}, s{sT}, s{sW}"); e(f"s_lshl_b32 s{sT}, s{sT}, 8")
    e(f"s_add_u32 s{sT}, s{sT}, {WS_ST}"); e(f"v_lshrrev_b32 v0, 2, v{vBA}")
    P.vm(f"buffer_store_dword v{vSTAMP}, v0, {srd(SWS)}, s{sT} offen")
e("s_endpgm")

lab("L_side")
for p in slow_paths:
    lab(f"L_slow_{p.name}")
    e("s_sleep 1")
    for l in p.loads: e(l)
    e(f"s_add_u32 s{sSPIN}, s{sSPIN}, 1")
    e("s_waitcnt vmcnt(0)")
    for t in p.tests: e(t)
    e(f"s_cmp_gt_u32 s{sSPIN}, 0x200000"); e(f"s_cbranch_scc1 L_back_{p.name}")
    e(f"s_cbranch_vccnz L_slow_{p.name}")
    e(f"s_branch L_back_{p.name}")

lab("L_redo")
P.lq, P.vq = [], []
for s in range(4): e(f"v_add_u32 v{KA(s)}, 49152, v{KA(s)}")
for qb in range(4): e(f"v_mov_b32 v{NM(qb)}, 0xff800000")


def redo_tile(kinds, zero):
    P.used = set()
    P.wait_all(); e("s_barrier")
    for kind, lds in kinds: flush(kv_dma(kind, 0, lds=lds, so=f"s{sCNT}"))
    P.wait_all(); e("s_barrier")
    mf = [m for m, _ in qk_mfmas(2, zero=zero)]
    for half in range(2):
        for f in range(8 * half, 8 * half + 8): P.puts(frag_reads(2, f))
        P.puts(mf[32 * half:32 * half + 32])


e(f"s_mov_b32 s{sCNT}, 0")
lab("L_rmax")
redo_tile([("K", 98304)], True)
for qb in range(4):
    regs = [S(1, kb, qb) + i for kb in range(4) for i in range(4)]
    for i in range(0, 16, 2): e(f"v_max3_f32 v{NM(qb)}, v{NM(qb)}, v{regs[i]}, v{regs[i+1]}")
e(f"s_add_u32 s{sCNT}, s{sCNT}, 16384"); e(f"s_cmp_lt_u32 s{sCNT}, 0x80000"); e("s_cbranch_scc1 L_rmax")
allreduce("v_max_f32", [NM(qb) for qb in range(4)], [NM(qb) + 1 for qb in range(4)])
for qb in range(4):
    for i in (1, 2, 3, 0): e(f"v_sub_f32 v{NM(qb)+i}, 0, v{NM(qb)}")
for i in list(range(128)) + list(range(192, 208)): e(f"v_accvgpr_write_b32 a{i}, 0")
e(f"s_mov_b32 s{sCNT}, 0")
lab("L_rpv")
redo_tile([("K", 98304), ("V", 114688)], False)
for half in range(2):
    ex, post = sm_stream(1, half)
    P.puts(ex); P.puts([x for p in post for x in p])
mf = [m for m, _ in pv_mfmas(3)]
for half in range(2):
    for f in range(16 + 8 * half, 24 + 8 * half): P.puts(frag_reads(3, f))
    P.puts(mf[36 * half:36 * half + 36])
e(f"s_add_u32 s{sCNT}, s{sCNT}, 16384"); e(f"s_cmp_lt_u32 s{sCNT}, 0x80000"); e("s_cbranch_scc1 L_rpv")
row_sums(); row_inverses()
e("s_branch L_att_done")
lab("L_end")
e("s_endpgm")
P.L += ['.section .rodata,"a"', ".p2align 6", f".amdhsa_kernel {NAME}",
        "  .amdhsa_next_free_vgpr 512", "  .amdhsa_next_free_sgpr 102", "  .amdhsa_accum_offset 256",
        "  .amdhsa_group_segment_fixed_size 0", "  .amdhsa_kernarg_size 104", "  .amdhsa_user_sgpr_count 2",
        "  .amdhsa_user_sgpr_kernarg_segment_ptr 1", "  .amdhsa_system_sgpr_workgroup_id_x 1",
        "  .amdhsa_float_denorm_mode_32 3", ".end_amdhsa_kernel"]
lines = "\n".join(P.L).split("\n")
ABL = opt.get("abl", "")
if ABL:
    i0 = next(i for i, l in enumerate(lines) if "output projection" in l); i1 = lines.index("L_side:")
    j0 = max(i for i in range(i0, i1) if MF in lines[i])
    keep = []
    for i, l in enumerate(lines):
        if i0 < i < i1:
            if "p" in ABL and "s_cbranch_vccnz L_slow_s" in l: continue
            if "w" in ABL and i > j0 and "vmcnt" in l and "v_dot2" not in lines[i + 1]: continue
            if "l" in ABL and "buffer_load_dwordx4" in l and "sc1" in l: continue
            if "s" in ABL and "buffer_store_dwordx4" in l and "sc1" in l: continue
        keep.append(l)
    lines = keep
if opt.get("tcf"): lines = [l + " " + opt["tcf"] if "_load_dword a255" in l and "sc1" not in l and ", off" not in l else l for l in lines]
lines, added = fix_hazards(lines)
nhop = 0
if HOP: lines, nhop = add_page_hops(lines, "L_main", "L_side", sW)
lines = [l for l in lines if "@hop" not in l]
if O_("short", 1): lines = compress(lines)
text = "\n".join(lines) + "\n"
open(OUT_PATH, "w").write(text)
print(f"{OUT_PATH}: {len(lines)} lines, {len(text)} bytes, {added} wait states padded, {nstamp[0]} stamps, {nhop} hops", file=sys.stderr)
```

```python
import re

vr = lambda b, n=1: f"v{b}" if n == 1 else f"v[{b}:{b+n-1}]"
ar = lambda b, n=1: f"a{b}" if n == 1 else f"a[{b}:{b+n-1}]"
sr = lambda b, n=1: f"s{b}" if n == 1 else f"s[{b}:{b+n-1}]"


_TRANS = ("v_exp_", "v_log_", "v_rcp_", "v_rsq_", "v_sqrt_", "v_sin_", "v_cos_")
_SLOW = _TRANS + ("v_permlane",)


class It:
    __slots__ = ("t", "k", "tag", "need", "at")

    def __init__(self, t, k, tag=None, need=(), at=None):
        self.t, self.k, self.tag, self.need, self.at = t, k, tag, tuple(need), at

    @property
    def cost(self):
        return {"s": 0, "l": 4, "g": 8, "v": 4, "x": 8, "m": 8}[self.k]


def gate(*at):
    return It(None, "s", at=at)


class Prog:
    def __init__(self):
        self.L = []
        self.lq = []
        self.vq = []
        self.rec = None
        self.ever, self.used = set(), set()

    def capture(self, fn, *a, **kw):
        assert self.rec is None
        self.rec = []
        fn(*a, **kw)
        out, self.rec = self.rec, None
        return out

    def raw(self, s):
        self.L.append(s)

    def lab(self, s):
        self.L.append(s + ":")

    def cmt(self, s):
        if self.rec is None:
            self.L.append("    ; " + s)

    @staticmethod
    def _cut(q, tags):
        idx = [i for i, t in enumerate(q) if t in tags]
        if not idx:
            return None, q
        last = max(idx)
        return len(q) - 1 - last, q[last + 1:]

    def wait(self, tags):
        tags = set(tags)
        if not tags:
            return False
        if self.rec is not None:
            self.rec.append(It(None, "s", need=tags))
            return False
        assert tags <= self.ever, f"needed before issue: {tags - self.ever}"
        self.used |= tags
        nl, lq = self._cut(self.lq, tags)
        nv, vq = self._cut(self.vq, tags)
        parts = []
        if nv is not None:
            nv = min(nv, 63)
            self.vq = vq[len(vq) - nv:] if nv else []
            parts.append(f"vmcnt({nv})")
        if nl is not None:
            nl = min(nl, 15)
            self.lq = lq[len(lq) - nl:] if nl else []
            parts.append(f"lgkmcnt({nl})")
        if parts:
            self.L.append("    s_waitcnt " + " ".join(parts))
        return bool(parts)

    def wait_all(self, lgkm=True, vm=True):
        parts = []
        if vm:
            parts.append("vmcnt(0)"); self.vq = []
        if lgkm:
            parts.append("lgkmcnt(0)"); self.lq = []
        self.L.append("    s_waitcnt " + " ".join(parts))

    def e(self, s, need=(), k=None):
        if self.rec is not None:
            k = k or ("s" if s.startswith("s_") else "x" if s.startswith(_SLOW) else "v")
            self.rec.append(It(s, k, need=need))
            return
        self.wait(need)
        self.L.append("    " + s)

    def lds(self, s, tag=None, need=()):
        if self.rec is not None:
            self.rec.append(It(s, "l", tag, need))
            return
        self.e(s, need)
        assert tag not in self.used, f"issued after a consumer relied on it: {tag}"
        self.lq.append(tag); self.ever.add(tag)

    def vm(self, s, tag=None, need=()):
        if self.rec is not None:
            self.rec.append(It(s, "g", tag, need))
            return
        self.e(s, need)
        assert tag not in self.used, f"issued after a consumer relied on it: {tag}"
        self.vq.append(tag); self.ever.add(tag)

    def put(self, it):
        if self.rec is not None:
            self.rec.append(it)
        elif it.k == "l":
            self.lds(it.t, it.tag, it.need)
        elif it.k == "g":
            self.vm(it.t, it.tag, it.need)
        elif it.t is None:
            self.wait(it.need)
        else:
            self.e(it.t, it.need)

    def puts(self, its):
        for it in its:
            self.put(it)

    def drain(self, fill):
        while fill:
            self.put(fill.pop(0))

    def run_gaps(self, ms, gaps, fill=None, next_need=(), pos=0, gmin=8, over=0, quiet=()):
        for g, m in enumerate(ms):
            self.put(m)
            items = gaps.get(g, [])
            nxt = ms[g + 1].need if g + 1 < len(ms) else tuple(next_need)
            own = {it.tag for it in items}
            nscal = sum(it.k == "s" and not (it.t or "").startswith(";") for it in items)
            if nxt and not (set(nxt) & own):
                nscal += self.wait(nxt)
            budget = 8 + (over if g % 2 else 0) - sum(it.cost for it in items) - 4 * max(0, nscal - 1)
            head, pre, post = [], [], []
            while fill and g not in quiet:
                it = fill[0]
                if it.at is not None:
                    if (pos, g) < it.at: break
                    fill.pop(0); continue
                if it.k == "s" and not nscal and not pre and not post:
                    head.append(fill.pop(0)); nscal = 1; continue
                cost = it.cost or 4
                if it.k == "g":
                    if head or pre or post or budget < gmin or any(x.k == "g" for x in items): break
                elif cost > budget or (it.k == "l" and post): break
                budget -= cost
                (post if post or it.k in "vx" else pre).append(fill.pop(0))
            self.puts([it for it in items if it.k == "s"] + head)
            self.puts([it for it in items if it.k in "lg"] + pre)
            self.puts([it for it in items if it.k in "vx"] + post)


_REG = re.compile(r"\b([vas])(\d+)\b|\b([vas])\[(\d+):(\d+)\]")


def _regs(op):
    out = set()
    for m in _REG.finditer(op):
        if m.group(1):
            out.add((m.group(1), int(m.group(2))))
        else:
            out |= {(m.group(3), i) for i in range(int(m.group(4)), int(m.group(5)) + 1)}
    if re.search(r"\bvcc(_lo|_hi)?\b", op):
        out.add(("s", "vcc"))
    if re.search(r"\bm0\b", op):
        out.add(("s", "m0"))
    return out


class Ins:
    def __init__(self, line):
        s = line.split(";")[0].strip()
        self.text = s
        p = s.split(None, 1)
        self.op = op = p[0]
        rest = p[1] if len(p) > 1 else ""
        ops = [x.strip() for x in re.split(r",(?![^\[]*\])", rest)] if rest else []
        R = [_regs(o) for o in ops]
        allr = set().union(*R) if R else set()
        self.states = 1
        self.w, self.r = set(), set()
        self.mfma = op.startswith("v_mfma")
        self.valu = op.startswith("v_") and not self.mfma
        self.trans = op.startswith(_TRANS)
        self.dot = op.startswith("v_dot")
        self.vmem = op.startswith(("buffer_", "global_"))
        self.ds = op.startswith("ds_")
        self.salu = op.startswith("s_")
        self.perm = op.startswith("v_permlane") or "dpp" in op
        self.rdlane = op.startswith(("v_readlane", "v_readfirstlane"))
        self.dma = self.vmem and bool(re.search(r"\blds\b", rest))
        self.wide_store = self.vmem and "store" in op and op.endswith(("x3", "x4"))
        self.ab, self.c, self.data = set(), set(), set()
        if op == "s_nop":
            self.states = int(rest) + 1
        elif self.mfma:
            self.w, self.ab, self.c = R[0], R[1] | R[2], R[3]
            self.r = self.ab | self.c
            self.passes = 8 if "32x32" in op else 4
        elif self.valu:
            if op.startswith("v_permlane"):
                self.w = self.r = allr
            else:
                self.w = set(R[0])
                self.r = set().union(*R[1:]) if len(R) > 1 else set()
                if op.startswith(("v_add_co", "v_addc_co", "v_sub_co")):
                    self.w |= R[1]
                    self.r = set().union(*R[2:])
                if op.startswith(("v_fmac", "v_dot2c", "v_writelane")):
                    self.r |= R[0]
                if self.dot:
                    self.ab = R[1] | R[2]
        elif self.vmem:
            if op.startswith(("buffer_inv", "buffer_wbl2")):
                pass
            elif self.dma:
                self.r = allr | {("s", "m0")}
            elif "load" in op:
                self.w, self.r = R[0], set().union(*R[1:])
            else:
                self.r = allr
                self.data = R[0] if op.startswith("buffer") else R[1]
        elif self.ds:
            if "read" in op or "permute" in op:
                self.w, self.r = R[0], set().union(*R[1:])
            else:
                self.r = allr
        elif self.salu and ops and not op.startswith(("s_cmp", "s_bitcmp", "s_cbranch", "s_branch", "s_waitcnt", "s_sleep", "s_setprio")):
            self.w = R[0]
            self.r = set().union(*R[1:]) if len(R) > 1 else set()
        elif self.salu:
            self.r = allr


def _need(p, c):
    n = 0
    pv = {x for x in p.w if x[0] != "s"}
    ps = {x for x in p.w if x[0] == "s"}
    if p.valu:
        if c.mfma and pv & c.r: n = max(n, 2)
        if c.perm and pv & c.r: n = max(n, 2)
        if c.rdlane and pv & c.r: n = max(n, 1)
        if p.trans and c.valu and not c.trans and pv & c.r: n = max(n, 1)
        if p.dot and pv & (c.r | c.w):
            if c.op != p.op or pv & c.ab: n = max(n, 3)
        if ps & c.r:
            n = max(n, 5 if c.vmem else (4 if c.rdlane or c.op.startswith("v_writelane") else 2))
        if ps and c.op.startswith("s_cbranch_vcc"): n = max(n, 2)
    if p.mfma:
        big = {4: 8, 8: 12}[p.passes]
        if c.mfma:
            if p.w & c.ab: n = max(n, big)
            if p.w & c.c and p.w != c.c: n = max(n, big - 2)
            if p.w & c.w and p.w != c.w: n = max(n, big - 2)
        elif (c.valu or c.vmem or c.ds) and p.w & (c.r | c.w):
            n = max(n, big)
        if c.valu and p.c & c.w: n = max(n, {4: 3, 8: 7}[p.passes])
    if p.wide_store and p.data & c.w: n = max(n, 2)
    if p.salu and ("s", "m0") in p.w and c.dma: n = max(n, 1)
    return n


def _is_ins(line):
    s = line.split(";")[0].strip()
    return bool(s) and not s.endswith(":") and not s.startswith(".")


def fix_hazards(lines, window=14):
    out, hist, added = [], [], 0
    for line in lines:
        if not _is_ins(line):
            out.append(line)
            continue
        c = Ins(line)
        dist, short = 0, 0
        for p in reversed(hist):
            short = max(short, _need(p, c) - dist)
            dist += p.states
            if dist > window: break
        if short > 0:
            out.append(f"    s_nop {short-1}")
            hist.append(Ins(f"s_nop {short-1}"))
            added += short
        out.append(line)
        hist.append(c)
        hist = hist[-window - 2:]
    labels = {l.split(":")[0].strip(): i for i, l in enumerate(out) if l.split(";")[0].strip().endswith(":")}
    for i, l in enumerate(out):
        if not _is_ins(l): continue
        b = Ins(l)
        if not b.op.startswith(("s_cbranch", "s_branch")): continue
        tgt = labels[b.text.split()[1]]
        before = [Ins(x) for x in out[max(0, i - 3 * window):i + 1] if _is_ins(x)][-window:]
        after = [Ins(x) for x in out[tgt:tgt + 3 * window] if _is_ins(x)][:window]
        off = 0
        for c in after:
            dist = off
            for p in reversed(before):
                assert _need(p, c) <= dist, f"hazard across branch '{b.text}': '{p.text}' -> '{c.text}'"
                dist += p.states
            off += c.states
            if c.op in ("s_branch", "s_endpgm"): break
    return out, added


SHORT = (("mf", "v_mfma_f32_16x16x32_bf16"), ("rt", "ds_read_b64_tr_b16"), ("pk", "v_cvt_pk_bf16_f32"),
         ("bl", "buffer_load_dwordx4"), ("rq", "ds_read_b128"))


def compress(lines):
    out, done = [], False
    for l in lines:
        if l.startswith(".text") and not done:
            for a, b in SHORT:
                out += [f".macro {a} x:vararg", f" {b} \\x", ".endm"]
            done = True
        if _is_ins(l):
            t = l.strip()
            for a, b in SHORT:
                if t.startswith(b + " "):
                    t = a + t[len(b):]
            l = " " + t.replace(", ", ",")
        out.append(l)
    return out


def instr_sizes(lines, start_label):
    import subprocess, tempfile, os
    d = tempfile.mkdtemp()
    src, obj = os.path.join(d, "a.s"), os.path.join(d, "a.o")
    open(src, "w").write("\n".join(lines) + "\n")
    b = "bin/"
    subprocess.check_call([b + "clang", "-x", "assembler", "-target", "amdgcn-amd-amdhsa", "-mcpu=gfx950", "-c", src, "-o", obj])
    out = subprocess.check_output([b + "llvm-objdump", "-d", "--mcpu=gfx950", obj], text=True).split("\n")
    i = next(k for k, l in enumerate(out) if l.endswith(f"<{start_label}>:"))
    return [4 * len(l.split("//")[1].split(":")[1].split("<")[0].split()) for l in out[i:] if "//" in l]


def add_page_hops(lines, s_wave):
    def sized(a, b):
        sizes = iter(instr_sizes(lines, a))
        return [(l, next(sizes) if _is_ins(l) else 0) for l in lines[lines.index(a + ":"):lines.index(b + ":")]]

    owner, count = {}, [0]

    def walk(body, name, where):
        idx = {l: j for j, (l, _) in enumerate(body) if l.endswith(":")}
        je, jj = idx.get("L_even:", -1), idx.get("L_join:", -1)
        alt = lambda j: je < j < jj
        spots = [(p * 4096, f"{name}{p}") for p in range(1, (where[-1] - 160) // 4096 + 1)]
        todo = {True: [x for x in spots if je >= 0 and where[je] < x[0] <= where[jj]]}
        todo[False] = [x for x in spots if x not in todo[True]]
        if je >= 0: todo[False] = sorted(todo[False] + [(where[je], "odd0"), (where[je] + 1, "join")])
        marks = [j for j, (l, _) in enumerate(body) if l.strip().startswith("; @hop")]
        out, addr, padded, now = [], 0, 0, []

        def pad(key):
            nonlocal addr
            if key in owner:
                out.extend([f"L_pad_{key}:", f"    s_cbranch_execz L_hop{owner[key]}"]); addr += 4
        for j, (l, sz) in enumerate(body):
            page = addr // 4096
            if page > padded and sz:
                prev = next(x for x in reversed(out) if _is_ins(x)).strip()
                if (prev.startswith("v_mfma") and not l.strip().startswith("s_")) or 64 - addr % 4096 - sz < 12:
                    pad(f"{name}{page}"); padded = page
            now.append(addr)
            if j in marks:
                q = todo[alt(j)]
                while q and q[0][0] <= addr + 40: q.pop(0)
                nxt = next((m for m in marks if m > j and alt(m) == alt(j)), jj if alt(j) else len(body))
                rounds = int(l.split("@hop")[1].strip() or "0") or -(-sum(x[0] <= where[nxt] + 64 for x in q) // 4)
                for _ in range(rounds):
                    keys = [q.pop(0)[1] for _ in range(min(4, len(q)))]
                    if len(keys) < 2: break
                    out.append("    s_mov_b64 exec, 0"); addr += 4
                    for w, key in enumerate(keys):
                        owner[key] = count[0]
                        if w < 3:
                            out.extend([f"    s_cmp_eq_u32 s{s_wave}, {w}", f"    s_cbranch_scc1 L_pad_{key}"]); addr += 8
                        else:
                            out.append(f"    s_branch L_pad_{key}"); addr += 4
                    out.extend([f"L_hop{count[0]}:", "    s_mov_b64 exec, -1"]); addr += 4
                    count[0] += 1
                continue
            out.append(l); addr += sz
            if l == "L_join:": pad("join")
            if l == "L_odd:": pad("odd0")
        return out, now + [addr]

    bodies = [(sized("L_main", "L_side"), "pg"), (sized("L_odd", "L_end"), "odd")]
    where = []
    for body, _ in bodies:
        w = [0]
        for _, sz in body: w.append(w[-1] + sz)
        where.append(w)
    for _ in range(8):
        owner.clear(); count[0] = 0
        res = [walk(b, n, w) for (b, n), w in zip(bodies, where)]
        done = [r[1] for r in res] == where
        where = [r[1] for r in res]
        if done: break
    assert done
    i = [lines.index(x + ":") for x in ("L_main", "L_side", "L_odd", "L_end")]
    return lines[:i[0]] + res[0][0] + lines[i[1]:i[2]] + res[1][0] + lines[i[3]:], count[0]
```

```python
import math
import struct
import sys
from asmlib5 import *

OUT_PATH = sys.argv[1]
opt = dict(a.split("=") for a in sys.argv[2:])
O_ = lambda k, d: int(opt.get(k, d))
STAMP = O_("stamp", 0)
SSET = opt.get("sset", "")
FORCE_REDO = O_("redo", 0)
QPERM = O_("qperm", 1)
PA = O_("pa", 1)
XREG = O_("xreg", 1)
SPARSE = O_("sparse", 1)
AHEAD = O_("ahead", 10)
AMP = [int(x) for x in opt["amp"].split(",")] if "amp" in opt else None

NAME = "recurrent_scan__gqa_block_cached__mixer_s_mlp__prompt_kernel"
MF = "v_mfma_f32_16x16x32_bf16"
f2u = lambda x: "0x%08x" % struct.unpack("<I", struct.pack("<f", x))[0]
LOG2E = math.log2(math.e)
QSCALE = LOG2E / math.sqrt(128.0)
GC1 = -2.0 * math.sqrt(2.0 / math.pi) * LOG2E
GC2 = GC1 * 0.044715
EPS = 1e-5
GA_ = (-GC2) ** (1.0 / 3.0)
GK = -GC1 / GA_

SX, SK, SV, SWS, SWQ, SWO, SW1, SW2, SW3, SW4, SOUT, SDBG = range(4, 52, 4)
sG, sM, sW = 52, 53, 54
sT = 55
sW1K, sW4K, sRING, sSO = 60, 61, 62, 63
sSF, sCNT, sSPIN, sHO, sPP, sPC, sFL, sF0, sF1, sSTP, sSTC = range(64, 75)
sLO, sHI, sONE2, sC1, sC2, sNL2E, sF2, sMSK, sKS, sF3, sTB, sSTF, sXF, sRS, sW3B = range(75, 90)
sST = 92
srd = lambda b: sr(b, 4)

WS_H, WS_X1, WS_PS, WS_PH, WS_FL, WS_SS, WS_ST = 0, 0x200000, 0x400000, 0x1400000, 0x2400000, 0x2500000, 0x4000000
PLANE = 131072

vBA, vTOK, vNMEAN, vRSTD, vLANE, vSTAMP, vCODE, vAS, vDW2 = 255, 254, 253, 252, 251, 250, 248, 244, 243
T = 226
vAA, vAA2 = T, T + 4
vBX, vWA, vSC1, vDWQ, vDW1 = T + 8, T + 9, T + 12, T + 14, T + 15
vPA, vPOLL, vONE, vDW4, vDWO = T + 16, T + 15, T + 14, T + 13, T + 12
vTC = T + 10
XR = 128
G12 = 192
S = lambda buf, kb, qb: buf * 64 + ((kb >> 1) * 4 + qb) * 8 + (kb & 1) * 4
PR = lambda buf, ks, qb: buf * 64 + (ks * 4 + qb) * 8
Q = lambda qb, s: 128 + (qb * 4 + s) * 4
NM = lambda qb: 192 + 4 * qb
KA = lambda s: 208 + s
VA = lambda db: 212 + db
KG = lambda i: 220 + i
VG = lambda i: 224 + (i & 1)
vR = NM(0)
O = lambda db, qb: (db * 4 + qb) * 4
FR = lambda f: 128 + (f % 8) * 4
HB = lambda ks: 160 + (ks % 8) * 4
LACC = lambda qb: 192 + 4 * qb
aONES, aG2, aXN = 208, 212, 244
GA = lambda i: 228 + (i % 4) * 4
AF = lambda f: 128 + (f % 8) * 4
PHA = lambda k: (160, 212)[k // 8] + (k % 8) * 4
T0 = 22
RING, VOFF = 65536, 65536

P = Prog()
e, lab, cap = P.e, P.lab, P.capture
slow_paths = []
nstamp = [0]


JIT = O_("jitter", 0)
njit = [0]


def jitter():
    i = njit[0]; njit[0] += 1
    e(f"s_memrealtime {sr(96,2)}"); P.wait_all(vm=False)
    e(f"s_lshr_b32 s96, s96, 14"); e(f"s_lshl_b32 s97, s2, 2" if JIT & 1 else "s_mov_b32 s97, s2")
    if JIT & 1: e(f"s_add_u32 s97, s97, s{sW}")
    e(f"s_add_u32 s96, s96, s97"); e(f"s_add_u32 s96, s96, {i * 7919 + 13}"); e("s_mul_i32 s96, s96, 0x9e3779b1")
    e("s_mov_b32 s98, s96")
    e(f"s_lshr_b32 s96, s96, {32 - (JIT >> 1)}")
    lab(f"L_jit{i}")
    e("s_sleep 8"); e("s_sub_u32 s96, s96, 1"); e(f"s_cbranch_scc0 L_jit{i}")


def jitter_item():
    i = njit[0]; njit[0] += 1
    return It(f"s_mul_i32 s98, s98, 0x41c64e6d\n    s_add_u32 s98, s98, 12345\n    s_lshr_b32 s99, s98, 27\n"
              f"    s_sub_u32 s99, s99, 24\n    s_cbranch_scc1 L_jx{i}\nL_jw{i}:\n    s_sleep {O_('jit2', 0)}\n"
              f"    s_sub_u32 s99, s99, 1\n    s_cbranch_scc0 L_jw{i}\nL_jx{i}:", "s")


def stamp(level=1):
    if JIT and level == 1: jitter()
    if AMP and level == 1:
        i = nstamp[0]; nstamp[0] += 1
        if i in AMP[:2]:
            e(f"{'s_memtime' if AMP[3] else 's_memrealtime'} {sr(sST + 2*AMP.index(i),2)}"); P.wait_all(vm=False)
        return
    if STAMP < level or (SSET and level != 0):
        return
    i = nstamp[0]; nstamp[0] += 1
    e(f"s_memtime {sr(sST,2)}"); e(f"s_memrealtime {sr(sST+2,2)}")
    P.wait_all(vm=False)
    e(f"v_writelane_b32 v{vSTAMP}, s{sST}, {2*i}")
    e(f"v_writelane_b32 v{vSTAMP}, s{sST+2}, {2*i+1}")


def stamp_item():
    i = nstamp[0]; nstamp[0] += 1
    return It(f"s_memtime {sr(sST,2)}\n    s_memrealtime {sr(sST+2,2)}\n    s_waitcnt lgkmcnt(0)\n"
              f"    v_writelane_b32 v{vSTAMP}, s{sST}, {2*i}\n    v_writelane_b32 v{vSTAMP}, s{sST+2}, {2*i+1}", "s")


def mk_srd(d, p, size):
    e(f"s_mov_b32 s{d}, s{p}"); e(f"s_mov_b32 s{d+1}, s{p+1}"); e(f"s_mov_b32 s{d+2}, {size}"); e(f"s_mov_b32 s{d+3}, 0x20000")


def sum_terms(dst, *terms):
    first = True
    for t in terms:
        if isinstance(t, int):
            e(f"s_add_u32 s{dst}, s{dst}, {t}"); continue
        r, k = t
        if k == 0:
            e(f"s_mov_b32 s{dst}, 0"); first = False; continue
        d = dst if first else sT + 4
        e(f"s_lshl_b32 s{d}, s{r}, {k.bit_length()-1}" if k & (k - 1) == 0 else f"s_mul_i32 s{d}, s{r}, {k}")
        if not first: e(f"s_add_u32 s{dst}, s{dst}, s{d}")
        first = False


def allreduce(op, regs, tmps, k=None):
    for sw in ("v_permlane32_swap_b32", "v_permlane16_swap_b32"):
        for r, t in zip(regs, tmps): e(f"v_mov_b32 v{t}, v{r}")
        for r, t in zip(regs, tmps): e(f"{sw} v{r}, v{t}", k=k)
        for r, t in zip(regs, tmps): e(f"{op} v{r}, v{r}, v{t}")


def masked(mask, txt, tag=None, lds=False):
    (P.lds if lds else P.vm)(f"s_mov_b64 exec, {mask}\n    {txt}\n    s_mov_b64 exec, -1", tag)


class Poll:
    def __init__(self, name, loads, tests):
        self.name, self.loads, self.tests = name, loads, tests
        slow_paths.append(self)

    def issue(self):
        for l in self.loads: P.vm(l, self.name)

    def check(self):
        for i, t in enumerate(self.tests): e(t, need=[self.name] if i == 0 else ())
        e(f"s_cbranch_vccnz L_slow_{self.name}\nL_back_{self.name}:", k="v")


def flag_poll(name, s_rd, soff, target):
    return Poll(name, [f"buffer_load_dword v{vPOLL}, v{vPA}, {srd(s_rd)}, {soff} offen sc1"],
                [f"v_cmp_gt_u32 vcc, {target}, v{vPOLL}"])


def set_flags(stage, nlanes, need, val=1):
    e(f"v_mov_b32 v{vONE}, {val}")
    e(f"s_add_u32 s{sSF}, s{sFL}, {stage * 1024}")
    P.wait(need)
    masked((1 << nlanes) - 1, f"buffer_store_dword v{vONE}, v{vLANE}, {srd(SWS)}, s{sSF} offen sc1")


def interleave(code, side, every):
    side = list(side)
    for k, it in enumerate(code):
        if side and k % every == 0: P.puts(side.pop(0))
        P.put(it)
    for x in side: P.puts(x)


def gelu(base, n, tmp, dst, first):
    pairs = range(0, n, 2)
    if first: e(f"v_mov_b32 v{vTC}, s{sC1}")
    for i in pairs: e(f"v_pk_fma_f32 {vr(tmp+i,2)}, {vr(base+i,2)}, {vr(base+i,2)}, {vr(vTC,2)} op_sel_hi:[1,1,0]")
    for i in pairs: e(f"v_pk_mul_f32 {vr(tmp+i,2)}, {vr(tmp+i,2)}, {vr(base+i,2)} neg_lo:[0,1] neg_hi:[0,1]")
    for i in range(n): e(f"v_exp_f32 v{tmp+i}, v{tmp+i}")
    for i in pairs: e(f"v_pk_add_f32 {vr(tmp+i,2)}, {vr(tmp+i,2)}, 1.0 op_sel_hi:[1,0]")
    for i in range(n): e(f"v_rcp_f32 v{tmp+i}, v{tmp+i}")
    for i in pairs: e(f"v_pk_mul_f32 {vr(tmp+i,2)}, {vr(tmp+i,2)}, {vr(base+i,2)}")
    for i in pairs: e(f"v_cvt_pk_bf16_f32 v{dst(i//2)}, v{tmp+i}, v{tmp+i+1}")


class Tile:
    def __init__(self, s_rd, voff, base, stride, perm, slot, tag, rows=64, kp=0, nh=0, half=32):
        self.__dict__.update(locals())

    def dma(self):
        out = []
        for i in range(self.rows // 8):
            row = ((0, 16, 4, 20)[i & 3] if self.perm else 8 * (i & 3)) + self.half * (i >> 2)
            so = self.base + row * self.stride - (i & 3) * 1024
            pre = [It(f"s_add_u32 m0, s{sRING}, {self.slot * 32768 + (i >> 2) * 4096}", "s")] if i % 4 == 0 else []
            out.append((pre + [It(f"s_mov_b32 s{sSO}, {so}", "s")],
                        [It(f"buffer_load_dwordx4 v{self.voff}, {srd(self.s_rd)}, s{sSO} offen "
                            f"offset:{(i & 3) * 1024} lds", "g", self.tag)]))
        return out


def place(add, g, grp, prev, avoid=()):
    pre, its = grp
    c = [h for h in range(max(prev + 1, 0), g) if h not in avoid][-len(pre):] if pre else []
    for k, it in enumerate(pre): add(c[k] if len(c) == len(pre) else max(g - len(pre) + k, prev + 1, 0), it)
    for it in its: add(g, it)


def dma_voff(dst, stride, perm, s_base, a):
    b = a + 1
    e(f"v_lshrrev_b32 v{a}, 10, v{vLANE}")
    e(f"v_bfe_u32 v{b}, v{vBA}, 4, 3")
    e(f"v_and_b32 v{dst}, 6, v{a}"); e(f"v_xor_b32 v{b}, v{b}, v{dst}")
    if perm:
        e(f"v_and_b32 v{dst}, 4, v{a}"); e(f"v_add_u32 v{a}, v{a}, v{dst}")
    e(f"v_mul_u32_u24 v{a}, {stride}, v{a}")
    e(f"v_lshl_add_u32 v{a}, v{b}, 4, v{a}")
    e(f"v_add_u32 v{dst}, {s_base}, v{a}")


def a_reads(t, ti, nb):
    base = (vAA2 if t.slot == 2 else vAA) + nb
    off = (t.slot % 2) * 32768 if t.slot < 2 else 0
    return [It(f"ds_read_b64_tr_b16 {ar(AF(nb*2+ks) + 2*h, 2)}, v{base} offset:{off + ks*4096 + h*2048}", "l",
               ("A", t.tag, nb), need=[t.tag]) for ks in range(t.rows // 32) for h in range(2)]


def gemm_pre(tiles, i0):
    P.puts(a_reads(tiles[i0], i0, 0))


def gemm(tiles, i0, n, acc, pending, bf, breg=vBA, extra=None, fill=None, over=0, opening=None, dma0=0, btr=False):
    bf = [x if isinstance(x, tuple) else (ar, x) for x in bf]
    BF = lambda s, ks, tb, o=0, w=4: bf[grp[s] % len(bf)][0](bf[grp[s] % len(bf)][1] + (ks * 4 + tb) * 4 + o, w)
    ms, gaps, start, grp, held, fresh = [], {}, [], [], {}, []
    seen = set()
    for s, ti in enumerate(range(i0, i0 + n)):
        t = tiles[ti]
        fresh.append(t.kp not in held)
        if fresh[s]:
            k = max(grp, default=-1) + 1
            while s and k % len(bf) == grp[s - 1] % len(bf): k += 1
            held = {kp: g for kp, g in held.items() if g % len(bf) != k % len(bf)}
            held[t.kp] = k
        grp.append(held[t.kp])
        start.append(len(ms))
        nks = t.rows // 32
        for nb in range(4):
            for tb in range(4):
                for ks in (range(nks) if not tb & 1 else range(nks - 1, -1, -1)):
                    d = vr(acc(t.nh, nb, tb), 4)
                    c = d if (t.nh, nb, tb) in seen else "0"
                    seen.add((t.nh, nb, tb))
                    ms.append(It(f"{MF} {d}, {ar(AF(nb*2+ks),4)}, {BF(s,ks,tb)}, {c}", "m",
                                 need=[("A", t.tag, nb), ("B", tiles[i0].tag, grp[s], tb)]))
    start.append(len(ms))

    def b_reads(s):
        t = tiles[i0 + s]
        if btr:
            return [It(f"ds_read_b64_tr_b16 {BF(s,ks,tb,2*h,2)}, v{breg+tb} offset:{t.kp*8192 + ks*4096 + h*2048}",
                       "l", ("B", tiles[i0].tag, grp[s], tb)) for tb in range(4) for ks in range(2) for h in range(2)]
        return [It(f"ds_read_b128 {BF(s,ks,tb)}, v{breg} offset:{t.kp*8192 + ks*4096 + tb*1024}", "l",
                   ("B", tiles[i0].tag, grp[s], tb)) for tb in range(4) for ks in range(t.rows // 32)]

    add = lambda g, it: gaps.setdefault(g, []).append(it)
    pre = b_reads(0)
    release = {}
    for s in range(n):
        ti = i0 + s; t = tiles[ti]
        per = (start[s + 1] - start[s]) // 4
        for nb in range(4):
            if s == 0 and nb == 0: continue
            rd = a_reads(t, ti, nb)
            for k, it in enumerate(rd):
                g = start[s] + per * nb - 6 - 2 * (len(rd) - 1 - k)
                if g < 0: pre.append(it)
                else: add(g, it)
        if ti + 3 < len(tiles) and tiles[ti + 3]: release[start[s] + 3 * per] = tiles[ti + 3]
        if s + 1 < n and fresh[s + 1]:
            s0 = s - 1 if s and not fresh[s] and grp[s - 1] % len(bf) != grp[s + 1] % len(bf) else s
            rd = b_reads(s + 1)
            cand = [g for g in range(start[s0], start[s + 1] - 6) if g % 4 == 3]
            if btr: cand = sorted(cand * 2)
            if len(cand) < len(rd): cand = sorted(cand + [start[s0] + 2 * k for k in range(len(rd) - len(cand))])
            step = len(cand) / len(rd)
            for k, it in enumerate(rd): add(cand[int(k * step)], it)
    if opening == "get": return a_reads(tiles[i0], i0, 0) + pre
    if opening == "done": pre = []
    prev = dma0 - 1
    for g in range(dma0, len(ms)):
        if g in release: pending += release[g].dma()
        nxt = min([r for r in release if r > g], default=len(ms) + 24)
        if pending and (g % 4 == 1 or (g % 4 == 3 and len(pending) > (nxt - g + 1) // 4)):
            place(add, g, pending.pop(0), prev); prev = g
    for g, its in (extra or {}).items():
        for it in its: add(g, it)
    for g in start[:-1]: add(g + 10, hop())
    if O_("jit2", 0):
        for g in start[:-1]: add(g + 4, jitter_item())
    if SSET == {id(qt): "q", id(ot): "o"}.get(id(tiles), "mlp"):
        for g in start[:-1] + [len(ms) - 1]: add(g, stamp_item())
    P.puts(pre)
    P.run_gaps(ms, gaps, fill, gmin=4, over=over)


def flush(pending):
    while pending:
        a, b = pending.pop(0)
        P.puts(a + b)


def shared_ops(kss, koff, acc, zero, afr, breg, bneed, name, i0=0):
    out = []
    for nb in range(4):
        for ks in kss:
            i = i0 + len(out)
            d = acc(nb)
            out.append((It(f"{MF} {d}, {ar(afr(i),4)}, {breg(ks)}, {0 if zero and not ks else d}", "m",
                           need=[(name, i)] + list(bneed(ks))),
                        [It(f"ds_read_b64_tr_b16 {ar(afr(i)+2*h,2)}, v{vAS+nb} offset:{(ks-koff)*4096 + h*2048}", "l",
                            (name, i)) for h in range(2)]))
    return out


def pack(acc, nh, tb, s, second=False, guard=False):
    a, b = acc(nh, 2 * s, tb), acc(nh, 2 * s + 1, tb)
    order = list(enumerate((a, a + 2, b, b + 2)))
    d = b if second else a
    for j, r in reversed(order) if second else order: e(f"v_cvt_pk_bf16_f32 v{d+j}, v{r}, v{r+1}")
    if guard:
        for j in range(4): e(f"v_min_u32 v{d+j}, -2, v{d+j}")


def store_piece(src, ws_base, nh, tb, s, tag):
    e(f"s_add_u32 s{sSF}, s{sPP}, {ws_base + (tb >> 1)*65536 + ((tb & 1) + 2*s)*2048}")
    P.vm(f"buffer_store_dwordx4 {src}, v{vBA}, {srd(SWS)}, s{sSF} offen offset:{nh*1024} sc1", tag)


def load_piece(ws_base, dst, g, nh, tag):
    e(f"s_add_u32 s{sSF}, s{sPC}, {ws_base + g*8192}")
    P.vm(f"buffer_load_dwordx4 {dst}, v{vBA}, {srd(SWS)}, s{sSF} offen offset:{nh*1024} sc1", (tag, g, nh))


def add_piece(dst, reg, first, need):
    for j in range(4):
        for h, sel in enumerate((sLO, sHI)):
            d = dst + 2 * j + h
            e(f"v_dot2_f32_bf16 v{d}, v{reg+j}, s{sel}, {0 if first else 'v%d' % d}", need=need)


def frag_reads(t, f, tail=False):
    if f < 16:
        kb, s = f // 4, f % 4
        off = ((t + 1) % 4) * 16384 + kb * 4096
        return [It(f"ds_read_b128 {ar(FR(f),4)}, v{KA(s)} offset:{off}", "l", ("F", t, f))]
    db, ks = ((f - 16) // 2, (f - 16) % 2) if not tail else ((f - 16) % 8, (f - 16) // 8)
    off = (t % 4) * 16384 + ks * 8192
    return [It(f"ds_read_b64_tr_b16 {ar(FR(f)+2*h,2)}, v{VA(db)} offset:{off + 4096*h}", "l", ("F", t, f))
            for h in range(2)]


def qk_mfmas(t, zero=False):
    out = []
    for kb in range(4):
        for qb in range(4):
            for n, s in enumerate(range(4) if not qb & 1 else range(3, -1, -1)):
                d = vr(S((t + 1) & 1, kb, qb), 4)
                c = d if n else ("0" if zero else vr(NM(qb), 4))
                out.append((It(f"{MF} {d}, {ar(FR(kb*4+s),4)}, {vr(Q(qb,s),4)}, {c}", "m",
                               need=[("F", t, kb * 4 + k) for k in range(4)]), kb * 4 + s))
    return out


def pv_one(t, db, qb, ks, f, need, zero=False):
    o = ar(O(db, qb), 4)
    ab = [ar(FR(f), 4), vr(PR(t & 1, ks, qb), 4)][::-1 if PA else 1]
    return (It(f"{MF} {o}, {ab[0]}, {ab[1]}, {0 if zero else o}", "m", need=need), f)


def sum_one(t, qb, ks, zero=False):
    l = ar(LACC(qb), 4)
    ab = [ar(aONES, 4), vr(PR(t & 1, ks, qb), 4)][::-1 if PA else 1]
    return (It(f"{MF} {l}, {ab[0]}, {ab[1]}, {0 if zero else l}", "m"), None)


def pv_mfmas(t, zero=False):
    out = []
    for db in range(8):
        need = [("F", t, 16 + db * 2), ("F", t, 17 + db * 2)]
        for qb in range(4):
            for n, ks in enumerate(range(2) if not qb & 1 else range(1, -1, -1)):
                out.append(pv_one(t, db, qb, ks, 16 + db * 2 + ks, need, zero and not n))
        if db % 2 == 1:
            out += [sum_one(t, db // 2, ks, zero and not ks) for ks in range(2)]
    return out


def pv_mfmas_tail(t):
    out = []
    for ks in range(2):
        out += [sum_one(t, qb, ks) for qb in range(4)]
        for db in range(8):
            f = 16 + ks * 8 + db
            out += [pv_one(t, db, qb, ks, f, [("F", t, f)]) for qb in range(4)]
    return out


def sm_stream(buf, half):
    ex, post = [], []
    for qb in range(4):
        b = PR(buf, half, qb)
        for j in range(8):
            ex.append(It(f"v_exp_f32 v{b+j}, v{b+j}", "x"))
            post.append([It(f"v_cvt_pk_bf16_f32 v{b + j//2}, v{b+j-1}, v{b+j}", "v")] if j & 1 else [])
    return ex, post


def kv_dma(kind, tile, lds=None, so=None):
    reg, s_rd, base = (KG, SK, 0) if kind == "K" else (VG, SV, VOFF)
    lds = base + (tile % 4) * 16384 if lds is None else lds
    out = []
    for i in range(4):
        pre = [It(f"s_add_u32 m0, s{sW4K}, {lds}", "s"),
               It(f"s_mov_b32 s{sSO}, {tile * 16384 if so is None else so}", "s")] if i == 0 else []
        out.append((pre, [It(f"buffer_load_dwordx4 v{reg(i)}, {srd(s_rd)}, s{sSO} offen offset:{i*1024} lds",
                             "g", (kind, tile))]))
    return out


issued = set()
CLUSTER = O_("cluster", 1)
WINS = [int(x) for x in opt.get("wins", "2,18,34,50,73,91,109,127").split(",")]
WPAT = [int(x) for x in opt.get("wpat", "1").split(",")]


def attn_iter(t, groups, fill, endwait=(), extra=None, ins=None):
    end = T0 - 1 if t < T0 else 31
    last = t == end
    mf = pv_mfmas_tail(t) if last else qk_mfmas(t) + pv_mfmas(t, zero=t == 0)
    ms = [m for m, _ in mf]
    n = len(ms)
    first_use, last_use = {}, {}
    for i, (_, f) in enumerate(mf):
        if f is not None:
            first_use.setdefault(f, i); last_use[f] = i
    reads = []
    for f in sorted(first_use):
        if (t, f) in issued: continue
        reads += [(first_use[f] - AHEAD, last_use.get(f - 8, -1), it) for it in frag_reads(t, f, last)]
    nxt_need = ()
    if t < end - 1:
        for f in range(4):
            reads += [(n + f - AHEAD, last_use[24 + f], it) for it in frag_reads(t + 1, f)]
            issued.add((t + 1, f))
        nxt_need = [("F", t + 1, f) for f in range(4)]
    elif t == end - 1:
        for f in range(16, 18):
            reads += [(n + 4 * (f - 15) - AHEAD, last_use[8 + f], it) for it in frag_reads(end, f, True)]
            issued.add((end, f))
    gaps = {}
    add = lambda g, it: gaps.setdefault(g, []).append(it)
    exg = {}
    wins = [] if last or not CLUSTER else WINS[:min(len(WINS), -(-len(groups) // len(WPAT)))]
    quiet = {w + k for w in wins for k in range(WPAT[-1] + 1)}
    dma_gaps = sorted(w + k for w in wins for k in WPAT)
    if last:
        ex, post = sm_stream(t & 1, 1)
        for i in range(32): exg[i] = (ex[i], post[i])
    else:
        for (ex, post), lo, hi in ((sm_stream(t & 1, 1), 0, 63), (sm_stream((t + 1) & 1, 0), 64, n - 2)):
            c = [g for g in range(lo, hi) if g not in quiet]
            for i in range(32): exg[c[(i * (len(c) + 1)) // 32]] = (ex[i], post[i])
    for g, (x, post) in exg.items():
        add(g, x)
    for g, (x, post) in exg.items():
        h = g + 1
        while not last and (h in exg or h in quiet): h += 1
        for it in post: add(h, it)
    free = set(range(n)) if last else {g for g in range(n) if g not in exg and g not in dma_gaps and len(gaps.get(g, [])) < 2}
    prev, pre, avail = n, [], sorted(free)
    for dl, early, it in reversed(reads):
        c = [g for g in free if g <= dl and g < prev]
        if c and max(c) >= early:
            prev = max(c); free.discard(prev); add(prev, it)
        elif early < 0:
            prev = -1; pre.insert(0, it)
        else:
            g = min(g for g in avail if g >= early and len(gaps.get(g, [])) < 2)
            assert g <= dl + AHEAD - 6, (t, it.t, g, dl)
            free.discard(g); gaps.setdefault(g, []).insert(0, it)
    if groups:
        def spaced(c):
            out = []
            for g in c:
                if not out or g - out[-1] >= 2: out.append(g)
            return out
        light = spaced([g for g in sorted(free) if 1 <= g < n - 6 and g not in gaps])
        fr = light if len(light) >= len(groups) - len(dma_gaps) + 4 else spaced([g for g in sorted(free) if 1 <= g < n - 6])
        rest = len(groups) - len(dma_gaps)
        if rest > 0:
            fr = [g for g in fr if not {g - 1, g, g + 1} & set(dma_gaps)]
            if len(fr) < rest: fr = spaced([g for g in range(1, n - 6) if g not in exg and not {g - 1, g, g + 1} & set(dma_gaps)])
            assert len(fr) >= rest, (t, len(fr), len(groups))
            dma_gaps = sorted(dma_gaps + [fr[int(k * len(fr) / rest)] for k in range(rest)])
        for k, grp in enumerate(groups): place(add, dma_gaps[k], grp, dma_gaps[k - 1] if k else -1, {u - 1 for u in first_use.values()})
    if not last:
        add(n - 3, It(None, "s", need=[("K", min(t + 3, end)), ("V", end if t == end - 2 else t + 1)] + list(endwait)))
        add(n - 2, It("s_barrier", "s"))
        add(n - 4, hop())
    for g, its in (extra or {}).items():
        for it in its: add(g, it)
    if SSET == "attn": add(0, stamp_item())
    if O_("jit2", 0):
        for g in (1, n // 2, n - 12): add(g, jitter_item())
    if ins:
        for k in range(3):
            for h, it in enumerate(ins[k][1]): add(1 + 4 * k + 2 * h, it)
        pos = {(13 + (k * (n - 24)) // (len(ins) - 1)) | 1: k for k in range(len(ins))}
        assert len(pos) == len(ins)
        ms2, gaps2, old, quiet = [], {}, quiet, set()
        for g, m in enumerate(ms):
            if g in old: quiet.add(len(ms2))
            gaps2[len(ms2)] = gaps.get(g, []); ms2.append(m)
            if g in pos:
                k = pos[g]
                gaps2[len(ms2)] = list(ins[k + 3][1]) if k + 3 < len(ins) else []
                ms2.append(ins[k][0])
        ms, gaps = ms2, gaps2
    P.puts(pre)
    P.run_gaps(ms, gaps, fill, next_need=nxt_need, pos=t, gmin=4, quiet=quiet)


hdr = [l.rstrip("\n") for l in open("header.txt")]
hdr = hdr[:[i for i, l in enumerate(hdr) if "@launch" in l][0]]
P.L += hdr + ["; @launch grid=(256,1,1) block=(256,1,1) lds=163840",
              '.amdgcn_target "amdgcn-amd-amdhsa--gfx950"', ".text", f".globl {NAME}", ".p2align 8",
              f".type {NAME},@function"]
lab(NAME)
e("s_cmp_lt_u32 s2, 256"); e("s_cbranch_scc1 L_go"); e("s_endpgm")
lab("L_go")
if AMP and AMP[0] < 0: e(f"s_memrealtime {sr(sST,2)}")
e("s_load_dwordx16 s[64:79], s[0:1], 0"); e("s_load_dwordx8 s[80:87], s[0:1], 64"); e("s_load_dwordx2 s[88:89], s[0:1], 96")
PAIR = O_("pair", 0)
NS = 16 if PAIR else 32
sMI, sWV = 90, 91
if PAIR:
    e(f"s_and_b32 s{sG}, s2, 3"); e(f"s_lshl_b32 s{sG}, s{sG}, 1"); e(f"s_bfe_u32 s{sT}, s2, 0x10003"); e(f"s_add_u32 s{sG}, s{sG}, s{sT}")
    e(f"s_lshr_b32 s{sMI}, s2, 4"); e(f"s_and_b32 s{sM}, s2, 4"); e(f"s_lshl_b32 s{sM}, s{sM}, 2"); e(f"s_add_u32 s{sM}, s{sM}, s{sMI}")
else:
    e(f"s_and_b32 s{sG}, s2, 7"); e(f"s_lshr_b32 s{sM}, s2, 3"); e(f"s_lshr_b32 s{sMI}, s2, 3")
e("v_lshrrev_b32 v1, 6, v0"); e("v_and_b32 v0, 63, v0"); e(f"v_readfirstlane_b32 s{sW}, v1")
e(f"v_lshlrev_b32 v{vBA}, 4, v0"); e(f"v_lshlrev_b32 v{vLANE}, 7, v0")
e(f"s_getpc_b64 {sr(sT+1,2)}")
lab("L_pc")
NCL = 10
e(f"s_lshr_b32 s{sT+3}, s2, 3")
sum_terms(sT, (sT + 3, 512), (sW, 128))
e(f"v_min_u32 v6, {NCL-1}, v0"); e(f"v_lshl_add_u32 v6, v6, 14, s{sT}"); e("v_min_u32 v6, L_end-L_pc, v6")
e(f"v_mov_b32 v{vCODE+1}, s{sT+2}"); e(f"v_add_co_u32 v{vCODE}, vcc, s{sT+1}, v6")
e(f"v_addc_co_u32 v{vCODE+1}, vcc, 0, v{vCODE+1}, vcc")
code_touch = lambda: P.vm(f"global_load_dword a255, {vr(vCODE,2)}, off")
masked(3, f"global_load_dword a255, {vr(vCODE,2)}, off")
sum_terms(sWV, (sMI, 4), (sW, 1))


def touch_off(d, nrows, lines, stride, base_terms, t):
    per = -(-nrows // (NS * 4))
    assert per * lines <= 64 and lines & (lines - 1) == 0
    sh = lines.bit_length() - 1
    e(f"v_lshrrev_b32 v{d}, {7 + sh}, v{vLANE}"); e(f"v_min_u32 v{d}, {per - 1}, v{d}")
    e(f"s_mul_i32 s{sT}, s{sWV}, {per}"); e(f"v_add_u32 v{d}, s{sT}, v{d}")
    if per * NS * 4 != nrows: e(f"v_min_u32 v{d}, {nrows - 1}, v{d}")
    e(f"v_mul_u32_u24 v{d}, {stride}, v{d}")
    sum_terms(sT, *base_terms)
    if lines > 1:
        e(f"v_and_b32 v{t}, {(lines - 1) * 128}, v{vLANE}"); e(f"v_add3_u32 v{d}, v{d}, v{t}, s{sT}")
    else:
        e(f"v_add_u32 v{d}, s{sT}, v{d}")


WQ0 = O_("wq0", 128)
vTQ, vT1, vTK = T + 11, T + 13, T + 16
touch_off(6, WQ0, 8, 8192, [(sG, 1024)], 7)
touch_off(vT1, 512, 1, 1024, [(sG, 128)], 7)
e("v_and_b32 v2, 3, v0")
e("v_lshrrev_b32 v1, 2, v0")
sum_terms(sT, (sM, 64), (sW, 16))
e(f"v_add_u32 v3, s{sT}, v1"); e("v_lshlrev_b32 v3, 10, v3"); e("v_lshl_add_u32 v3, v2, 4, v3")
e(f"s_and_b32 s{sT+1}, s{sG}, 1"); e(f"s_lshl_b32 s{sT+2}, s{sT+1}, 9")
e(f"v_add_u32 v3, s{sT+2}, v3"); e(f"v_xor_b32 v{G12+13}, 0x200, v3")
if STAMP: e(f"v_mov_b32 v{vSTAMP}, 0")
e("s_waitcnt lgkmcnt(0)")
stamp()
if SSET == "ln": stamp(0)
ENT = " nt" * O_("ent", 0)
P.vm(f"global_load_dword a255, v{vT1}, s[76:77]{ENT}")
P.vm(f"global_load_dword a255, v6, s[70:71]{ENT}")
for i in range(8):
    P.vm(f"global_load_dwordx4 {vr(XR+4*i,4)}, v3, s[64:65] offset:{i*64}", ("x", i))
HOP = O_("hop", 1)
hop = lambda n="": It(f"; @hop {n}", "s")
if HOP:
    e("s_branch L_main"); P.raw(".p2align 12")
lab("L_main")
e("v_lshlrev_b32 v4, 1, v2"); e("v_xor_b32 v4, v4, v1"); e("v_lshlrev_b32 v4, 4, v4"); e("v_lshl_add_u32 v4, v2, 8, v4")
sum_terms(sT + 2, (sT + 1, 32768), (sW, 1024))
e(f"v_add_u32 v{vWA}, s{sT+2}, v4"); e(f"v_xor_b32 v{vWA+1}, 0x8000, v{vWA}")
e("v_and_b32 v1, 15, v0"); e("v_lshrrev_b32 v2, 4, v0")
e("v_lshlrev_b32 v4, 1, v2"); e("v_xor_b32 v4, v4, v1"); e("v_lshlrev_b32 v4, 4, v4"); e(f"v_lshl_add_u32 v{vBX}, v2, 8, v4")
e(f"v_add_u32 v3, s{sT}, v1"); e("v_lshlrev_b32 v4, 15, v2"); e(f"v_lshl_add_u32 v{vTOK}, v3, 4, v4")
for d, p in ((SK, 66), (SV, 68)):
    e(f"s_lshl_b32 s{sT}, s{sG}, 19")
    e(f"s_add_u32 s{d}, s{p}, s{sT}"); e(f"s_addc_u32 s{d+1}, s{p+1}, 0"); e(f"s_mov_b32 s{d+2}, 0x80000"); e(f"s_mov_b32 s{d+3}, 0x20000")
for d, p, size in ((SX, 64, 0x200000), (SWQ, 70, 0x400000), (SW1, 76, 0x80000), (SWS, 88, 0x10000000),
                   (SWO, 72, 0x400000), (SW2, 78, 0x80000), (SW3, 80, 1835008), (SW4, 82, 1835008),
                   (SOUT, 84, 0x200000), (SDBG, 86, 256)):
    mk_srd(d, p, size)
sum_terms(sRING, (sW, 8192), RING); sum_terms(sW1K, (sW, 1024)); sum_terms(sW4K, (sW, 4096))
sum_terms(sT, (sG, 1024), (sW, 256)); dma_voff(vDWQ, 8192, True, f"s{sT}", 10)
sum_terms(sT, (sW, 65536), (sG, 128)); dma_voff(vDW1, 1024, True, f"s{sT}", 10); dma_voff(vDW2, 1024, False, f"s{sT}", 10)
for r, v in ((sLO, "0x00003f80"), (sHI, "0x3f800000"), (sONE2, "0x3f803f80"), (sC1, f2u(GK)), (sC2, f2u(GA_)),
             (sNL2E, f2u(-LOG2E / GA_)), (sSPIN, opt.get("spin0", 0)), (sMSK, "0xffff0000")):
    e(f"s_mov_b32 s{r}, {v}")
sum_terms(sF0, (sM, 4096), (sW, 256), WS_FL)
sum_terms(sFL, (sG, 4), (sF0, 1))
sum_terms(sF1, (sM, 4096), (sG, 128), WS_FL + 1024)
e(f"s_add_u32 s{sF2}, s{sF1}, 1024"); e(f"s_add_u32 s{sF3}, s{sF1}, 2048")
sum_terms(sSTC, (sM, 4096), (sW, 1024), WS_SS)
sum_terms(sSTP, (sG, 128), (sSTC, 1))
sum_terms(sPP, (sM, 1 << 19), (sW, 1 << 17), (sG, 1 << 13))
sum_terms(sPC, (sM, 1 << 19), (sG, 1 << 16), (sW, 1 << 11))
e(f"s_lshl_b32 s{sHO}, s{sG}, 18")
e(f"s_and_b32 s{sKS}, s{sG}, 6"); e(f"s_lshl_b32 s{sKS}, s{sKS}, 1"); e(f"s_lshr_b32 s{sT}, s{sW}, 1"); e(f"s_add_u32 s{sKS}, s{sKS}, s{sT}")
e(f"s_and_b32 s{sTB}, s{sG}, 1"); e(f"s_lshl_b32 s{sTB}, s{sTB}, 1"); e(f"s_and_b32 s{sT}, s{sW}, 1"); e(f"s_add_u32 s{sTB}, s{sTB}, s{sT}")
sum_terms(sSTF, (sM, 4096), (sTB, 1024), WS_SS)
sum_terms(sXF, (sM, 65536), (sTB, 16384), (sKS, 64))
e(f"s_and_b32 s{sT}, s{sG}, 1"); sum_terms(sW3B, (sG, 448), (sT, 64)); sum_terms(sRS, (sW, 2048), RING)
e("v_lshrrev_b32 v6, 2, v0"); e("v_and_b32 v7, 3, v0"); e("v_lshlrev_b32 v7, 3, v7"); e("v_lshl_add_u32 v7, v6, 7, v7")
e("v_bfe_u32 v6, v0, 3, 2")
for nb in range(4):
    e(f"v_xor_b32 v10, {nb}, v6"); e("v_lshl_add_u32 v10, v10, 5, v7")
    e(f"v_add_u32 v{vAS+nb}, {RING + 32768}, v10")
    if QPERM:
        e("v_lshrrev_b32 v8, 2, v0"); e("v_and_b32 v9, 6, v8"); e("v_and_b32 v10, 3, v0"); e("v_xor_b32 v9, v9, v10")
        e(f"v_xor_b32 v9, {4*(nb>>1)}, v9"); e("v_lshlrev_b32 v9, 4, v9"); e("v_lshl_add_u32 v10, v8, 7, v9")
        if nb & 1: e("v_add_u32 v10, 8, v10")
    e(f"v_add_u32 v{vAA+nb}, s{sRING}, v10"); e(f"v_add_u32 v{vAA2+nb}, 0x10000, v{vAA+nb}")
e("v_xor_b32 v9, v2, v1")
for s in range(4):
    e(f"v_xor_b32 v10, {4*s}, v9"); e("v_lshlrev_b32 v10, 4, v10"); e(f"v_lshl_add_u32 v{KA(s)}, v1, 8, v10")
e("v_lshrrev_b32 v9, 2, v0"); e("v_lshlrev_b32 v10, 8, v9"); e("v_and_b32 v11, 3, v0")
e("v_lshl_add_u32 v10, v11, 3, v10"); e(f"v_add_u32 v10, {VOFF}, v10"); e("v_and_b32 v9, 7, v9")
for db in range(8):
    e(f"v_xor_b32 v11, {db}, v9"); e(f"v_lshl_add_u32 v{VA(db)}, v11, 5, v10")
e(f"v_lshl_add_u32 v10, v2, 8, s{sW4K}")
for i in range(4):
    e(f"v_add_u32 v9, {4*i}, v2"); e("v_xor_b32 v11, v9, v1"); e(f"v_lshl_add_u32 v{KG(i)}, v11, 4, v10")
    if i < 2:
        e("v_lshlrev_b32 v9, 1, v9"); e("v_xor_b32 v11, v9, v1"); e(f"v_lshl_add_u32 v{VG(i)}, v11, 4, v10")
e(f"v_lshlrev_b32 v{G12+8}, 4, v1")
if WQ0 < 512: touch_off(vTQ, 512 - WQ0, 8, 8192, [(sG, 1024), WQ0 * 8192], 7)
SLIM = O_("slim", 1)
touch_off(vTK, 256 if SLIM else 512, 1, 128, [(sG, 0)], 7)


def late_touch():
    P.vm(f"buffer_load_dword a255, v{vTK}, {srd(SK)}, 0 offen"); P.vm(f"buffer_load_dword a255, v{vTK}, {srd(SV)}, 0 offen")
    if not SLIM:
        P.vm(f"buffer_load_dword a255, v{vT1}, {srd(SW2)}, 0 offen")
        code_touch()


LTG = O_("ltg", 4)
XQ = O_("xq", 3)


w1t = [Tile(SW1, vDW1, k * 4 * 65536, 1024, True, 1 + k, "w1") for k in range(2)]
w2t = [Tile(SW2, vDW2, k * 4 * 65536, 1024, False, 2, ("w2", k)) for k in range(2)]
qt = [Tile(SWQ, vDWQ, (i // 2) * 64 * 8192 + (i % 2) * 128, 8192, True, i % 3, ("wq", i), kp=i // 2, nh=i % 2)
      for i in range(16)] + ([] if SLIM else [None, w2t[0]])
mt = [Tile(SW3, vDW2, kp * 64 * 3584, 3584, False, (2 - i) % 3, ("w3", kp), kp=kp)
      for i, kp in enumerate((4, 5, 6, 7, 0, 1, 2, 3))]
mt += [Tile(SW4, vDW4, (i // 2) * 65536 + (i % 2) * 128, 1024, False, (2 - 8 - i) % 3, ("w4", i), kp=i // 2, nh=i % 2)
       for i in range(8)]
ot = [Tile(SWO, vDWO, ((kp & 1) * 256 + (kp >> 1) * 32) * 1024 + nh * 128, 1024, False, (nh * 8 + i + 2) % 3,
           ("wo", nh, kp), kp=kp, nh=nh, half=128)
      for nh in range(2) for i, kp in enumerate(range(8) if nh == 0 else (2, 3, 4, 0, 5, 1, 6, 7))]

a = G12


def quad_sum(regs):
    for qp in ("[1,0,3,2]", "[2,3,0,1]"):
        for r in regs: e(f"v_add_f32_dpp v{r}, v{r}, v{r} quad_perm:{qp} row_mask:0xf bank_mask:0xf")


def ln_stats(lo, hi):
    for i in range(lo, hi):
        c = lambda r: f"v{r}" if i >= 2 else 0
        e(f"v_dot2_f32_bf16 v{a + i % 2}, v{XR+i}, s{sONE2}, {c(a + i % 2)}", need=[("x", i // 4)])
        e(f"v_dot2_f32_bf16 v{a + 2 + i % 2}, v{XR+i}, v{XR+i}, {c(a + 2 + i % 2)}")


def unpack(k):
    for i in range(4 * k, 4 * k + 4):
        e(f"v_lshlrev_b32 v{2*i}, 16, v{XR+i}"); e(f"v_and_b32 v{2*i+1}, s{sMSK}, v{XR+i}")


def ln_rest():
    ln_stats(32, 64)
    e(f"v_add_f32 v{a}, v{a}, v{a+1}"); e(f"v_add_f32 v{a+2}, v{a+2}, v{a+3}")
    quad_sum([a, a + 2])
    e(f"v_mul_f32 v{a+4}, {f2u(-1/512)}, v{a}"); e(f"v_mul_f32 v{a+2}, {f2u(1/512)}, v{a+2}")
    e(f"v_fma_f32 v{a}, -v{a+4}, v{a+4}, v{a+2}"); e(f"v_max_f32 v{a}, 0, v{a}")
    e(f"v_add_f32 v{a+1}, {f2u(EPS)}, v{a}")
    e(f"v_rsq_f32 v{vRSTD}, v{a+1}")
    unpack(8)
    e(f"v_mul_f32 v{a+2}, {f2u(QSCALE)}, v{vRSTD}"); e(f"v_mul_f32 v{a+3}, v{a+4}, v{a+2}")
    for k in range(17):
        if k < 16:
            for i in range(4 * k, 4 * k + 4):
                e(f"v_pk_fma_f32 {vr(2*i,2)}, {vr(2*i,2)}, {vr(a+2,2)}, {vr(a+2,2)} op_sel:[0,0,1] op_sel_hi:[1,0,1]")
        if k: P.lds(f"ds_write_b128 v{vWA + (k-1)//8}, {vr(XR+4*k-4,4)} offset:{((k-1)%8)*4096}", "xw")
        if k % 2 == 0 and 9 + k // 2 < 16: unpack(9 + k // 2)
        if k < 16:
            for i in range(4 * k, 4 * k + 4): e(f"v_cvt_pk_bf16_f32 v{XR+i}, v{2*i}, v{2*i+1}")
    e(f"v_mul_f32 v{a}, v{a}, v{vRSTD}"); e(f"v_mul_f32 v{a}, v{a}, v{vRSTD}")
    e(f"v_add_f32 v{a}, {f2u(EPS)}, v{a}")
    e(f"v_rsq_f32 v{vSC1}, v{a}")
    e(f"v_mul_f32 v{vRSTD}, s{sC2}, v{vRSTD}")
    e(f"v_mul_f32 v{vSC1}, {f2u(GA_/QSCALE)}, v{vSC1}")
    e(f"v_mul_f32 v{vNMEAN}, v{a+4}, v{vRSTD}")
    e(f"v_add_u32 v{vWA}, s{sW1K}, v{vBX}")


if SSET == "ln": stamp(0)
P.put(hop(O_("hop00", 1)))
wq_rest = lambda: P.vm(f"buffer_load_dword a255, v{vTQ}, {srd(SWQ)}, 0 offen{ENT}") if WQ0 < 512 else None
if LTG == 4: XQ = 4
if XQ == 0: wq_rest()
if LTG == 0: late_touch()
for i in range(8):
    P.vm(f"buffer_load_dwordx4 {vr(XR+32+4*i,4)}, v{G12+13}, {srd(SX)}, 0 offen offset:{i*64}", ("x", 8 + i))
if XQ == 1: wq_rest()
if LTG == 1: late_touch()
if SSET == "ln": stamp(0)
P.put(hop(O_("hop0", 1)))
for k in range(8):
    ln_stats(4 * k, 4 * k + 4); unpack(k)
stamp(2)
if SSET == "ln":
    stamp(0); P.wait([("x", 15)]); stamp(0)
code = cap(ln_rest)
k = O_("lnat", 40)
P.puts(code[:k])
Q0LN = O_("q0ln", 1)
side = [x + y for t in w1t + qt[:Q0LN] for x, y in t.dma()]
if LTG == 4:
    j = O_("ltpos", 24)
    side[j:j] = [[it] for it in cap(wq_rest) + cap(late_touch)]
interleave(code[k:], side, O_("lnev", 9))
if SSET == "ln":
    stamp(0); P.wait(["w1"]); stamp(0)
for r in (vNMEAN, vRSTD, vSC1): P.lds(f"ds_bpermute_b32 v{r}, v{G12+8}, v{r}", "stat")
xb = [It(f"ds_read_b128 {ar(4*ks,4)}, v{vWA} offset:{ks*4096}", "l", ("xb", ks)) for ks in range(16)]
P.puts(xb[:8])
stamp(2)
P.wait(["xw", "w1"]); e("s_barrier")
stamp()
if SSET == "ln": stamp(0)

g1 = lambda h: shared_ops(range(8 * h, 8 * h + 8), 0, lambda nb: vr(G12 + 4 * nb, 4), True, lambda i: 160 + (i % 16) * 4,
                          lambda ks: ar(4 * ks, 4), lambda ks: [("xb", ks)], "g1", 32 * h)
ops = g1(0) + g1(1)
gaps = {g: [] for g in range(64)}
add1 = lambda g, it: gaps[g].append(it)
for i in range(6, 64): gaps[i - 6] += ops[i][1]
for k in range(8): add1(2 + 3 * k, xb[8 + k])
if not Q0LN:
    for k, grp in enumerate(qt[0].dma()): place(add1, 1 + 3 * k, grp, 3 * k - 2)
for k, it in enumerate((cap(wq_rest) if XQ == 3 else []) + (cap(late_touch) if LTG == 3 else [])): add1(O_("ltat", 0) + 2 * k, it)
add1(31, It("s_barrier", "s"))
for k, grp in enumerate(qt[1].dma()): place(add1, 34 + 3 * k, grp, 31 + 3 * k)
ACC = lambda nh, nb, tb: ((nh * 4 + tb) * 4 + nb) * 4
op = gemm(qt, 0, 16, ACC, [], (64, 96), breg=vBX, opening="get")
for k, it in enumerate(op[4:12]): add1(40 + 2 * k, it)
for k, it in enumerate(op[:4] + op[12:]): add1(58 + k // 2, it)
for i in range(6): P.puts(ops[i][1])
P.run_gaps([m for m, _ in ops], gaps, next_need=[op[0].tag, op[4].tag])
stamp()



def q_side():
    x, t = G12, XR
    P.put(gate(0, 8))
    for i in range(16): e(f"v_mul_f32 v{x+i}, v{x+i}, v{vSC1}", need=["stat"])
    for i in range(16): e(f"v_fma_f32 v{t+i}, -v{x+i}, v{x+i}, -s{sC1}")
    for i in range(16): e(f"v_mul_f32 v{t+i}, v{t+i}, v{x+i}")
    for i in range(16): e(f"v_exp_f32 v{t+i}, v{t+i}", k="v")
    for i in range(16): e(f"v_add_f32 v{t+i}, 1.0, v{t+i}")
    for i in range(16): e(f"v_rcp_f32 v{t+i}, v{t+i}", k="v")
    for i in range(16): e(f"v_mul_f32 v{t+i}, v{t+i}, v{x+i}")
    for i in range(8): e(f"v_cvt_pk_bf16_f32 v{t+16+i}, v{t+2*i}, v{t+2*i+1}")
    e(f"v_lshrrev_b32 v{t}, 5, v{vBA}"); e(f"v_and_b32 v{t+1}, 128, v{vLANE}"); e(f"v_lshl_add_u32 v{t}, v{t}, 10, v{t+1}")
    e(f"v_mov_b32 v{t+1}, 0"); e(f"v_mov_b32 v{t+2}, -1"); e(f"v_mov_b32 v{t+3}, -1"); e(f"v_lshrrev_b32 v{t+4}, 1, v{vBA}")
    for nb in range(4): e(f"v_add_u32 v{vAS+nb}, 32768, v{vAS+nb}")
    e(f"v_mov_b32 v{t+5}, s{sONE2}")
    if SPARSE:
        e(f"v_and_b32 v{t+6}, {0xf0 if PA else 0x30}, v{vBA}"); e(f"v_cmp_eq_u32 vcc, 0, v{t+6}"); e(f"v_cndmask_b32 v{t+5}, 0, v{t+5}, vcc")
    for i in range(4): e(f"v_accvgpr_write_b32 a{aONES+i}, v{t+5}")
    P.put(gate(0, O_("hgate", 13 * 32 + 23)))
    if LTG == 2: late_touch()
    for s in range(2):
        e(f"s_add_u32 s{sSF}, s{sHO}, {WS_H + s*PLANE}")
        P.vm(f"buffer_store_dwordx4 {vr(t+16+4*s,4)}, v{vTOK}, {srd(SWS)}, s{sSF} offen sc1", "hst")
    masked(255, f"buffer_store_dword v{t+1}, v{t}, {srd(SWS)}, s{sFL} offen sc1", "hst")
    masked(0xffff, f"buffer_store_dwordx2 {vr(t+2,2)}, v{t+4}, {srd(SWS)}, s{sSTP} offen sc1", "hst")


fill = cap(q_side)
pending = qt[2].dma()
gemm(qt, 0, 16, ACC, pending, (64, 96), breg=vBX, fill=fill, opening="done", extra={1: [It("s_barrier", "s")]}, dma0=2)
assert not fill and not pending
e("s_barrier")
stamp()


def q_pack():
    for tb in range(4):
        for s in range(4):
            b = ACC(s // 2, 2 * (s % 2), tb)
            for j in range(4): e(f"v_cvt_pk_bf16_f32 v{Q(tb,s)+j}, v{b+2*j}, v{b+2*j+1}")
        for sw in () if QPERM else ("v_permlane32_swap_b32", "v_permlane16_swap_b32"):
            for s in range(4):
                for j in range(2): e(f"{sw} v{Q(tb,s)+j}, v{Q(tb,s)+2+j}")


early = (("K", 0), ("K", 1)) if QPERM else (("K", 0), ("K", 1), ("V", 0))
interleave(cap(q_pack), [x + y for k in early for x, y in kv_dma(*k)], 8 if QPERM else 10)
P.wait(["hst", ("K", 0)]); e("s_barrier")
stamp()

for f in range(8): P.puts(frag_reads(-1, f))
gaps = {g: [] for g in range(64)}
for k, grp in enumerate(kv_dma("V", 0) if QPERM else kv_dma("K", 2)): place(add1, 2 + 4 * k, grp, -1)
P.run_gaps([m for m, _ in qk_mfmas(-1, zero=True)[:16]], gaps)
for f in range(8, 12): P.puts(frag_reads(-1, f))
for qb in range(4): e(f"v_max3_f32 v{NM(qb)}, v{S(0,0,qb)}, v{S(0,0,qb)+1}, v{S(0,0,qb)+2}")
for qb in range(4): e(f"v_max_f32 v{NM(qb)}, v{NM(qb)}, v{S(0,0,qb)+3}")
allreduce("v_max_f32", [NM(qb) for qb in range(4)], [NM(qb) + 1 for qb in range(4)])
for qb in range(4):
    for i in (1, 2, 3, 0): e(f"v_sub_f32 v{NM(qb)+i}, 0, v{NM(qb)}")


def first_half(shift, gates):
    for kb in range(2):
        P.put(gate(0, gates[kb]))
        for qb in range(4):
            b = S(0, kb, qb)
            if shift and not kb:
                for j in range(4): e(f"v_add_f32 v{b+j}, v{b+j}, v{NM(qb)}")
            for j in range(4): e(f"v_exp_f32 v{b+j}, v{b+j}")
        for qb in range(4):
            b = S(0, kb, qb)
            for j in range(2): e(f"v_cvt_pk_bf16_f32 v{PR(0,0,qb)+2*kb+j}, v{b+2*j}, v{b+2*j+1}")


gaps = {g: [] for g in range(64)}
for f in range(12, 16): gaps[16 + (f - 12)] += frag_reads(-1, f)
add1(30, It(None, "s", need=[("K", 1)])); add1(31, It("s_barrier", "s"))
for f in range(4):
    gaps[32 + f] += frag_reads(0, f); issued.add((0, f))
if QPERM:
    for k, grp in enumerate(kv_dma("K", 2) + kv_dma("V", 1) + kv_dma("K", 3)): place(add1, 2 + 4 * k, grp, 4 * k - 2)
else:
    for k, grp in enumerate(kv_dma("V", 1) + kv_dma("K", 3)): place(add1, 3 + 6 * k, grp, 6 * k - 3)
fill = cap(first_half, True, (0, 20))
P.run_gaps([m for m, _ in qk_mfmas(-1)[16:]], gaps, fill)
P.drain(fill)
e(f"v_mov_b32 v{T}, 1"); e(f"s_lshl_b32 s{sSF}, s{sM}, 3")
e(f"s_cmp_lg_u32 s{sW}, 0"); e("s_cbranch_scc1 L_noarr"); e("s_mov_b64 exec, 1")
e(f"buffer_atomic_add v{T}, off, {srd(SDBG)}, s{sSF} sc1"); e("s_mov_b64 exec, -1")
lab("L_noarr")
P.wait([("K", 2), ("V", 0)] + [("F", 0, f) for f in range(4)]); e("s_barrier")
stamp()

p_h = flag_poll("h", SDBG, 0, 8)
p_x = flag_poll("x1", SWS, f"s{sF0}", 1)
p_st = Poll("st", [f"buffer_load_dwordx2 {vr(T+2*j,2)}, v{vPA}, {srd(SWS)}, s{(sSTC, sSTF)[j//2]} offen offset:{128*(j%2)} sc1"
                   for j in range(4)],
            [f"v_max3_u32 v{T+8}, v{T}, v{T+1}, v{T+2}", f"v_max3_u32 v{T+8}, v{T+8}, v{T+3}, v{T+4}",
             f"v_max3_u32 v{T+8}, v{T+8}, v{T+5}, v{T+6}", f"v_max_u32 v{T+8}, v{T+8}, v{T+7}",
             f"v_cmp_eq_u32 vcc, -1, v{T+8}"])
p_ph, p_s0, p_s1 = (flag_poll(n, SWS, f"s{r}", 1) for n, r in (("ph", sF1), ("s0", sF2), ("s1", sF3)))


pieces = [(nh, tb, s) for nh in range(2) for tb in range(4) for s in range(2)]


def x_offset(d, bits=11):
    e(f"v_bfe_u32 v{d}, v{vTOK}, 4, {bits}"); e(f"v_lshlrev_b32 v{d}, 10, v{d}")
    e(f"v_bfe_u32 v{d+1}, v{vBA}, 8, 2"); e(f"v_lshl_add_u32 v{d}, v{d+1}, 3, v{d}")


def paced(t, g, step, fns):
    for k, fn in enumerate(fns):
        p = g + k * step
        P.put(gate(t + p // 136, p % 136)); fn()


def h_loads(half, t, g):
    e(f"v_bfe_u32 v{T}, v{vTOK}, 4, 11")
    for k, d in enumerate(((-1, 1), (-2, 2))[half]):
        e(f"v_add_u32 v{T+1}, {d}, v{T}"); e(f"v_cmp_gt_u32 vcc, 0x800, v{T+1}")
        e(f"v_add_u32 v{T+1}, {16*d}, v{vTOK}"); e(f"v_mov_b32 v{T+2+k}, 0x7f000000")
        e(f"v_cndmask_b32 v{T+2+k}, v{T+2+k}, v{T+1}, vcc")

    def one(ks):
        e(f"s_mov_b32 s{sSF}, {WS_H + ks*PLANE}")
        P.vm(f"buffer_load_dwordx4 {ar(HB(ks),4)}, v{T + 2 + (ks%8)//4}, {srd(SWS)}, s{sSF} offen sc1", ("h", ks))
    paced(t, g, O_("hstep", 18), [lambda ks=ks: one(ks) for ks in range(8 * half, 8 * half + 8)])


def side1():
    if SLIM:
        code_touch(); P.vm(f"buffer_load_dword a255, v{vT1}, {srd(SW2)}, 0 offen")
    P.put(gate(0, 40))
    x_offset(T + 5); e(f"s_lshl_b32 s{sSF}, s{sG}, 7")
    for nb in range(4):
        P.vm(f"buffer_load_dwordx2 {vr(T+6+2*nb,2)}, v{T+5}, {srd(SX)}, s{sSF} offen offset:{nb*32}", "xs")
    e(f"v_lshrrev_b32 v{T}, 4, v{vBA}"); e(f"v_min_u32 v{T}, 2, v{T}"); e(f"v_add_u32 v{T}, s{sM}, v{T}")
    e(f"v_add_u32 v{T}, -1, v{T}"); e(f"v_med3_i32 v{T}, v{T}, 0, 31"); e(f"v_lshlrev_b32 v{vPA}, 3, v{T}")
    if O_("kvt1", 0):
        touch_off(T, (T0 - 5) * 128, 1, 128, [(sG, 0), 5 * 16384], T + 1)
        P.vm(f"buffer_load_dword a255, v{T}, {srd(SK)}, 0 offen"); P.vm(f"buffer_load_dword a255, v{T}, {srd(SV)}, 0 offen")
    P.put(gate(2, 0))
    p_h.issue()
    for i in range(8):
        d = T + 2 * (i % 2)
        e(f"v_lshlrev_b32 v{d}, 16, v{T+6+i}", need=["xs"]); e(f"v_and_b32 v{d+1}, 0xffff0000, v{T+6+i}")
        for h in range(2): e(f"v_fma_f32 v{d+h}, v{d+h}, v{vRSTD}, v{vNMEAN}")
        for h in range(2): e(f"v_accvgpr_write_b32 a{aG2+2*i+h}, v{d+h}")
    P.put(gate(3, 0))
    p_h.check(); h_loads(0, 3, 30)
    P.put(gate(6, 0))
    h_loads(1, 6, 24)
    sum_terms(sT, (sW, 128), (sW3B, 1)); dma_voff(vDW2, 3584, False, f"s{sT}", T)
    P.put(gate(8, 164))
    m, q = vRSTD, vNMEAN
    for i in range(16): e(f"v_accvgpr_read_b32 v{T+i}, a{aG2+i}")
    e(f"v_add_f32 v{m}, v{T}, v{T+1}"); e(f"v_mul_f32 v{q}, v{T}, v{T}")
    for i in range(1, 16):
        e(f"v_fmac_f32 v{q}, v{T+i}, v{T+i}")
        if i > 1: e(f"v_add_f32 v{m}, v{m}, v{T+i}")
    allreduce("v_add_f32", [m, q], [T, T + 1], k="v")
    e(f"v_lshrrev_b32 v{T}, 1, v{vBA}")
    masked(0xffff, f"buffer_store_dwordx2 {vr(m,2)}, v{T}, {srd(SWS)}, s{sSTP} offen sc1")
    code_touch()
    e(f"v_and_b32 v{T}, 0xf0, v{vBA}"); e(f"v_lshrrev_b32 v{T}, 1, v{T}"); e(f"v_and_b32 v{T+1}, 0x300, v{vBA}")
    e(f"v_add_u32 v{vPA}, v{T}, v{T+1}")
    P.put(gate(11, 70))
    p_st.issue()
    P.put(gate(12, 60))
    p_st.check()
    u, r = T + 15, T + 16
    e(f"v_add_f32 v{u}, v{T}, v{T+2}"); e(f"v_add_f32 v{r}, v{T+1}, v{T+3}")
    e(f"v_add_f32 v{q}, v{T+4}, v{T+6}"); e(f"v_add_f32 v{m}, v{T+5}, v{T+7}")
    allreduce("v_add_f32", [u, r, q, m], [T, T + 1, T + 2, T + 3], k="v")
    for x in (u, r, q, m): e(f"v_mul_f32 v{x}, {f2u(1/512)}, v{x}")
    for x, y in ((u, r), (q, m)):
        e(f"v_fma_f32 v{y}, -v{x}, v{x}, v{y}"); e(f"v_max_f32 v{y}, 0, v{y}")
        e(f"v_mul_f32 v{y}, {f2u(GA_**-2)}, v{y}"); e(f"v_add_f32 v{y}, {f2u(EPS)}, v{y}")
    e(f"v_rsq_f32 v{r}, v{r}", k="v"); e(f"v_sqrt_f32 v{m}, v{m}", k="v")
    for i in range(15): e(f"v_accvgpr_read_b32 v{T+i}, a{aG2+i}")
    e(f"v_mul_f32 v{u}, v{u}, v{r}")
    for i in range(15): e(f"v_fma_f32 v{T+i}, v{T+i}, v{r}, -v{u}")
    e(f"v_cvt_pk_bf16_f32 v{T}, v{T}, v{T+1}"); e(f"v_cvt_pk_bf16_f32 v{T+1}, v{T+2}, v{T+3}")
    e(f"v_accvgpr_read_b32 v{T+3}, a{aG2+15}"); e(f"v_fma_f32 v{u}, v{T+3}, v{r}, -v{u}")
    for i in range(2, 8): e(f"v_cvt_pk_bf16_f32 v{T+i}, v{T+2*i}, v{T+2*i+1}")
    for s in range(2):
        e(f"s_add_u32 s{sSF}, s{sHO}, {WS_X1 + s*PLANE}")
        P.vm(f"buffer_store_dwordx4 {vr(T+4*s,4)}, v{vTOK}, {srd(SWS)}, s{sSF} offen sc1", "x1st")
    e(f"v_bfe_u32 v{vPA}, v{vBA}, 4, 3"); e(f"v_lshlrev_b32 v{vPA}, 2, v{vPA}")
    P.put(gate(15, 70))
    set_flags(0, 1, ["x1st"])
    touch_off(T, 512, 4, 3584, [(sW3B, 1)], T + 1)
    P.vm(f"buffer_load_dword a255, v{T}, {srd(SW3)}, 0 offen")
    touch_off(T, 2048, 1, 128, [(sW3B, 512)], T + 1)
    P.vm(f"buffer_load_dword a255, v{T}, {srd(SW4)}, 0 offen")
    sum_terms(sT, (sW, 256)); dma_voff(vDW4, 1024, False, f"s{sT}", T)
    sum_terms(sT, (sG, 1 << 19)); e(f"v_add_u32 v{vDWO}, s{sT}, v{vDW4}")
    sum_terms(sT, (sW3B, 512)); e(f"v_add_u32 v{vDW4}, s{sT}, v{vDW4}")
    e(f"s_and_b32 s{sT}, s{sG}, 1"); e(f"s_sub_u32 s{sT}, 4, s{sT}"); e(f"s_mul_i32 s{sT}, s{sT}, s{sW}")
    for nb in range(4):
        e(f"s_and_b32 s{sT+1}, s{sT}, 3"); e(f"s_lshl_b32 s{sT+1}, s{sT+1}, 5"); e(f"v_xor_b32 v{vAA2+nb}, s{sT+1}, v{vAS}")
        e(f"s_lshr_b32 s{sT+1}, s{sT}, 2"); e(f"s_lshl_b32 s{sT+1}, s{sT+1}, 13"); e(f"v_add_u32 v{vAA2+nb}, s{sT+1}, v{vAA2+nb}")
        e(f"v_add_u32 v{vAA+nb}, 0xffff0000, v{vAA2+nb}"); e(f"s_add_u32 s{sT}, s{sT}, 1")
    P.put(gate(17, 60))
    p_x.issue(); code_touch()
    P.put(gate(18, 60))
    p_x.check()
    if XREG:
        def one(ks):
            e(f"s_mov_b32 s{sSF}, {WS_X1 + ks*PLANE}")
            P.vm(f"buffer_load_dwordx4 {ar(aG2 + 4*(ks-4),4)}, v{vTOK}, {srd(SWS)}, s{sSF} offen sc1", "xnl")
        paced(18, 70, 14, [lambda ks=ks: one(ks) for ks in range(4, 8)])
    if O_("kvt", 1):
        touch_off(T + 8, (32 - T0) * 128, 1, 128, [(sG, 0), T0 * 16384], T + 9)
        P.vm(f"buffer_load_dword a255, v{T+8}, {srd(SK)}, 0 offen"); P.vm(f"buffer_load_dword a255, v{T+8}, {srd(SV)}, 0 offen")
    if XREG:
        e(f"v_add_u32 v{T+9}, s{sW1K}, v{vBA}")
        paced(T0 - 1, 34, 6, [lambda ks=ks: P.lds(f"ds_write_b128 v{T+9}, {ar(aG2 + 4*(ks-4),4)} offset:{ks*4096}", ("xn", 1), need=["xnl"])
                              for ks in range(4, 8)])


def x1n_dma(j):
    return [([It(f"s_add_u32 m0, s{sW1K}, {ks*4096}", "s"), It(f"s_mov_b32 s{sSO}, {WS_X1 + ks*PLANE}", "s")],
             [It(f"buffer_load_dwordx4 v{vTOK}, {srd(SWS)}, s{sSO} offen sc1 lds", "g", ("xn", j), need=["x1"])])
            for ks in range(4 * j, 4 * j + 4)]


def run_tiles(t0, t1, fill, over, more, endw, ins, must, xtra={}):
    end = T0 - 1 if t0 < T0 else 31
    for t in range(t0, t1):
        groups = (kv_dma("K", t + 4) if t + 4 <= end else []) + (kv_dma("V", t + 3) if t + 3 <= end else [])
        groups = over.get(t, groups) + more.get(t, [])
        attn_iter(t, groups, fill, endw.get(t, ()), ins=ins.get(t), extra=xtra.get(t))
        head = fill[0].at if fill else (99, 0)
        if O_("showfill", 0): print(t, len(fill), head, file=sys.stderr)
        if t in must: assert head and head[0] >= must[t], (t, head, len(fill))


g2 = lambda h: shared_ops(range(8 * h, 8 * h + 8), 8 * h, lambda nb: ar(aG2 + 4 * nb, 4), False, GA,
                          lambda ks: ar(HB(ks), 4), lambda ks: [("h", ks)], f"g2{h}")
op = gemm(mt, 0, 8, ACC, [], (160, 212), opening="get")
opx = {44 + 2 * k: [it] for k, it in enumerate(op[4:12])}
opx.update({62 + k: [it] for k, it in enumerate(op[:4] + op[12:])})
fill = cap(side1)
kv = lambda *a: [g for k in a for g in kv_dma(k[0], int(k[1:]))]
run_tiles(0, T0, fill, {0: kv("V2", "K4", "V3")},
          {1: w2t[0].dma() if SLIM else [], 6: w2t[1].dma(), 17: mt[0].dma(), 19: x1n_dma(2) + x1n_dma(3),
           20: x1n_dma(0) + mt[1].dma(), 21: [] if XREG else x1n_dma(1)},
          {3: [("w2", 0)], 7: [("w2", 1)], 20: [("xn", 3), mt[0].tag]}, {5: g2(0), 8: g2(1)}, {4: 6, 7: 8, 16: 17, 18: 19, 21: 99}, {T0 - 1: opx})
stamp()

class Extra:
    def __init__(self, groups): self.groups = groups
    def dma(self): return self.groups


def ph_pack(ks):
    for k in ks:
        pack(ACC, *pieces[k])
        for j in range(4): e(f"v_accvgpr_write_b32 a{PHA(k)+j}, v{ACC(pieces[k][0], 2*pieces[k][2], pieces[k][1])+j}")


def own_x1n(per):
    return {4 * per + 2: [It(f"s_lshl2_add_u32 s{sT}, s{sKS}, s{sTB}", "s")],
            4 * per + 6: [It(f"s_lshl_b32 s{sT}, s{sT}, 10", "s"), It(f"v_add_u32 v{T+9}, s{sT}, v{vBA}", "v")],
            7 * per + 3: [It(f"ds_read_b128 {ar(aXN,4)}, v{T+9}", "l", "xnr")],
            7 * per + 7: [It(f"ds_read_b128 {ar(aXN+4,4)}, v{T+9} offset:8192", "l", "xnr")]}


def mlp_tail(act, pending, nstep, bf):
    P.wait(["xnr"]); e("s_barrier")
    stamp()
    interleave(cap(act), [x + y for x, y in pending], 16)
    gemm_pre(mt, 8)
    P.wait(["hw"]); e("s_barrier")
    stamp()
    g = 32 * (nstep - 2)
    fill = [gate(0, g + 20)] + cap(ph_pack, (0, 2, 4, 6)) + [gate(0, g + 36)] + cap(ph_pack, (1, 3, 5, 7))
    pending = []
    gemm(mt[:8 + nstep] + [Extra(kv_dma("K", T0) + kv_dma("K", T0 + 1))], 8, nstep, ACC, pending, bf, fill=fill)
    assert not pending
    P.wait([("K", T0 + 1)]); e("s_barrier")
    stamp()
    for f in range(8): P.puts(frag_reads(T0 - 1, f))
    P.drain(fill)


def mlp_even():
    P.cmt("==== channel MLP, even groups: 256 hidden columns, one private weight tile per wave and step")
    extra = own_x1n(32)
    extra.update({1: [It("s_barrier", "s")], 2 * 32 + 26: [It(None, "s", need=[("xn", 0), ("xn", 1)])],
                  2 * 32 + 27: [It("s_barrier", "s")],
                  7 * 32 + 10: [It(f"s_lshl_b32 s{sT}, s{sW}, 13", "s"), It(f"v_add_u32 v{T+8}, s{sT}, v{vBA}", "v")]})
    pending = mt[2].dma()
    gemm(mt, 0, 8, ACC, pending, (160, 212), extra=extra, opening="done", dma0=2)

    def act():
        for tb in range(4):
            gelu(16 * tb, 16, 64 + 16 * tb, lambda i: 16 * tb + i, first=tb == 0)
            for s in range(2):
                P.lds(f"ds_write_b128 v{T+8}, {vr(16*tb + 4*s,4)} offset:{s*4096 + tb*1024}", "hw")
    mlp_tail(act, pending, 8, (160, 212))


def mlp_odd():
    P.cmt("==== channel MLP, odd groups: 192 hidden columns, three weight tiles per step shared by the four waves")
    AC3 = lambda nb, tb: (tb * 3 + nb) * 4
    af = lambda s, nb, ks: AF(2 * (nb + (nb == 2) * (s & 1)) + ks)
    bf = lambda s, ks, tb: ar((160, 212)[s & 1] + (ks * 4 + tb) * 4, 4)

    def a3(s, nb):
        t = mt[s]
        base, off = (vAA2, 0) if t.slot == 2 else (vAA, t.slot * 32768)
        return [It(f"ds_read_b64_tr_b16 {ar(af(s,nb,ks)+2*h,2)}, v{base+nb} offset:{off + ks*4096 + h*2048}", "l",
                   ("A", t.tag, nb)) for ks in range(2) for h in range(2)]

    def stage(s):
        t = mt[s]
        if s >= 8: return t.dma()
        return [(([It(f"s_add_u32 m0, s{sRS}, {t.slot*32768 + c*8192}", "s")] if i == 0 else []) +
                 [It(f"s_mov_b32 s{sSO}, {t.base + i*8*3584 + c*128 - i*1024}", "s")],
                 [It(f"buffer_load_dwordx4 v{vDW2}, {srd(SW3)}, s{sSO} offen offset:{i*1024} lds", "g", t.tag)])
                for c in range(3) for i in range(2)]

    REL, RAW, DS = O_("rel", 13), O_("raw", 13), O_("ds", 3)
    DG = {(REL + 1 + DS * k) % 24 for k in range(6)}
    ms, gaps = [], own_x1n(24)
    add = lambda g, it: gaps.setdefault(g, []).append(it)
    for s in range(8):
        t, g0 = mt[s], 24 * s
        for nb in range(3):
            for tb in range(4):
                for n, ks in enumerate(range(2) if not tb & 1 else range(1, -1, -1)):
                    d = vr(AC3(nb, tb), 4)
                    ms.append(It(f"{MF} {d}, {ar(af(s,nb,ks),4)}, {bf(s,ks,tb)}, {d if s or n else 0}", "m",
                                 need=[("A", t.tag, nb), ("B", mt[0].tag, s, tb)]))
        if s == 0:
            for k, it in enumerate(a3(0, 1)[2:] + a3(0, 2)): add((0, 0, 1, 1, 2, 2)[k], it)
        add(g0 + REL - 1, It(None, "s", need=[("A", t.tag, nb) for nb in range(3)]))
        add(g0 + REL, It("s_barrier", "s"))
        if s < 7:
            u = mt[s + 1]
            add(g0 + RAW - 1, It(None, "s", need=[u.tag] + ([("xn", 0), ("xn", 1)] if s == 2 else [])))
            if RAW != REL: add(g0 + RAW, It("s_barrier", "s"))
            c = [g for g in range(RAW + 1, 24) if g not in DG]
            rd = a3(s + 1, 0) + a3(s + 1, 2) + a3(s + 1, 1)
            for k, it in enumerate(rd): add(g0 + max(c[k * len(c) // 12], 16 if k >= 8 else 0), it)
            rd = [It(f"ds_read_b128 {bf(s+1,ks,tb)}, v{vBA} offset:{u.kp*8192 + ks*4096 + tb*1024}", "l",
                     ("B", mt[0].tag, s + 1, tb)) for tb in range(4) for ks in range(2)]
            c = [g for g in range(0 if s else 4, RAW + 1) if g not in DG]
            for k, it in enumerate(rd): add(g0 + c[k * len(c) // 8], it)
        add(g0 + 19, hop())
        if O_("jit2", 0): add(g0 + 4, jitter_item())
        if SSET == "odd": add(g0, stamp_item())
    if SSET == "odd": add(len(ms) - 1, stamp_item())
    add(0, It(f"s_mul_i32 s{sT}, s{sW}, {16*3584 - 128}", "s")); add(0, It(f"v_add_u32 v{vDW2}, s{sT}, v{vDW2}", "v"))
    add(1, It("s_barrier", "s"))
    pending, prev = stage(2), 1
    for g in range(3, len(ms)):
        if g % 24 == REL + 1: pending += stage(g // 24 + 3)
        if pending and g - prev >= 2 and (g % 24 in DG or len(pending) > 6 or g < REL):
            place(add, g, pending.pop(0), prev); prev = g
    HW = (T + 8, T + 9, T + 15)

    def addr():
        P.put(gate(0, 7 * 24 + 12))
        e(f"s_mul_i32 s{sT}, s{sW}, 3")
        for nb in range(3):
            e(f"s_lshr_b32 s{sT+1}, s{sT}, 1"); e(f"s_lshl_b32 s{sT+1}, s{sT+1}, 12"); e(f"s_and_b32 s{sT+2}, s{sT}, 1")
            e(f"s_lshl3_add_u32 s{sT+1}, s{sT+2}, s{sT+1}"); e(f"v_add_u32 v{HW[nb]}, s{sT+1}, v{vBA}"); e(f"s_add_u32 s{sT}, s{sT}, 1")
        e(f"s_sub_u32 s{sT}, s{sRING}, {RING + 65536}")
        for nb in range(4):
            e(f"v_add_u32 v{vAA+nb}, s{sT}, v{vAS+nb}"); e(f"v_add_u32 v{vAA2+nb}, 0x10000, v{vAA+nb}")
    fill = cap(addr)
    P.run_gaps(ms, gaps, fill, gmin=4)
    P.drain(fill)

    def act():
        for tb in range(4):
            gelu(12 * tb, 12, 64 + 12 * tb, lambda i: 12 * tb + i, first=tb == 0)
            for nb in range(3):
                P.lds(f"ds_write_b64 v{HW[nb]}, {vr(12*tb + 2*nb,2)} offset:{tb*1024}", "hw")
    mlp_tail(act, pending, 6, (212, 160))


e(f"s_bitcmp1_b32 s{sG}, 0"); e("s_cbranch_scc1 L_odd")
lab("L_even")
state = (list(P.lq), list(P.vq), set(P.used), set(P.ever), nstamp[0])
mlp_even()
after = (list(P.lq), list(P.vq), set(P.used), set(P.ever), nstamp[0])
main, P.L = P.L, []
P.lq, P.vq, P.used, P.ever, nstamp[0] = state
mlp_odd()
e("s_branch L_join")
assert (P.lq, P.vq) == after[:2] and (SSET or nstamp[0] == after[4]), (P.lq, P.vq, after[:2])
odd_text, P.L = P.L, main
P.lq, P.vq, P.used, P.ever, nstamp[0] = after
lab("L_join")
ph_pack(range(8, 10))
gaps = {g: [] for g in range(64)}
for f in range(8, 16): gaps[16 * (f // 4 - 1) + f % 4] += frag_reads(T0 - 1, f)
for f in range(4):
    gaps[48 + f] += frag_reads(T0, f); issued.add((T0, f))
for k, grp in enumerate(kv_dma("V", T0) + kv_dma("K", T0 + 2)): place(add1, 2 + 4 * k, grp, 4 * k - 2)
fill = cap(ph_pack, range(10, 14)) + cap(first_half, False, (20, 36)) + cap(ph_pack, range(14, 16))
P.run_gaps([m for m, _ in qk_mfmas(T0 - 1)], gaps, fill)
P.drain(fill)
P.wait([("K", T0 + 2), ("V", T0)] + [("F", T0, f) for f in range(4)]); e("s_barrier")
stamp()


XF = [244, 245, 246, 247, 248, 249, T + 10, T + 11]


def side2():
    paced(T0, 60, O_("sstep", 22), [lambda k=k: store_piece(ar(PHA(k), 4), WS_PH, *pieces[k], "phs") for k in range(16)])
    touch_off(T + 8, 4096, 1, 128, [(sG, 1 << 19)], T + 9)
    P.vm(f"buffer_load_dword a255, v{T+8}, {srd(SWO)}, 0 offen")
    code_touch()
    P.put(gate(26, 0)); set_flags(1, 2, ["phs"])
    x_offset(T + 8, 4)
    paced(26, 50, 20, [lambda i=i: P.vm(f"buffer_load_dwordx2 {vr(XF[2*i],2)}, v{T+8}, {srd(SX)}, s{sXF} offen "
                                        f"offset:{(i//2)*128 + (i%2)*32}", "xf") for i in range(4)])
    P.put(gate(27, 40)); p_ph.issue(); o_addr()
    P.put(gate(28, 20)); p_ph.check()
    paced(28, 30, O_("lstep", 22), [lambda k=k: load_piece(WS_PH, ar(PHA(k), 4), k // 2, k % 2, "phl") for k in range(16)])


def o_addr():
    if not PA:
        e(f"v_add_u32 v{T+8}, s{sW4K}, v{vBA}")
        return
    x, y = vDW2, vDW4
    for d, (ro, rb), (co, cb) in ((T + 8, (4, 4), (8, 2)), (T + 9, (6, 4), (4, 2))):
        e(f"v_bfe_u32 v{x}, v{vBA}, {ro}, {rb}"); e(f"v_bfe_u32 v{d}, v{vBA}, {co}, {cb}")
        e(f"v_and_b32 v{y}, 1, v{x}"); e(f"v_xor_b32 v{d}, v{d}, v{y}")
        e(f"v_lshrrev_b32 v{y}, 3, v{x}"); e(f"v_lshlrev_b32 v{y}, 1, v{y}"); e(f"v_xor_b32 v{d}, v{d}, v{y}")
        e(f"v_and_b32 v{y}, 6, v{x}"); e(f"v_lshl_add_u32 v{d}, v{y}, 1, v{d}")
        e(f"v_lshlrev_b32 v{d}, 3, v{d}"); e(f"v_lshl_add_u32 v{d}, v{x}, 7, v{d}")
    e(f"v_add_u32 v{T+8}, s{sW4K}, v{T+8}")


fill = cap(side2)
run_tiles(T0, 31, fill, {T0: kv(f"V{T0+1}", f"K{T0+3}", f"K{T0+4}", f"V{T0+2}"), T0 + 1: kv(f"K{T0+5}", f"V{T0+3}", f"V{T0+4}")}, {O_("wo0", 29): ot[0].dma(), 30: ot[1].dma()}, {}, {}, {30: 99})


vOW, vOR = 208, 212


def o_stage(k, st):
    s, qb = k // 4, k % 4
    b = 8 * (k % 8)
    if st == 0:
        for h in range(2):
            for j in range(4): e(f"v_accvgpr_read_b32 v{b+4*h+j}, a{O(2*s+h,qb)+j}")
    elif st == 1:
        for j in range(0, 8, 2):
            e(f"v_pk_mul_f32 {vr(b+j,2)}, {vr(b+j,2)}, {vr(NM(qb) + j%4,2)}" if PA else
              f"v_pk_mul_f32 {vr(b+j,2)}, {vr(b+j,2)}, {vr(NM(qb),2)} op_sel_hi:[1,0]")
    elif st == 2:
        for j in range(4): e(f"v_cvt_pk_bf16_f32 v{b+j}, v{b+2*j}, v{b+2*j+1}")
    elif PA:
        P.lds(f"ds_write2st64_b64 v{vOW+qb}, {vr(b,2)}, {vr(b+2,2)} offset0:{32*s} offset1:{32*s+4}", "ow")
    else:
        P.lds(f"ds_write_b128 v{T+8}, {vr(b,4)} offset:{s*16384 + qb*1024}", "ow")


LREGS = [4 * qb + j for qb in range(4) for j in range(4 if PA else 1)]


def row_sums():
    for i in LREGS: e(f"v_accvgpr_read_b32 v{vR+i}, a{LACC(0)+i}")


def row_inverses():
    for i in LREGS:
        e(f"v_rcp_f32_dpp v{vR+i}, v{vR+i} row_newbcast:0 row_mask:0xf bank_mask:0xf" if PA and SPARSE else f"v_rcp_f32 v{vR+i}, v{vR+i}")


def vote():
    v = 56
    P.put(gate(31, 36))
    e(f"s_lshl_b32 s{sT+1}, s{sW}, 2"); e(f"s_add_u32 s{sT+1}, s{sT+1}, {RING + 32768}")
    e(f"v_mov_b32 v{v+4}, {f2u(-1.0 if FORCE_REDO else 2.0**40)}"); e(f"v_mov_b32 v{v+5}, s{sT+1}"); e(f"v_mov_b32 v{v+6}, {RING + 32768}")
    P.put(gate(31, 42))
    row_sums()
    r = [vR + i for i in LREGS]
    e(f"v_maximum3_f32 v{v}, v{r[0]}, v{r[1]}, v{r[1]}")
    for i in range(2, len(r), 2): e(f"v_maximum3_f32 v{v}, v{v}, v{r[i]}, v{r[i+1]}")
    e(f"v_cmp_nle_f32 vcc, v{v}, v{v+4}")
    e(f"s_cmp_lg_u64 vcc, 0\n    s_cselect_b32 s{sT}, 1, 0", k="v")
    e(f"v_mov_b32 v{v}, s{sT}")
    P.lds(f"ds_write_b32 v{v+5}, v{v}", "vote")
    inv = P.rec; n0 = len(inv)
    row_inverses()
    k = n0 + min(6, len(LREGS))
    inv[k:k] = [It(None, "s", need=["vote"]), It("s_barrier", "s"), It(f"ds_read_b128 {vr(v,4)}, v{v+6}", "l", "votes")]
    e(f"v_or3_b32 v{v}, v{v}, v{v+1}, v{v+2}", need=["votes"]); e(f"v_or_b32 v{v}, v{v}, v{v+3}")
    e(f"v_readfirstlane_b32 s{sT}, v{v}")


fill = cap(vote)
attn_iter(31, [], fill)
P.drain(fill)
e(f"s_cmp_lg_u32 s{sT}, 0"); e("s_cbranch_scc1 L_redo")
lab("L_att_done")
stamp()

if PA:
    for qb in range(4):
        e(f"v_xor_b32 v{vOW+qb}, {32*qb}, v{T+8}"); e(f"v_xor_b32 v{vOR+qb}, {32*qb}, v{T+9}")
lag = [int(x) for x in opt.get("olag", "0,1,2,3").split(",")]
WG = O_("owg", 1)
for k in range(16 + lag[3] + WG):
    for st in range(3):
        if 0 <= k - lag[st] < 16: o_stage(k - lag[st], st)
    if (k - lag[3]) % WG == WG - 1:
        for j in range(k - lag[3] - WG + 1, k - lag[3] + 1):
            if 0 <= j < 16: o_stage(j, 3)
if SSET == "o": stamp(0)
gemm_pre(ot, 0)
P.wait(["ow"]); e("s_barrier")
if SSET == "o": stamp(0)
stamp()
OACC = lambda nh, nb, tb: 64 + ACC(nh, nb, tb)
PSR = lambda g, nh: nh * 32 + g * 4


def o_side():
    P.put(gate(0, 32 * 8 + 4))
    for p in pieces[:8]: pack(OACC, *p)
    for p, g in zip(pieces, [int(x) for x in opt.get("s0g", "440,448,456,464,472,480,488,496").split(",")]):
        P.put(gate(0, g))
        store_piece(vr(OACC(0, 2 * p[2], p[1]), 4), WS_PS, *p, "s0s")


fill = cap(o_side)
pending = ot[2].dma()
gemm(ot, 0, 16, OACC, pending, (0, 32, 64, 96, (vr, 0), (vr, 32))[:O_("obs", 6)], fill=fill, breg=vOR if PA else vBA, btr=PA)
P.drain(fill)
stamp()
for k, p in enumerate(pieces[8:]):
    pack(OACC, *p); store_piece(vr(OACC(1, 2 * p[2], p[1]), 4), WS_PS, *p, "s1s")
    if k == O_("f0k", 3): set_flags(2, 2, ["s0s"])
vY, vS, vG, vX = 64, 80, 96, 112
for i in range(8): e(f"v_accvgpr_read_b32 v{vG+i}, a{aXN+i}")
for i in range(8):
    e(f"v_lshlrev_b32 v{vY+2*i}, 16, v{vG+i}"); e(f"v_and_b32 v{vY+2*i+1}, 0xffff0000, v{vG+i}")
for i in range(16): e(f"v_fma_f32 v{vY+i}, v{vY+i}, v{vRSTD}, v{vNMEAN}")
for k in range(17):
    if k < 16:
        for j in range(4): e(f"v_accvgpr_read_b32 v{vG + 4*(k%2) + j}, a{PHA(k)+j}", need=[("phl", k // 2, k % 2)])
    if k: add_piece(vY + 8 * ((k - 1) % 2), vG + 4 * ((k - 1) % 2), False, ())
p_s0.issue()
for i in range(16): e(f"v_mul_f32 v{vG+i}, s{sNL2E}, v{vY+i}")
for i in range(16): e(f"v_exp_f32 v{vG+i}, v{vG+i}")
for i in range(16): e(f"v_fma_f32 v{vG+i}, v{vG+i}, s{sC2}, s{sC2}")
for i in range(16): e(f"v_rcp_f32 v{vG+i}, v{vG+i}")
for i in range(0, 16, 2): e(f"v_pk_mul_f32 {vr(vG+i,2)}, {vr(vG+i,2)}, {vr(vY+i,2)}")
for i in range(8):
    e(f"v_lshlrev_b32 v{vX+2*i}, 16, v{XF[i]}", need=["xf"]); e(f"v_and_b32 v{vX+2*i+1}, 0xffff0000, v{XF[i]}")
e(f"v_bfe_u32 v200, v{vTOK}, 4, 4"); e("v_lshlrev_b32 v200, 10, v200"); e(f"v_bfe_u32 v201, v{vBA}, 8, 2")
e("v_lshl_add_u32 v200, v201, 4, v200")
set_flags(3, 2, ["s1s"])
stamp(2)
p_s0.check()
for g in range(8): load_piece(WS_PS, vr(PSR(g, 0), 4), g, 0, "psl")
p_s1.issue()


def finish(nh):
    for g in range(8): add_piece(vS + 8 * nh, PSR(g, nh), g == 0, [("psl", g, nh)])
    for i in range(8 * nh, 8 * nh + 8, 2): e(f"v_pk_fma_f32 {vr(vG+i,2)}, {vr(vG+i,2)}, {vr(vS+i,2)}, {vr(vX+i,2)}")
    d = 204 + 4 * nh
    for i in range(4): e(f"v_cvt_pk_bf16_f32 v{d+i}, v{vG+8*nh+2*i}, v{vG+8*nh+2*i+1}")
    for sw in ("v_permlane32_swap_b32", "v_permlane16_swap_b32"):
        for j in range(2): e(f"{sw} v{d+j}, v{d+2+j}")
    P.vm(f"buffer_store_dwordx4 {vr(d,4)}, v200, {srd(SOUT)}, s{sXF} offen offset:{nh*128}")


p_s1.check()
stamp()
for g in range(8): load_piece(WS_PS, vr(PSR(g, 1), 4), g, 1, "psl")
finish(0)
finish(1)
if AMP:
    P.wait_all(); stamp()
    e(f"s_sub_u32 s{sST}, s{sST+2}, s{sST}")
    e(f"s_lshr_b32 s{sST}, s{sST}, 5" if AMP[3] else f"s_lshl_b32 s{sST}, s{sST}, {AMP[2]}")
    if "ampsel" in opt:
        e(f"s_lshr_b32 s{sT}, {opt['ampsel']}, s{sG}"); e(f"s_and_b32 s{sT}, s{sT}, 1"); e(f"s_mul_i32 s{sST}, s{sST}, s{sT}")
    e(f"s_memrealtime {sr(sST+2,2)}"); e("s_waitcnt lgkmcnt(0)")
    lab("L_amp")
    e(f"s_memrealtime {sr(sST+4,2)}"); e("s_waitcnt lgkmcnt(0)")
    e(f"s_sub_u32 s{sST+4}, s{sST+4}, s{sST+2}"); e(f"s_cmp_lt_u32 s{sST+4}, s{sST}"); e("s_cbranch_scc1 L_amp")
if STAMP:
    P.wait_all()
    stamp()
    e(f"s_lshl_b32 s{sT}, s2, 2"); e(f"s_add_u32 s{sT}, s{sT}, s{sW}"); e(f"s_lshl_b32 s{sT}, s{sT}, 8")
    e(f"s_add_u32 s{sT}, s{sT}, {WS_ST}"); e(f"v_lshrrev_b32 v0, 2, v{vBA}")
    P.vm(f"buffer_store_dword v{vSTAMP}, v0, {srd(SWS)}, s{sT} offen")
e("s_endpgm")

lab("L_side")
for p in slow_paths:
    lab(f"L_slow_{p.name}")
    e("s_sleep 1")
    for l in p.loads: e(l)
    e(f"s_add_u32 s{sSPIN}, s{sSPIN}, 1")
    e("s_waitcnt vmcnt(0)")
    for t in p.tests: e(t)
    e(f"s_cmp_gt_u32 s{sSPIN}, 0x200000"); e(f"s_cbranch_scc1 L_back_{p.name}")
    e(f"s_cbranch_vccnz L_slow_{p.name}")
    e(f"s_branch L_back_{p.name}")

lab("L_redo")
P.lq, P.vq = [], []
for s in range(4): e(f"v_add_u32 v{KA(s)}, 49152, v{KA(s)}")
for qb in range(4): e(f"v_mov_b32 v{NM(qb)}, 0xff800000")


def redo_tile(kinds, zero):
    P.used = set()
    P.wait_all(); e("s_barrier")
    for kind, lds in kinds: flush(kv_dma(kind, 0, lds=lds, so=f"s{sCNT}"))
    P.wait_all(); e("s_barrier")
    mf = [m for m, _ in qk_mfmas(2, zero=zero)]
    for half in range(2):
        for f in range(8 * half, 8 * half + 8): P.puts(frag_reads(2, f))
        P.puts(mf[32 * half:32 * half + 32])


e(f"s_mov_b32 s{sCNT}, 0")
lab("L_rmax")
redo_tile([("K", 98304)], True)
for qb in range(4):
    regs = [S(1, kb, qb) + i for kb in range(4) for i in range(4)]
    for i in range(0, 16, 2): e(f"v_max3_f32 v{NM(qb)}, v{NM(qb)}, v{regs[i]}, v{regs[i+1]}")
e(f"s_add_u32 s{sCNT}, s{sCNT}, 16384"); e(f"s_cmp_lt_u32 s{sCNT}, 0x80000"); e("s_cbranch_scc1 L_rmax")
allreduce("v_max_f32", [NM(qb) for qb in range(4)], [NM(qb) + 1 for qb in range(4)])
for qb in range(4):
    for i in (1, 2, 3, 0): e(f"v_sub_f32 v{NM(qb)+i}, 0, v{NM(qb)}")
for i in list(range(128)) + list(range(192, 208)): e(f"v_accvgpr_write_b32 a{i}, 0")
e(f"s_mov_b32 s{sCNT}, 0")
lab("L_rpv")
redo_tile([("K", 98304), ("V", 114688)], False)
for half in range(2):
    ex, post = sm_stream(1, half)
    P.puts(ex); P.puts([x for p in post for x in p])
mf = [m for m, _ in pv_mfmas(3)]
for half in range(2):
    for f in range(16 + 8 * half, 24 + 8 * half): P.puts(frag_reads(3, f))
    P.puts(mf[36 * half:36 * half + 36])
e(f"s_add_u32 s{sCNT}, s{sCNT}, 16384"); e(f"s_cmp_lt_u32 s{sCNT}, 0x80000"); e("s_cbranch_scc1 L_rpv")
row_sums(); row_inverses()
e("s_branch L_att_done")
if HOP: P.raw(".p2align 12")
lab("L_odd")
P.L += odd_text
lab("L_end")
e("s_endpgm")
P.L += ['.section .rodata,"a"', ".p2align 6", f".amdhsa_kernel {NAME}",
        "  .amdhsa_next_free_vgpr 512", "  .amdhsa_next_free_sgpr 102", "  .amdhsa_accum_offset 256",
        "  .amdhsa_group_segment_fixed_size 0", "  .amdhsa_kernarg_size 104", "  .amdhsa_user_sgpr_count 2",
        "  .amdhsa_user_sgpr_kernarg_segment_ptr 1", "  .amdhsa_system_sgpr_workgroup_id_x 1",
        "  .amdhsa_float_denorm_mode_32 3", ".end_amdhsa_kernel"]
lines = "\n".join(P.L).split("\n")
ABL = opt.get("abl", "")
if ABL:
    i0 = next(i for i, l in enumerate(lines) if "output projection" in l); i1 = lines.index("L_side:")
    j0 = max(i for i in range(i0, i1) if MF in lines[i])
    keep = []
    for i, l in enumerate(lines):
        if i0 < i < i1:
            if "p" in ABL and "s_cbranch_vccnz L_slow_s" in l: continue
            if "w" in ABL and i > j0 and "vmcnt" in l and "v_dot2" not in lines[i + 1]: continue
            if "l" in ABL and "buffer_load_dwordx4" in l and "sc1" in l: continue
            if "s" in ABL and "buffer_store_dwordx4" in l and "sc1" in l: continue
        keep.append(l)
    lines = keep
if opt.get("tcf"): lines = [l + " " + opt["tcf"] if "_load_dword a255" in l and "sc1" not in l and ", off" not in l else l for l in lines]
lines, added = fix_hazards(lines)
nhop = 0
if HOP: lines, nhop = add_page_hops(lines, sW)
lines = [l for l in lines if "@hop" not in l]
if O_("short", 1): lines = compress(lines)
text = "\n".join(lines) + "\n"
open(OUT_PATH, "w").write(text)
print(f"{OUT_PATH}: {len(lines)} lines, {len(text)} bytes, {added} wait states padded, {nstamp[0]} stamps, {nhop} hops", file=sys.stderr)
```

```python
import math
import struct
import sys
from asmlib5 import *

OUT_PATH = sys.argv[1]
opt = dict(a.split("=") for a in sys.argv[2:])
O_ = lambda k, d: int(opt.get(k, d))
STAMP = O_("stamp", 0)
SSET = opt.get("sset", "")
FORCE_REDO = O_("redo", 0)
QPERM = O_("qperm", 1)
PA = O_("pa", 1)
OSH = O_("osh", 0)
XREG = O_("xreg", 1)
SPARSE = O_("sparse", 1)
AHEAD = O_("ahead", 10)
AMP = [int(x) for x in opt["amp"].split(",")] if "amp" in opt else None

NAME = "recurrent_scan__gqa_block_cached__mixer_s_mlp__prompt_kernel"
MF = "v_mfma_f32_16x16x32_bf16"
f2u = lambda x: "0x%08x" % struct.unpack("<I", struct.pack("<f", x))[0]
LOG2E = math.log2(math.e)
QSCALE = LOG2E / math.sqrt(128.0)
GC1 = -2.0 * math.sqrt(2.0 / math.pi) * LOG2E
GC2 = GC1 * 0.044715
EPS = 1e-5
GA_ = (-GC2) ** (1.0 / 3.0)
GK = -GC1 / GA_

SX, SK, SV, SWS, SWQ, SWO, SW1, SW2, SW3, SW4, SOUT, SDBG = range(4, 52, 4)
sG, sM, sW = 52, 53, 54
sT = 55
sW1K, sW4K, sRING, sSO = 60, 61, 62, 63
sSF, sCNT, sSPIN, sHO, sPP, sPC, sFL, sF0, sF1, sSTP, sSTC = range(64, 75)
sLO, sHI, sONE2, sC1, sC2, sNL2E, sF2, sMSK, sKS, sF3, sTB, sSTF, sXF, sRS, sW3B = range(75, 90)
sST = 92
srd = lambda b: sr(b, 4)

WS_H, WS_X1, WS_PS, WS_PH, WS_FL, WS_SS, WS_ST = 0, 0x200000, 0x400000, 0x1400000, 0x2400000, 0x2500000, 0x4000000
PLANE = 131072

vBA, vTOK, vNMEAN, vRSTD, vLANE, vSTAMP, vCODE, vAS, vDW2 = 255, 254, 253, 252, 251, 250, 248, 244, 243
T = 226
vAA, vAA2 = T, T + 4
vBX, vWA, vSC1, vDWQ, vDW1 = T + 8, T + 9, T + 12, T + 14, T + 15
vPA, vPOLL, vONE, vDW4, vDWO = T + 16, T + 15, T + 14, T + 13, T + 12
vTC = T + 10
XR = 128
G12 = 192
S = lambda buf, kb, qb: buf * 64 + ((kb >> 1) * 4 + qb) * 8 + (kb & 1) * 4
PR = lambda buf, ks, qb: buf * 64 + (ks * 4 + qb) * 8
Q = lambda qb, s: 128 + (qb * 4 + s) * 4
NM = lambda qb: 192 + 4 * qb
KA = lambda s: 208 + s
VA = lambda db: 212 + db
KG = lambda i: 220 + i
VG = lambda i: 224 + (i & 1)
vR = NM(0)
O = lambda db, qb: (db * 4 + qb) * 4
FR = lambda f: 128 + (f % 8) * 4
HB = lambda ks: 160 + (ks % 8) * 4
LACC = lambda qb: 192 + 4 * qb
aONES, aG2, aXN = 208, 212, 244
GA = lambda i: 228 + (i % 4) * 4
AF = lambda f: 128 + (f % 8) * 4
PHA = lambda k: (160, 212)[k // 8] + (k % 8) * 4
T0 = 22
RING, VOFF = 65536, 65536

P = Prog()
e, lab, cap = P.e, P.lab, P.capture
slow_paths = []
nstamp = [0]


JIT = O_("jitter", 0)
njit = [0]


def jitter():
    i = njit[0]; njit[0] += 1
    e(f"s_memrealtime {sr(96,2)}"); P.wait_all(vm=False)
    e(f"s_lshr_b32 s96, s96, 14"); e(f"s_lshl_b32 s97, s2, 2" if JIT & 1 else "s_mov_b32 s97, s2")
    if JIT & 1: e(f"s_add_u32 s97, s97, s{sW}")
    e(f"s_add_u32 s96, s96, s97"); e(f"s_add_u32 s96, s96, {i * 7919 + 13}"); e("s_mul_i32 s96, s96, 0x9e3779b1")
    e("s_mov_b32 s98, s96")
    e(f"s_lshr_b32 s96, s96, {32 - (JIT >> 1)}")
    lab(f"L_jit{i}")
    e("s_sleep 8"); e("s_sub_u32 s96, s96, 1"); e(f"s_cbranch_scc0 L_jit{i}")


def jitter_item():
    i = njit[0]; njit[0] += 1
    return It(f"s_mul_i32 s98, s98, 0x41c64e6d\n    s_add_u32 s98, s98, 12345\n    s_lshr_b32 s99, s98, 27\n"
              f"    s_sub_u32 s99, s99, 24\n    s_cbranch_scc1 L_jx{i}\nL_jw{i}:\n    s_sleep {O_('jit2', 0)}\n"
              f"    s_sub_u32 s99, s99, 1\n    s_cbranch_scc0 L_jw{i}\nL_jx{i}:", "s")


def stamp(level=1):
    if JIT and level == 1: jitter()
    if AMP and level == 1:
        i = nstamp[0]; nstamp[0] += 1
        if i in AMP[:2]:
            e(f"{'s_memtime' if AMP[3] else 's_memrealtime'} {sr(sST + 2*AMP.index(i),2)}"); P.wait_all(vm=False)
        return
    if STAMP < level or (SSET and level != 0):
        return
    i = nstamp[0]; nstamp[0] += 1
    e(f"s_memtime {sr(sST,2)}"); e(f"s_memrealtime {sr(sST+2,2)}")
    P.wait_all(vm=False)
    e(f"v_writelane_b32 v{vSTAMP}, s{sST}, {2*i}")
    e(f"v_writelane_b32 v{vSTAMP}, s{sST+2}, {2*i+1}")


def stamp_item():
    i = nstamp[0]; nstamp[0] += 1
    return It(f"s_memtime {sr(sST,2)}\n    s_memrealtime {sr(sST+2,2)}\n    s_waitcnt lgkmcnt(0)\n"
              f"    v_writelane_b32 v{vSTAMP}, s{sST}, {2*i}\n    v_writelane_b32 v{vSTAMP}, s{sST+2}, {2*i+1}", "s")


def mk_srd(d, p, size):
    e(f"s_mov_b32 s{d}, s{p}"); e(f"s_mov_b32 s{d+1}, s{p+1}"); e(f"s_mov_b32 s{d+2}, {size}"); e(f"s_mov_b32 s{d+3}, 0x20000")


def sum_terms(dst, *terms):
    first = True
    for t in terms:
        if isinstance(t, int):
            e(f"s_add_u32 s{dst}, s{dst}, {t}"); continue
        r, k = t
        if k == 0:
            e(f"s_mov_b32 s{dst}, 0"); first = False; continue
        d = dst if first else sT + 4
        e(f"s_lshl_b32 s{d}, s{r}, {k.bit_length()-1}" if k & (k - 1) == 0 else f"s_mul_i32 s{d}, s{r}, {k}")
        if not first: e(f"s_add_u32 s{dst}, s{dst}, s{d}")
        first = False


def allreduce(op, regs, tmps, k=None):
    for sw in ("v_permlane32_swap_b32", "v_permlane16_swap_b32"):
        for r, t in zip(regs, tmps): e(f"v_mov_b32 v{t}, v{r}")
        for r, t in zip(regs, tmps): e(f"{sw} v{r}, v{t}", k=k)
        for r, t in zip(regs, tmps): e(f"{op} v{r}, v{r}, v{t}")


def masked(mask, txt, tag=None, lds=False):
    (P.lds if lds else P.vm)(f"s_mov_b64 exec, {mask}\n    {txt}\n    s_mov_b64 exec, -1", tag)


class Poll:
    def __init__(self, name, loads, tests):
        self.name, self.loads, self.tests = name, loads, tests
        slow_paths.append(self)

    def issue(self):
        for l in self.loads: P.vm(l, self.name)

    def check(self):
        for i, t in enumerate(self.tests): e(t, need=[self.name] if i == 0 else ())
        e(f"s_cbranch_vccnz L_slow_{self.name}\nL_back_{self.name}:", k="v")


def flag_poll(name, s_rd, soff, target):
    return Poll(name, [f"buffer_load_dword v{vPOLL}, v{vPA}, {srd(s_rd)}, {soff} offen sc1"],
                [f"v_cmp_gt_u32 vcc, {target}, v{vPOLL}"])


def set_flags(stage, nlanes, need, val=1):
    e(f"v_mov_b32 v{vONE}, {val}")
    e(f"s_add_u32 s{sSF}, s{sFL}, {stage * 1024}")
    P.wait(need)
    masked((1 << nlanes) - 1, f"buffer_store_dword v{vONE}, v{vLANE}, {srd(SWS)}, s{sSF} offen sc1")


def interleave(code, side, every):
    side = list(side)
    for k, it in enumerate(code):
        if side and k % every == 0: P.puts(side.pop(0))
        P.put(it)
    for x in side: P.puts(x)


def gelu(base, n, tmp, dst, first):
    pairs = range(0, n, 2)
    if "g" in opt.get("cut", ""):
        for i in pairs: e(f"v_cvt_pk_bf16_f32 v{dst(i//2)}, v{base+i}, v{base+i+1}")
        return
    if first: e(f"v_mov_b32 v{vTC}, s{sC1}")
    for i in pairs: e(f"v_pk_fma_f32 {vr(tmp+i,2)}, {vr(base+i,2)}, {vr(base+i,2)}, {vr(vTC,2)} op_sel_hi:[1,1,0]")
    for i in pairs: e(f"v_pk_mul_f32 {vr(tmp+i,2)}, {vr(tmp+i,2)}, {vr(base+i,2)} neg_lo:[0,1] neg_hi:[0,1]")
    for i in range(n): e(f"v_exp_f32 v{tmp+i}, v{tmp+i}")
    for i in pairs: e(f"v_pk_add_f32 {vr(tmp+i,2)}, {vr(tmp+i,2)}, 1.0 op_sel_hi:[1,0]")
    for i in range(n): e(f"v_rcp_f32 v{tmp+i}, v{tmp+i}")
    for i in pairs: e(f"v_pk_mul_f32 {vr(tmp+i,2)}, {vr(tmp+i,2)}, {vr(base+i,2)}")
    for i in pairs: e(f"v_cvt_pk_bf16_f32 v{dst(i//2)}, v{tmp+i}, v{tmp+i+1}")


class Tile:
    def __init__(self, s_rd, voff, base, stride, perm, slot, tag, rows=64, kp=0, nh=0, half=32):
        self.__dict__.update(locals())

    def dma(self):
        out = []
        for i in range(self.rows // 8):
            row = ((0, 16, 4, 20)[i & 3] if self.perm else 8 * (i & 3)) + self.half * (i >> 2)
            so = self.base + row * self.stride - (i & 3) * 1024
            pre = [It(f"s_add_u32 m0, s{sRING}, {self.slot * 32768 + (i >> 2) * 4096}", "s")] if i % 4 == 0 else []
            out.append((pre + [It(f"s_mov_b32 s{sSO}, {so}", "s")],
                        [It(f"buffer_load_dwordx4 v{self.voff}, {srd(self.s_rd)}, s{sSO} offen "
                            f"offset:{(i & 3) * 1024} lds", "g", self.tag)]))
        return out


def place(add, g, grp, prev, avoid=()):
    pre, its = grp
    c = [h for h in range(max(prev + 1, 0), g) if h not in avoid][-len(pre):] if pre else []
    for k, it in enumerate(pre): add(c[k] if len(c) == len(pre) else max(g - len(pre) + k, prev + 1, 0), it)
    for it in its: add(g, it)


def dma_voff(dst, stride, perm, s_base, a):
    b = a + 1
    e(f"v_lshrrev_b32 v{a}, 10, v{vLANE}")
    e(f"v_bfe_u32 v{b}, v{vBA}, 4, 3")
    e(f"v_and_b32 v{dst}, 6, v{a}"); e(f"v_xor_b32 v{b}, v{b}, v{dst}")
    if perm:
        e(f"v_and_b32 v{dst}, 4, v{a}"); e(f"v_add_u32 v{a}, v{a}, v{dst}")
    e(f"v_mul_u32_u24 v{a}, {stride}, v{a}")
    e(f"v_lshl_add_u32 v{a}, v{b}, 4, v{a}")
    e(f"v_add_u32 v{dst}, {s_base}, v{a}")


def a_reads(t, ti, nb):
    base = (vAA2 if t.slot == 2 else vAA) + nb
    off = (t.slot % 2) * 32768 if t.slot < 2 else 0
    return [It(f"ds_read_b64_tr_b16 {ar(AF(nb*2+ks) + 2*h, 2)}, v{base} offset:{off + ks*4096 + h*2048}", "l",
               ("A", t.tag, nb), need=[t.tag]) for ks in range(t.rows // 32) for h in range(2)]


def gemm_pre(tiles, i0):
    P.puts(a_reads(tiles[i0], i0, 0))


def gemm(tiles, i0, n, acc, pending, bf, breg=vBA, extra=None, fill=None, over=0, opening=None, dma0=0, btr=False):
    bf = [x if isinstance(x, tuple) else (ar, x) for x in bf]
    BF = lambda s, ks, tb, o=0, w=4: bf[grp[s] % len(bf)][0](bf[grp[s] % len(bf)][1] + (ks * 4 + tb) * 4 + o, w)
    ms, gaps, start, grp, held, fresh = [], {}, [], [], {}, []
    seen = set()
    for s, ti in enumerate(range(i0, i0 + n)):
        t = tiles[ti]
        fresh.append(t.kp not in held)
        if fresh[s]:
            k = max(grp, default=-1) + 1
            while s and k % len(bf) == grp[s - 1] % len(bf): k += 1
            held = {kp: g for kp, g in held.items() if g % len(bf) != k % len(bf)}
            held[t.kp] = k
        grp.append(held[t.kp])
        start.append(len(ms))
        nks = t.rows // 32
        for nb in range(4):
            for tb in range(4):
                for ks in (range(nks) if not tb & 1 else range(nks - 1, -1, -1)):
                    d = vr(acc(t.nh, nb, tb), 4)
                    c = d if (t.nh, nb, tb) in seen else "0"
                    seen.add((t.nh, nb, tb))
                    ms.append(It(f"{MF} {d}, {ar(AF(nb*2+ks),4)}, {BF(s,ks,tb)}, {c}", "m",
                                 need=[("A", t.tag, nb), ("B", tiles[i0].tag, grp[s], tb)]))
    start.append(len(ms))

    def b_reads(s):
        t = tiles[i0 + s]
        if btr:
            return [It(f"ds_read_b64_tr_b16 {BF(s,ks,tb,2*h,2)}, v{breg+tb} offset:{t.kp*8192 + ks*4096 + h*2048}",
                       "l", ("B", tiles[i0].tag, grp[s], tb)) for tb in range(4) for ks in range(2) for h in range(2)]
        return [It(f"ds_read_b128 {BF(s,ks,tb)}, v{breg} offset:{t.kp*8192 + ks*4096 + tb*1024}", "l",
                   ("B", tiles[i0].tag, grp[s], tb)) for tb in range(4) for ks in range(t.rows // 32)]

    add = lambda g, it: gaps.setdefault(g, []).append(it)
    pre = b_reads(0)
    release = {}
    for s in range(n):
        ti = i0 + s; t = tiles[ti]
        per = (start[s + 1] - start[s]) // 4
        for nb in range(4):
            if s == 0 and nb == 0: continue
            rd = a_reads(t, ti, nb)
            for k, it in enumerate(rd):
                g = start[s] + per * nb - 6 - 2 * (len(rd) - 1 - k)
                if g < 0: pre.append(it)
                else: add(g, it)
        if ti + 3 < len(tiles) and tiles[ti + 3]: release[start[s] + 3 * per] = tiles[ti + 3]
        if s + 1 < n and fresh[s + 1]:
            s0 = s - 1 if s and not fresh[s] and grp[s - 1] % len(bf) != grp[s + 1] % len(bf) else s
            rd = b_reads(s + 1)
            cand = [g for g in range(start[s0], start[s + 1] - 6) if g % 4 == 3]
            if btr: cand = sorted(cand * 2)
            if len(cand) < len(rd): cand = sorted(cand + [start[s0] + 2 * k for k in range(len(rd) - len(cand))])
            step = len(cand) / len(rd)
            for k, it in enumerate(rd): add(cand[int(k * step)], it)
    if opening == "get": return a_reads(tiles[i0], i0, 0) + pre
    if opening == "done": pre = []
    prev = dma0 - 1
    for g in range(dma0, len(ms)):
        if g in release: pending += release[g].dma()
        nxt = min([r for r in release if r > g], default=len(ms) + 24)
        if pending and (g % 4 == 1 or (g % 4 == 3 and len(pending) > (nxt - g + 1) // 4)):
            place(add, g, pending.pop(0), prev); prev = g
    for g, its in (extra or {}).items():
        for it in its: add(g, it)
    for g in start[:-1]: add(g + 10, hop())
    if O_("jit2", 0):
        for g in start[:-1]: add(g + 4, jitter_item())
    if SSET == {id(qt): "q", id(ot): "o"}.get(id(tiles), "mlp"):
        for g in start[:-1] + [len(ms) - 1]: add(g, stamp_item())
    P.puts(pre)
    P.run_gaps(ms, gaps, fill, gmin=4, over=over)


def flush(pending):
    while pending:
        a, b = pending.pop(0)
        P.puts(a + b)


def shared_ops(kss, koff, acc, zero, afr, breg, bneed, name, i0=0):
    out = []
    for nb in range(4):
        for ks in kss:
            i = i0 + len(out)
            d = acc(nb)
            out.append((It(f"{MF} {d}, {ar(afr(i),4)}, {breg(ks)}, {0 if zero and not ks else d}", "m",
                           need=[(name, i)] + list(bneed(ks))),
                        [It(f"ds_read_b64_tr_b16 {ar(afr(i)+2*h,2)}, v{vAS+nb} offset:{(ks-koff)*4096 + h*2048}", "l",
                            (name, i)) for h in range(2)]))
    return out


def pack(acc, nh, tb, s, second=False, guard=False):
    a, b = acc(nh, 2 * s, tb), acc(nh, 2 * s + 1, tb)
    order = list(enumerate((a, a + 2, b, b + 2)))
    d = b if second else a
    for j, r in reversed(order) if second else order: e(f"v_cvt_pk_bf16_f32 v{d+j}, v{r}, v{r+1}")
    if guard:
        for j in range(4): e(f"v_min_u32 v{d+j}, -2, v{d+j}")


def store_piece(src, ws_base, nh, tb, s, tag):
    e(f"s_add_u32 s{sSF}, s{sPP}, {ws_base + (tb >> 1)*65536 + ((tb & 1) + 2*s)*2048}")
    P.vm(f"buffer_store_dwordx4 {src}, v{vBA}, {srd(SWS)}, s{sSF} offen offset:{nh*1024} sc1", tag)


def load_piece(ws_base, dst, g, nh, tag):
    e(f"s_add_u32 s{sSF}, s{sPC}, {ws_base + g*8192}")
    P.vm(f"buffer_load_dwordx4 {dst}, v{vBA}, {srd(SWS)}, s{sSF} offen offset:{nh*1024} sc1", (tag, g, nh))


def add_piece(dst, reg, first, need):
    for j in range(4):
        for h, sel in enumerate((sLO, sHI)):
            d = dst + 2 * j + h
            e(f"v_dot2_f32_bf16 v{d}, v{reg+j}, s{sel}, {0 if first else 'v%d' % d}", need=need)


def frag_reads(t, f, tail=False):
    if f < 16:
        kb, s = f // 4, f % 4
        off = ((t + 1) % 4) * 16384 + kb * 4096
        return [It(f"ds_read_b128 {ar(FR(f),4)}, v{KA(s)} offset:{off}", "l", ("F", t, f))]
    db, ks = ((f - 16) // 2, (f - 16) % 2) if not tail else ((f - 16) % 8, (f - 16) // 8)
    off = (t % 4) * 16384 + ks * 8192
    return [It(f"ds_read_b64_tr_b16 {ar(FR(f)+2*h,2)}, v{VA(db)} offset:{off + 4096*h}", "l", ("F", t, f))
            for h in range(2)]


def qk_mfmas(t, zero=False):
    out = []
    for kb in range(4):
        for qb in range(4):
            for n, s in enumerate(range(4) if not qb & 1 else range(3, -1, -1)):
                d = vr(S((t + 1) & 1, kb, qb), 4)
                c = d if n else ("0" if zero else vr(NM(qb), 4))
                out.append((It(f"{MF} {d}, {ar(FR(kb*4+s),4)}, {vr(Q(qb,s),4)}, {c}", "m",
                               need=[("F", t, kb * 4 + k) for k in range(4)]), kb * 4 + s))
    return out


def pv_one(t, db, qb, ks, f, need, zero=False):
    o = ar(O(db, qb), 4)
    ab = [ar(FR(f), 4), vr(PR(t & 1, ks, qb), 4)][::-1 if PA else 1]
    return (It(f"{MF} {o}, {ab[0]}, {ab[1]}, {0 if zero else o}", "m", need=need), f)


def sum_one(t, qb, ks, zero=False):
    l = ar(LACC(qb), 4)
    ab = [ar(aONES, 4), vr(PR(t & 1, ks, qb), 4)][::-1 if PA else 1]
    return (It(f"{MF} {l}, {ab[0]}, {ab[1]}, {0 if zero else l}", "m"), None)


def pv_mfmas(t, zero=False):
    out = []
    for db in range(8):
        need = [("F", t, 16 + db * 2), ("F", t, 17 + db * 2)]
        for qb in range(4):
            for n, ks in enumerate(range(2) if not qb & 1 else range(1, -1, -1)):
                out.append(pv_one(t, db, qb, ks, 16 + db * 2 + ks, need, zero and not n))
        if db % 2 == 1 and not ("s" in opt.get("cut", "") and t):
            out += [sum_one(t, db // 2, ks, zero and not ks) for ks in range(2)]
    return out


def pv_mfmas_tail(t):
    out = []
    for ks in range(2):
        out += [sum_one(t, qb, ks) for qb in range(4)]
        for db in range(8):
            f = 16 + ks * 8 + db
            out += [pv_one(t, db, qb, ks, f, [("F", t, f)]) for qb in range(4)]
    return out


def sm_stream(buf, half):
    ex, post = [], []
    for qb in range(4):
        b = PR(buf, half, qb)
        for j in range(8):
            ex.append(It(f"v_exp_f32 v{b+j}, v{b+j}", "x"))
            post.append([It(f"v_cvt_pk_bf16_f32 v{b + j//2}, v{b+j-1}, v{b+j}", "v")] if j & 1 else [])
    return ex, post


def kv_dma(kind, tile, lds=None, so=None):
    reg, s_rd, base = (KG, SK, 0) if kind == "K" else (VG, SV, VOFF)
    lds = base + (tile % 4) * 16384 if lds is None else lds
    out = []
    for i in range(4):
        pre = [It(f"s_add_u32 m0, s{sW4K}, {lds}", "s"),
               It(f"s_mov_b32 s{sSO}, {tile * 16384 if so is None else so}", "s")] if i == 0 else []
        out.append((pre, [It(f"buffer_load_dwordx4 v{reg(i)}, {srd(s_rd)}, s{sSO} offen offset:{i*1024} lds",
                             "g", (kind, tile))]))
    return out


issued = set()
CLUSTER = O_("cluster", 1)
EARLY = O_("early", 0)
WINS = [int(x) for x in opt.get("wins", "2,18,34,50,73,91,109,127").split(",")]
WPAT = [int(x) for x in opt.get("wpat", "1").split(",")]


def attn_iter(t, groups, fill, endwait=(), extra=None, ins=None):
    end = T0 - 1 if t < T0 else 31
    last = t == end
    mf = pv_mfmas_tail(t) if last else qk_mfmas(t) + pv_mfmas(t, zero=t == 0)
    ms = [m for m, _ in mf]
    n = len(ms)
    first_use, last_use = {}, {}
    for i, (_, f) in enumerate(mf):
        if f is not None:
            first_use.setdefault(f, i); last_use[f] = i
    reads = []
    for f in sorted(first_use):
        if (t, f) in issued: continue
        reads += [(first_use[f] - AHEAD, last_use.get(f - 8, -1), it) for it in frag_reads(t, f, last)]
    nxt_need = ()
    if t < end - 1:
        for f in range(4):
            reads += [(n + f - AHEAD, last_use[24 + f], it) for it in frag_reads(t + 1, f)]
            issued.add((t + 1, f))
        nxt_need = [("F", t + 1, f) for f in range(4)]
    elif t == end - 1:
        for f in range(16, 18):
            reads += [(n + 4 * (f - 15) - AHEAD, last_use[8 + f], it) for it in frag_reads(end, f, True)]
            issued.add((end, f))
    gaps = {}
    add = lambda g, it: gaps.setdefault(g, []).append(it)
    exg = {}
    wins = [] if last or not CLUSTER else WINS[:min(len(WINS), -(-len(groups) // len(WPAT)))]
    quiet = {w + k for w in wins for k in range(WPAT[-1] + 1)}
    dma_gaps = sorted(w + k for w in wins for k in WPAT)
    if last:
        ex, post = sm_stream(t & 1, 1)
        for i in range(EARLY, 32): exg[((i - EARLY) * 33) // (32 - EARLY)] = (ex[i], post[i])
    else:
        for (ex, post), lo, hi in ((sm_stream(t & 1, 1), 0, 63), (sm_stream((t + 1) & 1, 0), 64, n - 2)):
            if lo and t == end - 1:
                x2, p2 = sm_stream(end & 1, 1)
                ex, post = ex + x2[:EARLY], post + p2[:EARLY]
            c = [g for g in range(lo, hi) if g not in quiet]
            for i in range(len(ex)): exg[c[(i * (len(c) + 1)) // len(ex)]] = (ex[i], post[i])
    for g, (x, post) in exg.items():
        add(g, x)
    for g, (x, post) in exg.items():
        h = g + 1
        while not last and (h in exg or h in quiet): h += 1
        for it in post: add(h, it)
    free = {g for g in range(n) if g not in exg or EARLY < 12} if last else {g for g in range(n) if g not in exg and g not in dma_gaps and len(gaps.get(g, [])) < 2}
    prev, pre, avail = n, [], sorted(free)
    for dl, early, it in reversed(reads):
        c = [g for g in free if g <= dl and g < prev]
        if c and max(c) >= early:
            prev = max(c); free.discard(prev); add(prev, it)
        elif early < 0:
            prev = -1; pre.insert(0, it)
        else:
            g = min(g for g in avail if g >= early and len(gaps.get(g, [])) < 2)
            assert g <= dl + AHEAD - 6, (t, it.t, g, dl)
            free.discard(g); gaps.setdefault(g, []).insert(0, it)
    if groups:
        def spaced(c):
            out = []
            for g in c:
                if not out or g - out[-1] >= 2: out.append(g)
            return out
        light = spaced([g for g in sorted(free) if 1 <= g < n - 6 and g not in gaps])
        fr = light if len(light) >= len(groups) - len(dma_gaps) + 4 else spaced([g for g in sorted(free) if 1 <= g < n - 6])
        rest = len(groups) - len(dma_gaps)
        if rest > 0:
            fr = [g for g in fr if not {g - 1, g, g + 1} & set(dma_gaps)]
            if len(fr) < rest: fr = spaced([g for g in range(1, n - 6) if g not in exg and not {g - 1, g, g + 1} & set(dma_gaps)])
            assert len(fr) >= rest, (t, len(fr), len(groups))
            dma_gaps = sorted(dma_gaps + [fr[int(k * len(fr) / rest)] for k in range(rest)])
        for k, grp in enumerate(groups): place(add, dma_gaps[k], grp, dma_gaps[k - 1] if k else -1, {u - 1 for u in first_use.values()})
    if not last:
        add(n - 3, It(None, "s", need=[("K", min(t + 3, end)), ("V", end if t == end - 2 else t + 1)] + list(endwait)))
        add(n - 2, It("s_barrier", "s"))
        add(n - 4, hop())
    for g, its in (extra or {}).items():
        for it in its: add(g, it)
    if SSET == "attn": add(0, stamp_item())
    if O_("jit2", 0):
        for g in (1, n // 2, n - 12): add(g, jitter_item())
    if ins:
        for k in range(3):
            for h, it in enumerate(ins[k][1]): add(1 + 4 * k + 2 * h, it)
        pos = {(13 + (k * (n - 24)) // (len(ins) - 1)) | 1: k for k in range(len(ins))}
        assert len(pos) == len(ins)
        ms2, gaps2, old, quiet = [], {}, quiet, set()
        for g, m in enumerate(ms):
            if g in old: quiet.add(len(ms2))
            gaps2[len(ms2)] = gaps.get(g, []); ms2.append(m)
            if g in pos:
                k = pos[g]
                gaps2[len(ms2)] = list(ins[k + 3][1]) if k + 3 < len(ins) else []
                ms2.append(ins[k][0])
        ms, gaps = ms2, gaps2
    P.puts(pre)
    P.run_gaps(ms, gaps, fill, next_need=nxt_need, pos=t, gmin=4, quiet=quiet)


hdr = [l.rstrip("\n") for l in open("header.txt")]
hdr = hdr[:[i for i, l in enumerate(hdr) if "@launch" in l][0]]
P.L += hdr + ["; @launch grid=(256,1,1) block=(256,1,1) lds=163840",
              '.amdgcn_target "amdgcn-amd-amdhsa--gfx950"', ".text", f".globl {NAME}", ".p2align 8",
              f".type {NAME},@function"]
lab(NAME)
e("s_cmp_lt_u32 s2, 256"); e("s_cbranch_scc1 L_go"); e("s_endpgm")
lab("L_go")
if AMP and AMP[0] < 0: e(f"s_memrealtime {sr(sST,2)}")
e("s_load_dwordx16 s[64:79], s[0:1], 0"); e("s_load_dwordx8 s[80:87], s[0:1], 64"); e("s_load_dwordx2 s[88:89], s[0:1], 96")
PAIR = O_("pair", 0)
NS = 16 if PAIR else 32
sMI, sWV = 90, 91
if PAIR:
    e(f"s_and_b32 s{sG}, s2, 3"); e(f"s_and_b32 s{sT}, s2, 2"); e(f"s_add_u32 s{sG}, s{sG}, s{sT}")
    e(f"s_bfe_u32 s{sT}, s2, 0x10003"); e(f"s_lshl1_add_u32 s{sG}, s{sT}, s{sG}")
    e(f"s_lshr_b32 s{sMI}, s2, 4"); e(f"s_and_b32 s{sM}, s2, 4"); e(f"s_lshl_b32 s{sM}, s{sM}, 2"); e(f"s_add_u32 s{sM}, s{sM}, s{sMI}")
else:
    e(f"s_and_b32 s{sG}, s2, 7"); e(f"s_lshr_b32 s{sM}, s2, 3"); e(f"s_lshr_b32 s{sMI}, s2, 3")
e("v_lshrrev_b32 v1, 6, v0"); e("v_and_b32 v0, 63, v0"); e(f"v_readfirstlane_b32 s{sW}, v1")
e(f"v_lshlrev_b32 v{vBA}, 4, v0"); e(f"v_lshlrev_b32 v{vLANE}, 7, v0")
e(f"s_getpc_b64 {sr(sT+1,2)}")
lab("L_pc")
NCL = 10
e(f"s_lshr_b32 s{sT+3}, s2, 3")
sum_terms(sT, (sT + 3, 512), (sW, 128))
e(f"v_min_u32 v6, {NCL-1}, v0"); e(f"v_lshl_add_u32 v6, v6, 14, s{sT}"); e("v_min_u32 v6, L_end-L_pc, v6")
e(f"v_mov_b32 v{vCODE+1}, s{sT+2}"); e(f"v_add_co_u32 v{vCODE}, vcc, s{sT+1}, v6")
e(f"v_addc_co_u32 v{vCODE+1}, vcc, 0, v{vCODE+1}, vcc")
code_touch = lambda: P.vm(f"global_load_dword a255, {vr(vCODE,2)}, off")
masked(O_("cm", 15), f"global_load_dword a255, {vr(vCODE,2)}, off")
sum_terms(sWV, (sMI, 4), (sW, 1))


def touch_off(d, nrows, lines, stride, base_terms, t):
    per = -(-nrows // (NS * 4))
    assert per * lines <= 64 and lines & (lines - 1) == 0
    sh = lines.bit_length() - 1
    e(f"v_lshrrev_b32 v{d}, {7 + sh}, v{vLANE}"); e(f"v_min_u32 v{d}, {per - 1}, v{d}")
    e(f"s_mul_i32 s{sT}, s{sWV}, {per}"); e(f"v_add_u32 v{d}, s{sT}, v{d}")
    if per * NS * 4 != nrows: e(f"v_min_u32 v{d}, {nrows - 1}, v{d}")
    e(f"v_mul_u32_u24 v{d}, {stride}, v{d}")
    sum_terms(sT, *base_terms)
    if lines > 1:
        e(f"v_and_b32 v{t}, {(lines - 1) * 128}, v{vLANE}"); e(f"v_add3_u32 v{d}, v{d}, v{t}, s{sT}")
    else:
        e(f"v_add_u32 v{d}, s{sT}, v{d}")


WQ0 = O_("wq0", 128)
vTQ, vT1, vTK = T + 11, T + 13, T + 16
touch_off(6, WQ0, 8, 8192, [(sG, 1024)], 7)
touch_off(vT1, 512, 1, 1024, [(sG, 128)], 7)
e("v_and_b32 v2, 3, v0")
e("v_lshrrev_b32 v1, 2, v0")
sum_terms(sT, (sM, 64), (sW, 16))
e(f"v_add_u32 v3, s{sT}, v1"); e("v_lshlrev_b32 v3, 10, v3"); e("v_lshl_add_u32 v3, v2, 4, v3")
e(f"s_bfe_u32 s{sT+1}, s{sG}, {0x10000 + PAIR}"); e(f"s_lshl_b32 s{sT+2}, s{sT+1}, 9")
e(f"v_add_u32 v3, s{sT+2}, v3"); e(f"v_xor_b32 v{G12+13}, 0x200, v3")
if STAMP: e(f"v_mov_b32 v{vSTAMP}, 0")
e("s_waitcnt lgkmcnt(0)")
stamp()
if SSET == "ln": stamp(0)
ENT = " nt" * O_("ent", 0)
P.vm(f"global_load_dword a255, v{vT1}, s[76:77]{ENT}")
P.vm(f"global_load_dword a255, v6, s[70:71]{ENT}")
for i in range(8):
    P.vm(f"global_load_dwordx4 {vr(XR+4*i,4)}, v3, s[64:65] offset:{i*64}", ("x", i))
HOP = O_("hop", 1)
hop = lambda n="": It(f"; @hop {n}", "s")
if HOP:
    e("s_branch L_main"); P.raw(".p2align 12")
lab("L_main")
e("v_lshlrev_b32 v4, 1, v2"); e("v_xor_b32 v4, v4, v1"); e("v_lshlrev_b32 v4, 4, v4"); e("v_lshl_add_u32 v4, v2, 8, v4")
sum_terms(sT + 2, (sT + 1, 32768), (sW, 1024))
e(f"v_add_u32 v{vWA}, s{sT+2}, v4"); e(f"v_xor_b32 v{vWA+1}, 0x8000, v{vWA}")
e("v_and_b32 v1, 15, v0"); e("v_lshrrev_b32 v2, 4, v0")
e("v_lshlrev_b32 v4, 1, v2"); e("v_xor_b32 v4, v4, v1"); e("v_lshlrev_b32 v4, 4, v4"); e(f"v_lshl_add_u32 v{vBX}, v2, 8, v4")
e(f"v_add_u32 v3, s{sT}, v1"); e("v_lshlrev_b32 v4, 15, v2"); e(f"v_lshl_add_u32 v{vTOK}, v3, 4, v4")
for d, p in ((SK, 66), (SV, 68)):
    e(f"s_lshl_b32 s{sT}, s{sG}, 19")
    e(f"s_add_u32 s{d}, s{p}, s{sT}"); e(f"s_addc_u32 s{d+1}, s{p+1}, 0"); e(f"s_mov_b32 s{d+2}, 0x80000"); e(f"s_mov_b32 s{d+3}, 0x20000")
for d, p, size in ((SX, 64, 0x200000), (SWQ, 70, 0x400000), (SW1, 76, 0x80000), (SWS, 88, 0x10000000),
                   (SWO, 72, 0x400000), (SW2, 78, 0x80000), (SW3, 80, 1835008), (SW4, 82, 1835008),
                   (SOUT, 84, 0x200000), (SDBG, 86, 256)):
    mk_srd(d, p, size)
sum_terms(sRING, (sW, 8192), RING); sum_terms(sW1K, (sW, 1024)); sum_terms(sW4K, (sW, 4096))
sum_terms(sT, (sG, 1024), (sW, 256)); dma_voff(vDWQ, 8192, True, f"s{sT}", 10)
sum_terms(sT, (sW, 65536), (sG, 128)); dma_voff(vDW1, 1024, True, f"s{sT}", 10); dma_voff(vDW2, 1024, False, f"s{sT}", 10)
for r, v in ((sLO, "0x00003f80"), (sHI, "0x3f800000"), (sONE2, "0x3f803f80"), (sC1, f2u(GK)), (sC2, f2u(GA_)),
             (sNL2E, f2u(-LOG2E / GA_)), (sSPIN, opt.get("spin0", 0)), (sMSK, "0xffff0000")):
    e(f"s_mov_b32 s{r}, {v}")
sum_terms(sF0, (sM, 4096), (sW, 256), WS_FL)
sum_terms(sFL, (sG, 4), (sF0, 1))
sum_terms(sF1, (sM, 4096), (sG, 128), WS_FL + 1024)
e(f"s_add_u32 s{sF2}, s{sF1}, 1024"); e(f"s_add_u32 s{sF3}, s{sF1}, 2048")
sum_terms(sSTC, (sM, 4096), (sW, 1024), WS_SS)
sum_terms(sSTP, (sG, 128), (sSTC, 1))
sum_terms(sPP, (sM, 1 << 19), (sW, 1 << 17), (sG, 1 << 13))
sum_terms(sPC, (sM, 1 << 19), (sG, 1 << 16), (sW, 1 << 11))
e(f"s_lshl_b32 s{sHO}, s{sG}, 18")
e(f"s_and_b32 s{sKS}, s{sG}, 6"); e(f"s_lshl_b32 s{sKS}, s{sKS}, 1"); e(f"s_lshr_b32 s{sT}, s{sW}, 1"); e(f"s_add_u32 s{sKS}, s{sKS}, s{sT}")
e(f"s_and_b32 s{sTB}, s{sG}, 1"); e(f"s_lshl_b32 s{sTB}, s{sTB}, 1"); e(f"s_and_b32 s{sT}, s{sW}, 1"); e(f"s_add_u32 s{sTB}, s{sTB}, s{sT}")
sum_terms(sSTF, (sM, 4096), (sTB, 1024), WS_SS)
sum_terms(sXF, (sM, 65536), (sTB, 16384), (sKS, 64))
e(f"s_and_b32 s{sT}, s{sG}, 1"); sum_terms(sW3B, (sG, 448), (sT, 64)); sum_terms(sRS, (sW, 2048), RING)
e("v_lshrrev_b32 v6, 2, v0"); e("v_and_b32 v7, 3, v0"); e("v_lshlrev_b32 v7, 3, v7"); e("v_lshl_add_u32 v7, v6, 7, v7")
e("v_bfe_u32 v6, v0, 3, 2")
for nb in range(4):
    e(f"v_xor_b32 v10, {nb}, v6"); e("v_lshl_add_u32 v10, v10, 5, v7")
    e(f"v_add_u32 v{vAS+nb}, {RING + 32768}, v10")
    if QPERM:
        e("v_lshrrev_b32 v8, 2, v0"); e("v_and_b32 v9, 6, v8"); e("v_and_b32 v10, 3, v0"); e("v_xor_b32 v9, v9, v10")
        e(f"v_xor_b32 v9, {4*(nb>>1)}, v9"); e("v_lshlrev_b32 v9, 4, v9"); e("v_lshl_add_u32 v10, v8, 7, v9")
        if nb & 1: e("v_add_u32 v10, 8, v10")
    e(f"v_add_u32 v{vAA+nb}, s{sRING}, v10"); e(f"v_add_u32 v{vAA2+nb}, 0x10000, v{vAA+nb}")
e("v_xor_b32 v9, v2, v1")
for s in range(4):
    e(f"v_xor_b32 v10, {4*s}, v9"); e("v_lshlrev_b32 v10, 4, v10"); e(f"v_lshl_add_u32 v{KA(s)}, v1, 8, v10")
e("v_lshrrev_b32 v9, 2, v0"); e("v_lshlrev_b32 v10, 8, v9"); e("v_and_b32 v11, 3, v0")
e("v_lshl_add_u32 v10, v11, 3, v10"); e(f"v_add_u32 v10, {VOFF}, v10"); e("v_and_b32 v9, 7, v9")
for db in range(8):
    e(f"v_xor_b32 v11, {db}, v9"); e(f"v_lshl_add_u32 v{VA(db)}, v11, 5, v10")
e(f"v_lshl_add_u32 v10, v2, 8, s{sW4K}")
for i in range(4):
    e(f"v_add_u32 v9, {4*i}, v2"); e("v_xor_b32 v11, v9, v1"); e(f"v_lshl_add_u32 v{KG(i)}, v11, 4, v10")
    if i < 2:
        e("v_lshlrev_b32 v9, 1, v9"); e("v_xor_b32 v11, v9, v1"); e(f"v_lshl_add_u32 v{VG(i)}, v11, 4, v10")
e(f"v_lshlrev_b32 v{G12+8}, 4, v1")
if WQ0 < 512: touch_off(vTQ, 512 - WQ0, 8, 8192, [(sG, 1024), WQ0 * 8192], 7)
SLIM = O_("slim", 1)
touch_off(vTK, 256 if SLIM else 512, 1, 128, [(sG, 0)], 7)


def late_touch():
    P.vm(f"buffer_load_dword a255, v{vTK}, {srd(SK)}, 0 offen"); P.vm(f"buffer_load_dword a255, v{vTK}, {srd(SV)}, 0 offen")
    if not SLIM:
        P.vm(f"buffer_load_dword a255, v{vT1}, {srd(SW2)}, 0 offen")
        code_touch()


LTG = O_("ltg", 4)
XQ = O_("xq", 3)


w1t = [Tile(SW1, vDW1, k * 4 * 65536, 1024, True, 1 + k, "w1") for k in range(2)]
w2t = [Tile(SW2, vDW2, k * 4 * 65536, 1024, False, 2, ("w2", k)) for k in range(2)]
qt = [Tile(SWQ, vDWQ, (i // 2) * 64 * 8192 + (i % 2) * 128, 8192, True, i % 3, ("wq", i), kp=i // 2, nh=i % 2)
      for i in range(16)] + ([] if SLIM else [None, w2t[0]])
mt = [Tile(SW3, vDW2, kp * 64 * 3584, 3584, False, (2 - i) % 3, ("w3", kp), kp=kp)
      for i, kp in enumerate((4, 5, 6, 7, 0, 1, 2, 3))]
mt += [Tile(SW4, vDW4, (i // 2) * 65536 + (i % 2) * 128, 1024, False, (2 - 8 - i) % 3, ("w4", i), kp=i // 2, nh=i % 2)
       for i in range(8)]
ot = [Tile(SWO, vDWO, ((kp & 1) * 256 + (kp >> 1) * 32) * 1024 + nh * 128, 1024, False, (nh * 8 + i + 2) % 3,
           ("wo", nh, kp), kp=kp, nh=nh, half=128)
      for nh in range(2) for i, kp in enumerate(range(8) if nh == 0 else (2, 3, 4, 0, 5, 1, 6, 7))]

a = G12


def quad_sum(regs):
    for qp in ("[1,0,3,2]", "[2,3,0,1]"):
        for r in regs: e(f"v_add_f32_dpp v{r}, v{r}, v{r} quad_perm:{qp} row_mask:0xf bank_mask:0xf")


def ln_stats(lo, hi):
    for i in range(lo, hi):
        c = lambda r: f"v{r}" if i >= 2 else 0
        e(f"v_dot2_f32_bf16 v{a + i % 2}, v{XR+i}, s{sONE2}, {c(a + i % 2)}", need=[("x", i // 4)])
        e(f"v_dot2_f32_bf16 v{a + 2 + i % 2}, v{XR+i}, v{XR+i}, {c(a + 2 + i % 2)}")


def unpack(k):
    for i in range(4 * k, 4 * k + 4):
        e(f"v_lshlrev_b32 v{2*i}, 16, v{XR+i}"); e(f"v_and_b32 v{2*i+1}, s{sMSK}, v{XR+i}")


def ln_rest():
    ln_stats(32, 64)
    e(f"v_add_f32 v{a}, v{a}, v{a+1}"); e(f"v_add_f32 v{a+2}, v{a+2}, v{a+3}")
    quad_sum([a, a + 2])
    e(f"v_mul_f32 v{a+4}, {f2u(-1/512)}, v{a}"); e(f"v_mul_f32 v{a+2}, {f2u(1/512)}, v{a+2}")
    e(f"v_fma_f32 v{a}, -v{a+4}, v{a+4}, v{a+2}"); e(f"v_max_f32 v{a}, 0, v{a}")
    e(f"v_add_f32 v{a+1}, {f2u(EPS)}, v{a}")
    e(f"v_rsq_f32 v{vRSTD}, v{a+1}")
    unpack(8)
    e(f"v_mul_f32 v{a+2}, {f2u(QSCALE)}, v{vRSTD}"); e(f"v_mul_f32 v{a+3}, v{a+4}, v{a+2}")
    for k in range(17):
        if k < 16:
            for i in range(4 * k, 4 * k + 4):
                e(f"v_pk_fma_f32 {vr(2*i,2)}, {vr(2*i,2)}, {vr(a+2,2)}, {vr(a+2,2)} op_sel:[0,0,1] op_sel_hi:[1,0,1]")
        if k: P.lds(f"ds_write_b128 v{vWA + (k-1)//8}, {vr(XR+4*k-4,4)} offset:{((k-1)%8)*4096}", "xw")
        if k % 2 == 0 and 9 + k // 2 < 16: unpack(9 + k // 2)
        if k < 16:
            for i in range(4 * k, 4 * k + 4): e(f"v_cvt_pk_bf16_f32 v{XR+i}, v{2*i}, v{2*i+1}")
    e(f"v_mul_f32 v{a}, v{a}, v{vRSTD}"); e(f"v_mul_f32 v{a}, v{a}, v{vRSTD}")
    e(f"v_add_f32 v{a}, {f2u(EPS)}, v{a}")
    e(f"v_rsq_f32 v{vSC1}, v{a}")
    e(f"v_mul_f32 v{vRSTD}, s{sC2}, v{vRSTD}")
    e(f"v_mul_f32 v{vSC1}, {f2u(GA_/QSCALE)}, v{vSC1}")
    e(f"v_mul_f32 v{vNMEAN}, v{a+4}, v{vRSTD}")
    e(f"v_add_u32 v{vWA}, s{sW1K}, v{vBX}")


if SSET == "ln": stamp(0)
P.put(hop(O_("hop00", 1)))
wq_rest = lambda: P.vm(f"buffer_load_dword a255, v{vTQ}, {srd(SWQ)}, 0 offen{ENT}") if WQ0 < 512 else None
if LTG == 4: XQ = 4
if XQ == 0: wq_rest()
if LTG == 0: late_touch()
for i in range(8):
    P.vm(f"buffer_load_dwordx4 {vr(XR+32+4*i,4)}, v{G12+13}, {srd(SX)}, 0 offen offset:{i*64}", ("x", 8 + i))
if XQ == 1: wq_rest()
if LTG == 1: late_touch()
if SSET == "ln": stamp(0)
P.put(hop(O_("hop0", 1)))
for k in range(8):
    ln_stats(4 * k, 4 * k + 4); unpack(k)
if O_("hop1", 1): P.put(hop(O_("hop1", 1)))
stamp(2)
if SSET == "ln":
    stamp(0); P.wait([("x", 15)]); stamp(0)
code = cap(ln_rest)
if "l" in opt.get("cut", ""): code = [it for it in code if not (it.t or "").startswith(("v_pk_fma", "v_cvt", "v_lshlrev", "v_and"))]
k = O_("lnat", 40)
P.puts(code[:k])
Q0LN = O_("q0ln", 1)
side = [x + y for t in w1t + qt[:Q0LN] for x, y in t.dma()]
if LTG == 4:
    j = O_("ltpos", 24)
    side[j:j] = [[it] for it in cap(wq_rest) + cap(late_touch)]
interleave(code[k:], side, O_("lnev", 9))
if SSET == "ln":
    stamp(0); P.wait(["w1"]); stamp(0)
for r in (vNMEAN, vRSTD, vSC1): P.lds(f"ds_bpermute_b32 v{r}, v{G12+8}, v{r}", "stat")
xb = [It(f"ds_read_b128 {ar(4*ks,4)}, v{vWA} offset:{ks*4096}", "l", ("xb", ks)) for ks in range(16)]
P.puts(xb[:8])
stamp(2)
P.wait(["xw", "w1"]); e("s_barrier")
stamp()
if SSET == "ln": stamp(0)

g1 = lambda h: shared_ops(range(8 * h, 8 * h + 8), 0, lambda nb: vr(G12 + 4 * nb, 4), True, lambda i: 160 + (i % 16) * 4,
                          lambda ks: ar(4 * ks, 4), lambda ks: [("xb", ks)], "g1", 32 * h)
ops = g1(0) + g1(1)
gaps = {g: [] for g in range(64)}
add1 = lambda g, it: gaps[g].append(it)
for i in range(6, 64): gaps[i - 6] += ops[i][1]
for k in range(8): add1(2 + 3 * k, xb[8 + k])
if not Q0LN:
    for k, grp in enumerate(qt[0].dma()): place(add1, 1 + 3 * k, grp, 3 * k - 2)
for k, it in enumerate((cap(wq_rest) if XQ == 3 else []) + (cap(late_touch) if LTG == 3 else [])): add1(O_("ltat", 0) + 2 * k, it)
add1(31, It("s_barrier", "s"))
for k, grp in enumerate(qt[1].dma()): place(add1, 34 + 3 * k, grp, 31 + 3 * k)
ACC = lambda nh, nb, tb: ((nh * 4 + tb) * 4 + nb) * 4
op = gemm(qt, 0, 16, ACC, [], (64, 96), breg=vBX, opening="get")
for k, it in enumerate(op[4:12]): add1(40 + 2 * k, it)
for k, it in enumerate(op[:4] + op[12:]): add1(58 + k // 2, it)
for i in range(6): P.puts(ops[i][1])
P.run_gaps([m for m, _ in ops], gaps, next_need=[op[0].tag, op[4].tag])
stamp()



def q_side():
    x, t = G12, XR
    P.put(gate(0, 8))
    for i in range(16): e(f"v_mul_f32 v{x+i}, v{x+i}, v{vSC1}", need=["stat"])
    for i in range(16): e(f"v_fma_f32 v{t+i}, -v{x+i}, v{x+i}, -s{sC1}")
    for i in range(16): e(f"v_mul_f32 v{t+i}, v{t+i}, v{x+i}")
    for i in range(16): e(f"v_exp_f32 v{t+i}, v{t+i}", k="v")
    for i in range(16): e(f"v_add_f32 v{t+i}, 1.0, v{t+i}")
    for i in range(16): e(f"v_rcp_f32 v{t+i}, v{t+i}", k="v")
    for i in range(16): e(f"v_mul_f32 v{t+i}, v{t+i}, v{x+i}")
    for i in range(8): e(f"v_cvt_pk_bf16_f32 v{t+16+i}, v{t+2*i}, v{t+2*i+1}")
    e(f"v_lshrrev_b32 v{t}, 5, v{vBA}"); e(f"v_and_b32 v{t+1}, 128, v{vLANE}"); e(f"v_lshl_add_u32 v{t}, v{t}, 10, v{t+1}")
    e(f"v_mov_b32 v{t+1}, 0"); e(f"v_mov_b32 v{t+2}, -1"); e(f"v_mov_b32 v{t+3}, -1"); e(f"v_lshrrev_b32 v{t+4}, 1, v{vBA}")
    for nb in range(4): e(f"v_add_u32 v{vAS+nb}, 32768, v{vAS+nb}")
    e(f"v_mov_b32 v{t+5}, {hex(((127 - OSH) << 7) * 0x10001)}")
    if SPARSE:
        e(f"v_and_b32 v{t+6}, {0xf0 if PA else 0x30}, v{vBA}"); e(f"v_cmp_eq_u32 vcc, 0, v{t+6}"); e(f"v_cndmask_b32 v{t+5}, 0, v{t+5}, vcc")
    for i in range(4): e(f"v_accvgpr_write_b32 a{aONES+i}, v{t+5}")
    P.put(gate(0, O_("hgate", 13 * 32 + 23)))
    if LTG == 2: late_touch()
    for s in range(2):
        e(f"s_add_u32 s{sSF}, s{sHO}, {WS_H + s*PLANE}")
        P.vm(f"buffer_store_dwordx4 {vr(t+16+4*s,4)}, v{vTOK}, {srd(SWS)}, s{sSF} offen sc1", "hst")
    masked(255, f"buffer_store_dword v{t+1}, v{t}, {srd(SWS)}, s{sFL} offen sc1", "hst")
    masked(0xffff, f"buffer_store_dwordx2 {vr(t+2,2)}, v{t+4}, {srd(SWS)}, s{sSTP} offen sc1", "hst")


fill = cap(q_side)
pending = qt[2].dma()
gemm(qt, 0, 16, ACC, pending, (64, 96), breg=vBX, fill=fill, opening="done", extra={1: [It("s_barrier", "s")]}, dma0=2)
assert not fill and not pending
e("s_barrier")
stamp()


def q_pack():
    for tb in range(4):
        for s in range(4):
            b = ACC(s // 2, 2 * (s % 2), tb)
            for j in range(4): e(f"v_cvt_pk_bf16_f32 v{Q(tb,s)+j}, v{b+2*j}, v{b+2*j+1}")
        for sw in () if QPERM else ("v_permlane32_swap_b32", "v_permlane16_swap_b32"):
            for s in range(4):
                for j in range(2): e(f"{sw} v{Q(tb,s)+j}, v{Q(tb,s)+2+j}")


early = (("K", 0), ("K", 1)) if QPERM else (("K", 0), ("K", 1), ("V", 0))
interleave(cap(q_pack), [x + y for k in early for x, y in kv_dma(*k)], 8 if QPERM else 10)
P.wait(["hst", ("K", 0)]); e("s_barrier")
stamp()

for f in range(8): P.puts(frag_reads(-1, f))
gaps = {g: [] for g in range(64)}
for k, grp in enumerate(kv_dma("V", 0) if QPERM else kv_dma("K", 2)): place(add1, 2 + 4 * k, grp, -1)
P.run_gaps([m for m, _ in qk_mfmas(-1, zero=True)[:16]], gaps)
for f in range(8, 12): P.puts(frag_reads(-1, f))
for qb in range(4): e(f"v_max3_f32 v{NM(qb)}, v{S(0,0,qb)}, v{S(0,0,qb)+1}, v{S(0,0,qb)+2}")
for qb in range(4): e(f"v_max_f32 v{NM(qb)}, v{NM(qb)}, v{S(0,0,qb)+3}")
allreduce("v_max_f32", [NM(qb) for qb in range(4)], [NM(qb) + 1 for qb in range(4)])
e(f"s_mov_b32 s{sT}, {f2u(float(opt.get('pd', -25.4)))}")
for qb in range(4):
    for i in (1, 2, 3, 0): e(f"v_sub_f32 v{NM(qb)+i}, s{sT}, v{NM(qb)}")


def first_half(shift, gates):
    for kb in range(2):
        P.put(gate(0, gates[kb]))
        for qb in range(4):
            b = S(0, kb, qb)
            if shift and not kb:
                for j in range(4): e(f"v_add_f32 v{b+j}, v{b+j}, v{NM(qb)}")
            for j in range(4): e(f"v_exp_f32 v{b+j}, v{b+j}")
        for qb in range(4):
            b = S(0, kb, qb)
            for j in range(2): e(f"v_cvt_pk_bf16_f32 v{PR(0,0,qb)+2*kb+j}, v{b+2*j}, v{b+2*j+1}")


gaps = {g: [] for g in range(64)}
for f in range(12, 16): gaps[16 + (f - 12)] += frag_reads(-1, f)
add1(30, It(None, "s", need=[("K", 1)])); add1(31, It("s_barrier", "s"))
for f in range(4):
    gaps[32 + f] += frag_reads(0, f); issued.add((0, f))
if QPERM:
    for k, grp in enumerate(kv_dma("K", 2) + kv_dma("V", 1) + kv_dma("K", 3)): place(add1, 2 + 4 * k, grp, 4 * k - 2)
else:
    for k, grp in enumerate(kv_dma("V", 1) + kv_dma("K", 3)): place(add1, 3 + 6 * k, grp, 6 * k - 3)
fill = cap(first_half, True, (0, 20))
P.run_gaps([m for m, _ in qk_mfmas(-1)[16:]], gaps, fill)
P.drain(fill)
e(f"v_mov_b32 v{T}, 1"); e(f"s_lshl_b32 s{sSF}, s{sM}, 3")
e(f"s_cmp_lg_u32 s{sW}, 0"); e("s_cbranch_scc1 L_noarr"); e("s_mov_b64 exec, 1")
e(f"buffer_atomic_add v{T}, off, {srd(SDBG)}, s{sSF} sc1"); e("s_mov_b64 exec, -1")
lab("L_noarr")
P.wait([("K", 2), ("V", 0)] + [("F", 0, f) for f in range(4)]); e("s_barrier")
stamp()

p_h = flag_poll("h", SDBG, 0, 8)
p_x = flag_poll("x1", SWS, f"s{sF0}", 1)
p_st = Poll("st", [f"buffer_load_dwordx2 {vr(T+2*j,2)}, v{vPA}, {srd(SWS)}, s{(sSTC, sSTF)[j//2]} offen offset:{128*(j%2)} sc1"
                   for j in range(4)],
            [f"v_max3_u32 v{T+8}, v{T}, v{T+1}, v{T+2}", f"v_max3_u32 v{T+8}, v{T+8}, v{T+3}, v{T+4}",
             f"v_max3_u32 v{T+8}, v{T+8}, v{T+5}, v{T+6}", f"v_max_u32 v{T+8}, v{T+8}, v{T+7}",
             f"v_cmp_eq_u32 vcc, -1, v{T+8}"])
p_ph, p_s0, p_s1 = (flag_poll(n, SWS, f"s{r}", 1) for n, r in (("ph", sF1), ("s0", sF2), ("s1", sF3)))


pieces = [(nh, tb, s) for nh in range(2) for tb in range(4) for s in range(2)]


def x_offset(d, bits=11):
    e(f"v_bfe_u32 v{d}, v{vTOK}, 4, {bits}"); e(f"v_lshlrev_b32 v{d}, 10, v{d}")
    e(f"v_bfe_u32 v{d+1}, v{vBA}, 8, 2"); e(f"v_lshl_add_u32 v{d}, v{d+1}, 3, v{d}")


def paced(t, g, step, fns):
    for k, fn in enumerate(fns):
        p = g + k * step
        P.put(gate(t + p // 136, p % 136)); fn()


def h_loads(half, t, g):
    e(f"v_bfe_u32 v{T}, v{vTOK}, 4, 11")
    for k, d in enumerate(((-1, 1), (-2, 2))[half]):
        e(f"v_add_u32 v{T+1}, {d}, v{T}"); e(f"v_cmp_gt_u32 vcc, 0x800, v{T+1}")
        e(f"v_add_u32 v{T+1}, {16*d}, v{vTOK}"); e(f"v_mov_b32 v{T+2+k}, 0x7f000000")
        e(f"v_cndmask_b32 v{T+2+k}, v{T+2+k}, v{T+1}, vcc")

    def one(ks):
        e(f"s_mov_b32 s{sSF}, {WS_H + ks*PLANE}")
        P.vm(f"buffer_load_dwordx4 {ar(HB(ks),4)}, v{T + 2 + (ks%8)//4}, {srd(SWS)}, s{sSF} offen sc1", ("h", ks))
    paced(t, g, O_("hstep", 18), [lambda ks=ks: one(ks) for ks in range(8 * half, 8 * half + 8)])


def side1():
    if SLIM:
        code_touch(); P.vm(f"buffer_load_dword a255, v{vT1}, {srd(SW2)}, 0 offen")
    P.put(gate(0, 40))
    x_offset(T + 5); e(f"s_lshl_b32 s{sSF}, s{sG}, 7")
    for nb in range(4):
        P.vm(f"buffer_load_dwordx2 {vr(T+6+2*nb,2)}, v{T+5}, {srd(SX)}, s{sSF} offen offset:{nb*32}", "xs")
    e(f"v_lshrrev_b32 v{T}, 4, v{vBA}"); e(f"v_min_u32 v{T}, 2, v{T}"); e(f"v_add_u32 v{T}, s{sM}, v{T}")
    e(f"v_add_u32 v{T}, -1, v{T}"); e(f"v_med3_i32 v{T}, v{T}, 0, 31"); e(f"v_lshlrev_b32 v{vPA}, 3, v{T}")
    if O_("kvt1", 0):
        touch_off(T, (T0 - 5) * 128, 1, 128, [(sG, 0), 5 * 16384], T + 1)
        P.vm(f"buffer_load_dword a255, v{T}, {srd(SK)}, 0 offen"); P.vm(f"buffer_load_dword a255, v{T}, {srd(SV)}, 0 offen")
    P.put(gate(2, 0))
    p_h.issue()
    for i in range(8):
        d = T + 2 * (i % 2)
        e(f"v_lshlrev_b32 v{d}, 16, v{T+6+i}", need=["xs"]); e(f"v_and_b32 v{d+1}, 0xffff0000, v{T+6+i}")
        for h in range(2): e(f"v_fma_f32 v{d+h}, v{d+h}, v{vRSTD}, v{vNMEAN}")
        for h in range(2): e(f"v_accvgpr_write_b32 a{aG2+2*i+h}, v{d+h}")
    P.put(gate(3, 0))
    p_h.check(); h_loads(0, 3, 30)
    P.put(gate(6, 0))
    h_loads(1, 6, 24)
    sum_terms(sT, (sW, 128), (sW3B, 1)); dma_voff(vDW2, 3584, False, f"s{sT}", T)
    P.put(gate(8, 164))
    m, q = vRSTD, vNMEAN
    for i in range(16): e(f"v_accvgpr_read_b32 v{T+i}, a{aG2+i}")
    e(f"v_add_f32 v{m}, v{T}, v{T+1}"); e(f"v_mul_f32 v{q}, v{T}, v{T}")
    for i in range(1, 16):
        e(f"v_fmac_f32 v{q}, v{T+i}, v{T+i}")
        if i > 1: e(f"v_add_f32 v{m}, v{m}, v{T+i}")
    allreduce("v_add_f32", [m, q], [T, T + 1], k="v")
    e(f"v_lshrrev_b32 v{T}, 1, v{vBA}")
    masked(0xffff, f"buffer_store_dwordx2 {vr(m,2)}, v{T}, {srd(SWS)}, s{sSTP} offen sc1")
    code_touch()
    e(f"v_and_b32 v{T}, 0xf0, v{vBA}"); e(f"v_lshrrev_b32 v{T}, 1, v{T}"); e(f"v_and_b32 v{T+1}, 0x300, v{vBA}")
    e(f"v_add_u32 v{vPA}, v{T}, v{T+1}")
    P.put(gate(11, 70))
    p_st.issue()
    P.put(gate(12, 60))
    p_st.check()
    u, r = T + 15, T + 16
    e(f"v_add_f32 v{u}, v{T}, v{T+2}"); e(f"v_add_f32 v{r}, v{T+1}, v{T+3}")
    e(f"v_add_f32 v{q}, v{T+4}, v{T+6}"); e(f"v_add_f32 v{m}, v{T+5}, v{T+7}")
    allreduce("v_add_f32", [u, r, q, m], [T, T + 1, T + 2, T + 3], k="v")
    for x in (u, r, q, m): e(f"v_mul_f32 v{x}, {f2u(1/512)}, v{x}")
    for x, y in ((u, r), (q, m)):
        e(f"v_fma_f32 v{y}, -v{x}, v{x}, v{y}"); e(f"v_max_f32 v{y}, 0, v{y}")
        e(f"v_mul_f32 v{y}, {f2u(GA_**-2)}, v{y}"); e(f"v_add_f32 v{y}, {f2u(EPS)}, v{y}")
    e(f"v_rsq_f32 v{r}, v{r}", k="v"); e(f"v_sqrt_f32 v{m}, v{m}", k="v")
    for i in range(15): e(f"v_accvgpr_read_b32 v{T+i}, a{aG2+i}")
    e(f"v_mul_f32 v{u}, v{u}, v{r}")
    for i in range(15): e(f"v_fma_f32 v{T+i}, v{T+i}, v{r}, -v{u}")
    e(f"v_cvt_pk_bf16_f32 v{T}, v{T}, v{T+1}"); e(f"v_cvt_pk_bf16_f32 v{T+1}, v{T+2}, v{T+3}")
    e(f"v_accvgpr_read_b32 v{T+3}, a{aG2+15}"); e(f"v_fma_f32 v{u}, v{T+3}, v{r}, -v{u}")
    for i in range(2, 8): e(f"v_cvt_pk_bf16_f32 v{T+i}, v{T+2*i}, v{T+2*i+1}")
    for s in range(2):
        e(f"s_add_u32 s{sSF}, s{sHO}, {WS_X1 + s*PLANE}")
        P.vm(f"buffer_store_dwordx4 {vr(T+4*s,4)}, v{vTOK}, {srd(SWS)}, s{sSF} offen sc1", "x1st")
    e(f"v_bfe_u32 v{vPA}, v{vBA}, 4, 3"); e(f"v_lshlrev_b32 v{vPA}, 2, v{vPA}")
    P.put(gate(15, 70))
    set_flags(0, 1, ["x1st"])
    touch_off(T, 512, 4, 3584, [(sW3B, 1)], T + 1)
    P.vm(f"buffer_load_dword a255, v{T}, {srd(SW3)}, 0 offen")
    touch_off(T, 2048, 1, 128, [(sW3B, 512)], T + 1)
    P.vm(f"buffer_load_dword a255, v{T}, {srd(SW4)}, 0 offen")
    sum_terms(sT, (sW, 256)); dma_voff(vDW4, 1024, False, f"s{sT}", T)
    sum_terms(sT, (sG, 1 << 19)); e(f"v_add_u32 v{vDWO}, s{sT}, v{vDW4}")
    sum_terms(sT, (sW3B, 512)); e(f"v_add_u32 v{vDW4}, s{sT}, v{vDW4}")
    e(f"s_and_b32 s{sT}, s{sG}, 1"); e(f"s_sub_u32 s{sT}, 4, s{sT}"); e(f"s_mul_i32 s{sT}, s{sT}, s{sW}")
    for nb in range(4):
        e(f"s_and_b32 s{sT+1}, s{sT}, 3"); e(f"s_lshl_b32 s{sT+1}, s{sT+1}, 5"); e(f"v_xor_b32 v{vAA2+nb}, s{sT+1}, v{vAS}")
        e(f"s_lshr_b32 s{sT+1}, s{sT}, 2"); e(f"s_lshl_b32 s{sT+1}, s{sT+1}, 13"); e(f"v_add_u32 v{vAA2+nb}, s{sT+1}, v{vAA2+nb}")
        e(f"v_add_u32 v{vAA+nb}, 0xffff0000, v{vAA2+nb}"); e(f"s_add_u32 s{sT}, s{sT}, 1")
    P.put(gate(17, 60))
    p_x.issue(); code_touch()
    P.put(gate(18, 60))
    p_x.check()
    if XREG:
        def one(ks):
            e(f"s_mov_b32 s{sSF}, {WS_X1 + ks*PLANE}")
            P.vm(f"buffer_load_dwordx4 {ar(aG2 + 4*(ks-4),4)}, v{vTOK}, {srd(SWS)}, s{sSF} offen sc1", "xnl")
        paced(18, 70, 14, [lambda ks=ks: one(ks) for ks in range(4, 8)])
    if O_("kvt", 1):
        touch_off(T + 8, (32 - T0) * 128, 1, 128, [(sG, 0), T0 * 16384], T + 9)
        P.vm(f"buffer_load_dword a255, v{T+8}, {srd(SK)}, 0 offen"); P.vm(f"buffer_load_dword a255, v{T+8}, {srd(SV)}, 0 offen")
    if XREG:
        e(f"v_add_u32 v{T+9}, s{sW1K}, v{vBA}")
        paced(T0 - 1, 34, 6, [lambda ks=ks: P.lds(f"ds_write_b128 v{T+9}, {ar(aG2 + 4*(ks-4),4)} offset:{ks*4096}", ("xn", 1), need=["xnl"])
                              for ks in range(4, 8)])


def x1n_dma(j):
    return [([It(f"s_add_u32 m0, s{sW1K}, {ks*4096}", "s"), It(f"s_mov_b32 s{sSO}, {WS_X1 + ks*PLANE}", "s")],
             [It(f"buffer_load_dwordx4 v{vTOK}, {srd(SWS)}, s{sSO} offen sc1 lds", "g", ("xn", j), need=["x1"])])
            for ks in range(4 * j, 4 * j + 4)]


def run_tiles(t0, t1, fill, over, more, endw, ins, must, xtra={}):
    end = T0 - 1 if t0 < T0 else 31
    for t in range(t0, t1):
        groups = (kv_dma("K", t + 4) if t + 4 <= end else []) + (kv_dma("V", t + 3) if t + 3 <= end else [])
        groups = over.get(t, groups) + more.get(t, [])
        attn_iter(t, groups, fill, endw.get(t, ()), ins=ins.get(t), extra=xtra.get(t))
        head = fill[0].at if fill else (99, 0)
        if O_("showfill", 0): print(t, len(fill), head, file=sys.stderr)
        if t in must: assert head and head[0] >= must[t], (t, head, len(fill))


g2 = lambda h: shared_ops(range(8 * h, 8 * h + 8), 8 * h, lambda nb: ar(aG2 + 4 * nb, 4), False, GA,
                          lambda ks: ar(HB(ks), 4), lambda ks: [("h", ks)], f"g2{h}")
op = gemm(mt, 0, 8, ACC, [], (160, 212), opening="get")
opx = {44 + 2 * k: [it] for k, it in enumerate(op[4:12])}
opx.update({62 + k: [it] for k, it in enumerate(op[:4] + op[12:])})
fill = cap(side1)
kv = lambda *a: [g for k in a for g in kv_dma(k[0], int(k[1:]))]
run_tiles(0, T0, fill, {0: kv("V2", "K4", "V3")},
          {1: w2t[0].dma() if SLIM else [], 6: w2t[1].dma(), 17: mt[0].dma(), 19: x1n_dma(2) + x1n_dma(3),
           20: x1n_dma(0) + mt[1].dma(), 21: [] if XREG else x1n_dma(1)},
          {3: [("w2", 0)], 7: [("w2", 1)], 20: [("xn", 3), mt[0].tag]}, {5: g2(0), 8: g2(1)}, {4: 6, 7: 8, 16: 17, 18: 19, 21: 99}, {T0 - 1: opx})
stamp()

class Extra:
    def __init__(self, groups): self.groups = groups
    def dma(self): return self.groups


def ph_pack(ks):
    for k in ks:
        pack(ACC, *pieces[k])
        for j in range(4): e(f"v_accvgpr_write_b32 a{PHA(k)+j}, v{ACC(pieces[k][0], 2*pieces[k][2], pieces[k][1])+j}")


def own_x1n(per):
    return {4 * per + 2: [It(f"s_lshl2_add_u32 s{sT}, s{sKS}, s{sTB}", "s")],
            4 * per + 6: [It(f"s_lshl_b32 s{sT}, s{sT}, 10", "s"), It(f"v_add_u32 v{T+9}, s{sT}, v{vBA}", "v")],
            7 * per + 3: [It(f"ds_read_b128 {ar(aXN,4)}, v{T+9}", "l", "xnr")],
            7 * per + 7: [It(f"ds_read_b128 {ar(aXN+4,4)}, v{T+9} offset:8192", "l", "xnr")]}


def mlp_tail(act, pending, nstep, bf):
    P.wait(["xnr"]); e("s_barrier")
    stamp()
    interleave(cap(act), [x + y for x, y in pending], 16)
    gemm_pre(mt, 8)
    P.wait(["hw"]); e("s_barrier")
    stamp()
    g = 32 * (nstep - 2)
    fill = [gate(0, g + 20)] + cap(ph_pack, (0, 2, 4, 6)) + [gate(0, g + 36)] + cap(ph_pack, (1, 3, 5, 7))
    pending = []
    gemm(mt[:8 + nstep] + [Extra(kv_dma("K", T0) + kv_dma("K", T0 + 1))], 8, nstep, ACC, pending, bf, fill=fill)
    assert not pending
    P.wait([("K", T0 + 1)]); e("s_barrier")
    stamp()
    for f in range(8): P.puts(frag_reads(T0 - 1, f))
    P.drain(fill)


def mlp_even():
    P.cmt("==== channel MLP, even groups: 256 hidden columns, one private weight tile per wave and step")
    extra = own_x1n(32)
    extra.update({1: [It("s_barrier", "s")], 2 * 32 + 26: [It(None, "s", need=[("xn", 0), ("xn", 1)])],
                  2 * 32 + 27: [It("s_barrier", "s")],
                  7 * 32 + 10: [It(f"s_lshl_b32 s{sT}, s{sW}, 13", "s"), It(f"v_add_u32 v{T+8}, s{sT}, v{vBA}", "v")]})
    pending = mt[2].dma()
    gemm(mt, 0, 8, ACC, pending, (160, 212), extra=extra, opening="done", dma0=2)

    def act():
        for tb in range(4):
            gelu(16 * tb, 16, 64 + 16 * tb, lambda i: 16 * tb + i, first=tb == 0)
            for s in range(2):
                P.lds(f"ds_write_b128 v{T+8}, {vr(16*tb + 4*s,4)} offset:{s*4096 + tb*1024}", "hw")
    mlp_tail(act, pending, 8, (160, 212))


def mlp_odd():
    P.cmt("==== channel MLP, odd groups: 192 hidden columns, three weight tiles per step shared by the four waves")
    AC3 = lambda nb, tb: (tb * 3 + nb) * 4
    af = lambda s, nb, ks: AF(2 * (nb + (nb == 2) * (s & 1)) + ks)
    bf = lambda s, ks, tb: ar((160, 212)[s & 1] + (ks * 4 + tb) * 4, 4)

    def a3(s, nb):
        t = mt[s]
        base, off = (vAA2, 0) if t.slot == 2 else (vAA, t.slot * 32768)
        return [It(f"ds_read_b64_tr_b16 {ar(af(s,nb,ks)+2*h,2)}, v{base+nb} offset:{off + ks*4096 + h*2048}", "l",
                   ("A", t.tag, nb)) for ks in range(2) for h in range(2)]

    def stage(s):
        t = mt[s]
        if s >= 8: return t.dma()
        return [(([It(f"s_add_u32 m0, s{sRS}, {t.slot*32768 + c*8192}", "s")] if i == 0 else []) +
                 [It(f"s_mov_b32 s{sSO}, {t.base + i*8*3584 + c*128 - i*1024}", "s")],
                 [It(f"buffer_load_dwordx4 v{vDW2}, {srd(SW3)}, s{sSO} offen offset:{i*1024} lds", "g", t.tag)])
                for c in range(3) for i in range(2)]

    REL, RAW, DS = O_("rel", 13), O_("raw", 13), O_("ds", 3)
    DG = {(REL + 1 + DS * k) % 24 for k in range(6)}
    ms, gaps = [], own_x1n(24)
    add = lambda g, it: gaps.setdefault(g, []).append(it)
    for s in range(8):
        t, g0 = mt[s], 24 * s
        for nb in range(3):
            for tb in range(4):
                for n, ks in enumerate(range(2) if not tb & 1 else range(1, -1, -1)):
                    d = vr(AC3(nb, tb), 4)
                    ms.append(It(f"{MF} {d}, {ar(af(s,nb,ks),4)}, {bf(s,ks,tb)}, {d if s or n else 0}", "m",
                                 need=[("A", t.tag, nb), ("B", mt[0].tag, s, tb)]))
        if s == 0:
            for k, it in enumerate(a3(0, 1)[2:] + a3(0, 2)): add((0, 0, 1, 1, 2, 2)[k], it)
        add(g0 + REL - 1, It(None, "s", need=[("A", t.tag, nb) for nb in range(3)]))
        add(g0 + REL, It("s_barrier", "s"))
        if s < 7:
            u = mt[s + 1]
            add(g0 + RAW - 1, It(None, "s", need=[u.tag] + ([("xn", 0), ("xn", 1)] if s == 2 else [])))
            if RAW != REL: add(g0 + RAW, It("s_barrier", "s"))
            c = [g for g in range(RAW + 1, 24) if g not in DG]
            rd = a3(s + 1, 0) + a3(s + 1, 2) + a3(s + 1, 1)
            for k, it in enumerate(rd): add(g0 + max(c[k * len(c) // 12], 16 if k >= 8 else 0), it)
            rd = [It(f"ds_read_b128 {bf(s+1,ks,tb)}, v{vBA} offset:{u.kp*8192 + ks*4096 + tb*1024}", "l",
                     ("B", mt[0].tag, s + 1, tb)) for tb in range(4) for ks in range(2)]
            c = [g for g in range(0 if s else 4, RAW + 1) if g not in DG]
            for k, it in enumerate(rd): add(g0 + c[k * len(c) // 8], it)
        add(g0 + 19, hop())
        if O_("jit2", 0): add(g0 + 4, jitter_item())
        if SSET == "odd": add(g0, stamp_item())
    if SSET == "odd": add(len(ms) - 1, stamp_item())
    add(0, It(f"s_mul_i32 s{sT}, s{sW}, {16*3584 - 128}", "s")); add(0, It(f"v_add_u32 v{vDW2}, s{sT}, v{vDW2}", "v"))
    add(1, It("s_barrier", "s"))
    pending, prev = stage(2), 1
    for g in range(3, len(ms)):
        if g % 24 == REL + 1: pending += stage(g // 24 + 3)
        if pending and g - prev >= 2 and (g % 24 in DG or len(pending) > 6 or g < REL):
            place(add, g, pending.pop(0), prev); prev = g
    HW = (T + 8, T + 9, T + 15)

    def addr():
        P.put(gate(0, 7 * 24 + 12))
        e(f"s_mul_i32 s{sT}, s{sW}, 3")
        for nb in range(3):
            e(f"s_lshr_b32 s{sT+1}, s{sT}, 1"); e(f"s_lshl_b32 s{sT+1}, s{sT+1}, 12"); e(f"s_and_b32 s{sT+2}, s{sT}, 1")
            e(f"s_lshl3_add_u32 s{sT+1}, s{sT+2}, s{sT+1}"); e(f"v_add_u32 v{HW[nb]}, s{sT+1}, v{vBA}"); e(f"s_add_u32 s{sT}, s{sT}, 1")
        e(f"s_sub_u32 s{sT}, s{sRING}, {RING + 65536}")
        for nb in range(4):
            e(f"v_add_u32 v{vAA+nb}, s{sT}, v{vAS+nb}"); e(f"v_add_u32 v{vAA2+nb}, 0x10000, v{vAA+nb}")
    fill = cap(addr)
    P.run_gaps(ms, gaps, fill, gmin=4)
    P.drain(fill)

    def act():
        for tb in range(4):
            gelu(12 * tb, 12, 64 + 12 * tb, lambda i: 12 * tb + i, first=tb == 0)
            for nb in range(3):
                P.lds(f"ds_write_b64 v{HW[nb]}, {vr(12*tb + 2*nb,2)} offset:{tb*1024}", "hw")
    mlp_tail(act, pending, 6, (212, 160))


e(f"s_bitcmp1_b32 s{sG}, 0"); e("s_cbranch_scc1 L_odd")
lab("L_even")
state = (list(P.lq), list(P.vq), set(P.used), set(P.ever), nstamp[0])
mlp_even()
after = (list(P.lq), list(P.vq), set(P.used), set(P.ever), nstamp[0])
main, P.L = P.L, []
P.lq, P.vq, P.used, P.ever, nstamp[0] = state
mlp_odd()
e("s_branch L_join")
assert (P.lq, P.vq) == after[:2] and (SSET or nstamp[0] == after[4]), (P.lq, P.vq, after[:2])
odd_text, P.L = P.L, main
P.lq, P.vq, P.used, P.ever, nstamp[0] = after
lab("L_join")
ph_pack(range(8, 10))
gaps = {g: [] for g in range(64)}
for f in range(8, 16): gaps[16 * (f // 4 - 1) + f % 4] += frag_reads(T0 - 1, f)
for f in range(4):
    gaps[48 + f] += frag_reads(T0, f); issued.add((T0, f))
for k, grp in enumerate(kv_dma("V", T0) + kv_dma("K", T0 + 2)): place(add1, 2 + 4 * k, grp, 4 * k - 2)
fill = cap(ph_pack, range(10, 14)) + cap(first_half, False, (20, 36)) + cap(ph_pack, range(14, 16))
P.run_gaps([m for m, _ in qk_mfmas(T0 - 1)], gaps, fill)
P.drain(fill)
P.wait([("K", T0 + 2), ("V", T0)] + [("F", T0, f) for f in range(4)]); e("s_barrier")
stamp()


XF = [244, 245, 246, 247, 248, 249, T + 10, T + 11]


def side2():
    paced(T0, 60, O_("sstep", 22), [lambda k=k: store_piece(ar(PHA(k), 4), WS_PH, *pieces[k], "phs") for k in range(16)])
    touch_off(T + 8, 4096, 1, 128, [(sG, 1 << 19)], T + 9)
    P.vm(f"buffer_load_dword a255, v{T+8}, {srd(SWO)}, 0 offen")
    code_touch()
    P.put(gate(26, 0)); set_flags(1, 2, ["phs"])
    x_offset(T + 8, 4)
    paced(26, 50, 20, [lambda i=i: P.vm(f"buffer_load_dwordx2 {vr(XF[2*i],2)}, v{T+8}, {srd(SX)}, s{sXF} offen "
                                        f"offset:{(i//2)*128 + (i%2)*32}", "xf") for i in range(4)])
    P.put(gate(27, 40)); p_ph.issue(); o_addr()
    P.put(gate(28, 20)); p_ph.check()
    paced(28, 30, O_("lstep", 22), [lambda k=k: load_piece(WS_PH, ar(PHA(k), 4), k // 2, k % 2, "phl") for k in range(16)])


def o_addr():
    if not PA:
        e(f"v_add_u32 v{T+8}, s{sW4K}, v{vBA}")
        return
    x, y = vDW2, vDW4
    for d, (ro, rb), (co, cb) in ((T + 8, (4, 4), (8, 2)), (T + 9, (6, 4), (4, 2))):
        e(f"v_bfe_u32 v{x}, v{vBA}, {ro}, {rb}"); e(f"v_bfe_u32 v{d}, v{vBA}, {co}, {cb}")
        e(f"v_and_b32 v{y}, 1, v{x}"); e(f"v_xor_b32 v{d}, v{d}, v{y}")
        e(f"v_lshrrev_b32 v{y}, 3, v{x}"); e(f"v_lshlrev_b32 v{y}, 1, v{y}"); e(f"v_xor_b32 v{d}, v{d}, v{y}")
        e(f"v_and_b32 v{y}, 6, v{x}"); e(f"v_lshl_add_u32 v{d}, v{y}, 1, v{d}")
        e(f"v_lshlrev_b32 v{d}, 3, v{d}"); e(f"v_lshl_add_u32 v{d}, v{x}, 7, v{d}")
    e(f"v_add_u32 v{T+8}, s{sW4K}, v{T+8}")


fill = cap(side2)
run_tiles(T0, 31, fill, {T0: kv(f"V{T0+1}", f"K{T0+3}", f"K{T0+4}", f"V{T0+2}"), T0 + 1: kv(f"K{T0+5}", f"V{T0+3}", f"V{T0+4}")}, {O_("wo0", 29): ot[0].dma(), 30: ot[1].dma()}, {}, {}, {30: 99})


vOW, vOR = 208, 212


def o_stage(k, st):
    s, qb = k // 4, k % 4
    b = 8 * (k % 8)
    if "o" in opt.get("cut", "") and k >= 8 and st < 3: return
    if "O" in opt.get("cut", "") and k >= 2: return
    if st == 0:
        for h in range(2):
            for j in range(4): e(f"v_accvgpr_read_b32 v{b+4*h+j}, a{O(2*s+h,qb)+j}")
    elif st == 1:
        for j in range(0, 8, 2):
            e(f"v_pk_mul_f32 {vr(b+j,2)}, {vr(b+j,2)}, {vr(NM(qb) + j%4,2)}" if PA else
              f"v_pk_mul_f32 {vr(b+j,2)}, {vr(b+j,2)}, {vr(NM(qb),2)} op_sel_hi:[1,0]")
    elif st == 2:
        for j in range(4): e(f"v_cvt_pk_bf16_f32 v{b+j}, v{b+2*j}, v{b+2*j+1}")
    elif PA:
        P.lds(f"ds_write2st64_b64 v{vOW+qb}, {vr(b,2)}, {vr(b+2,2)} offset0:{32*s} offset1:{32*s+4}", "ow")
    else:
        P.lds(f"ds_write_b128 v{T+8}, {vr(b,4)} offset:{s*16384 + qb*1024}", "ow")


LREGS = [4 * qb + j for qb in range(4) for j in range(4 if PA else 1)]


def row_sums():
    for i in LREGS: e(f"v_accvgpr_read_b32 v{vR+i}, a{LACC(0)+i}")


def row_inverses():
    for i in LREGS:
        e(f"v_rcp_f32_dpp v{vR+i}, v{vR+i} row_newbcast:0 row_mask:0xf bank_mask:0xf" if PA and SPARSE else f"v_rcp_f32 v{vR+i}, v{vR+i}")


def vote():
    v = 56
    P.put(gate(31, 36))
    e(f"s_lshl_b32 s{sT+1}, s{sW}, 2"); e(f"s_add_u32 s{sT+1}, s{sT+1}, {RING + 32768}")
    e(f"v_mov_b32 v{v+4}, {f2u(-1.0 if FORCE_REDO else 2.0**64)}"); e(f"v_mov_b32 v{v+5}, s{sT+1}"); e(f"v_mov_b32 v{v+6}, {RING + 32768}")
    P.put(gate(31, 42))
    row_sums()
    r = [vR + i for i in LREGS]
    e(f"v_maximum3_f32 v{v}, v{r[0]}, v{r[1]}, v{r[1]}")
    for i in range(2, len(r), 2): e(f"v_maximum3_f32 v{v}, v{v}, v{r[i]}, v{r[i+1]}")
    e(f"v_cmp_nle_f32 vcc, v{v}, v{v+4}")
    e(f"s_cmp_lg_u64 vcc, 0\n    s_cselect_b32 s{sT}, 1, 0", k="v")
    e(f"v_mov_b32 v{v}, s{sT}")
    P.lds(f"ds_write_b32 v{v+5}, v{v}", "vote")
    inv = P.rec; n0 = len(inv)
    row_inverses()
    k = n0 + min(6, len(LREGS))
    inv[k:k] = [It(None, "s", need=["vote"]), It("s_barrier", "s"), It(f"ds_read_b128 {vr(v,4)}, v{v+6}", "l", "votes")]
    e(f"v_or3_b32 v{v}, v{v}, v{v+1}, v{v+2}", need=["votes"]); e(f"v_or_b32 v{v}, v{v}, v{v+3}")
    e(f"v_readfirstlane_b32 s{sT}, v{v}")


fill = cap(vote)
attn_iter(31, [], fill)
P.drain(fill)
e(f"s_cmp_lg_u32 s{sT}, 0"); e("s_cbranch_scc1 L_redo")
lab("L_att_done")
stamp()

if PA:
    for qb in range(4):
        e(f"v_xor_b32 v{vOW+qb}, {32*qb}, v{T+8}"); e(f"v_xor_b32 v{vOR+qb}, {32*qb}, v{T+9}")
lag = [int(x) for x in opt.get("olag", "0,1,2,3").split(",")]
WG = O_("owg", 1)
for k in range(16 + lag[3] + WG):
    for st in range(3):
        if 0 <= k - lag[st] < 16: o_stage(k - lag[st], st)
    if (k - lag[3]) % WG == WG - 1:
        for j in range(k - lag[3] - WG + 1, k - lag[3] + 1):
            if 0 <= j < 16: o_stage(j, 3)
if SSET == "o": stamp(0)
gemm_pre(ot, 0)
P.wait(["ow"]); e("s_barrier")
if SSET == "o": stamp(0)
stamp()
OACC = lambda nh, nb, tb: 64 + ACC(nh, nb, tb)
PSR = lambda g, nh: nh * 32 + g * 4


def o_side():
    P.put(gate(0, 32 * 8 + 4))
    for p in pieces[:8]: pack(OACC, *p)
    for p, g in zip(pieces, [int(x) for x in opt.get("s0g", "440,448,456,464,472,480,488,496").split(",")]):
        P.put(gate(0, g))
        store_piece(vr(OACC(0, 2 * p[2], p[1]), 4), WS_PS, *p, "s0s")


fill = cap(o_side)
pending = ot[2].dma()
gemm(ot, 0, 16, OACC, pending, (0, 32, 64, 96, (vr, 0), (vr, 32))[:O_("obs", 6)], fill=fill, breg=vOR if PA else vBA, btr=PA)
P.drain(fill)
stamp()
for k, p in enumerate(pieces[8:]):
    pack(OACC, *p); store_piece(vr(OACC(1, 2 * p[2], p[1]), 4), WS_PS, *p, "s1s")
    if k == O_("f0k", 3): set_flags(2, 2, ["s0s"])
vY, vS, vG, vX = 64, 80, 96, 112
for i in range(8): e(f"v_accvgpr_read_b32 v{vG+i}, a{aXN+i}")
for i in range(8):
    e(f"v_lshlrev_b32 v{vY+2*i}, 16, v{vG+i}"); e(f"v_and_b32 v{vY+2*i+1}, 0xffff0000, v{vG+i}")
for i in range(16): e(f"v_fma_f32 v{vY+i}, v{vY+i}, v{vRSTD}, v{vNMEAN}")
for k in range(17):
    if k < 16:
        for j in range(4): e(f"v_accvgpr_read_b32 v{vG + 4*(k%2) + j}, a{PHA(k)+j}", need=[("phl", k // 2, k % 2)])
    if k: add_piece(vY + 8 * ((k - 1) % 2), vG + 4 * ((k - 1) % 2), False, ())
p_s0.issue()
for i in range(16): e(f"v_mul_f32 v{vG+i}, s{sNL2E}, v{vY+i}")
for i in range(16): e(f"v_exp_f32 v{vG+i}, v{vG+i}")
e(f"s_mov_b32 s{sT}, {f2u(GA_ * 2.0**OSH)}")
for i in range(16): e(f"v_fma_f32 v{vG+i}, v{vG+i}, s{sT}, s{sT}")
for i in range(16): e(f"v_rcp_f32 v{vG+i}, v{vG+i}")
for i in range(0, 16, 2): e(f"v_pk_mul_f32 {vr(vG+i,2)}, {vr(vG+i,2)}, {vr(vY+i,2)}")
for i in range(8):
    e(f"v_lshlrev_b32 v{vX+2*i}, 16, v{XF[i]}", need=["xf"]); e(f"v_and_b32 v{vX+2*i+1}, 0xffff0000, v{XF[i]}")
e(f"v_bfe_u32 v200, v{vTOK}, 4, 4"); e("v_lshlrev_b32 v200, 10, v200"); e(f"v_bfe_u32 v201, v{vBA}, 8, 2")
e("v_lshl_add_u32 v200, v201, 4, v200")
set_flags(3, 2, ["s1s"])
stamp(2)
p_s0.check()
for g in range(8): load_piece(WS_PS, vr(PSR(g, 0), 4), g, 0, "psl")
p_s1.issue()


def finish(nh):
    for g in range(8): add_piece(vS + 8 * nh, PSR(g, nh), g == 0, [("psl", g, nh)])
    for i in range(8 * nh, 8 * nh + 8, 2): e(f"v_pk_fma_f32 {vr(vG+i,2)}, {vr(vG+i,2)}, {vr(vS+i,2)}, {vr(vX+i,2)}")
    d = 204 + 4 * nh
    for i in range(4): e(f"v_cvt_pk_bf16_f32 v{d+i}, v{vG+8*nh+2*i}, v{vG+8*nh+2*i+1}")
    for sw in ("v_permlane32_swap_b32", "v_permlane16_swap_b32"):
        for j in range(2): e(f"{sw} v{d+j}, v{d+2+j}")
    P.vm(f"buffer_store_dwordx4 {vr(d,4)}, v200, {srd(SOUT)}, s{sXF} offen offset:{nh*128}")


p_s1.check()
stamp()
for g in range(8): load_piece(WS_PS, vr(PSR(g, 1), 4), g, 1, "psl")
finish(0)
finish(1)
if AMP:
    P.wait_all(); stamp()
    e(f"s_sub_u32 s{sST}, s{sST+2}, s{sST}")
    e(f"s_lshr_b32 s{sST}, s{sST}, 5" if AMP[3] else f"s_lshl_b32 s{sST}, s{sST}, {AMP[2]}")
    if "ampsel" in opt:
        e(f"s_lshr_b32 s{sT}, {opt['ampsel']}, s{sG}"); e(f"s_and_b32 s{sT}, s{sT}, 1"); e(f"s_mul_i32 s{sST}, s{sST}, s{sT}")
    e(f"s_memrealtime {sr(sST+2,2)}"); e("s_waitcnt lgkmcnt(0)")
    lab("L_amp")
    e(f"s_memrealtime {sr(sST+4,2)}"); e("s_waitcnt lgkmcnt(0)")
    e(f"s_sub_u32 s{sST+4}, s{sST+4}, s{sST+2}"); e(f"s_cmp_lt_u32 s{sST+4}, s{sST}"); e("s_cbranch_scc1 L_amp")
if STAMP:
    P.wait_all()
    stamp()
    e(f"s_lshl_b32 s{sT}, s2, 2"); e(f"s_add_u32 s{sT}, s{sT}, s{sW}"); e(f"s_lshl_b32 s{sT}, s{sT}, 8")
    e(f"s_add_u32 s{sT}, s{sT}, {WS_ST}"); e(f"v_lshrrev_b32 v0, 2, v{vBA}")
    P.vm(f"buffer_store_dword v{vSTAMP}, v0, {srd(SWS)}, s{sT} offen")
e("s_endpgm")

lab("L_side")
NPP = O_("npp", 1)
for p in slow_paths:
    lab(f"L_slow_{p.name}")
    if NPP > 1 and p.name in ("s0", "s1"):
        regs = [f"v{216 + i}" for i in range(NPP)]
        ld = lambda i: e(p.loads[0].replace(f"v{vPOLL},", regs[i % NPP] + ","))
        for i in range(NPP - 1):
            ld(i); e(f"s_sleep {O_('pps', 5)}")
        lab(f"L_spin_{p.name}")
        for i in range(NPP):
            ld(i + NPP - 1); e(f"s_waitcnt vmcnt({NPP - 1})")
            e(p.tests[0].replace(f"v{vPOLL}", regs[i])); e(f"s_cbranch_vccz L_back_{p.name}")
        e(f"s_add_u32 s{sSPIN}, s{sSPIN}, 1"); e(f"s_cmp_gt_u32 s{sSPIN}, 0x200000")
        e(f"s_cbranch_scc0 L_spin_{p.name}"); e(f"s_branch L_back_{p.name}")
        continue
    e("s_sleep 1")
    for l in p.loads: e(l)
    e(f"s_add_u32 s{sSPIN}, s{sSPIN}, 1")
    e("s_waitcnt vmcnt(0)")
    for t in p.tests: e(t)
    e(f"s_cmp_gt_u32 s{sSPIN}, 0x200000"); e(f"s_cbranch_scc1 L_back_{p.name}")
    e(f"s_cbranch_vccnz L_slow_{p.name}")
    e(f"s_branch L_back_{p.name}")

lab("L_redo")
P.lq, P.vq = [], []
for s in range(4): e(f"v_add_u32 v{KA(s)}, 49152, v{KA(s)}")
for qb in range(4): e(f"v_mov_b32 v{NM(qb)}, 0xff800000")


def redo_tile(kinds, zero):
    P.used = set()
    P.wait_all(); e("s_barrier")
    for kind, lds in kinds: flush(kv_dma(kind, 0, lds=lds, so=f"s{sCNT}"))
    P.wait_all(); e("s_barrier")
    mf = [m for m, _ in qk_mfmas(2, zero=zero)]
    for half in range(2):
        for f in range(8 * half, 8 * half + 8): P.puts(frag_reads(2, f))
        P.puts(mf[32 * half:32 * half + 32])


e(f"s_mov_b32 s{sCNT}, 0")
lab("L_rmax")
redo_tile([("K", 98304)], True)
for qb in range(4):
    regs = [S(1, kb, qb) + i for kb in range(4) for i in range(4)]
    for i in range(0, 16, 2): e(f"v_max3_f32 v{NM(qb)}, v{NM(qb)}, v{regs[i]}, v{regs[i+1]}")
e(f"s_add_u32 s{sCNT}, s{sCNT}, 16384"); e(f"s_cmp_lt_u32 s{sCNT}, 0x80000"); e("s_cbranch_scc1 L_rmax")
allreduce("v_max_f32", [NM(qb) for qb in range(4)], [NM(qb) + 1 for qb in range(4)])
for qb in range(4):
    for i in (1, 2, 3, 0): e(f"v_sub_f32 v{NM(qb)+i}, 0, v{NM(qb)}")
for i in list(range(128)) + list(range(192, 208)): e(f"v_accvgpr_write_b32 a{i}, 0")
e(f"s_mov_b32 s{sCNT}, 0")
lab("L_rpv")
redo_tile([("K", 98304), ("V", 114688)], False)
for half in range(2):
    ex, post = sm_stream(1, half)
    P.puts(ex); P.puts([x for p in post for x in p])
mf = [m for m, _ in pv_mfmas(3)]
for half in range(2):
    for f in range(16 + 8 * half, 24 + 8 * half): P.puts(frag_reads(3, f))
    P.puts(mf[36 * half:36 * half + 36])
e(f"s_add_u32 s{sCNT}, s{sCNT}, 16384"); e(f"s_cmp_lt_u32 s{sCNT}, 0x80000"); e("s_cbranch_scc1 L_rpv")
row_sums(); row_inverses()
e("s_branch L_att_done")
if HOP: P.raw(".p2align 12")
lab("L_odd")
P.L += odd_text
lab("L_end")
e("s_endpgm")
P.L += ['.section .rodata,"a"', ".p2align 6", f".amdhsa_kernel {NAME}",
        "  .amdhsa_next_free_vgpr 512", "  .amdhsa_next_free_sgpr 102", "  .amdhsa_accum_offset 256",
        "  .amdhsa_group_segment_fixed_size 0", "  .amdhsa_kernarg_size 104", "  .amdhsa_user_sgpr_count 2",
        "  .amdhsa_user_sgpr_kernarg_segment_ptr 1", "  .amdhsa_system_sgpr_workgroup_id_x 1",
        "  .amdhsa_float_denorm_mode_32 3", ".end_amdhsa_kernel"]
lines = "\n".join(P.L).split("\n")
ABL = opt.get("abl", "")
if ABL:
    i0 = next(i for i, l in enumerate(lines) if "output projection" in l); i1 = lines.index("L_side:")
    j0 = max(i for i in range(i0, i1) if MF in lines[i])
    keep = []
    for i, l in enumerate(lines):
        if i0 < i < i1:
            if "p" in ABL and "s_cbranch_vccnz L_slow_s" in l: continue
            if "w" in ABL and i > j0 and "vmcnt" in l and "v_dot2" not in lines[i + 1]: continue
            if "l" in ABL and "buffer_load_dwordx4" in l and "sc1" in l: continue
            if "s" in ABL and "buffer_store_dwordx4" in l and "sc1" in l: continue
        keep.append(l)
    lines = keep
if opt.get("tcf"): lines = [l + " " + opt["tcf"] if "_load_dword a255" in l and "sc1" not in l and ", off" not in l else l for l in lines]
lines, added = fix_hazards(lines)
nhop = 0
if HOP: lines, nhop = add_page_hops(lines, sW)
lines = [l for l in lines if "@hop" not in l]
if O_("short", 1): lines = compress(lines)
text = "\n".join(lines) + "\n"
open(OUT_PATH, "w").write(text)
print(f"{OUT_PATH}: {len(lines)} lines, {len(text)} bytes, {added} wait states padded, {nstamp[0]} stamps, {nhop} hops", file=sys.stderr)
```

```python
import math
import struct
import sys
from asmlib5 import *

OUT_PATH = sys.argv[1]
opt = dict(a.split("=") for a in sys.argv[2:])
O_ = lambda k, d: int(opt.get(k, d))
STAMP = O_("stamp", 0)
SSET = opt.get("sset", "")
FORCE_REDO = O_("redo", 0)
QPERM = O_("qperm", 1)
PA = O_("pa", 1)
OB = O_("ob", -19)
sOB = 100
OSH = O_("osh", 0)
XREG = O_("xreg", 1)
SPARSE = O_("sparse", 1)
AHEAD = O_("ahead", 10)
AMP = [int(x) for x in opt["amp"].split(",")] if "amp" in opt else None

NAME = "recurrent_scan__gqa_block_cached__mixer_s_mlp__prompt_kernel"
MF = "v_mfma_f32_16x16x32_bf16"
f2u = lambda x: "0x%08x" % struct.unpack("<I", struct.pack("<f", x))[0]
LOG2E = math.log2(math.e)
QSCALE = LOG2E / math.sqrt(128.0)
GC1 = -2.0 * math.sqrt(2.0 / math.pi) * LOG2E
GC2 = GC1 * 0.044715
EPS = 1e-5
GA_ = (-GC2) ** (1.0 / 3.0)
GK = -GC1 / GA_

SX, SK, SV, SWS, SWQ, SWO, SW1, SW2, SW3, SW4, SOUT, SDBG = range(4, 52, 4)
sG, sM, sW = 52, 53, 54
sT = 55
sW1K, sW4K, sRING, sSO = 60, 61, 62, 63
sSF, sCNT, sSPIN, sHO, sPP, sPC, sFL, sF0, sF1, sSTP, sSTC = range(64, 75)
sLO, sHI, sONE2, sC1, sC2, sNL2E, sF2, sMSK, sKS, sF3, sTB, sSTF, sXF, sRS, sW3B = range(75, 90)
sST = 92
srd = lambda b: sr(b, 4)

WS_H, WS_X1, WS_PS, WS_PH, WS_FL, WS_SS, WS_ST = 0, 0x200000, 0x400000, 0x1400000, 0x2400000, 0x2500000, 0x4000000
PLANE = 131072

vBA, vTOK, vNMEAN, vRSTD, vLANE, vSTAMP, vCODE, vAS, vDW2 = 255, 254, 253, 252, 251, 250, 248, 244, 243
T = 226
vAA, vAA2 = T, T + 4
vBX, vWA, vSC1, vDWQ, vDW1 = T + 8, T + 9, T + 12, T + 14, T + 15
vPA, vPOLL, vONE, vDW4, vDWO = T + 16, T + 15, T + 14, T + 13, T + 12
vTC = T + 10
XR = 128
G12 = 192
S = lambda buf, kb, qb: buf * 64 + ((kb >> 1) * 4 + qb) * 8 + (kb & 1) * 4
PR = lambda buf, ks, qb: buf * 64 + (ks * 4 + qb) * 8
Q = lambda qb, s: 128 + (qb * 4 + s) * 4
NM = lambda qb: 192 + 4 * qb
KA = lambda s: 208 + s
VA = lambda db: 212 + db
KG = lambda i: 220 + i
VG = lambda i: 224 + (i & 1)
vR = NM(0)
O = lambda db, qb: (db * 4 + qb) * 4
FR = lambda f: 128 + (f % 8) * 4
HB = lambda ks: 160 + (ks % 8) * 4
LACC = lambda qb: 192 + 4 * qb
aONES, aG2, aXN = 208, 212, 244
GA = lambda i: 228 + (i % 4) * 4
AF = lambda f: 128 + (f % 8) * 4
PHA = lambda k: (160, 212)[k // 8] + (k % 8) * 4
T0 = 22
RING, VOFF = 65536, 65536

P = Prog()
e, lab, cap = P.e, P.lab, P.capture
slow_paths = []
nstamp = [0]


JIT = O_("jitter", 0)
njit = [0]


def jitter():
    i = njit[0]; njit[0] += 1
    e(f"s_memrealtime {sr(96,2)}"); P.wait_all(vm=False)
    e(f"s_lshr_b32 s96, s96, 14"); e(f"s_lshl_b32 s97, s2, 2" if JIT & 1 else "s_mov_b32 s97, s2")
    if JIT & 1: e(f"s_add_u32 s97, s97, s{sW}")
    e(f"s_add_u32 s96, s96, s97"); e(f"s_add_u32 s96, s96, {i * 7919 + 13}"); e("s_mul_i32 s96, s96, 0x9e3779b1")
    e("s_mov_b32 s98, s96")
    e(f"s_lshr_b32 s96, s96, {32 - (JIT >> 1)}")
    lab(f"L_jit{i}")
    e("s_sleep 8"); e("s_sub_u32 s96, s96, 1"); e(f"s_cbranch_scc0 L_jit{i}")


def jitter_item():
    i = njit[0]; njit[0] += 1
    return It(f"s_mul_i32 s98, s98, 0x41c64e6d\n    s_add_u32 s98, s98, 12345\n    s_lshr_b32 s99, s98, 27\n"
              f"    s_sub_u32 s99, s99, 24\n    s_cbranch_scc1 L_jx{i}\nL_jw{i}:\n    s_sleep {O_('jit2', 0)}\n"
              f"    s_sub_u32 s99, s99, 1\n    s_cbranch_scc0 L_jw{i}\nL_jx{i}:", "s")


def stamp(level=1):
    if JIT and level == 1: jitter()
    if AMP and level == 1:
        i = nstamp[0]; nstamp[0] += 1
        if i in AMP[:2]:
            e(f"{'s_memtime' if AMP[3] else 's_memrealtime'} {sr(sST + 2*AMP.index(i),2)}"); P.wait_all(vm=False)
        return
    if STAMP < level or (SSET and level != 0):
        return
    i = nstamp[0]; nstamp[0] += 1
    e(f"s_memtime {sr(sST,2)}"); e(f"s_memrealtime {sr(sST+2,2)}")
    P.wait_all(vm=False)
    e(f"v_writelane_b32 v{vSTAMP}, s{sST}, {2*i}")
    e(f"v_writelane_b32 v{vSTAMP}, s{sST+2}, {2*i+1}")


def stamp_item():
    i = nstamp[0]; nstamp[0] += 1
    return It(f"s_memtime {sr(sST,2)}\n    s_memrealtime {sr(sST+2,2)}\n    s_waitcnt lgkmcnt(0)\n"
              f"    v_writelane_b32 v{vSTAMP}, s{sST}, {2*i}\n    v_writelane_b32 v{vSTAMP}, s{sST+2}, {2*i+1}", "s")


def mk_srd(d, p, size):
    e(f"s_mov_b32 s{d}, s{p}"); e(f"s_mov_b32 s{d+1}, s{p+1}"); e(f"s_mov_b32 s{d+2}, {size}"); e(f"s_mov_b32 s{d+3}, 0x20000")


def sum_terms(dst, *terms):
    first = True
    for t in terms:
        if isinstance(t, int):
            e(f"s_add_u32 s{dst}, s{dst}, {t}"); continue
        r, k = t
        if k == 0:
            e(f"s_mov_b32 s{dst}, 0"); first = False; continue
        d = dst if first else sT + 4
        e(f"s_lshl_b32 s{d}, s{r}, {k.bit_length()-1}" if k & (k - 1) == 0 else f"s_mul_i32 s{d}, s{r}, {k}")
        if not first: e(f"s_add_u32 s{dst}, s{dst}, s{d}")
        first = False


def allreduce(op, regs, tmps, k=None):
    for sw in ("v_permlane32_swap_b32", "v_permlane16_swap_b32"):
        for r, t in zip(regs, tmps): e(f"v_mov_b32 v{t}, v{r}")
        for r, t in zip(regs, tmps): e(f"{sw} v{r}, v{t}", k=k)
        for r, t in zip(regs, tmps): e(f"{op} v{r}, v{r}, v{t}")


def masked(mask, txt, tag=None, lds=False):
    (P.lds if lds else P.vm)(f"s_mov_b64 exec, {mask}\n    {txt}\n    s_mov_b64 exec, -1", tag)


class Poll:
    def __init__(self, name, loads, tests):
        self.name, self.loads, self.tests = name, loads, tests
        slow_paths.append(self)

    def issue(self):
        for l in self.loads: P.vm(l, self.name)

    def check(self):
        for i, t in enumerate(self.tests): e(t, need=[self.name] if i == 0 else ())
        e(f"s_cbranch_vccnz L_slow_{self.name}\nL_back_{self.name}:", k="v")


def flag_poll(name, s_rd, soff, target):
    return Poll(name, [f"buffer_load_dword v{vPOLL}, v{vPA}, {srd(s_rd)}, {soff} offen sc1"],
                [f"v_cmp_gt_u32 vcc, {target}, v{vPOLL}"])


def set_flags(stage, nlanes, need, val=1):
    e(f"v_mov_b32 v{vONE}, {val}")
    e(f"s_add_u32 s{sSF}, s{sFL}, {stage * 1024}")
    P.wait(need)
    masked((1 << nlanes) - 1, f"buffer_store_dword v{vONE}, v{vLANE}, {srd(SWS)}, s{sSF} offen sc1")


def interleave(code, side, every):
    side = list(side)
    for k, it in enumerate(code):
        if side and k % every == 0: P.puts(side.pop(0))
        P.put(it)
    for x in side: P.puts(x)


def gelu(base, n, tmp, dst, first):
    pairs = range(0, n, 2)
    if "g" in opt.get("cut", ""):
        for i in pairs: e(f"v_cvt_pk_bf16_f32 v{dst(i//2)}, v{base+i}, v{base+i+1}")
        return
    if first: e(f"v_mov_b32 v{vTC}, s{sC1}")
    for i in pairs: e(f"v_pk_fma_f32 {vr(tmp+i,2)}, {vr(base+i,2)}, {vr(base+i,2)}, {vr(vTC,2)} op_sel_hi:[1,1,0]")
    for i in pairs: e(f"v_pk_mul_f32 {vr(tmp+i,2)}, {vr(tmp+i,2)}, {vr(base+i,2)} neg_lo:[0,1] neg_hi:[0,1]")
    for i in range(n): e(f"v_exp_f32 v{tmp+i}, v{tmp+i}")
    for i in pairs: e(f"v_pk_add_f32 {vr(tmp+i,2)}, {vr(tmp+i,2)}, 1.0 op_sel_hi:[1,0]")
    for i in range(n): e(f"v_rcp_f32 v{tmp+i}, v{tmp+i}")
    for i in pairs: e(f"v_pk_mul_f32 {vr(tmp+i,2)}, {vr(tmp+i,2)}, {vr(base+i,2)}")
    for i in pairs: e(f"v_cvt_pk_bf16_f32 v{dst(i//2)}, v{tmp+i}, v{tmp+i+1}")


class Tile:
    def __init__(self, s_rd, voff, base, stride, perm, slot, tag, rows=64, kp=0, nh=0, half=32):
        self.__dict__.update(locals())

    def dma(self):
        out = []
        for i in range(self.rows // 8):
            row = ((0, 16, 4, 20)[i & 3] if self.perm else 8 * (i & 3)) + self.half * (i >> 2)
            so = self.base + row * self.stride - (i & 3) * 1024
            pre = [It(f"s_add_u32 m0, s{sRING}, {self.slot * 32768 + (i >> 2) * 4096}", "s")] if i % 4 == 0 else []
            out.append((pre + [It(f"s_mov_b32 s{sSO}, {so}", "s")],
                        [It(f"buffer_load_dwordx4 v{self.voff}, {srd(self.s_rd)}, s{sSO} offen "
                            f"offset:{(i & 3) * 1024} lds", "g", self.tag)]))
        return out


def place(add, g, grp, prev, avoid=()):
    pre, its = grp
    c = [h for h in range(max(prev + 1, 0), g) if h not in avoid][-len(pre):] if pre else []
    for k, it in enumerate(pre): add(c[k] if len(c) == len(pre) else max(g - len(pre) + k, prev + 1, 0), it)
    for it in its: add(g, it)


def dma_voff(dst, stride, perm, s_base, a):
    b = a + 1
    e(f"v_lshrrev_b32 v{a}, 10, v{vLANE}")
    e(f"v_bfe_u32 v{b}, v{vBA}, 4, 3")
    e(f"v_and_b32 v{dst}, 6, v{a}"); e(f"v_xor_b32 v{b}, v{b}, v{dst}")
    if perm:
        e(f"v_and_b32 v{dst}, 4, v{a}"); e(f"v_add_u32 v{a}, v{a}, v{dst}")
    e(f"v_mul_u32_u24 v{a}, {stride}, v{a}")
    e(f"v_lshl_add_u32 v{a}, v{b}, 4, v{a}")
    e(f"v_add_u32 v{dst}, {s_base}, v{a}")


def a_reads(t, ti, nb):
    base = (vAA2 if t.slot == 2 else vAA) + nb
    off = (t.slot % 2) * 32768 if t.slot < 2 else 0
    return [It(f"ds_read_b64_tr_b16 {ar(AF(nb*2+ks) + 2*h, 2)}, v{base} offset:{off + ks*4096 + h*2048}", "l",
               ("A", t.tag, nb), need=[t.tag]) for ks in range(t.rows // 32) for h in range(2)]


def gemm_pre(tiles, i0):
    P.puts(a_reads(tiles[i0], i0, 0))


def gemm(tiles, i0, n, acc, pending, bf, breg=vBA, extra=None, fill=None, over=0, opening=None, dma0=0, btr=False):
    bf = [x if isinstance(x, tuple) else (ar, x) for x in bf]
    BF = lambda s, ks, tb, o=0, w=4: bf[grp[s] % len(bf)][0](bf[grp[s] % len(bf)][1] + (ks * 4 + tb) * 4 + o, w)
    ms, gaps, start, grp, held, fresh = [], {}, [], [], {}, []
    seen = set()
    for s, ti in enumerate(range(i0, i0 + n)):
        t = tiles[ti]
        fresh.append(t.kp not in held)
        if fresh[s]:
            k = max(grp, default=-1) + 1
            while s and k % len(bf) == grp[s - 1] % len(bf): k += 1
            held = {kp: g for kp, g in held.items() if g % len(bf) != k % len(bf)}
            held[t.kp] = k
        grp.append(held[t.kp])
        start.append(len(ms))
        nks = t.rows // 32
        for nb in range(4):
            for tb in range(4):
                for ks in (range(nks) if not tb & 1 else range(nks - 1, -1, -1)):
                    d = vr(acc(t.nh, nb, tb), 4)
                    c = d if (t.nh, nb, tb) in seen else "0"
                    seen.add((t.nh, nb, tb))
                    ms.append(It(f"{MF} {d}, {ar(AF(nb*2+ks),4)}, {BF(s,ks,tb)}, {c}", "m",
                                 need=[("A", t.tag, nb), ("B", tiles[i0].tag, grp[s], tb)]))
    start.append(len(ms))

    def b_reads(s):
        t = tiles[i0 + s]
        if btr:
            return [It(f"ds_read_b64_tr_b16 {BF(s,ks,tb,2*h,2)}, v{breg+tb} offset:{t.kp*8192 + ks*4096 + h*2048}",
                       "l", ("B", tiles[i0].tag, grp[s], tb)) for tb in range(4) for ks in range(2) for h in range(2)]
        return [It(f"ds_read_b128 {BF(s,ks,tb)}, v{breg} offset:{t.kp*8192 + ks*4096 + tb*1024}", "l",
                   ("B", tiles[i0].tag, grp[s], tb)) for tb in range(4) for ks in range(t.rows // 32)]

    add = lambda g, it: gaps.setdefault(g, []).append(it)
    pre = b_reads(0)
    release = {}
    for s in range(n):
        ti = i0 + s; t = tiles[ti]
        per = (start[s + 1] - start[s]) // 4
        for nb in range(4):
            if s == 0 and nb == 0: continue
            rd = a_reads(t, ti, nb)
            for k, it in enumerate(rd):
                g = start[s] + per * nb - 6 - 2 * (len(rd) - 1 - k)
                if g < 0: pre.append(it)
                else: add(g, it)
        if ti + 3 < len(tiles) and tiles[ti + 3]: release[start[s] + 3 * per] = tiles[ti + 3]
        if s + 1 < n and fresh[s + 1]:
            s0 = s - 1 if s and not fresh[s] and grp[s - 1] % len(bf) != grp[s + 1] % len(bf) else s
            rd = b_reads(s + 1)
            cand = [g for g in range(start[s0], start[s + 1] - 6) if g % 4 == 3]
            if btr: cand = sorted(cand * 2)
            if len(cand) < len(rd): cand = sorted(cand + [start[s0] + 2 * k for k in range(len(rd) - len(cand))])
            step = len(cand) / len(rd)
            for k, it in enumerate(rd): add(cand[int(k * step)], it)
    if opening == "get": return a_reads(tiles[i0], i0, 0) + pre
    if opening == "done": pre = []
    prev = dma0 - 1
    for g in range(dma0, len(ms)):
        if g in release: pending += release[g].dma()
        nxt = min([r for r in release if r > g], default=len(ms) + 24)
        if pending and (g % 4 == 1 or (g % 4 == 3 and len(pending) > (nxt - g + 1) // 4)):
            place(add, g, pending.pop(0), prev); prev = g
    for g, its in (extra or {}).items():
        for it in its: add(g, it)
    for g in start[:-1]: add(g + 10, hop())
    if O_("jit2", 0):
        for g in start[:-1]: add(g + 4, jitter_item())
    if SSET == {id(qt): "q", id(ot): "o"}.get(id(tiles), "mlp"):
        for g in start[:-1] + [len(ms) - 1]: add(g, stamp_item())
    P.puts(pre)
    P.run_gaps(ms, gaps, fill, gmin=4, over=over)


def flush(pending):
    while pending:
        a, b = pending.pop(0)
        P.puts(a + b)


def shared_ops(kss, koff, acc, zero, afr, breg, bneed, name, i0=0):
    out = []
    for nb in range(4):
        for ks in kss:
            i = i0 + len(out)
            d = acc(nb)
            out.append((It(f"{MF} {d}, {ar(afr(i),4)}, {breg(ks)}, {0 if zero and not ks else d}", "m",
                           need=[(name, i)] + list(bneed(ks))),
                        [It(f"ds_read_b64_tr_b16 {ar(afr(i)+2*h,2)}, v{vAS+nb} offset:{(ks-koff)*4096 + h*2048}", "l",
                            (name, i)) for h in range(2)]))
    return out


def pack(acc, nh, tb, s, second=False, guard=False):
    a, b = acc(nh, 2 * s, tb), acc(nh, 2 * s + 1, tb)
    order = list(enumerate((a, a + 2, b, b + 2)))
    d = b if second else a
    for j, r in reversed(order) if second else order: e(f"v_cvt_pk_bf16_f32 v{d+j}, v{r}, v{r+1}")
    if guard:
        for j in range(4): e(f"v_min_u32 v{d+j}, -2, v{d+j}")


def store_piece(src, ws_base, nh, tb, s, tag):
    e(f"s_add_u32 s{sSF}, s{sPP}, {ws_base + (tb >> 1)*65536 + ((tb & 1) + 2*s)*2048}")
    P.vm(f"buffer_store_dwordx4 {src}, v{vBA}, {srd(SWS)}, s{sSF} offen offset:{nh*1024} sc1", tag)


def load_piece(ws_base, dst, g, nh, tag):
    e(f"s_add_u32 s{sSF}, s{sPC}, {ws_base + g*8192}")
    P.vm(f"buffer_load_dwordx4 {dst}, v{vBA}, {srd(SWS)}, s{sSF} offen offset:{nh*1024} sc1", (tag, g, nh))


def add_piece(dst, reg, first, need):
    for j in range(4):
        for h, sel in enumerate((sLO, sHI)):
            d = dst + 2 * j + h
            e(f"v_dot2_f32_bf16 v{d}, v{reg+j}, s{sel}, {0 if first else 'v%d' % d}", need=need)


def frag_reads(t, f, tail=False):
    if f < 16:
        kb, s = f // 4, f % 4
        off = ((t + 1) % 4) * 16384 + kb * 4096
        return [It(f"ds_read_b128 {ar(FR(f),4)}, v{KA(s)} offset:{off}", "l", ("F", t, f))]
    db, ks = ((f - 16) // 2, (f - 16) % 2) if not tail else ((f - 16) % 8, (f - 16) // 8)
    off = (t % 4) * 16384 + ks * 8192
    return [It(f"ds_read_b64_tr_b16 {ar(FR(f)+2*h,2)}, v{VA(db)} offset:{off + 4096*h}", "l", ("F", t, f))
            for h in range(2)]


def qk_mfmas(t, zero=False):
    out = []
    for kb in range(4):
        for qb in range(4):
            for n, s in enumerate(range(4) if not qb & 1 else range(3, -1, -1)):
                d = vr(S((t + 1) & 1, kb, qb), 4)
                c = d if n else ("0" if zero else vr(NM(qb), 4))
                out.append((It(f"{MF} {d}, {ar(FR(kb*4+s),4)}, {vr(Q(qb,s),4)}, {c}", "m",
                               need=[("F", t, kb * 4 + k) for k in range(4)]), kb * 4 + s))
    return out


def pv_one(t, db, qb, ks, f, need, zero=False):
    o = ar(O(db, qb), 4)
    ab = [ar(FR(f), 4), vr(PR(t & 1, ks, qb), 4)][::-1 if PA else 1]
    return (It(f"{MF} {o}, {ab[0]}, {ab[1]}, {(ar(GA(0), 4) if OB else 0) if zero else o}", "m", need=need), f)


def sum_one(t, qb, ks, zero=False):
    l = ar(LACC(qb), 4)
    ab = [ar(aONES, 4), vr(PR(t & 1, ks, qb), 4)][::-1 if PA else 1]
    return (It(f"{MF} {l}, {ab[0]}, {ab[1]}, {0 if zero else l}", "m"), None)


def pv_mfmas(t, zero=False):
    out = []
    for db in range(8):
        need = [("F", t, 16 + db * 2), ("F", t, 17 + db * 2)]
        for qb in range(4):
            for n, ks in enumerate(range(2) if not qb & 1 else range(1, -1, -1)):
                out.append(pv_one(t, db, qb, ks, 16 + db * 2 + ks, need, zero and not n))
        if db % 2 == 1 and not ("s" in opt.get("cut", "") and t):
            out += [sum_one(t, db // 2, ks, zero and not ks) for ks in range(2)]
    return out


def pv_mfmas_tail(t):
    out = []
    for ks in range(2):
        out += [sum_one(t, qb, ks) for qb in range(4)]
        for db in range(8):
            f = 16 + ks * 8 + db
            out += [pv_one(t, db, qb, ks, f, [("F", t, f)]) for qb in range(4)]
    return out


def sm_stream(buf, half):
    ex, post = [], []
    for qb in range(4):
        b = PR(buf, half, qb)
        for j in range(8):
            ex.append(It(f"v_exp_f32 v{b+j}, v{b+j}", "x"))
            post.append([It(f"v_cvt_pk_bf16_f32 v{b + j//2}, v{b+j-1}, v{b+j}", "v")] if j & 1 else [])
    return ex, post


def kv_dma(kind, tile, lds=None, so=None):
    reg, s_rd, base = (KG, SK, 0) if kind == "K" else (VG, SV, VOFF)
    lds = base + (tile % 4) * 16384 if lds is None else lds
    out = []
    for i in range(4):
        pre = [It(f"s_add_u32 m0, s{sW4K}, {lds}", "s"),
               It(f"s_mov_b32 s{sSO}, {tile * 16384 if so is None else so}", "s")] if i == 0 else []
        out.append((pre, [It(f"buffer_load_dwordx4 v{reg(i)}, {srd(s_rd)}, s{sSO} offen offset:{i*1024} lds",
                             "g", (kind, tile))]))
    return out


issued = set()
CLUSTER = O_("cluster", 1)
EARLY = O_("early", 0)
WINS = [int(x) for x in opt.get("wins", "2,18,34,50,73,91,109,127").split(",")]
WPAT = [int(x) for x in opt.get("wpat", "1").split(",")]


def attn_iter(t, groups, fill, endwait=(), extra=None, ins=None):
    end = T0 - 1 if t < T0 else 31
    last = t == end
    mf = pv_mfmas_tail(t) if last else qk_mfmas(t) + pv_mfmas(t, zero=t == 0)
    ms = [m for m, _ in mf]
    n = len(ms)
    first_use, last_use = {}, {}
    for i, (_, f) in enumerate(mf):
        if f is not None:
            first_use.setdefault(f, i); last_use[f] = i
    reads = []
    for f in sorted(first_use):
        if (t, f) in issued: continue
        reads += [(first_use[f] - AHEAD, last_use.get(f - 8, -1), it) for it in frag_reads(t, f, last)]
    nxt_need = ()
    if t < end - 1:
        for f in range(4):
            reads += [(n + f - AHEAD, last_use[24 + f], it) for it in frag_reads(t + 1, f)]
            issued.add((t + 1, f))
        nxt_need = [("F", t + 1, f) for f in range(4)]
    elif t == end - 1:
        for f in range(16, 18):
            reads += [(n + 4 * (f - 15) - AHEAD, last_use[8 + f], it) for it in frag_reads(end, f, True)]
            issued.add((end, f))
    gaps = {}
    add = lambda g, it: gaps.setdefault(g, []).append(it)
    exg = {}
    wins = [] if last or not CLUSTER else WINS[:min(len(WINS), -(-len(groups) // len(WPAT)))]
    quiet = {w + k for w in wins for k in range(WPAT[-1] + 1)}
    dma_gaps = sorted(w + k for w in wins for k in WPAT)
    if last:
        ex, post = sm_stream(t & 1, 1)
        for i in range(EARLY, 32): exg[((i - EARLY) * 33) // (32 - EARLY)] = (ex[i], post[i])
    else:
        for (ex, post), lo, hi in ((sm_stream(t & 1, 1), 0, 63), (sm_stream((t + 1) & 1, 0), 64, n - 2)):
            if lo and t == end - 1:
                x2, p2 = sm_stream(end & 1, 1)
                ex, post = ex + x2[:EARLY], post + p2[:EARLY]
            c = [g for g in range(lo, hi) if g not in quiet]
            for i in range(len(ex)): exg[c[(i * (len(c) + 1)) // len(ex)]] = (ex[i], post[i])
    for g, (x, post) in exg.items():
        add(g, x)
    for g, (x, post) in exg.items():
        h = g + 1
        while not last and (h in exg or h in quiet): h += 1
        for it in post: add(h, it)
    free = {g for g in range(n) if g not in exg or EARLY < 12} if last else {g for g in range(n) if g not in exg and g not in dma_gaps and len(gaps.get(g, [])) < 2}
    prev, pre, avail = n, [], sorted(free)
    for dl, early, it in reversed(reads):
        c = [g for g in free if g <= dl and g < prev]
        if c and max(c) >= early:
            prev = max(c); free.discard(prev); add(prev, it)
        elif early < 0:
            prev = -1; pre.insert(0, it)
        else:
            g = min(g for g in avail if g >= early and len(gaps.get(g, [])) < 2)
            assert g <= dl + AHEAD - 6, (t, it.t, g, dl)
            free.discard(g); gaps.setdefault(g, []).insert(0, it)
    if groups:
        def spaced(c):
            out = []
            for g in c:
                if not out or g - out[-1] >= 2: out.append(g)
            return out
        light = spaced([g for g in sorted(free) if 1 <= g < n - 6 and g not in gaps])
        fr = light if len(light) >= len(groups) - len(dma_gaps) + 4 else spaced([g for g in sorted(free) if 1 <= g < n - 6])
        rest = len(groups) - len(dma_gaps)
        if rest > 0:
            fr = [g for g in fr if not {g - 1, g, g + 1} & set(dma_gaps)]
            if len(fr) < rest: fr = spaced([g for g in range(1, n - 6) if g not in exg and not {g - 1, g, g + 1} & set(dma_gaps)])
            assert len(fr) >= rest, (t, len(fr), len(groups))
            dma_gaps = sorted(dma_gaps + [fr[int(k * len(fr) / rest)] for k in range(rest)])
        for k, grp in enumerate(groups): place(add, dma_gaps[k], grp, dma_gaps[k - 1] if k else -1, {u - 1 for u in first_use.values()})
    if not last:
        add(n - 3, It(None, "s", need=[("K", min(t + 3, end)), ("V", end if t == end - 2 else t + 1)] + list(endwait)))
        add(n - 2, It("s_barrier", "s"))
        add(n - 4, hop())
    for g, its in (extra or {}).items():
        for it in its: add(g, it)
    if SSET == "attn": add(0, stamp_item())
    if O_("jit2", 0):
        for g in (1, n // 2, n - 12): add(g, jitter_item())
    if ins:
        for k in range(3):
            for h, it in enumerate(ins[k][1]): add(1 + 4 * k + 2 * h, it)
        pos = {(13 + (k * (n - 24)) // (len(ins) - 1)) | 1: k for k in range(len(ins))}
        assert len(pos) == len(ins)
        ms2, gaps2, old, quiet = [], {}, quiet, set()
        for g, m in enumerate(ms):
            if g in old: quiet.add(len(ms2))
            gaps2[len(ms2)] = gaps.get(g, []); ms2.append(m)
            if g in pos:
                k = pos[g]
                gaps2[len(ms2)] = list(ins[k + 3][1]) if k + 3 < len(ins) else []
                ms2.append(ins[k][0])
        ms, gaps = ms2, gaps2
    P.puts(pre)
    P.run_gaps(ms, gaps, fill, next_need=nxt_need, pos=t, gmin=4, quiet=quiet)


hdr = [l.rstrip("\n") for l in open("header.txt")]
hdr = hdr[:[i for i, l in enumerate(hdr) if "@launch" in l][0]]
P.L += hdr + ["; @launch grid=(256,1,1) block=(256,1,1) lds=163840",
              '.amdgcn_target "amdgcn-amd-amdhsa--gfx950"', ".text", f".globl {NAME}", ".p2align 8",
              f".type {NAME},@function"]
lab(NAME)
e("s_cmp_lt_u32 s2, 256"); e("s_cbranch_scc1 L_go"); e("s_endpgm")
lab("L_go")
if AMP and AMP[0] < 0: e(f"s_memrealtime {sr(sST,2)}")
e("s_load_dwordx16 s[64:79], s[0:1], 0"); e("s_load_dwordx8 s[80:87], s[0:1], 64"); e("s_load_dwordx2 s[88:89], s[0:1], 96")
PAIR = O_("pair", 0)
NS = 16 if PAIR else 32
sMI, sWV = 90, 91
if PAIR:
    e(f"s_and_b32 s{sG}, s2, 3"); e(f"s_and_b32 s{sT}, s2, 2"); e(f"s_add_u32 s{sG}, s{sG}, s{sT}")
    e(f"s_bfe_u32 s{sT}, s2, 0x10003"); e(f"s_lshl1_add_u32 s{sG}, s{sT}, s{sG}")
    e(f"s_lshr_b32 s{sMI}, s2, 4"); e(f"s_and_b32 s{sM}, s2, 4"); e(f"s_lshl_b32 s{sM}, s{sM}, 2"); e(f"s_add_u32 s{sM}, s{sM}, s{sMI}")
else:
    e(f"s_and_b32 s{sG}, s2, 7"); e(f"s_lshr_b32 s{sM}, s2, 3"); e(f"s_lshr_b32 s{sMI}, s2, 3")
e("v_lshrrev_b32 v1, 6, v0"); e("v_and_b32 v0, 63, v0"); e(f"v_readfirstlane_b32 s{sW}, v1")
e(f"v_lshlrev_b32 v{vBA}, 4, v0"); e(f"v_lshlrev_b32 v{vLANE}, 7, v0")
e(f"s_getpc_b64 {sr(sT+1,2)}")
lab("L_pc")
NCL = 10
e(f"s_lshr_b32 s{sT+3}, s2, 3")
sum_terms(sT, (sT + 3, 512), (sW, 128))
e(f"v_min_u32 v6, {NCL-1}, v0"); e(f"v_lshl_add_u32 v6, v6, 14, s{sT}"); e("v_min_u32 v6, L_end-L_pc, v6")
e(f"v_mov_b32 v{vCODE+1}, s{sT+2}"); e(f"v_add_co_u32 v{vCODE}, vcc, s{sT+1}, v6")
e(f"v_addc_co_u32 v{vCODE+1}, vcc, 0, v{vCODE+1}, vcc")
code_touch = lambda: P.vm(f"global_load_dword a255, {vr(vCODE,2)}, off")
masked(O_("cm", 15), f"global_load_dword a255, {vr(vCODE,2)}, off")
sum_terms(sWV, (sMI, 4), (sW, 1))


def touch_off(d, nrows, lines, stride, base_terms, t):
    per = -(-nrows // (NS * 4))
    assert per * lines <= 64 and lines & (lines - 1) == 0
    sh = lines.bit_length() - 1
    e(f"v_lshrrev_b32 v{d}, {7 + sh}, v{vLANE}"); e(f"v_min_u32 v{d}, {per - 1}, v{d}")
    e(f"s_mul_i32 s{sT}, s{sWV}, {per}"); e(f"v_add_u32 v{d}, s{sT}, v{d}")
    if per * NS * 4 != nrows: e(f"v_min_u32 v{d}, {nrows - 1}, v{d}")
    e(f"v_mul_u32_u24 v{d}, {stride}, v{d}")
    sum_terms(sT, *base_terms)
    if lines > 1:
        e(f"v_and_b32 v{t}, {(lines - 1) * 128}, v{vLANE}"); e(f"v_add3_u32 v{d}, v{d}, v{t}, s{sT}")
    else:
        e(f"v_add_u32 v{d}, s{sT}, v{d}")


WQ0 = O_("wq0", 128)
vTQ, vT1, vTK = T + 11, T + 13, T + 16
touch_off(6, WQ0, 8, 8192, [(sG, 1024)], 7)
touch_off(vT1, 512, 1, 1024, [(sG, 128)], 7)
e("v_and_b32 v2, 3, v0")
e("v_lshrrev_b32 v1, 2, v0")
sum_terms(sT, (sM, 64), (sW, 16))
e(f"v_add_u32 v3, s{sT}, v1"); e("v_lshlrev_b32 v3, 10, v3"); e("v_lshl_add_u32 v3, v2, 4, v3")
e(f"s_bfe_u32 s{sT+1}, s{sG}, {0x10000 + PAIR}"); e(f"s_lshl_b32 s{sT+2}, s{sT+1}, 9")
e(f"v_add_u32 v3, s{sT+2}, v3"); e(f"v_xor_b32 v{G12+13}, 0x200, v3")
if STAMP: e(f"v_mov_b32 v{vSTAMP}, 0")
e("s_waitcnt lgkmcnt(0)")
stamp()
if SSET == "ln": stamp(0)
ENT = " nt" * O_("ent", 0)
P.vm(f"global_load_dword a255, v{vT1}, s[76:77]{ENT}")
P.vm(f"global_load_dword a255, v6, s[70:71]{ENT}")
for i in range(8):
    P.vm(f"global_load_dwordx4 {vr(XR+4*i,4)}, v3, s[64:65] offset:{i*64}", ("x", i))
HOP = O_("hop", 1)
hop = lambda n="": It(f"; @hop {n}", "s")
if HOP:
    e("s_branch L_main"); P.raw(".p2align 12")
lab("L_main")
e("v_lshlrev_b32 v4, 1, v2"); e("v_xor_b32 v4, v4, v1"); e("v_lshlrev_b32 v4, 4, v4"); e("v_lshl_add_u32 v4, v2, 8, v4")
sum_terms(sT + 2, (sT + 1, 32768), (sW, 1024))
e(f"v_add_u32 v{vWA}, s{sT+2}, v4"); e(f"v_xor_b32 v{vWA+1}, 0x8000, v{vWA}")
e("v_and_b32 v1, 15, v0"); e("v_lshrrev_b32 v2, 4, v0")
e("v_lshlrev_b32 v4, 1, v2"); e("v_xor_b32 v4, v4, v1"); e("v_lshlrev_b32 v4, 4, v4"); e(f"v_lshl_add_u32 v{vBX}, v2, 8, v4")
e(f"v_add_u32 v3, s{sT}, v1"); e("v_lshlrev_b32 v4, 15, v2"); e(f"v_lshl_add_u32 v{vTOK}, v3, 4, v4")
for d, p in ((SK, 66), (SV, 68)):
    e(f"s_lshl_b32 s{sT}, s{sG}, 19")
    e(f"s_add_u32 s{d}, s{p}, s{sT}"); e(f"s_addc_u32 s{d+1}, s{p+1}, 0"); e(f"s_mov_b32 s{d+2}, 0x80000"); e(f"s_mov_b32 s{d+3}, 0x20000")
for d, p, size in ((SX, 64, 0x200000), (SWQ, 70, 0x400000), (SW1, 76, 0x80000), (SWS, 88, 0x10000000),
                   (SWO, 72, 0x400000), (SW2, 78, 0x80000), (SW3, 80, 1835008), (SW4, 82, 1835008),
                   (SOUT, 84, 0x200000), (SDBG, 86, 256)):
    mk_srd(d, p, size)
sum_terms(sRING, (sW, 8192), RING); sum_terms(sW1K, (sW, 1024)); sum_terms(sW4K, (sW, 4096))
sum_terms(sT, (sG, 1024), (sW, 256)); dma_voff(vDWQ, 8192, True, f"s{sT}", 10)
sum_terms(sT, (sW, 65536), (sG, 128)); dma_voff(vDW1, 1024, True, f"s{sT}", 10); dma_voff(vDW2, 1024, False, f"s{sT}", 10)
for r, v in ((sLO, "0x00003f80"), (sHI, "0x3f800000"), (sONE2, "0x3f803f80"), (sC1, f2u(GK)), (sC2, f2u(GA_)),
             (sNL2E, f2u(-LOG2E / GA_)), (sSPIN, opt.get("spin0", 0)), (sMSK, "0xffff0000")):
    e(f"s_mov_b32 s{r}, {v}")
sum_terms(sF0, (sM, 4096), (sW, 256), WS_FL)
sum_terms(sFL, (sG, 4), (sF0, 1))
sum_terms(sF1, (sM, 4096), (sG, 128), WS_FL + 1024)
e(f"s_add_u32 s{sF2}, s{sF1}, 1024"); e(f"s_add_u32 s{sF3}, s{sF1}, 2048")
sum_terms(sSTC, (sM, 4096), (sW, 1024), WS_SS)
sum_terms(sSTP, (sG, 128), (sSTC, 1))
sum_terms(sPP, (sM, 1 << 19), (sW, 1 << 17), (sG, 1 << 13))
sum_terms(sPC, (sM, 1 << 19), (sG, 1 << 16), (sW, 1 << 11))
e(f"s_lshl_b32 s{sHO}, s{sG}, 18")
e(f"s_and_b32 s{sKS}, s{sG}, 6"); e(f"s_lshl_b32 s{sKS}, s{sKS}, 1"); e(f"s_lshr_b32 s{sT}, s{sW}, 1"); e(f"s_add_u32 s{sKS}, s{sKS}, s{sT}")
e(f"s_and_b32 s{sTB}, s{sG}, 1"); e(f"s_lshl_b32 s{sTB}, s{sTB}, 1"); e(f"s_and_b32 s{sT}, s{sW}, 1"); e(f"s_add_u32 s{sTB}, s{sTB}, s{sT}")
sum_terms(sSTF, (sM, 4096), (sTB, 1024), WS_SS)
sum_terms(sXF, (sM, 65536), (sTB, 16384), (sKS, 64))
e(f"s_and_b32 s{sT}, s{sG}, 1"); sum_terms(sW3B, (sG, 448), (sT, 64)); sum_terms(sRS, (sW, 2048), RING)
e("v_lshrrev_b32 v6, 2, v0"); e("v_and_b32 v7, 3, v0"); e("v_lshlrev_b32 v7, 3, v7"); e("v_lshl_add_u32 v7, v6, 7, v7")
e("v_bfe_u32 v6, v0, 3, 2")
for nb in range(4):
    e(f"v_xor_b32 v10, {nb}, v6"); e("v_lshl_add_u32 v10, v10, 5, v7")
    e(f"v_add_u32 v{vAS+nb}, {RING + 32768}, v10")
    if QPERM:
        e("v_lshrrev_b32 v8, 2, v0"); e("v_and_b32 v9, 6, v8"); e("v_and_b32 v10, 3, v0"); e("v_xor_b32 v9, v9, v10")
        e(f"v_xor_b32 v9, {4*(nb>>1)}, v9"); e("v_lshlrev_b32 v9, 4, v9"); e("v_lshl_add_u32 v10, v8, 7, v9")
        if nb & 1: e("v_add_u32 v10, 8, v10")
    e(f"v_add_u32 v{vAA+nb}, s{sRING}, v10"); e(f"v_add_u32 v{vAA2+nb}, 0x10000, v{vAA+nb}")
e("v_xor_b32 v9, v2, v1")
for s in range(4):
    e(f"v_xor_b32 v10, {4*s}, v9"); e("v_lshlrev_b32 v10, 4, v10"); e(f"v_lshl_add_u32 v{KA(s)}, v1, 8, v10")
e("v_lshrrev_b32 v9, 2, v0"); e("v_lshlrev_b32 v10, 8, v9"); e("v_and_b32 v11, 3, v0")
e("v_lshl_add_u32 v10, v11, 3, v10"); e(f"v_add_u32 v10, {VOFF}, v10"); e("v_and_b32 v9, 7, v9")
for db in range(8):
    e(f"v_xor_b32 v11, {db}, v9"); e(f"v_lshl_add_u32 v{VA(db)}, v11, 5, v10")
e(f"v_lshl_add_u32 v10, v2, 8, s{sW4K}")
for i in range(4):
    e(f"v_add_u32 v9, {4*i}, v2"); e("v_xor_b32 v11, v9, v1"); e(f"v_lshl_add_u32 v{KG(i)}, v11, 4, v10")
    if i < 2:
        e("v_lshlrev_b32 v9, 1, v9"); e("v_xor_b32 v11, v9, v1"); e(f"v_lshl_add_u32 v{VG(i)}, v11, 4, v10")
e(f"v_lshlrev_b32 v{G12+8}, 4, v1")
if WQ0 < 512: touch_off(vTQ, 512 - WQ0, 8, 8192, [(sG, 1024), WQ0 * 8192], 7)
SLIM = O_("slim", 1)
touch_off(vTK, 256 if SLIM else 512, 1, 128, [(sG, 0)], 7)


def late_touch():
    P.vm(f"buffer_load_dword a255, v{vTK}, {srd(SK)}, 0 offen"); P.vm(f"buffer_load_dword a255, v{vTK}, {srd(SV)}, 0 offen")
    if not SLIM:
        P.vm(f"buffer_load_dword a255, v{vT1}, {srd(SW2)}, 0 offen")
        code_touch()


LTG = O_("ltg", 4)
XQ = O_("xq", 3)


w1t = [Tile(SW1, vDW1, k * 4 * 65536, 1024, True, 1 + k, "w1") for k in range(2)]
w2t = [Tile(SW2, vDW2, k * 4 * 65536, 1024, False, 2, ("w2", k)) for k in range(2)]
qt = [Tile(SWQ, vDWQ, (i // 2) * 64 * 8192 + (i % 2) * 128, 8192, True, i % 3, ("wq", i), kp=i // 2, nh=i % 2)
      for i in range(16)] + ([] if SLIM else [None, w2t[0]])
mt = [Tile(SW3, vDW2, kp * 64 * 3584, 3584, False, (2 - i) % 3, ("w3", kp), kp=kp)
      for i, kp in enumerate((4, 5, 6, 7, 0, 1, 2, 3))]
mt += [Tile(SW4, vDW4, (i // 2) * 65536 + (i % 2) * 128, 1024, False, (2 - 8 - i) % 3, ("w4", i), kp=i // 2, nh=i % 2)
       for i in range(8)]
ot = [Tile(SWO, vDWO, ((kp & 1) * 256 + (kp >> 1) * 32) * 1024 + nh * 128, 1024, False, (nh * 8 + i + 2) % 3,
           ("wo", nh, kp), kp=kp, nh=nh, half=128)
      for nh in range(2) for i, kp in enumerate(range(8) if nh == 0 else (2, 3, 4, 0, 5, 1, 6, 7))]

a = G12


def quad_sum(regs):
    for qp in ("[1,0,3,2]", "[2,3,0,1]"):
        for r in regs: e(f"v_add_f32_dpp v{r}, v{r}, v{r} quad_perm:{qp} row_mask:0xf bank_mask:0xf")


def ln_stats(lo, hi):
    for i in range(lo, hi):
        c = lambda r: f"v{r}" if i >= 2 else 0
        e(f"v_dot2_f32_bf16 v{a + i % 2}, v{XR+i}, s{sONE2}, {c(a + i % 2)}", need=[("x", i // 4)])
        e(f"v_dot2_f32_bf16 v{a + 2 + i % 2}, v{XR+i}, v{XR+i}, {c(a + 2 + i % 2)}")


def unpack(k):
    for i in range(4 * k, 4 * k + 4):
        e(f"v_lshlrev_b32 v{2*i}, 16, v{XR+i}"); e(f"v_and_b32 v{2*i+1}, s{sMSK}, v{XR+i}")


def ln_rest():
    ln_stats(32, 64)
    e(f"v_add_f32 v{a}, v{a}, v{a+1}"); e(f"v_add_f32 v{a+2}, v{a+2}, v{a+3}")
    quad_sum([a, a + 2])
    e(f"v_mul_f32 v{a+4}, {f2u(-1/512)}, v{a}"); e(f"v_mul_f32 v{a+2}, {f2u(1/512)}, v{a+2}")
    e(f"v_fma_f32 v{a}, -v{a+4}, v{a+4}, v{a+2}"); e(f"v_max_f32 v{a}, 0, v{a}")
    e(f"v_add_f32 v{a+1}, {f2u(EPS)}, v{a}")
    e(f"v_rsq_f32 v{vRSTD}, v{a+1}")
    unpack(8)
    e(f"v_mul_f32 v{a+2}, {f2u(QSCALE)}, v{vRSTD}"); e(f"v_mul_f32 v{a+3}, v{a+4}, v{a+2}")
    for k in range(17):
        if k < 16:
            for i in range(4 * k, 4 * k + 4):
                e(f"v_pk_fma_f32 {vr(2*i,2)}, {vr(2*i,2)}, {vr(a+2,2)}, {vr(a+2,2)} op_sel:[0,0,1] op_sel_hi:[1,0,1]")
        if k: P.lds(f"ds_write_b128 v{vWA + (k-1)//8}, {vr(XR+4*k-4,4)} offset:{((k-1)%8)*4096}", "xw")
        if k % 2 == 0 and 9 + k // 2 < 16: unpack(9 + k // 2)
        if k < 16:
            for i in range(4 * k, 4 * k + 4): e(f"v_cvt_pk_bf16_f32 v{XR+i}, v{2*i}, v{2*i+1}")
    e(f"v_mul_f32 v{a}, v{a}, v{vRSTD}"); e(f"v_mul_f32 v{a}, v{a}, v{vRSTD}")
    e(f"v_add_f32 v{a}, {f2u(EPS)}, v{a}")
    e(f"v_rsq_f32 v{vSC1}, v{a}")
    e(f"v_mul_f32 v{vRSTD}, s{sC2}, v{vRSTD}")
    e(f"v_mul_f32 v{vSC1}, {f2u(GA_/QSCALE)}, v{vSC1}")
    e(f"v_mul_f32 v{vNMEAN}, v{a+4}, v{vRSTD}")
    e(f"v_add_u32 v{vWA}, s{sW1K}, v{vBX}")


if SSET == "ln": stamp(0)
P.put(hop(O_("hop00", 1)))
wq_rest = lambda: P.vm(f"buffer_load_dword a255, v{vTQ}, {srd(SWQ)}, 0 offen{ENT}") if WQ0 < 512 else None
if LTG == 4: XQ = 4
if XQ == 0: wq_rest()
if LTG == 0: late_touch()
for i in range(8):
    P.vm(f"buffer_load_dwordx4 {vr(XR+32+4*i,4)}, v{G12+13}, {srd(SX)}, 0 offen offset:{i*64}", ("x", 8 + i))
if XQ == 1: wq_rest()
if LTG == 1: late_touch()
if SSET == "ln": stamp(0)
P.put(hop(O_("hop0", 1)))
for k in range(8):
    ln_stats(4 * k, 4 * k + 4); unpack(k)
if O_("hop1", 1): P.put(hop(O_("hop1", 1)))
stamp(2)
if SSET == "ln":
    stamp(0); P.wait([("x", 15)]); stamp(0)
code = cap(ln_rest)
if "l" in opt.get("cut", ""): code = [it for it in code if not (it.t or "").startswith(("v_pk_fma", "v_cvt", "v_lshlrev", "v_and"))]
k = O_("lnat", 40)
P.puts(code[:k])
Q0LN = O_("q0ln", 1)
side = [x + y for t in w1t + qt[:Q0LN] for x, y in t.dma()]
if LTG == 4:
    j = O_("ltpos", 24)
    side[j:j] = [[it] for it in cap(wq_rest) + cap(late_touch)]
interleave(code[k:], side, O_("lnev", 9))
if SSET == "ln":
    stamp(0); P.wait(["w1"]); stamp(0)
for r in (vNMEAN, vRSTD, vSC1): P.lds(f"ds_bpermute_b32 v{r}, v{G12+8}, v{r}", "stat")
xb = [It(f"ds_read_b128 {ar(4*ks,4)}, v{vWA} offset:{ks*4096}", "l", ("xb", ks)) for ks in range(16)]
P.puts(xb[:8])
stamp(2)
P.wait(["xw", "w1"]); e("s_barrier")
stamp()
if SSET == "ln": stamp(0)

g1 = lambda h: shared_ops(range(8 * h, 8 * h + 8), 0, lambda nb: vr(G12 + 4 * nb, 4), True, lambda i: 160 + (i % 16) * 4,
                          lambda ks: ar(4 * ks, 4), lambda ks: [("xb", ks)], "g1", 32 * h)
ops = g1(0) + g1(1)
gaps = {g: [] for g in range(64)}
add1 = lambda g, it: gaps[g].append(it)
for i in range(6, 64): gaps[i - 6] += ops[i][1]
for k in range(8): add1(2 + 3 * k, xb[8 + k])
if not Q0LN:
    for k, grp in enumerate(qt[0].dma()): place(add1, 1 + 3 * k, grp, 3 * k - 2)
for k, it in enumerate((cap(wq_rest) if XQ == 3 else []) + (cap(late_touch) if LTG == 3 else [])): add1(O_("ltat", 0) + 2 * k, it)
add1(31, It("s_barrier", "s"))
for k, grp in enumerate(qt[1].dma()): place(add1, 34 + 3 * k, grp, 31 + 3 * k)
ACC = lambda nh, nb, tb: ((nh * 4 + tb) * 4 + nb) * 4
op = gemm(qt, 0, 16, ACC, [], (64, 96), breg=vBX, opening="get")
for k, it in enumerate(op[4:12]): add1(40 + 2 * k, it)
for k, it in enumerate(op[:4] + op[12:]): add1(58 + k // 2, it)
for i in range(6): P.puts(ops[i][1])
P.run_gaps([m for m, _ in ops], gaps, next_need=[op[0].tag, op[4].tag])
stamp()



def q_side():
    x, t = G12, XR
    P.put(gate(0, 8))
    for i in range(16): e(f"v_mul_f32 v{x+i}, v{x+i}, v{vSC1}", need=["stat"])
    for i in range(16): e(f"v_fma_f32 v{t+i}, -v{x+i}, v{x+i}, -s{sC1}")
    for i in range(16): e(f"v_mul_f32 v{t+i}, v{t+i}, v{x+i}")
    for i in range(16): e(f"v_exp_f32 v{t+i}, v{t+i}", k="v")
    for i in range(16): e(f"v_add_f32 v{t+i}, 1.0, v{t+i}")
    for i in range(16): e(f"v_rcp_f32 v{t+i}, v{t+i}", k="v")
    for i in range(16): e(f"v_mul_f32 v{t+i}, v{t+i}, v{x+i}")
    for i in range(8): e(f"v_cvt_pk_bf16_f32 v{t+16+i}, v{t+2*i}, v{t+2*i+1}")
    e(f"v_lshrrev_b32 v{t}, 5, v{vBA}"); e(f"v_and_b32 v{t+1}, 128, v{vLANE}"); e(f"v_lshl_add_u32 v{t}, v{t}, 10, v{t+1}")
    e(f"v_mov_b32 v{t+1}, 0"); e(f"v_mov_b32 v{t+2}, -1"); e(f"v_mov_b32 v{t+3}, -1"); e(f"v_lshrrev_b32 v{t+4}, 1, v{vBA}")
    for nb in range(4): e(f"v_add_u32 v{vAS+nb}, 32768, v{vAS+nb}")
    e(f"v_mov_b32 v{t+5}, {hex(((127 - OSH) << 7) * 0x10001)}")
    if SPARSE:
        e(f"v_and_b32 v{t+6}, {0xf0 if PA else 0x30}, v{vBA}"); e(f"v_cmp_eq_u32 vcc, 0, v{t+6}"); e(f"v_cndmask_b32 v{t+5}, 0, v{t+5}, vcc")
    for i in range(4): e(f"v_accvgpr_write_b32 a{aONES+i}, v{t+5}")

    P.put(gate(0, O_("hgate", 13 * 32 + 23)))
    if LTG == 2: late_touch()
    for s in range(2):
        e(f"s_add_u32 s{sSF}, s{sHO}, {WS_H + s*PLANE}")
        P.vm(f"buffer_store_dwordx4 {vr(t+16+4*s,4)}, v{vTOK}, {srd(SWS)}, s{sSF} offen sc1", "hst")
    masked(255, f"buffer_store_dword v{t+1}, v{t}, {srd(SWS)}, s{sFL} offen sc1", "hst")
    masked(0xffff, f"buffer_store_dwordx2 {vr(t+2,2)}, v{t+4}, {srd(SWS)}, s{sSTP} offen sc1", "hst")


fill = cap(q_side)
pending = qt[2].dma()
gemm(qt, 0, 16, ACC, pending, (64, 96), breg=vBX, fill=fill, opening="done", extra={1: [It("s_barrier", "s")]}, dma0=2)
assert not fill and not pending
e("s_barrier")
stamp()


def q_pack():
    for tb in range(4):
        for s in range(4):
            b = ACC(s // 2, 2 * (s % 2), tb)
            for j in range(4): e(f"v_cvt_pk_bf16_f32 v{Q(tb,s)+j}, v{b+2*j}, v{b+2*j+1}")
        for sw in () if QPERM else ("v_permlane32_swap_b32", "v_permlane16_swap_b32"):
            for s in range(4):
                for j in range(2): e(f"{sw} v{Q(tb,s)+j}, v{Q(tb,s)+2+j}")


early = (("K", 0), ("K", 1)) if QPERM else (("K", 0), ("K", 1), ("V", 0))
interleave(cap(q_pack), [x + y for k in early for x, y in kv_dma(*k)], 8 if QPERM else 10)
P.wait(["hst", ("K", 0)]); e("s_barrier")
stamp()

for f in range(8): P.puts(frag_reads(-1, f))
gaps = {g: [] for g in range(64)}
for k, grp in enumerate(kv_dma("V", 0) if QPERM else kv_dma("K", 2)): place(add1, 2 + 4 * k, grp, -1)
P.run_gaps([m for m, _ in qk_mfmas(-1, zero=True)[:16]], gaps)
for f in range(8, 12): P.puts(frag_reads(-1, f))
for qb in range(4): e(f"v_max3_f32 v{NM(qb)}, v{S(0,0,qb)}, v{S(0,0,qb)+1}, v{S(0,0,qb)+2}")
for qb in range(4): e(f"v_max_f32 v{NM(qb)}, v{NM(qb)}, v{S(0,0,qb)+3}")
allreduce("v_max_f32", [NM(qb) for qb in range(4)], [NM(qb) + 1 for qb in range(4)])
e(f"s_mov_b32 s{sT}, {f2u(float(opt.get('pd', -25.4)))}")
for qb in range(4):
    for i in (1, 2, 3, 0): e(f"v_sub_f32 v{NM(qb)+i}, s{sT}, v{NM(qb)}")


def first_half(shift, gates):
    for kb in range(2):
        P.put(gate(0, gates[kb]))
        for qb in range(4):
            b = S(0, kb, qb)
            if shift and not kb:
                for j in range(4): e(f"v_add_f32 v{b+j}, v{b+j}, v{NM(qb)}")
            for j in range(4): e(f"v_exp_f32 v{b+j}, v{b+j}")
        for qb in range(4):
            b = S(0, kb, qb)
            for j in range(2): e(f"v_cvt_pk_bf16_f32 v{PR(0,0,qb)+2*kb+j}, v{b+2*j}, v{b+2*j+1}")


gaps = {g: [] for g in range(64)}
for f in range(12, 16): gaps[16 + (f - 12)] += frag_reads(-1, f)
add1(30, It(None, "s", need=[("K", 1)])); add1(31, It("s_barrier", "s"))
for f in range(4):
    gaps[32 + f] += frag_reads(0, f); issued.add((0, f))
if QPERM:
    for k, grp in enumerate(kv_dma("K", 2) + kv_dma("V", 1) + kv_dma("K", 3)): place(add1, 2 + 4 * k, grp, 4 * k - 2)
else:
    for k, grp in enumerate(kv_dma("V", 1) + kv_dma("K", 3)): place(add1, 3 + 6 * k, grp, 6 * k - 3)
fill = cap(first_half, True, (0, 20))
P.run_gaps([m for m, _ in qk_mfmas(-1)[16:]], gaps, fill)
P.drain(fill)
e(f"v_mov_b32 v{T}, 1"); e(f"s_lshl_b32 s{sSF}, s{sM}, 3")
e(f"s_cmp_lg_u32 s{sW}, 0"); e("s_cbranch_scc1 L_noarr"); e("s_mov_b64 exec, 1")
e(f"buffer_atomic_add v{T}, off, {srd(SDBG)}, s{sSF} sc1"); e("s_mov_b64 exec, -1")
lab("L_noarr")
P.wait([("K", 2), ("V", 0)] + [("F", 0, f) for f in range(4)]); e("s_barrier")
stamp()

p_h = flag_poll("h", SDBG, 0, 8)
p_x = flag_poll("x1", SWS, f"s{sF0}", 1)
p_st = Poll("st", [f"buffer_load_dwordx2 {vr(T+2*j,2)}, v{vPA}, {srd(SWS)}, s{(sSTC, sSTF)[j//2]} offen offset:{128*(j%2)} sc1"
                   for j in range(4)],
            [f"v_max3_u32 v{T+8}, v{T}, v{T+1}, v{T+2}", f"v_max3_u32 v{T+8}, v{T+8}, v{T+3}, v{T+4}",
             f"v_max3_u32 v{T+8}, v{T+8}, v{T+5}, v{T+6}", f"v_max_u32 v{T+8}, v{T+8}, v{T+7}",
             f"v_cmp_eq_u32 vcc, -1, v{T+8}"])
p_ph, p_s0, p_s1 = (flag_poll(n, SWS, f"s{r}", 1) for n, r in (("ph", sF1), ("s0", sF2), ("s1", sF3)))


pieces = [(nh, tb, s) for nh in range(2) for tb in range(4) for s in range(2)]


def x_offset(d, bits=11):
    e(f"v_bfe_u32 v{d}, v{vTOK}, 4, {bits}"); e(f"v_lshlrev_b32 v{d}, 10, v{d}")
    e(f"v_bfe_u32 v{d+1}, v{vBA}, 8, 2"); e(f"v_lshl_add_u32 v{d}, v{d+1}, 3, v{d}")


def paced(t, g, step, fns):
    for k, fn in enumerate(fns):
        p = g + k * step
        P.put(gate(t + p // 136, p % 136)); fn()


def h_loads(half, t, g):
    e(f"v_bfe_u32 v{T}, v{vTOK}, 4, 11")
    for k, d in enumerate(((-1, 1), (-2, 2))[half]):
        e(f"v_add_u32 v{T+1}, {d}, v{T}"); e(f"v_cmp_gt_u32 vcc, 0x800, v{T+1}")
        e(f"v_add_u32 v{T+1}, {16*d}, v{vTOK}"); e(f"v_mov_b32 v{T+2+k}, 0x7f000000")
        e(f"v_cndmask_b32 v{T+2+k}, v{T+2+k}, v{T+1}, vcc")

    def one(ks):
        e(f"s_mov_b32 s{sSF}, {WS_H + ks*PLANE}")
        P.vm(f"buffer_load_dwordx4 {ar(HB(ks),4)}, v{T + 2 + (ks%8)//4}, {srd(SWS)}, s{sSF} offen sc1", ("h", ks))
    paced(t, g, O_("hstep", 18), [lambda ks=ks: one(ks) for ks in range(8 * half, 8 * half + 8)])


def acc_offset():
    P.lds(f"ds_read_b64_tr_b16 {vr(T+4,2)}, v{VA(0)}", "v0")
    P.put(gate(0, 9))
    for j in range(2):
        e(f"v_lshlrev_b32 v{T+2*j}, 17, v{T+4+j}", need=["v0"]); e(f"v_lshlrev_b32 v{T+2*j+1}, 1, v{T+4+j}")
    for r in (8, 4, 2, 1):
        for j in range(4): e(f"v_max_u32_dpp v{T+j}, v{T+j}, v{T+j} row_ror:{r} row_mask:0xf bank_mask:0xf")
    e(f"v_min3_u32 v{T}, v{T}, v{T+1}, v{T+2}"); e(f"v_min_u32 v{T}, v{T}, v{T+3}")
    allreduce("v_min_u32", [T], [T + 1], k="v")
    e(f"v_lshrrev_b32 v{T}, 24, v{T}"); e(f"v_lshlrev_b32 v{T}, 23, v{T}"); e(f"v_mul_f32 v{T}, {f2u(1.5 * 2.0**OB)}, v{T}")
    for i in range(4): e(f"v_accvgpr_write_b32 a{GA(0)+i}, v{T}")
    e(f"v_readfirstlane_b32 s{sOB}, v{T}")


def side1():
    if SLIM:
        code_touch(); P.vm(f"buffer_load_dword a255, v{vT1}, {srd(SW2)}, 0 offen")
    P.put(gate(0, 64))
    x_offset(T + 5); e(f"s_lshl_b32 s{sSF}, s{sG}, 7")
    for nb in range(4):
        P.vm(f"buffer_load_dwordx2 {vr(T+6+2*nb,2)}, v{T+5}, {srd(SX)}, s{sSF} offen offset:{nb*32}", "xs")
    e(f"v_lshrrev_b32 v{T}, 4, v{vBA}"); e(f"v_min_u32 v{T}, 2, v{T}"); e(f"v_add_u32 v{T}, s{sM}, v{T}")
    e(f"v_add_u32 v{T}, -1, v{T}"); e(f"v_med3_i32 v{T}, v{T}, 0, 31"); e(f"v_lshlrev_b32 v{vPA}, 3, v{T}")
    if O_("kvt1", 0):
        touch_off(T, (T0 - 5) * 128, 1, 128, [(sG, 0), 5 * 16384], T + 1)
        P.vm(f"buffer_load_dword a255, v{T}, {srd(SK)}, 0 offen"); P.vm(f"buffer_load_dword a255, v{T}, {srd(SV)}, 0 offen")
    P.put(gate(2, 0))
    p_h.issue()
    for i in range(8):
        d = T + 2 * (i % 2)
        e(f"v_lshlrev_b32 v{d}, 16, v{T+6+i}", need=["xs"]); e(f"v_and_b32 v{d+1}, 0xffff0000, v{T+6+i}")
        for h in range(2): e(f"v_fma_f32 v{d+h}, v{d+h}, v{vRSTD}, v{vNMEAN}")
        for h in range(2): e(f"v_accvgpr_write_b32 a{aG2+2*i+h}, v{d+h}")
    P.put(gate(3, 0))
    p_h.check(); h_loads(0, 3, 30)
    P.put(gate(6, 0))
    h_loads(1, 6, 24)
    sum_terms(sT, (sW, 128), (sW3B, 1)); dma_voff(vDW2, 3584, False, f"s{sT}", T)
    P.put(gate(8, 164))
    m, q = vRSTD, vNMEAN
    for i in range(16): e(f"v_accvgpr_read_b32 v{T+i}, a{aG2+i}")
    e(f"v_add_f32 v{m}, v{T}, v{T+1}"); e(f"v_mul_f32 v{q}, v{T}, v{T}")
    for i in range(1, 16):
        e(f"v_fmac_f32 v{q}, v{T+i}, v{T+i}")
        if i > 1: e(f"v_add_f32 v{m}, v{m}, v{T+i}")
    allreduce("v_add_f32", [m, q], [T, T + 1], k="v")
    e(f"v_lshrrev_b32 v{T}, 1, v{vBA}")
    masked(0xffff, f"buffer_store_dwordx2 {vr(m,2)}, v{T}, {srd(SWS)}, s{sSTP} offen sc1")
    code_touch()
    e(f"v_and_b32 v{T}, 0xf0, v{vBA}"); e(f"v_lshrrev_b32 v{T}, 1, v{T}"); e(f"v_and_b32 v{T+1}, 0x300, v{vBA}")
    e(f"v_add_u32 v{vPA}, v{T}, v{T+1}")
    P.put(gate(11, 70))
    p_st.issue()
    P.put(gate(12, 60))
    p_st.check()
    u, r = T + 15, T + 16
    e(f"v_add_f32 v{u}, v{T}, v{T+2}"); e(f"v_add_f32 v{r}, v{T+1}, v{T+3}")
    e(f"v_add_f32 v{q}, v{T+4}, v{T+6}"); e(f"v_add_f32 v{m}, v{T+5}, v{T+7}")
    allreduce("v_add_f32", [u, r, q, m], [T, T + 1, T + 2, T + 3], k="v")
    for x in (u, r, q, m): e(f"v_mul_f32 v{x}, {f2u(1/512)}, v{x}")
    for x, y in ((u, r), (q, m)):
        e(f"v_fma_f32 v{y}, -v{x}, v{x}, v{y}"); e(f"v_max_f32 v{y}, 0, v{y}")
        e(f"v_mul_f32 v{y}, {f2u(GA_**-2)}, v{y}"); e(f"v_add_f32 v{y}, {f2u(EPS)}, v{y}")
    e(f"v_rsq_f32 v{r}, v{r}", k="v"); e(f"v_sqrt_f32 v{m}, v{m}", k="v")
    for i in range(15): e(f"v_accvgpr_read_b32 v{T+i}, a{aG2+i}")
    e(f"v_mul_f32 v{u}, v{u}, v{r}")
    for i in range(15): e(f"v_fma_f32 v{T+i}, v{T+i}, v{r}, -v{u}")
    e(f"v_cvt_pk_bf16_f32 v{T}, v{T}, v{T+1}"); e(f"v_cvt_pk_bf16_f32 v{T+1}, v{T+2}, v{T+3}")
    e(f"v_accvgpr_read_b32 v{T+3}, a{aG2+15}"); e(f"v_fma_f32 v{u}, v{T+3}, v{r}, -v{u}")
    for i in range(2, 8): e(f"v_cvt_pk_bf16_f32 v{T+i}, v{T+2*i}, v{T+2*i+1}")
    for s in range(2):
        e(f"s_add_u32 s{sSF}, s{sHO}, {WS_X1 + s*PLANE}")
        P.vm(f"buffer_store_dwordx4 {vr(T+4*s,4)}, v{vTOK}, {srd(SWS)}, s{sSF} offen sc1", "x1st")
    e(f"v_bfe_u32 v{vPA}, v{vBA}, 4, 3"); e(f"v_lshlrev_b32 v{vPA}, 2, v{vPA}")
    P.put(gate(15, 70))
    set_flags(0, 1, ["x1st"])
    touch_off(T, 512, 4, 3584, [(sW3B, 1)], T + 1)
    P.vm(f"buffer_load_dword a255, v{T}, {srd(SW3)}, 0 offen")
    touch_off(T, 2048, 1, 128, [(sW3B, 512)], T + 1)
    P.vm(f"buffer_load_dword a255, v{T}, {srd(SW4)}, 0 offen")
    sum_terms(sT, (sW, 256)); dma_voff(vDW4, 1024, False, f"s{sT}", T)
    sum_terms(sT, (sG, 1 << 19)); e(f"v_add_u32 v{vDWO}, s{sT}, v{vDW4}")
    sum_terms(sT, (sW3B, 512)); e(f"v_add_u32 v{vDW4}, s{sT}, v{vDW4}")
    e(f"s_and_b32 s{sT}, s{sG}, 1"); e(f"s_sub_u32 s{sT}, 4, s{sT}"); e(f"s_mul_i32 s{sT}, s{sT}, s{sW}")
    for nb in range(4):
        e(f"s_and_b32 s{sT+1}, s{sT}, 3"); e(f"s_lshl_b32 s{sT+1}, s{sT+1}, 5"); e(f"v_xor_b32 v{vAA2+nb}, s{sT+1}, v{vAS}")
        e(f"s_lshr_b32 s{sT+1}, s{sT}, 2"); e(f"s_lshl_b32 s{sT+1}, s{sT+1}, 13"); e(f"v_add_u32 v{vAA2+nb}, s{sT+1}, v{vAA2+nb}")
        e(f"v_add_u32 v{vAA+nb}, 0xffff0000, v{vAA2+nb}"); e(f"s_add_u32 s{sT}, s{sT}, 1")
    P.put(gate(17, 60))
    p_x.issue(); code_touch()
    P.put(gate(18, 60))
    p_x.check()
    if XREG:
        def one(ks):
            e(f"s_mov_b32 s{sSF}, {WS_X1 + ks*PLANE}")
            P.vm(f"buffer_load_dwordx4 {ar(aG2 + 4*(ks-4),4)}, v{vTOK}, {srd(SWS)}, s{sSF} offen sc1", "xnl")
        paced(18, 70, 14, [lambda ks=ks: one(ks) for ks in range(4, 8)])
    if O_("kvt", 1):
        touch_off(T + 8, (32 - T0) * 128, 1, 128, [(sG, 0), T0 * 16384], T + 9)
        P.vm(f"buffer_load_dword a255, v{T+8}, {srd(SK)}, 0 offen"); P.vm(f"buffer_load_dword a255, v{T+8}, {srd(SV)}, 0 offen")
    if XREG:
        e(f"v_add_u32 v{T+9}, s{sW1K}, v{vBA}")
        paced(T0 - 1, 34, 6, [lambda ks=ks: P.lds(f"ds_write_b128 v{T+9}, {ar(aG2 + 4*(ks-4),4)} offset:{ks*4096}", ("xn", 1), need=["xnl"])
                              for ks in range(4, 8)])


def x1n_dma(j):
    return [([It(f"s_add_u32 m0, s{sW1K}, {ks*4096}", "s"), It(f"s_mov_b32 s{sSO}, {WS_X1 + ks*PLANE}", "s")],
             [It(f"buffer_load_dwordx4 v{vTOK}, {srd(SWS)}, s{sSO} offen sc1 lds", "g", ("xn", j), need=["x1"])])
            for ks in range(4 * j, 4 * j + 4)]


def run_tiles(t0, t1, fill, over, more, endw, ins, must, xtra={}):
    end = T0 - 1 if t0 < T0 else 31
    for t in range(t0, t1):
        groups = (kv_dma("K", t + 4) if t + 4 <= end else []) + (kv_dma("V", t + 3) if t + 3 <= end else [])
        groups = over.get(t, groups) + more.get(t, [])
        attn_iter(t, groups, fill, endw.get(t, ()), ins=ins.get(t), extra=xtra.get(t))
        head = fill[0].at if fill else (99, 0)
        if O_("showfill", 0): print(t, len(fill), head, file=sys.stderr)
        if t in must: assert head and head[0] >= must[t], (t, head, len(fill))


g2 = lambda h: shared_ops(range(8 * h, 8 * h + 8), 8 * h, lambda nb: ar(aG2 + 4 * nb, 4), False, GA,
                          lambda ks: ar(HB(ks), 4), lambda ks: [("h", ks)], f"g2{h}")
op = gemm(mt, 0, 8, ACC, [], (160, 212), opening="get")
opx = {44 + 2 * k: [it] for k, it in enumerate(op[4:12])}
opx.update({62 + k: [it] for k, it in enumerate(op[:4] + op[12:])})
xtra = {T0 - 1: opx}
if OB:
    its = [it for it in cap(acc_offset) if it.at is None]
    xtra[0] = {1: its[:1]}
    for k, it in enumerate(its[1:]): xtra[0].setdefault(11 + (k * 50) // len(its), []).append(it)
fill = cap(side1)
kv = lambda *a: [g for k in a for g in kv_dma(k[0], int(k[1:]))]
run_tiles(0, T0, fill, {0: kv("V2", "K4", "V3")},
          {1: w2t[0].dma() if SLIM else [], 6: w2t[1].dma(), 17: mt[0].dma(), 19: x1n_dma(2) + x1n_dma(3),
           20: x1n_dma(0) + mt[1].dma(), 21: [] if XREG else x1n_dma(1)},
          {3: [("w2", 0)], 7: [("w2", 1)], 20: [("xn", 3), mt[0].tag]}, {5: g2(0), 8: g2(1)}, {4: 6, 7: 8, 16: 17, 18: 19, 21: 99}, xtra)
stamp()

class Extra:
    def __init__(self, groups): self.groups = groups
    def dma(self): return self.groups


def ph_pack(ks):
    for k in ks:
        pack(ACC, *pieces[k])
        for j in range(4): e(f"v_accvgpr_write_b32 a{PHA(k)+j}, v{ACC(pieces[k][0], 2*pieces[k][2], pieces[k][1])+j}")


def own_x1n(per):
    return {4 * per + 2: [It(f"s_lshl2_add_u32 s{sT}, s{sKS}, s{sTB}", "s")],
            4 * per + 6: [It(f"s_lshl_b32 s{sT}, s{sT}, 10", "s"), It(f"v_add_u32 v{T+9}, s{sT}, v{vBA}", "v")],
            7 * per + 3: [It(f"ds_read_b128 {ar(aXN,4)}, v{T+9}", "l", "xnr")],
            7 * per + 7: [It(f"ds_read_b128 {ar(aXN+4,4)}, v{T+9} offset:8192", "l", "xnr")]}


def mlp_tail(act, pending, nstep, bf):
    P.wait(["xnr"]); e("s_barrier")
    stamp()
    interleave(cap(act), [x + y for x, y in pending], 16)
    gemm_pre(mt, 8)
    P.wait(["hw"]); e("s_barrier")
    stamp()
    g = 32 * (nstep - 2)
    fill = [gate(0, g + 20)] + cap(ph_pack, (0, 2, 4, 6)) + [gate(0, g + 36)] + cap(ph_pack, (1, 3, 5, 7))
    pending = []
    gemm(mt[:8 + nstep] + [Extra(kv_dma("K", T0) + kv_dma("K", T0 + 1))], 8, nstep, ACC, pending, bf, fill=fill)
    assert not pending
    P.wait([("K", T0 + 1)]); e("s_barrier")
    stamp()
    for f in range(8): P.puts(frag_reads(T0 - 1, f))
    P.drain(fill)


def mlp_even():
    P.cmt("==== channel MLP, even groups: 256 hidden columns, one private weight tile per wave and step")
    extra = own_x1n(32)
    extra.update({1: [It("s_barrier", "s")], 2 * 32 + 26: [It(None, "s", need=[("xn", 0), ("xn", 1)])],
                  2 * 32 + 27: [It("s_barrier", "s")],
                  7 * 32 + 10: [It(f"s_lshl_b32 s{sT}, s{sW}, 13", "s"), It(f"v_add_u32 v{T+8}, s{sT}, v{vBA}", "v")]})
    pending = mt[2].dma()
    gemm(mt, 0, 8, ACC, pending, (160, 212), extra=extra, opening="done", dma0=2)

    def act():
        for tb in range(4):
            gelu(16 * tb, 16, 64 + 16 * tb, lambda i: 16 * tb + i, first=tb == 0)
            for s in range(2):
                P.lds(f"ds_write_b128 v{T+8}, {vr(16*tb + 4*s,4)} offset:{s*4096 + tb*1024}", "hw")
    mlp_tail(act, pending, 8, (160, 212))


def mlp_odd():
    P.cmt("==== channel MLP, odd groups: 192 hidden columns, three weight tiles per step shared by the four waves")
    AC3 = lambda nb, tb: (tb * 3 + nb) * 4
    af = lambda s, nb, ks: AF(2 * (nb + (nb == 2) * (s & 1)) + ks)
    bf = lambda s, ks, tb: ar((160, 212)[s & 1] + (ks * 4 + tb) * 4, 4)

    def a3(s, nb):
        t = mt[s]
        base, off = (vAA2, 0) if t.slot == 2 else (vAA, t.slot * 32768)
        return [It(f"ds_read_b64_tr_b16 {ar(af(s,nb,ks)+2*h,2)}, v{base+nb} offset:{off + ks*4096 + h*2048}", "l",
                   ("A", t.tag, nb)) for ks in range(2) for h in range(2)]

    def stage(s):
        t = mt[s]
        if s >= 8: return t.dma()
        return [(([It(f"s_add_u32 m0, s{sRS}, {t.slot*32768 + c*8192}", "s")] if i == 0 else []) +
                 [It(f"s_mov_b32 s{sSO}, {t.base + i*8*3584 + c*128 - i*1024}", "s")],
                 [It(f"buffer_load_dwordx4 v{vDW2}, {srd(SW3)}, s{sSO} offen offset:{i*1024} lds", "g", t.tag)])
                for c in range(3) for i in range(2)]

    REL, RAW, DS = O_("rel", 13), O_("raw", 13), O_("ds", 3)
    DG = {(REL + 1 + DS * k) % 24 for k in range(6)}
    ms, gaps = [], own_x1n(24)
    add = lambda g, it: gaps.setdefault(g, []).append(it)
    for s in range(8):
        t, g0 = mt[s], 24 * s
        for nb in range(3):
            for tb in range(4):
                for n, ks in enumerate(range(2) if not tb & 1 else range(1, -1, -1)):
                    d = vr(AC3(nb, tb), 4)
                    ms.append(It(f"{MF} {d}, {ar(af(s,nb,ks),4)}, {bf(s,ks,tb)}, {d if s or n else 0}", "m",
                                 need=[("A", t.tag, nb), ("B", mt[0].tag, s, tb)]))
        if s == 0:
            for k, it in enumerate(a3(0, 1)[2:] + a3(0, 2)): add((0, 0, 1, 1, 2, 2)[k], it)
        add(g0 + REL - 1, It(None, "s", need=[("A", t.tag, nb) for nb in range(3)]))
        add(g0 + REL, It("s_barrier", "s"))
        if s < 7:
            u = mt[s + 1]
            add(g0 + RAW - 1, It(None, "s", need=[u.tag] + ([("xn", 0), ("xn", 1)] if s == 2 else [])))
            if RAW != REL: add(g0 + RAW, It("s_barrier", "s"))
            c = [g for g in range(RAW + 1, 24) if g not in DG]
            rd = a3(s + 1, 0) + a3(s + 1, 2) + a3(s + 1, 1)
            for k, it in enumerate(rd): add(g0 + max(c[k * len(c) // 12], 16 if k >= 8 else 0), it)
            rd = [It(f"ds_read_b128 {bf(s+1,ks,tb)}, v{vBA} offset:{u.kp*8192 + ks*4096 + tb*1024}", "l",
                     ("B", mt[0].tag, s + 1, tb)) for tb in range(4) for ks in range(2)]
            c = [g for g in range(0 if s else 4, RAW + 1) if g not in DG]
            for k, it in enumerate(rd): add(g0 + c[k * len(c) // 8], it)
        add(g0 + 19, hop())
        if O_("jit2", 0): add(g0 + 4, jitter_item())
        if SSET == "odd": add(g0, stamp_item())
    if SSET == "odd": add(len(ms) - 1, stamp_item())
    add(0, It(f"s_mul_i32 s{sT}, s{sW}, {16*3584 - 128}", "s")); add(0, It(f"v_add_u32 v{vDW2}, s{sT}, v{vDW2}", "v"))
    add(1, It("s_barrier", "s"))
    pending, prev = stage(2), 1
    for g in range(3, len(ms)):
        if g % 24 == REL + 1: pending += stage(g // 24 + 3)
        if pending and g - prev >= 2 and (g % 24 in DG or len(pending) > 6 or g < REL):
            place(add, g, pending.pop(0), prev); prev = g
    HW = (T + 8, T + 9, T + 15)

    def addr():
        P.put(gate(0, 7 * 24 + 12))
        e(f"s_mul_i32 s{sT}, s{sW}, 3")
        for nb in range(3):
            e(f"s_lshr_b32 s{sT+1}, s{sT}, 1"); e(f"s_lshl_b32 s{sT+1}, s{sT+1}, 12"); e(f"s_and_b32 s{sT+2}, s{sT}, 1")
            e(f"s_lshl3_add_u32 s{sT+1}, s{sT+2}, s{sT+1}"); e(f"v_add_u32 v{HW[nb]}, s{sT+1}, v{vBA}"); e(f"s_add_u32 s{sT}, s{sT}, 1")
        e(f"s_sub_u32 s{sT}, s{sRING}, {RING + 65536}")
        for nb in range(4):
            e(f"v_add_u32 v{vAA+nb}, s{sT}, v{vAS+nb}"); e(f"v_add_u32 v{vAA2+nb}, 0x10000, v{vAA+nb}")
    fill = cap(addr)
    P.run_gaps(ms, gaps, fill, gmin=4)
    P.drain(fill)

    def act():
        for tb in range(4):
            gelu(12 * tb, 12, 64 + 12 * tb, lambda i: 12 * tb + i, first=tb == 0)
            for nb in range(3):
                P.lds(f"ds_write_b64 v{HW[nb]}, {vr(12*tb + 2*nb,2)} offset:{tb*1024}", "hw")
    mlp_tail(act, pending, 6, (212, 160))


e(f"s_bitcmp1_b32 s{sG}, 0"); e("s_cbranch_scc1 L_odd")
lab("L_even")
state = (list(P.lq), list(P.vq), set(P.used), set(P.ever), nstamp[0])
mlp_even()
after = (list(P.lq), list(P.vq), set(P.used), set(P.ever), nstamp[0])
main, P.L = P.L, []
P.lq, P.vq, P.used, P.ever, nstamp[0] = state
mlp_odd()
e("s_branch L_join")
assert (P.lq, P.vq) == after[:2] and (SSET or nstamp[0] == after[4]), (P.lq, P.vq, after[:2])
odd_text, P.L = P.L, main
P.lq, P.vq, P.used, P.ever, nstamp[0] = after
lab("L_join")
ph_pack(range(8, 10))
gaps = {g: [] for g in range(64)}
for f in range(8, 16): gaps[16 * (f // 4 - 1) + f % 4] += frag_reads(T0 - 1, f)
for f in range(4):
    gaps[48 + f] += frag_reads(T0, f); issued.add((T0, f))
for k, grp in enumerate(kv_dma("V", T0) + kv_dma("K", T0 + 2)): place(add1, 2 + 4 * k, grp, 4 * k - 2)
fill = cap(ph_pack, range(10, 14)) + cap(first_half, False, (20, 36)) + cap(ph_pack, range(14, 16))
P.run_gaps([m for m, _ in qk_mfmas(T0 - 1)], gaps, fill)
P.drain(fill)
P.wait([("K", T0 + 2), ("V", T0)] + [("F", T0, f) for f in range(4)]); e("s_barrier")
stamp()


XF = [244, 245, 246, 247, 248, 249, T + 10, T + 11]


def side2():
    paced(T0, 60, O_("sstep", 22), [lambda k=k: store_piece(ar(PHA(k), 4), WS_PH, *pieces[k], "phs") for k in range(16)])
    touch_off(T + 8, 4096, 1, 128, [(sG, 1 << 19)], T + 9)
    P.vm(f"buffer_load_dword a255, v{T+8}, {srd(SWO)}, 0 offen")
    code_touch()
    P.put(gate(26, 0)); set_flags(1, 2, ["phs"])
    x_offset(T + 8, 4)
    paced(26, 50, 20, [lambda i=i: P.vm(f"buffer_load_dwordx2 {vr(XF[2*i],2)}, v{T+8}, {srd(SX)}, s{sXF} offen "
                                        f"offset:{(i//2)*128 + (i%2)*32}", "xf") for i in range(4)])
    P.put(gate(27, 40)); p_ph.issue(); o_addr()
    P.put(gate(28, 20)); p_ph.check()
    paced(28, 30, O_("lstep", 22), [lambda k=k: load_piece(WS_PH, ar(PHA(k), 4), k // 2, k % 2, "phl") for k in range(16)])


def o_addr():
    if not PA:
        e(f"v_add_u32 v{T+8}, s{sW4K}, v{vBA}")
        return
    x, y = vDW2, vDW4
    for d, (ro, rb), (co, cb) in ((T + 8, (4, 4), (8, 2)), (T + 9, (6, 4), (4, 2))):
        e(f"v_bfe_u32 v{x}, v{vBA}, {ro}, {rb}"); e(f"v_bfe_u32 v{d}, v{vBA}, {co}, {cb}")
        e(f"v_and_b32 v{y}, 1, v{x}"); e(f"v_xor_b32 v{d}, v{d}, v{y}")
        e(f"v_lshrrev_b32 v{y}, 3, v{x}"); e(f"v_lshlrev_b32 v{y}, 1, v{y}"); e(f"v_xor_b32 v{d}, v{d}, v{y}")
        e(f"v_and_b32 v{y}, 6, v{x}"); e(f"v_lshl_add_u32 v{d}, v{y}, 1, v{d}")
        e(f"v_lshlrev_b32 v{d}, 3, v{d}"); e(f"v_lshl_add_u32 v{d}, v{x}, 7, v{d}")
    e(f"v_add_u32 v{T+8}, s{sW4K}, v{T+8}")


fill = cap(side2)
run_tiles(T0, 31, fill, {T0: kv(f"V{T0+1}", f"K{T0+3}", f"K{T0+4}", f"V{T0+2}"), T0 + 1: kv(f"K{T0+5}", f"V{T0+3}", f"V{T0+4}")}, {O_("wo0", 29): ot[0].dma(), 30: ot[1].dma()}, {}, {}, {30: 99})


vOW, vOR = 208, 212


def o_stage(k, st):
    s, qb = k // 4, k % 4
    b = 8 * (k % 8)
    if "o" in opt.get("cut", "") and k >= 8 and st < 3: return
    if "O" in opt.get("cut", "") and k >= 2: return
    if st == 0:
        for h in range(2):
            for j in range(4): e(f"v_accvgpr_read_b32 v{b+4*h+j}, a{O(2*s+h,qb)+j}")
    elif st == 1:
        for j in range(0, 8, 2):
            e(f"v_pk_fma_f32 {vr(b+j,2)}, {vr(b+j,2)}, {vr(NM(qb) + j%4,2)}, {vr(64 + 4*qb + j%4,2)} neg_lo:[0,0,1] neg_hi:[0,0,1]" if OB else
              f"v_pk_mul_f32 {vr(b+j,2)}, {vr(b+j,2)}, {vr(NM(qb) + j%4,2)}" if PA else
              f"v_pk_mul_f32 {vr(b+j,2)}, {vr(b+j,2)}, {vr(NM(qb),2)} op_sel_hi:[1,0]")
    elif st == 2:
        for j in range(4): e(f"v_cvt_pk_bf16_f32 v{b+j}, v{b+2*j}, v{b+2*j+1}")
    elif PA:
        P.lds(f"ds_write2st64_b64 v{vOW+qb}, {vr(b,2)}, {vr(b+2,2)} offset0:{32*s} offset1:{32*s+4}", "ow")
    else:
        P.lds(f"ds_write_b128 v{T+8}, {vr(b,4)} offset:{s*16384 + qb*1024}", "ow")


LREGS = [4 * qb + j for qb in range(4) for j in range(4 if PA else 1)]


def row_sums():
    for i in LREGS: e(f"v_accvgpr_read_b32 v{vR+i}, a{LACC(0)+i}")


def row_inverses():
    for i in LREGS:
        e(f"v_rcp_f32_dpp v{vR+i}, v{vR+i} row_newbcast:0 row_mask:0xf bank_mask:0xf" if PA and SPARSE else f"v_rcp_f32 v{vR+i}, v{vR+i}")


def vote():
    v = 56
    P.put(gate(31, 36))
    e(f"s_lshl_b32 s{sT+1}, s{sW}, 2"); e(f"s_add_u32 s{sT+1}, s{sT+1}, {RING + 32768}")
    e(f"v_mov_b32 v{v+4}, {f2u(-1.0 if FORCE_REDO else 2.0**64)}"); e(f"v_mov_b32 v{v+5}, s{sT+1}"); e(f"v_mov_b32 v{v+6}, {RING + 32768}")
    P.put(gate(31, 42))
    row_sums()
    r = [vR + i for i in LREGS]
    e(f"v_maximum3_f32 v{v}, v{r[0]}, v{r[1]}, v{r[1]}")
    for i in range(2, len(r), 2): e(f"v_maximum3_f32 v{v}, v{v}, v{r[i]}, v{r[i+1]}")
    e(f"v_cmp_nle_f32 vcc, v{v}, v{v+4}")
    e(f"s_cmp_lg_u64 vcc, 0\n    s_cselect_b32 s{sT}, 1, 0", k="v")
    e(f"v_mov_b32 v{v}, s{sT}")
    P.lds(f"ds_write_b32 v{v+5}, v{v}", "vote")
    inv = P.rec; n0 = len(inv)
    row_inverses()
    k = n0 + min(6, len(LREGS))
    inv[k:k] = [It(None, "s", need=["vote"]), It("s_barrier", "s"), It(f"ds_read_b128 {vr(v,4)}, v{v+6}", "l", "votes")]
    e(f"v_or3_b32 v{v}, v{v}, v{v+1}, v{v+2}", need=["votes"]); e(f"v_or_b32 v{v}, v{v}, v{v+3}")
    e(f"v_readfirstlane_b32 s{sT}, v{v}")


fill = cap(vote)
attn_iter(31, [], fill)
P.drain(fill)
e(f"s_cmp_lg_u32 s{sT}, 0"); e("s_cbranch_scc1 L_redo")
lab("L_att_done")
stamp()

if PA:
    for qb in range(4):
        e(f"v_xor_b32 v{vOW+qb}, {32*qb}, v{T+8}"); e(f"v_xor_b32 v{vOR+qb}, {32*qb}, v{T+9}")
if OB:
    for i in range(16): e(f"v_mul_f32 v{64+i}, s{sOB}, v{vR+i}")
lag = [int(x) for x in opt.get("olag", "0,1,2,3").split(",")]
WG = O_("owg", 1)
for k in range(16 + lag[3] + WG):
    for st in range(3):
        if 0 <= k - lag[st] < 16: o_stage(k - lag[st], st)
    if (k - lag[3]) % WG == WG - 1:
        for j in range(k - lag[3] - WG + 1, k - lag[3] + 1):
            if 0 <= j < 16: o_stage(j, 3)
if SSET == "o": stamp(0)
gemm_pre(ot, 0)
P.wait(["ow"]); e("s_barrier")
if SSET == "o": stamp(0)
stamp()
OACC = lambda nh, nb, tb: 64 + ACC(nh, nb, tb)
PSR = lambda g, nh: nh * 32 + g * 4


def o_side():
    P.put(gate(0, 32 * 8 + 4))
    for p in pieces[:8]: pack(OACC, *p)
    for p, g in zip(pieces, [int(x) for x in opt.get("s0g", "440,448,456,464,472,480,488,496").split(",")]):
        P.put(gate(0, g))
        store_piece(vr(OACC(0, 2 * p[2], p[1]), 4), WS_PS, *p, "s0s")


fill = cap(o_side)
pending = ot[2].dma()
gemm(ot, 0, 16, OACC, pending, (0, 32, 64, 96, (vr, 0), (vr, 32))[:O_("obs", 6)], fill=fill, breg=vOR if PA else vBA, btr=PA)
P.drain(fill)
stamp()
for k, p in enumerate(pieces[8:]):
    pack(OACC, *p); store_piece(vr(OACC(1, 2 * p[2], p[1]), 4), WS_PS, *p, "s1s")
    if k == O_("f0k", 3): set_flags(2, 2, ["s0s"])
vY, vS, vG, vX = 64, 80, 96, 112
for i in range(8): e(f"v_accvgpr_read_b32 v{vG+i}, a{aXN+i}")
for i in range(8):
    e(f"v_lshlrev_b32 v{vY+2*i}, 16, v{vG+i}"); e(f"v_and_b32 v{vY+2*i+1}, 0xffff0000, v{vG+i}")
for i in range(16): e(f"v_fma_f32 v{vY+i}, v{vY+i}, v{vRSTD}, v{vNMEAN}")
for k in range(17):
    if k < 16:
        for j in range(4): e(f"v_accvgpr_read_b32 v{vG + 4*(k%2) + j}, a{PHA(k)+j}", need=[("phl", k // 2, k % 2)])
    if k: add_piece(vY + 8 * ((k - 1) % 2), vG + 4 * ((k - 1) % 2), False, ())
p_s0.issue()
for i in range(16): e(f"v_mul_f32 v{vG+i}, s{sNL2E}, v{vY+i}")
for i in range(16): e(f"v_exp_f32 v{vG+i}, v{vG+i}")
e(f"s_mov_b32 s{sT}, {f2u(GA_ * 2.0**OSH)}")
for i in range(16): e(f"v_fma_f32 v{vG+i}, v{vG+i}, s{sT}, s{sT}")
for i in range(16): e(f"v_rcp_f32 v{vG+i}, v{vG+i}")
for i in range(0, 16, 2): e(f"v_pk_mul_f32 {vr(vG+i,2)}, {vr(vG+i,2)}, {vr(vY+i,2)}")
for i in range(8):
    e(f"v_lshlrev_b32 v{vX+2*i}, 16, v{XF[i]}", need=["xf"]); e(f"v_and_b32 v{vX+2*i+1}, 0xffff0000, v{XF[i]}")
e(f"v_bfe_u32 v200, v{vTOK}, 4, 4"); e("v_lshlrev_b32 v200, 10, v200"); e(f"v_bfe_u32 v201, v{vBA}, 8, 2")
e("v_lshl_add_u32 v200, v201, 4, v200")
set_flags(3, 2, ["s1s"])
stamp(2)
p_s0.check()
for g in range(8): load_piece(WS_PS, vr(PSR(g, 0), 4), g, 0, "psl")
p_s1.issue()


def finish(nh):
    for g in range(8): add_piece(vS + 8 * nh, PSR(g, nh), g == 0, [("psl", g, nh)])
    for i in range(8 * nh, 8 * nh + 8, 2): e(f"v_pk_fma_f32 {vr(vG+i,2)}, {vr(vG+i,2)}, {vr(vS+i,2)}, {vr(vX+i,2)}")
    d = 204 + 4 * nh
    for i in range(4): e(f"v_cvt_pk_bf16_f32 v{d+i}, v{vG+8*nh+2*i}, v{vG+8*nh+2*i+1}")
    for sw in ("v_permlane32_swap_b32", "v_permlane16_swap_b32"):
        for j in range(2): e(f"{sw} v{d+j}, v{d+2+j}")
    P.vm(f"buffer_store_dwordx4 {vr(d,4)}, v200, {srd(SOUT)}, s{sXF} offen offset:{nh*128}")


p_s1.check()
stamp()
for g in range(8): load_piece(WS_PS, vr(PSR(g, 1), 4), g, 1, "psl")
finish(0)
finish(1)
if AMP:
    P.wait_all(); stamp()
    e(f"s_sub_u32 s{sST}, s{sST+2}, s{sST}")
    e(f"s_lshr_b32 s{sST}, s{sST}, 5" if AMP[3] else f"s_lshl_b32 s{sST}, s{sST}, {AMP[2]}")
    if "ampsel" in opt:
        e(f"s_lshr_b32 s{sT}, {opt['ampsel']}, s{sG}"); e(f"s_and_b32 s{sT}, s{sT}, 1"); e(f"s_mul_i32 s{sST}, s{sST}, s{sT}")
    e(f"s_memrealtime {sr(sST+2,2)}"); e("s_waitcnt lgkmcnt(0)")
    lab("L_amp")
    e(f"s_memrealtime {sr(sST+4,2)}"); e("s_waitcnt lgkmcnt(0)")
    e(f"s_sub_u32 s{sST+4}, s{sST+4}, s{sST+2}"); e(f"s_cmp_lt_u32 s{sST+4}, s{sST}"); e("s_cbranch_scc1 L_amp")
if STAMP:
    P.wait_all()
    stamp()
    e(f"s_lshl_b32 s{sT}, s2, 2"); e(f"s_add_u32 s{sT}, s{sT}, s{sW}"); e(f"s_lshl_b32 s{sT}, s{sT}, 8")
    e(f"s_add_u32 s{sT}, s{sT}, {WS_ST}"); e(f"v_lshrrev_b32 v0, 2, v{vBA}")
    P.vm(f"buffer_store_dword v{vSTAMP}, v0, {srd(SWS)}, s{sT} offen")
e("s_endpgm")

lab("L_side")
NPP = O_("npp", 1)
for p in slow_paths:
    lab(f"L_slow_{p.name}")
    if NPP > 1 and p.name in ("s0", "s1"):
        regs = [f"v{216 + i}" for i in range(NPP)]
        ld = lambda i: e(p.loads[0].replace(f"v{vPOLL},", regs[i % NPP] + ","))
        for i in range(NPP - 1):
            ld(i); e(f"s_sleep {O_('pps', 5)}")
        lab(f"L_spin_{p.name}")
        for i in range(NPP):
            ld(i + NPP - 1); e(f"s_waitcnt vmcnt({NPP - 1})")
            e(p.tests[0].replace(f"v{vPOLL}", regs[i])); e(f"s_cbranch_vccz L_back_{p.name}")
        e(f"s_add_u32 s{sSPIN}, s{sSPIN}, 1"); e(f"s_cmp_gt_u32 s{sSPIN}, 0x200000")
        e(f"s_cbranch_scc0 L_spin_{p.name}"); e(f"s_branch L_back_{p.name}")
        continue
    e("s_sleep 1")
    for l in p.loads: e(l)
    e(f"s_add_u32 s{sSPIN}, s{sSPIN}, 1")
    e("s_waitcnt vmcnt(0)")
    for t in p.tests: e(t)
    e(f"s_cmp_gt_u32 s{sSPIN}, 0x200000"); e(f"s_cbranch_scc1 L_back_{p.name}")
    e(f"s_cbranch_vccnz L_slow_{p.name}")
    e(f"s_branch L_back_{p.name}")

lab("L_redo")
P.lq, P.vq = [], []
e(f"s_mov_b32 s{sOB}, 0")
for s in range(4): e(f"v_add_u32 v{KA(s)}, 49152, v{KA(s)}")
for qb in range(4): e(f"v_mov_b32 v{NM(qb)}, 0xff800000")


def redo_tile(kinds, zero):
    P.used = set()
    P.wait_all(); e("s_barrier")
    for kind, lds in kinds: flush(kv_dma(kind, 0, lds=lds, so=f"s{sCNT}"))
    P.wait_all(); e("s_barrier")
    mf = [m for m, _ in qk_mfmas(2, zero=zero)]
    for half in range(2):
        for f in range(8 * half, 8 * half + 8): P.puts(frag_reads(2, f))
        P.puts(mf[32 * half:32 * half + 32])


e(f"s_mov_b32 s{sCNT}, 0")
lab("L_rmax")
redo_tile([("K", 98304)], True)
for qb in range(4):
    regs = [S(1, kb, qb) + i for kb in range(4) for i in range(4)]
    for i in range(0, 16, 2): e(f"v_max3_f32 v{NM(qb)}, v{NM(qb)}, v{regs[i]}, v{regs[i+1]}")
e(f"s_add_u32 s{sCNT}, s{sCNT}, 16384"); e(f"s_cmp_lt_u32 s{sCNT}, 0x80000"); e("s_cbranch_scc1 L_rmax")
allreduce("v_max_f32", [NM(qb) for qb in range(4)], [NM(qb) + 1 for qb in range(4)])
for qb in range(4):
    for i in (1, 2, 3, 0): e(f"v_sub_f32 v{NM(qb)+i}, 0, v{NM(qb)}")
for i in list(range(128)) + list(range(192, 208)): e(f"v_accvgpr_write_b32 a{i}, 0")
e(f"s_mov_b32 s{sCNT}, 0")
lab("L_rpv")
redo_tile([("K", 98304), ("V", 114688)], False)
for half in range(2):
    ex, post = sm_stream(1, half)
    P.puts(ex); P.puts([x for p in post for x in p])
mf = [m for m, _ in pv_mfmas(3)]
for half in range(2):
    for f in range(16 + 8 * half, 24 + 8 * half): P.puts(frag_reads(3, f))
    P.puts(mf[36 * half:36 * half + 36])
e(f"s_add_u32 s{sCNT}, s{sCNT}, 16384"); e(f"s_cmp_lt_u32 s{sCNT}, 0x80000"); e("s_cbranch_scc1 L_rpv")
row_sums(); row_inverses()
e("s_branch L_att_done")
if HOP: P.raw(".p2align 12")
lab("L_odd")
P.L += odd_text
lab("L_end")
e("s_endpgm")
P.L += ['.section .rodata,"a"', ".p2align 6", f".amdhsa_kernel {NAME}",
        "  .amdhsa_next_free_vgpr 512", "  .amdhsa_next_free_sgpr 102", "  .amdhsa_accum_offset 256",
        "  .amdhsa_group_segment_fixed_size 0", "  .amdhsa_kernarg_size 104", "  .amdhsa_user_sgpr_count 2",
        "  .amdhsa_user_sgpr_kernarg_segment_ptr 1", "  .amdhsa_system_sgpr_workgroup_id_x 1",
        "  .amdhsa_float_denorm_mode_32 3", ".end_amdhsa_kernel"]
lines = "\n".join(P.L).split("\n")
ABL = opt.get("abl", "")
if ABL:
    i0 = next(i for i, l in enumerate(lines) if "output projection" in l); i1 = lines.index("L_side:")
    j0 = max(i for i in range(i0, i1) if MF in lines[i])
    keep = []
    for i, l in enumerate(lines):
        if i0 < i < i1:
            if "p" in ABL and "s_cbranch_vccnz L_slow_s" in l: continue
            if "w" in ABL and i > j0 and "vmcnt" in l and "v_dot2" not in lines[i + 1]: continue
            if "l" in ABL and "buffer_load_dwordx4" in l and "sc1" in l: continue
            if "s" in ABL and "buffer_store_dwordx4" in l and "sc1" in l: continue
        keep.append(l)
    lines = keep
if opt.get("tcf"): lines = [l + " " + opt["tcf"] if "_load_dword a255" in l and "sc1" not in l and ", off" not in l else l for l in lines]
lines, added = fix_hazards(lines)
nhop = 0
if HOP: lines, nhop = add_page_hops(lines, sW)
lines = [l for l in lines if "@hop" not in l]
if O_("short", 1): lines = compress(lines)
text = "\n".join(lines) + "\n"
open(OUT_PATH, "w").write(text)
print(f"{OUT_PATH}: {len(lines)} lines, {len(text)} bytes, {added} wait states padded, {nstamp[0]} stamps, {nhop} hops", file=sys.stderr)
```

```python
import re

vr = lambda b, n=1: f"v{b}" if n == 1 else f"v[{b}:{b+n-1}]"
ar = lambda b, n=1: f"a{b}" if n == 1 else f"a[{b}:{b+n-1}]"
sr = lambda b, n=1: f"s{b}" if n == 1 else f"s[{b}:{b+n-1}]"


_TRANS = ("v_exp_", "v_log_", "v_rcp_", "v_rsq_", "v_sqrt_", "v_sin_", "v_cos_")
_SLOW = _TRANS + ("v_permlane",)


class It:
    __slots__ = ("t", "k", "tag", "need", "at")

    def __init__(self, t, k, tag=None, need=(), at=None):
        self.t, self.k, self.tag, self.need, self.at = t, k, tag, tuple(need), at

    @property
    def cost(self):
        return {"s": 0, "l": 4, "g": 8, "v": 4, "x": 8, "m": 8}[self.k]


def gate(*at):
    return It(None, "s", at=at)


class Prog:
    def __init__(self):
        self.L = []
        self.lq = []
        self.vq = []
        self.rec = None
        self.ever, self.used = set(), set()

    def capture(self, fn, *a, **kw):
        assert self.rec is None
        self.rec = []
        fn(*a, **kw)
        out, self.rec = self.rec, None
        return out

    def raw(self, s):
        self.L.append(s)

    def lab(self, s):
        self.L.append(s + ":")

    def cmt(self, s):
        if self.rec is None:
            self.L.append("    ; " + s)

    @staticmethod
    def _cut(q, tags):
        idx = [i for i, t in enumerate(q) if t in tags]
        if not idx:
            return None, q
        last = max(idx)
        return len(q) - 1 - last, q[last + 1:]

    def wait(self, tags):
        tags = set(tags)
        if not tags:
            return False
        if self.rec is not None:
            self.rec.append(It(None, "s", need=tags))
            return False
        assert tags <= self.ever, f"needed before issue: {tags - self.ever}"
        self.used |= tags
        nl, lq = self._cut(self.lq, tags)
        nv, vq = self._cut(self.vq, tags)
        parts = []
        if nv is not None:
            nv = min(nv, 63)
            self.vq = vq[len(vq) - nv:] if nv else []
            parts.append(f"vmcnt({nv})")
        if nl is not None:
            nl = min(nl, 15)
            self.lq = lq[len(lq) - nl:] if nl else []
            parts.append(f"lgkmcnt({nl})")
        if parts:
            self.L.append("    s_waitcnt " + " ".join(parts))
        return bool(parts)

    def wait_all(self, lgkm=True, vm=True):
        parts = []
        if vm:
            parts.append("vmcnt(0)"); self.vq = []
        if lgkm:
            parts.append("lgkmcnt(0)"); self.lq = []
        self.L.append("    s_waitcnt " + " ".join(parts))

    def e(self, s, need=(), k=None):
        if self.rec is not None:
            k = k or ("s" if s.startswith("s_") else "x" if s.startswith(_SLOW) else "v")
            self.rec.append(It(s, k, need=need))
            return
        self.wait(need)
        self.L.append("    " + s)

    def lds(self, s, tag=None, need=()):
        if self.rec is not None:
            self.rec.append(It(s, "l", tag, need))
            return
        self.e(s, need)
        assert tag not in self.used, f"issued after a consumer relied on it: {tag}"
        self.lq.append(tag); self.ever.add(tag)

    def vm(self, s, tag=None, need=()):
        if self.rec is not None:
            self.rec.append(It(s, "g", tag, need))
            return
        self.e(s, need)
        assert tag not in self.used, f"issued after a consumer relied on it: {tag}"
        self.vq.append(tag); self.ever.add(tag)

    def put(self, it):
        if self.rec is not None:
            self.rec.append(it)
        elif it.k == "l":
            self.lds(it.t, it.tag, it.need)
        elif it.k == "g":
            self.vm(it.t, it.tag, it.need)
        elif it.t is None:
            self.wait(it.need)
        else:
            self.e(it.t, it.need)

    def puts(self, its):
        for it in its:
            self.put(it)

    def drain(self, fill):
        while fill:
            self.put(fill.pop(0))

    def run_gaps(self, ms, gaps, fill=None, next_need=(), pos=0, gmin=8, over=0, quiet=()):
        for g, m in enumerate(ms):
            self.put(m)
            items = gaps.get(g, [])
            nxt = ms[g + 1].need if g + 1 < len(ms) else tuple(next_need)
            own = {it.tag for it in items}
            nscal = sum(it.k == "s" and not (it.t or "").startswith(";") for it in items)
            if nxt and not (set(nxt) & own):
                nscal += self.wait(nxt)
            budget = (4 if m.t.startswith("v_smfmac") else 8) + (over if g % 4 == 1 else 0) - sum(it.cost for it in items) - 4 * max(0, nscal - 1)
            head, pre, post = [], [], []
            while fill and g not in quiet:
                it = fill[0]
                if it.at is not None:
                    if (pos, g) < it.at: break
                    fill.pop(0); continue
                if it.k == "s" and not nscal and not pre and not post:
                    head.append(fill.pop(0)); nscal = 1; continue
                cost = it.cost or 4
                if it.k == "g":
                    if head or pre or post or budget < gmin or any(x.k == "g" for x in items): break
                elif cost > budget or (it.k == "l" and post): break
                budget -= cost
                (post if post or it.k in "vx" else pre).append(fill.pop(0))
            self.puts([it for it in items if it.k == "s"] + head)
            self.puts([it for it in items if it.k in "lg"] + pre)
            self.puts([it for it in items if it.k in "vx"] + post)


_REG = re.compile(r"\b([vas])(\d+)\b|\b([vas])\[(\d+):(\d+)\]")


def _regs(op):
    out = set()
    for m in _REG.finditer(op):
        if m.group(1):
            out.add((m.group(1), int(m.group(2))))
        else:
            out |= {(m.group(3), i) for i in range(int(m.group(4)), int(m.group(5)) + 1)}
    if re.search(r"\bvcc(_lo|_hi)?\b", op):
        out.add(("s", "vcc"))
    if re.search(r"\bm0\b", op):
        out.add(("s", "m0"))
    return out


class Ins:
    def __init__(self, line):
        s = line.split(";")[0].strip()
        self.text = s
        p = s.split(None, 1)
        self.op = op = p[0]
        rest = p[1] if len(p) > 1 else ""
        ops = [x.strip() for x in re.split(r",(?![^\[]*\])", rest)] if rest else []
        R = [_regs(o) for o in ops]
        allr = set().union(*R) if R else set()
        self.states = 1
        self.w, self.r = set(), set()
        self.mfma = op.startswith(("v_mfma", "v_smfmac"))
        self.valu = op.startswith("v_") and not self.mfma
        self.trans = op.startswith(_TRANS)
        self.dot = op.startswith("v_dot")
        self.vmem = op.startswith(("buffer_", "global_"))
        self.ds = op.startswith("ds_")
        self.salu = op.startswith("s_")
        self.perm = op.startswith("v_permlane") or "dpp" in op
        self.rdlane = op.startswith(("v_readlane", "v_readfirstlane"))
        self.dma = self.vmem and bool(re.search(r"\blds\b", rest))
        self.wide_store = self.vmem and "store" in op and op.endswith(("x3", "x4"))
        self.ab, self.c, self.data = set(), set(), set()
        if op == "s_nop":
            self.states = int(rest) + 1
        elif self.mfma:
            self.w, self.ab, self.c = R[0], R[1] | R[2], R[3]
            if op.startswith("v_smfmac"): self.ab, self.c = R[1] | R[2] | R[3], R[0]
            self.r = self.ab | self.c
            self.passes = 8 if "32x32" in op or "smfmac" in op else 4
        elif self.valu:
            if op.startswith("v_permlane"):
                self.w = self.r = allr
            else:
                self.w = set(R[0])
                self.r = set().union(*R[1:]) if len(R) > 1 else set()
                if op.startswith(("v_add_co", "v_addc_co", "v_sub_co")):
                    self.w |= R[1]
                    self.r = set().union(*R[2:])
                if op.startswith(("v_fmac", "v_dot2c", "v_writelane")):
                    self.r |= R[0]
                if self.dot:
                    self.ab = R[1] | R[2]
        elif self.vmem:
            if op.startswith(("buffer_inv", "buffer_wbl2")):
                pass
            elif self.dma:
                self.r = allr | {("s", "m0")}
            elif "load" in op:
                self.w, self.r = R[0], set().union(*R[1:])
            else:
                self.r = allr
                self.data = R[0] if op.startswith("buffer") else R[1]
        elif self.ds:
            if "read" in op or "permute" in op:
                self.w, self.r = R[0], set().union(*R[1:])
            else:
                self.r = allr
        elif self.salu and ops and not op.startswith(("s_cmp", "s_bitcmp", "s_cbranch", "s_branch", "s_waitcnt", "s_sleep", "s_setprio")):
            self.w = R[0]
            self.r = set().union(*R[1:]) if len(R) > 1 else set()
        elif self.salu:
            self.r = allr


def _need(p, c):
    n = 0
    pv = {x for x in p.w if x[0] != "s"}
    ps = {x for x in p.w if x[0] == "s"}
    if p.valu:
        if c.mfma and pv & c.r: n = max(n, 2)
        if c.perm and pv & c.r: n = max(n, 2)
        if c.rdlane and pv & c.r: n = max(n, 1)
        if p.trans and c.valu and not c.trans and pv & c.r: n = max(n, 1)
        if p.dot and pv & (c.r | c.w):
            if c.op != p.op or pv & c.ab: n = max(n, 3)
        if ps & c.r:
            n = max(n, 5 if c.vmem else (4 if c.rdlane or c.op.startswith("v_writelane") else 2))
        if ps and c.op.startswith("s_cbranch_vcc"): n = max(n, 2)
    if p.mfma:
        big = {4: 8, 8: 12}[p.passes]
        if c.mfma:
            if p.w & c.ab: n = max(n, big)
            if p.w & c.c and p.w != c.c: n = max(n, big - 2)
            if p.w & c.w and p.w != c.w: n = max(n, big - 2)
        elif (c.valu or c.vmem or c.ds) and p.w & (c.r | c.w):
            n = max(n, big)
        if c.valu and p.c & c.w: n = max(n, {4: 3, 8: 7}[p.passes])
    if p.wide_store and p.data & c.w: n = max(n, 2)
    if p.salu and ("s", "m0") in p.w and c.dma: n = max(n, 1)
    return n


def _is_ins(line):
    s = line.split(";")[0].strip()
    return bool(s) and not s.endswith(":") and not s.startswith(".")


def fix_hazards(lines, window=14):
    out, hist, added = [], [], 0
    for line in lines:
        if not _is_ins(line):
            out.append(line)
            continue
        c = Ins(line)
        dist, short = 0, 0
        for p in reversed(hist):
            short = max(short, _need(p, c) - dist)
            dist += p.states
            if dist > window: break
        if short > 0:
            out.append(f"    s_nop {short-1}")
            hist.append(Ins(f"s_nop {short-1}"))
            added += short
        out.append(line)
        hist.append(c)
        hist = hist[-window - 2:]
    labels = {l.split(":")[0].strip(): i for i, l in enumerate(out) if l.split(";")[0].strip().endswith(":")}
    for i, l in enumerate(out):
        if not _is_ins(l): continue
        b = Ins(l)
        if not b.op.startswith(("s_cbranch", "s_branch")): continue
        tgt = labels[b.text.split()[1]]
        before = [Ins(x) for x in out[max(0, i - 3 * window):i + 1] if _is_ins(x)][-window:]
        after = [Ins(x) for x in out[tgt:tgt + 3 * window] if _is_ins(x)][:window]
        off = 0
        for c in after:
            dist = off
            for p in reversed(before):
                assert _need(p, c) <= dist, f"hazard across branch '{b.text}': '{p.text}' -> '{c.text}'"
                dist += p.states
            off += c.states
            if c.op in ("s_branch", "s_endpgm"): break
    return out, added


SHORT = (("mf", "v_mfma_f32_16x16x32_bf16"), ("rt", "ds_read_b64_tr_b16"), ("pk", "v_cvt_pk_bf16_f32"),
         ("bl", "buffer_load_dwordx4"), ("rq", "ds_read_b128"))


def compress(lines):
    out, done = [], False
    for l in lines:
        if l.startswith(".text") and not done:
            for a, b in SHORT:
                out += [f".macro {a} x:vararg", f" {b} \\x", ".endm"]
            done = True
        if _is_ins(l):
            t = l.strip()
            for a, b in SHORT:
                if t.startswith(b + " "):
                    t = a + t[len(b):]
            l = " " + t.replace(", ", ",")
        out.append(l)
    return out


def instr_sizes(lines, start_label):
    import subprocess, tempfile, os
    d = tempfile.mkdtemp()
    src, obj = os.path.join(d, "a.s"), os.path.join(d, "a.o")
    open(src, "w").write("\n".join(lines) + "\n")
    b = "bin/"
    subprocess.check_call([b + "clang", "-x", "assembler", "-target", "amdgcn-amd-amdhsa", "-mcpu=gfx950", "-c", src, "-o", obj])
    out = subprocess.check_output([b + "llvm-objdump", "-d", "--mcpu=gfx950", obj], text=True).split("\n")
    i = next(k for k, l in enumerate(out) if l.endswith(f"<{start_label}>:"))
    return [4 * len(l.split("//")[1].split(":")[1].split("<")[0].split()) for l in out[i:] if "//" in l]


def add_page_hops(lines, s_wave):
    def sized(a, b):
        sizes = iter(instr_sizes(lines, a))
        return [(l, next(sizes) if _is_ins(l) else 0) for l in lines[lines.index(a + ":"):lines.index(b + ":")]]

    owner, count = {}, [0]

    def walk(body, name, where):
        idx = {l: j for j, (l, _) in enumerate(body) if l.endswith(":")}
        je, jj = idx.get("L_even:", -1), idx.get("L_join:", -1)
        alt = lambda j: je < j < jj
        spots = [(p * 4096, f"{name}{p}") for p in range(1, (where[-1] - 160) // 4096 + 1)]
        todo = {True: [x for x in spots if je >= 0 and where[je] < x[0] <= where[jj]]}
        todo[False] = [x for x in spots if x not in todo[True]]
        if je >= 0: todo[False] = sorted(todo[False] + [(where[je], "odd0"), (where[je] + 1, "join")])
        marks = [j for j, (l, _) in enumerate(body) if l.strip().startswith("; @hop")]
        out, addr, padded, now = [], 0, 0, []

        def pad(key):
            nonlocal addr
            if key in owner:
                out.extend([f"L_pad_{key}:", f"    s_cbranch_execz L_hop{owner[key]}"]); addr += 4
        for j, (l, sz) in enumerate(body):
            page = addr // 4096
            if page > padded and sz:
                prev = next(x for x in reversed(out) if _is_ins(x)).strip()
                if (prev.startswith("v_mfma") and not l.strip().startswith("s_")) or 64 - addr % 4096 - sz < 12:
                    pad(f"{name}{page}"); padded = page
            now.append(addr)
            if j in marks:
                q = todo[alt(j)]
                while q and q[0][0] <= addr + 40: q.pop(0)
                nxt = next((m for m in marks if m > j and alt(m) == alt(j)), jj if alt(j) else len(body))
                rounds = int(l.split("@hop")[1].strip() or "0") or -(-sum(x[0] <= where[nxt] + 64 for x in q) // 4)
                for _ in range(rounds):
                    keys = [q.pop(0)[1] for _ in range(min(4, len(q)))]
                    if len(keys) < 2: break
                    out.append("    s_mov_b64 exec, 0"); addr += 4
                    for w, key in enumerate(keys):
                        owner[key] = count[0]
                        if w < 3:
                            out.extend([f"    s_cmp_eq_u32 s{s_wave}, {w}", f"    s_cbranch_scc1 L_pad_{key}"]); addr += 8
                        else:
                            out.append(f"    s_branch L_pad_{key}"); addr += 4
                    out.extend([f"L_hop{count[0]}:", "    s_mov_b64 exec, -1"]); addr += 4
                    count[0] += 1
                continue
            out.append(l); addr += sz
            if l == "L_join:": pad("join")
            if l == "L_odd:": pad("odd0")
        return out, now + [addr]

    bodies = [(sized("L_main", "L_side"), "pg"), (sized("L_odd", "L_end"), "odd")]
    where = []
    for body, _ in bodies:
        w = [0]
        for _, sz in body: w.append(w[-1] + sz)
        where.append(w)
    for _ in range(8):
        owner.clear(); count[0] = 0
        res = [walk(b, n, w) for (b, n), w in zip(bodies, where)]
        done = [r[1] for r in res] == where
        where = [r[1] for r in res]
        if done: break
    assert done
    i = [lines.index(x + ":") for x in ("L_main", "L_side", "L_odd", "L_end")]
    return lines[:i[0]] + res[0][0] + lines[i[1]:i[2]] + res[1][0] + lines[i[3]:], count[0]
```

```python
import math
import struct
import sys
from asmlib6 import *

OUT_PATH = sys.argv[1]
opt = dict(a.split("=") for a in sys.argv[2:])
O_ = lambda k, d: int(opt.get(k, d))
STAMP = O_("stamp", 0)
SSET = opt.get("sset", "")
FORCE_REDO = O_("redo", 0)
QPERM = O_("qperm", 1)
PA = O_("pa", 1)
OB = O_("ob", -19)
sOB = 100
OWN = O_("own", 1)
sPO, vPO, sPX = (3, 101), 218, 65
OSH = O_("osh", 0)
XREG = O_("xreg", 1)
AHEAD = O_("ahead", 10)
AMP = [int(x) for x in opt["amp"].split(",")] if "amp" in opt else None

NAME = "recurrent_scan__gqa_block_cached__mixer_s_mlp__prompt_kernel"
MF = "v_mfma_f32_16x16x32_bf16"
f2u = lambda x: "0x%08x" % struct.unpack("<I", struct.pack("<f", x))[0]
LOG2E = math.log2(math.e)
QSCALE = LOG2E / math.sqrt(128.0)
GC1 = -2.0 * math.sqrt(2.0 / math.pi) * LOG2E
GC2 = GC1 * 0.044715
EPS = 1e-5
GA_ = (-GC2) ** (1.0 / 3.0)
GK = -GC1 / GA_

SX, SK, SV, SWS, SWQ, SWO, SW1, SW2, SW3, SW4, SOUT, SDBG = range(4, 52, 4)
sG, sM, sW = 52, 53, 54
sT = 55
sW1K, sW4K, sRING, sSO = 60, 61, 62, 63
sSF, sCNT, sSPIN, sHO, sPP, sPC, sFL, sF0, sF1, sSTP, sSTC = range(64, 75)
sLO, sHI, sONE2, sC1, sC2, sNL2E, sF2, sMSK, sKS, sF3, sTB, sSTF, sXF, sRS, sW3B = range(75, 90)
sST = 92
srd = lambda b: sr(b, 4)

WS_H, WS_X1, WS_PS, WS_PH, WS_FL, WS_SS, WS_ST = 0, 0x200000, 0x400000, 0x1400000, 0x2400000, 0x2500000, 0x4000000
PLANE = 131072

vBA, vTOK, vNMEAN, vRSTD, vLANE, vSTAMP, vCODE, vAS, vDW2 = 255, 254, 253, 252, 251, 250, 248, 244, 243
T = 226
vAA, vAA2 = T, T + 4
vBX, vWA, vSC1, vDWQ, vDW1 = T + 8, T + 9, T + 12, T + 14, T + 15
vPA, vPOLL, vONE, vDW4, vDWO = T + 16, T + 15, T + 14, T + 13, T + 12
vTC = T + 10
XR = 128
G12 = 192
S = lambda buf, kb, qb: buf * 64 + qb * 16 + kb * 4
PR = lambda buf, ks, qb: buf * 64 + qb * 16 + ks * 4
vIDX = vSTAMP
NIT = 132
Q = lambda qb, s: 128 + (qb * 4 + s) * 4
NM = lambda qb: 192 + 4 * qb
KA = lambda s: 208 + s
VA = lambda db: 212 + db
KG = lambda i: 220 + i
VG = lambda i: 224 + (i & 1)
vR = NM(0)
O = lambda db, qb: (db * 4 + qb) * 4
FR = lambda f: 128 + (f % 8) * 4
HB = lambda ks: 160 + (ks % 8) * 4
LACC = lambda qb: 192 + 4 * qb
aONES, aG2, aXN = 208, 212, 244
GA = lambda i: 228 + (i % 4) * 4
AF = lambda f: 128 + (f % 8) * 4
PHA = lambda k: (160, 212)[k // 8] + (k % 8) * 4
T0 = 22
RING, VOFF = 65536, 65536

P = Prog()
e, lab, cap = P.e, P.lab, P.capture
slow_paths = []
nstamp = [0]


JIT = O_("jitter", 0)
njit = [0]


def jitter():
    i = njit[0]; njit[0] += 1
    e(f"s_memrealtime {sr(96,2)}"); P.wait_all(vm=False)
    e(f"s_lshr_b32 s96, s96, 14"); e(f"s_lshl_b32 s97, s2, 2" if JIT & 1 else "s_mov_b32 s97, s2")
    if JIT & 1: e(f"s_add_u32 s97, s97, s{sW}")
    e(f"s_add_u32 s96, s96, s97"); e(f"s_add_u32 s96, s96, {i * 7919 + 13}"); e("s_mul_i32 s96, s96, 0x9e3779b1")
    e("s_mov_b32 s98, s96")
    e(f"s_lshr_b32 s96, s96, {32 - (JIT >> 1)}")
    lab(f"L_jit{i}")
    e("s_sleep 8"); e("s_sub_u32 s96, s96, 1"); e(f"s_cbranch_scc0 L_jit{i}")


def jitter_item():
    i = njit[0]; njit[0] += 1
    return It(f"s_mul_i32 s98, s98, 0x41c64e6d\n    s_add_u32 s98, s98, 12345\n    s_lshr_b32 s99, s98, 27\n"
              f"    s_sub_u32 s99, s99, 24\n    s_cbranch_scc1 L_jx{i}\nL_jw{i}:\n    s_sleep {O_('jit2', 0)}\n"
              f"    s_sub_u32 s99, s99, 1\n    s_cbranch_scc0 L_jw{i}\nL_jx{i}:", "s")


def stamp(level=1):
    if JIT and level == 1: jitter()
    if AMP and level == 1:
        i = nstamp[0]; nstamp[0] += 1
        if i in AMP[:2]:
            e(f"{'s_memtime' if AMP[3] else 's_memrealtime'} {sr(sST + 2*AMP.index(i),2)}"); P.wait_all(vm=False)
        return
    if STAMP < level or (SSET and level != 0):
        return
    i = nstamp[0]; nstamp[0] += 1
    e(f"s_memtime {sr(sST,2)}"); e(f"s_memrealtime {sr(sST+2,2)}")
    P.wait_all(vm=False)
    e(f"v_accvgpr_read_b32 v{vSTAMP}, a254")
    e(f"v_writelane_b32 v{vSTAMP}, s{sST}, {2*i}")
    e(f"v_writelane_b32 v{vSTAMP}, s{sST+2}, {2*i+1}")
    e(f"v_accvgpr_write_b32 a254, v{vSTAMP}"); e(f"v_accvgpr_read_b32 v{vSTAMP}, a253")


def stamp_item():
    i = nstamp[0]; nstamp[0] += 1
    return It(f"s_memtime {sr(sST,2)}\n    s_memrealtime {sr(sST+2,2)}\n    s_waitcnt lgkmcnt(0)\n"
              f"    v_accvgpr_read_b32 v{vSTAMP}, a254\n"
              f"    v_writelane_b32 v{vSTAMP}, s{sST}, {2*i}\n    v_writelane_b32 v{vSTAMP}, s{sST+2}, {2*i+1}\n"
              f"    v_accvgpr_write_b32 a254, v{vSTAMP}\n    v_accvgpr_read_b32 v{vSTAMP}, a253", "s")


def mk_srd(d, p, size):
    e(f"s_mov_b32 s{d}, s{p}"); e(f"s_mov_b32 s{d+1}, s{p+1}"); e(f"s_mov_b32 s{d+2}, {size}"); e(f"s_mov_b32 s{d+3}, 0x20000")


def sum_terms(dst, *terms):
    first = True
    for t in terms:
        if isinstance(t, int):
            e(f"s_add_u32 s{dst}, s{dst}, {t}"); continue
        r, k = t
        if k == 0:
            e(f"s_mov_b32 s{dst}, 0"); first = False; continue
        d = dst if first else sT + 4
        e(f"s_lshl_b32 s{d}, s{r}, {k.bit_length()-1}" if k & (k - 1) == 0 else f"s_mul_i32 s{d}, s{r}, {k}")
        if not first: e(f"s_add_u32 s{dst}, s{dst}, s{d}")
        first = False


def allreduce(op, regs, tmps, k=None):
    for sw in ("v_permlane32_swap_b32", "v_permlane16_swap_b32"):
        for r, t in zip(regs, tmps): e(f"v_mov_b32 v{t}, v{r}")
        for r, t in zip(regs, tmps): e(f"{sw} v{r}, v{t}", k=k)
        for r, t in zip(regs, tmps): e(f"{op} v{r}, v{r}, v{t}")


def masked(mask, txt, tag=None, lds=False):
    (P.lds if lds else P.vm)(f"s_mov_b64 exec, {mask}\n    {txt}\n    s_mov_b64 exec, -1", tag)


class Poll:
    def __init__(self, name, loads, tests):
        self.name, self.loads, self.tests = name, loads, tests
        slow_paths.append(self)

    def issue(self):
        for l in self.loads: P.vm(l, self.name)

    def check(self):
        for i, t in enumerate(self.tests): e(t, need=[self.name] if i == 0 else ())
        e(f"s_cbranch_vccnz L_slow_{self.name}\nL_back_{self.name}:", k="v")


def flag_poll(name, s_rd, soff, target):
    return Poll(name, [f"buffer_load_dword v{vPOLL}, v{vPA}, {srd(s_rd)}, {soff} offen sc1"],
                [f"v_cmp_gt_u32 vcc, {target}, v{vPOLL}"])


def set_flags(stage, nlanes, need, val=1):
    e(f"v_mov_b32 v{vONE}, {val}")
    e(f"s_add_u32 s{sSF}, s{sFL}, {stage * 1024}")
    P.wait(need)
    masked((1 << nlanes) - 1, f"buffer_store_dword v{vONE}, v{vLANE}, {srd(SWS)}, s{sSF} offen sc1")


def interleave(code, side, every):
    side = list(side)
    for k, it in enumerate(code):
        if side and k % every == 0: P.puts(side.pop(0))
        P.put(it)
    for x in side: P.puts(x)


def gelu(base, n, tmp, dst, first):
    pairs = range(0, n, 2)
    if "g" in opt.get("cut", ""):
        for i in pairs: e(f"v_cvt_pk_bf16_f32 v{dst(i//2)}, v{base+i}, v{base+i+1}")
        return
    if first: e(f"v_mov_b32 v{vTC}, s{sC1}")
    for i in pairs: e(f"v_pk_fma_f32 {vr(tmp+i,2)}, {vr(base+i,2)}, {vr(base+i,2)}, {vr(vTC,2)} op_sel_hi:[1,1,0]")
    for i in pairs: e(f"v_pk_mul_f32 {vr(tmp+i,2)}, {vr(tmp+i,2)}, {vr(base+i,2)} neg_lo:[0,1] neg_hi:[0,1]")
    for i in range(n): e(f"v_exp_f32 v{tmp+i}, v{tmp+i}")
    for i in pairs: e(f"v_pk_add_f32 {vr(tmp+i,2)}, {vr(tmp+i,2)}, 1.0 op_sel_hi:[1,0]")
    for i in range(n): e(f"v_rcp_f32 v{tmp+i}, v{tmp+i}")
    for i in pairs: e(f"v_pk_mul_f32 {vr(tmp+i,2)}, {vr(tmp+i,2)}, {vr(base+i,2)}")
    for i in pairs: e(f"v_cvt_pk_bf16_f32 v{dst(i//2)}, v{tmp+i}, v{tmp+i+1}")


class Tile:
    def __init__(self, s_rd, voff, base, stride, perm, slot, tag, rows=64, kp=0, nh=0, half=32):
        self.__dict__.update(locals())

    def dma(self):
        out = []
        for i in range(self.rows // 8):
            row = ((0, 16, 4, 20)[i & 3] if self.perm else 8 * (i & 3)) + self.half * (i >> 2)
            so = self.base + row * self.stride - (i & 3) * 1024
            pre = [It(f"s_add_u32 m0, s{sRING}, {self.slot * 32768 + (i >> 2) * 4096}", "s")] if i % 4 == 0 else []
            out.append((pre + [It(f"s_mov_b32 s{sSO}, {so}", "s")],
                        [It(f"buffer_load_dwordx4 v{self.voff}, {srd(self.s_rd)}, s{sSO} offen "
                            f"offset:{(i & 3) * 1024} lds", "g", self.tag)]))
        return out


def place(add, g, grp, prev, avoid=()):
    pre, its = grp
    c = [h for h in range(max(prev + 1, 0), g) if h not in avoid][-len(pre):] if pre else []
    for k, it in enumerate(pre): add(c[k] if len(c) == len(pre) else max(g - len(pre) + k, prev + 1, 0), it)
    for it in its: add(g, it)


def dma_voff(dst, stride, perm, s_base, a):
    b = a + 1
    e(f"v_lshrrev_b32 v{a}, 10, v{vLANE}")
    e(f"v_bfe_u32 v{b}, v{vBA}, 4, 3")
    e(f"v_and_b32 v{dst}, 6, v{a}"); e(f"v_xor_b32 v{b}, v{b}, v{dst}")
    if perm:
        e(f"v_and_b32 v{dst}, 4, v{a}"); e(f"v_add_u32 v{a}, v{a}, v{dst}")
    e(f"v_mul_u32_u24 v{a}, {stride}, v{a}")
    e(f"v_lshl_add_u32 v{a}, v{b}, 4, v{a}")
    e(f"v_add_u32 v{dst}, {s_base}, v{a}")


def a_reads(t, ti, nb):
    base = (vAA2 if t.slot == 2 else vAA) + nb
    off = (t.slot % 2) * 32768 if t.slot < 2 else 0
    return [It(f"ds_read_b64_tr_b16 {ar(AF(nb*2+ks) + 2*h, 2)}, v{base} offset:{off + ks*4096 + h*2048}", "l",
               ("A", t.tag, nb), need=[t.tag]) for ks in range(t.rows // 32) for h in range(2)]


def gemm_pre(tiles, i0):
    P.puts(a_reads(tiles[i0], i0, 0))


def gemm(tiles, i0, n, acc, pending, bf, breg=vBA, extra=None, fill=None, over=0, opening=None, dma0=0, btr=False):
    bf = [x if isinstance(x, tuple) else (ar, x) for x in bf]
    BF = lambda s, ks, tb, o=0, w=4: bf[grp[s] % len(bf)][0](bf[grp[s] % len(bf)][1] + (ks * 4 + tb) * 4 + o, w)
    ms, gaps, start, grp, held, fresh = [], {}, [], [], {}, []
    seen = set()
    for s, ti in enumerate(range(i0, i0 + n)):
        t = tiles[ti]
        fresh.append(t.kp not in held)
        if fresh[s]:
            k = max(grp, default=-1) + 1
            while s and k % len(bf) == grp[s - 1] % len(bf): k += 1
            held = {kp: g for kp, g in held.items() if g % len(bf) != k % len(bf)}
            held[t.kp] = k
        grp.append(held[t.kp])
        start.append(len(ms))
        nks = t.rows // 32
        for nb in range(4):
            for tb in range(4):
                for ks in (range(nks) if not tb & 1 else range(nks - 1, -1, -1)):
                    d = vr(acc(t.nh, nb, tb), 4)
                    c = d if (t.nh, nb, tb) in seen else "0"
                    seen.add((t.nh, nb, tb))
                    ms.append(It(f"{MF} {d}, {ar(AF(nb*2+ks),4)}, {BF(s,ks,tb)}, {c}", "m",
                                 need=[("A", t.tag, nb), ("B", tiles[i0].tag, grp[s], tb)]))
    start.append(len(ms))

    def b_reads(s):
        t = tiles[i0 + s]
        if btr:
            return [It(f"ds_read_b64_tr_b16 {BF(s,ks,tb,2*h,2)}, v{breg+tb} offset:{t.kp*8192 + ks*4096 + h*2048}",
                       "l", ("B", tiles[i0].tag, grp[s], tb)) for tb in range(4) for ks in range(2) for h in range(2)]
        return [It(f"ds_read_b128 {BF(s,ks,tb)}, v{breg} offset:{t.kp*8192 + ks*4096 + tb*1024}", "l",
                   ("B", tiles[i0].tag, grp[s], tb)) for tb in range(4) for ks in range(t.rows // 32)]

    add = lambda g, it: gaps.setdefault(g, []).append(it)
    pre = b_reads(0)
    release = {}
    for s in range(n):
        ti = i0 + s; t = tiles[ti]
        per = (start[s + 1] - start[s]) // 4
        for nb in range(4):
            if s == 0 and nb == 0: continue
            rd = a_reads(t, ti, nb)
            for k, it in enumerate(rd):
                g = start[s] + per * nb - 6 - 2 * (len(rd) - 1 - k)
                if g < 0: pre.append(it)
                else: add(g, it)
        if ti + 3 < len(tiles) and tiles[ti + 3]: release[start[s] + 3 * per] = tiles[ti + 3]
        if s + 1 < n and fresh[s + 1]:
            s0 = s - 1 if s and not fresh[s] and grp[s - 1] % len(bf) != grp[s + 1] % len(bf) else s
            rd = b_reads(s + 1)
            cand = [g for g in range(start[s0], start[s + 1] - 6) if g % 4 == 3]
            if btr: cand = sorted(cand * 2)
            if len(cand) < len(rd): cand = sorted(cand + [start[s0] + 2 * k for k in range(len(rd) - len(cand))])
            step = len(cand) / len(rd)
            for k, it in enumerate(rd): add(cand[int(k * step)], it)
    if opening == "get": return a_reads(tiles[i0], i0, 0) + pre
    if opening == "done": pre = []
    prev = dma0 - 1
    for g in range(dma0, len(ms)):
        if g in release: pending += release[g].dma()
        nxt = min([r for r in release if r > g], default=len(ms) + 24)
        if pending and (g % 4 == 1 or (g % 4 == 3 and len(pending) > (nxt - g + 1) // 4)):
            place(add, g, pending.pop(0), prev); prev = g
    for g, its in (extra or {}).items():
        for it in its: add(g, it)
    for g in start[:-1]: add(g + 10, hop())
    if O_("jit2", 0):
        for g in start[:-1]: add(g + 4, jitter_item())
    if SSET == {id(qt): "q", id(ot): "o"}.get(id(tiles), "mlp"):
        for g in start[:-1] + [len(ms) - 1]: add(g, stamp_item())
    P.puts(pre)
    P.run_gaps(ms, gaps, fill, gmin=4, over=over)


def flush(pending):
    while pending:
        a, b = pending.pop(0)
        P.puts(a + b)


def shared_ops(kss, koff, acc, zero, afr, breg, bneed, name, i0=0):
    out = []
    for nb in range(4):
        for ks in kss:
            i = i0 + len(out)
            d = acc(nb)
            out.append((It(f"{MF} {d}, {ar(afr(i),4)}, {breg(ks)}, {0 if zero and not ks else d}", "m",
                           need=[(name, i)] + list(bneed(ks))),
                        [It(f"ds_read_b64_tr_b16 {ar(afr(i)+2*h,2)}, v{vAS+nb} offset:{(ks-koff)*4096 + h*2048}", "l",
                            (name, i)) for h in range(2)]))
    return out


def pack(acc, nh, tb, s, second=False, guard=False):
    a, b = acc(nh, 2 * s, tb), acc(nh, 2 * s + 1, tb)
    order = list(enumerate((a, a + 2, b, b + 2)))
    d = b if second else a
    for j, r in reversed(order) if second else order: e(f"v_cvt_pk_bf16_f32 v{d+j}, v{r}, v{r+1}")
    if guard:
        for j in range(4): e(f"v_min_u32 v{d+j}, -2, v{d+j}")


def store_piece(src, ws_base, nh, tb, s, tag):
    lane = vPO + (tb >> 1) if OWN and ws_base == WS_PS else vBA
    e(f"s_add_u32 s{sSF}, s{sPP}, {ws_base + (tb >> 1)*65536 + ((tb & 1) + 2*s)*2048}")
    P.vm(f"buffer_store_dwordx4 {src}, v{lane}, {srd(SWS)}, s{sSF} offen offset:{nh*1024} sc1", tag)


def load_piece(ws_base, dst, g, nh, tag):
    if OWN and ws_base == WS_PS: e(f"s_xor_b32 s{sSF}, s{sPX}, {g*8192}")
    else: e(f"s_add_u32 s{sSF}, s{sPC}, {ws_base + g*8192}")
    P.vm(f"buffer_load_dwordx4 {dst}, v{vBA}, {srd(SWS)}, s{sSF} offen offset:{nh*1024} sc1", (tag, g, nh))


def add_piece(dst, reg, first, need):
    for j in range(4):
        for h, sel in enumerate((sLO, sHI)):
            d = dst + 2 * j + h
            e(f"v_dot2_f32_bf16 v{d}, v{reg+j}, s{sel}, {0 if first else 'v%d' % d}", need=need)


def frag_reads(t, f, tail=False):
    if f < 16:
        kb, s = f // 4, f % 4
        off = ((t + 1) % 4) * 16384 + kb * 4096
        return [It(f"ds_read_b128 {ar(FR(f),4)}, v{KA(s)} offset:{off}", "l", ("F", t, f))]
    db, ks = ((f - 16) // 2, (f - 16) % 2) if not tail else ((f - 16) % 8, (f - 16) // 8)
    off = (t % 4) * 16384 + ks * 8192
    return [It(f"ds_read_b64_tr_b16 {ar(FR(f)+2*h,2)}, v{VA(db)} offset:{off + 4096*h}", "l", ("F", t, f))
            for h in range(2)]


def qk_mfmas(t, zero=False):
    out = []
    for kb in range(4):
        for qb in range(4):
            for n, s in enumerate(range(4) if not qb & 1 else range(3, -1, -1)):
                d = vr(S((t + 1) & 1, kb, qb), 4)
                c = d if n else ("0" if zero else vr(NM(qb), 4))
                out.append((It(f"{MF} {d}, {ar(FR(kb*4+s),4)}, {vr(Q(qb,s),4)}, {c}", "m",
                               need=[("F", t, kb * 4 + k) for k in range(4)]), kb * 4 + s))
    return out


def pv_one(t, db, qb, ks, f, need, zero=False):
    o = ar(O(db, qb), 4)
    ab = [ar(FR(f), 4), vr(PR(t & 1, ks, qb), 4)][::-1 if PA else 1]
    return (It(f"{MF} {o}, {ab[0]}, {ab[1]}, {(ar(GA(0), 4) if OB else 0) if zero else o}", "m", need=need), f)


def sum_one(t, qb):
    return (It(f"v_smfmac_f32_16x16x64_bf16 {ar(LACC(qb),4)}, {ar(aONES,4)}, {vr(PR(t&1,0,qb),8)}, v{vIDX}", "m"), None)


def pv_mfmas(t, zero=False):
    out = []
    for db in range(8):
        need = [("F", t, 16 + db * 2), ("F", t, 17 + db * 2)]
        for qb in range(4):
            for n, ks in enumerate(range(2) if not qb & 1 else range(1, -1, -1)):
                out.append(pv_one(t, db, qb, ks, 16 + db * 2 + ks, need, zero and not n))
        if db % 2 == 0: out.append(sum_one(t, db // 2))
    return out


def pv_mfmas_tail(t):
    out = []
    for ks in range(2):
        if ks: out += [sum_one(t, qb) for qb in range(4)]
        for db in range(8):
            f = 16 + ks * 8 + db
            out += [pv_one(t, db, qb, ks, f, [("F", t, f)]) for qb in range(4)]
    return out


def sm_stream(buf, half):
    ex, post = [], []
    for qb in range(4):
        b, d = S(buf, 2 * half, qb), PR(buf, half, qb)
        for j in range(8):
            ex.append(It(f"v_exp_f32 v{b+j}, v{b+j}", "x"))
            post.append([It(f"v_cvt_pk_bf16_f32 v{d + j//2}, v{b+j-1}, v{b+j}", "v")] if j & 1 else [])
    return ex, post


def kv_dma(kind, tile, lds=None, so=None):
    reg, s_rd, base = (KG, SK, 0) if kind == "K" else (VG, SV, VOFF)
    lds = base + (tile % 4) * 16384 if lds is None else lds
    out = []
    for i in range(4):
        pre = [It(f"s_add_u32 m0, s{sW4K}, {lds}", "s"),
               It(f"s_mov_b32 s{sSO}, {tile * 16384 if so is None else so}", "s")] if i == 0 else []
        out.append((pre, [It(f"buffer_load_dwordx4 v{reg(i)}, {srd(s_rd)}, s{sSO} offen offset:{i*1024} lds",
                             "g", (kind, tile))]))
    return out


issued = set()
CLUSTER = O_("cluster", 1)
OVER = [int(x) for x in opt.get("overit", "3,9,13").split(",")]
WINS = [int(x) for x in opt.get("wins", "2,18,34,50,75,92,109,124").split(",")]
WPAT = [int(x) for x in opt.get("wpat", "1").split(",")]


def attn_iter(t, groups, fill, endwait=(), extra=None, ins=None):
    end = T0 - 1 if t < T0 else 31
    last = t == end
    mf = pv_mfmas_tail(t) if last else qk_mfmas(t) + pv_mfmas(t, zero=t == 0)
    ms = [m for m, _ in mf]
    n = len(ms)
    first_use, last_use = {}, {}
    for i, (_, f) in enumerate(mf):
        if f is not None:
            first_use.setdefault(f, i); last_use[f] = i
    reads = []
    for f in sorted(first_use):
        if (t, f) in issued: continue
        reads += [(first_use[f] - AHEAD, last_use.get(f - 8, -1), it) for it in frag_reads(t, f, last)]
    nxt_need = ()
    if t < end - 1:
        for f in range(4):
            reads += [(n + f - AHEAD, last_use[24 + f], it) for it in frag_reads(t + 1, f)]
            issued.add((t + 1, f))
        nxt_need = [("F", t + 1, f) for f in range(4)]
    elif t == end - 1:
        for f in range(16, 19):
            reads += [(n + 4 * (f - 16) - AHEAD, last_use[8 + f], it) for it in frag_reads(end, f, True)]
            issued.add((end, f))
        nxt_need = [("F", end, 16)]
    gaps = {}
    add = lambda g, it: gaps.setdefault(g, []).append(it)
    exg = {}
    wins = [] if last or not CLUSTER else WINS[:min(len(WINS), -(-len(groups) // len(WPAT)))]
    quiet = {w + k for w in wins for k in range(WPAT[-1] + 1)}
    dma_gaps = sorted(w + k for w in wins for k in WPAT)
    narrow = {g for g, m in enumerate(ms) if m.t.startswith("v_smfmac")}
    if last:
        ex, post = sm_stream(t & 1, 1)
        for i in range(32): exg[i] = (ex[i], post[i])
    else:
        for (ex, post), lo, hi in ((sm_stream(t & 1, 1), 0, 63), (sm_stream((t + 1) & 1, 0), 64, n - 1)):
            c = [g for g in range(lo, hi) if g not in quiet]
            for i in range(32):
                g = c[(i * (len(c) + 1)) // 32]
                while g in narrow or g in exg or g in quiet: g += 1
                exg[g] = (ex[i], post[i])
    for g, (x, post) in exg.items():
        add(g, x)
    for g, (x, post) in exg.items():
        h = g + 1
        while not last and (h in exg or h in quiet): h += 1
        for it in post: add(h, it)
    room = lambda g: len(gaps.get(g, [])) < (1 if g in narrow else 2)
    free = set(range(n)) if last else {g for g in range(n) if g not in exg and g not in dma_gaps and room(g)}
    prev, pre, avail = n, [], sorted(free)
    for dl, early, it in reversed(reads):
        c = [g for g in free if g <= dl and g < prev]
        if c and max(c) >= early:
            prev = max(c); free.discard(prev); add(prev, it)
        elif early < 0:
            prev = -1; pre.insert(0, it)
        else:
            c = [g for g in avail if early <= g <= dl + AHEAD - 6]
            g = min([g for g in c if room(g)] or c)
            free.discard(g); gaps.setdefault(g, []).insert(0, it)
    if groups:
        def spaced(c):
            out = []
            for g in c:
                if not out or g - out[-1] >= 2: out.append(g)
            return out
        light = spaced([g for g in sorted(free) if 1 <= g < n - 6 and g not in gaps])
        fr = light if len(light) >= len(groups) - len(dma_gaps) + 4 else spaced([g for g in sorted(free) if 1 <= g < n - 6])
        rest = len(groups) - len(dma_gaps)
        if rest > 0:
            fr = [g for g in fr if not {g - 1, g, g + 1} & set(dma_gaps)]
            if len(fr) < rest: fr = spaced([g for g in range(1, n - 6) if g not in exg and not {g - 1, g, g + 1} & set(dma_gaps)])
            assert len(fr) >= rest, (t, len(fr), len(groups))
            dma_gaps = sorted(dma_gaps + [fr[int(k * len(fr) / rest)] for k in range(rest)])
        for k, grp in enumerate(groups): place(add, dma_gaps[k], grp, dma_gaps[k - 1] if k else -1, {u - 1 for u in first_use.values()})
    if not last:
        add(n - 3, It(None, "s", need=[("K", min(t + 3, end)), ("V", end if t == end - 2 else t + 1)] + list(endwait)))
        add(n - 2, It("s_barrier", "s"))
        add(n - 4, hop())
    for g, its in (extra or {}).items():
        for it in its: add(g, it)
    if SSET == "attn": add(0, stamp_item())
    if O_("jit2", 0):
        for g in (1, n // 2, n - 12): add(g, jitter_item())
    if ins:
        for k in range(3):
            for h, it in enumerate(ins[k][1]): add(1 + 4 * k + 2 * h, it)
        pos = {(13 + (k * (n - 24)) // (len(ins) - 1)) | 1: k for k in range(len(ins))}
        assert len(pos) == len(ins)
        ms2, gaps2, old, quiet = [], {}, quiet, set()
        for g, m in enumerate(ms):
            if g in old: quiet.add(len(ms2))
            gaps2[len(ms2)] = gaps.get(g, []); ms2.append(m)
            if g in pos:
                k = pos[g]
                gaps2[len(ms2)] = list(ins[k + 3][1]) if k + 3 < len(ins) else []
                ms2.append(ins[k][0])
        ms, gaps = ms2, gaps2
    P.puts(pre)
    P.run_gaps(ms, gaps, fill, next_need=nxt_need, pos=t, gmin=4, quiet=quiet, over=4 if t in OVER else 0)


hdr = [l.rstrip("\n") for l in open("header.txt")]
hdr = hdr[:[i for i, l in enumerate(hdr) if "@launch" in l][0]]
P.L += hdr + ["; @launch grid=(256,1,1) block=(256,1,1) lds=163840",
              '.amdgcn_target "amdgcn-amd-amdhsa--gfx950"', ".text", f".globl {NAME}", ".p2align 8",
              f".type {NAME},@function"]
lab(NAME)
e("s_cmp_lt_u32 s2, 256"); e("s_cbranch_scc1 L_go"); e("s_endpgm")
lab("L_go")
if AMP and AMP[0] < 0: e(f"s_memrealtime {sr(sST,2)}")
e("s_load_dwordx16 s[64:79], s[0:1], 0"); e("s_load_dwordx8 s[80:87], s[0:1], 64"); e("s_load_dwordx2 s[88:89], s[0:1], 96")
PAIR = O_("pair", 0)
NS = 16 if PAIR else 32
sMI, sWV = 90, 91
if PAIR:
    e(f"s_and_b32 s{sG}, s2, 3"); e(f"s_and_b32 s{sT}, s2, 2"); e(f"s_add_u32 s{sG}, s{sG}, s{sT}")
    e(f"s_bfe_u32 s{sT}, s2, 0x10003"); e(f"s_lshl1_add_u32 s{sG}, s{sT}, s{sG}")
    e(f"s_lshr_b32 s{sMI}, s2, 4"); e(f"s_and_b32 s{sM}, s2, 4"); e(f"s_lshl_b32 s{sM}, s{sM}, 2"); e(f"s_add_u32 s{sM}, s{sM}, s{sMI}")
else:
    e(f"s_and_b32 s{sG}, s2, 7"); e(f"s_lshr_b32 s{sM}, s2, 3"); e(f"s_lshr_b32 s{sMI}, s2, 3")
e("v_lshrrev_b32 v1, 6, v0"); e("v_and_b32 v0, 63, v0"); e(f"v_readfirstlane_b32 s{sW}, v1")
e(f"v_lshlrev_b32 v{vBA}, 4, v0"); e(f"v_lshlrev_b32 v{vLANE}, 7, v0")
e(f"s_getpc_b64 {sr(sT+1,2)}")
lab("L_pc")
NCL = 10
e(f"s_lshr_b32 s{sT+3}, s2, 3")
sum_terms(sT, (sT + 3, 512), (sW, 128))
e(f"v_min_u32 v6, {NCL-1}, v0"); e(f"v_lshl_add_u32 v6, v6, 14, s{sT}"); e("v_min_u32 v6, L_end-L_pc, v6")
e(f"v_mov_b32 v{vCODE+1}, s{sT+2}"); e(f"v_add_co_u32 v{vCODE}, vcc, s{sT+1}, v6")
e(f"v_addc_co_u32 v{vCODE+1}, vcc, 0, v{vCODE+1}, vcc")
code_touch = lambda: P.vm(f"global_load_dword a255, {vr(vCODE,2)}, off")
masked(O_("cm", 15), f"global_load_dword a255, {vr(vCODE,2)}, off")
sum_terms(sWV, (sMI, 4), (sW, 1))


def touch_off(d, nrows, lines, stride, base_terms, t):
    per = -(-nrows // (NS * 4))
    assert per * lines <= 64 and lines & (lines - 1) == 0
    sh = lines.bit_length() - 1
    e(f"v_lshrrev_b32 v{d}, {7 + sh}, v{vLANE}"); e(f"v_min_u32 v{d}, {per - 1}, v{d}")
    e(f"s_mul_i32 s{sT}, s{sWV}, {per}"); e(f"v_add_u32 v{d}, s{sT}, v{d}")
    if per * NS * 4 != nrows: e(f"v_min_u32 v{d}, {nrows - 1}, v{d}")
    e(f"v_mul_u32_u24 v{d}, {stride}, v{d}")
    sum_terms(sT, *base_terms)
    if lines > 1:
        e(f"v_and_b32 v{t}, {(lines - 1) * 128}, v{vLANE}"); e(f"v_add3_u32 v{d}, v{d}, v{t}, s{sT}")
    else:
        e(f"v_add_u32 v{d}, s{sT}, v{d}")


WQ0 = O_("wq0", 128)
vTQ, vT1, vTK = T + 11, T + 13, T + 16
touch_off(6, WQ0, 8, 8192, [(sG, 1024)], 7)
touch_off(vT1, 512, 1, 1024, [(sG, 128)], 7)
e("v_and_b32 v2, 3, v0")
e("v_lshrrev_b32 v1, 2, v0")
sum_terms(sT, (sM, 64), (sW, 16))
e(f"v_add_u32 v3, s{sT}, v1"); e("v_lshlrev_b32 v3, 10, v3"); e("v_lshl_add_u32 v3, v2, 4, v3")
e(f"s_bfe_u32 s{sT+1}, s{sG}, {0x10000 + PAIR}"); e(f"s_lshl_b32 s{sT+2}, s{sT+1}, 9")
e(f"v_add_u32 v3, s{sT+2}, v3"); e(f"v_xor_b32 v{G12+13}, 0x200, v3")
if STAMP: e("v_accvgpr_write_b32 a254, 0")
e("s_waitcnt lgkmcnt(0)")
stamp()
if SSET == "ln": stamp(0)
ENT = " nt" * O_("ent", 0)
P.vm(f"global_load_dword a255, v{vT1}, s[76:77]{ENT}")
P.vm(f"global_load_dword a255, v6, s[70:71]{ENT}")
for i in range(8):
    P.vm(f"global_load_dwordx4 {vr(XR+4*i,4)}, v3, s[64:65] offset:{i*64}", ("x", i))
HOP = O_("hop", 1)
hop = lambda n="": It(f"; @hop {n}", "s")
if HOP:
    e("s_branch L_main"); P.raw(".p2align 12")
lab("L_main")
e("v_lshlrev_b32 v4, 1, v2"); e("v_xor_b32 v4, v4, v1"); e("v_lshlrev_b32 v4, 4, v4"); e("v_lshl_add_u32 v4, v2, 8, v4")
sum_terms(sT + 2, (sT + 1, 32768), (sW, 1024))
e(f"v_add_u32 v{vWA}, s{sT+2}, v4"); e(f"v_xor_b32 v{vWA+1}, 0x8000, v{vWA}")
e("v_and_b32 v1, 15, v0"); e("v_lshrrev_b32 v2, 4, v0")
e("v_lshlrev_b32 v4, 1, v2"); e("v_xor_b32 v4, v4, v1"); e("v_lshlrev_b32 v4, 4, v4"); e(f"v_lshl_add_u32 v{vBX}, v2, 8, v4")
e(f"v_add_u32 v3, s{sT}, v1"); e("v_lshlrev_b32 v4, 15, v2"); e(f"v_lshl_add_u32 v{vTOK}, v3, 4, v4")
for d, p in ((SK, 66), (SV, 68)):
    e(f"s_lshl_b32 s{sT}, s{sG}, 19")
    e(f"s_add_u32 s{d}, s{p}, s{sT}"); e(f"s_addc_u32 s{d+1}, s{p+1}, 0"); e(f"s_mov_b32 s{d+2}, 0x80000"); e(f"s_mov_b32 s{d+3}, 0x20000")
for d, p, size in ((SX, 64, 0x200000), (SWQ, 70, 0x400000), (SW1, 76, 0x80000), (SWS, 88, 0x10000000),
                   (SWO, 72, 0x400000), (SW2, 78, 0x80000), (SW3, 80, 1835008), (SW4, 82, 1835008),
                   (SOUT, 84, 0x200000), (SDBG, 86, 256)):
    mk_srd(d, p, size)
sum_terms(sRING, (sW, 8192), RING); sum_terms(sW1K, (sW, 1024)); sum_terms(sW4K, (sW, 4096))
sum_terms(sT, (sG, 1024), (sW, 256)); dma_voff(vDWQ, 8192, True, f"s{sT}", 10)
sum_terms(sT, (sW, 65536), (sG, 128)); dma_voff(vDW1, 1024, True, f"s{sT}", 10); dma_voff(vDW2, 1024, False, f"s{sT}", 10)
for r, v in ((sLO, "0x00003f80"), (sHI, "0x3f800000"), (sONE2, "0x3f803f80"), (sC1, f2u(GK)), (sC2, f2u(GA_)),
             (sNL2E, f2u(-LOG2E / GA_)), (sSPIN, opt.get("spin0", 0)), (sMSK, "0xffff0000")):
    e(f"s_mov_b32 s{r}, {v}")
sum_terms(sF0, (sM, 4096), (sW, 256), WS_FL)
sum_terms(sFL, (sG, 4), (sF0, 1))
sum_terms(sF1, (sM, 4096), (sG, 128), WS_FL + 1024)
e(f"s_add_u32 s{sF2}, s{sF1}, 1024"); e(f"s_add_u32 s{sF3}, s{sF1}, 2048")
sum_terms(sSTC, (sM, 4096), (sW, 1024), WS_SS)
sum_terms(sSTP, (sG, 128), (sSTC, 1))
sum_terms(sPP, (sM, 1 << 19), (sW, 1 << 17), (sG, 1 << 13))
sum_terms(sPC, (sM, 1 << 19), (sG, 1 << 16), (sW, 1 << 11))
e(f"s_lshl_b32 s{sHO}, s{sG}, 18")
if OWN:
    for u in range(2):
        e(f"s_lshl1_add_u32 s{sT}, s{sW}, {u}"); e(f"s_cmp_eq_u32 s{sT}, s{sG}"); e(f"s_cselect_b32 s{sPO[u]}, 0x7f000000, 0")
e(f"s_and_b32 s{sKS}, s{sG}, 6"); e(f"s_lshl_b32 s{sKS}, s{sKS}, 1"); e(f"s_lshr_b32 s{sT}, s{sW}, 1"); e(f"s_add_u32 s{sKS}, s{sKS}, s{sT}")
e(f"s_and_b32 s{sTB}, s{sG}, 1"); e(f"s_lshl_b32 s{sTB}, s{sTB}, 1"); e(f"s_and_b32 s{sT}, s{sW}, 1"); e(f"s_add_u32 s{sTB}, s{sTB}, s{sT}")
sum_terms(sSTF, (sM, 4096), (sTB, 1024), WS_SS)
sum_terms(sXF, (sM, 65536), (sTB, 16384), (sKS, 64))
e(f"s_and_b32 s{sT}, s{sG}, 1"); sum_terms(sW3B, (sG, 448), (sT, 64)); sum_terms(sRS, (sW, 2048), RING)
e("v_lshrrev_b32 v6, 2, v0"); e("v_and_b32 v7, 3, v0"); e("v_lshlrev_b32 v7, 3, v7"); e("v_lshl_add_u32 v7, v6, 7, v7")
e("v_bfe_u32 v6, v0, 3, 2")
for nb in range(4):
    e(f"v_xor_b32 v10, {nb}, v6"); e("v_lshl_add_u32 v10, v10, 5, v7")
    e(f"v_add_u32 v{vAS+nb}, {RING + 32768}, v10")
    if QPERM:
        e("v_lshrrev_b32 v8, 2, v0"); e("v_and_b32 v9, 6, v8"); e("v_and_b32 v10, 3, v0"); e("v_xor_b32 v9, v9, v10")
        e(f"v_xor_b32 v9, {4*(nb>>1)}, v9"); e("v_lshlrev_b32 v9, 4, v9"); e("v_lshl_add_u32 v10, v8, 7, v9")
        if nb & 1: e("v_add_u32 v10, 8, v10")
    e(f"v_add_u32 v{vAA+nb}, s{sRING}, v10"); e(f"v_add_u32 v{vAA2+nb}, 0x10000, v{vAA+nb}")
e("v_xor_b32 v9, v2, v1")
for s in range(4):
    e(f"v_xor_b32 v10, {4*s}, v9"); e("v_lshlrev_b32 v10, 4, v10"); e(f"v_lshl_add_u32 v{KA(s)}, v1, 8, v10")
e("v_lshrrev_b32 v9, 2, v0"); e("v_lshlrev_b32 v10, 8, v9"); e("v_and_b32 v11, 3, v0")
e("v_lshl_add_u32 v10, v11, 3, v10"); e(f"v_add_u32 v10, {VOFF}, v10"); e("v_and_b32 v9, 7, v9")
for db in range(8):
    e(f"v_xor_b32 v11, {db}, v9"); e(f"v_lshl_add_u32 v{VA(db)}, v11, 5, v10")
e(f"v_lshl_add_u32 v10, v2, 8, s{sW4K}")
for i in range(4):
    e(f"v_add_u32 v9, {4*i}, v2"); e("v_xor_b32 v11, v9, v1"); e(f"v_lshl_add_u32 v{KG(i)}, v11, 4, v10")
    if i < 2:
        e("v_lshlrev_b32 v9, 1, v9"); e("v_xor_b32 v11, v9, v1"); e(f"v_lshl_add_u32 v{VG(i)}, v11, 4, v10")
e(f"v_lshlrev_b32 v{G12+8}, 4, v1")
if WQ0 < 512: touch_off(vTQ, 512 - WQ0, 8, 8192, [(sG, 1024), WQ0 * 8192], 7)
SLIM = O_("slim", 1)
touch_off(vTK, 256 if SLIM else 512, 1, 128, [(sG, 0)], 7)


def late_touch():
    P.vm(f"buffer_load_dword a255, v{vTK}, {srd(SK)}, 0 offen"); P.vm(f"buffer_load_dword a255, v{vTK}, {srd(SV)}, 0 offen")
    if not SLIM:
        P.vm(f"buffer_load_dword a255, v{vT1}, {srd(SW2)}, 0 offen")
        code_touch()


LTG = O_("ltg", 4)
XQ = O_("xq", 3)


w1t = [Tile(SW1, vDW1, k * 4 * 65536, 1024, True, 1 + k, "w1") for k in range(2)]
w2t = [Tile(SW2, vDW2, k * 4 * 65536, 1024, False, 2, ("w2", k)) for k in range(2)]
qt = [Tile(SWQ, vDWQ, (i // 2) * 64 * 8192 + (i % 2) * 128, 8192, True, i % 3, ("wq", i), kp=i // 2, nh=i % 2)
      for i in range(16)] + ([] if SLIM else [None, w2t[0]])
mt = [Tile(SW3, vDW2, kp * 64 * 3584, 3584, False, (2 - i) % 3, ("w3", kp), kp=kp)
      for i, kp in enumerate((4, 5, 6, 7, 0, 1, 2, 3))]
mt += [Tile(SW4, vDW4, (i // 2) * 65536 + (i % 2) * 128, 1024, False, (2 - 8 - i) % 3, ("w4", i), kp=i // 2, nh=i % 2)
       for i in range(8)]
ot = [Tile(SWO, vDWO, ((kp & 1) * 256 + (kp >> 1) * 32) * 1024 + nh * 128, 1024, False, (nh * 8 + i + 2) % 3,
           ("wo", nh, kp), kp=kp, nh=nh, half=128)
      for nh in range(2) for i, kp in enumerate(range(8) if nh == 0 else (2, 3, 4, 0, 5, 1, 6, 7))]

a = G12


def quad_sum(regs):
    for qp in ("[1,0,3,2]", "[2,3,0,1]"):
        for r in regs: e(f"v_add_f32_dpp v{r}, v{r}, v{r} quad_perm:{qp} row_mask:0xf bank_mask:0xf")


def ln_stats(lo, hi):
    for i in range(lo, hi):
        c = lambda r: f"v{r}" if i >= 2 else 0
        e(f"v_dot2_f32_bf16 v{a + i % 2}, v{XR+i}, s{sONE2}, {c(a + i % 2)}", need=[("x", i // 4)])
        e(f"v_dot2_f32_bf16 v{a + 2 + i % 2}, v{XR+i}, v{XR+i}, {c(a + 2 + i % 2)}")


def unpack(k):
    for i in range(4 * k, 4 * k + 4):
        e(f"v_lshlrev_b32 v{2*i}, 16, v{XR+i}"); e(f"v_and_b32 v{2*i+1}, s{sMSK}, v{XR+i}")


def ln_rest():
    ln_stats(32, 64)
    e(f"v_add_f32 v{a}, v{a}, v{a+1}"); e(f"v_add_f32 v{a+2}, v{a+2}, v{a+3}")
    quad_sum([a, a + 2])
    e(f"v_mul_f32 v{a+4}, {f2u(-1/512)}, v{a}"); e(f"v_mul_f32 v{a+2}, {f2u(1/512)}, v{a+2}")
    e(f"v_fma_f32 v{a}, -v{a+4}, v{a+4}, v{a+2}"); e(f"v_max_f32 v{a}, 0, v{a}")
    e(f"v_add_f32 v{a+1}, {f2u(EPS)}, v{a}")
    e(f"v_rsq_f32 v{vRSTD}, v{a+1}")
    unpack(8)
    e(f"v_mul_f32 v{a+2}, {f2u(QSCALE)}, v{vRSTD}"); e(f"v_mul_f32 v{a+3}, v{a+4}, v{a+2}")
    for k in range(17):
        if k < 16:
            for i in range(4 * k, 4 * k + 4):
                e(f"v_pk_fma_f32 {vr(2*i,2)}, {vr(2*i,2)}, {vr(a+2,2)}, {vr(a+2,2)} op_sel:[0,0,1] op_sel_hi:[1,0,1]")
        if k: P.lds(f"ds_write_b128 v{vWA + (k-1)//8}, {vr(XR+4*k-4,4)} offset:{((k-1)%8)*4096}", "xw")
        if k % 2 == 0 and 9 + k // 2 < 16: unpack(9 + k // 2)
        if k < 16:
            for i in range(4 * k, 4 * k + 4): e(f"v_cvt_pk_bf16_f32 v{XR+i}, v{2*i}, v{2*i+1}")
    e(f"v_mul_f32 v{a}, v{a}, v{vRSTD}"); e(f"v_mul_f32 v{a}, v{a}, v{vRSTD}")
    e(f"v_add_f32 v{a}, {f2u(EPS)}, v{a}")
    e(f"v_rsq_f32 v{vSC1}, v{a}")
    e(f"v_mul_f32 v{vRSTD}, s{sC2}, v{vRSTD}")
    e(f"v_mul_f32 v{vSC1}, {f2u(GA_/QSCALE)}, v{vSC1}")
    e(f"v_mul_f32 v{vNMEAN}, v{a+4}, v{vRSTD}")
    e(f"v_add_u32 v{vWA}, s{sW1K}, v{vBX}")


if SSET == "ln": stamp(0)
P.put(hop(O_("hop00", 1)))
wq_rest = lambda: P.vm(f"buffer_load_dword a255, v{vTQ}, {srd(SWQ)}, 0 offen{ENT}") if WQ0 < 512 else None
if LTG == 4: XQ = 4
if XQ == 0: wq_rest()
if LTG == 0: late_touch()
for i in range(8):
    P.vm(f"buffer_load_dwordx4 {vr(XR+32+4*i,4)}, v{G12+13}, {srd(SX)}, 0 offen offset:{i*64}", ("x", 8 + i))
if XQ == 1: wq_rest()
if LTG == 1: late_touch()
if SSET == "ln": stamp(0)
P.put(hop(O_("hop0", 1)))
for k in range(8):
    ln_stats(4 * k, 4 * k + 4); unpack(k)
if O_("hop1", 1): P.put(hop(O_("hop1", 1)))
stamp(2)
if SSET == "ln":
    stamp(0); P.wait([("x", 15)]); stamp(0)
code = cap(ln_rest)
if "l" in opt.get("cut", ""): code = [it for it in code if not (it.t or "").startswith(("v_pk_fma", "v_cvt", "v_lshlrev", "v_and"))]
k = O_("lnat", 40)
P.puts(code[:k])
Q0LN = O_("q0ln", 1)
side = [x + y for t in w1t + qt[:Q0LN] for x, y in t.dma()]
if LTG == 4:
    j = O_("ltpos", 24)
    side[j:j] = [[it] for it in cap(wq_rest) + cap(late_touch)]
interleave(code[k:], side, O_("lnev", 9))
if SSET == "ln":
    stamp(0); P.wait(["w1"]); stamp(0)
for r in (vNMEAN, vRSTD, vSC1): P.lds(f"ds_bpermute_b32 v{r}, v{G12+8}, v{r}", "stat")
xb = [It(f"ds_read_b128 {ar(4*ks,4)}, v{vWA} offset:{ks*4096}", "l", ("xb", ks)) for ks in range(16)]
P.puts(xb[:8])
stamp(2)
P.wait(["xw", "w1"]); e("s_barrier")
stamp()
if SSET == "ln": stamp(0)

g1 = lambda h: shared_ops(range(8 * h, 8 * h + 8), 0, lambda nb: vr(G12 + 4 * nb, 4), True, lambda i: 160 + (i % 16) * 4,
                          lambda ks: ar(4 * ks, 4), lambda ks: [("xb", ks)], "g1", 32 * h)
ops = g1(0) + g1(1)
gaps = {g: [] for g in range(64)}
add1 = lambda g, it: gaps[g].append(it)
for i in range(6, 64): gaps[i - 6] += ops[i][1]
for k in range(8): add1(2 + 3 * k, xb[8 + k])
if not Q0LN:
    for k, grp in enumerate(qt[0].dma()): place(add1, 1 + 3 * k, grp, 3 * k - 2)
for k, it in enumerate((cap(wq_rest) if XQ == 3 else []) + (cap(late_touch) if LTG == 3 else [])): add1(O_("ltat", 0) + 2 * k, it)
add1(31, It("s_barrier", "s"))
for k, grp in enumerate(qt[1].dma()): place(add1, 34 + 3 * k, grp, 31 + 3 * k)
ACC = lambda nh, nb, tb: ((nh * 4 + tb) * 4 + nb) * 4
op = gemm(qt, 0, 16, ACC, [], (64, 96), breg=vBX, opening="get")
for k, it in enumerate(op[4:12]): add1(40 + 2 * k, it)
for k, it in enumerate(op[:4] + op[12:]): add1(58 + k // 2, it)
for i in range(6): P.puts(ops[i][1])
P.run_gaps([m for m, _ in ops], gaps, next_need=[op[0].tag, op[4].tag])
stamp()



def q_side():
    x, t = G12, XR
    P.put(gate(0, 8))
    for i in range(16): e(f"v_mul_f32 v{x+i}, v{x+i}, v{vSC1}", need=["stat"])
    for i in range(16): e(f"v_fma_f32 v{t+i}, -v{x+i}, v{x+i}, -s{sC1}")
    for i in range(16): e(f"v_mul_f32 v{t+i}, v{t+i}, v{x+i}")
    for i in range(16): e(f"v_exp_f32 v{t+i}, v{t+i}", k="v")
    for i in range(16): e(f"v_add_f32 v{t+i}, 1.0, v{t+i}")
    for i in range(16): e(f"v_rcp_f32 v{t+i}, v{t+i}", k="v")
    for i in range(16): e(f"v_mul_f32 v{t+i}, v{t+i}, v{x+i}")
    for i in range(8): e(f"v_cvt_pk_bf16_f32 v{t+16+i}, v{t+2*i}, v{t+2*i+1}")
    e(f"v_lshrrev_b32 v{t}, 5, v{vBA}"); e(f"v_and_b32 v{t+1}, 128, v{vLANE}"); e(f"v_lshl_add_u32 v{t}, v{t}, 10, v{t+1}")
    e(f"v_mov_b32 v{t+1}, 0"); e(f"v_mov_b32 v{t+2}, -1"); e(f"v_mov_b32 v{t+3}, -1"); e(f"v_lshrrev_b32 v{t+4}, 1, v{vBA}")
    for nb in range(4): e(f"v_add_u32 v{vAS+nb}, 32768, v{vAS+nb}")
    e(f"v_mov_b32 v{t+5}, {hex(((127 - OSH) << 7) * 0x10001)}")
    e(f"v_and_b32 v{t+6}, 0xe0, v{vBA}"); e(f"v_cmp_eq_u32 vcc, 0, v{t+6}"); e(f"v_cndmask_b32 v{t+5}, 0, v{t+5}, vcc")
    e(f"v_bfe_i32 v{t+6}, v{vBA}, 4, 1"); e(f"v_and_b32 v{t+6}, 0xaaaaaaaa, v{t+6}"); e(f"v_or_b32 v{t+6}, 0x44444444, v{t+6}")
    if STAMP: e(f"v_accvgpr_write_b32 a253, v{t+6}")
    e(f"v_mov_b32 v{vIDX}, v{t+6}")
    for i in range(16): e(f"v_accvgpr_write_b32 a{LACC(0)+i}, 0")
    for i in range(4): e(f"v_accvgpr_write_b32 a{aONES+i}, v{t+5}")

    P.put(gate(0, O_("hgate", 13 * 32 + 23)))
    if LTG == 2: late_touch()
    for s in range(2):
        e(f"s_add_u32 s{sSF}, s{sHO}, {WS_H + s*PLANE}")
        P.vm(f"buffer_store_dwordx4 {vr(t+16+4*s,4)}, v{vTOK}, {srd(SWS)}, s{sSF} offen sc1", "hst")
    masked(255, f"buffer_store_dword v{t+1}, v{t}, {srd(SWS)}, s{sFL} offen sc1", "hst")
    masked(0xffff, f"buffer_store_dwordx2 {vr(t+2,2)}, v{t+4}, {srd(SWS)}, s{sSTP} offen sc1", "hst")


fill = cap(q_side)
pending = qt[2].dma()
gemm(qt, 0, 16, ACC, pending, (64, 96), breg=vBX, fill=fill, opening="done", extra={1: [It("s_barrier", "s")]}, dma0=2)
assert not fill and not pending
e("s_barrier")
stamp()


def q_pack():
    for tb in range(4):
        for s in range(4):
            b = ACC(s // 2, 2 * (s % 2), tb)
            for j in range(4): e(f"v_cvt_pk_bf16_f32 v{Q(tb,s)+j}, v{b+2*j}, v{b+2*j+1}")
        for sw in () if QPERM else ("v_permlane32_swap_b32", "v_permlane16_swap_b32"):
            for s in range(4):
                for j in range(2): e(f"{sw} v{Q(tb,s)+j}, v{Q(tb,s)+2+j}")


early = (("K", 0), ("K", 1)) if QPERM else (("K", 0), ("K", 1), ("V", 0))
interleave(cap(q_pack), [x + y for k in early for x, y in kv_dma(*k)], 8 if QPERM else 10)
P.wait(["hst", ("K", 0)]); e("s_barrier")
stamp()

for f in range(8): P.puts(frag_reads(-1, f))
gaps = {g: [] for g in range(64)}
for k, grp in enumerate(kv_dma("V", 0) if QPERM else kv_dma("K", 2)): place(add1, 2 + 4 * k, grp, -1)
P.run_gaps([m for m, _ in qk_mfmas(-1, zero=True)[:16]], gaps)
for f in range(8, 12): P.puts(frag_reads(-1, f))
for qb in range(4): e(f"v_max3_f32 v{NM(qb)}, v{S(0,0,qb)}, v{S(0,0,qb)+1}, v{S(0,0,qb)+2}")
for qb in range(4): e(f"v_max_f32 v{NM(qb)}, v{NM(qb)}, v{S(0,0,qb)+3}")
allreduce("v_max_f32", [NM(qb) for qb in range(4)], [NM(qb) + 1 for qb in range(4)])
e(f"s_mov_b32 s{sT}, {f2u(float(opt.get('pd', -25.4)))}")
for qb in range(4):
    for i in (1, 2, 3, 0): e(f"v_sub_f32 v{NM(qb)+i}, s{sT}, v{NM(qb)}")


def first_half(shift, gates):
    for kb in range(2):
        P.put(gate(0, gates[kb]))
        for qb in range(4):
            b = S(0, kb, qb)
            if shift and not kb:
                for j in range(4): e(f"v_add_f32 v{b+j}, v{b+j}, v{NM(qb)}")
            for j in range(4): e(f"v_exp_f32 v{b+j}, v{b+j}")
        for qb in range(4):
            b = S(0, kb, qb)
            for j in range(2): e(f"v_cvt_pk_bf16_f32 v{PR(0,0,qb)+2*kb+j}, v{b+2*j}, v{b+2*j+1}")


gaps = {g: [] for g in range(64)}
for f in range(12, 16): gaps[16 + (f - 12)] += frag_reads(-1, f)
add1(30, It(None, "s", need=[("K", 1)])); add1(31, It("s_barrier", "s"))
for f in range(4):
    gaps[32 + f] += frag_reads(0, f); issued.add((0, f))
if QPERM:
    for k, grp in enumerate(kv_dma("K", 2) + kv_dma("V", 1) + kv_dma("K", 3)): place(add1, 2 + 4 * k, grp, 4 * k - 2)
else:
    for k, grp in enumerate(kv_dma("V", 1) + kv_dma("K", 3)): place(add1, 3 + 6 * k, grp, 6 * k - 3)
fill = cap(first_half, True, (0, 20))
P.run_gaps([m for m, _ in qk_mfmas(-1)[16:]], gaps, fill)
P.drain(fill)
e(f"v_mov_b32 v{T}, 1"); e(f"s_lshl_b32 s{sSF}, s{sM}, 3")
e(f"s_cmp_lg_u32 s{sW}, 0"); e("s_cbranch_scc1 L_noarr"); e("s_mov_b64 exec, 1")
e(f"buffer_atomic_add v{T}, off, {srd(SDBG)}, s{sSF} sc1"); e("s_mov_b64 exec, -1")
lab("L_noarr")
P.wait([("K", 2), ("V", 0)] + [("F", 0, f) for f in range(4)]); e("s_barrier")
stamp()

p_h = flag_poll("h", SDBG, 0, 8)
p_x = flag_poll("x1", SWS, f"s{sF0}", 1)
p_st = Poll("st", [f"buffer_load_dwordx2 {vr(T+2*j,2)}, v{vPA}, {srd(SWS)}, s{(sSTC, sSTF)[j//2]} offen offset:{128*(j%2)} sc1"
                   for j in range(4)],
            [f"v_max3_u32 v{T+8}, v{T}, v{T+1}, v{T+2}", f"v_max3_u32 v{T+8}, v{T+8}, v{T+3}, v{T+4}",
             f"v_max3_u32 v{T+8}, v{T+8}, v{T+5}, v{T+6}", f"v_max_u32 v{T+8}, v{T+8}, v{T+7}",
             f"v_cmp_eq_u32 vcc, -1, v{T+8}"])
p_ph, p_s0, p_s1 = (flag_poll(n, SWS, f"s{r}", 1) for n, r in (("ph", sF1), ("s0", sF2), ("s1", sF3)))


pieces = [(nh, tb, s) for nh in range(2) for tb in range(4) for s in range(2)]


def x_offset(d, bits=11):
    e(f"v_bfe_u32 v{d}, v{vTOK}, 4, {bits}"); e(f"v_lshlrev_b32 v{d}, 10, v{d}")
    e(f"v_bfe_u32 v{d+1}, v{vBA}, 8, 2"); e(f"v_lshl_add_u32 v{d}, v{d+1}, 3, v{d}")


def paced(t, g, step, fns):
    for k, fn in enumerate(fns):
        p = g + k * step
        P.put(gate(t + p // NIT, p % NIT)); fn()


def h_loads(half, t, g):
    e(f"v_bfe_u32 v{T}, v{vTOK}, 4, 11")
    for k, d in enumerate(((-1, 1), (-2, 2))[half]):
        e(f"v_add_u32 v{T+1}, {d}, v{T}"); e(f"v_cmp_gt_u32 vcc, 0x800, v{T+1}")
        e(f"v_add_u32 v{T+1}, {16*d}, v{vTOK}"); e(f"v_mov_b32 v{T+2+k}, 0x7f000000")
        e(f"v_cndmask_b32 v{T+2+k}, v{T+2+k}, v{T+1}, vcc")

    def one(ks):
        e(f"s_mov_b32 s{sSF}, {WS_H + ks*PLANE}")
        P.vm(f"buffer_load_dwordx4 {ar(HB(ks),4)}, v{T + 2 + (ks%8)//4}, {srd(SWS)}, s{sSF} offen sc1", ("h", ks))
    paced(t, g, O_("hstep", 18), [lambda ks=ks: one(ks) for ks in range(8 * half, 8 * half + 8)])


def acc_offset():
    P.lds(f"ds_read_b64_tr_b16 {vr(T+4,2)}, v{VA(0)}", "v0")
    P.put(gate(0, 9))
    for j in range(2):
        e(f"v_lshlrev_b32 v{T+2*j}, 17, v{T+4+j}", need=["v0"]); e(f"v_lshlrev_b32 v{T+2*j+1}, 1, v{T+4+j}")
    for r in (8, 4, 2, 1):
        for j in range(4): e(f"v_max_u32_dpp v{T+j}, v{T+j}, v{T+j} row_ror:{r} row_mask:0xf bank_mask:0xf")
    e(f"v_min3_u32 v{T}, v{T}, v{T+1}, v{T+2}"); e(f"v_min_u32 v{T}, v{T}, v{T+3}")
    allreduce("v_min_u32", [T], [T + 1], k="v")
    e(f"v_lshrrev_b32 v{T}, 24, v{T}"); e(f"v_lshlrev_b32 v{T}, 23, v{T}"); e(f"v_mul_f32 v{T}, {f2u(1.5 * 2.0**OB)}, v{T}")
    for i in range(4): e(f"v_accvgpr_write_b32 a{GA(0)+i}, v{T}")
    e(f"v_readfirstlane_b32 s{sOB}, v{T}")


def side1():
    if SLIM:
        code_touch(); P.vm(f"buffer_load_dword a255, v{vT1}, {srd(SW2)}, 0 offen")
    P.put(gate(0, 64))
    x_offset(T + 5); e(f"s_lshl_b32 s{sSF}, s{sG}, 7")
    for nb in range(4):
        P.vm(f"buffer_load_dwordx2 {vr(T+6+2*nb,2)}, v{T+5}, {srd(SX)}, s{sSF} offen offset:{nb*32}", "xs")
    e(f"v_lshrrev_b32 v{T}, 4, v{vBA}"); e(f"v_min_u32 v{T}, 2, v{T}"); e(f"v_add_u32 v{T}, s{sM}, v{T}")
    e(f"v_add_u32 v{T}, -1, v{T}"); e(f"v_med3_i32 v{T}, v{T}, 0, 31"); e(f"v_lshlrev_b32 v{vPA}, 3, v{T}")
    if O_("kvt1", 0):
        touch_off(T, (T0 - 5) * 128, 1, 128, [(sG, 0), 5 * 16384], T + 1)
        P.vm(f"buffer_load_dword a255, v{T}, {srd(SK)}, 0 offen"); P.vm(f"buffer_load_dword a255, v{T}, {srd(SV)}, 0 offen")
    P.put(gate(2, 0))
    p_h.issue()
    for i in range(8):
        d = T + 2 * (i % 2)
        e(f"v_lshlrev_b32 v{d}, 16, v{T+6+i}", need=["xs"]); e(f"v_and_b32 v{d+1}, 0xffff0000, v{T+6+i}")
        for h in range(2): e(f"v_fma_f32 v{d+h}, v{d+h}, v{vRSTD}, v{vNMEAN}")
        for h in range(2): e(f"v_accvgpr_write_b32 a{aG2+2*i+h}, v{d+h}")
    P.put(gate(3, 0))
    p_h.check(); h_loads(0, 3, 30)
    P.put(gate(6, 0))
    h_loads(1, 6, 24)
    sum_terms(sT, (sW, 128), (sW3B, 1)); dma_voff(vDW2, 3584, False, f"s{sT}", T)
    P.put(gate(8, NIT + 28))
    m, q = vRSTD, vNMEAN
    for i in range(16): e(f"v_accvgpr_read_b32 v{T+i}, a{aG2+i}")
    e(f"v_add_f32 v{m}, v{T}, v{T+1}"); e(f"v_mul_f32 v{q}, v{T}, v{T}")
    for i in range(1, 16):
        e(f"v_fmac_f32 v{q}, v{T+i}, v{T+i}")
        if i > 1: e(f"v_add_f32 v{m}, v{m}, v{T+i}")
    allreduce("v_add_f32", [m, q], [T, T + 1], k="v")
    e(f"v_lshrrev_b32 v{T}, 1, v{vBA}")
    masked(0xffff, f"buffer_store_dwordx2 {vr(m,2)}, v{T}, {srd(SWS)}, s{sSTP} offen sc1")
    code_touch()
    e(f"v_and_b32 v{T}, 0xf0, v{vBA}"); e(f"v_lshrrev_b32 v{T}, 1, v{T}"); e(f"v_and_b32 v{T+1}, 0x300, v{vBA}")
    e(f"v_add_u32 v{vPA}, v{T}, v{T+1}")
    P.put(gate(11, 70))
    p_st.issue()
    P.put(gate(12, 60))
    p_st.check()
    u, r = T + 15, T + 16
    e(f"v_add_f32 v{u}, v{T}, v{T+2}"); e(f"v_add_f32 v{r}, v{T+1}, v{T+3}")
    e(f"v_add_f32 v{q}, v{T+4}, v{T+6}"); e(f"v_add_f32 v{m}, v{T+5}, v{T+7}")
    allreduce("v_add_f32", [u, r, q, m], [T, T + 1, T + 2, T + 3], k="v")
    for x in (u, r, q, m): e(f"v_mul_f32 v{x}, {f2u(1/512)}, v{x}")
    for x, y in ((u, r), (q, m)):
        e(f"v_fma_f32 v{y}, -v{x}, v{x}, v{y}"); e(f"v_max_f32 v{y}, 0, v{y}")
        e(f"v_mul_f32 v{y}, {f2u(GA_**-2)}, v{y}"); e(f"v_add_f32 v{y}, {f2u(EPS)}, v{y}")
    e(f"v_rsq_f32 v{r}, v{r}", k="v"); e(f"v_sqrt_f32 v{m}, v{m}", k="v")
    for i in range(15): e(f"v_accvgpr_read_b32 v{T+i}, a{aG2+i}")
    e(f"v_mul_f32 v{u}, v{u}, v{r}")
    for i in range(15): e(f"v_fma_f32 v{T+i}, v{T+i}, v{r}, -v{u}")
    e(f"v_cvt_pk_bf16_f32 v{T}, v{T}, v{T+1}"); e(f"v_cvt_pk_bf16_f32 v{T+1}, v{T+2}, v{T+3}")
    e(f"v_accvgpr_read_b32 v{T+3}, a{aG2+15}"); e(f"v_fma_f32 v{u}, v{T+3}, v{r}, -v{u}")
    for i in range(2, 8): e(f"v_cvt_pk_bf16_f32 v{T+i}, v{T+2*i}, v{T+2*i+1}")
    for s in range(2):
        e(f"s_add_u32 s{sSF}, s{sHO}, {WS_X1 + s*PLANE}")
        P.vm(f"buffer_store_dwordx4 {vr(T+4*s,4)}, v{vTOK}, {srd(SWS)}, s{sSF} offen sc1", "x1st")
    e(f"v_bfe_u32 v{vPA}, v{vBA}, 4, 3"); e(f"v_lshlrev_b32 v{vPA}, 2, v{vPA}")
    P.put(gate(15, 40))
    set_flags(0, 1, ["x1st"])
    touch_off(T, 512, 4, 3584, [(sW3B, 1)], T + 1)
    P.vm(f"buffer_load_dword a255, v{T}, {srd(SW3)}, 0 offen")
    touch_off(T, 2048, 1, 128, [(sW3B, 512)], T + 1)
    P.vm(f"buffer_load_dword a255, v{T}, {srd(SW4)}, 0 offen")
    sum_terms(sT, (sW, 256)); dma_voff(vDW4, 1024, False, f"s{sT}", T)
    sum_terms(sT, (sG, 1 << 19)); e(f"v_add_u32 v{vDWO}, s{sT}, v{vDW4}")
    sum_terms(sT, (sW3B, 512)); e(f"v_add_u32 v{vDW4}, s{sT}, v{vDW4}")
    e(f"s_and_b32 s{sT}, s{sG}, 1"); e(f"s_sub_u32 s{sT}, 4, s{sT}"); e(f"s_mul_i32 s{sT}, s{sT}, s{sW}")
    for nb in range(4):
        e(f"s_and_b32 s{sT+1}, s{sT}, 3"); e(f"s_lshl_b32 s{sT+1}, s{sT+1}, 5"); e(f"v_xor_b32 v{vAA2+nb}, s{sT+1}, v{vAS}")
        e(f"s_lshr_b32 s{sT+1}, s{sT}, 2"); e(f"s_lshl_b32 s{sT+1}, s{sT+1}, 13"); e(f"v_add_u32 v{vAA2+nb}, s{sT+1}, v{vAA2+nb}")
        e(f"v_add_u32 v{vAA+nb}, 0xffff0000, v{vAA2+nb}"); e(f"s_add_u32 s{sT}, s{sT}, 1")
    P.put(gate(17, 60))
    p_x.issue(); code_touch()
    P.put(gate(18, 60))
    p_x.check()
    if XREG:
        def one(ks):
            e(f"s_mov_b32 s{sSF}, {WS_X1 + ks*PLANE}")
            P.vm(f"buffer_load_dwordx4 {ar(aG2 + 4*(ks-4),4)}, v{vTOK}, {srd(SWS)}, s{sSF} offen sc1", "xnl")
        paced(18, 70, 14, [lambda ks=ks: one(ks) for ks in range(4, 8)])
    P.put(gate(19, 0))
    if O_("kvt", 1):
        touch_off(T + 8, (32 - T0) * 128, 1, 128, [(sG, 0), T0 * 16384], T + 9)
        P.vm(f"buffer_load_dword a255, v{T+8}, {srd(SK)}, 0 offen"); P.vm(f"buffer_load_dword a255, v{T+8}, {srd(SV)}, 0 offen")
    if XREG:
        e(f"v_add_u32 v{T+9}, s{sW1K}, v{vBA}")
        paced(T0 - 1, 34, 6, [lambda ks=ks: P.lds(f"ds_write_b128 v{T+9}, {ar(aG2 + 4*(ks-4),4)} offset:{ks*4096}", ("xn", 1), need=["xnl"])
                              for ks in range(4, 8)])


def x1n_dma(j):
    return [([It(f"s_add_u32 m0, s{sW1K}, {ks*4096}", "s"), It(f"s_mov_b32 s{sSO}, {WS_X1 + ks*PLANE}", "s")],
             [It(f"buffer_load_dwordx4 v{vTOK}, {srd(SWS)}, s{sSO} offen sc1 lds", "g", ("xn", j), need=["x1"])])
            for ks in range(4 * j, 4 * j + 4)]


def run_tiles(t0, t1, fill, over, more, endw, ins, must, xtra={}):
    end = T0 - 1 if t0 < T0 else 31
    for t in range(t0, t1):
        groups = (kv_dma("K", t + 4) if t + 4 <= end else []) + (kv_dma("V", t + 3) if t + 3 <= end else [])
        groups = over.get(t, groups) + more.get(t, [])
        attn_iter(t, groups, fill, endw.get(t, ()), ins=ins.get(t), extra=xtra.get(t))
        head = fill[0].at if fill else (99, 0)
        if O_("showfill", 0): print(t, len(fill), head, file=sys.stderr)
        if t in must: assert head and head[0] >= must[t], (t, head, len(fill))


g2 = lambda h: shared_ops(range(8 * h, 8 * h + 8), 8 * h, lambda nb: ar(aG2 + 4 * nb, 4), False, GA,
                          lambda ks: ar(HB(ks), 4), lambda ks: [("h", ks)], f"g2{h}")
op = gemm(mt, 0, 8, ACC, [], (160, 212), opening="get")
opx = {40 + 2 * k: [it] for k, it in enumerate(op[4:12])}
opx.update({58 + k: [it] for k, it in enumerate(op[:4] + op[12:])})
xtra = {T0 - 1: opx}
if OB:
    its = [it for it in cap(acc_offset) if it.at is None]
    xtra[0] = {1: its[:1]}
    for k, it in enumerate(its[1:]): xtra[0].setdefault(11 + (k * 50) // len(its), []).append(it)
fill = cap(side1)
kv = lambda *a: [g for k in a for g in kv_dma(k[0], int(k[1:]))]
run_tiles(0, T0, fill, {0: kv("V2", "K4", "V3")},
          {1: w2t[0].dma() if SLIM else [], 6: w2t[1].dma(), 18: mt[0].dma(), 19: x1n_dma(2) + x1n_dma(3),
           20: x1n_dma(0) + mt[1].dma(), 21: [] if XREG else x1n_dma(1)},
          {3: [("w2", 0)], 7: [("w2", 1)], 20: [("xn", 3), mt[0].tag]}, {5: g2(0), 8: g2(1)}, {4: 6, 7: 8, 17: 18, 18: 19, 21: 99}, xtra)
stamp()

class Extra:
    def __init__(self, groups): self.groups = groups
    def dma(self): return self.groups


def ph_pack(ks):
    for k in ks:
        pack(ACC, *pieces[k])
        for j in range(4): e(f"v_accvgpr_write_b32 a{PHA(k)+j}, v{ACC(pieces[k][0], 2*pieces[k][2], pieces[k][1])+j}")


def own_x1n(per):
    return {4 * per + 2: [It(f"s_lshl2_add_u32 s{sT}, s{sKS}, s{sTB}", "s")],
            4 * per + 6: [It(f"s_lshl_b32 s{sT}, s{sT}, 10", "s"), It(f"v_add_u32 v{T+9}, s{sT}, v{vBA}", "v")],
            7 * per + 3: [It(f"ds_read_b128 {ar(aXN,4)}, v{T+9}", "l", "xnr")],
            7 * per + 7: [It(f"ds_read_b128 {ar(aXN+4,4)}, v{T+9} offset:8192", "l", "xnr")]}


def mlp_tail(act, pending, nstep, bf):
    P.wait(["xnr"]); e("s_barrier")
    stamp()
    interleave(cap(act), [x + y for x, y in pending], 16)
    gemm_pre(mt, 8)
    P.wait(["hw"]); e("s_barrier")
    stamp()
    g = 32 * (nstep - 2)
    fill = [gate(0, g + 20)] + cap(ph_pack, (0, 2, 4, 6)) + [gate(0, g + 36)] + cap(ph_pack, (1, 3, 5, 7))
    pending = []
    gemm(mt[:8 + nstep] + [Extra(kv_dma("K", T0) + kv_dma("K", T0 + 1))], 8, nstep, ACC, pending, bf, fill=fill)
    assert not pending
    P.wait([("K", T0 + 1)]); e("s_barrier")
    stamp()
    for f in range(8): P.puts(frag_reads(T0 - 1, f))
    P.drain(fill)


def mlp_even():
    P.cmt("==== channel MLP, even groups: 256 hidden columns, one private weight tile per wave and step")
    extra = own_x1n(32)
    extra.update({1: [It("s_barrier", "s")], 2 * 32 + 26: [It(None, "s", need=[("xn", 0), ("xn", 1)])],
                  2 * 32 + 27: [It("s_barrier", "s")],
                  7 * 32 + 10: [It(f"s_lshl_b32 s{sT}, s{sW}, 13", "s"), It(f"v_add_u32 v{T+8}, s{sT}, v{vBA}", "v")]})
    pending = mt[2].dma()
    gemm(mt, 0, 8, ACC, pending, (160, 212), extra=extra, opening="done", dma0=2)

    def act():
        for tb in range(4):
            gelu(16 * tb, 16, 64 + 16 * tb, lambda i: 16 * tb + i, first=tb == 0)
            for s in range(2):
                P.lds(f"ds_write_b128 v{T+8}, {vr(16*tb + 4*s,4)} offset:{s*4096 + tb*1024}", "hw")
    mlp_tail(act, pending, 8, (160, 212))


def mlp_odd():
    P.cmt("==== channel MLP, odd groups: 192 hidden columns, three weight tiles per step shared by the four waves")
    AC3 = lambda nb, tb: (tb * 3 + nb) * 4
    af = lambda s, nb, ks: AF(2 * (nb + (nb == 2) * (s & 1)) + ks)
    bf = lambda s, ks, tb: ar((160, 212)[s & 1] + (ks * 4 + tb) * 4, 4)

    def a3(s, nb):
        t = mt[s]
        base, off = (vAA2, 0) if t.slot == 2 else (vAA, t.slot * 32768)
        return [It(f"ds_read_b64_tr_b16 {ar(af(s,nb,ks)+2*h,2)}, v{base+nb} offset:{off + ks*4096 + h*2048}", "l",
                   ("A", t.tag, nb)) for ks in range(2) for h in range(2)]

    def stage(s):
        t = mt[s]
        if s >= 8: return t.dma()
        return [(([It(f"s_add_u32 m0, s{sRS}, {t.slot*32768 + c*8192}", "s")] if i == 0 else []) +
                 [It(f"s_mov_b32 s{sSO}, {t.base + i*8*3584 + c*128 - i*1024}", "s")],
                 [It(f"buffer_load_dwordx4 v{vDW2}, {srd(SW3)}, s{sSO} offen offset:{i*1024} lds", "g", t.tag)])
                for c in range(3) for i in range(2)]

    REL, RAW, DS = O_("rel", 13), O_("raw", 13), O_("ds", 3)
    DG = {(REL + 1 + DS * k) % 24 for k in range(6)}
    ms, gaps = [], own_x1n(24)
    add = lambda g, it: gaps.setdefault(g, []).append(it)
    for s in range(8):
        t, g0 = mt[s], 24 * s
        for nb in range(3):
            for tb in range(4):
                for n, ks in enumerate(range(2) if not tb & 1 else range(1, -1, -1)):
                    d = vr(AC3(nb, tb), 4)
                    ms.append(It(f"{MF} {d}, {ar(af(s,nb,ks),4)}, {bf(s,ks,tb)}, {d if s or n else 0}", "m",
                                 need=[("A", t.tag, nb), ("B", mt[0].tag, s, tb)]))
        if s == 0:
            for k, it in enumerate(a3(0, 1)[2:] + a3(0, 2)): add((0, 0, 1, 1, 2, 2)[k], it)
        add(g0 + REL - 1, It(None, "s", need=[("A", t.tag, nb) for nb in range(3)]))
        add(g0 + REL, It("s_barrier", "s"))
        if s < 7:
            u = mt[s + 1]
            add(g0 + RAW - 1, It(None, "s", need=[u.tag] + ([("xn", 0), ("xn", 1)] if s == 2 else [])))
            if RAW != REL: add(g0 + RAW, It("s_barrier", "s"))
            c = [g for g in range(RAW + 1, 24) if g not in DG]
            rd = a3(s + 1, 0) + a3(s + 1, 2) + a3(s + 1, 1)
            for k, it in enumerate(rd): add(g0 + max(c[k * len(c) // 12], 16 if k >= 8 else 0), it)
            rd = [It(f"ds_read_b128 {bf(s+1,ks,tb)}, v{vBA} offset:{u.kp*8192 + ks*4096 + tb*1024}", "l",
                     ("B", mt[0].tag, s + 1, tb)) for tb in range(4) for ks in range(2)]
            c = [g for g in range(0 if s else 4, RAW + 1) if g not in DG]
            for k, it in enumerate(rd): add(g0 + c[k * len(c) // 8], it)
        add(g0 + 19, hop())
        if O_("jit2", 0): add(g0 + 4, jitter_item())
        if SSET == "odd": add(g0, stamp_item())
    if SSET == "odd": add(len(ms) - 1, stamp_item())
    add(0, It(f"s_mul_i32 s{sT}, s{sW}, {16*3584 - 128}", "s")); add(0, It(f"v_add_u32 v{vDW2}, s{sT}, v{vDW2}", "v"))
    add(1, It("s_barrier", "s"))
    pending, prev = stage(2), 1
    for g in range(3, len(ms)):
        if g % 24 == REL + 1: pending += stage(g // 24 + 3)
        if pending and g - prev >= 2 and (g % 24 in DG or len(pending) > 6 or g < REL):
            place(add, g, pending.pop(0), prev); prev = g
    HW = (T + 8, T + 9, T + 15)

    def addr():
        P.put(gate(0, 7 * 24 + 12))
        e(f"s_mul_i32 s{sT}, s{sW}, 3")
        for nb in range(3):
            e(f"s_lshr_b32 s{sT+1}, s{sT}, 1"); e(f"s_lshl_b32 s{sT+1}, s{sT+1}, 12"); e(f"s_and_b32 s{sT+2}, s{sT}, 1")
            e(f"s_lshl3_add_u32 s{sT+1}, s{sT+2}, s{sT+1}"); e(f"v_add_u32 v{HW[nb]}, s{sT+1}, v{vBA}"); e(f"s_add_u32 s{sT}, s{sT}, 1")
        e(f"s_sub_u32 s{sT}, s{sRING}, {RING + 65536}")
        for nb in range(4):
            e(f"v_add_u32 v{vAA+nb}, s{sT}, v{vAS+nb}"); e(f"v_add_u32 v{vAA2+nb}, 0x10000, v{vAA+nb}")
    fill = cap(addr)
    P.run_gaps(ms, gaps, fill, gmin=4)
    P.drain(fill)

    def act():
        for tb in range(4):
            gelu(12 * tb, 12, 64 + 12 * tb, lambda i: 12 * tb + i, first=tb == 0)
            for nb in range(3):
                P.lds(f"ds_write_b64 v{HW[nb]}, {vr(12*tb + 2*nb,2)} offset:{tb*1024}", "hw")
    mlp_tail(act, pending, 6, (212, 160))


e(f"s_bitcmp1_b32 s{sG}, 0"); e("s_cbranch_scc1 L_odd")
lab("L_even")
state = (list(P.lq), list(P.vq), set(P.used), set(P.ever), nstamp[0])
mlp_even()
after = (list(P.lq), list(P.vq), set(P.used), set(P.ever), nstamp[0])
main, P.L = P.L, []
P.lq, P.vq, P.used, P.ever, nstamp[0] = state
mlp_odd()
e("s_branch L_join")
assert (P.lq, P.vq) == after[:2] and (SSET or nstamp[0] == after[4]), (P.lq, P.vq, after[:2])
odd_text, P.L = P.L, main
P.lq, P.vq, P.used, P.ever, nstamp[0] = after
lab("L_join")
ph_pack(range(8, 10))
gaps = {g: [] for g in range(64)}
for f in range(8, 16): gaps[16 * (f // 4 - 1) + f % 4] += frag_reads(T0 - 1, f)
for f in range(4):
    gaps[48 + f] += frag_reads(T0, f); issued.add((T0, f))
for k, grp in enumerate(kv_dma("V", T0) + kv_dma("K", T0 + 2)): place(add1, 2 + 4 * k, grp, 4 * k - 2)
fill = cap(ph_pack, range(10, 14)) + cap(first_half, False, (20, 36)) + cap(ph_pack, range(14, 16))
P.run_gaps([m for m, _ in qk_mfmas(T0 - 1)], gaps, fill)
P.drain(fill)
P.wait([("K", T0 + 2), ("V", T0)] + [("F", T0, f) for f in range(4)]); e("s_barrier")
stamp()


XF = [244, 245, 246, 247, 248, 249, T + 10, T + 11]


def side2():
    paced(T0, 60, O_("sstep", 22), [lambda k=k: store_piece(ar(PHA(k), 4), WS_PH, *pieces[k], "phs") for k in range(16)])
    touch_off(T + 8, 4096, 1, 128, [(sG, 1 << 19)], T + 9)
    P.vm(f"buffer_load_dword a255, v{T+8}, {srd(SWO)}, 0 offen")
    code_touch()
    P.put(gate(26, 0)); set_flags(1, 2, ["phs"])
    x_offset(T + 8, 4)
    paced(26, 50, 20, [lambda i=i: P.vm(f"buffer_load_dwordx2 {vr(XF[2*i],2)}, v{T+8}, {srd(SX)}, s{sXF} offen "
                                        f"offset:{(i//2)*128 + (i%2)*32}", "xf") for i in range(4)])
    P.put(gate(27, 40)); p_ph.issue(); o_addr()
    P.put(gate(28, 20)); p_ph.check()
    paced(28, 30, O_("lstep", 22), [lambda k=k: load_piece(WS_PH, ar(PHA(k), 4), k // 2, k % 2, "phl") for k in range(16)])


def o_addr():
    if not PA:
        e(f"v_add_u32 v{T+8}, s{sW4K}, v{vBA}")
        return
    x, y = vDW2, vDW4
    for d, (ro, rb), (co, cb) in ((T + 8, (4, 4), (8, 2)), (T + 9, (6, 4), (4, 2))):
        e(f"v_bfe_u32 v{x}, v{vBA}, {ro}, {rb}"); e(f"v_bfe_u32 v{d}, v{vBA}, {co}, {cb}")
        e(f"v_and_b32 v{y}, 1, v{x}"); e(f"v_xor_b32 v{d}, v{d}, v{y}")
        e(f"v_lshrrev_b32 v{y}, 3, v{x}"); e(f"v_lshlrev_b32 v{y}, 1, v{y}"); e(f"v_xor_b32 v{d}, v{d}, v{y}")
        e(f"v_and_b32 v{y}, 6, v{x}"); e(f"v_lshl_add_u32 v{d}, v{y}, 1, v{d}")
        e(f"v_lshlrev_b32 v{d}, 3, v{d}"); e(f"v_lshl_add_u32 v{d}, v{x}, 7, v{d}")
    e(f"v_add_u32 v{T+8}, s{sW4K}, v{T+8}")


fill = cap(side2)
run_tiles(T0, 31, fill, {T0: kv(f"V{T0+1}", f"K{T0+3}", f"K{T0+4}", f"V{T0+2}"), T0 + 1: kv(f"K{T0+5}", f"V{T0+3}", f"V{T0+4}")}, {O_("wo0", 29): ot[0].dma(), 30: ot[1].dma()}, {}, {}, {30: 99})


vOW, vOR = 208, 212


def o_stage(k, st):
    s, qb = k // 4, k % 4
    b = 8 * (k % 8)
    if "o" in opt.get("cut", "") and k >= 8 and st < 3: return
    if "O" in opt.get("cut", "") and k >= 2: return
    if st == 0:
        for h in range(2):
            for j in range(4): e(f"v_accvgpr_read_b32 v{b+4*h+j}, a{O(2*s+h,qb)+j}")
    elif st == 1:
        for j in range(0, 8, 2):
            e(f"v_pk_fma_f32 {vr(b+j,2)}, {vr(b+j,2)}, {vr(NM(qb) + j%4,2)}, {vr(64 + 4*qb + j%4,2)} neg_lo:[0,0,1] neg_hi:[0,0,1]" if OB else
              f"v_pk_mul_f32 {vr(b+j,2)}, {vr(b+j,2)}, {vr(NM(qb) + j%4,2)}" if PA else
              f"v_pk_mul_f32 {vr(b+j,2)}, {vr(b+j,2)}, {vr(NM(qb),2)} op_sel_hi:[1,0]")
    elif st == 2:
        for j in range(4): e(f"v_cvt_pk_bf16_f32 v{b+j}, v{b+2*j}, v{b+2*j+1}")
    elif PA:
        P.lds(f"ds_write2st64_b64 v{vOW+qb}, {vr(b,2)}, {vr(b+2,2)} offset0:{32*s} offset1:{32*s+4}", "ow")
    else:
        P.lds(f"ds_write_b128 v{T+8}, {vr(b,4)} offset:{s*16384 + qb*1024}", "ow")


vL = 40


def row_sums():
    for qb in range(4):
        for j in range(2): e(f"v_accvgpr_read_b32 v{vL+2*qb+j}, a{LACC(qb)+j}")
    for qb in range(4): e(f"v_add_f32 v{vL+2*qb}, v{vL+2*qb}, v{vL+2*qb+1}")


def row_inverses():
    e(f"v_bfe_u32 v{vL+8}, v{vBA}, 8, 2"); e(f"v_lshlrev_b32 v{vL+8}, 4, v{vL+8}")
    for qb in range(4): e(f"v_rcp_f32 v{vL+2*qb}, v{vL+2*qb}")
    for qb in range(4):
        for r in range(4): P.lds(f"ds_bpermute_b32 v{NM(qb)+r}, v{vL+8}, v{vL+2*qb} offset:{4*r}", "rinv")


def vote():
    v = 56
    P.put(gate(31, 33))
    e(f"s_lshl_b32 s{sT+1}, s{sW}, 2"); e(f"s_add_u32 s{sT+1}, s{sT+1}, {RING + 32768}")
    e(f"v_mov_b32 v{v+4}, {f2u(-1.0 if FORCE_REDO else 2.0**64)}"); e(f"v_mov_b32 v{v+5}, s{sT+1}"); e(f"v_mov_b32 v{v+6}, {RING + 32768}")
    P.put(gate(31, 38))
    row_sums()
    e(f"v_maximum3_f32 v{v}, v{vL}, v{vL+2}, v{vL+4}"); e(f"v_maximum3_f32 v{v}, v{v}, v{vL+6}, v{vL+6}")
    e(f"v_cmp_nle_f32 vcc, v{v}, v{v+4}")
    e(f"s_cmp_lg_u64 vcc, 0\n    s_cselect_b32 s{sT}, 1, 0", k="v")
    e(f"v_mov_b32 v{v}, s{sT}")
    P.lds(f"ds_write_b32 v{v+5}, v{v}", "vote")
    inv = P.rec; k = len(inv) + 6
    row_inverses()
    inv[k:k] = [It(None, "s", need=["vote"]), It("s_barrier", "s"), It(f"ds_read_b128 {vr(v,4)}, v{v+6}", "l", "votes")]
    e(f"v_or3_b32 v{v}, v{v}, v{v+1}, v{v+2}", need=["votes"]); e(f"v_or_b32 v{v}, v{v}, v{v+3}")
    e(f"v_readfirstlane_b32 s{sT}, v{v}")


fill = cap(vote)
attn_iter(31, [], fill)
P.drain(fill)
e(f"s_cmp_lg_u32 s{sT}, 0"); e("s_cbranch_scc1 L_redo")
lab("L_att_done")
stamp()

if PA:
    for qb in range(4):
        e(f"v_xor_b32 v{vOW+qb}, {32*qb}, v{T+8}"); e(f"v_xor_b32 v{vOR+qb}, {32*qb}, v{T+9}")
o_stage(0, 0)
P.wait(["rinv"])
if OB:
    for i in range(16): e(f"v_mul_f32 v{64+i}, s{sOB}, v{vR+i}")
lag = [int(x) for x in opt.get("olag", "0,1,2,3").split(",")]
WG = O_("owg", 1)
for k in range(16 + lag[3] + WG):
    for st in range(3):
        if 0 <= k - lag[st] < 16 and k + st: o_stage(k - lag[st], st)
    if (k - lag[3]) % WG == WG - 1:
        for j in range(k - lag[3] - WG + 1, k - lag[3] + 1):
            if 0 <= j < 16: o_stage(j, 3)
if SSET == "o": stamp(0)
gemm_pre(ot, 0)
P.wait(["ow"]); e("s_barrier")
if SSET == "o": stamp(0)
stamp()
OACC = lambda nh, nb, tb: 64 + ACC(nh, nb, tb)
PSR = lambda g, nh: nh * 32 + g * 4


def o_side():
    if OWN:
        for u in range(2): e(f"v_or_b32 v{vPO+u}, s{sPO[u]}, v{vBA}")
        sum_terms(sPX, (sG, 8192), (sPC, 1), WS_PS)
    P.put(gate(0, 32 * 8 + 4))
    for p in pieces[:8]: pack(OACC, *p)
    for p, g in zip(pieces, [int(x) for x in opt.get("s0g", "440,448,456,464,472,480,488,496").split(",")]):
        P.put(gate(0, g))
        store_piece(vr(OACC(0, 2 * p[2], p[1]), 4), WS_PS, *p, "s0s")
    if O_("f0k", 3) < 0:
        P.put(gate(0, O_("f0g", 500))); set_flags(2, 2, ["s0s"])


fill = cap(o_side)
pending = ot[2].dma()
gemm(ot, 0, 16, OACC, pending, (0, 32, 64, 96, (vr, 0), (vr, 32))[:O_("obs", 6)], fill=fill, breg=vOR if PA else vBA, btr=PA)
P.drain(fill)
stamp()
P0K = O_("p0k", -1)
for k, p in enumerate(pieces[8:]):
    pack(OACC, *p); store_piece(vr(OACC(1, 2 * p[2], p[1]), 4), WS_PS, *p, "s1s")
    if k == O_("f0k", 3): set_flags(2, 2, ["s0s"])
    if k == P0K: p_s0.issue()
vY, vS, vG, vX = 64, 80, 96, 112


def gate_values():
    for i in range(8): e(f"v_accvgpr_read_b32 v{vG+i}, a{aXN+i}")
    for i in range(8):
        e(f"v_lshlrev_b32 v{vY+2*i}, 16, v{vG+i}"); e(f"v_and_b32 v{vY+2*i+1}, 0xffff0000, v{vG+i}")
    for i in range(16): e(f"v_fma_f32 v{vY+i}, v{vY+i}, v{vRSTD}, v{vNMEAN}")
    for k in range(17):
        if k < 16:
            for j in range(4): e(f"v_accvgpr_read_b32 v{vG + 4*(k%2) + j}, a{PHA(k)+j}", need=[("phl", k // 2, k % 2)])
        if k: add_piece(vY + 8 * ((k - 1) % 2), vG + 4 * ((k - 1) % 2), False, ())
    for i in range(16): e(f"v_mul_f32 v{vG+i}, s{sNL2E}, v{vY+i}")
    for i in range(16): e(f"v_exp_f32 v{vG+i}, v{vG+i}")
    e(f"s_mov_b32 s{sT}, {f2u(GA_ * 2.0**OSH)}")
    for i in range(16): e(f"v_fma_f32 v{vG+i}, v{vG+i}, s{sT}, s{sT}")
    for i in range(16): e(f"v_rcp_f32 v{vG+i}, v{vG+i}")
    for i in range(0, 16, 2): e(f"v_pk_mul_f32 {vr(vG+i,2)}, {vr(vG+i,2)}, {vr(vY+i,2)}")
    for i in range(8):
        e(f"v_lshlrev_b32 v{vX+2*i}, 16, v{XF[i]}", need=["xf"]); e(f"v_and_b32 v{vX+2*i+1}, 0xffff0000, v{XF[i]}")
    e(f"v_bfe_u32 v200, v{vTOK}, 4, 4"); e("v_lshlrev_b32 v200, 10, v200"); e(f"v_bfe_u32 v201, v{vBA}, 8, 2")
    e("v_lshl_add_u32 v200, v201, 4, v200")


if OWN:
    e(f"v_add_u32 v216, s{sRING}, v{vBA}")
    for u in range(2):
        e(f"s_cmp_eq_u32 s{sPO[u]}, 0"); e(f"s_cbranch_scc1 L_away{u}")
        for nh, tb, s in pieces:
            if tb >> 1 == u: e(f"ds_write_b128 v216, {vr(OACC(nh,2*s,tb),4)} offset:{((tb & 1) + 2*s)*2048 + nh*1024}")
        lab(f"L_away{u}")
    e(f"s_lshr_b32 s{sT}, s{sG}, 1"); sum_terms(sT + 1, (sT, 8192), (sW, 2048), RING); e(f"v_add_u32 v216, s{sT+1}, v{vBA}")
    P.wait_all(vm=False); e("s_barrier")
    for nh in range(2): P.lds(f"ds_read_b128 {vr(192+4*nh,4)}, v216 offset:{nh*1024}", "own")
code = cap(gate_values)
if OWN:
    for nh in range(2): code[40:40] = cap(add_piece, vS + 8 * nh, 192 + 4 * nh, True, ["own"])
k0, k1 = O_("gs0", 232), O_("gs1", 400)
P.puts(code[:k0])
if P0K < 0: p_s0.issue()
P.puts(code[k0:k1])
set_flags(3, 2, ["s1s"])
stamp(2)
p_s0.check()
for g in range(OWN, 8): load_piece(WS_PS, vr(PSR(g, 0), 4), g, 0, "psl")
p_s1.issue()
P.puts(code[k1:])


def finish(nh):
    for g in range(OWN, 8): add_piece(vS + 8 * nh, PSR(g, nh), g == 0, [("psl", g, nh)])
    for i in range(8 * nh, 8 * nh + 8, 2): e(f"v_pk_fma_f32 {vr(vG+i,2)}, {vr(vG+i,2)}, {vr(vS+i,2)}, {vr(vX+i,2)}")
    d = 204 + 4 * nh
    for i in range(4): e(f"v_cvt_pk_bf16_f32 v{d+i}, v{vG+8*nh+2*i}, v{vG+8*nh+2*i+1}")
    for sw in ("v_permlane32_swap_b32", "v_permlane16_swap_b32"):
        for j in range(2): e(f"{sw} v{d+j}, v{d+2+j}")
    P.vm(f"buffer_store_dwordx4 {vr(d,4)}, v200, {srd(SOUT)}, s{sXF} offen offset:{nh*128}")


p_s1.check()
stamp()
for g in range(OWN, 8): load_piece(WS_PS, vr(PSR(g, 1), 4), g, 1, "psl")
finish(0)
finish(1)
if AMP:
    P.wait_all(); stamp()
    e(f"s_sub_u32 s{sST}, s{sST+2}, s{sST}")
    e(f"s_lshr_b32 s{sST}, s{sST}, 5" if AMP[3] else f"s_lshl_b32 s{sST}, s{sST}, {AMP[2]}")
    if "ampsel" in opt:
        e(f"s_lshr_b32 s{sT}, {opt['ampsel']}, s{sG}"); e(f"s_and_b32 s{sT}, s{sT}, 1"); e(f"s_mul_i32 s{sST}, s{sST}, s{sT}")
    e(f"s_memrealtime {sr(sST+2,2)}"); e("s_waitcnt lgkmcnt(0)")
    lab("L_amp")
    e(f"s_memrealtime {sr(sST+4,2)}"); e("s_waitcnt lgkmcnt(0)")
    e(f"s_sub_u32 s{sST+4}, s{sST+4}, s{sST+2}"); e(f"s_cmp_lt_u32 s{sST+4}, s{sST}"); e("s_cbranch_scc1 L_amp")
if STAMP:
    P.wait_all()
    stamp()
    e(f"s_lshl_b32 s{sT}, s2, 2"); e(f"s_add_u32 s{sT}, s{sT}, s{sW}"); e(f"s_lshl_b32 s{sT}, s{sT}, 8")
    e(f"s_add_u32 s{sT}, s{sT}, {WS_ST}"); e(f"v_lshrrev_b32 v0, 2, v{vBA}")
    P.vm(f"buffer_store_dword a254, v0, {srd(SWS)}, s{sT} offen")
e("s_endpgm")

lab("L_side")
NPP = O_("npp", 1)
for p in slow_paths:
    lab(f"L_slow_{p.name}")
    if NPP > 1 and p.name in ("s0", "s1"):
        regs = [f"v{216 + i}" for i in range(NPP)]
        ld = lambda i: e(p.loads[0].replace(f"v{vPOLL},", regs[i % NPP] + ","))
        for i in range(NPP - 1):
            ld(i); e(f"s_sleep {O_('pps', 5)}")
        lab(f"L_spin_{p.name}")
        for i in range(NPP):
            ld(i + NPP - 1); e(f"s_waitcnt vmcnt({NPP - 1})")
            e(p.tests[0].replace(f"v{vPOLL}", regs[i])); e(f"s_cbranch_vccz L_back_{p.name}")
        e(f"s_add_u32 s{sSPIN}, s{sSPIN}, 1"); e(f"s_cmp_gt_u32 s{sSPIN}, 0x200000")
        e(f"s_cbranch_scc0 L_spin_{p.name}"); e(f"s_branch L_back_{p.name}")
        continue
    e("s_sleep 1")
    for l in p.loads: e(l)
    e(f"s_add_u32 s{sSPIN}, s{sSPIN}, 1")
    e("s_waitcnt vmcnt(0)")
    for t in p.tests: e(t)
    e(f"s_cmp_gt_u32 s{sSPIN}, 0x200000"); e(f"s_cbranch_scc1 L_back_{p.name}")
    e(f"s_cbranch_vccnz L_slow_{p.name}")
    e(f"s_branch L_back_{p.name}")

lab("L_redo")
P.lq, P.vq = [], []
e(f"s_mov_b32 s{sOB}, 0")
for s in range(4): e(f"v_add_u32 v{KA(s)}, 49152, v{KA(s)}")
for qb in range(4): e(f"v_mov_b32 v{NM(qb)}, 0xff800000")


def redo_tile(kinds, zero):
    P.used = set()
    P.wait_all(); e("s_barrier")
    for kind, lds in kinds: flush(kv_dma(kind, 0, lds=lds, so=f"s{sCNT}"))
    P.wait_all(); e("s_barrier")
    mf = [m for m, _ in qk_mfmas(2, zero=zero)]
    for half in range(2):
        for f in range(8 * half, 8 * half + 8): P.puts(frag_reads(2, f))
        P.puts(mf[32 * half:32 * half + 32])


e(f"s_mov_b32 s{sCNT}, 0")
lab("L_rmax")
redo_tile([("K", 98304)], True)
for qb in range(4):
    regs = [S(1, kb, qb) + i for kb in range(4) for i in range(4)]
    for i in range(0, 16, 2): e(f"v_max3_f32 v{NM(qb)}, v{NM(qb)}, v{regs[i]}, v{regs[i+1]}")
e(f"s_add_u32 s{sCNT}, s{sCNT}, 16384"); e(f"s_cmp_lt_u32 s{sCNT}, 0x80000"); e("s_cbranch_scc1 L_rmax")
allreduce("v_max_f32", [NM(qb) for qb in range(4)], [NM(qb) + 1 for qb in range(4)])
for qb in range(4):
    for i in (1, 2, 3, 0): e(f"v_sub_f32 v{NM(qb)+i}, 0, v{NM(qb)}")
for i in list(range(128)) + list(range(192, 208)): e(f"v_accvgpr_write_b32 a{i}, 0")
e(f"s_mov_b32 s{sCNT}, 0")
lab("L_rpv")
redo_tile([("K", 98304), ("V", 114688)], False)
for half in range(2):
    ex, post = sm_stream(1, half)
    P.puts(ex); P.puts([x for p in post for x in p])
mf = [m for m, _ in pv_mfmas(3)]
for half in range(2):
    for f in range(16 + 8 * half, 24 + 8 * half): P.puts(frag_reads(3, f))
    P.puts(mf[34 * half:34 * half + 34])
e(f"s_add_u32 s{sCNT}, s{sCNT}, 16384"); e(f"s_cmp_lt_u32 s{sCNT}, 0x80000"); e("s_cbranch_scc1 L_rpv")
row_sums(); row_inverses(); P.wait(["rinv"])
e("s_branch L_att_done")
if HOP: P.raw(".p2align 12")
lab("L_odd")
P.L += odd_text
lab("L_end")
e("s_endpgm")
P.L += ['.section .rodata,"a"', ".p2align 6", f".amdhsa_kernel {NAME}",
        "  .amdhsa_next_free_vgpr 512", "  .amdhsa_next_free_sgpr 102", "  .amdhsa_accum_offset 256",
        "  .amdhsa_group_segment_fixed_size 0", "  .amdhsa_kernarg_size 104", "  .amdhsa_user_sgpr_count 2",
        "  .amdhsa_user_sgpr_kernarg_segment_ptr 1", "  .amdhsa_system_sgpr_workgroup_id_x 1",
        "  .amdhsa_float_denorm_mode_32 3", ".end_amdhsa_kernel"]
lines = "\n".join(P.L).split("\n")
for key, pats in (("kvf", (srd(SK), srd(SV))), ("wf", tuple(srd(x) for x in (SWQ, SWO, SW1, SW2, SW3, SW4)))):
    if opt.get(key):
        lines = [l.replace(" lds", " " + opt[key].replace("+", " ") + " lds") if l.endswith(" lds") and any(x in l for x in pats) else l
                 for l in lines]
if opt.get("xf"): lines = [l + " " + opt["xf"] if "load_dwordx4 v[" in l and (srd(SX) in l or "s[64:65]" in l) else l for l in lines]
ABL = opt.get("abl", "")
if ABL:
    i0 = next(i for i, l in enumerate(lines) if "output projection" in l); i1 = lines.index("L_side:")
    j0 = max(i for i in range(i0, i1) if MF in lines[i])
    keep = []
    for i, l in enumerate(lines):
        if i0 < i < i1:
            if "p" in ABL and "s_cbranch_vccnz L_slow_s" in l: continue
            if "w" in ABL and i > j0 and "vmcnt" in l and "v_dot2" not in lines[i + 1]: continue
            if "l" in ABL and "buffer_load_dwordx4" in l and "sc1" in l: continue
            if "s" in ABL and "buffer_store_dwordx4" in l and "sc1" in l: continue
        keep.append(l)
    lines = keep
if opt.get("tcf"): lines = [l + " " + opt["tcf"] if "_load_dword a255" in l and "sc1" not in l and ", off" not in l else l for l in lines]
lines, added = fix_hazards(lines)
nhop = 0
if HOP: lines, nhop = add_page_hops(lines, sW)
lines = [l for l in lines if "@hop" not in l]
if O_("short", 1): lines = compress(lines)
text = "\n".join(lines) + "\n"
open(OUT_PATH, "w").write(text)
print(f"{OUT_PATH}: {len(lines)} lines, {len(text)} bytes, {added} wait states padded, {nstamp[0]} stamps, {nhop} hops", file=sys.stderr)
```

```python
import math
import struct
import sys
from asmlib6 import *

OUT_PATH = sys.argv[1]
opt = dict(a.split("=") for a in sys.argv[2:])
O_ = lambda k, d: int(opt.get(k, d))
STAMP = O_("stamp", 0)
SSET = opt.get("sset", "")
FORCE_REDO = O_("redo", 0)
QPERM = O_("qperm", 1)
PA = O_("pa", 1)
OB = O_("ob", -19)
sOB = 100
OWN = O_("own", 1)
sPO, vPO, sPX = (3, 101), 218, 65
OSH = O_("osh", 0)
XREG = O_("xreg", 1)
AHEAD = O_("ahead", 10)
AMP = [int(x) for x in opt["amp"].split(",")] if "amp" in opt else None

NAME = "recurrent_scan__gqa_block_cached__mixer_s_mlp__prompt_kernel"
MF = "v_mfma_f32_16x16x32_bf16"
f2u = lambda x: "0x%08x" % struct.unpack("<I", struct.pack("<f", x))[0]
LOG2E = math.log2(math.e)
QSCALE = LOG2E / math.sqrt(128.0)
GC1 = -2.0 * math.sqrt(2.0 / math.pi) * LOG2E
GC2 = GC1 * 0.044715
EPS = 1e-5
GA_ = (-GC2) ** (1.0 / 3.0)
GK = -GC1 / GA_

SX, SK, SV, SWS, SWQ, SWO, SW1, SW2, SW3, SW4, SOUT, SDBG = range(4, 52, 4)
sG, sM, sW = 52, 53, 54
sT = 55
sW1K, sW4K, sRING, sSO = 60, 61, 62, 63
sSF, sCNT, sSPIN, sHO, sPP, sPC, sFL, sF0, sF1, sSTP, sSTC = range(64, 75)
sLO, sHI, sONE2, sC1, sC2, sNL2E, sF2, sMSK, sKS, sF3, sTB, sSTF, sXF, sRS, sW3B = range(75, 90)
sST = 92
srd = lambda b: sr(b, 4)

WS_H, WS_X1, WS_PS, WS_PH, WS_FL, WS_SS, WS_ST = 0, 0x200000, 0x400000, 0x1400000, 0x2400000, 0x2500000, 0x4000000
PLANE = 131072

vBA, vTOK, vNMEAN, vRSTD, vLANE, vSTAMP, vCODE, vAS, vDW2 = 255, 254, 253, 252, 251, 250, 248, 244, 243
T = 226
vAA, vAA2 = T, T + 4
vBX, vWA, vSC1, vDWQ, vDW1 = T + 8, T + 9, T + 12, T + 14, T + 15
vPA, vPOLL, vONE, vDW4, vDWO = T + 16, T + 15, T + 14, T + 13, T + 12
vTC = T + 10
XR = 128
G12 = 192
S = lambda buf, kb, qb: buf * 64 + qb * 16 + kb * 4
PR = lambda buf, ks, qb: buf * 64 + qb * 16 + ks * 4
vIDX = vSTAMP
NIT = 132
Q = lambda qb, s: 128 + (qb * 4 + s) * 4
NM = lambda qb: 192 + 4 * qb
KA = lambda s: 208 + s
VA = lambda db: 212 + db
KG = lambda i: 220 + i
VG = lambda i: 224 + (i & 1)
vR = NM(0)
O = lambda db, qb: (db * 4 + qb) * 4
FR = lambda f: 128 + (f % 8) * 4
HB = lambda ks: 160 + (ks % 8) * 4
LACC = lambda qb: 192 + 4 * qb
aONES, aG2, aXN = 208, 212, 244
GA = lambda i: 228 + (i % 4) * 4
AF = lambda f: 128 + (f % 8) * 4
PHA = lambda k: (160, 212)[k // 8] + (k % 8) * 4
T0 = 22
RING, VOFF = 65536, 65536

P = Prog()
e, lab, cap = P.e, P.lab, P.capture
slow_paths = []
nstamp = [0]


JIT = O_("jitter", 0)
njit = [0]


def jitter():
    i = njit[0]; njit[0] += 1
    e(f"s_memrealtime {sr(96,2)}"); P.wait_all(vm=False)
    e(f"s_lshr_b32 s96, s96, 14"); e(f"s_lshl_b32 s97, s2, 2" if JIT & 1 else "s_mov_b32 s97, s2")
    if JIT & 1: e(f"s_add_u32 s97, s97, s{sW}")
    e(f"s_add_u32 s96, s96, s97"); e(f"s_add_u32 s96, s96, {i * 7919 + 13}"); e("s_mul_i32 s96, s96, 0x9e3779b1")
    e("s_mov_b32 s98, s96")
    e(f"s_lshr_b32 s96, s96, {32 - (JIT >> 1)}")
    lab(f"L_jit{i}")
    e("s_sleep 8"); e("s_sub_u32 s96, s96, 1"); e(f"s_cbranch_scc0 L_jit{i}")


def jitter_item():
    i = njit[0]; njit[0] += 1
    return It(f"s_mul_i32 s98, s98, 0x41c64e6d\n    s_add_u32 s98, s98, 12345\n    s_lshr_b32 s99, s98, 27\n"
              f"    s_sub_u32 s99, s99, 24\n    s_cbranch_scc1 L_jx{i}\nL_jw{i}:\n    s_sleep {O_('jit2', 0)}\n"
              f"    s_sub_u32 s99, s99, 1\n    s_cbranch_scc0 L_jw{i}\nL_jx{i}:", "s")


def stamp(level=1):
    if JIT and level == 1: jitter()
    if AMP and level == 1:
        i = nstamp[0]; nstamp[0] += 1
        if i in AMP[:2]:
            e(f"{'s_memtime' if AMP[3] else 's_memrealtime'} {sr(sST + 2*AMP.index(i),2)}"); P.wait_all(vm=False)
        return
    if STAMP < level or (SSET and level != 0):
        return
    i = nstamp[0]; nstamp[0] += 1
    e(f"s_memtime {sr(sST,2)}"); e(f"s_memrealtime {sr(sST+2,2)}")
    P.wait_all(vm=False)
    e(f"v_accvgpr_read_b32 v{vSTAMP}, a254")
    e(f"v_writelane_b32 v{vSTAMP}, s{sST}, {2*i}")
    e(f"v_writelane_b32 v{vSTAMP}, s{sST+2}, {2*i+1}")
    e(f"v_accvgpr_write_b32 a254, v{vSTAMP}"); e(f"v_accvgpr_read_b32 v{vSTAMP}, a253")


def stamp_item():
    i = nstamp[0]; nstamp[0] += 1
    return It(f"s_memtime {sr(sST,2)}\n    s_memrealtime {sr(sST+2,2)}\n    s_waitcnt lgkmcnt(0)\n"
              f"    v_accvgpr_read_b32 v{vSTAMP}, a254\n"
              f"    v_writelane_b32 v{vSTAMP}, s{sST}, {2*i}\n    v_writelane_b32 v{vSTAMP}, s{sST+2}, {2*i+1}\n"
              f"    v_accvgpr_write_b32 a254, v{vSTAMP}\n    v_accvgpr_read_b32 v{vSTAMP}, a253", "s")


def mk_srd(d, p, size):
    e(f"s_mov_b32 s{d}, s{p}"); e(f"s_mov_b32 s{d+1}, s{p+1}"); e(f"s_mov_b32 s{d+2}, {size}"); e(f"s_mov_b32 s{d+3}, 0x20000")


def sum_terms(dst, *terms):
    first = True
    for t in terms:
        if isinstance(t, int):
            e(f"s_add_u32 s{dst}, s{dst}, {t}"); continue
        r, k = t
        if k == 0:
            e(f"s_mov_b32 s{dst}, 0"); first = False; continue
        d = dst if first else sT + 4
        e(f"s_lshl_b32 s{d}, s{r}, {k.bit_length()-1}" if k & (k - 1) == 0 else f"s_mul_i32 s{d}, s{r}, {k}")
        if not first: e(f"s_add_u32 s{dst}, s{dst}, s{d}")
        first = False


def allreduce(op, regs, tmps, k=None):
    for sw in ("v_permlane32_swap_b32", "v_permlane16_swap_b32"):
        for r, t in zip(regs, tmps): e(f"v_mov_b32 v{t}, v{r}")
        for r, t in zip(regs, tmps): e(f"{sw} v{r}, v{t}", k=k)
        for r, t in zip(regs, tmps): e(f"{op} v{r}, v{r}, v{t}")


def masked(mask, txt, tag=None, lds=False):
    (P.lds if lds else P.vm)(f"s_mov_b64 exec, {mask}\n    {txt}\n    s_mov_b64 exec, -1", tag)


class Poll:
    def __init__(self, name, loads, tests):
        self.name, self.loads, self.tests = name, loads, tests
        slow_paths.append(self)

    def issue(self):
        for l in self.loads: P.vm(l, self.name)

    def check(self):
        for i, t in enumerate(self.tests): e(t, need=[self.name] if i == 0 else ())
        e(f"s_cbranch_vccnz L_slow_{self.name}\nL_back_{self.name}:", k="v")


def flag_poll(name, s_rd, soff, target):
    return Poll(name, [f"buffer_load_dword v{vPOLL}, v{vPA}, {srd(s_rd)}, {soff} offen sc1"],
                [f"v_cmp_gt_u32 vcc, {target}, v{vPOLL}"])


def set_flags(stage, nlanes, need, val=1):
    e(f"v_mov_b32 v{vONE}, {val}")
    e(f"s_add_u32 s{sSF}, s{sFL}, {stage * 1024}")
    P.wait(need)
    masked((1 << nlanes) - 1, f"buffer_store_dword v{vONE}, v{vLANE}, {srd(SWS)}, s{sSF} offen sc1")


def interleave(code, side, every):
    side = list(side)
    for k, it in enumerate(code):
        if side and k % every == 0: P.puts(side.pop(0))
        P.put(it)
    for x in side: P.puts(x)


def gelu(base, n, tmp, dst, first):
    pairs = range(0, n, 2)
    if "g" in opt.get("cut", ""):
        for i in pairs: e(f"v_cvt_pk_bf16_f32 v{dst(i//2)}, v{base+i}, v{base+i+1}")
        return
    if first: e(f"v_mov_b32 v{vTC}, s{sC1}")
    for i in pairs: e(f"v_pk_fma_f32 {vr(tmp+i,2)}, {vr(base+i,2)}, {vr(base+i,2)}, {vr(vTC,2)} op_sel_hi:[1,1,0]")
    for i in pairs: e(f"v_pk_mul_f32 {vr(tmp+i,2)}, {vr(tmp+i,2)}, {vr(base+i,2)} neg_lo:[0,1] neg_hi:[0,1]")
    for i in range(n): e(f"v_exp_f32 v{tmp+i}, v{tmp+i}")
    for i in pairs: e(f"v_pk_add_f32 {vr(tmp+i,2)}, {vr(tmp+i,2)}, 1.0 op_sel_hi:[1,0]")
    for i in range(n): e(f"v_rcp_f32 v{tmp+i}, v{tmp+i}")
    for i in pairs: e(f"v_pk_mul_f32 {vr(tmp+i,2)}, {vr(tmp+i,2)}, {vr(base+i,2)}")
    for i in pairs: e(f"v_cvt_pk_bf16_f32 v{dst(i//2)}, v{tmp+i}, v{tmp+i+1}")


class Tile:
    def __init__(self, s_rd, voff, base, stride, perm, slot, tag, rows=64, kp=0, nh=0, half=32):
        self.__dict__.update(locals())

    def dma(self):
        out = []
        for i in range(self.rows // 8):
            row = ((0, 16, 4, 20)[i & 3] if self.perm else 8 * (i & 3)) + self.half * (i >> 2)
            so = self.base + row * self.stride - (i & 3) * 1024
            pre = [It(f"s_add_u32 m0, s{sRING}, {self.slot * 32768 + (i >> 2) * 4096}", "s")] if i % 4 == 0 else []
            out.append((pre + [It(f"s_mov_b32 s{sSO}, {so}", "s")],
                        [It(f"buffer_load_dwordx4 v{self.voff}, {srd(self.s_rd)}, s{sSO} offen "
                            f"offset:{(i & 3) * 1024} lds", "g", self.tag)]))
        return out


def place(add, g, grp, prev, avoid=()):
    pre, its = grp
    c = [h for h in range(max(prev + 1, 0), g) if h not in avoid][-len(pre):] if pre else []
    for k, it in enumerate(pre): add(c[k] if len(c) == len(pre) else max(g - len(pre) + k, prev + 1, 0), it)
    for it in its: add(g, it)


def dma_voff(dst, stride, perm, s_base, a):
    b = a + 1
    e(f"v_lshrrev_b32 v{a}, 10, v{vLANE}")
    e(f"v_bfe_u32 v{b}, v{vBA}, 4, 3")
    e(f"v_and_b32 v{dst}, 6, v{a}"); e(f"v_xor_b32 v{b}, v{b}, v{dst}")
    if perm:
        e(f"v_and_b32 v{dst}, 4, v{a}"); e(f"v_add_u32 v{a}, v{a}, v{dst}")
    e(f"v_mul_u32_u24 v{a}, {stride}, v{a}")
    e(f"v_lshl_add_u32 v{a}, v{b}, 4, v{a}")
    e(f"v_add_u32 v{dst}, {s_base}, v{a}")


def a_reads(t, ti, nb):
    base = (vAA2 if t.slot == 2 else vAA) + nb
    off = (t.slot % 2) * 32768 if t.slot < 2 else 0
    return [It(f"ds_read_b64_tr_b16 {ar(AF(nb*2+ks) + 2*h, 2)}, v{base} offset:{off + ks*4096 + h*2048}", "l",
               ("A", t.tag, nb), need=[t.tag]) for ks in range(t.rows // 32) for h in range(2)]


def gemm_pre(tiles, i0):
    P.puts(a_reads(tiles[i0], i0, 0))


def gemm(tiles, i0, n, acc, pending, bf, breg=vBA, extra=None, fill=None, over=0, opening=None, dma0=0, btr=False):
    bf = [x if isinstance(x, tuple) else (ar, x) for x in bf]
    BF = lambda s, ks, tb, o=0, w=4: bf[grp[s] % len(bf)][0](bf[grp[s] % len(bf)][1] + (ks * 4 + tb) * 4 + o, w)
    ms, gaps, start, grp, held, fresh = [], {}, [], [], {}, []
    seen = set()
    for s, ti in enumerate(range(i0, i0 + n)):
        t = tiles[ti]
        fresh.append(t.kp not in held)
        if fresh[s]:
            k = max(grp, default=-1) + 1
            while s and k % len(bf) == grp[s - 1] % len(bf): k += 1
            held = {kp: g for kp, g in held.items() if g % len(bf) != k % len(bf)}
            held[t.kp] = k
        grp.append(held[t.kp])
        start.append(len(ms))
        nks = t.rows // 32
        for nb in range(4):
            for tb in range(4):
                for ks in (range(nks) if not tb & 1 else range(nks - 1, -1, -1)):
                    d = vr(acc(t.nh, nb, tb), 4)
                    c = d if (t.nh, nb, tb) in seen else "0"
                    seen.add((t.nh, nb, tb))
                    ms.append(It(f"{MF} {d}, {ar(AF(nb*2+ks),4)}, {BF(s,ks,tb)}, {c}", "m",
                                 need=[("A", t.tag, nb), ("B", tiles[i0].tag, grp[s], tb)]))
    start.append(len(ms))

    def b_reads(s):
        t = tiles[i0 + s]
        if btr:
            return [It(f"ds_read_b64_tr_b16 {BF(s,ks,tb,2*h,2)}, v{breg+tb} offset:{t.kp*8192 + ks*4096 + h*2048}",
                       "l", ("B", tiles[i0].tag, grp[s], tb)) for tb in range(4) for ks in range(2) for h in range(2)]
        return [It(f"ds_read_b128 {BF(s,ks,tb)}, v{breg} offset:{t.kp*8192 + ks*4096 + tb*1024}", "l",
                   ("B", tiles[i0].tag, grp[s], tb)) for tb in range(4) for ks in range(t.rows // 32)]

    add = lambda g, it: gaps.setdefault(g, []).append(it)
    pre = b_reads(0)
    release = {}
    for s in range(n):
        ti = i0 + s; t = tiles[ti]
        per = (start[s + 1] - start[s]) // 4
        for nb in range(4):
            if s == 0 and nb == 0: continue
            rd = a_reads(t, ti, nb)
            for k, it in enumerate(rd):
                g = start[s] + per * nb - 6 - 2 * (len(rd) - 1 - k)
                if g < 0: pre.append(it)
                else: add(g, it)
        if ti + 3 < len(tiles) and tiles[ti + 3]: release[start[s] + 3 * per] = tiles[ti + 3]
        if s + 1 < n and fresh[s + 1]:
            s0 = s - 1 if s and not fresh[s] and grp[s - 1] % len(bf) != grp[s + 1] % len(bf) else s
            rd = b_reads(s + 1)
            cand = [g for g in range(start[s0], start[s + 1] - 6) if g % 4 == 3]
            if btr: cand = sorted(cand * 2)
            if len(cand) < len(rd): cand = sorted(cand + [start[s0] + 2 * k for k in range(len(rd) - len(cand))])
            step = len(cand) / len(rd)
            for k, it in enumerate(rd): add(cand[int(k * step)], it)
    if opening == "get": return a_reads(tiles[i0], i0, 0) + pre
    if opening == "done": pre = []
    prev = dma0 - 1
    for g in range(dma0, len(ms)):
        if g in release: pending += release[g].dma()
        nxt = min([r for r in release if r > g], default=len(ms) + 24)
        if pending and (g % 4 == 1 or (g % 4 == 3 and len(pending) > (nxt - g + 1) // 4)):
            place(add, g, pending.pop(0), prev); prev = g
    for g, its in (extra or {}).items():
        for it in its: add(g, it)
    for g in start[:-1]: add(g + 10, hop())
    if O_("jit2", 0):
        for g in start[:-1]: add(g + 4, jitter_item())
    if SSET == {id(qt): "q", id(ot): "o"}.get(id(tiles), "mlp"):
        for g in start[:-1] + [len(ms) - 1]: add(g, stamp_item())
    P.puts(pre)
    P.run_gaps(ms, gaps, fill, gmin=4, over=over)


def flush(pending):
    while pending:
        a, b = pending.pop(0)
        P.puts(a + b)


def shared_ops(kss, koff, acc, zero, afr, breg, bneed, name, i0=0):
    out = []
    for nb in range(4):
        for ks in kss:
            i = i0 + len(out)
            d = acc(nb)
            out.append((It(f"{MF} {d}, {ar(afr(i),4)}, {breg(ks)}, {0 if zero and not ks else d}", "m",
                           need=[(name, i)] + list(bneed(ks))),
                        [It(f"ds_read_b64_tr_b16 {ar(afr(i)+2*h,2)}, v{vAS+nb} offset:{(ks-koff)*4096 + h*2048}", "l",
                            (name, i)) for h in range(2)]))
    return out


def pack(acc, nh, tb, s, second=False, guard=False):
    a, b = acc(nh, 2 * s, tb), acc(nh, 2 * s + 1, tb)
    order = list(enumerate((a, a + 2, b, b + 2)))
    d = b if second else a
    for j, r in reversed(order) if second else order: e(f"v_cvt_pk_bf16_f32 v{d+j}, v{r}, v{r+1}")
    if guard:
        for j in range(4): e(f"v_min_u32 v{d+j}, -2, v{d+j}")


def store_piece(src, ws_base, nh, tb, s, tag):
    lane = vPO + (tb >> 1) if OWN and ws_base == WS_PS else vBA
    e(f"s_add_u32 s{sSF}, s{sPP}, {ws_base + (tb >> 1)*65536 + ((tb & 1) + 2*s)*2048}")
    P.vm(f"buffer_store_dwordx4 {src}, v{lane}, {srd(SWS)}, s{sSF} offen offset:{nh*1024} sc1", tag)


def load_piece(ws_base, dst, g, nh, tag):
    if OWN and ws_base == WS_PS: e(f"s_xor_b32 s{sSF}, s{sPX}, {g*8192}")
    else: e(f"s_add_u32 s{sSF}, s{sPC}, {ws_base + g*8192}")
    P.vm(f"buffer_load_dwordx4 {dst}, v{vBA}, {srd(SWS)}, s{sSF} offen offset:{nh*1024} sc1", (tag, g, nh))


def add_piece(dst, reg, first, need):
    for j in range(4):
        for h, sel in enumerate((sLO, sHI)):
            d = dst + 2 * j + h
            e(f"v_dot2_f32_bf16 v{d}, v{reg+j}, s{sel}, {0 if first else 'v%d' % d}", need=need)


def frag_reads(t, f, tail=False):
    if f < 16:
        kb, s = f // 4, f % 4
        off = ((t + 1) % 4) * 16384 + kb * 4096
        return [It(f"ds_read_b128 {ar(FR(f),4)}, v{KA(s)} offset:{off}", "l", ("F", t, f))]
    db, ks = ((f - 16) // 2, (f - 16) % 2) if not tail else ((f - 16) % 8, (f - 16) // 8)
    off = (t % 4) * 16384 + ks * 8192
    return [It(f"ds_read_b64_tr_b16 {ar(FR(f)+2*h,2)}, v{VA(db)} offset:{off + 4096*h}", "l", ("F", t, f))
            for h in range(2)]


def qk_mfmas(t, zero=False):
    out = []
    for kb in range(4):
        for qb in range(4):
            for n, s in enumerate(range(4) if not qb & 1 else range(3, -1, -1)):
                d = vr(S((t + 1) & 1, kb, qb), 4)
                c = d if n else ("0" if zero else vr(NM(qb), 4))
                out.append((It(f"{MF} {d}, {ar(FR(kb*4+s),4)}, {vr(Q(qb,s),4)}, {c}", "m",
                               need=[("F", t, kb * 4 + k) for k in range(4)]), kb * 4 + s))
    return out


def pv_one(t, db, qb, ks, f, need, zero=False):
    o = ar(O(db, qb), 4)
    ab = [ar(FR(f), 4), vr(PR(t & 1, ks, qb), 4)][::-1 if PA else 1]
    return (It(f"{MF} {o}, {ab[0]}, {ab[1]}, {(ar(GA(0), 4) if OB else 0) if zero else o}", "m", need=need), f)


def sum_one(t, qb):
    return (It(f"v_smfmac_f32_16x16x64_bf16 {ar(LACC(qb),4)}, {ar(aONES,4)}, {vr(PR(t&1,0,qb),8)}, v{vIDX}", "m"), None)


def pv_mfmas(t, zero=False):
    out = []
    for db in range(8):
        need = [("F", t, 16 + db * 2), ("F", t, 17 + db * 2)]
        for qb in range(4):
            for n, ks in enumerate(range(2) if not qb & 1 else range(1, -1, -1)):
                out.append(pv_one(t, db, qb, ks, 16 + db * 2 + ks, need, zero and not n))
        if db % 2 == 0: out.append(sum_one(t, db // 2))
    return out


def pv_mfmas_tail(t):
    out = []
    for ks in range(2):
        if ks: out += [sum_one(t, qb) for qb in range(4)]
        for db in range(8):
            f = 16 + ks * 8 + db
            out += [pv_one(t, db, qb, ks, f, [("F", t, f)]) for qb in range(4)]
    return out


def sm_stream(buf, half):
    ex, post = [], []
    for qb in range(4):
        b, d = S(buf, 2 * half, qb), PR(buf, half, qb)
        for j in range(8):
            ex.append(It(f"v_exp_f32 v{b+j}, v{b+j}", "x"))
            post.append([It(f"v_cvt_pk_bf16_f32 v{d + j//2}, v{b+j-1}, v{b+j}", "v")] if j & 1 else [])
    return ex, post


def kv_dma(kind, tile, lds=None, so=None):
    reg, s_rd, base = (KG, SK, 0) if kind == "K" else (VG, SV, VOFF)
    lds = base + (tile % 4) * 16384 if lds is None else lds
    out = []
    for i in range(4):
        pre = [It(f"s_add_u32 m0, s{sW4K}, {lds}", "s"),
               It(f"s_mov_b32 s{sSO}, {tile * 16384 if so is None else so}", "s")] if i == 0 else []
        out.append((pre, [It(f"buffer_load_dwordx4 v{reg(i)}, {srd(s_rd)}, s{sSO} offen offset:{i*1024} lds",
                             "g", (kind, tile))]))
    return out


issued = set()
CLUSTER = O_("cluster", 1)
OVER = [int(x) for x in opt.get("overit", "3,9,13").split(",")]
WINS = [int(x) for x in opt.get("wins", "2,18,34,50,75,92,109,124").split(",")]
WPAT = [int(x) for x in opt.get("wpat", "1").split(",")]


def attn_iter(t, groups, fill, endwait=(), extra=None, ins=None):
    end = T0 - 1 if t < T0 else 31
    last = t == end
    mf = pv_mfmas_tail(t) if last else qk_mfmas(t) + pv_mfmas(t, zero=t == 0)
    ms = [m for m, _ in mf]
    n = len(ms)
    first_use, last_use = {}, {}
    for i, (_, f) in enumerate(mf):
        if f is not None:
            first_use.setdefault(f, i); last_use[f] = i
    reads = []
    for f in sorted(first_use):
        if (t, f) in issued: continue
        reads += [(first_use[f] - AHEAD, last_use.get(f - 8, -1), it) for it in frag_reads(t, f, last)]
    nxt_need = ()
    if t < end - 1:
        for f in range(4):
            reads += [(n + f - AHEAD, last_use[24 + f], it) for it in frag_reads(t + 1, f)]
            issued.add((t + 1, f))
        nxt_need = [("F", t + 1, f) for f in range(4)]
    elif t == end - 1:
        for f in range(16, 19):
            reads += [(n + 4 * (f - 16) - AHEAD, last_use[8 + f], it) for it in frag_reads(end, f, True)]
            issued.add((end, f))
        nxt_need = [("F", end, 16)]
    gaps = {}
    add = lambda g, it: gaps.setdefault(g, []).append(it)
    exg = {}
    wins = [] if last or not CLUSTER else WINS[:min(len(WINS), -(-len(groups) // len(WPAT)))]
    quiet = {w + k for w in wins for k in range(WPAT[-1] + 1)}
    dma_gaps = sorted(w + k for w in wins for k in WPAT)
    narrow = {g for g, m in enumerate(ms) if m.t.startswith("v_smfmac")}
    if last:
        ex, post = sm_stream(t & 1, 1)
        for i in range(32): exg[i] = (ex[i], post[i])
    else:
        for (ex, post), lo, hi in ((sm_stream(t & 1, 1), 0, 63), (sm_stream((t + 1) & 1, 0), 64, n - 1)):
            c = [g for g in range(lo, hi) if g not in quiet]
            for i in range(32):
                g = c[(i * (len(c) + 1)) // 32]
                while g in narrow or g in exg or g in quiet: g += 1
                exg[g] = (ex[i], post[i])
    for g, (x, post) in exg.items():
        add(g, x)
    for g, (x, post) in exg.items():
        h = g + 1
        while not last and (h in exg or h in quiet): h += 1
        for it in post: add(h, it)
    room = lambda g: len(gaps.get(g, [])) < (1 if g in narrow else 2)
    free = set(range(n)) if last else {g for g in range(n) if g not in exg and g not in dma_gaps and room(g)}
    prev, pre, avail = n, [], sorted(free)
    for dl, early, it in reversed(reads):
        c = [g for g in free if g <= dl and g < prev]
        if c and max(c) >= early:
            prev = max(c); free.discard(prev); add(prev, it)
        elif early < 0:
            prev = -1; pre.insert(0, it)
        else:
            c = [g for g in avail if early <= g <= dl + AHEAD - 6]
            g = min([g for g in c if room(g)] or c)
            free.discard(g); gaps.setdefault(g, []).insert(0, it)
    if groups:
        def spaced(c):
            out = []
            for g in c:
                if not out or g - out[-1] >= 2: out.append(g)
            return out
        light = spaced([g for g in sorted(free) if 1 <= g < n - 6 and g not in gaps])
        fr = light if len(light) >= len(groups) - len(dma_gaps) + 4 else spaced([g for g in sorted(free) if 1 <= g < n - 6])
        rest = len(groups) - len(dma_gaps)
        if rest > 0:
            fr = [g for g in fr if not {g - 1, g, g + 1} & set(dma_gaps)]
            if len(fr) < rest: fr = spaced([g for g in range(1, n - 6) if g not in exg and not {g - 1, g, g + 1} & set(dma_gaps)])
            assert len(fr) >= rest, (t, len(fr), len(groups))
            dma_gaps = sorted(dma_gaps + [fr[int(k * len(fr) / rest)] for k in range(rest)])
        for k, grp in enumerate(groups): place(add, dma_gaps[k], grp, dma_gaps[k - 1] if k else -1, {u - 1 for u in first_use.values()})
    if not last:
        add(n - 3, It(None, "s", need=[("K", min(t + 3, end)), ("V", end if t == end - 2 else t + 1)] + list(endwait)))
        add(n - 2, It("s_barrier", "s"))
        add(n - 4, hop())
    for g, its in (extra or {}).items():
        for it in its: add(g, it)
    if SSET == "attn": add(0, stamp_item())
    if O_("jit2", 0):
        for g in (1, n // 2, n - 12): add(g, jitter_item())
    if ins:
        for k in range(3):
            for h, it in enumerate(ins[k][1]): add(1 + 4 * k + 2 * h, it)
        pos = {(13 + (k * (n - 24)) // (len(ins) - 1)) | 1: k for k in range(len(ins))}
        assert len(pos) == len(ins)
        ms2, gaps2, old, quiet = [], {}, quiet, set()
        for g, m in enumerate(ms):
            if g in old: quiet.add(len(ms2))
            gaps2[len(ms2)] = gaps.get(g, []); ms2.append(m)
            if g in pos:
                k = pos[g]
                gaps2[len(ms2)] = list(ins[k + 3][1]) if k + 3 < len(ins) else []
                ms2.append(ins[k][0])
        ms, gaps = ms2, gaps2
    P.puts(pre)
    P.run_gaps(ms, gaps, fill, next_need=nxt_need, pos=t, gmin=4, quiet=quiet, over=4 if t in OVER else 0)


hdr = [l.rstrip("\n") for l in open("header.txt")]
hdr = hdr[:[i for i, l in enumerate(hdr) if "@launch" in l][0]]
P.L += hdr + ["; @launch grid=(256,1,1) block=(256,1,1) lds=163840",
              '.amdgcn_target "amdgcn-amd-amdhsa--gfx950"', ".text", f".globl {NAME}", ".p2align 8",
              f".type {NAME},@function"]
lab(NAME)
e("s_cmp_lt_u32 s2, 256"); e("s_cbranch_scc1 L_go"); e("s_endpgm")
lab("L_go")
if AMP and AMP[0] < 0: e(f"s_memrealtime {sr(sST,2)}")
e("s_load_dwordx16 s[64:79], s[0:1], 0"); e("s_load_dwordx8 s[80:87], s[0:1], 64"); e("s_load_dwordx2 s[88:89], s[0:1], 96")
PAIR = O_("pair", 0)
NS = 16 if PAIR else 32
sMI, sWV = 90, 91
if PAIR:
    e(f"s_and_b32 s{sG}, s2, 3"); e(f"s_and_b32 s{sT}, s2, 2"); e(f"s_add_u32 s{sG}, s{sG}, s{sT}")
    e(f"s_bfe_u32 s{sT}, s2, 0x10003"); e(f"s_lshl1_add_u32 s{sG}, s{sT}, s{sG}")
    e(f"s_lshr_b32 s{sMI}, s2, 4"); e(f"s_and_b32 s{sM}, s2, 4"); e(f"s_lshl_b32 s{sM}, s{sM}, 2"); e(f"s_add_u32 s{sM}, s{sM}, s{sMI}")
else:
    e(f"s_and_b32 s{sG}, s2, 7"); e(f"s_lshr_b32 s{sM}, s2, 3"); e(f"s_lshr_b32 s{sMI}, s2, 3")
e("v_lshrrev_b32 v1, 6, v0"); e("v_and_b32 v0, 63, v0"); e(f"v_readfirstlane_b32 s{sW}, v1")
e(f"v_lshlrev_b32 v{vBA}, 4, v0"); e(f"v_lshlrev_b32 v{vLANE}, 7, v0")
e(f"s_getpc_b64 {sr(sT+1,2)}")
lab("L_pc")
NCL = 10
e(f"s_lshr_b32 s{sT+3}, s2, 3")
sum_terms(sT, (sT + 3, 512), (sW, 128))
e(f"v_min_u32 v6, {NCL-1}, v0"); e(f"v_lshl_add_u32 v6, v6, 14, s{sT}"); e("v_min_u32 v6, L_end-L_pc, v6")
e(f"v_mov_b32 v{vCODE+1}, s{sT+2}"); e(f"v_add_co_u32 v{vCODE}, vcc, s{sT+1}, v6")
e(f"v_addc_co_u32 v{vCODE+1}, vcc, 0, v{vCODE+1}, vcc")
code_touch = lambda: P.vm(f"global_load_dword a255, {vr(vCODE,2)}, off")
masked(O_("cm", 15), f"global_load_dword a255, {vr(vCODE,2)}, off")
sum_terms(sWV, (sMI, 4), (sW, 1))


def touch_off(d, nrows, lines, stride, base_terms, t):
    per = -(-nrows // (NS * 4))
    assert per * lines <= 64 and lines & (lines - 1) == 0
    sh = lines.bit_length() - 1
    e(f"v_lshrrev_b32 v{d}, {7 + sh}, v{vLANE}"); e(f"v_min_u32 v{d}, {per - 1}, v{d}")
    e(f"s_mul_i32 s{sT}, s{sWV}, {per}"); e(f"v_add_u32 v{d}, s{sT}, v{d}")
    if per * NS * 4 != nrows: e(f"v_min_u32 v{d}, {nrows - 1}, v{d}")
    e(f"v_mul_u32_u24 v{d}, {stride}, v{d}")
    sum_terms(sT, *base_terms)
    if lines > 1:
        e(f"v_and_b32 v{t}, {(lines - 1) * 128}, v{vLANE}"); e(f"v_add3_u32 v{d}, v{d}, v{t}, s{sT}")
    else:
        e(f"v_add_u32 v{d}, s{sT}, v{d}")


WQ0 = O_("wq0", 128)
vTQ, vT1, vTK = T + 11, T + 13, T + 16
touch_off(6, WQ0, 8, 8192, [(sG, 1024)], 7)
touch_off(vT1, 512, 1, 1024, [(sG, 128)], 7)
e("v_and_b32 v2, 3, v0")
e("v_lshrrev_b32 v1, 2, v0")
sum_terms(sT, (sM, 64), (sW, 16))
e(f"v_add_u32 v3, s{sT}, v1"); e("v_lshlrev_b32 v3, 10, v3"); e("v_lshl_add_u32 v3, v2, 4, v3")
e(f"s_bfe_u32 s{sT+1}, s{sG}, {0x10000 + PAIR}"); e(f"s_lshl_b32 s{sT+2}, s{sT+1}, 9")
e(f"v_add_u32 v3, s{sT+2}, v3"); e(f"v_xor_b32 v{G12+13}, 0x200, v3")
if STAMP: e("v_accvgpr_write_b32 a254, 0")
e("s_waitcnt lgkmcnt(0)")
stamp()
if SSET == "ln": stamp(0)
ENT = " nt" * O_("ent", 0)
P.vm(f"global_load_dword a255, v{vT1}, s[76:77]{ENT}")
P.vm(f"global_load_dword a255, v6, s[70:71]{ENT}")
for i in range(8):
    P.vm(f"global_load_dwordx4 {vr(XR+4*i,4)}, v3, s[64:65] offset:{i*64}", ("x", i))
HOP = O_("hop", 1)
hop = lambda n="": It(f"; @hop {n}", "s")
if HOP:
    e("s_branch L_main"); P.raw(".p2align 12")
lab("L_main")
e("v_lshlrev_b32 v4, 1, v2"); e("v_xor_b32 v4, v4, v1"); e("v_lshlrev_b32 v4, 4, v4"); e("v_lshl_add_u32 v4, v2, 8, v4")
sum_terms(sT + 2, (sT + 1, 32768), (sW, 1024))
e(f"v_add_u32 v{vWA}, s{sT+2}, v4"); e(f"v_xor_b32 v{vWA+1}, 0x8000, v{vWA}")
e("v_and_b32 v1, 15, v0"); e("v_lshrrev_b32 v2, 4, v0")
e("v_lshlrev_b32 v4, 1, v2"); e("v_xor_b32 v4, v4, v1"); e("v_lshlrev_b32 v4, 4, v4"); e(f"v_lshl_add_u32 v{vBX}, v2, 8, v4")
e(f"v_add_u32 v3, s{sT}, v1"); e("v_lshlrev_b32 v4, 15, v2"); e(f"v_lshl_add_u32 v{vTOK}, v3, 4, v4")
for d, p in ((SK, 66), (SV, 68)):
    e(f"s_lshl_b32 s{sT}, s{sG}, 19")
    e(f"s_add_u32 s{d}, s{p}, s{sT}"); e(f"s_addc_u32 s{d+1}, s{p+1}, 0"); e(f"s_mov_b32 s{d+2}, 0x80000"); e(f"s_mov_b32 s{d+3}, 0x20000")
for d, p, size in ((SX, 64, 0x200000), (SWQ, 70, 0x400000), (SW1, 76, 0x80000), (SWS, 88, 0x10000000),
                   (SWO, 72, 0x400000), (SW2, 78, 0x80000), (SW3, 80, 1835008), (SW4, 82, 1835008),
                   (SOUT, 84, 0x200000), (SDBG, 86, 256)):
    mk_srd(d, p, size)
sum_terms(sRING, (sW, 8192), RING); sum_terms(sW1K, (sW, 1024)); sum_terms(sW4K, (sW, 4096))
sum_terms(sT, (sG, 1024), (sW, 256)); dma_voff(vDWQ, 8192, True, f"s{sT}", 10)
sum_terms(sT, (sW, 65536), (sG, 128)); dma_voff(vDW1, 1024, True, f"s{sT}", 10); dma_voff(vDW2, 1024, False, f"s{sT}", 10)
for r, v in ((sLO, "0x00003f80"), (sHI, "0x3f800000"), (sONE2, "0x3f803f80"), (sC1, f2u(GK)), (sC2, f2u(GA_)),
             (sNL2E, f2u(-LOG2E / GA_)), (sSPIN, opt.get("spin0", 0)), (sMSK, "0xffff0000")):
    e(f"s_mov_b32 s{r}, {v}")
sum_terms(sF0, (sM, 4096), (sW, 256), WS_FL)
sum_terms(sFL, (sG, 4), (sF0, 1))
sum_terms(sF1, (sM, 4096), (sG, 128), WS_FL + 1024)
e(f"s_add_u32 s{sF2}, s{sF1}, 1024"); e(f"s_add_u32 s{sF3}, s{sF1}, 2048")
sum_terms(sSTC, (sM, 4096), (sW, 1024), WS_SS)
sum_terms(sSTP, (sG, 128), (sSTC, 1))
sum_terms(sPP, (sM, 1 << 19), (sW, 1 << 17), (sG, 1 << 13))
sum_terms(sPC, (sM, 1 << 19), (sG, 1 << 16), (sW, 1 << 11))
e(f"s_lshl_b32 s{sHO}, s{sG}, 18")
if OWN:
    for u in range(2):
        e(f"s_lshl1_add_u32 s{sT}, s{sW}, {u}"); e(f"s_cmp_eq_u32 s{sT}, s{sG}"); e(f"s_cselect_b32 s{sPO[u]}, 0x7f000000, 0")
e(f"s_and_b32 s{sKS}, s{sG}, 6"); e(f"s_lshl_b32 s{sKS}, s{sKS}, 1"); e(f"s_lshr_b32 s{sT}, s{sW}, 1"); e(f"s_add_u32 s{sKS}, s{sKS}, s{sT}")
e(f"s_and_b32 s{sTB}, s{sG}, 1"); e(f"s_lshl_b32 s{sTB}, s{sTB}, 1"); e(f"s_and_b32 s{sT}, s{sW}, 1"); e(f"s_add_u32 s{sTB}, s{sTB}, s{sT}")
sum_terms(sSTF, (sM, 4096), (sTB, 1024), WS_SS)
sum_terms(sXF, (sM, 65536), (sTB, 16384), (sKS, 64))
e(f"s_and_b32 s{sT}, s{sG}, 1"); sum_terms(sW3B, (sG, 448), (sT, 64)); sum_terms(sRS, (sW, 2048), RING)
e("v_lshrrev_b32 v6, 2, v0"); e("v_and_b32 v7, 3, v0"); e("v_lshlrev_b32 v7, 3, v7"); e("v_lshl_add_u32 v7, v6, 7, v7")
e("v_bfe_u32 v6, v0, 3, 2")
for nb in range(4):
    e(f"v_xor_b32 v10, {nb}, v6"); e("v_lshl_add_u32 v10, v10, 5, v7")
    e(f"v_add_u32 v{vAS+nb}, {RING + 32768}, v10")
    if QPERM:
        e("v_lshrrev_b32 v8, 2, v0"); e("v_and_b32 v9, 6, v8"); e("v_and_b32 v10, 3, v0"); e("v_xor_b32 v9, v9, v10")
        e(f"v_xor_b32 v9, {4*(nb>>1)}, v9"); e("v_lshlrev_b32 v9, 4, v9"); e("v_lshl_add_u32 v10, v8, 7, v9")
        if nb & 1: e("v_add_u32 v10, 8, v10")
    e(f"v_add_u32 v{vAA+nb}, s{sRING}, v10"); e(f"v_add_u32 v{vAA2+nb}, 0x10000, v{vAA+nb}")
e("v_xor_b32 v9, v2, v1")
for s in range(4):
    e(f"v_xor_b32 v10, {4*s}, v9"); e("v_lshlrev_b32 v10, 4, v10"); e(f"v_lshl_add_u32 v{KA(s)}, v1, 8, v10")
e("v_lshrrev_b32 v9, 2, v0"); e("v_lshlrev_b32 v10, 8, v9"); e("v_and_b32 v11, 3, v0")
e("v_lshl_add_u32 v10, v11, 3, v10"); e(f"v_add_u32 v10, {VOFF}, v10"); e("v_and_b32 v9, 7, v9")
for db in range(8):
    e(f"v_xor_b32 v11, {db}, v9"); e(f"v_lshl_add_u32 v{VA(db)}, v11, 5, v10")
e(f"v_lshl_add_u32 v10, v2, 8, s{sW4K}")
for i in range(4):
    e(f"v_add_u32 v9, {4*i}, v2"); e("v_xor_b32 v11, v9, v1"); e(f"v_lshl_add_u32 v{KG(i)}, v11, 4, v10")
    if i < 2:
        e("v_lshlrev_b32 v9, 1, v9"); e("v_xor_b32 v11, v9, v1"); e(f"v_lshl_add_u32 v{VG(i)}, v11, 4, v10")
e(f"v_lshlrev_b32 v{G12+8}, 4, v1")
if WQ0 < 512: touch_off(vTQ, 512 - WQ0, 8, 8192, [(sG, 1024), WQ0 * 8192], 7)
SLIM = O_("slim", 1)
touch_off(vTK, 256 if SLIM else 512, 1, 128, [(sG, 0)], 7)


def late_touch():
    P.vm(f"buffer_load_dword a255, v{vTK}, {srd(SK)}, 0 offen"); P.vm(f"buffer_load_dword a255, v{vTK}, {srd(SV)}, 0 offen")
    if not SLIM:
        P.vm(f"buffer_load_dword a255, v{vT1}, {srd(SW2)}, 0 offen")
        code_touch()


LTG = O_("ltg", 4)
XQ = O_("xq", 3)


w1t = [Tile(SW1, vDW1, k * 4 * 65536, 1024, True, 1 + k, "w1") for k in range(2)]
w2t = [Tile(SW2, vDW2, k * 4 * 65536, 1024, False, 2, ("w2", k)) for k in range(2)]
qt = [Tile(SWQ, vDWQ, (i // 2) * 64 * 8192 + (i % 2) * 128, 8192, True, i % 3, ("wq", i), kp=i // 2, nh=i % 2)
      for i in range(16)] + ([] if SLIM else [None, w2t[0]])
mt = [Tile(SW3, vDW2, kp * 64 * 3584, 3584, False, (2 - i) % 3, ("w3", kp), kp=kp)
      for i, kp in enumerate((4, 5, 6, 7, 0, 1, 2, 3))]
mt += [Tile(SW4, vDW4, (i // 2) * 65536 + (i % 2) * 128, 1024, False, (2 - 8 - i) % 3, ("w4", i), kp=i // 2, nh=i % 2)
       for i in range(8)]
ot = [Tile(SWO, vDWO, ((kp & 1) * 256 + (kp >> 1) * 32) * 1024 + nh * 128, 1024, False, (nh * 8 + i + 2) % 3,
           ("wo", nh, kp), kp=kp, nh=nh, half=128)
      for nh in range(2) for i, kp in enumerate(range(8) if nh == 0 else (2, 3, 4, 0, 5, 1, 6, 7))]

a = G12


def quad_sum(regs):
    for qp in ("[1,0,3,2]", "[2,3,0,1]"):
        for r in regs: e(f"v_add_f32_dpp v{r}, v{r}, v{r} quad_perm:{qp} row_mask:0xf bank_mask:0xf")


def ln_stats(lo, hi):
    for i in range(lo, hi):
        c = lambda r: f"v{r}" if i >= 2 else 0
        e(f"v_dot2_f32_bf16 v{a + i % 2}, v{XR+i}, s{sONE2}, {c(a + i % 2)}", need=[("x", i // 4)])
        e(f"v_dot2_f32_bf16 v{a + 2 + i % 2}, v{XR+i}, v{XR+i}, {c(a + 2 + i % 2)}")


def unpack(k):
    for i in range(4 * k, 4 * k + 4):
        e(f"v_lshlrev_b32 v{2*i}, 16, v{XR+i}"); e(f"v_and_b32 v{2*i+1}, s{sMSK}, v{XR+i}")


def ln_rest():
    ln_stats(32, 64)
    e(f"v_add_f32 v{a}, v{a}, v{a+1}"); e(f"v_add_f32 v{a+2}, v{a+2}, v{a+3}")
    quad_sum([a, a + 2])
    e(f"v_mul_f32 v{a+4}, {f2u(-1/512)}, v{a}"); e(f"v_mul_f32 v{a+2}, {f2u(1/512)}, v{a+2}")
    e(f"v_fma_f32 v{a}, -v{a+4}, v{a+4}, v{a+2}"); e(f"v_max_f32 v{a}, 0, v{a}")
    e(f"v_add_f32 v{a+1}, {f2u(EPS)}, v{a}")
    e(f"v_rsq_f32 v{vRSTD}, v{a+1}")
    unpack(8)
    e(f"v_mul_f32 v{a+2}, {f2u(QSCALE)}, v{vRSTD}"); e(f"v_mul_f32 v{a+3}, v{a+4}, v{a+2}")
    for k in range(17):
        if k < 16:
            for i in range(4 * k, 4 * k + 4):
                e(f"v_pk_fma_f32 {vr(2*i,2)}, {vr(2*i,2)}, {vr(a+2,2)}, {vr(a+2,2)} op_sel:[0,0,1] op_sel_hi:[1,0,1]")
        if k: P.lds(f"ds_write_b128 v{vWA + (k-1)//8}, {vr(XR+4*k-4,4)} offset:{((k-1)%8)*4096}", "xw")
        if k % 2 == 0 and 9 + k // 2 < 16: unpack(9 + k // 2)
        if k < 16:
            for i in range(4 * k, 4 * k + 4): e(f"v_cvt_pk_bf16_f32 v{XR+i}, v{2*i}, v{2*i+1}")
    e(f"v_mul_f32 v{a}, v{a}, v{vRSTD}"); e(f"v_mul_f32 v{a}, v{a}, v{vRSTD}")
    e(f"v_add_f32 v{a}, {f2u(EPS)}, v{a}")
    e(f"v_rsq_f32 v{vSC1}, v{a}")
    e(f"v_mul_f32 v{vRSTD}, s{sC2}, v{vRSTD}")
    e(f"v_mul_f32 v{vSC1}, {f2u(GA_/QSCALE)}, v{vSC1}")
    e(f"v_mul_f32 v{vNMEAN}, v{a+4}, v{vRSTD}")
    e(f"v_add_u32 v{vWA}, s{sW1K}, v{vBX}")


if SSET == "ln": stamp(0)
P.put(hop(O_("hop00", 1)))
wq_rest = lambda: P.vm(f"buffer_load_dword a255, v{vTQ}, {srd(SWQ)}, 0 offen{ENT}") if WQ0 < 512 else None
if LTG == 4: XQ = 4
if XQ == 0: wq_rest()
if LTG == 0: late_touch()
for i in range(8):
    P.vm(f"buffer_load_dwordx4 {vr(XR+32+4*i,4)}, v{G12+13}, {srd(SX)}, 0 offen offset:{i*64}", ("x", 8 + i))
if XQ == 1: wq_rest()
if LTG == 1: late_touch()
if SSET == "ln": stamp(0)
P.put(hop(O_("hop0", 1)))
for k in range(8):
    ln_stats(4 * k, 4 * k + 4); unpack(k)
if O_("hop1", 1): P.put(hop(O_("hop1", 1)))
stamp(2)
if SSET == "ln":
    stamp(0); P.wait([("x", 15)]); stamp(0)
code = cap(ln_rest)
if "l" in opt.get("cut", ""): code = [it for it in code if not (it.t or "").startswith(("v_pk_fma", "v_cvt", "v_lshlrev", "v_and"))]
k = O_("lnat", 40)
P.puts(code[:k])
Q0LN = O_("q0ln", 1)
side = [x + y for t in w1t + qt[:Q0LN] for x, y in t.dma()]
if LTG == 4:
    j = O_("ltpos", 24)
    side[j:j] = [[it] for it in cap(wq_rest) + cap(late_touch)]
interleave(code[k:], side, O_("lnev", 9))
if SSET == "ln":
    stamp(0); P.wait(["w1"]); stamp(0)
for r in (vNMEAN, vRSTD, vSC1): P.lds(f"ds_bpermute_b32 v{r}, v{G12+8}, v{r}", "stat")
xb = [It(f"ds_read_b128 {ar(4*ks,4)}, v{vWA} offset:{ks*4096}", "l", ("xb", ks)) for ks in range(16)]
P.puts(xb[:8])
stamp(2)
P.wait(["xw", "w1"]); e("s_barrier")
stamp()
if SSET == "ln": stamp(0)

g1 = lambda h: shared_ops(range(8 * h, 8 * h + 8), 0, lambda nb: vr(G12 + 4 * nb, 4), True, lambda i: 160 + (i % 16) * 4,
                          lambda ks: ar(4 * ks, 4), lambda ks: [("xb", ks)], "g1", 32 * h)
ops = g1(0) + g1(1)
gaps = {g: [] for g in range(64)}
add1 = lambda g, it: gaps[g].append(it)
for i in range(6, 64): gaps[i - 6] += ops[i][1]
for k in range(8): add1(2 + 3 * k, xb[8 + k])
if not Q0LN:
    for k, grp in enumerate(qt[0].dma()): place(add1, 1 + 3 * k, grp, 3 * k - 2)
for k, it in enumerate((cap(wq_rest) if XQ == 3 else []) + (cap(late_touch) if LTG == 3 else [])): add1(O_("ltat", 0) + 2 * k, it)
add1(31, It("s_barrier", "s"))
for k, grp in enumerate(qt[1].dma()): place(add1, 34 + 3 * k, grp, 31 + 3 * k)
ACC = lambda nh, nb, tb: ((nh * 4 + tb) * 4 + nb) * 4
op = gemm(qt, 0, 16, ACC, [], (64, 96), breg=vBX, opening="get")
for k, it in enumerate(op[4:12]): add1(40 + 2 * k, it)
for k, it in enumerate(op[:4] + op[12:]): add1(58 + k // 2, it)
for i in range(6): P.puts(ops[i][1])
P.run_gaps([m for m, _ in ops], gaps, next_need=[op[0].tag, op[4].tag])
stamp()



def q_side():
    x, t = G12, XR
    P.put(gate(0, 8))
    for i in range(16): e(f"v_mul_f32 v{x+i}, v{x+i}, v{vSC1}", need=["stat"])
    for i in range(16): e(f"v_fma_f32 v{t+i}, -v{x+i}, v{x+i}, -s{sC1}")
    for i in range(16): e(f"v_mul_f32 v{t+i}, v{t+i}, v{x+i}")
    for i in range(16): e(f"v_exp_f32 v{t+i}, v{t+i}", k="v")
    for i in range(16): e(f"v_add_f32 v{t+i}, 1.0, v{t+i}")
    for i in range(16): e(f"v_rcp_f32 v{t+i}, v{t+i}", k="v")
    for i in range(16): e(f"v_mul_f32 v{t+i}, v{t+i}, v{x+i}")
    for i in range(8): e(f"v_cvt_pk_bf16_f32 v{t+16+i}, v{t+2*i}, v{t+2*i+1}")
    e(f"v_lshrrev_b32 v{t}, 5, v{vBA}"); e(f"v_and_b32 v{t+1}, 128, v{vLANE}"); e(f"v_lshl_add_u32 v{t}, v{t}, 10, v{t+1}")
    e(f"v_mov_b32 v{t+1}, 0"); e(f"v_mov_b32 v{t+2}, -1"); e(f"v_mov_b32 v{t+3}, -1"); e(f"v_lshrrev_b32 v{t+4}, 1, v{vBA}")
    for nb in range(4): e(f"v_add_u32 v{vAS+nb}, 32768, v{vAS+nb}")
    e(f"v_mov_b32 v{t+5}, {hex(((127 - OSH) << 7) * 0x10001)}")
    e(f"v_and_b32 v{t+6}, 0xe0, v{vBA}"); e(f"v_cmp_eq_u32 vcc, 0, v{t+6}"); e(f"v_cndmask_b32 v{t+5}, 0, v{t+5}, vcc")
    e(f"v_bfe_i32 v{t+6}, v{vBA}, 4, 1"); e(f"v_and_b32 v{t+6}, 0xaaaaaaaa, v{t+6}"); e(f"v_or_b32 v{t+6}, 0x44444444, v{t+6}")
    if STAMP: e(f"v_accvgpr_write_b32 a253, v{t+6}")
    e(f"v_mov_b32 v{vIDX}, v{t+6}")
    for i in range(16): e(f"v_accvgpr_write_b32 a{LACC(0)+i}, 0")
    for i in range(4): e(f"v_accvgpr_write_b32 a{aONES+i}, v{t+5}")

    P.put(gate(0, O_("hgate", 13 * 32 + 23)))
    if LTG == 2: late_touch()
    for s in range(2):
        e(f"s_add_u32 s{sSF}, s{sHO}, {WS_H + s*PLANE}")
        P.vm(f"buffer_store_dwordx4 {vr(t+16+4*s,4)}, v{vTOK}, {srd(SWS)}, s{sSF} offen sc1", "hst")
    masked(255, f"buffer_store_dword v{t+1}, v{t}, {srd(SWS)}, s{sFL} offen sc1", "hst")
    masked(0xffff, f"buffer_store_dwordx2 {vr(t+2,2)}, v{t+4}, {srd(SWS)}, s{sSTP} offen sc1", "hst")


fill = cap(q_side)
pending = qt[2].dma()
gemm(qt, 0, 16, ACC, pending, (64, 96), breg=vBX, fill=fill, opening="done", extra={1: [It("s_barrier", "s")]}, dma0=2)
assert not fill and not pending
e("s_barrier")
stamp()


def q_pack():
    for tb in range(4):
        for s in range(4):
            b = ACC(s // 2, 2 * (s % 2), tb)
            for j in range(4): e(f"v_cvt_pk_bf16_f32 v{Q(tb,s)+j}, v{b+2*j}, v{b+2*j+1}")
        for sw in () if QPERM else ("v_permlane32_swap_b32", "v_permlane16_swap_b32"):
            for s in range(4):
                for j in range(2): e(f"{sw} v{Q(tb,s)+j}, v{Q(tb,s)+2+j}")


early = (("K", 0), ("K", 1)) if QPERM else (("K", 0), ("K", 1), ("V", 0))
interleave(cap(q_pack), [x + y for k in early for x, y in kv_dma(*k)], 8 if QPERM else 10)
P.wait(["hst", ("K", 0)]); e("s_barrier")
stamp()

for f in range(8): P.puts(frag_reads(-1, f))
gaps = {g: [] for g in range(64)}
for k, grp in enumerate(kv_dma("V", 0) if QPERM else kv_dma("K", 2)): place(add1, 2 + 4 * k, grp, -1)
P.run_gaps([m for m, _ in qk_mfmas(-1, zero=True)[:16]], gaps)
for f in range(8, 12): P.puts(frag_reads(-1, f))
for qb in range(4): e(f"v_max3_f32 v{NM(qb)}, v{S(0,0,qb)}, v{S(0,0,qb)+1}, v{S(0,0,qb)+2}")
for qb in range(4): e(f"v_max_f32 v{NM(qb)}, v{NM(qb)}, v{S(0,0,qb)+3}")
allreduce("v_max_f32", [NM(qb) for qb in range(4)], [NM(qb) + 1 for qb in range(4)])
e(f"s_mov_b32 s{sT}, {f2u(float(opt.get('pd', -25.4)))}")
for qb in range(4):
    for i in (1, 2, 3, 0): e(f"v_sub_f32 v{NM(qb)+i}, s{sT}, v{NM(qb)}")


def first_half(shift, gates):
    for kb in range(2):
        P.put(gate(0, gates[kb]))
        for qb in range(4):
            b = S(0, kb, qb)
            if shift and not kb:
                for j in range(4): e(f"v_add_f32 v{b+j}, v{b+j}, v{NM(qb)}")
            for j in range(4): e(f"v_exp_f32 v{b+j}, v{b+j}")
        for qb in range(4):
            b = S(0, kb, qb)
            for j in range(2): e(f"v_cvt_pk_bf16_f32 v{PR(0,0,qb)+2*kb+j}, v{b+2*j}, v{b+2*j+1}")


gaps = {g: [] for g in range(64)}
for f in range(12, 16): gaps[16 + (f - 12)] += frag_reads(-1, f)
add1(30, It(None, "s", need=[("K", 1)])); add1(31, It("s_barrier", "s"))
for f in range(4):
    gaps[32 + f] += frag_reads(0, f); issued.add((0, f))
if QPERM:
    for k, grp in enumerate(kv_dma("K", 2) + kv_dma("V", 1) + kv_dma("K", 3)): place(add1, 2 + 4 * k, grp, 4 * k - 2)
else:
    for k, grp in enumerate(kv_dma("V", 1) + kv_dma("K", 3)): place(add1, 3 + 6 * k, grp, 6 * k - 3)
fill = cap(first_half, True, (0, 20))
P.run_gaps([m for m, _ in qk_mfmas(-1)[16:]], gaps, fill)
P.drain(fill)
e(f"v_mov_b32 v{T}, 1"); e(f"s_lshl_b32 s{sSF}, s{sM}, 3")
e(f"s_cmp_lg_u32 s{sW}, 0"); e("s_cbranch_scc1 L_noarr"); e("s_mov_b64 exec, 1")
e(f"buffer_atomic_add v{T}, off, {srd(SDBG)}, s{sSF} sc1"); e("s_mov_b64 exec, -1")
lab("L_noarr")
P.wait([("K", 2), ("V", 0)] + [("F", 0, f) for f in range(4)]); e("s_barrier")
stamp()

p_h = flag_poll("h", SDBG, 0, 8)
p_x = flag_poll("x1", SWS, f"s{sF0}", 1)
p_st = Poll("st", [f"buffer_load_dwordx2 {vr(T+2*j,2)}, v{vPA}, {srd(SWS)}, s{(sSTC, sSTF)[j//2]} offen offset:{128*(j%2)} sc1"
                   for j in range(4)],
            [f"v_max3_u32 v{T+8}, v{T}, v{T+1}, v{T+2}", f"v_max3_u32 v{T+8}, v{T+8}, v{T+3}, v{T+4}",
             f"v_max3_u32 v{T+8}, v{T+8}, v{T+5}, v{T+6}", f"v_max_u32 v{T+8}, v{T+8}, v{T+7}",
             f"v_cmp_eq_u32 vcc, -1, v{T+8}"])
p_ph, p_s0, p_s1 = (flag_poll(n, SWS, f"s{r}", 1) for n, r in (("ph", sF1), ("s0", sF2), ("s1", sF3)))


pieces = [(nh, tb, s) for nh in range(2) for tb in range(4) for s in range(2)]


def x_offset(d, bits=11):
    e(f"v_bfe_u32 v{d}, v{vTOK}, 4, {bits}"); e(f"v_lshlrev_b32 v{d}, 10, v{d}")
    e(f"v_bfe_u32 v{d+1}, v{vBA}, 8, 2"); e(f"v_lshl_add_u32 v{d}, v{d+1}, 3, v{d}")


def paced(t, g, step, fns):
    for k, fn in enumerate(fns):
        p = g + k * step
        P.put(gate(t + p // NIT, p % NIT)); fn()


def h_loads(half, t, g):
    e(f"v_bfe_u32 v{T}, v{vTOK}, 4, 11")
    for k, d in enumerate(((-1, 1), (-2, 2))[half]):
        e(f"v_add_u32 v{T+1}, {d}, v{T}"); e(f"v_cmp_gt_u32 vcc, 0x800, v{T+1}")
        e(f"v_add_u32 v{T+1}, {16*d}, v{vTOK}"); e(f"v_mov_b32 v{T+2+k}, 0x7f000000")
        e(f"v_cndmask_b32 v{T+2+k}, v{T+2+k}, v{T+1}, vcc")

    def one(ks):
        e(f"s_mov_b32 s{sSF}, {WS_H + ks*PLANE}")
        P.vm(f"buffer_load_dwordx4 {ar(HB(ks),4)}, v{T + 2 + (ks%8)//4}, {srd(SWS)}, s{sSF} offen sc1", ("h", ks))
    paced(t, g, O_("hstep", 18), [lambda ks=ks: one(ks) for ks in range(8 * half, 8 * half + 8)])


def acc_offset():
    P.lds(f"ds_read_b64_tr_b16 {vr(T+4,2)}, v{VA(0)}", "v0")
    P.put(gate(0, 9))
    for j in range(2):
        e(f"v_lshlrev_b32 v{T+2*j}, 17, v{T+4+j}", need=["v0"]); e(f"v_lshlrev_b32 v{T+2*j+1}, 1, v{T+4+j}")
    for r in (8, 4, 2, 1):
        for j in range(4): e(f"v_max_u32_dpp v{T+j}, v{T+j}, v{T+j} row_ror:{r} row_mask:0xf bank_mask:0xf")
    e(f"v_min3_u32 v{T}, v{T}, v{T+1}, v{T+2}"); e(f"v_min_u32 v{T}, v{T}, v{T+3}")
    allreduce("v_min_u32", [T], [T + 1], k="v")
    e(f"v_lshrrev_b32 v{T}, 24, v{T}"); e(f"v_lshlrev_b32 v{T}, 23, v{T}"); e(f"v_mul_f32 v{T}, {f2u(1.5 * 2.0**OB)}, v{T}")
    for i in range(4): e(f"v_accvgpr_write_b32 a{GA(0)+i}, v{T}")
    e(f"v_readfirstlane_b32 s{sOB}, v{T}")


def side1():
    if SLIM:
        code_touch(); P.vm(f"buffer_load_dword a255, v{vT1}, {srd(SW2)}, 0 offen")
    P.put(gate(0, 64))
    x_offset(T + 5); e(f"s_lshl_b32 s{sSF}, s{sG}, 7")
    for nb in range(4):
        P.vm(f"buffer_load_dwordx2 {vr(T+6+2*nb,2)}, v{T+5}, {srd(SX)}, s{sSF} offen offset:{nb*32}", "xs")
    e(f"v_lshrrev_b32 v{T}, 4, v{vBA}"); e(f"v_min_u32 v{T}, 2, v{T}"); e(f"v_add_u32 v{T}, s{sM}, v{T}")
    e(f"v_add_u32 v{T}, -1, v{T}"); e(f"v_med3_i32 v{T}, v{T}, 0, 31"); e(f"v_lshlrev_b32 v{vPA}, 3, v{T}")
    if O_("kvt1", 0):
        touch_off(T, (T0 - 5) * 128, 1, 128, [(sG, 0), 5 * 16384], T + 1)
        P.vm(f"buffer_load_dword a255, v{T}, {srd(SK)}, 0 offen"); P.vm(f"buffer_load_dword a255, v{T}, {srd(SV)}, 0 offen")
    P.put(gate(2, 0))
    p_h.issue()
    for i in range(8):
        d = T + 2 * (i % 2)
        e(f"v_lshlrev_b32 v{d}, 16, v{T+6+i}", need=["xs"]); e(f"v_and_b32 v{d+1}, 0xffff0000, v{T+6+i}")
        for h in range(2): e(f"v_fma_f32 v{d+h}, v{d+h}, v{vRSTD}, v{vNMEAN}")
        for h in range(2): e(f"v_accvgpr_write_b32 a{aG2+2*i+h}, v{d+h}")
    P.put(gate(3, 0))
    p_h.check(); h_loads(0, 3, 30)
    P.put(gate(6, 0))
    h_loads(1, 6, 24)
    sum_terms(sT, (sW, 128), (sW3B, 1)); dma_voff(vDW2, 3584, False, f"s{sT}", T)
    P.put(gate(8, NIT + 28))
    m, q = vRSTD, vNMEAN
    for i in range(16): e(f"v_accvgpr_read_b32 v{T+i}, a{aG2+i}")
    e(f"v_add_f32 v{m}, v{T}, v{T+1}"); e(f"v_mul_f32 v{q}, v{T}, v{T}")
    for i in range(1, 16):
        e(f"v_fmac_f32 v{q}, v{T+i}, v{T+i}")
        if i > 1: e(f"v_add_f32 v{m}, v{m}, v{T+i}")
    allreduce("v_add_f32", [m, q], [T, T + 1], k="v")
    e(f"v_lshrrev_b32 v{T}, 1, v{vBA}")
    masked(0xffff, f"buffer_store_dwordx2 {vr(m,2)}, v{T}, {srd(SWS)}, s{sSTP} offen sc1")
    code_touch()
    e(f"v_and_b32 v{T}, 0xf0, v{vBA}"); e(f"v_lshrrev_b32 v{T}, 1, v{T}"); e(f"v_and_b32 v{T+1}, 0x300, v{vBA}")
    e(f"v_add_u32 v{vPA}, v{T}, v{T+1}")
    P.put(gate(11, 70))
    p_st.issue()
    P.put(gate(12, 60))
    p_st.check()
    u, r = T + 15, T + 16
    e(f"v_add_f32 v{u}, v{T}, v{T+2}"); e(f"v_add_f32 v{r}, v{T+1}, v{T+3}")
    e(f"v_add_f32 v{q}, v{T+4}, v{T+6}"); e(f"v_add_f32 v{m}, v{T+5}, v{T+7}")
    allreduce("v_add_f32", [u, r, q, m], [T, T + 1, T + 2, T + 3], k="v")
    for x in (u, r, q, m): e(f"v_mul_f32 v{x}, {f2u(1/512)}, v{x}")
    for x, y in ((u, r), (q, m)):
        e(f"v_fma_f32 v{y}, -v{x}, v{x}, v{y}"); e(f"v_max_f32 v{y}, 0, v{y}")
        e(f"v_mul_f32 v{y}, {f2u(GA_**-2)}, v{y}"); e(f"v_add_f32 v{y}, {f2u(EPS)}, v{y}")
    e(f"v_rsq_f32 v{r}, v{r}", k="v"); e(f"v_sqrt_f32 v{m}, v{m}", k="v")
    for i in range(15): e(f"v_accvgpr_read_b32 v{T+i}, a{aG2+i}")
    e(f"v_mul_f32 v{u}, v{u}, v{r}")
    for i in range(15): e(f"v_fma_f32 v{T+i}, v{T+i}, v{r}, -v{u}")
    e(f"v_cvt_pk_bf16_f32 v{T}, v{T}, v{T+1}"); e(f"v_cvt_pk_bf16_f32 v{T+1}, v{T+2}, v{T+3}")
    e(f"v_accvgpr_read_b32 v{T+3}, a{aG2+15}"); e(f"v_fma_f32 v{u}, v{T+3}, v{r}, -v{u}")
    for i in range(2, 8): e(f"v_cvt_pk_bf16_f32 v{T+i}, v{T+2*i}, v{T+2*i+1}")
    for s in range(2):
        e(f"s_add_u32 s{sSF}, s{sHO}, {WS_X1 + s*PLANE}")
        P.vm(f"buffer_store_dwordx4 {vr(T+4*s,4)}, v{vTOK}, {srd(SWS)}, s{sSF} offen sc1", "x1st")
    e(f"v_bfe_u32 v{vPA}, v{vBA}, 4, 3"); e(f"v_lshlrev_b32 v{vPA}, 2, v{vPA}")
    P.put(gate(15, 40))
    set_flags(0, 1, ["x1st"])
    touch_off(T, 512, 4, 3584, [(sW3B, 1)], T + 1)
    P.vm(f"buffer_load_dword a255, v{T}, {srd(SW3)}, 0 offen")
    touch_off(T, 2048, 1, 128, [(sW3B, 512)], T + 1)
    P.vm(f"buffer_load_dword a255, v{T}, {srd(SW4)}, 0 offen")
    sum_terms(sT, (sW, 256)); dma_voff(vDW4, 1024, False, f"s{sT}", T)
    sum_terms(sT, (sG, 1 << 19)); e(f"v_add_u32 v{vDWO}, s{sT}, v{vDW4}")
    sum_terms(sT, (sW3B, 512)); e(f"v_add_u32 v{vDW4}, s{sT}, v{vDW4}")
    e(f"s_and_b32 s{sT}, s{sG}, 1"); e(f"s_sub_u32 s{sT}, 4, s{sT}"); e(f"s_mul_i32 s{sT}, s{sT}, s{sW}")
    for nb in range(4):
        e(f"s_and_b32 s{sT+1}, s{sT}, 3"); e(f"s_lshl_b32 s{sT+1}, s{sT+1}, 5"); e(f"v_xor_b32 v{vAA2+nb}, s{sT+1}, v{vAS}")
        e(f"s_lshr_b32 s{sT+1}, s{sT}, 2"); e(f"s_lshl_b32 s{sT+1}, s{sT+1}, 13"); e(f"v_add_u32 v{vAA2+nb}, s{sT+1}, v{vAA2+nb}")
        e(f"v_add_u32 v{vAA+nb}, 0xffff0000, v{vAA2+nb}"); e(f"s_add_u32 s{sT}, s{sT}, 1")
    P.put(gate(17, 60))
    p_x.issue(); code_touch()
    P.put(gate(18, 60))
    p_x.check()
    if XREG:
        def one(ks):
            e(f"s_mov_b32 s{sSF}, {WS_X1 + ks*PLANE}")
            P.vm(f"buffer_load_dwordx4 {ar(aG2 + 4*(ks-4),4)}, v{vTOK}, {srd(SWS)}, s{sSF} offen sc1", "xnl")
        paced(18, 70, 14, [lambda ks=ks: one(ks) for ks in range(4, 8)])
    P.put(gate(19, 0))
    if O_("kvt", 1):
        touch_off(T + 8, (32 - T0) * 128, 1, 128, [(sG, 0), T0 * 16384], T + 9)
        P.vm(f"buffer_load_dword a255, v{T+8}, {srd(SK)}, 0 offen"); P.vm(f"buffer_load_dword a255, v{T+8}, {srd(SV)}, 0 offen")
    if XREG:
        e(f"v_add_u32 v{T+9}, s{sW1K}, v{vBA}")
        paced(T0 - 1, 34, 6, [lambda ks=ks: P.lds(f"ds_write_b128 v{T+9}, {ar(aG2 + 4*(ks-4),4)} offset:{ks*4096}", ("xn", 1), need=["xnl"])
                              for ks in range(4, 8)])


def x1n_dma(j):
    return [([It(f"s_add_u32 m0, s{sW1K}, {ks*4096}", "s"), It(f"s_mov_b32 s{sSO}, {WS_X1 + ks*PLANE}", "s")],
             [It(f"buffer_load_dwordx4 v{vTOK}, {srd(SWS)}, s{sSO} offen sc1 lds", "g", ("xn", j), need=["x1"])])
            for ks in range(4 * j, 4 * j + 4)]


def run_tiles(t0, t1, fill, over, more, endw, ins, must, xtra={}):
    end = T0 - 1 if t0 < T0 else 31
    for t in range(t0, t1):
        groups = (kv_dma("K", t + 4) if t + 4 <= end else []) + (kv_dma("V", t + 3) if t + 3 <= end else [])
        groups = over.get(t, groups) + more.get(t, [])
        attn_iter(t, groups, fill, endw.get(t, ()), ins=ins.get(t), extra=xtra.get(t))
        head = fill[0].at if fill else (99, 0)
        if O_("showfill", 0): print(t, len(fill), head, file=sys.stderr)
        if t in must: assert head and head[0] >= must[t], (t, head, len(fill))


g2 = lambda h: shared_ops(range(8 * h, 8 * h + 8), 8 * h, lambda nb: ar(aG2 + 4 * nb, 4), False, GA,
                          lambda ks: ar(HB(ks), 4), lambda ks: [("h", ks)], f"g2{h}")
op = gemm(mt, 0, 8, ACC, [], (160, 212), opening="get")
opx = {40 + 2 * k: [it] for k, it in enumerate(op[4:12])}
opx.update({58 + k: [it] for k, it in enumerate(op[:4] + op[12:])})
xtra = {T0 - 1: opx}
if OB:
    its = [it for it in cap(acc_offset) if it.at is None]
    xtra[0] = {1: its[:1]}
    for k, it in enumerate(its[1:]): xtra[0].setdefault(11 + (k * 50) // len(its), []).append(it)
fill = cap(side1)
kv = lambda *a: [g for k in a for g in kv_dma(k[0], int(k[1:]))]
run_tiles(0, T0, fill, {0: kv("V2", "K4", "V3")},
          {O_("w2it", 2): w2t[0].dma() if SLIM else [], 6: w2t[1].dma(), 18: mt[0].dma(), 19: x1n_dma(2) + x1n_dma(3),
           20: x1n_dma(0) + mt[1].dma(), 21: [] if XREG else x1n_dma(1)},
          {4: [("w2", 0)], 7: [("w2", 1)], 20: [("xn", 3), mt[0].tag]}, {5: g2(0), 8: g2(1)}, {4: 6, 7: 8, 17: 18, 18: 19, 21: 99}, xtra)
stamp()

class Extra:
    def __init__(self, groups): self.groups = groups
    def dma(self): return self.groups


def ph_pack(ks):
    for k in ks:
        pack(ACC, *pieces[k])
        for j in range(4): e(f"v_accvgpr_write_b32 a{PHA(k)+j}, v{ACC(pieces[k][0], 2*pieces[k][2], pieces[k][1])+j}")


def own_x1n(per):
    return {4 * per + 2: [It(f"s_lshl2_add_u32 s{sT}, s{sKS}, s{sTB}", "s")],
            4 * per + 6: [It(f"s_lshl_b32 s{sT}, s{sT}, 10", "s"), It(f"v_add_u32 v{T+9}, s{sT}, v{vBA}", "v")],
            7 * per + 3: [It(f"ds_read_b128 {ar(aXN,4)}, v{T+9}", "l", "xnr")],
            7 * per + 7: [It(f"ds_read_b128 {ar(aXN+4,4)}, v{T+9} offset:8192", "l", "xnr")]}


def mlp_tail(act, pending, nstep, bf):
    P.wait(["xnr"]); e("s_barrier")
    stamp()
    interleave(cap(act), [x + y for x, y in pending], 16)
    gemm_pre(mt, 8)
    P.wait(["hw"]); e("s_barrier")
    stamp()
    g = 32 * (nstep - 2)
    fill = [gate(0, g + 20)] + cap(ph_pack, (0, 2, 4, 6)) + [gate(0, g + 36)] + cap(ph_pack, (1, 3, 5, 7))
    pending = []
    gemm(mt[:8 + nstep] + [Extra(kv_dma("K", T0) + kv_dma("K", T0 + 1))], 8, nstep, ACC, pending, bf, fill=fill)
    assert not pending
    P.wait([("K", T0 + 1)]); e("s_barrier")
    stamp()
    for f in range(8): P.puts(frag_reads(T0 - 1, f))
    P.drain(fill)


def mlp_even():
    P.cmt("==== channel MLP, even groups: 256 hidden columns, one private weight tile per wave and step")
    extra = own_x1n(32)
    extra.update({1: [It("s_barrier", "s")], 2 * 32 + 26: [It(None, "s", need=[("xn", 0), ("xn", 1)])],
                  2 * 32 + 27: [It("s_barrier", "s")],
                  7 * 32 + 10: [It(f"s_lshl_b32 s{sT}, s{sW}, 13", "s"), It(f"v_add_u32 v{T+8}, s{sT}, v{vBA}", "v")]})
    pending = mt[2].dma()
    gemm(mt, 0, 8, ACC, pending, (160, 212), extra=extra, opening="done", dma0=2)

    def act():
        for tb in range(4):
            gelu(16 * tb, 16, 64 + 16 * tb, lambda i: 16 * tb + i, first=tb == 0)
            for s in range(2):
                P.lds(f"ds_write_b128 v{T+8}, {vr(16*tb + 4*s,4)} offset:{s*4096 + tb*1024}", "hw")
    mlp_tail(act, pending, 8, (160, 212))


def mlp_odd():
    P.cmt("==== channel MLP, odd groups: 192 hidden columns, three weight tiles per step shared by the four waves")
    AC3 = lambda nb, tb: (tb * 3 + nb) * 4
    af = lambda s, nb, ks: AF(2 * (nb + (nb == 2) * (s & 1)) + ks)
    bf = lambda s, ks, tb: ar((160, 212)[s & 1] + (ks * 4 + tb) * 4, 4)

    def a3(s, nb):
        t = mt[s]
        base, off = (vAA2, 0) if t.slot == 2 else (vAA, t.slot * 32768)
        return [It(f"ds_read_b64_tr_b16 {ar(af(s,nb,ks)+2*h,2)}, v{base+nb} offset:{off + ks*4096 + h*2048}", "l",
                   ("A", t.tag, nb)) for ks in range(2) for h in range(2)]

    def stage(s):
        t = mt[s]
        if s >= 8: return t.dma()
        return [(([It(f"s_add_u32 m0, s{sRS}, {t.slot*32768 + c*8192}", "s")] if i == 0 else []) +
                 [It(f"s_mov_b32 s{sSO}, {t.base + i*8*3584 + c*128 - i*1024}", "s")],
                 [It(f"buffer_load_dwordx4 v{vDW2}, {srd(SW3)}, s{sSO} offen offset:{i*1024} lds", "g", t.tag)])
                for c in range(3) for i in range(2)]

    REL, RAW, DS = O_("rel", 13), O_("raw", 13), O_("ds", 3)
    DG = {(REL + 1 + DS * k) % 24 for k in range(6)}
    ms, gaps = [], own_x1n(24)
    add = lambda g, it: gaps.setdefault(g, []).append(it)
    for s in range(8):
        t, g0 = mt[s], 24 * s
        for nb in range(3):
            for tb in range(4):
                for n, ks in enumerate(range(2) if not tb & 1 else range(1, -1, -1)):
                    d = vr(AC3(nb, tb), 4)
                    ms.append(It(f"{MF} {d}, {ar(af(s,nb,ks),4)}, {bf(s,ks,tb)}, {d if s or n else 0}", "m",
                                 need=[("A", t.tag, nb), ("B", mt[0].tag, s, tb)]))
        if s == 0:
            for k, it in enumerate(a3(0, 1)[2:] + a3(0, 2)): add((0, 0, 1, 1, 2, 2)[k], it)
        add(g0 + REL - 1, It(None, "s", need=[("A", t.tag, nb) for nb in range(3)]))
        add(g0 + REL, It("s_barrier", "s"))
        if s < 7:
            u = mt[s + 1]
            add(g0 + RAW - 1, It(None, "s", need=[u.tag] + ([("xn", 0), ("xn", 1)] if s == 2 else [])))
            if RAW != REL: add(g0 + RAW, It("s_barrier", "s"))
            c = [g for g in range(RAW + 1, 24) if g not in DG]
            rd = a3(s + 1, 0) + a3(s + 1, 2) + a3(s + 1, 1)
            for k, it in enumerate(rd): add(g0 + max(c[k * len(c) // 12], 16 if k >= 8 else 0), it)
            rd = [It(f"ds_read_b128 {bf(s+1,ks,tb)}, v{vBA} offset:{u.kp*8192 + ks*4096 + tb*1024}", "l",
                     ("B", mt[0].tag, s + 1, tb)) for tb in range(4) for ks in range(2)]
            c = [g for g in range(0 if s else 4, RAW + 1) if g not in DG]
            for k, it in enumerate(rd): add(g0 + c[k * len(c) // 8], it)
        add(g0 + 19, hop())
        if O_("jit2", 0): add(g0 + 4, jitter_item())
        if SSET == "odd": add(g0, stamp_item())
    if SSET == "odd": add(len(ms) - 1, stamp_item())
    add(0, It(f"s_mul_i32 s{sT}, s{sW}, {16*3584 - 128}", "s")); add(0, It(f"v_add_u32 v{vDW2}, s{sT}, v{vDW2}", "v"))
    add(1, It("s_barrier", "s"))
    pending, prev = stage(2), 1
    for g in range(3, len(ms)):
        if g % 24 == REL + 1: pending += stage(g // 24 + 3)
        if pending and g - prev >= 2 and (g % 24 in DG or len(pending) > 6 or g < REL):
            place(add, g, pending.pop(0), prev); prev = g
    HW = (T + 8, T + 9, T + 15)

    def addr():
        P.put(gate(0, 7 * 24 + 12))
        e(f"s_mul_i32 s{sT}, s{sW}, 3")
        for nb in range(3):
            e(f"s_lshr_b32 s{sT+1}, s{sT}, 1"); e(f"s_lshl_b32 s{sT+1}, s{sT+1}, 12"); e(f"s_and_b32 s{sT+2}, s{sT}, 1")
            e(f"s_lshl3_add_u32 s{sT+1}, s{sT+2}, s{sT+1}"); e(f"v_add_u32 v{HW[nb]}, s{sT+1}, v{vBA}"); e(f"s_add_u32 s{sT}, s{sT}, 1")
        e(f"s_sub_u32 s{sT}, s{sRING}, {RING + 65536}")
        for nb in range(4):
            e(f"v_add_u32 v{vAA+nb}, s{sT}, v{vAS+nb}"); e(f"v_add_u32 v{vAA2+nb}, 0x10000, v{vAA+nb}")
    fill = cap(addr)
    P.run_gaps(ms, gaps, fill, gmin=4)
    P.drain(fill)

    def act():
        for tb in range(4):
            gelu(12 * tb, 12, 64 + 12 * tb, lambda i: 12 * tb + i, first=tb == 0)
            for nb in range(3):
                P.lds(f"ds_write_b64 v{HW[nb]}, {vr(12*tb + 2*nb,2)} offset:{tb*1024}", "hw")
    mlp_tail(act, pending, 6, (212, 160))


e(f"s_bitcmp1_b32 s{sG}, 0"); e("s_cbranch_scc1 L_odd")
lab("L_even")
state = (list(P.lq), list(P.vq), set(P.used), set(P.ever), nstamp[0])
mlp_even()
after = (list(P.lq), list(P.vq), set(P.used), set(P.ever), nstamp[0])
main, P.L = P.L, []
P.lq, P.vq, P.used, P.ever, nstamp[0] = state
mlp_odd()
e("s_branch L_join")
assert (P.lq, P.vq) == after[:2] and (SSET or nstamp[0] == after[4]), (P.lq, P.vq, after[:2])
odd_text, P.L = P.L, main
P.lq, P.vq, P.used, P.ever, nstamp[0] = after
lab("L_join")
ph_pack(range(8, 10))
gaps = {g: [] for g in range(64)}
for f in range(8, 16): gaps[16 * (f // 4 - 1) + f % 4] += frag_reads(T0 - 1, f)
for f in range(4):
    gaps[48 + f] += frag_reads(T0, f); issued.add((T0, f))
for k, grp in enumerate(kv_dma("V", T0) + kv_dma("K", T0 + 2)): place(add1, 2 + 4 * k, grp, 4 * k - 2)
fill = cap(ph_pack, range(10, 14)) + cap(first_half, False, (20, 36)) + cap(ph_pack, range(14, 16))
P.run_gaps([m for m, _ in qk_mfmas(T0 - 1)], gaps, fill)
P.drain(fill)
P.wait([("K", T0 + 2), ("V", T0)] + [("F", T0, f) for f in range(4)]); e("s_barrier")
stamp()


XF = [244, 245, 246, 247, 248, 249, T + 10, T + 11]


def side2():
    paced(T0, 60, O_("sstep", 22), [lambda k=k: store_piece(ar(PHA(k), 4), WS_PH, *pieces[k], "phs") for k in range(16)])
    touch_off(T + 8, 4096, 1, 128, [(sG, 1 << 19)], T + 9)
    P.vm(f"buffer_load_dword a255, v{T+8}, {srd(SWO)}, 0 offen")
    code_touch()
    P.put(gate(25, O_("phf", 131))); set_flags(1, 2, ["phs"])
    x_offset(T + 8, 4)
    paced(26, 50, 20, [lambda i=i: P.vm(f"buffer_load_dwordx2 {vr(XF[2*i],2)}, v{T+8}, {srd(SX)}, s{sXF} offen "
                                        f"offset:{(i//2)*128 + (i%2)*32}", "xf") for i in range(4)])
    o_addr()
    PH0 = O_("ph0", 40)
    P.put(gate(27 + PH0 // NIT, PH0 % NIT)); p_ph.issue()
    paced(27, PH0 + 110, 1, [p_ph.check])
    paced(27, PH0 + 120, O_("lstep", 22), [lambda k=k: load_piece(WS_PH, ar(PHA(k), 4), k // 2, k % 2, "phl") for k in range(16)])


def o_addr():
    if not PA:
        e(f"v_add_u32 v{T+8}, s{sW4K}, v{vBA}")
        return
    x, y = vDW2, vDW4
    for d, (ro, rb), (co, cb) in ((T + 8, (4, 4), (8, 2)), (T + 9, (6, 4), (4, 2))):
        e(f"v_bfe_u32 v{x}, v{vBA}, {ro}, {rb}"); e(f"v_bfe_u32 v{d}, v{vBA}, {co}, {cb}")
        e(f"v_and_b32 v{y}, 1, v{x}"); e(f"v_xor_b32 v{d}, v{d}, v{y}")
        e(f"v_lshrrev_b32 v{y}, 3, v{x}"); e(f"v_lshlrev_b32 v{y}, 1, v{y}"); e(f"v_xor_b32 v{d}, v{d}, v{y}")
        e(f"v_and_b32 v{y}, 6, v{x}"); e(f"v_lshl_add_u32 v{d}, v{y}, 1, v{d}")
        e(f"v_lshlrev_b32 v{d}, 3, v{d}"); e(f"v_lshl_add_u32 v{d}, v{x}, 7, v{d}")
    e(f"v_add_u32 v{T+8}, s{sW4K}, v{T+8}")


fill = cap(side2)
run_tiles(T0, 31, fill, {T0: kv(f"V{T0+1}", f"K{T0+3}", f"K{T0+4}", f"V{T0+2}"), T0 + 1: kv(f"K{T0+5}", f"V{T0+3}", f"V{T0+4}")}, {O_("wo0", 29): ot[0].dma(), 30: ot[1].dma()}, {}, {}, {30: 99})


vOW, vOR = 208, 212


def o_stage(k, st):
    s, qb = k // 4, k % 4
    b = 8 * (k % 8)
    if "o" in opt.get("cut", "") and k >= 8 and st < 3: return
    if "O" in opt.get("cut", "") and k >= 2: return
    if st == 0:
        for h in range(2):
            for j in range(4): e(f"v_accvgpr_read_b32 v{b+4*h+j}, a{O(2*s+h,qb)+j}")
    elif st == 1:
        for j in range(0, 8, 2):
            e(f"v_pk_fma_f32 {vr(b+j,2)}, {vr(b+j,2)}, {vr(NM(qb) + j%4,2)}, {vr(64 + 4*qb + j%4,2)} neg_lo:[0,0,1] neg_hi:[0,0,1]" if OB else
              f"v_pk_mul_f32 {vr(b+j,2)}, {vr(b+j,2)}, {vr(NM(qb) + j%4,2)}" if PA else
              f"v_pk_mul_f32 {vr(b+j,2)}, {vr(b+j,2)}, {vr(NM(qb),2)} op_sel_hi:[1,0]")
    elif st == 2:
        for j in range(4): e(f"v_cvt_pk_bf16_f32 v{b+j}, v{b+2*j}, v{b+2*j+1}")
    elif PA:
        P.lds(f"ds_write2st64_b64 v{vOW+qb}, {vr(b,2)}, {vr(b+2,2)} offset0:{32*s} offset1:{32*s+4}", "ow")
    else:
        P.lds(f"ds_write_b128 v{T+8}, {vr(b,4)} offset:{s*16384 + qb*1024}", "ow")


vL = 40


def row_sums():
    for qb in range(4):
        for j in range(2): e(f"v_accvgpr_read_b32 v{vL+2*qb+j}, a{LACC(qb)+j}")
    for qb in range(4): e(f"v_add_f32 v{vL+2*qb}, v{vL+2*qb}, v{vL+2*qb+1}")


def row_inverses():
    e(f"v_bfe_u32 v{vL+8}, v{vBA}, 8, 2"); e(f"v_lshlrev_b32 v{vL+8}, 4, v{vL+8}")
    for qb in range(4): e(f"v_rcp_f32 v{vL+2*qb}, v{vL+2*qb}")
    for qb in range(4):
        for r in range(4): P.lds(f"ds_bpermute_b32 v{NM(qb)+r}, v{vL+8}, v{vL+2*qb} offset:{4*r}", "rinv")


def vote():
    v = 56
    P.put(gate(31, 33))
    e(f"s_lshl_b32 s{sT+1}, s{sW}, 2"); e(f"s_add_u32 s{sT+1}, s{sT+1}, {RING + 32768}")
    e(f"v_mov_b32 v{v+4}, {f2u(-1.0 if FORCE_REDO else 2.0**64)}"); e(f"v_mov_b32 v{v+5}, s{sT+1}"); e(f"v_mov_b32 v{v+6}, {RING + 32768}")
    P.put(gate(31, 38))
    row_sums()
    e(f"v_maximum3_f32 v{v}, v{vL}, v{vL+2}, v{vL+4}"); e(f"v_maximum3_f32 v{v}, v{v}, v{vL+6}, v{vL+6}")
    e(f"v_cmp_nle_f32 vcc, v{v}, v{v+4}")
    e(f"s_cmp_lg_u64 vcc, 0\n    s_cselect_b32 s{sT}, 1, 0", k="v")
    e(f"v_mov_b32 v{v}, s{sT}")
    P.lds(f"ds_write_b32 v{v+5}, v{v}", "vote")
    inv = P.rec; k = len(inv) + 6
    row_inverses()
    inv[k:k] = [It(None, "s", need=["vote"]), It("s_barrier", "s"), It(f"ds_read_b128 {vr(v,4)}, v{v+6}", "l", "votes")]
    e(f"v_or3_b32 v{v}, v{v}, v{v+1}, v{v+2}", need=["votes"]); e(f"v_or_b32 v{v}, v{v}, v{v+3}")
    e(f"v_readfirstlane_b32 s{sT}, v{v}")


fill = cap(vote)
attn_iter(31, [], fill)
P.drain(fill)
e(f"s_cmp_lg_u32 s{sT}, 0"); e("s_cbranch_scc1 L_redo")
lab("L_att_done")
stamp()

if PA:
    for qb in range(4):
        e(f"v_xor_b32 v{vOW+qb}, {32*qb}, v{T+8}"); e(f"v_xor_b32 v{vOR+qb}, {32*qb}, v{T+9}")
o_stage(0, 0)
P.wait(["rinv"])
if OB:
    for i in range(16): e(f"v_mul_f32 v{64+i}, s{sOB}, v{vR+i}")
lag = [int(x) for x in opt.get("olag", "0,1,2,3").split(",")]
WG = O_("owg", 1)
for k in range(16 + lag[3] + WG):
    for st in range(3):
        if 0 <= k - lag[st] < 16 and k + st: o_stage(k - lag[st], st)
    if (k - lag[3]) % WG == WG - 1:
        for j in range(k - lag[3] - WG + 1, k - lag[3] + 1):
            if 0 <= j < 16: o_stage(j, 3)
if SSET == "o": stamp(0)
gemm_pre(ot, 0)
P.wait(["ow"]); e("s_barrier")
if SSET == "o": stamp(0)
stamp()
OACC = lambda nh, nb, tb: 64 + ACC(nh, nb, tb)
PSR = lambda g, nh: nh * 32 + g * 4


def o_side():
    if OWN:
        for u in range(2): e(f"v_or_b32 v{vPO+u}, s{sPO[u]}, v{vBA}")
        sum_terms(sPX, (sG, 8192), (sPC, 1), WS_PS)
    P.put(gate(0, 32 * 8 + 4))
    for p in pieces[:8]: pack(OACC, *p)
    for p, g in zip(pieces, [int(x) for x in opt.get("s0g", "440,448,456,464,472,480,488,496").split(",")]):
        P.put(gate(0, g))
        store_piece(vr(OACC(0, 2 * p[2], p[1]), 4), WS_PS, *p, "s0s")
    if O_("f0k", 3) < 0:
        P.put(gate(0, O_("f0g", 500))); set_flags(2, 2, ["s0s"])


fill = cap(o_side)
pending = ot[2].dma()
gemm(ot, 0, 16, OACC, pending, (0, 32, 64, 96, (vr, 0), (vr, 32))[:O_("obs", 6)], fill=fill, breg=vOR if PA else vBA, btr=PA)
P.drain(fill)
stamp()
P0K = O_("p0k", -1)
for k, p in enumerate(pieces[8:]):
    pack(OACC, *p); store_piece(vr(OACC(1, 2 * p[2], p[1]), 4), WS_PS, *p, "s1s")
    if k == O_("f0k", 3): set_flags(2, 2, ["s0s"])
    if k == P0K: p_s0.issue()
vY, vS, vG, vX = 64, 80, 96, 112


def gate_values():
    for i in range(8): e(f"v_accvgpr_read_b32 v{vG+i}, a{aXN+i}")
    for i in range(8):
        e(f"v_lshlrev_b32 v{vY+2*i}, 16, v{vG+i}"); e(f"v_and_b32 v{vY+2*i+1}, 0xffff0000, v{vG+i}")
    for i in range(16): e(f"v_fma_f32 v{vY+i}, v{vY+i}, v{vRSTD}, v{vNMEAN}")
    for k in range(17):
        if k < 16:
            for j in range(4): e(f"v_accvgpr_read_b32 v{vG + 4*(k%2) + j}, a{PHA(k)+j}", need=[("phl", k // 2, k % 2)])
        if k: add_piece(vY + 8 * ((k - 1) % 2), vG + 4 * ((k - 1) % 2), False, ())
    for i in range(16): e(f"v_mul_f32 v{vG+i}, s{sNL2E}, v{vY+i}")
    for i in range(16): e(f"v_exp_f32 v{vG+i}, v{vG+i}")
    e(f"s_mov_b32 s{sT}, {f2u(GA_ * 2.0**OSH)}")
    for i in range(16): e(f"v_fma_f32 v{vG+i}, v{vG+i}, s{sT}, s{sT}")
    for i in range(16): e(f"v_rcp_f32 v{vG+i}, v{vG+i}")
    for i in range(0, 16, 2): e(f"v_pk_mul_f32 {vr(vG+i,2)}, {vr(vG+i,2)}, {vr(vY+i,2)}")
    for i in range(8):
        e(f"v_lshlrev_b32 v{vX+2*i}, 16, v{XF[i]}", need=["xf"]); e(f"v_and_b32 v{vX+2*i+1}, 0xffff0000, v{XF[i]}")
    e(f"v_bfe_u32 v200, v{vTOK}, 4, 4"); e("v_lshlrev_b32 v200, 10, v200"); e(f"v_bfe_u32 v201, v{vBA}, 8, 2")
    e("v_lshl_add_u32 v200, v201, 4, v200")


if OWN:
    e(f"v_add_u32 v216, s{sRING}, v{vBA}")
    for u in range(2):
        e(f"s_cmp_eq_u32 s{sPO[u]}, 0"); e(f"s_cbranch_scc1 L_away{u}")
        for nh, tb, s in pieces:
            if tb >> 1 == u: e(f"ds_write_b128 v216, {vr(OACC(nh,2*s,tb),4)} offset:{((tb & 1) + 2*s)*2048 + nh*1024}")
        lab(f"L_away{u}")
    e(f"s_lshr_b32 s{sT}, s{sG}, 1"); sum_terms(sT + 1, (sT, 8192), (sW, 2048), RING); e(f"v_add_u32 v216, s{sT+1}, v{vBA}")
    P.wait_all(vm=False); e("s_barrier")
    for nh in range(2): P.lds(f"ds_read_b128 {vr(192+4*nh,4)}, v216 offset:{nh*1024}", "own")
code = cap(gate_values)
if OWN:
    for nh in range(2): code[40:40] = cap(add_piece, vS + 8 * nh, 192 + 4 * nh, True, ["own"])
k0, k1 = O_("gs0", 232), O_("gs1", 400)
P.puts(code[:k0])
if P0K < 0: p_s0.issue()
P.puts(code[k0:k1])
set_flags(3, 2, ["s1s"])
stamp(2)
p_s0.check()
for g in range(OWN, 8): load_piece(WS_PS, vr(PSR(g, 0), 4), g, 0, "psl")
p_s1.issue()
P.puts(code[k1:])


def finish(nh):
    for g in range(OWN, 8): add_piece(vS + 8 * nh, PSR(g, nh), g == 0, [("psl", g, nh)])
    for i in range(8 * nh, 8 * nh + 8, 2): e(f"v_pk_fma_f32 {vr(vG+i,2)}, {vr(vG+i,2)}, {vr(vS+i,2)}, {vr(vX+i,2)}")
    d = 204 + 4 * nh
    for i in range(4): e(f"v_cvt_pk_bf16_f32 v{d+i}, v{vG+8*nh+2*i}, v{vG+8*nh+2*i+1}")
    for sw in ("v_permlane32_swap_b32", "v_permlane16_swap_b32"):
        for j in range(2): e(f"{sw} v{d+j}, v{d+2+j}")
    P.vm(f"buffer_store_dwordx4 {vr(d,4)}, v200, {srd(SOUT)}, s{sXF} offen offset:{nh*128}")


p_s1.check()
stamp()
for g in range(OWN, 8): load_piece(WS_PS, vr(PSR(g, 1), 4), g, 1, "psl")
finish(0)
finish(1)
if AMP:
    P.wait_all(); stamp()
    e(f"s_sub_u32 s{sST}, s{sST+2}, s{sST}")
    e(f"s_lshr_b32 s{sST}, s{sST}, 5" if AMP[3] else f"s_lshl_b32 s{sST}, s{sST}, {AMP[2]}")
    if "ampsel" in opt:
        e(f"s_lshr_b32 s{sT}, {opt['ampsel']}, s{sG}"); e(f"s_and_b32 s{sT}, s{sT}, 1"); e(f"s_mul_i32 s{sST}, s{sST}, s{sT}")
    e(f"s_memrealtime {sr(sST+2,2)}"); e("s_waitcnt lgkmcnt(0)")
    lab("L_amp")
    e(f"s_memrealtime {sr(sST+4,2)}"); e("s_waitcnt lgkmcnt(0)")
    e(f"s_sub_u32 s{sST+4}, s{sST+4}, s{sST+2}"); e(f"s_cmp_lt_u32 s{sST+4}, s{sST}"); e("s_cbranch_scc1 L_amp")
if STAMP:
    P.wait_all()
    stamp()
    e(f"s_lshl_b32 s{sT}, s2, 2"); e(f"s_add_u32 s{sT}, s{sT}, s{sW}"); e(f"s_lshl_b32 s{sT}, s{sT}, 8")
    e(f"s_add_u32 s{sT}, s{sT}, {WS_ST}"); e(f"v_lshrrev_b32 v0, 2, v{vBA}")
    P.vm(f"buffer_store_dword a254, v0, {srd(SWS)}, s{sT} offen")
e("s_endpgm")

lab("L_side")
NPP = O_("npp", 1)
for p in slow_paths:
    lab(f"L_slow_{p.name}")
    if NPP > 1 and p.name in ("s0", "s1"):
        regs = [f"v{216 + i}" for i in range(NPP)]
        ld = lambda i: e(p.loads[0].replace(f"v{vPOLL},", regs[i % NPP] + ","))
        for i in range(NPP - 1):
            ld(i); e(f"s_sleep {O_('pps', 5)}")
        lab(f"L_spin_{p.name}")
        for i in range(NPP):
            ld(i + NPP - 1); e(f"s_waitcnt vmcnt({NPP - 1})")
            e(p.tests[0].replace(f"v{vPOLL}", regs[i])); e(f"s_cbranch_vccz L_back_{p.name}")
        e(f"s_add_u32 s{sSPIN}, s{sSPIN}, 1"); e(f"s_cmp_gt_u32 s{sSPIN}, 0x200000")
        e(f"s_cbranch_scc0 L_spin_{p.name}"); e(f"s_branch L_back_{p.name}")
        continue
    e("s_sleep 1")
    for l in p.loads: e(l)
    e(f"s_add_u32 s{sSPIN}, s{sSPIN}, 1")
    e("s_waitcnt vmcnt(0)")
    for t in p.tests: e(t)
    e(f"s_cmp_gt_u32 s{sSPIN}, 0x200000"); e(f"s_cbranch_scc1 L_back_{p.name}")
    e(f"s_cbranch_vccnz L_slow_{p.name}")
    e(f"s_branch L_back_{p.name}")

lab("L_redo")
P.lq, P.vq = [], []
e(f"s_mov_b32 s{sOB}, 0")
for s in range(4): e(f"v_add_u32 v{KA(s)}, 49152, v{KA(s)}")
for qb in range(4): e(f"v_mov_b32 v{NM(qb)}, 0xff800000")


def redo_tile(kinds, zero):
    P.used = set()
    P.wait_all(); e("s_barrier")
    for kind, lds in kinds: flush(kv_dma(kind, 0, lds=lds, so=f"s{sCNT}"))
    P.wait_all(); e("s_barrier")
    mf = [m for m, _ in qk_mfmas(2, zero=zero)]
    for half in range(2):
        for f in range(8 * half, 8 * half + 8): P.puts(frag_reads(2, f))
        P.puts(mf[32 * half:32 * half + 32])


e(f"s_mov_b32 s{sCNT}, 0")
lab("L_rmax")
redo_tile([("K", 98304)], True)
for qb in range(4):
    regs = [S(1, kb, qb) + i for kb in range(4) for i in range(4)]
    for i in range(0, 16, 2): e(f"v_max3_f32 v{NM(qb)}, v{NM(qb)}, v{regs[i]}, v{regs[i+1]}")
e(f"s_add_u32 s{sCNT}, s{sCNT}, 16384"); e(f"s_cmp_lt_u32 s{sCNT}, 0x80000"); e("s_cbranch_scc1 L_rmax")
allreduce("v_max_f32", [NM(qb) for qb in range(4)], [NM(qb) + 1 for qb in range(4)])
for qb in range(4):
    for i in (1, 2, 3, 0): e(f"v_sub_f32 v{NM(qb)+i}, 0, v{NM(qb)}")
for i in list(range(128)) + list(range(192, 208)): e(f"v_accvgpr_write_b32 a{i}, 0")
e(f"s_mov_b32 s{sCNT}, 0")
lab("L_rpv")
redo_tile([("K", 98304), ("V", 114688)], False)
for half in range(2):
    ex, post = sm_stream(1, half)
    P.puts(ex); P.puts([x for p in post for x in p])
mf = [m for m, _ in pv_mfmas(3)]
for half in range(2):
    for f in range(16 + 8 * half, 24 + 8 * half): P.puts(frag_reads(3, f))
    P.puts(mf[34 * half:34 * half + 34])
e(f"s_add_u32 s{sCNT}, s{sCNT}, 16384"); e(f"s_cmp_lt_u32 s{sCNT}, 0x80000"); e("s_cbranch_scc1 L_rpv")
row_sums(); row_inverses(); P.wait(["rinv"])
e("s_branch L_att_done")
if HOP: P.raw(".p2align 12")
lab("L_odd")
P.L += odd_text
lab("L_end")
e("s_endpgm")
P.L += ['.section .rodata,"a"', ".p2align 6", f".amdhsa_kernel {NAME}",
        "  .amdhsa_next_free_vgpr 512", "  .amdhsa_next_free_sgpr 102", "  .amdhsa_accum_offset 256",
        "  .amdhsa_group_segment_fixed_size 0", "  .amdhsa_kernarg_size 104", "  .amdhsa_user_sgpr_count 2",
        "  .amdhsa_user_sgpr_kernarg_segment_ptr 1", "  .amdhsa_system_sgpr_workgroup_id_x 1",
        "  .amdhsa_float_denorm_mode_32 3", ".end_amdhsa_kernel"]
lines = "\n".join(P.L).split("\n")
for key, pats in (("kvf", (srd(SK), srd(SV))), ("wf", tuple(srd(x) for x in (SWQ, SWO, SW1, SW2, SW3, SW4)))):
    if opt.get(key):
        lines = [l.replace(" lds", " " + opt[key].replace("+", " ") + " lds") if l.endswith(" lds") and any(x in l for x in pats) else l
                 for l in lines]
if opt.get("xf"): lines = [l + " " + opt["xf"] if "load_dwordx4 v[" in l and (srd(SX) in l or "s[64:65]" in l) else l for l in lines]
ABL = opt.get("abl", "")
if ABL:
    i0 = next(i for i, l in enumerate(lines) if "output projection" in l); i1 = lines.index("L_side:")
    j0 = max(i for i in range(i0, i1) if MF in lines[i])
    keep = []
    for i, l in enumerate(lines):
        if i0 < i < i1:
            if "p" in ABL and "s_cbranch_vccnz L_slow_s" in l: continue
            if "w" in ABL and i > j0 and "vmcnt" in l and "v_dot2" not in lines[i + 1]: continue
            if "l" in ABL and "buffer_load_dwordx4" in l and "sc1" in l: continue
            if "s" in ABL and "buffer_store_dwordx4" in l and "sc1" in l: continue
        keep.append(l)
    lines = keep
if opt.get("tcf"): lines = [l + " " + opt["tcf"] if "_load_dword a255" in l and "sc1" not in l and ", off" not in l else l for l in lines]
lines, added = fix_hazards(lines)
nhop = 0
if HOP: lines, nhop = add_page_hops(lines, sW)
lines = [l for l in lines if "@hop" not in l]
if O_("short", 1): lines = compress(lines)
text = "\n".join(lines) + "\n"
open(OUT_PATH, "w").write(text)
print(f"{OUT_PATH}: {len(lines)} lines, {len(text)} bytes, {added} wait states padded, {nstamp[0]} stamps, {nhop} hops", file=sys.stderr)
```

```python
import math
import struct
import sys
from asmlib6 import *

OUT_PATH = sys.argv[1]
opt = dict(a.split("=") for a in sys.argv[2:])
O_ = lambda k, d: int(opt.get(k, d))
STAMP = O_("stamp", 0)
SSET = opt.get("sset", "")
FORCE_REDO = O_("redo", 0)
QPERM = O_("qperm", 1)
PA = O_("pa", 1)
OB = O_("ob", -19)
sOB = 100
OWN = O_("own", 1)
sPO, vPO, sPX = (3, 101), 218, 65
OSH = O_("osh", 0)
XREG = O_("xreg", 1)
AHEAD = O_("ahead", 10)
AMP = [int(x) for x in opt["amp"].split(",")] if "amp" in opt else None

NAME = "recurrent_scan__gqa_block_cached__mixer_s_mlp__prompt_kernel"
MF = "v_mfma_f32_16x16x32_bf16"
f2u = lambda x: "0x%08x" % struct.unpack("<I", struct.pack("<f", x))[0]
LOG2E = math.log2(math.e)
QSCALE = LOG2E / math.sqrt(128.0)
GC1 = -2.0 * math.sqrt(2.0 / math.pi) * LOG2E
GC2 = GC1 * 0.044715
EPS = 1e-5
GA_ = (-GC2) ** (1.0 / 3.0)
GK = -GC1 / GA_

SX, SK, SV, SWS, SWQ, SWO, SW1, SW2, SW3, SW4, SOUT, SDBG = range(4, 52, 4)
sG, sM, sW = 52, 53, 54
sT = 55
sW1K, sW4K, sRING, sSO = 60, 61, 62, 63
sSF, sCNT, sSPIN, sHO, sPP, sPC, sFL, sF0, sF1, sSTP, sSTC = range(64, 75)
sLO, sHI, sONE2, sC1, sC2, sNL2E, sF2, sMSK, sKS, sF3, sTB, sSTF, sXF, sRS, sW3B = range(75, 90)
sST = 92
srd = lambda b: sr(b, 4)

WS_H, WS_X1, WS_PS, WS_PH, WS_FL, WS_SS, WS_ST = 0, 0x200000, 0x400000, 0x1400000, 0x2400000, 0x2500000, 0x4000000
PLANE = 131072

vBA, vTOK, vNMEAN, vRSTD, vLANE, vSTAMP, vCODE, vAS, vDW2 = 255, 254, 253, 252, 251, 250, 248, 244, 243
T = 226
vAA, vAA2 = T, T + 4
vBX, vWA, vSC1, vDWQ, vDW1 = T + 8, T + 9, T + 12, T + 14, T + 15
vPA, vPOLL, vONE, vDW4, vDWO = T + 16, T + 15, T + 14, T + 13, T + 12
vTC = T + 10
XR = 128
G12 = 192
S = lambda buf, kb, qb: buf * 64 + qb * 16 + kb * 4
PR = lambda buf, ks, qb: buf * 64 + qb * 16 + ks * 4
vIDX = vSTAMP
NIT = 132
Q = lambda qb, s: 128 + (qb * 4 + s) * 4
NM = lambda qb: 192 + 4 * qb
KA = lambda s: 208 + s
VA = lambda db: 212 + db
KG = lambda i: 220 + i
VG = lambda i: 224 + (i & 1)
vR = NM(0)
O = lambda db, qb: (db * 4 + qb) * 4
FR = lambda f: 128 + (f % 8) * 4
HB = lambda ks: 160 + (ks % 8) * 4
LACC = lambda qb: 192 + 4 * qb
aONES, aG2, aXN = 208, 212, 244
GA = lambda i: 228 + (i % 4) * 4
AF = lambda f: 128 + (f % 8) * 4
PHA = lambda k: (160, 212)[k // 8] + (k % 8) * 4
T0 = 22
RING, VOFF = 65536, 65536

P = Prog()
e, lab, cap = P.e, P.lab, P.capture
slow_paths = []
nstamp = [0]


JIT = O_("jitter", 0)
njit = [0]


def jitter():
    i = njit[0]; njit[0] += 1
    e(f"s_memrealtime {sr(96,2)}"); P.wait_all(vm=False)
    e(f"s_lshr_b32 s96, s96, 14"); e(f"s_lshl_b32 s97, s2, 2" if JIT & 1 else "s_mov_b32 s97, s2")
    if JIT & 1: e(f"s_add_u32 s97, s97, s{sW}")
    e(f"s_add_u32 s96, s96, s97"); e(f"s_add_u32 s96, s96, {i * 7919 + 13}"); e("s_mul_i32 s96, s96, 0x9e3779b1")
    e("s_mov_b32 s98, s96")
    e(f"s_lshr_b32 s96, s96, {32 - (JIT >> 1)}")
    lab(f"L_jit{i}")
    e("s_sleep 8"); e("s_sub_u32 s96, s96, 1"); e(f"s_cbranch_scc0 L_jit{i}")


def jitter_item():
    i = njit[0]; njit[0] += 1
    return It(f"s_mul_i32 s98, s98, 0x41c64e6d\n    s_add_u32 s98, s98, 12345\n    s_lshr_b32 s99, s98, 27\n"
              f"    s_sub_u32 s99, s99, 24\n    s_cbranch_scc1 L_jx{i}\nL_jw{i}:\n    s_sleep {O_('jit2', 0)}\n"
              f"    s_sub_u32 s99, s99, 1\n    s_cbranch_scc0 L_jw{i}\nL_jx{i}:", "s")


def stamp(level=1):
    if JIT and level == 1: jitter()
    if AMP and level == 1:
        i = nstamp[0]; nstamp[0] += 1
        if i in AMP[:2]:
            e(f"{'s_memtime' if AMP[3] else 's_memrealtime'} {sr(sST + 2*AMP.index(i),2)}"); P.wait_all(vm=False)
        return
    if STAMP < level or (SSET and level != 0):
        return
    i = nstamp[0]; nstamp[0] += 1
    e(f"s_memtime {sr(sST,2)}"); e(f"s_memrealtime {sr(sST+2,2)}")
    P.wait_all(vm=False)
    e(f"v_accvgpr_read_b32 v{vSTAMP}, a254")
    e(f"v_writelane_b32 v{vSTAMP}, s{sST}, {2*i}")
    e(f"v_writelane_b32 v{vSTAMP}, s{sST+2}, {2*i+1}")
    e(f"v_accvgpr_write_b32 a254, v{vSTAMP}"); e(f"v_accvgpr_read_b32 v{vSTAMP}, a253")


def stamp_item():
    i = nstamp[0]; nstamp[0] += 1
    return It(f"s_memtime {sr(sST,2)}\n    s_memrealtime {sr(sST+2,2)}\n    s_waitcnt lgkmcnt(0)\n"
              f"    v_accvgpr_read_b32 v{vSTAMP}, a254\n"
              f"    v_writelane_b32 v{vSTAMP}, s{sST}, {2*i}\n    v_writelane_b32 v{vSTAMP}, s{sST+2}, {2*i+1}\n"
              f"    v_accvgpr_write_b32 a254, v{vSTAMP}\n    v_accvgpr_read_b32 v{vSTAMP}, a253", "s")


def mk_srd(d, p, size):
    e(f"s_mov_b32 s{d}, s{p}"); e(f"s_mov_b32 s{d+1}, s{p+1}"); e(f"s_mov_b32 s{d+2}, {size}"); e(f"s_mov_b32 s{d+3}, 0x20000")


def sum_terms(dst, *terms):
    first = True
    for t in terms:
        if isinstance(t, int):
            e(f"s_add_u32 s{dst}, s{dst}, {t}"); continue
        r, k = t
        if k == 0:
            e(f"s_mov_b32 s{dst}, 0"); first = False; continue
        d = dst if first else sT + 4
        e(f"s_lshl_b32 s{d}, s{r}, {k.bit_length()-1}" if k & (k - 1) == 0 else f"s_mul_i32 s{d}, s{r}, {k}")
        if not first: e(f"s_add_u32 s{dst}, s{dst}, s{d}")
        first = False


def allreduce(op, regs, tmps, k=None):
    for sw in ("v_permlane32_swap_b32", "v_permlane16_swap_b32"):
        for r, t in zip(regs, tmps): e(f"v_mov_b32 v{t}, v{r}")
        for r, t in zip(regs, tmps): e(f"{sw} v{r}, v{t}", k=k)
        for r, t in zip(regs, tmps): e(f"{op} v{r}, v{r}, v{t}")


def masked(mask, txt, tag=None, lds=False):
    (P.lds if lds else P.vm)(f"s_mov_b64 exec, {mask}\n    {txt}\n    s_mov_b64 exec, -1", tag)


class Poll:
    def __init__(self, name, loads, tests):
        self.name, self.loads, self.tests = name, loads, tests
        slow_paths.append(self)

    def issue(self):
        for l in self.loads: P.vm(l, self.name)

    def check(self):
        for i, t in enumerate(self.tests): e(t, need=[self.name] if i == 0 else ())
        e(f"s_cbranch_vccnz L_slow_{self.name}\nL_back_{self.name}:", k="v")


def flag_poll(name, s_rd, soff, target):
    return Poll(name, [f"buffer_load_dword v{vPOLL}, v{vPA}, {srd(s_rd)}, {soff} offen sc1"],
                [f"v_cmp_gt_u32 vcc, {target}, v{vPOLL}"])


def set_flags(stage, nlanes, need, val=1):
    e(f"v_mov_b32 v{vONE}, {val}")
    e(f"s_add_u32 s{sSF}, s{sFL}, {stage * 1024}")
    P.wait(need)
    masked((1 << nlanes) - 1, f"buffer_store_dword v{vONE}, v{vLANE}, {srd(SWS)}, s{sSF} offen sc1")


def interleave(code, side, every):
    side = list(side)
    for k, it in enumerate(code):
        if side and k % every == 0: P.puts(side.pop(0))
        P.put(it)
    for x in side: P.puts(x)


def gelu(base, n, tmp, dst, first):
    pairs = range(0, n, 2)
    if "g" in opt.get("cut", ""):
        for i in pairs: e(f"v_cvt_pk_bf16_f32 v{dst(i//2)}, v{base+i}, v{base+i+1}")
        return
    if first: e(f"v_mov_b32 v{vTC}, s{sC1}")
    for i in pairs: e(f"v_pk_fma_f32 {vr(tmp+i,2)}, {vr(base+i,2)}, {vr(base+i,2)}, {vr(vTC,2)} op_sel_hi:[1,1,0]")
    for i in pairs: e(f"v_pk_mul_f32 {vr(tmp+i,2)}, {vr(tmp+i,2)}, {vr(base+i,2)} neg_lo:[0,1] neg_hi:[0,1]")
    for i in range(n): e(f"v_exp_f32 v{tmp+i}, v{tmp+i}")
    for i in pairs: e(f"v_pk_add_f32 {vr(tmp+i,2)}, {vr(tmp+i,2)}, 1.0 op_sel_hi:[1,0]")
    for i in range(n): e(f"v_rcp_f32 v{tmp+i}, v{tmp+i}")
    for i in pairs: e(f"v_pk_mul_f32 {vr(tmp+i,2)}, {vr(tmp+i,2)}, {vr(base+i,2)}")
    for i in pairs: e(f"v_cvt_pk_bf16_f32 v{dst(i//2)}, v{tmp+i}, v{tmp+i+1}")


class Tile:
    def __init__(self, s_rd, voff, base, stride, perm, slot, tag, rows=64, kp=0, nh=0, half=32):
        self.__dict__.update(locals())

    def dma(self):
        out = []
        for i in range(self.rows // 8):
            row = ((0, 16, 4, 20)[i & 3] if self.perm else 8 * (i & 3)) + self.half * (i >> 2)
            so = self.base + row * self.stride - (i & 3) * 1024
            pre = [It(f"s_add_u32 m0, s{sRING}, {self.slot * 32768 + (i >> 2) * 4096}", "s")] if i % 4 == 0 else []
            out.append((pre + [It(f"s_mov_b32 s{sSO}, {so}", "s")],
                        [It(f"buffer_load_dwordx4 v{self.voff}, {srd(self.s_rd)}, s{sSO} offen "
                            f"offset:{(i & 3) * 1024} lds", "g", self.tag)]))
        return out


def place(add, g, grp, prev, avoid=()):
    pre, its = grp
    c = [h for h in range(max(prev + 1, 0), g) if h not in avoid][-len(pre):] if pre else []
    for k, it in enumerate(pre): add(c[k] if len(c) == len(pre) else max(g - len(pre) + k, prev + 1, 0), it)
    for it in its: add(g, it)


def dma_voff(dst, stride, perm, s_base, a):
    b = a + 1
    e(f"v_lshrrev_b32 v{a}, 10, v{vLANE}")
    e(f"v_bfe_u32 v{b}, v{vBA}, 4, 3")
    e(f"v_and_b32 v{dst}, 6, v{a}"); e(f"v_xor_b32 v{b}, v{b}, v{dst}")
    if perm:
        e(f"v_and_b32 v{dst}, 4, v{a}"); e(f"v_add_u32 v{a}, v{a}, v{dst}")
    e(f"v_mul_u32_u24 v{a}, {stride}, v{a}")
    e(f"v_lshl_add_u32 v{a}, v{b}, 4, v{a}")
    e(f"v_add_u32 v{dst}, {s_base}, v{a}")


def a_reads(t, ti, nb):
    base = (vAA2 if t.slot == 2 else vAA) + nb
    off = (t.slot % 2) * 32768 if t.slot < 2 else 0
    return [It(f"ds_read_b64_tr_b16 {ar(AF(nb*2+ks) + 2*h, 2)}, v{base} offset:{off + ks*4096 + h*2048}", "l",
               ("A", t.tag, nb), need=[t.tag]) for ks in range(t.rows // 32) for h in range(2)]


def gemm_pre(tiles, i0):
    P.puts(a_reads(tiles[i0], i0, 0))


def gemm(tiles, i0, n, acc, pending, bf, breg=vBA, extra=None, fill=None, over=0, opening=None, dma0=0, btr=False):
    bf = [x if isinstance(x, tuple) else (ar, x) for x in bf]
    BF = lambda s, ks, tb, o=0, w=4: bf[grp[s] % len(bf)][0](bf[grp[s] % len(bf)][1] + (ks * 4 + tb) * 4 + o, w)
    ms, gaps, start, grp, held, fresh = [], {}, [], [], {}, []
    seen = set()
    for s, ti in enumerate(range(i0, i0 + n)):
        t = tiles[ti]
        fresh.append(t.kp not in held)
        if fresh[s]:
            k = max(grp, default=-1) + 1
            while s and k % len(bf) == grp[s - 1] % len(bf): k += 1
            held = {kp: g for kp, g in held.items() if g % len(bf) != k % len(bf)}
            held[t.kp] = k
        grp.append(held[t.kp])
        start.append(len(ms))
        nks = t.rows // 32
        for nb in range(4):
            for tb in range(4):
                for ks in (range(nks) if not tb & 1 else range(nks - 1, -1, -1)):
                    d = vr(acc(t.nh, nb, tb), 4)
                    c = d if (t.nh, nb, tb) in seen else "0"
                    seen.add((t.nh, nb, tb))
                    ms.append(It(f"{MF} {d}, {ar(AF(nb*2+ks),4)}, {BF(s,ks,tb)}, {c}", "m",
                                 need=[("A", t.tag, nb), ("B", tiles[i0].tag, grp[s], tb)]))
    start.append(len(ms))

    def b_reads(s):
        t = tiles[i0 + s]
        if btr:
            return [It(f"ds_read_b64_tr_b16 {BF(s,ks,tb,2*h,2)}, v{breg+tb} offset:{t.kp*8192 + ks*4096 + h*2048}",
                       "l", ("B", tiles[i0].tag, grp[s], tb)) for tb in range(4) for ks in range(2) for h in range(2)]
        return [It(f"ds_read_b128 {BF(s,ks,tb)}, v{breg} offset:{t.kp*8192 + ks*4096 + tb*1024}", "l",
                   ("B", tiles[i0].tag, grp[s], tb)) for tb in range(4) for ks in range(t.rows // 32)]

    add = lambda g, it: gaps.setdefault(g, []).append(it)
    pre = b_reads(0)
    release = {}
    for s in range(n):
        ti = i0 + s; t = tiles[ti]
        per = (start[s + 1] - start[s]) // 4
        for nb in range(4):
            if s == 0 and nb == 0: continue
            rd = a_reads(t, ti, nb)
            for k, it in enumerate(rd):
                g = start[s] + per * nb - 6 - 2 * (len(rd) - 1 - k)
                if g < 0: pre.append(it)
                else: add(g, it)
        if ti + 3 < len(tiles) and tiles[ti + 3]: release[start[s] + 3 * per] = tiles[ti + 3]
        if s + 1 < n and fresh[s + 1]:
            s0 = s - 1 if s and not fresh[s] and grp[s - 1] % len(bf) != grp[s + 1] % len(bf) else s
            rd = b_reads(s + 1)
            cand = [g for g in range(start[s0], start[s + 1] - 6) if g % 4 == 3]
            if btr: cand = sorted(cand * 2)
            if len(cand) < len(rd): cand = sorted(cand + [start[s0] + 2 * k for k in range(len(rd) - len(cand))])
            step = len(cand) / len(rd)
            for k, it in enumerate(rd): add(cand[int(k * step)], it)
    if opening == "get": return a_reads(tiles[i0], i0, 0) + pre
    if opening == "done": pre = []
    prev = dma0 - 1
    for g in range(dma0, len(ms)):
        if g in release: pending += release[g].dma()
        nxt = min([r for r in release if r > g], default=len(ms) + 24)
        if pending and (g % 4 == 1 or (g % 4 == 3 and len(pending) > (nxt - g + 1) // 4)):
            place(add, g, pending.pop(0), prev); prev = g
    for g, its in (extra or {}).items():
        for it in its: add(g, it)
    for g in start[:-1]: add(g + 10, hop())
    if O_("jit2", 0):
        for g in start[:-1]: add(g + 4, jitter_item())
    if SSET == {id(qt): "q", id(ot): "o"}.get(id(tiles), "mlp"):
        for g in start[:-1] + [len(ms) - 1]: add(g, stamp_item())
    P.puts(pre)
    P.run_gaps(ms, gaps, fill, gmin=4, over=over)


def flush(pending):
    while pending:
        a, b = pending.pop(0)
        P.puts(a + b)


def shared_ops(kss, koff, acc, zero, afr, breg, bneed, name, i0=0):
    out = []
    for nb in range(4):
        for ks in kss:
            i = i0 + len(out)
            d = acc(nb)
            out.append((It(f"{MF} {d}, {ar(afr(i),4)}, {breg(ks)}, {0 if zero and not ks else d}", "m",
                           need=[(name, i)] + list(bneed(ks))),
                        [It(f"ds_read_b64_tr_b16 {ar(afr(i)+2*h,2)}, v{vAS+nb} offset:{(ks-koff)*4096 + h*2048}", "l",
                            (name, i)) for h in range(2)]))
    return out


def pack(acc, nh, tb, s, second=False, guard=False):
    a, b = acc(nh, 2 * s, tb), acc(nh, 2 * s + 1, tb)
    order = list(enumerate((a, a + 2, b, b + 2)))
    d = b if second else a
    for j, r in reversed(order) if second else order: e(f"v_cvt_pk_bf16_f32 v{d+j}, v{r}, v{r+1}")
    if guard:
        for j in range(4): e(f"v_min_u32 v{d+j}, -2, v{d+j}")


def store_piece(src, ws_base, nh, tb, s, tag):
    lane = vPO + (tb >> 1) if OWN and ws_base == WS_PS else vBA
    e(f"s_add_u32 s{sSF}, s{sPP}, {ws_base + (tb >> 1)*65536 + ((tb & 1) + 2*s)*2048}")
    P.vm(f"buffer_store_dwordx4 {src}, v{lane}, {srd(SWS)}, s{sSF} offen offset:{nh*1024} sc1", tag)


def load_piece(ws_base, dst, g, nh, tag):
    if OWN and ws_base == WS_PS: e(f"s_xor_b32 s{sSF}, s{sPX}, {g*8192}")
    else: e(f"s_add_u32 s{sSF}, s{sPC}, {ws_base + g*8192}")
    P.vm(f"buffer_load_dwordx4 {dst}, v{vBA}, {srd(SWS)}, s{sSF} offen offset:{nh*1024} sc1", (tag, g, nh))


def add_piece(dst, reg, first, need):
    for j in range(4):
        for h, sel in enumerate((sLO, sHI)):
            d = dst + 2 * j + h
            e(f"v_dot2_f32_bf16 v{d}, v{reg+j}, s{sel}, {0 if first else 'v%d' % d}", need=need)


def frag_reads(t, f, tail=False):
    if f < 16:
        kb, s = f // 4, f % 4
        off = ((t + 1) % 4) * 16384 + kb * 4096
        return [It(f"ds_read_b128 {ar(FR(f),4)}, v{KA(s)} offset:{off}", "l", ("F", t, f))]
    db, ks = ((f - 16) // 2, (f - 16) % 2) if not tail else ((f - 16) % 8, (f - 16) // 8)
    off = (t % 4) * 16384 + ks * 8192
    return [It(f"ds_read_b64_tr_b16 {ar(FR(f)+2*h,2)}, v{VA(db)} offset:{off + 4096*h}", "l", ("F", t, f))
            for h in range(2)]


def qk_mfmas(t, zero=False):
    out = []
    for kb in range(4):
        for qb in range(4):
            for n, s in enumerate(range(4) if not qb & 1 else range(3, -1, -1)):
                d = vr(S((t + 1) & 1, kb, qb), 4)
                c = d if n else ("0" if zero else vr(NM(qb), 4))
                out.append((It(f"{MF} {d}, {ar(FR(kb*4+s),4)}, {vr(Q(qb,s),4)}, {c}", "m",
                               need=[("F", t, kb * 4 + k) for k in range(4)]), kb * 4 + s))
    return out


def pv_one(t, db, qb, ks, f, need, zero=False):
    o = ar(O(db, qb), 4)
    ab = [ar(FR(f), 4), vr(PR(t & 1, ks, qb), 4)][::-1 if PA else 1]
    return (It(f"{MF} {o}, {ab[0]}, {ab[1]}, {(ar(GA(0), 4) if OB else 0) if zero else o}", "m", need=need), f)


def sum_one(t, qb):
    return (It(f"v_smfmac_f32_16x16x64_bf16 {ar(LACC(qb),4)}, {ar(aONES,4)}, {vr(PR(t&1,0,qb),8)}, v{vIDX}", "m"), None)


def pv_mfmas(t, zero=False):
    out = []
    for db in range(8):
        need = [("F", t, 16 + db * 2), ("F", t, 17 + db * 2)]
        for qb in range(4):
            for n, ks in enumerate(range(2) if not qb & 1 else range(1, -1, -1)):
                out.append(pv_one(t, db, qb, ks, 16 + db * 2 + ks, need, zero and not n))
        if db % 2 == 0: out.append(sum_one(t, db // 2))
    return out


def pv_mfmas_tail(t):
    out = []
    for ks in range(2):
        if ks: out += [sum_one(t, qb) for qb in range(4)]
        for db in range(8):
            f = 16 + ks * 8 + db
            out += [pv_one(t, db, qb, ks, f, [("F", t, f)]) for qb in range(4)]
    return out


def sm_stream(buf, half):
    ex, post = [], []
    for qb in range(4):
        b, d = S(buf, 2 * half, qb), PR(buf, half, qb)
        for j in range(8):
            ex.append(It(f"v_exp_f32 v{b+j}, v{b+j}", "x"))
            post.append([It(f"v_cvt_pk_bf16_f32 v{d + j//2}, v{b+j-1}, v{b+j}", "v")] if j & 1 else [])
    return ex, post


def kv_dma(kind, tile, lds=None, so=None):
    reg, s_rd, base = (KG, SK, 0) if kind == "K" else (VG, SV, VOFF)
    lds = base + (tile % 4) * 16384 if lds is None else lds
    out = []
    for i in range(4):
        pre = [It(f"s_add_u32 m0, s{sW4K}, {lds}", "s"),
               It(f"s_mov_b32 s{sSO}, {tile * 16384 if so is None else so}", "s")] if i == 0 else []
        out.append((pre, [It(f"buffer_load_dwordx4 v{reg(i)}, {srd(s_rd)}, s{sSO} offen offset:{i*1024} lds",
                             "g", (kind, tile))]))
    return out


issued = set()
CLUSTER = O_("cluster", 1)
OVER = [int(x) for x in opt.get("overit", "3,9,13").split(",")]
WINS = [int(x) for x in opt.get("wins", "2,18,34,50,75,92,109,124").split(",")]
WPAT = [int(x) for x in opt.get("wpat", "1").split(",")]


def attn_iter(t, groups, fill, endwait=(), extra=None, ins=None):
    end = T0 - 1 if t < T0 else 31
    last = t == end
    mf = pv_mfmas_tail(t) if last else qk_mfmas(t) + pv_mfmas(t, zero=t == 0)
    ms = [m for m, _ in mf]
    n = len(ms)
    first_use, last_use = {}, {}
    for i, (_, f) in enumerate(mf):
        if f is not None:
            first_use.setdefault(f, i); last_use[f] = i
    reads = []
    for f in sorted(first_use):
        if (t, f) in issued: continue
        reads += [(first_use[f] - AHEAD, last_use.get(f - 8, -1), it) for it in frag_reads(t, f, last)]
    nxt_need = ()
    if t < end - 1:
        for f in range(4):
            reads += [(n + f - AHEAD, last_use[24 + f], it) for it in frag_reads(t + 1, f)]
            issued.add((t + 1, f))
        nxt_need = [("F", t + 1, f) for f in range(4)]
    elif t == end - 1:
        for f in range(16, 19):
            reads += [(n + 4 * (f - 16) - AHEAD, last_use[8 + f], it) for it in frag_reads(end, f, True)]
            issued.add((end, f))
        nxt_need = [("F", end, 16)]
    gaps = {}
    add = lambda g, it: gaps.setdefault(g, []).append(it)
    exg = {}
    wins = [] if last or not CLUSTER else WINS[:min(len(WINS), -(-len(groups) // len(WPAT)))]
    quiet = {w + k for w in wins for k in range(WPAT[-1] + 1)}
    dma_gaps = sorted(w + k for w in wins for k in WPAT)
    narrow = {g for g, m in enumerate(ms) if m.t.startswith("v_smfmac")}
    if last:
        ex, post = sm_stream(t & 1, 1)
        for i in range(32): exg[i] = (ex[i], post[i])
    else:
        for (ex, post), lo, hi in ((sm_stream(t & 1, 1), 0, 63), (sm_stream((t + 1) & 1, 0), 64, n - 1)):
            c = [g for g in range(lo, hi) if g not in quiet]
            for i in range(32):
                g = c[(i * (len(c) + 1)) // 32]
                while g in narrow or g in exg or g in quiet: g += 1
                exg[g] = (ex[i], post[i])
    for g, (x, post) in exg.items():
        add(g, x)
    for g, (x, post) in exg.items():
        h = g + 1
        while not last and (h in exg or h in quiet): h += 1
        for it in post: add(h, it)
    room = lambda g: len(gaps.get(g, [])) < (1 if g in narrow else 2)
    free = set(range(n)) if last else {g for g in range(n) if g not in exg and g not in dma_gaps and room(g)}
    prev, pre, avail = n, [], sorted(free)
    for dl, early, it in reversed(reads):
        c = [g for g in free if g <= dl and g < prev]
        if c and max(c) >= early:
            prev = max(c); free.discard(prev); add(prev, it)
        elif early < 0:
            prev = -1; pre.insert(0, it)
        else:
            c = [g for g in avail if early <= g <= dl + AHEAD - 6]
            g = min([g for g in c if room(g)] or c)
            free.discard(g); gaps.setdefault(g, []).insert(0, it)
    if groups:
        def spaced(c):
            out = []
            for g in c:
                if not out or g - out[-1] >= 2: out.append(g)
            return out
        light = spaced([g for g in sorted(free) if 1 <= g < n - 6 and g not in gaps])
        fr = light if len(light) >= len(groups) - len(dma_gaps) + 4 else spaced([g for g in sorted(free) if 1 <= g < n - 6])
        rest = len(groups) - len(dma_gaps)
        if rest > 0:
            fr = [g for g in fr if not {g - 1, g, g + 1} & set(dma_gaps)]
            if len(fr) < rest: fr = spaced([g for g in range(1, n - 6) if g not in exg and not {g - 1, g, g + 1} & set(dma_gaps)])
            assert len(fr) >= rest, (t, len(fr), len(groups))
            dma_gaps = sorted(dma_gaps + [fr[int(k * len(fr) / rest)] for k in range(rest)])
        for k, grp in enumerate(groups): place(add, dma_gaps[k], grp, dma_gaps[k - 1] if k else -1, {u - 1 for u in first_use.values()})
    if not last:
        add(n - 3, It(None, "s", need=[("K", min(t + 3, end)), ("V", end if t == end - 2 else t + 1)] + list(endwait)))
        add(n - 2, It("s_barrier", "s"))
        add(n - 4, hop())
    for g, its in (extra or {}).items():
        for it in its: add(g, it)
    if SSET == "attn": add(0, stamp_item())
    if O_("jit2", 0):
        for g in (1, n // 2, n - 12): add(g, jitter_item())
    if ins:
        for k in range(3):
            for h, it in enumerate(ins[k][1]): add(1 + 4 * k + 2 * h, it)
        pos = {(13 + (k * (n - 24)) // (len(ins) - 1)) | 1: k for k in range(len(ins))}
        assert len(pos) == len(ins)
        ms2, gaps2, old, quiet = [], {}, quiet, set()
        for g, m in enumerate(ms):
            if g in old: quiet.add(len(ms2))
            gaps2[len(ms2)] = gaps.get(g, []); ms2.append(m)
            if g in pos:
                k = pos[g]
                gaps2[len(ms2)] = list(ins[k + 3][1]) if k + 3 < len(ins) else []
                ms2.append(ins[k][0])
        ms, gaps = ms2, gaps2
    P.puts(pre)
    P.run_gaps(ms, gaps, fill, next_need=nxt_need, pos=t, gmin=4, quiet=quiet, over=4 if t in OVER else 0)


OVERVIEW = """
One launch, 256 workgroups (one per CU) of 4 waves. Workgroup (g, m) = KV group g, tokens 64m..64m+63.
Order: LN(x) -> LN(LN(x)) @ w1 -> Q projection -> key tiles 0..21 -> channel MLP -> key tiles 22..31
       -> output projection -> combine. The w2 GEMM and the LN statistics of x1 ride in the attention slack.
Matrix work uses 16x16x32 bf16 MFMA with fp32 accumulation; weights and K/V reach LDS by DMA.
Softmax: every row is shifted by (maximum over its first 16 keys + 25.4) through the MFMA C operand, so the row
  sum cannot underflow. If any row sum of the workgroup is not <= 2^64, L_redo computes the true row maxima and
  repeats the pass with them.
Hand-offs between the 8 workgroups of a token block use write-through stores, sc1 loads and flag words in d_ws;
  each wave resets its words before its workgroup counts itself into d_debug, and peers read them only after that.
L_pad_* / L_hop*: the waves visit upcoming code pages with EXEC = 0 and return at once (instruction prefetch).
"""
hdr = [l.rstrip("\n") for l in open("header.txt")]
hdr = hdr[:[i for i, l in enumerate(hdr) if "@launch" in l][0]]
P.L += hdr + ["; @launch grid=(256,1,1) block=(256,1,1) lds=163840",
              '.amdgcn_target "amdgcn-amd-amdhsa--gfx950"'] + ["; " + l for l in OVERVIEW.strip().split("\n")] + [
              ".text", f".globl {NAME}", ".p2align 8",
              f".type {NAME},@function"]
lab(NAME)
e("s_cmp_lt_u32 s2, 256"); e("s_cbranch_scc1 L_go"); e("s_endpgm")
lab("L_go")
if AMP and AMP[0] < 0: e(f"s_memrealtime {sr(sST,2)}")
e("s_load_dwordx16 s[64:79], s[0:1], 0"); e("s_load_dwordx8 s[80:87], s[0:1], 64"); e("s_load_dwordx2 s[88:89], s[0:1], 96")
PAIR = O_("pair", 0)
NS = 16 if PAIR else 32
sMI, sWV = 90, 91
if PAIR:
    e(f"s_and_b32 s{sG}, s2, 3"); e(f"s_and_b32 s{sT}, s2, 2"); e(f"s_add_u32 s{sG}, s{sG}, s{sT}")
    e(f"s_bfe_u32 s{sT}, s2, 0x10003"); e(f"s_lshl1_add_u32 s{sG}, s{sT}, s{sG}")
    e(f"s_lshr_b32 s{sMI}, s2, 4"); e(f"s_and_b32 s{sM}, s2, 4"); e(f"s_lshl_b32 s{sM}, s{sM}, 2"); e(f"s_add_u32 s{sM}, s{sM}, s{sMI}")
else:
    e(f"s_and_b32 s{sG}, s2, 7"); e(f"s_lshr_b32 s{sM}, s2, 3"); e(f"s_lshr_b32 s{sMI}, s2, 3")
e("v_lshrrev_b32 v1, 6, v0"); e("v_and_b32 v0, 63, v0"); e(f"v_readfirstlane_b32 s{sW}, v1")
e(f"v_lshlrev_b32 v{vBA}, 4, v0"); e(f"v_lshlrev_b32 v{vLANE}, 7, v0")
e(f"s_getpc_b64 {sr(sT+1,2)}")
lab("L_pc")
NCL = 10
e(f"s_lshr_b32 s{sT+3}, s2, 3")
sum_terms(sT, (sT + 3, 512), (sW, 128))
e(f"v_min_u32 v6, {NCL-1}, v0"); e(f"v_lshl_add_u32 v6, v6, 14, s{sT}"); e("v_min_u32 v6, L_end-L_pc, v6")
e(f"v_mov_b32 v{vCODE+1}, s{sT+2}"); e(f"v_add_co_u32 v{vCODE}, vcc, s{sT+1}, v6")
e(f"v_addc_co_u32 v{vCODE+1}, vcc, 0, v{vCODE+1}, vcc")
code_touch = lambda: P.vm(f"global_load_dword a255, {vr(vCODE,2)}, off")
masked(O_("cm", 15), f"global_load_dword a255, {vr(vCODE,2)}, off")
sum_terms(sWV, (sMI, 4), (sW, 1))


def touch_off(d, nrows, lines, stride, base_terms, t):
    per = -(-nrows // (NS * 4))
    assert per * lines <= 64 and lines & (lines - 1) == 0
    sh = lines.bit_length() - 1
    e(f"v_lshrrev_b32 v{d}, {7 + sh}, v{vLANE}"); e(f"v_min_u32 v{d}, {per - 1}, v{d}")
    e(f"s_mul_i32 s{sT}, s{sWV}, {per}"); e(f"v_add_u32 v{d}, s{sT}, v{d}")
    if per * NS * 4 != nrows: e(f"v_min_u32 v{d}, {nrows - 1}, v{d}")
    e(f"v_mul_u32_u24 v{d}, {stride}, v{d}")
    sum_terms(sT, *base_terms)
    if lines > 1:
        e(f"v_and_b32 v{t}, {(lines - 1) * 128}, v{vLANE}"); e(f"v_add3_u32 v{d}, v{d}, v{t}, s{sT}")
    else:
        e(f"v_add_u32 v{d}, s{sT}, v{d}")


WQ0 = O_("wq0", 128)
vTQ, vT1, vTK = T + 11, T + 13, T + 16
touch_off(6, WQ0, 8, 8192, [(sG, 1024)], 7)
touch_off(vT1, 512, 1, 1024, [(sG, 128)], 7)
e("v_and_b32 v2, 3, v0")
e("v_lshrrev_b32 v1, 2, v0")
sum_terms(sT, (sM, 64), (sW, 16))
e(f"v_add_u32 v3, s{sT}, v1"); e("v_lshlrev_b32 v3, 10, v3"); e("v_lshl_add_u32 v3, v2, 4, v3")
e(f"s_bfe_u32 s{sT+1}, s{sG}, {0x10000 + PAIR}"); e(f"s_lshl_b32 s{sT+2}, s{sT+1}, 9")
e(f"v_add_u32 v3, s{sT+2}, v3"); e(f"v_xor_b32 v{G12+13}, 0x200, v3")
if STAMP: e("v_accvgpr_write_b32 a254, 0")
e("s_waitcnt lgkmcnt(0)")
stamp()
if SSET == "ln": stamp(0)
ENT = " nt" * O_("ent", 0)
P.vm(f"global_load_dword a255, v{vT1}, s[76:77]{ENT}")
P.vm(f"global_load_dword a255, v6, s[70:71]{ENT}")
for i in range(8):
    P.vm(f"global_load_dwordx4 {vr(XR+4*i,4)}, v3, s[64:65] offset:{i*64}", ("x", i))
HOP = O_("hop", 1)
hop = lambda n="": It(f"; @hop {n}", "s")
if HOP:
    e("s_branch L_main"); P.raw(".p2align 12")
lab("L_main")
e("v_lshlrev_b32 v4, 1, v2"); e("v_xor_b32 v4, v4, v1"); e("v_lshlrev_b32 v4, 4, v4"); e("v_lshl_add_u32 v4, v2, 8, v4")
sum_terms(sT + 2, (sT + 1, 32768), (sW, 1024))
e(f"v_add_u32 v{vWA}, s{sT+2}, v4"); e(f"v_xor_b32 v{vWA+1}, 0x8000, v{vWA}")
e("v_and_b32 v1, 15, v0"); e("v_lshrrev_b32 v2, 4, v0")
e("v_lshlrev_b32 v4, 1, v2"); e("v_xor_b32 v4, v4, v1"); e("v_lshlrev_b32 v4, 4, v4"); e(f"v_lshl_add_u32 v{vBX}, v2, 8, v4")
e(f"v_add_u32 v3, s{sT}, v1"); e("v_lshlrev_b32 v4, 15, v2"); e(f"v_lshl_add_u32 v{vTOK}, v3, 4, v4")
for d, p in ((SK, 66), (SV, 68)):
    e(f"s_lshl_b32 s{sT}, s{sG}, 19")
    e(f"s_add_u32 s{d}, s{p}, s{sT}"); e(f"s_addc_u32 s{d+1}, s{p+1}, 0"); e(f"s_mov_b32 s{d+2}, 0x80000"); e(f"s_mov_b32 s{d+3}, 0x20000")
for d, p, size in ((SX, 64, 0x200000), (SWQ, 70, 0x400000), (SW1, 76, 0x80000), (SWS, 88, 0x10000000),
                   (SWO, 72, 0x400000), (SW2, 78, 0x80000), (SW3, 80, 1835008), (SW4, 82, 1835008),
                   (SOUT, 84, 0x200000), (SDBG, 86, 256)):
    mk_srd(d, p, size)
sum_terms(sRING, (sW, 8192), RING); sum_terms(sW1K, (sW, 1024)); sum_terms(sW4K, (sW, 4096))
sum_terms(sT, (sG, 1024), (sW, 256)); dma_voff(vDWQ, 8192, True, f"s{sT}", 10)
sum_terms(sT, (sW, 65536), (sG, 128)); dma_voff(vDW1, 1024, True, f"s{sT}", 10); dma_voff(vDW2, 1024, False, f"s{sT}", 10)
for r, v in ((sLO, "0x00003f80"), (sHI, "0x3f800000"), (sONE2, "0x3f803f80"), (sC1, f2u(GK)), (sC2, f2u(GA_)),
             (sNL2E, f2u(-LOG2E / GA_)), (sSPIN, opt.get("spin0", 0)), (sMSK, "0xffff0000")):
    e(f"s_mov_b32 s{r}, {v}")
sum_terms(sF0, (sM, 4096), (sW, 256), WS_FL)
sum_terms(sFL, (sG, 4), (sF0, 1))
sum_terms(sF1, (sM, 4096), (sG, 128), WS_FL + 1024)
e(f"s_add_u32 s{sF2}, s{sF1}, 1024"); e(f"s_add_u32 s{sF3}, s{sF1}, 2048")
sum_terms(sSTC, (sM, 4096), (sW, 1024), WS_SS)
sum_terms(sSTP, (sG, 128), (sSTC, 1))
sum_terms(sPP, (sM, 1 << 19), (sW, 1 << 17), (sG, 1 << 13))
sum_terms(sPC, (sM, 1 << 19), (sG, 1 << 16), (sW, 1 << 11))
e(f"s_lshl_b32 s{sHO}, s{sG}, 18")
if OWN:
    for u in range(2):
        e(f"s_lshl1_add_u32 s{sT}, s{sW}, {u}"); e(f"s_cmp_eq_u32 s{sT}, s{sG}"); e(f"s_cselect_b32 s{sPO[u]}, 0x7f000000, 0")
e(f"s_and_b32 s{sKS}, s{sG}, 6"); e(f"s_lshl_b32 s{sKS}, s{sKS}, 1"); e(f"s_lshr_b32 s{sT}, s{sW}, 1"); e(f"s_add_u32 s{sKS}, s{sKS}, s{sT}")
e(f"s_and_b32 s{sTB}, s{sG}, 1"); e(f"s_lshl_b32 s{sTB}, s{sTB}, 1"); e(f"s_and_b32 s{sT}, s{sW}, 1"); e(f"s_add_u32 s{sTB}, s{sTB}, s{sT}")
sum_terms(sSTF, (sM, 4096), (sTB, 1024), WS_SS)
sum_terms(sXF, (sM, 65536), (sTB, 16384), (sKS, 64))
e(f"s_and_b32 s{sT}, s{sG}, 1"); sum_terms(sW3B, (sG, 448), (sT, 64)); sum_terms(sRS, (sW, 2048), RING)
e("v_lshrrev_b32 v6, 2, v0"); e("v_and_b32 v7, 3, v0"); e("v_lshlrev_b32 v7, 3, v7"); e("v_lshl_add_u32 v7, v6, 7, v7")
e("v_bfe_u32 v6, v0, 3, 2")
for nb in range(4):
    e(f"v_xor_b32 v10, {nb}, v6"); e("v_lshl_add_u32 v10, v10, 5, v7")
    e(f"v_add_u32 v{vAS+nb}, {RING + 32768}, v10")
    if QPERM:
        e("v_lshrrev_b32 v8, 2, v0"); e("v_and_b32 v9, 6, v8"); e("v_and_b32 v10, 3, v0"); e("v_xor_b32 v9, v9, v10")
        e(f"v_xor_b32 v9, {4*(nb>>1)}, v9"); e("v_lshlrev_b32 v9, 4, v9"); e("v_lshl_add_u32 v10, v8, 7, v9")
        if nb & 1: e("v_add_u32 v10, 8, v10")
    e(f"v_add_u32 v{vAA+nb}, s{sRING}, v10"); e(f"v_add_u32 v{vAA2+nb}, 0x10000, v{vAA+nb}")
e("v_xor_b32 v9, v2, v1")
for s in range(4):
    e(f"v_xor_b32 v10, {4*s}, v9"); e("v_lshlrev_b32 v10, 4, v10"); e(f"v_lshl_add_u32 v{KA(s)}, v1, 8, v10")
e("v_lshrrev_b32 v9, 2, v0"); e("v_lshlrev_b32 v10, 8, v9"); e("v_and_b32 v11, 3, v0")
e("v_lshl_add_u32 v10, v11, 3, v10"); e(f"v_add_u32 v10, {VOFF}, v10"); e("v_and_b32 v9, 7, v9")
for db in range(8):
    e(f"v_xor_b32 v11, {db}, v9"); e(f"v_lshl_add_u32 v{VA(db)}, v11, 5, v10")
e(f"v_lshl_add_u32 v10, v2, 8, s{sW4K}")
for i in range(4):
    e(f"v_add_u32 v9, {4*i}, v2"); e("v_xor_b32 v11, v9, v1"); e(f"v_lshl_add_u32 v{KG(i)}, v11, 4, v10")
    if i < 2:
        e("v_lshlrev_b32 v9, 1, v9"); e("v_xor_b32 v11, v9, v1"); e(f"v_lshl_add_u32 v{VG(i)}, v11, 4, v10")
e(f"v_lshlrev_b32 v{G12+8}, 4, v1")
if WQ0 < 512: touch_off(vTQ, 512 - WQ0, 8, 8192, [(sG, 1024), WQ0 * 8192], 7)
SLIM = O_("slim", 1)
touch_off(vTK, 256 if SLIM else 512, 1, 128, [(sG, 0)], 7)


def late_touch():
    P.vm(f"buffer_load_dword a255, v{vTK}, {srd(SK)}, 0 offen"); P.vm(f"buffer_load_dword a255, v{vTK}, {srd(SV)}, 0 offen")
    if not SLIM:
        P.vm(f"buffer_load_dword a255, v{vT1}, {srd(SW2)}, 0 offen")
        code_touch()


LTG = O_("ltg", 4)
XQ = O_("xq", 3)


w1t = [Tile(SW1, vDW1, k * 4 * 65536, 1024, True, 1 + k, "w1") for k in range(2)]
w2t = [Tile(SW2, vDW2, k * 4 * 65536, 1024, False, 2, ("w2", k)) for k in range(2)]
qt = [Tile(SWQ, vDWQ, (i // 2) * 64 * 8192 + (i % 2) * 128, 8192, True, i % 3, ("wq", i), kp=i // 2, nh=i % 2)
      for i in range(16)] + ([] if SLIM else [None, w2t[0]])
mt = [Tile(SW3, vDW2, kp * 64 * 3584, 3584, False, (2 - i) % 3, ("w3", kp), kp=kp)
      for i, kp in enumerate((4, 5, 6, 7, 0, 1, 2, 3))]
mt += [Tile(SW4, vDW4, (i // 2) * 65536 + (i % 2) * 128, 1024, False, (2 - 8 - i) % 3, ("w4", i), kp=i // 2, nh=i % 2)
       for i in range(8)]
ot = [Tile(SWO, vDWO, ((kp & 1) * 256 + (kp >> 1) * 32) * 1024 + nh * 128, 1024, False, (nh * 8 + i + 2) % 3,
           ("wo", nh, kp), kp=kp, nh=nh, half=128)
      for nh in range(2) for i, kp in enumerate(range(8) if nh == 0 else (2, 3, 4, 0, 5, 1, 6, 7))]

a = G12


def quad_sum(regs):
    for qp in ("[1,0,3,2]", "[2,3,0,1]"):
        for r in regs: e(f"v_add_f32_dpp v{r}, v{r}, v{r} quad_perm:{qp} row_mask:0xf bank_mask:0xf")


def ln_stats(lo, hi):
    for i in range(lo, hi):
        c = lambda r: f"v{r}" if i >= 2 else 0
        e(f"v_dot2_f32_bf16 v{a + i % 2}, v{XR+i}, s{sONE2}, {c(a + i % 2)}", need=[("x", i // 4)])
        e(f"v_dot2_f32_bf16 v{a + 2 + i % 2}, v{XR+i}, v{XR+i}, {c(a + 2 + i % 2)}")


def unpack(k):
    for i in range(4 * k, 4 * k + 4):
        e(f"v_lshlrev_b32 v{2*i}, 16, v{XR+i}"); e(f"v_and_b32 v{2*i+1}, s{sMSK}, v{XR+i}")


def ln_rest():
    ln_stats(32, 64)
    e(f"v_add_f32 v{a}, v{a}, v{a+1}"); e(f"v_add_f32 v{a+2}, v{a+2}, v{a+3}")
    quad_sum([a, a + 2])
    e(f"v_mul_f32 v{a+4}, {f2u(-1/512)}, v{a}"); e(f"v_mul_f32 v{a+2}, {f2u(1/512)}, v{a+2}")
    e(f"v_fma_f32 v{a}, -v{a+4}, v{a+4}, v{a+2}"); e(f"v_max_f32 v{a}, 0, v{a}")
    e(f"v_add_f32 v{a+1}, {f2u(EPS)}, v{a}")
    e(f"v_rsq_f32 v{vRSTD}, v{a+1}")
    unpack(8)
    e(f"v_mul_f32 v{a+2}, {f2u(QSCALE)}, v{vRSTD}"); e(f"v_mul_f32 v{a+3}, v{a+4}, v{a+2}")
    for k in range(17):
        if k < 16:
            for i in range(4 * k, 4 * k + 4):
                e(f"v_pk_fma_f32 {vr(2*i,2)}, {vr(2*i,2)}, {vr(a+2,2)}, {vr(a+2,2)} op_sel:[0,0,1] op_sel_hi:[1,0,1]")
        if k: P.lds(f"ds_write_b128 v{vWA + (k-1)//8}, {vr(XR+4*k-4,4)} offset:{((k-1)%8)*4096}", "xw")
        if k % 2 == 0 and 9 + k // 2 < 16: unpack(9 + k // 2)
        if k < 16:
            for i in range(4 * k, 4 * k + 4): e(f"v_cvt_pk_bf16_f32 v{XR+i}, v{2*i}, v{2*i+1}")
    e(f"v_mul_f32 v{a}, v{a}, v{vRSTD}"); e(f"v_mul_f32 v{a}, v{a}, v{vRSTD}")
    e(f"v_add_f32 v{a}, {f2u(EPS)}, v{a}")
    e(f"v_rsq_f32 v{vSC1}, v{a}")
    e(f"v_mul_f32 v{vRSTD}, s{sC2}, v{vRSTD}")
    e(f"v_mul_f32 v{vSC1}, {f2u(GA_/QSCALE)}, v{vSC1}")
    e(f"v_mul_f32 v{vNMEAN}, v{a+4}, v{vRSTD}")
    e(f"v_add_u32 v{vWA}, s{sW1K}, v{vBX}")


if SSET == "ln": stamp(0)
P.put(hop(O_("hop00", 1)))
wq_rest = lambda: P.vm(f"buffer_load_dword a255, v{vTQ}, {srd(SWQ)}, 0 offen{ENT}") if WQ0 < 512 else None
if LTG == 4: XQ = 4
if XQ == 0: wq_rest()
if LTG == 0: late_touch()
for i in range(8):
    P.vm(f"buffer_load_dwordx4 {vr(XR+32+4*i,4)}, v{G12+13}, {srd(SX)}, 0 offen offset:{i*64}", ("x", 8 + i))
if XQ == 1: wq_rest()
if LTG == 1: late_touch()
if SSET == "ln": stamp(0)
P.put(hop(O_("hop0", 1)))
for k in range(8):
    ln_stats(4 * k, 4 * k + 4); unpack(k)
if O_("hop1", 1): P.put(hop(O_("hop1", 1)))
stamp(2)
if SSET == "ln":
    stamp(0); P.wait([("x", 15)]); stamp(0)
code = cap(ln_rest)
if "l" in opt.get("cut", ""): code = [it for it in code if not (it.t or "").startswith(("v_pk_fma", "v_cvt", "v_lshlrev", "v_and"))]
k = O_("lnat", 40)
P.puts(code[:k])
Q0LN = O_("q0ln", 1)
side = [x + y for t in w1t + qt[:Q0LN] for x, y in t.dma()]
if LTG == 4:
    j = O_("ltpos", 24)
    side[j:j] = [[it] for it in cap(wq_rest) + cap(late_touch)]
interleave(code[k:], side, O_("lnev", 9))
if SSET == "ln":
    stamp(0); P.wait(["w1"]); stamp(0)
for r in (vNMEAN, vRSTD, vSC1): P.lds(f"ds_bpermute_b32 v{r}, v{G12+8}, v{r}", "stat")
xb = [It(f"ds_read_b128 {ar(4*ks,4)}, v{vWA} offset:{ks*4096}", "l", ("xb", ks)) for ks in range(16)]
P.puts(xb[:8])
stamp(2)
P.wait(["xw", "w1"]); e("s_barrier")
stamp()
if SSET == "ln": stamp(0)

g1 = lambda h: shared_ops(range(8 * h, 8 * h + 8), 0, lambda nb: vr(G12 + 4 * nb, 4), True, lambda i: 160 + (i % 16) * 4,
                          lambda ks: ar(4 * ks, 4), lambda ks: [("xb", ks)], "g1", 32 * h)
ops = g1(0) + g1(1)
gaps = {g: [] for g in range(64)}
add1 = lambda g, it: gaps[g].append(it)
for i in range(6, 64): gaps[i - 6] += ops[i][1]
for k in range(8): add1(2 + 3 * k, xb[8 + k])
if not Q0LN:
    for k, grp in enumerate(qt[0].dma()): place(add1, 1 + 3 * k, grp, 3 * k - 2)
for k, it in enumerate((cap(wq_rest) if XQ == 3 else []) + (cap(late_touch) if LTG == 3 else [])): add1(O_("ltat", 0) + 2 * k, it)
add1(31, It("s_barrier", "s"))
for k, grp in enumerate(qt[1].dma()): place(add1, 34 + 3 * k, grp, 31 + 3 * k)
ACC = lambda nh, nb, tb: ((nh * 4 + tb) * 4 + nb) * 4
op = gemm(qt, 0, 16, ACC, [], (64, 96), breg=vBX, opening="get")
for k, it in enumerate(op[4:12]): add1(40 + 2 * k, it)
for k, it in enumerate(op[:4] + op[12:]): add1(58 + k // 2, it)
for i in range(6): P.puts(ops[i][1])
P.run_gaps([m for m, _ in ops], gaps, next_need=[op[0].tag, op[4].tag])
stamp()



def q_side():
    x, t = G12, XR
    P.put(gate(0, 8))
    for i in range(16): e(f"v_mul_f32 v{x+i}, v{x+i}, v{vSC1}", need=["stat"])
    for i in range(16): e(f"v_fma_f32 v{t+i}, -v{x+i}, v{x+i}, -s{sC1}")
    for i in range(16): e(f"v_mul_f32 v{t+i}, v{t+i}, v{x+i}")
    for i in range(16): e(f"v_exp_f32 v{t+i}, v{t+i}", k="v")
    for i in range(16): e(f"v_add_f32 v{t+i}, 1.0, v{t+i}")
    for i in range(16): e(f"v_rcp_f32 v{t+i}, v{t+i}", k="v")
    for i in range(16): e(f"v_mul_f32 v{t+i}, v{t+i}, v{x+i}")
    for i in range(8): e(f"v_cvt_pk_bf16_f32 v{t+16+i}, v{t+2*i}, v{t+2*i+1}")
    e(f"v_lshrrev_b32 v{t}, 5, v{vBA}"); e(f"v_and_b32 v{t+1}, 128, v{vLANE}"); e(f"v_lshl_add_u32 v{t}, v{t}, 10, v{t+1}")
    e(f"v_mov_b32 v{t+1}, 0"); e(f"v_mov_b32 v{t+2}, -1"); e(f"v_mov_b32 v{t+3}, -1"); e(f"v_lshrrev_b32 v{t+4}, 1, v{vBA}")
    for nb in range(4): e(f"v_add_u32 v{vAS+nb}, 32768, v{vAS+nb}")
    e(f"v_mov_b32 v{t+5}, {hex(((127 - OSH) << 7) * 0x10001)}")
    e(f"v_and_b32 v{t+6}, 0xe0, v{vBA}"); e(f"v_cmp_eq_u32 vcc, 0, v{t+6}"); e(f"v_cndmask_b32 v{t+5}, 0, v{t+5}, vcc")
    e(f"v_bfe_i32 v{t+6}, v{vBA}, 4, 1"); e(f"v_and_b32 v{t+6}, 0xaaaaaaaa, v{t+6}"); e(f"v_or_b32 v{t+6}, 0x44444444, v{t+6}")
    if STAMP: e(f"v_accvgpr_write_b32 a253, v{t+6}")
    e(f"v_mov_b32 v{vIDX}, v{t+6}")
    for i in range(16): e(f"v_accvgpr_write_b32 a{LACC(0)+i}, 0")
    for i in range(4): e(f"v_accvgpr_write_b32 a{aONES+i}, v{t+5}")

    P.put(gate(0, O_("hgate", 13 * 32 + 23)))
    if LTG == 2: late_touch()
    for s in range(2):
        e(f"s_add_u32 s{sSF}, s{sHO}, {WS_H + s*PLANE}")
        P.vm(f"buffer_store_dwordx4 {vr(t+16+4*s,4)}, v{vTOK}, {srd(SWS)}, s{sSF} offen sc1", "hst")
    masked(255, f"buffer_store_dword v{t+1}, v{t}, {srd(SWS)}, s{sFL} offen sc1", "hst")
    masked(0xffff, f"buffer_store_dwordx2 {vr(t+2,2)}, v{t+4}, {srd(SWS)}, s{sSTP} offen sc1", "hst")


fill = cap(q_side)
pending = qt[2].dma()
gemm(qt, 0, 16, ACC, pending, (64, 96), breg=vBX, fill=fill, opening="done", extra={1: [It("s_barrier", "s")]}, dma0=2)
assert not fill and not pending
e("s_barrier")
stamp()


def q_pack():
    for tb in range(4):
        for s in range(4):
            b = ACC(s // 2, 2 * (s % 2), tb)
            for j in range(4): e(f"v_cvt_pk_bf16_f32 v{Q(tb,s)+j}, v{b+2*j}, v{b+2*j+1}")
        for sw in () if QPERM else ("v_permlane32_swap_b32", "v_permlane16_swap_b32"):
            for s in range(4):
                for j in range(2): e(f"{sw} v{Q(tb,s)+j}, v{Q(tb,s)+2+j}")


early = (("K", 0), ("K", 1)) if QPERM else (("K", 0), ("K", 1), ("V", 0))
interleave(cap(q_pack), [x + y for k in early for x, y in kv_dma(*k)], 8 if QPERM else 10)
P.wait(["hst", ("K", 0)]); e("s_barrier")
stamp()

for f in range(8): P.puts(frag_reads(-1, f))
gaps = {g: [] for g in range(64)}
for k, grp in enumerate(kv_dma("V", 0) if QPERM else kv_dma("K", 2)): place(add1, 2 + 4 * k, grp, -1)
P.run_gaps([m for m, _ in qk_mfmas(-1, zero=True)[:16]], gaps)
for f in range(8, 12): P.puts(frag_reads(-1, f))
for qb in range(4): e(f"v_max3_f32 v{NM(qb)}, v{S(0,0,qb)}, v{S(0,0,qb)+1}, v{S(0,0,qb)+2}")
for qb in range(4): e(f"v_max_f32 v{NM(qb)}, v{NM(qb)}, v{S(0,0,qb)+3}")
allreduce("v_max_f32", [NM(qb) for qb in range(4)], [NM(qb) + 1 for qb in range(4)])
e(f"s_mov_b32 s{sT}, {f2u(float(opt.get('pd', -25.4)))}")
for qb in range(4):
    for i in (1, 2, 3, 0): e(f"v_sub_f32 v{NM(qb)+i}, s{sT}, v{NM(qb)}")


def first_half(shift, gates):
    for kb in range(2):
        P.put(gate(0, gates[kb]))
        for qb in range(4):
            b = S(0, kb, qb)
            if shift and not kb:
                for j in range(4): e(f"v_add_f32 v{b+j}, v{b+j}, v{NM(qb)}")
            for j in range(4): e(f"v_exp_f32 v{b+j}, v{b+j}")
        for qb in range(4):
            b = S(0, kb, qb)
            for j in range(2): e(f"v_cvt_pk_bf16_f32 v{PR(0,0,qb)+2*kb+j}, v{b+2*j}, v{b+2*j+1}")


gaps = {g: [] for g in range(64)}
for f in range(12, 16): gaps[16 + (f - 12)] += frag_reads(-1, f)
add1(30, It(None, "s", need=[("K", 1)])); add1(31, It("s_barrier", "s"))
for f in range(4):
    gaps[32 + f] += frag_reads(0, f); issued.add((0, f))
if QPERM:
    for k, grp in enumerate(kv_dma("K", 2) + kv_dma("V", 1) + kv_dma("K", 3)): place(add1, 2 + 4 * k, grp, 4 * k - 2)
else:
    for k, grp in enumerate(kv_dma("V", 1) + kv_dma("K", 3)): place(add1, 3 + 6 * k, grp, 6 * k - 3)
fill = cap(first_half, True, (0, 20))
P.run_gaps([m for m, _ in qk_mfmas(-1)[16:]], gaps, fill)
P.drain(fill)
e(f"v_mov_b32 v{T}, 1"); e(f"s_lshl_b32 s{sSF}, s{sM}, 3")
e(f"s_cmp_lg_u32 s{sW}, 0"); e("s_cbranch_scc1 L_noarr"); e("s_mov_b64 exec, 1")
e(f"buffer_atomic_add v{T}, off, {srd(SDBG)}, s{sSF} sc1"); e("s_mov_b64 exec, -1")
lab("L_noarr")
P.wait([("K", 2), ("V", 0)] + [("F", 0, f) for f in range(4)]); e("s_barrier")
stamp()

p_h = flag_poll("h", SDBG, 0, 8)
p_x = flag_poll("x1", SWS, f"s{sF0}", 1)
p_st = Poll("st", [f"buffer_load_dwordx2 {vr(T+2*j,2)}, v{vPA}, {srd(SWS)}, s{(sSTC, sSTF)[j//2]} offen offset:{128*(j%2)} sc1"
                   for j in range(4)],
            [f"v_max3_u32 v{T+8}, v{T}, v{T+1}, v{T+2}", f"v_max3_u32 v{T+8}, v{T+8}, v{T+3}, v{T+4}",
             f"v_max3_u32 v{T+8}, v{T+8}, v{T+5}, v{T+6}", f"v_max_u32 v{T+8}, v{T+8}, v{T+7}",
             f"v_cmp_eq_u32 vcc, -1, v{T+8}"])
p_ph, p_s0, p_s1 = (flag_poll(n, SWS, f"s{r}", 1) for n, r in (("ph", sF1), ("s0", sF2), ("s1", sF3)))


pieces = [(nh, tb, s) for nh in range(2) for tb in range(4) for s in range(2)]


def x_offset(d, bits=11):
    e(f"v_bfe_u32 v{d}, v{vTOK}, 4, {bits}"); e(f"v_lshlrev_b32 v{d}, 10, v{d}")
    e(f"v_bfe_u32 v{d+1}, v{vBA}, 8, 2"); e(f"v_lshl_add_u32 v{d}, v{d+1}, 3, v{d}")


def paced(t, g, step, fns):
    for k, fn in enumerate(fns):
        p = g + k * step
        P.put(gate(t + p // NIT, p % NIT)); fn()


def h_loads(half, t, g):
    e(f"v_bfe_u32 v{T}, v{vTOK}, 4, 11")
    for k, d in enumerate(((-1, 1), (-2, 2))[half]):
        e(f"v_add_u32 v{T+1}, {d}, v{T}"); e(f"v_cmp_gt_u32 vcc, 0x800, v{T+1}")
        e(f"v_add_u32 v{T+1}, {16*d}, v{vTOK}"); e(f"v_mov_b32 v{T+2+k}, 0x7f000000")
        e(f"v_cndmask_b32 v{T+2+k}, v{T+2+k}, v{T+1}, vcc")

    def one(ks):
        e(f"s_mov_b32 s{sSF}, {WS_H + ks*PLANE}")
        P.vm(f"buffer_load_dwordx4 {ar(HB(ks),4)}, v{T + 2 + (ks%8)//4}, {srd(SWS)}, s{sSF} offen sc1", ("h", ks))
    paced(t, g, O_("hstep", 18), [lambda ks=ks: one(ks) for ks in range(8 * half, 8 * half + 8)])


def acc_offset():
    P.lds(f"ds_read_b64_tr_b16 {vr(T+4,2)}, v{VA(0)}", "v0")
    P.put(gate(0, 9))
    for j in range(2):
        e(f"v_lshlrev_b32 v{T+2*j}, 17, v{T+4+j}", need=["v0"]); e(f"v_lshlrev_b32 v{T+2*j+1}, 1, v{T+4+j}")
    for r in (8, 4, 2, 1):
        for j in range(4): e(f"v_max_u32_dpp v{T+j}, v{T+j}, v{T+j} row_ror:{r} row_mask:0xf bank_mask:0xf")
    e(f"v_min3_u32 v{T}, v{T}, v{T+1}, v{T+2}"); e(f"v_min_u32 v{T}, v{T}, v{T+3}")
    allreduce("v_min_u32", [T], [T + 1], k="v")
    e(f"v_lshrrev_b32 v{T}, 24, v{T}"); e(f"v_lshlrev_b32 v{T}, 23, v{T}"); e(f"v_mul_f32 v{T}, {f2u(1.5 * 2.0**OB)}, v{T}")
    for i in range(4): e(f"v_accvgpr_write_b32 a{GA(0)+i}, v{T}")
    e(f"v_readfirstlane_b32 s{sOB}, v{T}")


def side1():
    if SLIM:
        code_touch(); P.vm(f"buffer_load_dword a255, v{vT1}, {srd(SW2)}, 0 offen")
    P.put(gate(0, 64))
    x_offset(T + 5); e(f"s_lshl_b32 s{sSF}, s{sG}, 7")
    for nb in range(4):
        P.vm(f"buffer_load_dwordx2 {vr(T+6+2*nb,2)}, v{T+5}, {srd(SX)}, s{sSF} offen offset:{nb*32}", "xs")
    e(f"v_lshrrev_b32 v{T}, 4, v{vBA}"); e(f"v_min_u32 v{T}, 2, v{T}"); e(f"v_add_u32 v{T}, s{sM}, v{T}")
    e(f"v_add_u32 v{T}, -1, v{T}"); e(f"v_med3_i32 v{T}, v{T}, 0, 31"); e(f"v_lshlrev_b32 v{vPA}, 3, v{T}")
    if O_("kvt1", 0):
        touch_off(T, (T0 - 5) * 128, 1, 128, [(sG, 0), 5 * 16384], T + 1)
        P.vm(f"buffer_load_dword a255, v{T}, {srd(SK)}, 0 offen"); P.vm(f"buffer_load_dword a255, v{T}, {srd(SV)}, 0 offen")
    P.put(gate(2, 0))
    p_h.issue()
    for i in range(8):
        d = T + 2 * (i % 2)
        e(f"v_lshlrev_b32 v{d}, 16, v{T+6+i}", need=["xs"]); e(f"v_and_b32 v{d+1}, 0xffff0000, v{T+6+i}")
        for h in range(2): e(f"v_fma_f32 v{d+h}, v{d+h}, v{vRSTD}, v{vNMEAN}")
        for h in range(2): e(f"v_accvgpr_write_b32 a{aG2+2*i+h}, v{d+h}")
    P.put(gate(3, 0))
    p_h.check(); h_loads(0, 3, 30)
    P.put(gate(6, 0))
    h_loads(1, 6, 24)
    sum_terms(sT, (sW, 128), (sW3B, 1)); dma_voff(vDW2, 3584, False, f"s{sT}", T)
    P.put(gate(8, NIT + 28))
    m, q = vRSTD, vNMEAN
    for i in range(16): e(f"v_accvgpr_read_b32 v{T+i}, a{aG2+i}")
    e(f"v_add_f32 v{m}, v{T}, v{T+1}"); e(f"v_mul_f32 v{q}, v{T}, v{T}")
    for i in range(1, 16):
        e(f"v_fmac_f32 v{q}, v{T+i}, v{T+i}")
        if i > 1: e(f"v_add_f32 v{m}, v{m}, v{T+i}")
    allreduce("v_add_f32", [m, q], [T, T + 1], k="v")
    e(f"v_lshrrev_b32 v{T}, 1, v{vBA}"); e(f"v_min_u32 v{m}, -2, v{m}"); e(f"v_min_u32 v{q}, -2, v{q}")
    masked(0xffff, f"buffer_store_dwordx2 {vr(m,2)}, v{T}, {srd(SWS)}, s{sSTP} offen sc1")
    code_touch()
    e(f"v_and_b32 v{T}, 0xf0, v{vBA}"); e(f"v_lshrrev_b32 v{T}, 1, v{T}"); e(f"v_and_b32 v{T+1}, 0x300, v{vBA}")
    e(f"v_add_u32 v{vPA}, v{T}, v{T+1}")
    P.put(gate(11, 70))
    p_st.issue()
    P.put(gate(12, 60))
    p_st.check()
    u, r = T + 15, T + 16
    e(f"v_add_f32 v{u}, v{T}, v{T+2}"); e(f"v_add_f32 v{r}, v{T+1}, v{T+3}")
    e(f"v_add_f32 v{q}, v{T+4}, v{T+6}"); e(f"v_add_f32 v{m}, v{T+5}, v{T+7}")
    allreduce("v_add_f32", [u, r, q, m], [T, T + 1, T + 2, T + 3], k="v")
    for x in (u, r, q, m): e(f"v_mul_f32 v{x}, {f2u(1/512)}, v{x}")
    for x, y in ((u, r), (q, m)):
        e(f"v_fma_f32 v{y}, -v{x}, v{x}, v{y}"); e(f"v_max_f32 v{y}, 0, v{y}")
        e(f"v_mul_f32 v{y}, {f2u(GA_**-2)}, v{y}"); e(f"v_add_f32 v{y}, {f2u(EPS)}, v{y}")
    e(f"v_rsq_f32 v{r}, v{r}", k="v"); e(f"v_sqrt_f32 v{m}, v{m}", k="v")
    for i in range(15): e(f"v_accvgpr_read_b32 v{T+i}, a{aG2+i}")
    e(f"v_mul_f32 v{u}, v{u}, v{r}")
    for i in range(15): e(f"v_fma_f32 v{T+i}, v{T+i}, v{r}, -v{u}")
    e(f"v_cvt_pk_bf16_f32 v{T}, v{T}, v{T+1}"); e(f"v_cvt_pk_bf16_f32 v{T+1}, v{T+2}, v{T+3}")
    e(f"v_accvgpr_read_b32 v{T+3}, a{aG2+15}"); e(f"v_fma_f32 v{u}, v{T+3}, v{r}, -v{u}")
    for i in range(2, 8): e(f"v_cvt_pk_bf16_f32 v{T+i}, v{T+2*i}, v{T+2*i+1}")
    for s in range(2):
        e(f"s_add_u32 s{sSF}, s{sHO}, {WS_X1 + s*PLANE}")
        P.vm(f"buffer_store_dwordx4 {vr(T+4*s,4)}, v{vTOK}, {srd(SWS)}, s{sSF} offen sc1", "x1st")
    e(f"v_bfe_u32 v{vPA}, v{vBA}, 4, 3"); e(f"v_lshlrev_b32 v{vPA}, 2, v{vPA}")
    P.put(gate(15, 40))
    set_flags(0, 1, ["x1st"])
    touch_off(T, 512, 4, 3584, [(sW3B, 1)], T + 1)
    P.vm(f"buffer_load_dword a255, v{T}, {srd(SW3)}, 0 offen")
    touch_off(T, 2048, 1, 128, [(sW3B, 512)], T + 1)
    P.vm(f"buffer_load_dword a255, v{T}, {srd(SW4)}, 0 offen")
    sum_terms(sT, (sW, 256)); dma_voff(vDW4, 1024, False, f"s{sT}", T)
    sum_terms(sT, (sG, 1 << 19)); e(f"v_add_u32 v{vDWO}, s{sT}, v{vDW4}")
    sum_terms(sT, (sW3B, 512)); e(f"v_add_u32 v{vDW4}, s{sT}, v{vDW4}")
    e(f"s_and_b32 s{sT}, s{sG}, 1"); e(f"s_sub_u32 s{sT}, 4, s{sT}"); e(f"s_mul_i32 s{sT}, s{sT}, s{sW}")
    for nb in range(4):
        e(f"s_and_b32 s{sT+1}, s{sT}, 3"); e(f"s_lshl_b32 s{sT+1}, s{sT+1}, 5"); e(f"v_xor_b32 v{vAA2+nb}, s{sT+1}, v{vAS}")
        e(f"s_lshr_b32 s{sT+1}, s{sT}, 2"); e(f"s_lshl_b32 s{sT+1}, s{sT+1}, 13"); e(f"v_add_u32 v{vAA2+nb}, s{sT+1}, v{vAA2+nb}")
        e(f"v_add_u32 v{vAA+nb}, 0xffff0000, v{vAA2+nb}"); e(f"s_add_u32 s{sT}, s{sT}, 1")
    P.put(gate(17, 60))
    p_x.issue(); code_touch()
    P.put(gate(18, 60))
    p_x.check()
    if XREG:
        def one(ks):
            e(f"s_mov_b32 s{sSF}, {WS_X1 + ks*PLANE}")
            P.vm(f"buffer_load_dwordx4 {ar(aG2 + 4*(ks-4),4)}, v{vTOK}, {srd(SWS)}, s{sSF} offen sc1", "xnl")
        paced(18, 70, 14, [lambda ks=ks: one(ks) for ks in range(4, 8)])
    P.put(gate(19, 0))
    if O_("kvt", 1):
        touch_off(T + 8, (32 - T0) * 128, 1, 128, [(sG, 0), T0 * 16384], T + 9)
        P.vm(f"buffer_load_dword a255, v{T+8}, {srd(SK)}, 0 offen"); P.vm(f"buffer_load_dword a255, v{T+8}, {srd(SV)}, 0 offen")
    if XREG:
        e(f"v_add_u32 v{T+9}, s{sW1K}, v{vBA}")
        paced(T0 - 1, 34, 6, [lambda ks=ks: P.lds(f"ds_write_b128 v{T+9}, {ar(aG2 + 4*(ks-4),4)} offset:{ks*4096}", ("xn", 1), need=["xnl"])
                              for ks in range(4, 8)])


def x1n_dma(j):
    return [([It(f"s_add_u32 m0, s{sW1K}, {ks*4096}", "s"), It(f"s_mov_b32 s{sSO}, {WS_X1 + ks*PLANE}", "s")],
             [It(f"buffer_load_dwordx4 v{vTOK}, {srd(SWS)}, s{sSO} offen sc1 lds", "g", ("xn", j), need=["x1"])])
            for ks in range(4 * j, 4 * j + 4)]


def run_tiles(t0, t1, fill, over, more, endw, ins, must, xtra={}):
    end = T0 - 1 if t0 < T0 else 31
    for t in range(t0, t1):
        groups = (kv_dma("K", t + 4) if t + 4 <= end else []) + (kv_dma("V", t + 3) if t + 3 <= end else [])
        groups = over.get(t, groups) + more.get(t, [])
        attn_iter(t, groups, fill, endw.get(t, ()), ins=ins.get(t), extra=xtra.get(t))
        head = fill[0].at if fill else (99, 0)
        if O_("showfill", 0): print(t, len(fill), head, file=sys.stderr)
        if t in must: assert head and head[0] >= must[t], (t, head, len(fill))


g2 = lambda h: shared_ops(range(8 * h, 8 * h + 8), 8 * h, lambda nb: ar(aG2 + 4 * nb, 4), False, GA,
                          lambda ks: ar(HB(ks), 4), lambda ks: [("h", ks)], f"g2{h}")
op = gemm(mt, 0, 8, ACC, [], (160, 212), opening="get")
opx = {40 + 2 * k: [it] for k, it in enumerate(op[4:12])}
opx.update({58 + k: [it] for k, it in enumerate(op[:4] + op[12:])})
xtra = {T0 - 1: opx}
if OB:
    its = [it for it in cap(acc_offset) if it.at is None]
    xtra[0] = {1: its[:1]}
    for k, it in enumerate(its[1:]): xtra[0].setdefault(11 + (k * 50) // len(its), []).append(it)
fill = cap(side1)
kv = lambda *a: [g for k in a for g in kv_dma(k[0], int(k[1:]))]
run_tiles(0, T0, fill, {0: kv("V2", "K4", "V3")},
          {O_("w2it", 1): w2t[0].dma() if SLIM else [], 6: w2t[1].dma(), 18: mt[0].dma(), 19: x1n_dma(2) + x1n_dma(3),
           20: x1n_dma(0) + mt[1].dma(), 21: [] if XREG else x1n_dma(1)},
          {4: [("w2", 0)], 7: [("w2", 1)], 20: [("xn", 3), mt[0].tag]}, {5: g2(0), 8: g2(1)}, {4: 6, 7: 8, 17: 18, 18: 19, 21: 99}, xtra)
stamp()

class Extra:
    def __init__(self, groups): self.groups = groups
    def dma(self): return self.groups


def ph_pack(ks):
    for k in ks:
        pack(ACC, *pieces[k])
        for j in range(4): e(f"v_accvgpr_write_b32 a{PHA(k)+j}, v{ACC(pieces[k][0], 2*pieces[k][2], pieces[k][1])+j}")


def own_x1n(per):
    return {4 * per + 2: [It(f"s_lshl2_add_u32 s{sT}, s{sKS}, s{sTB}", "s")],
            4 * per + 6: [It(f"s_lshl_b32 s{sT}, s{sT}, 10", "s"), It(f"v_add_u32 v{T+9}, s{sT}, v{vBA}", "v")],
            7 * per + 3: [It(f"ds_read_b128 {ar(aXN,4)}, v{T+9}", "l", "xnr")],
            7 * per + 7: [It(f"ds_read_b128 {ar(aXN+4,4)}, v{T+9} offset:8192", "l", "xnr")]}


def mlp_tail(act, pending, nstep, bf):
    P.wait(["xnr"]); e("s_barrier")
    stamp()
    interleave(cap(act), [x + y for x, y in pending], 16)
    gemm_pre(mt, 8)
    P.wait(["hw"]); e("s_barrier")
    stamp()
    g = 32 * (nstep - 2)
    fill = [gate(0, g + 20)] + cap(ph_pack, (0, 2, 4, 6)) + [gate(0, g + 36)] + cap(ph_pack, (1, 3, 5, 7))
    pending = []
    gemm(mt[:8 + nstep] + [Extra(kv_dma("K", T0) + kv_dma("K", T0 + 1))], 8, nstep, ACC, pending, bf, fill=fill)
    assert not pending
    P.wait([("K", T0 + 1)]); e("s_barrier")
    stamp()
    for f in range(8): P.puts(frag_reads(T0 - 1, f))
    P.drain(fill)


def mlp_even():
    P.cmt("==== channel MLP, even groups: 256 hidden columns, one private weight tile per wave and step")
    extra = own_x1n(32)
    extra.update({1: [It("s_barrier", "s")], 2 * 32 + 26: [It(None, "s", need=[("xn", 0), ("xn", 1)])],
                  2 * 32 + 27: [It("s_barrier", "s")],
                  7 * 32 + 10: [It(f"s_lshl_b32 s{sT}, s{sW}, 13", "s"), It(f"v_add_u32 v{T+8}, s{sT}, v{vBA}", "v")]})
    pending = mt[2].dma()
    gemm(mt, 0, 8, ACC, pending, (160, 212), extra=extra, opening="done", dma0=2)

    def act():
        for tb in range(4):
            gelu(16 * tb, 16, 64 + 16 * tb, lambda i: 16 * tb + i, first=tb == 0)
            for s in range(2):
                P.lds(f"ds_write_b128 v{T+8}, {vr(16*tb + 4*s,4)} offset:{s*4096 + tb*1024}", "hw")
    mlp_tail(act, pending, 8, (160, 212))


def mlp_odd():
    P.cmt("==== channel MLP, odd groups: 192 hidden columns, three weight tiles per step shared by the four waves")
    AC3 = lambda nb, tb: (tb * 3 + nb) * 4
    af = lambda s, nb, ks: AF(2 * (nb + (nb == 2) * (s & 1)) + ks)
    bf = lambda s, ks, tb: ar((160, 212)[s & 1] + (ks * 4 + tb) * 4, 4)

    def a3(s, nb):
        t = mt[s]
        base, off = (vAA2, 0) if t.slot == 2 else (vAA, t.slot * 32768)
        return [It(f"ds_read_b64_tr_b16 {ar(af(s,nb,ks)+2*h,2)}, v{base+nb} offset:{off + ks*4096 + h*2048}", "l",
                   ("A", t.tag, nb)) for ks in range(2) for h in range(2)]

    def stage(s):
        t = mt[s]
        if s >= 8: return t.dma()
        return [(([It(f"s_add_u32 m0, s{sRS}, {t.slot*32768 + c*8192}", "s")] if i == 0 else []) +
                 [It(f"s_mov_b32 s{sSO}, {t.base + i*8*3584 + c*128 - i*1024}", "s")],
                 [It(f"buffer_load_dwordx4 v{vDW2}, {srd(SW3)}, s{sSO} offen offset:{i*1024} lds", "g", t.tag)])
                for c in range(3) for i in range(2)]

    REL, RAW, DS = O_("rel", 13), O_("raw", 13), O_("ds", 3)
    DG = {(REL + 1 + DS * k) % 24 for k in range(6)}
    ms, gaps = [], own_x1n(24)
    add = lambda g, it: gaps.setdefault(g, []).append(it)
    for s in range(8):
        t, g0 = mt[s], 24 * s
        for nb in range(3):
            for tb in range(4):
                for n, ks in enumerate(range(2) if not tb & 1 else range(1, -1, -1)):
                    d = vr(AC3(nb, tb), 4)
                    ms.append(It(f"{MF} {d}, {ar(af(s,nb,ks),4)}, {bf(s,ks,tb)}, {d if s or n else 0}", "m",
                                 need=[("A", t.tag, nb), ("B", mt[0].tag, s, tb)]))
        if s == 0:
            for k, it in enumerate(a3(0, 1)[2:] + a3(0, 2)): add((0, 0, 1, 1, 2, 2)[k], it)
        add(g0 + REL - 1, It(None, "s", need=[("A", t.tag, nb) for nb in range(3)]))
        add(g0 + REL, It("s_barrier", "s"))
        if s < 7:
            u = mt[s + 1]
            add(g0 + RAW - 1, It(None, "s", need=[u.tag] + ([("xn", 0), ("xn", 1)] if s == 2 else [])))
            if RAW != REL: add(g0 + RAW, It("s_barrier", "s"))
            c = [g for g in range(RAW + 1, 24) if g not in DG]
            rd = a3(s + 1, 0) + a3(s + 1, 2) + a3(s + 1, 1)
            for k, it in enumerate(rd): add(g0 + max(c[k * len(c) // 12], 16 if k >= 8 else 0), it)
            rd = [It(f"ds_read_b128 {bf(s+1,ks,tb)}, v{vBA} offset:{u.kp*8192 + ks*4096 + tb*1024}", "l",
                     ("B", mt[0].tag, s + 1, tb)) for tb in range(4) for ks in range(2)]
            c = [g for g in range(0 if s else 4, RAW + 1) if g not in DG]
            for k, it in enumerate(rd): add(g0 + c[k * len(c) // 8], it)
        add(g0 + 19, hop())
        if O_("jit2", 0): add(g0 + 4, jitter_item())
        if SSET == "odd": add(g0, stamp_item())
    if SSET == "odd": add(len(ms) - 1, stamp_item())
    add(0, It(f"s_mul_i32 s{sT}, s{sW}, {16*3584 - 128}", "s")); add(0, It(f"v_add_u32 v{vDW2}, s{sT}, v{vDW2}", "v"))
    add(1, It("s_barrier", "s"))
    pending, prev = stage(2), 1
    for g in range(3, len(ms)):
        if g % 24 == REL + 1: pending += stage(g // 24 + 3)
        if pending and g - prev >= 2 and (g % 24 in DG or len(pending) > 6 or g < REL):
            place(add, g, pending.pop(0), prev); prev = g
    HW = (T + 8, T + 9, T + 15)

    def addr():
        P.put(gate(0, 7 * 24 + 12))
        e(f"s_mul_i32 s{sT}, s{sW}, 3")
        for nb in range(3):
            e(f"s_lshr_b32 s{sT+1}, s{sT}, 1"); e(f"s_lshl_b32 s{sT+1}, s{sT+1}, 12"); e(f"s_and_b32 s{sT+2}, s{sT}, 1")
            e(f"s_lshl3_add_u32 s{sT+1}, s{sT+2}, s{sT+1}"); e(f"v_add_u32 v{HW[nb]}, s{sT+1}, v{vBA}"); e(f"s_add_u32 s{sT}, s{sT}, 1")
        e(f"s_sub_u32 s{sT}, s{sRING}, {RING + 65536}")
        for nb in range(4):
            e(f"v_add_u32 v{vAA+nb}, s{sT}, v{vAS+nb}"); e(f"v_add_u32 v{vAA2+nb}, 0x10000, v{vAA+nb}")
    fill = cap(addr)
    P.run_gaps(ms, gaps, fill, gmin=4)
    P.drain(fill)

    def act():
        for tb in range(4):
            gelu(12 * tb, 12, 64 + 12 * tb, lambda i: 12 * tb + i, first=tb == 0)
            for nb in range(3):
                P.lds(f"ds_write_b64 v{HW[nb]}, {vr(12*tb + 2*nb,2)} offset:{tb*1024}", "hw")
    mlp_tail(act, pending, 6, (212, 160))


e(f"s_bitcmp1_b32 s{sG}, 0"); e("s_cbranch_scc1 L_odd")
lab("L_even")
state = (list(P.lq), list(P.vq), set(P.used), set(P.ever), nstamp[0])
mlp_even()
after = (list(P.lq), list(P.vq), set(P.used), set(P.ever), nstamp[0])
main, P.L = P.L, []
P.lq, P.vq, P.used, P.ever, nstamp[0] = state
mlp_odd()
e("s_branch L_join")
assert (P.lq, P.vq) == after[:2] and (SSET or nstamp[0] == after[4]), (P.lq, P.vq, after[:2])
odd_text, P.L = P.L, main
P.lq, P.vq, P.used, P.ever, nstamp[0] = after
lab("L_join")
ph_pack(range(8, 10))
gaps = {g: [] for g in range(64)}
for f in range(8, 16): gaps[16 * (f // 4 - 1) + f % 4] += frag_reads(T0 - 1, f)
for f in range(4):
    gaps[48 + f] += frag_reads(T0, f); issued.add((T0, f))
for k, grp in enumerate(kv_dma("V", T0) + kv_dma("K", T0 + 2)): place(add1, 2 + 4 * k, grp, 4 * k - 2)
fill = cap(ph_pack, range(10, 14)) + cap(first_half, False, (20, 36)) + cap(ph_pack, range(14, 16))
P.run_gaps([m for m, _ in qk_mfmas(T0 - 1)], gaps, fill)
P.drain(fill)
P.wait([("K", T0 + 2), ("V", T0)] + [("F", T0, f) for f in range(4)]); e("s_barrier")
stamp()


XF = [244, 245, 246, 247, 248, 249, T + 10, T + 11]


def side2():
    paced(T0, 60, O_("sstep", 22), [lambda k=k: store_piece(ar(PHA(k), 4), WS_PH, *pieces[k], "phs") for k in range(16)])
    touch_off(T + 8, 4096, 1, 128, [(sG, 1 << 19)], T + 9)
    P.vm(f"buffer_load_dword a255, v{T+8}, {srd(SWO)}, 0 offen")
    code_touch()
    P.put(gate(25, O_("phf", 131))); set_flags(1, 2, ["phs"])
    x_offset(T + 8, 4)
    paced(26, 50, 20, [lambda i=i: P.vm(f"buffer_load_dwordx2 {vr(XF[2*i],2)}, v{T+8}, {srd(SX)}, s{sXF} offen "
                                        f"offset:{(i//2)*128 + (i%2)*32}", "xf") for i in range(4)])
    o_addr()
    PH0 = O_("ph0", 40)
    P.put(gate(27 + PH0 // NIT, PH0 % NIT)); p_ph.issue()
    paced(27, PH0 + 110, 1, [p_ph.check])
    paced(27, PH0 + 120, O_("lstep", 22), [lambda k=k: load_piece(WS_PH, ar(PHA(k), 4), k // 2, k % 2, "phl") for k in range(16)])


def o_addr():
    if not PA:
        e(f"v_add_u32 v{T+8}, s{sW4K}, v{vBA}")
        return
    x, y = vDW2, vDW4
    for d, (ro, rb), (co, cb) in ((T + 8, (4, 4), (8, 2)), (T + 9, (6, 4), (4, 2))):
        e(f"v_bfe_u32 v{x}, v{vBA}, {ro}, {rb}"); e(f"v_bfe_u32 v{d}, v{vBA}, {co}, {cb}")
        e(f"v_and_b32 v{y}, 1, v{x}"); e(f"v_xor_b32 v{d}, v{d}, v{y}")
        e(f"v_lshrrev_b32 v{y}, 3, v{x}"); e(f"v_lshlrev_b32 v{y}, 1, v{y}"); e(f"v_xor_b32 v{d}, v{d}, v{y}")
        e(f"v_and_b32 v{y}, 6, v{x}"); e(f"v_lshl_add_u32 v{d}, v{y}, 1, v{d}")
        e(f"v_lshlrev_b32 v{d}, 3, v{d}"); e(f"v_lshl_add_u32 v{d}, v{x}, 7, v{d}")
    e(f"v_add_u32 v{T+8}, s{sW4K}, v{T+8}")


fill = cap(side2)
run_tiles(T0, 31, fill, {T0: kv(f"V{T0+1}", f"K{T0+3}", f"K{T0+4}", f"V{T0+2}"), T0 + 1: kv(f"K{T0+5}", f"V{T0+3}", f"V{T0+4}")}, {O_("wo0", 29): ot[0].dma(), 30: ot[1].dma()}, {}, {}, {30: 99})


vOW, vOR = 208, 212


def o_stage(k, st):
    s, qb = k // 4, k % 4
    b = 8 * (k % 8)
    if "o" in opt.get("cut", "") and k >= 8 and st < 3: return
    if "O" in opt.get("cut", "") and k >= 2: return
    if st == 0:
        for h in range(2):
            for j in range(4): e(f"v_accvgpr_read_b32 v{b+4*h+j}, a{O(2*s+h,qb)+j}")
    elif st == 1:
        for j in range(0, 8, 2):
            e(f"v_pk_fma_f32 {vr(b+j,2)}, {vr(b+j,2)}, {vr(NM(qb) + j%4,2)}, {vr(64 + 4*qb + j%4,2)} neg_lo:[0,0,1] neg_hi:[0,0,1]" if OB else
              f"v_pk_mul_f32 {vr(b+j,2)}, {vr(b+j,2)}, {vr(NM(qb) + j%4,2)}" if PA else
              f"v_pk_mul_f32 {vr(b+j,2)}, {vr(b+j,2)}, {vr(NM(qb),2)} op_sel_hi:[1,0]")
    elif st == 2:
        for j in range(4): e(f"v_cvt_pk_bf16_f32 v{b+j}, v{b+2*j}, v{b+2*j+1}")
    elif PA:
        P.lds(f"ds_write2st64_b64 v{vOW+qb}, {vr(b,2)}, {vr(b+2,2)} offset0:{32*s} offset1:{32*s+4}", "ow")
    else:
        P.lds(f"ds_write_b128 v{T+8}, {vr(b,4)} offset:{s*16384 + qb*1024}", "ow")


vL = 40


def row_sums():
    for qb in range(4):
        for j in range(2): e(f"v_accvgpr_read_b32 v{vL+2*qb+j}, a{LACC(qb)+j}")
    for qb in range(4): e(f"v_add_f32 v{vL+2*qb}, v{vL+2*qb}, v{vL+2*qb+1}")


def row_inverses():
    e(f"v_bfe_u32 v{vL+8}, v{vBA}, 8, 2"); e(f"v_lshlrev_b32 v{vL+8}, 4, v{vL+8}")
    for qb in range(4): e(f"v_rcp_f32 v{vL+2*qb}, v{vL+2*qb}")
    for qb in range(4):
        for r in range(4): P.lds(f"ds_bpermute_b32 v{NM(qb)+r}, v{vL+8}, v{vL+2*qb} offset:{4*r}", "rinv")


def vote():
    v = 56
    P.put(gate(31, 33))
    e(f"s_lshl_b32 s{sT+1}, s{sW}, 2"); e(f"s_add_u32 s{sT+1}, s{sT+1}, {RING + 32768}")
    e(f"v_mov_b32 v{v+4}, {f2u(-1.0 if FORCE_REDO else 2.0**64)}"); e(f"v_mov_b32 v{v+5}, s{sT+1}"); e(f"v_mov_b32 v{v+6}, {RING + 32768}")
    P.put(gate(31, 38))
    row_sums()
    e(f"v_maximum3_f32 v{v}, v{vL}, v{vL+2}, v{vL+4}"); e(f"v_maximum3_f32 v{v}, v{v}, v{vL+6}, v{vL+6}")
    e(f"v_cmp_nle_f32 vcc, v{v}, v{v+4}")
    e(f"s_cmp_lg_u64 vcc, 0\n    s_cselect_b32 s{sT}, 1, 0", k="v")
    e(f"v_mov_b32 v{v}, s{sT}")
    P.lds(f"ds_write_b32 v{v+5}, v{v}", "vote")
    inv = P.rec; k = len(inv) + 6
    row_inverses()
    inv[k:k] = [It(None, "s", need=["vote"]), It("s_barrier", "s"), It(f"ds_read_b128 {vr(v,4)}, v{v+6}", "l", "votes")]
    e(f"v_or3_b32 v{v}, v{v}, v{v+1}, v{v+2}", need=["votes"]); e(f"v_or_b32 v{v}, v{v}, v{v+3}")
    e(f"v_readfirstlane_b32 s{sT}, v{v}")


fill = cap(vote)
attn_iter(31, [], fill)
P.drain(fill)
e(f"s_cmp_lg_u32 s{sT}, 0"); e("s_cbranch_scc1 L_redo")
lab("L_att_done")
stamp()

if PA:
    for qb in range(4):
        e(f"v_xor_b32 v{vOW+qb}, {32*qb}, v{T+8}"); e(f"v_xor_b32 v{vOR+qb}, {32*qb}, v{T+9}")
o_stage(0, 0)
P.wait(["rinv"])
if OB:
    for i in range(16): e(f"v_mul_f32 v{64+i}, s{sOB}, v{vR+i}")
lag = [int(x) for x in opt.get("olag", "0,1,2,3").split(",")]
WG = O_("owg", 1)
for k in range(16 + lag[3] + WG):
    for st in range(3):
        if 0 <= k - lag[st] < 16 and k + st: o_stage(k - lag[st], st)
    if (k - lag[3]) % WG == WG - 1:
        for j in range(k - lag[3] - WG + 1, k - lag[3] + 1):
            if 0 <= j < 16: o_stage(j, 3)
if SSET == "o": stamp(0)
gemm_pre(ot, 0)
P.wait(["ow"]); e("s_barrier")
if SSET == "o": stamp(0)
stamp()
OACC = lambda nh, nb, tb: 64 + ACC(nh, nb, tb)
PSR = lambda g, nh: nh * 32 + g * 4


def o_side():
    if OWN:
        for u in range(2): e(f"v_or_b32 v{vPO+u}, s{sPO[u]}, v{vBA}")
        sum_terms(sPX, (sG, 8192), (sPC, 1), WS_PS)
    P.put(gate(0, 32 * 8 + 4))
    for p in pieces[:8]: pack(OACC, *p)
    for p, g in zip(pieces, [int(x) for x in opt.get("s0g", "440,448,456,464,472,480,488,496").split(",")]):
        P.put(gate(0, g))
        store_piece(vr(OACC(0, 2 * p[2], p[1]), 4), WS_PS, *p, "s0s")
    if O_("f0k", 3) < 0:
        P.put(gate(0, O_("f0g", 500))); set_flags(2, 2, ["s0s"])


fill = cap(o_side)
pending = ot[2].dma()
gemm(ot, 0, 16, OACC, pending, (0, 32, 64, 96, (vr, 0), (vr, 32))[:O_("obs", 6)], fill=fill, breg=vOR if PA else vBA, btr=PA)
P.drain(fill)
stamp()
P0K = O_("p0k", -1)
for k, p in enumerate(pieces[8:]):
    pack(OACC, *p); store_piece(vr(OACC(1, 2 * p[2], p[1]), 4), WS_PS, *p, "s1s")
    if k == O_("f0k", 3): set_flags(2, 2, ["s0s"])
    if k == P0K: p_s0.issue()
vY, vS, vG, vX = 64, 80, 96, 112


def gate_values():
    for i in range(8): e(f"v_accvgpr_read_b32 v{vG+i}, a{aXN+i}")
    for i in range(8):
        e(f"v_lshlrev_b32 v{vY+2*i}, 16, v{vG+i}"); e(f"v_and_b32 v{vY+2*i+1}, 0xffff0000, v{vG+i}")
    for i in range(16): e(f"v_fma_f32 v{vY+i}, v{vY+i}, v{vRSTD}, v{vNMEAN}")
    for k in range(17):
        if k < 16:
            for j in range(4): e(f"v_accvgpr_read_b32 v{vG + 4*(k%2) + j}, a{PHA(k)+j}", need=[("phl", k // 2, k % 2)])
        if k: add_piece(vY + 8 * ((k - 1) % 2), vG + 4 * ((k - 1) % 2), False, ())
    for i in range(16): e(f"v_mul_f32 v{vG+i}, s{sNL2E}, v{vY+i}")
    for i in range(16): e(f"v_exp_f32 v{vG+i}, v{vG+i}")
    e(f"s_mov_b32 s{sT}, {f2u(GA_ * 2.0**OSH)}")
    for i in range(16): e(f"v_fma_f32 v{vG+i}, v{vG+i}, s{sT}, s{sT}")
    for i in range(16): e(f"v_rcp_f32 v{vG+i}, v{vG+i}")
    for i in range(0, 16, 2): e(f"v_pk_mul_f32 {vr(vG+i,2)}, {vr(vG+i,2)}, {vr(vY+i,2)}")
    for i in range(8):
        e(f"v_lshlrev_b32 v{vX+2*i}, 16, v{XF[i]}", need=["xf"]); e(f"v_and_b32 v{vX+2*i+1}, 0xffff0000, v{XF[i]}")
    e(f"v_bfe_u32 v200, v{vTOK}, 4, 4"); e("v_lshlrev_b32 v200, 10, v200"); e(f"v_bfe_u32 v201, v{vBA}, 8, 2")
    e("v_lshl_add_u32 v200, v201, 4, v200")


if OWN:
    e(f"v_add_u32 v216, s{sRING}, v{vBA}")
    for u in range(2):
        e(f"s_cmp_eq_u32 s{sPO[u]}, 0"); e(f"s_cbranch_scc1 L_away{u}")
        for nh, tb, s in pieces:
            if tb >> 1 == u: e(f"ds_write_b128 v216, {vr(OACC(nh,2*s,tb),4)} offset:{((tb & 1) + 2*s)*2048 + nh*1024}")
        lab(f"L_away{u}")
    e(f"s_lshr_b32 s{sT}, s{sG}, 1"); sum_terms(sT + 1, (sT, 8192), (sW, 2048), RING); e(f"v_add_u32 v216, s{sT+1}, v{vBA}")
    P.wait_all(vm=False); e("s_barrier")
    for nh in range(2): P.lds(f"ds_read_b128 {vr(192+4*nh,4)}, v216 offset:{nh*1024}", "own")
code = cap(gate_values)
if OWN:
    for nh in range(2): code[40:40] = cap(add_piece, vS + 8 * nh, 192 + 4 * nh, True, ["own"])
k0, k1 = O_("gs0", 232), O_("gs1", 400)
P.puts(code[:k0])
if P0K < 0: p_s0.issue()
P.puts(code[k0:k1])
set_flags(3, 2, ["s1s"])
stamp(2)
p_s0.check()
for g in range(OWN, 8): load_piece(WS_PS, vr(PSR(g, 0), 4), g, 0, "psl")
p_s1.issue()
P.puts(code[k1:])


def finish(nh):
    for g in range(OWN, 8): add_piece(vS + 8 * nh, PSR(g, nh), g == 0, [("psl", g, nh)])
    for i in range(8 * nh, 8 * nh + 8, 2): e(f"v_pk_fma_f32 {vr(vG+i,2)}, {vr(vG+i,2)}, {vr(vS+i,2)}, {vr(vX+i,2)}")
    d = 204 + 4 * nh
    for i in range(4): e(f"v_cvt_pk_bf16_f32 v{d+i}, v{vG+8*nh+2*i}, v{vG+8*nh+2*i+1}")
    for sw in ("v_permlane32_swap_b32", "v_permlane16_swap_b32"):
        for j in range(2): e(f"{sw} v{d+j}, v{d+2+j}")
    P.vm(f"buffer_store_dwordx4 {vr(d,4)}, v200, {srd(SOUT)}, s{sXF} offen offset:{nh*128}")


p_s1.check()
stamp()
for g in range(OWN, 8): load_piece(WS_PS, vr(PSR(g, 1), 4), g, 1, "psl")
finish(0)
finish(1)
if AMP:
    P.wait_all(); stamp()
    e(f"s_sub_u32 s{sST}, s{sST+2}, s{sST}")
    e(f"s_lshr_b32 s{sST}, s{sST}, 5" if AMP[3] else f"s_lshl_b32 s{sST}, s{sST}, {AMP[2]}")
    if "ampsel" in opt:
        e(f"s_lshr_b32 s{sT}, {opt['ampsel']}, s{sG}"); e(f"s_and_b32 s{sT}, s{sT}, 1"); e(f"s_mul_i32 s{sST}, s{sST}, s{sT}")
    e(f"s_memrealtime {sr(sST+2,2)}"); e("s_waitcnt lgkmcnt(0)")
    lab("L_amp")
    e(f"s_memrealtime {sr(sST+4,2)}"); e("s_waitcnt lgkmcnt(0)")
    e(f"s_sub_u32 s{sST+4}, s{sST+4}, s{sST+2}"); e(f"s_cmp_lt_u32 s{sST+4}, s{sST}"); e("s_cbranch_scc1 L_amp")
if STAMP:
    P.wait_all()
    stamp()
    e(f"s_lshl_b32 s{sT}, s2, 2"); e(f"s_add_u32 s{sT}, s{sT}, s{sW}"); e(f"s_lshl_b32 s{sT}, s{sT}, 8")
    e(f"s_add_u32 s{sT}, s{sT}, {WS_ST}"); e(f"v_lshrrev_b32 v0, 2, v{vBA}")
    P.vm(f"buffer_store_dword a254, v0, {srd(SWS)}, s{sT} offen")
e("s_endpgm")

lab("L_side")
NPP = O_("npp", 1)
for p in slow_paths:
    lab(f"L_slow_{p.name}")
    if NPP > 1 and p.name in ("s0", "s1"):
        regs = [f"v{216 + i}" for i in range(NPP)]
        ld = lambda i: e(p.loads[0].replace(f"v{vPOLL},", regs[i % NPP] + ","))
        for i in range(NPP - 1):
            ld(i); e(f"s_sleep {O_('pps', 5)}")
        lab(f"L_spin_{p.name}")
        for i in range(NPP):
            ld(i + NPP - 1); e(f"s_waitcnt vmcnt({NPP - 1})")
            e(p.tests[0].replace(f"v{vPOLL}", regs[i])); e(f"s_cbranch_vccz L_back_{p.name}")
        e(f"s_add_u32 s{sSPIN}, s{sSPIN}, 1"); e(f"s_cmp_gt_u32 s{sSPIN}, 0x200000")
        e(f"s_cbranch_scc0 L_spin_{p.name}"); e(f"s_branch L_back_{p.name}")
        continue
    e("s_sleep 1")
    for l in p.loads: e(l)
    e(f"s_add_u32 s{sSPIN}, s{sSPIN}, 1")
    e("s_waitcnt vmcnt(0)")
    for t in p.tests: e(t)
    e(f"s_cmp_gt_u32 s{sSPIN}, 0x200000"); e(f"s_cbranch_scc1 L_back_{p.name}")
    e(f"s_cbranch_vccnz L_slow_{p.name}")
    e(f"s_branch L_back_{p.name}")

lab("L_redo")
P.lq, P.vq = [], []
e(f"s_mov_b32 s{sOB}, 0")
for s in range(4): e(f"v_add_u32 v{KA(s)}, 49152, v{KA(s)}")
for qb in range(4): e(f"v_mov_b32 v{NM(qb)}, 0xff800000")


def redo_tile(kinds, zero):
    P.used = set()
    P.wait_all(); e("s_barrier")
    for kind, lds in kinds: flush(kv_dma(kind, 0, lds=lds, so=f"s{sCNT}"))
    P.wait_all(); e("s_barrier")
    mf = [m for m, _ in qk_mfmas(2, zero=zero)]
    for half in range(2):
        for f in range(8 * half, 8 * half + 8): P.puts(frag_reads(2, f))
        P.puts(mf[32 * half:32 * half + 32])


e(f"s_mov_b32 s{sCNT}, 0")
lab("L_rmax")
redo_tile([("K", 98304)], True)
for qb in range(4):
    regs = [S(1, kb, qb) + i for kb in range(4) for i in range(4)]
    for i in range(0, 16, 2): e(f"v_max3_f32 v{NM(qb)}, v{NM(qb)}, v{regs[i]}, v{regs[i+1]}")
e(f"s_add_u32 s{sCNT}, s{sCNT}, 16384"); e(f"s_cmp_lt_u32 s{sCNT}, 0x80000"); e("s_cbranch_scc1 L_rmax")
allreduce("v_max_f32", [NM(qb) for qb in range(4)], [NM(qb) + 1 for qb in range(4)])
for qb in range(4):
    for i in (1, 2, 3, 0): e(f"v_sub_f32 v{NM(qb)+i}, 0, v{NM(qb)}")
for i in list(range(128)) + list(range(192, 208)): e(f"v_accvgpr_write_b32 a{i}, 0")
e(f"s_mov_b32 s{sCNT}, 0")
lab("L_rpv")
redo_tile([("K", 98304), ("V", 114688)], False)
for half in range(2):
    ex, post = sm_stream(1, half)
    P.puts(ex); P.puts([x for p in post for x in p])
mf = [m for m, _ in pv_mfmas(3)]
for half in range(2):
    for f in range(16 + 8 * half, 24 + 8 * half): P.puts(frag_reads(3, f))
    P.puts(mf[34 * half:34 * half + 34])
e(f"s_add_u32 s{sCNT}, s{sCNT}, 16384"); e(f"s_cmp_lt_u32 s{sCNT}, 0x80000"); e("s_cbranch_scc1 L_rpv")
row_sums(); row_inverses(); P.wait(["rinv"])
e("s_branch L_att_done")
if HOP: P.raw(".p2align 12")
lab("L_odd")
P.L += odd_text
lab("L_end")
e("s_endpgm")
P.L += ['.section .rodata,"a"', ".p2align 6", f".amdhsa_kernel {NAME}",
        "  .amdhsa_next_free_vgpr 512", "  .amdhsa_next_free_sgpr 102", "  .amdhsa_accum_offset 256",
        "  .amdhsa_group_segment_fixed_size 0", "  .amdhsa_kernarg_size 104", "  .amdhsa_user_sgpr_count 2",
        "  .amdhsa_user_sgpr_kernarg_segment_ptr 1", "  .amdhsa_system_sgpr_workgroup_id_x 1",
        "  .amdhsa_float_denorm_mode_32 3", ".end_amdhsa_kernel"]
lines = "\n".join(P.L).split("\n")
for key, pats in (("kvf", (srd(SK), srd(SV))), ("wf", tuple(srd(x) for x in (SWQ, SWO, SW1, SW2, SW3, SW4)))):
    if opt.get(key):
        lines = [l.replace(" lds", " " + opt[key].replace("+", " ") + " lds") if l.endswith(" lds") and any(x in l for x in pats) else l
                 for l in lines]
if opt.get("xf"): lines = [l + " " + opt["xf"] if "load_dwordx4 v[" in l and (srd(SX) in l or "s[64:65]" in l) else l for l in lines]
ABL = opt.get("abl", "")
if ABL:
    i0 = next(i for i, l in enumerate(lines) if "output projection" in l); i1 = lines.index("L_side:")
    j0 = max(i for i in range(i0, i1) if MF in lines[i])
    keep = []
    for i, l in enumerate(lines):
        if i0 < i < i1:
            if "p" in ABL and "s_cbranch_vccnz L_slow_s" in l: continue
            if "w" in ABL and i > j0 and "vmcnt" in l and "v_dot2" not in lines[i + 1]: continue
            if "l" in ABL and "buffer_load_dwordx4" in l and "sc1" in l: continue
            if "s" in ABL and "buffer_store_dwordx4" in l and "sc1" in l: continue
        keep.append(l)
    lines = keep
if opt.get("tcf"): lines = [l + " " + opt["tcf"] if "_load_dword a255" in l and "sc1" not in l and ", off" not in l else l for l in lines]
lines, added = fix_hazards(lines)
nhop = 0
if HOP: lines, nhop = add_page_hops(lines, sW)
lines = [l for l in lines if "@hop" not in l]
if O_("short", 1): lines = compress(lines)
text = "\n".join(lines) + "\n"
open(OUT_PATH, "w").write(text)
print(f"{OUT_PATH}: {len(lines)} lines, {len(text)} bytes, {added} wait states padded, {nstamp[0]} stamps, {nhop} hops", file=sys.stderr)
```

```python
import math
import struct
import sys
from asmlib6 import *

OUT_PATH = sys.argv[1]
opt = dict(a.split("=") for a in sys.argv[2:])
O_ = lambda k, d: int(opt.get(k, d))
STAMP = O_("stamp", 0)
SSET = opt.get("sset", "")
FORCE_REDO = O_("redo", 0)
QPERM = O_("qperm", 1)
PA = O_("pa", 1)
OB = O_("ob", -19)
sOB = 100
OWN = O_("own", 1)
sPO, vPO, sPX = (3, 101), 218, 65
OSH = O_("osh", 0)
XREG = O_("xreg", 1)
AHEAD = O_("ahead", 10)
AMP = [int(x) for x in opt["amp"].split(",")] if "amp" in opt else None

NAME = "recurrent_scan__gqa_block_cached__mixer_s_mlp__prompt_kernel"
MF = "v_mfma_f32_16x16x32_bf16"
f2u = lambda x: "0x%08x" % struct.unpack("<I", struct.pack("<f", x))[0]
LOG2E = math.log2(math.e)
QSCALE = LOG2E / math.sqrt(128.0)
GC1 = -2.0 * math.sqrt(2.0 / math.pi) * LOG2E
GC2 = GC1 * 0.044715
EPS = 1e-5
GA_ = (-GC2) ** (1.0 / 3.0)
GK = -GC1 / GA_

SX, SK, SV, SWS, SWQ, SWO, SW1, SW2, SW3, SW4, SOUT, SDBG = range(4, 52, 4)
sG, sM, sW = 52, 53, 54
sT = 55
sW1K, sW4K, sRING, sSO = 60, 61, 62, 63
sSF, sCNT, sSPIN, sHO, sPP, sPC, sFL, sF0, sF1, sSTP, sSTC = range(64, 75)
sLO, sHI, sONE2, sC1, sC2, sNL2E, sF2, sMSK, sKS, sF3, sTB, sSTF, sXF, sRS, sW3B = range(75, 90)
sST = 92
srd = lambda b: sr(b, 4)

WS_H, WS_X1, WS_PS, WS_PH, WS_FL, WS_SS, WS_ST = 0, 0x200000, 0x400000, 0x1400000, 0x2400000, 0x2500000, 0x4000000
PLANE = 131072

vBA, vTOK, vNMEAN, vRSTD, vLANE, vSTAMP, vCODE, vAS, vDW2 = 255, 254, 253, 252, 251, 250, 248, 244, 243
T = 226
vAA, vAA2 = T, T + 4
vBX, vWA, vSC1, vDWQ, vDW1 = T + 8, T + 9, T + 12, T + 14, T + 15
vPA, vPOLL, vONE, vDW4, vDWO = T + 16, T + 15, T + 14, T + 13, T + 12
vTC = T + 10
XR = 128
G12 = 192
S = lambda buf, kb, qb: buf * 64 + qb * 16 + kb * 4
PR = lambda buf, ks, qb: buf * 64 + qb * 16 + ks * 4
vIDX = vSTAMP
NIT = 132
Q = lambda qb, s: 128 + (qb * 4 + s) * 4
NM = lambda qb: 192 + 4 * qb
KA = lambda s: 208 + s
VA = lambda db: 212 + db
KG = lambda i: 220 + i
VG = lambda i: 224 + (i & 1)
vR = NM(0)
O = lambda db, qb: (db * 4 + qb) * 4
FR = lambda f: 128 + (f % 8) * 4
HB = lambda ks: 160 + (ks % 8) * 4
LACC = lambda qb: 192 + 4 * qb
aONES, aG2, aXN = 208, 212, 244
GA = lambda i: 228 + (i % 4) * 4
AF = lambda f: 128 + (f % 8) * 4
PHA = lambda k: (160, 212)[k // 8] + (k % 8) * 4
T0 = 22
RING, VOFF = 65536, 65536

P = Prog()
e, lab, cap = P.e, P.lab, P.capture
slow_paths = []
nstamp = [0]


JIT = O_("jitter", 0)
njit = [0]


def jitter():
    i = njit[0]; njit[0] += 1
    e(f"s_memrealtime {sr(96,2)}"); P.wait_all(vm=False)
    e(f"s_lshr_b32 s96, s96, 14"); e(f"s_lshl_b32 s97, s2, 2" if JIT & 1 else "s_mov_b32 s97, s2")
    if JIT & 1: e(f"s_add_u32 s97, s97, s{sW}")
    e(f"s_add_u32 s96, s96, s97"); e(f"s_add_u32 s96, s96, {i * 7919 + 13}"); e("s_mul_i32 s96, s96, 0x9e3779b1")
    e("s_mov_b32 s98, s96")
    e(f"s_lshr_b32 s96, s96, {32 - (JIT >> 1)}")
    lab(f"L_jit{i}")
    e("s_sleep 8"); e("s_sub_u32 s96, s96, 1"); e(f"s_cbranch_scc0 L_jit{i}")


def jitter_item():
    i = njit[0]; njit[0] += 1
    return It(f"s_mul_i32 s98, s98, 0x41c64e6d\n    s_add_u32 s98, s98, 12345\n    s_lshr_b32 s99, s98, 27\n"
              f"    s_sub_u32 s99, s99, 24\n    s_cbranch_scc1 L_jx{i}\nL_jw{i}:\n    s_sleep {O_('jit2', 0)}\n"
              f"    s_sub_u32 s99, s99, 1\n    s_cbranch_scc0 L_jw{i}\nL_jx{i}:", "s")


def stamp(level=1):
    if JIT and level == 1: jitter()
    if AMP and level == 1:
        i = nstamp[0]; nstamp[0] += 1
        if i in AMP[:2]:
            e(f"{'s_memtime' if AMP[3] else 's_memrealtime'} {sr(sST + 2*AMP.index(i),2)}"); P.wait_all(vm=False)
        return
    if STAMP < level or (SSET and level != 0):
        return
    i = nstamp[0]; nstamp[0] += 1
    e(f"s_memtime {sr(sST,2)}"); e(f"s_memrealtime {sr(sST+2,2)}")
    P.wait_all(vm=False)
    e(f"v_accvgpr_read_b32 v{vSTAMP}, a254")
    e(f"v_writelane_b32 v{vSTAMP}, s{sST}, {2*i}")
    e(f"v_writelane_b32 v{vSTAMP}, s{sST+2}, {2*i+1}")
    e(f"v_accvgpr_write_b32 a254, v{vSTAMP}"); e(f"v_accvgpr_read_b32 v{vSTAMP}, a253")


def stamp_item():
    i = nstamp[0]; nstamp[0] += 1
    return It(f"s_memtime {sr(sST,2)}\n    s_memrealtime {sr(sST+2,2)}\n    s_waitcnt lgkmcnt(0)\n"
              f"    v_accvgpr_read_b32 v{vSTAMP}, a254\n"
              f"    v_writelane_b32 v{vSTAMP}, s{sST}, {2*i}\n    v_writelane_b32 v{vSTAMP}, s{sST+2}, {2*i+1}\n"
              f"    v_accvgpr_write_b32 a254, v{vSTAMP}\n    v_accvgpr_read_b32 v{vSTAMP}, a253", "s")


def mk_srd(d, p, size):
    e(f"s_mov_b32 s{d}, s{p}"); e(f"s_mov_b32 s{d+1}, s{p+1}"); e(f"s_mov_b32 s{d+2}, {size}"); e(f"s_mov_b32 s{d+3}, 0x20000")


def sum_terms(dst, *terms):
    first = True
    for t in terms:
        if isinstance(t, int):
            e(f"s_add_u32 s{dst}, s{dst}, {t}"); continue
        r, k = t
        if k == 0:
            e(f"s_mov_b32 s{dst}, 0"); first = False; continue
        d = dst if first else sT + 4
        e(f"s_lshl_b32 s{d}, s{r}, {k.bit_length()-1}" if k & (k - 1) == 0 else f"s_mul_i32 s{d}, s{r}, {k}")
        if not first: e(f"s_add_u32 s{dst}, s{dst}, s{d}")
        first = False


def allreduce(op, regs, tmps, k=None):
    for sw in ("v_permlane32_swap_b32", "v_permlane16_swap_b32"):
        for r, t in zip(regs, tmps): e(f"v_mov_b32 v{t}, v{r}")
        for r, t in zip(regs, tmps): e(f"{sw} v{r}, v{t}", k=k)
        for r, t in zip(regs, tmps): e(f"{op} v{r}, v{r}, v{t}")


def masked(mask, txt, tag=None, lds=False):
    (P.lds if lds else P.vm)(f"s_mov_b64 exec, {mask}\n    {txt}\n    s_mov_b64 exec, -1", tag)


class Poll:
    def __init__(self, name, loads, tests):
        self.name, self.loads, self.tests = name, loads, tests
        slow_paths.append(self)

    def issue(self):
        for l in self.loads: P.vm(l, self.name)

    def check(self):
        for i, t in enumerate(self.tests): e(t, need=[self.name] if i == 0 else ())
        e(f"s_cbranch_vccnz L_slow_{self.name}\nL_back_{self.name}:", k="v")


def flag_poll(name, s_rd, soff, target):
    return Poll(name, [f"buffer_load_dword v{vPOLL}, v{vPA}, {srd(s_rd)}, {soff} offen sc1"],
                [f"v_cmp_gt_u32 vcc, {target}, v{vPOLL}"])


def set_flags(stage, nlanes, need, val=1):
    e(f"v_mov_b32 v{vONE}, {val}")
    e(f"s_add_u32 s{sSF}, s{sFL}, {stage * 1024}")
    P.wait(need)
    masked((1 << nlanes) - 1, f"buffer_store_dword v{vONE}, v{vLANE}, {srd(SWS)}, s{sSF} offen sc1")


def interleave(code, side, every):
    side = list(side)
    for k, it in enumerate(code):
        if side and k % every == 0: P.puts(side.pop(0))
        P.put(it)
    for x in side: P.puts(x)


def gelu(base, n, tmp, dst, first):
    pairs = range(0, n, 2)
    if "g" in opt.get("cut", ""):
        for i in pairs: e(f"v_cvt_pk_bf16_f32 v{dst(i//2)}, v{base+i}, v{base+i+1}")
        return
    if first: e(f"v_mov_b32 v{vTC}, s{sC1}")
    for i in pairs: e(f"v_pk_fma_f32 {vr(tmp+i,2)}, {vr(base+i,2)}, {vr(base+i,2)}, {vr(vTC,2)} op_sel_hi:[1,1,0]")
    for i in pairs: e(f"v_pk_mul_f32 {vr(tmp+i,2)}, {vr(tmp+i,2)}, {vr(base+i,2)} neg_lo:[0,1] neg_hi:[0,1]")
    for i in range(n): e(f"v_exp_f32 v{tmp+i}, v{tmp+i}")
    for i in pairs: e(f"v_pk_add_f32 {vr(tmp+i,2)}, {vr(tmp+i,2)}, 1.0 op_sel_hi:[1,0]")
    for i in range(n): e(f"v_rcp_f32 v{tmp+i}, v{tmp+i}")
    for i in pairs: e(f"v_pk_mul_f32 {vr(tmp+i,2)}, {vr(tmp+i,2)}, {vr(base+i,2)}")
    for i in pairs: e(f"v_cvt_pk_bf16_f32 v{dst(i//2)}, v{tmp+i}, v{tmp+i+1}")


class Tile:
    def __init__(self, s_rd, voff, base, stride, perm, slot, tag, rows=64, kp=0, nh=0, half=32):
        self.__dict__.update(locals())

    def dma(self):
        out = []
        for i in range(self.rows // 8):
            row = ((0, 16, 4, 20)[i & 3] if self.perm else 8 * (i & 3)) + self.half * (i >> 2)
            so = self.base + row * self.stride - (i & 3) * 1024
            pre = [It(f"s_add_u32 m0, s{sRING}, {self.slot * 32768 + (i >> 2) * 4096}", "s")] if i % 4 == 0 else []
            out.append((pre + [It(f"s_mov_b32 s{sSO}, {so}", "s")],
                        [It(f"buffer_load_dwordx4 v{self.voff}, {srd(self.s_rd)}, s{sSO} offen "
                            f"offset:{(i & 3) * 1024} lds", "g", self.tag)]))
        return out


def place(add, g, grp, prev, avoid=()):
    pre, its = grp
    c = [h for h in range(max(prev + 1, 0), g) if h not in avoid][-len(pre):] if pre else []
    for k, it in enumerate(pre): add(c[k] if len(c) == len(pre) else max(g - len(pre) + k, prev + 1, 0), it)
    for it in its: add(g, it)


def dma_voff(dst, stride, perm, s_base, a):
    b = a + 1
    e(f"v_lshrrev_b32 v{a}, 10, v{vLANE}")
    e(f"v_bfe_u32 v{b}, v{vBA}, 4, 3")
    e(f"v_and_b32 v{dst}, 6, v{a}"); e(f"v_xor_b32 v{b}, v{b}, v{dst}")
    if perm:
        e(f"v_and_b32 v{dst}, 4, v{a}"); e(f"v_add_u32 v{a}, v{a}, v{dst}")
    e(f"v_mul_u32_u24 v{a}, {stride}, v{a}")
    e(f"v_lshl_add_u32 v{a}, v{b}, 4, v{a}")
    e(f"v_add_u32 v{dst}, {s_base}, v{a}")


def a_reads(t, ti, nb):
    base = (vAA2 if t.slot == 2 else vAA) + nb
    off = (t.slot % 2) * 32768 if t.slot < 2 else 0
    return [It(f"ds_read_b64_tr_b16 {ar(AF(nb*2+ks) + 2*h, 2)}, v{base} offset:{off + ks*4096 + h*2048}", "l",
               ("A", t.tag, nb), need=[t.tag]) for ks in range(t.rows // 32) for h in range(2)]


def gemm_pre(tiles, i0):
    P.puts(a_reads(tiles[i0], i0, 0))


def gemm(tiles, i0, n, acc, pending, bf, breg=vBA, extra=None, fill=None, over=0, opening=None, dma0=0, btr=False):
    bf = [x if isinstance(x, tuple) else (ar, x) for x in bf]
    BF = lambda s, ks, tb, o=0, w=4: bf[grp[s] % len(bf)][0](bf[grp[s] % len(bf)][1] + (ks * 4 + tb) * 4 + o, w)
    ms, gaps, start, grp, held, fresh = [], {}, [], [], {}, []
    seen = set()
    for s, ti in enumerate(range(i0, i0 + n)):
        t = tiles[ti]
        fresh.append(t.kp not in held)
        if fresh[s]:
            k = max(grp, default=-1) + 1
            while s and k % len(bf) == grp[s - 1] % len(bf): k += 1
            held = {kp: g for kp, g in held.items() if g % len(bf) != k % len(bf)}
            held[t.kp] = k
        grp.append(held[t.kp])
        start.append(len(ms))
        nks = t.rows // 32
        for nb in range(4):
            for tb in range(4):
                for ks in (range(nks) if not tb & 1 else range(nks - 1, -1, -1)):
                    d = vr(acc(t.nh, nb, tb), 4)
                    c = d if (t.nh, nb, tb) in seen else "0"
                    seen.add((t.nh, nb, tb))
                    ms.append(It(f"{MF} {d}, {ar(AF(nb*2+ks),4)}, {BF(s,ks,tb)}, {c}", "m",
                                 need=[("A", t.tag, nb), ("B", tiles[i0].tag, grp[s], tb)]))
    start.append(len(ms))

    def b_reads(s):
        t = tiles[i0 + s]
        if btr:
            return [It(f"ds_read_b64_tr_b16 {BF(s,ks,tb,2*h,2)}, v{breg+tb} offset:{t.kp*8192 + ks*4096 + h*2048}",
                       "l", ("B", tiles[i0].tag, grp[s], tb)) for tb in range(4) for ks in range(2) for h in range(2)]
        return [It(f"ds_read_b128 {BF(s,ks,tb)}, v{breg} offset:{t.kp*8192 + ks*4096 + tb*1024}", "l",
                   ("B", tiles[i0].tag, grp[s], tb)) for tb in range(4) for ks in range(t.rows // 32)]

    add = lambda g, it: gaps.setdefault(g, []).append(it)
    pre = b_reads(0)
    release = {}
    for s in range(n):
        ti = i0 + s; t = tiles[ti]
        per = (start[s + 1] - start[s]) // 4
        for nb in range(4):
            if s == 0 and nb == 0: continue
            rd = a_reads(t, ti, nb)
            for k, it in enumerate(rd):
                g = start[s] + per * nb - 6 - 2 * (len(rd) - 1 - k)
                if g < 0: pre.append(it)
                else: add(g, it)
        if ti + 3 < len(tiles) and tiles[ti + 3]: release[start[s] + 3 * per] = tiles[ti + 3]
        if s + 1 < n and fresh[s + 1]:
            s0 = s - 1 if s and not fresh[s] and grp[s - 1] % len(bf) != grp[s + 1] % len(bf) else s
            rd = b_reads(s + 1)
            cand = [g for g in range(start[s0], start[s + 1] - 6) if g % 4 == 3]
            if btr: cand = sorted(cand * 2)
            if len(cand) < len(rd): cand = sorted(cand + [start[s0] + 2 * k for k in range(len(rd) - len(cand))])
            step = len(cand) / len(rd)
            for k, it in enumerate(rd): add(cand[int(k * step)], it)
    if opening == "get": return a_reads(tiles[i0], i0, 0) + pre
    if opening == "done": pre = []
    prev = dma0 - 1
    for g in range(dma0, len(ms)):
        if g in release: pending += release[g].dma()
        nxt = min([r for r in release if r > g], default=len(ms) + 24)
        if pending and (g % 4 == 1 or (g % 4 == 3 and len(pending) > (nxt - g + 1) // 4)):
            place(add, g, pending.pop(0), prev); prev = g
    for g, its in (extra or {}).items():
        for it in its: add(g, it)
    for g in start[:-1]: add(g + 10, hop())
    if O_("jit2", 0):
        for g in start[:-1]: add(g + 4, jitter_item())
    if SSET == {id(qt): "q", id(ot): "o"}.get(id(tiles), "mlp"):
        for g in start[:-1] + [len(ms) - 1]: add(g, stamp_item())
    P.puts(pre)
    P.run_gaps(ms, gaps, fill, gmin=4, over=over)


def flush(pending):
    while pending:
        a, b = pending.pop(0)
        P.puts(a + b)


def shared_ops(kss, koff, acc, zero, afr, breg, bneed, name, i0=0):
    out = []
    for nb in range(4):
        for ks in kss:
            i = i0 + len(out)
            d = acc(nb)
            out.append((It(f"{MF} {d}, {ar(afr(i),4)}, {breg(ks)}, {0 if zero and not ks else d}", "m",
                           need=[(name, i)] + list(bneed(ks))),
                        [It(f"ds_read_b64_tr_b16 {ar(afr(i)+2*h,2)}, v{vAS+nb} offset:{(ks-koff)*4096 + h*2048}", "l",
                            (name, i)) for h in range(2)]))
    return out


def pack(acc, nh, tb, s, second=False, guard=False):
    a, b = acc(nh, 2 * s, tb), acc(nh, 2 * s + 1, tb)
    order = list(enumerate((a, a + 2, b, b + 2)))
    d = b if second else a
    for j, r in reversed(order) if second else order: e(f"v_cvt_pk_bf16_f32 v{d+j}, v{r}, v{r+1}")
    if guard:
        for j in range(4): e(f"v_min_u32 v{d+j}, -2, v{d+j}")


def store_piece(src, ws_base, nh, tb, s, tag):
    lane = vPO + (tb >> 1) if OWN and ws_base == WS_PS else vBA
    e(f"s_add_u32 s{sSF}, s{sPP}, {ws_base + (tb >> 1)*65536 + ((tb & 1) + 2*s)*2048}")
    P.vm(f"buffer_store_dwordx4 {src}, v{lane}, {srd(SWS)}, s{sSF} offen offset:{nh*1024} sc1", tag)


def load_piece(ws_base, dst, g, nh, tag):
    if OWN and ws_base == WS_PS: e(f"s_xor_b32 s{sSF}, s{sPX}, {g*8192}")
    else: e(f"s_add_u32 s{sSF}, s{sPC}, {ws_base + g*8192}")
    P.vm(f"buffer_load_dwordx4 {dst}, v{vBA}, {srd(SWS)}, s{sSF} offen offset:{nh*1024} sc1", (tag, g, nh))


def add_piece(dst, reg, first, need):
    for j in range(4):
        for h, sel in enumerate((sLO, sHI)):
            d = dst + 2 * j + h
            e(f"v_dot2_f32_bf16 v{d}, v{reg+j}, s{sel}, {0 if first else 'v%d' % d}", need=need)


def frag_reads(t, f, tail=False):
    if f < 16:
        kb, s = f // 4, f % 4
        off = ((t + 1) % 4) * 16384 + kb * 4096
        return [It(f"ds_read_b128 {ar(FR(f),4)}, v{KA(s)} offset:{off}", "l", ("F", t, f))]
    db, ks = ((f - 16) // 2, (f - 16) % 2) if not tail else ((f - 16) % 8, (f - 16) // 8)
    off = (t % 4) * 16384 + ks * 8192
    return [It(f"ds_read_b64_tr_b16 {ar(FR(f)+2*h,2)}, v{VA(db)} offset:{off + 4096*h}", "l", ("F", t, f))
            for h in range(2)]


def qk_mfmas(t, zero=False):
    out = []
    for kb in range(4):
        for qb in range(4):
            for n, s in enumerate(range(4) if not qb & 1 else range(3, -1, -1)):
                d = vr(S((t + 1) & 1, kb, qb), 4)
                c = d if n else ("0" if zero else vr(NM(qb), 4))
                out.append((It(f"{MF} {d}, {ar(FR(kb*4+s),4)}, {vr(Q(qb,s),4)}, {c}", "m",
                               need=[("F", t, kb * 4 + k) for k in range(4)]), kb * 4 + s))
    return out


def pv_one(t, db, qb, ks, f, need, zero=False):
    o = ar(O(db, qb), 4)
    ab = [ar(FR(f), 4), vr(PR(t & 1, ks, qb), 4)][::-1 if PA else 1]
    return (It(f"{MF} {o}, {ab[0]}, {ab[1]}, {(ar(GA(0), 4) if OB else 0) if zero else o}", "m", need=need), f)


def sum_one(t, qb):
    return (It(f"v_smfmac_f32_16x16x64_bf16 {ar(LACC(qb),4)}, {ar(aONES,4)}, {vr(PR(t&1,0,qb),8)}, v{vIDX}", "m"), None)


def pv_mfmas(t, zero=False):
    out = []
    for db in range(8):
        need = [("F", t, 16 + db * 2), ("F", t, 17 + db * 2)]
        for qb in range(4):
            for n, ks in enumerate(range(2) if not qb & 1 else range(1, -1, -1)):
                out.append(pv_one(t, db, qb, ks, 16 + db * 2 + ks, need, zero and not n))
        if db % 2 == 0: out.append(sum_one(t, db // 2))
    return out


def pv_mfmas_tail(t):
    out = []
    for ks in range(2):
        if ks: out += [sum_one(t, qb) for qb in range(4)]
        for db in range(8):
            f = 16 + ks * 8 + db
            out += [pv_one(t, db, qb, ks, f, [("F", t, f)]) for qb in range(4)]
    return out


def sm_stream(buf, half):
    ex, post = [], []
    for qb in range(4):
        b, d = S(buf, 2 * half, qb), PR(buf, half, qb)
        for j in range(8):
            ex.append(It(f"v_exp_f32 v{b+j}, v{b+j}", "x"))
            post.append([It(f"v_cvt_pk_bf16_f32 v{d + j//2}, v{b+j-1}, v{b+j}", "v")] if j & 1 else [])
    return ex, post


def kv_dma(kind, tile, lds=None, so=None):
    reg, s_rd, base = (KG, SK, 0) if kind == "K" else (VG, SV, VOFF)
    lds = base + (tile % 4) * 16384 if lds is None else lds
    out = []
    for i in range(4):
        pre = [It(f"s_add_u32 m0, s{sW4K}, {lds}", "s"),
               It(f"s_mov_b32 s{sSO}, {tile * 16384 if so is None else so}", "s")] if i == 0 else []
        out.append((pre, [It(f"buffer_load_dwordx4 v{reg(i)}, {srd(s_rd)}, s{sSO} offen offset:{i*1024} lds",
                             "g", (kind, tile))]))
    return out


issued = set()
CLUSTER = O_("cluster", 1)
OVER = [int(x) for x in opt.get("overit", "3,9,13").split(",")]
WINS = [int(x) for x in opt.get("wins", "2,18,34,50,75,92,109,124").split(",")]
WPAT = [int(x) for x in opt.get("wpat", "1").split(",")]


def attn_iter(t, groups, fill, endwait=(), extra=None, ins=None):
    end = T0 - 1 if t < T0 else 31
    last = t == end
    mf = pv_mfmas_tail(t) if last else qk_mfmas(t) + pv_mfmas(t, zero=t == 0)
    ms = [m for m, _ in mf]
    n = len(ms)
    first_use, last_use = {}, {}
    for i, (_, f) in enumerate(mf):
        if f is not None:
            first_use.setdefault(f, i); last_use[f] = i
    reads = []
    for f in sorted(first_use):
        if (t, f) in issued: continue
        reads += [(first_use[f] - AHEAD, last_use.get(f - 8, -1), it) for it in frag_reads(t, f, last)]
    nxt_need = ()
    if t < end - 1:
        for f in range(4):
            reads += [(n + f - AHEAD, last_use[24 + f], it) for it in frag_reads(t + 1, f)]
            issued.add((t + 1, f))
        nxt_need = [("F", t + 1, f) for f in range(4)]
    elif t == end - 1:
        for f in range(16, 19):
            reads += [(n + 4 * (f - 16) - AHEAD, last_use[8 + f], it) for it in frag_reads(end, f, True)]
            issued.add((end, f))
        nxt_need = [("F", end, 16)]
    gaps = {}
    add = lambda g, it: gaps.setdefault(g, []).append(it)
    exg = {}
    wins = [] if last or not CLUSTER else WINS[:min(len(WINS), -(-len(groups) // len(WPAT)))]
    quiet = {w + k for w in wins for k in range(WPAT[-1] + 1)}
    dma_gaps = sorted(w + k for w in wins for k in WPAT)
    narrow = {g for g, m in enumerate(ms) if m.t.startswith("v_smfmac")}
    if last:
        ex, post = sm_stream(t & 1, 1)
        for i in range(32): exg[i] = (ex[i], post[i])
    else:
        for (ex, post), lo, hi in ((sm_stream(t & 1, 1), 0, 63), (sm_stream((t + 1) & 1, 0), 64, n - 1)):
            c = [g for g in range(lo, hi) if g not in quiet]
            for i in range(32):
                g = c[(i * (len(c) + 1)) // 32]
                while g in narrow or g in exg or g in quiet: g += 1
                exg[g] = (ex[i], post[i])
    for g, (x, post) in exg.items():
        add(g, x)
    for g, (x, post) in exg.items():
        h = g + 1
        while not last and (h in exg or h in quiet): h += 1
        for it in post: add(h, it)
    room = lambda g: len(gaps.get(g, [])) < (1 if g in narrow else 2)
    free = set(range(n)) if last else {g for g in range(n) if g not in exg and g not in dma_gaps and room(g)}
    prev, pre, avail = n, [], sorted(free)
    for dl, early, it in reversed(reads):
        c = [g for g in free if g <= dl and g < prev]
        if c and max(c) >= early:
            prev = max(c); free.discard(prev); add(prev, it)
        elif early < 0:
            prev = -1; pre.insert(0, it)
        else:
            c = [g for g in avail if early <= g <= dl + AHEAD - 6]
            g = min([g for g in c if room(g)] or c)
            free.discard(g); gaps.setdefault(g, []).insert(0, it)
    if groups:
        def spaced(c):
            out = []
            for g in c:
                if not out or g - out[-1] >= 2: out.append(g)
            return out
        light = spaced([g for g in sorted(free) if 1 <= g < n - 6 and g not in gaps])
        fr = light if len(light) >= len(groups) - len(dma_gaps) + 4 else spaced([g for g in sorted(free) if 1 <= g < n - 6])
        rest = len(groups) - len(dma_gaps)
        if rest > 0:
            fr = [g for g in fr if not {g - 1, g, g + 1} & set(dma_gaps)]
            if len(fr) < rest: fr = spaced([g for g in range(1, n - 6) if g not in exg and not {g - 1, g, g + 1} & set(dma_gaps)])
            assert len(fr) >= rest, (t, len(fr), len(groups))
            dma_gaps = sorted(dma_gaps + [fr[int(k * len(fr) / rest)] for k in range(rest)])
        for k, grp in enumerate(groups): place(add, dma_gaps[k], grp, dma_gaps[k - 1] if k else -1, {u - 1 for u in first_use.values()})
    if not last:
        add(n - 3, It(None, "s", need=[("K", min(t + 3, end)), ("V", end if t == end - 2 else t + 1)] + list(endwait)))
        add(n - 2, It("s_barrier", "s"))
        add(n - 4, hop())
    for g, its in (extra or {}).items():
        for it in its: add(g, it)
    if SSET == "attn": add(0, stamp_item())
    if O_("jit2", 0):
        for g in (1, n // 2, n - 12): add(g, jitter_item())
    if ins:
        for k in range(3):
            for h, it in enumerate(ins[k][1]): add(1 + 4 * k + 2 * h, it)
        pos = {(13 + (k * (n - 24)) // (len(ins) - 1)) | 1: k for k in range(len(ins))}
        assert len(pos) == len(ins)
        ms2, gaps2, old, quiet = [], {}, quiet, set()
        for g, m in enumerate(ms):
            if g in old: quiet.add(len(ms2))
            gaps2[len(ms2)] = gaps.get(g, []); ms2.append(m)
            if g in pos:
                k = pos[g]
                gaps2[len(ms2)] = list(ins[k + 3][1]) if k + 3 < len(ins) else []
                ms2.append(ins[k][0])
        ms, gaps = ms2, gaps2
    P.puts(pre)
    P.run_gaps(ms, gaps, fill, next_need=nxt_need, pos=t, gmin=4, quiet=quiet, over=4 if t in OVER else 0)


OVERVIEW = """
One launch, 256 workgroups (one per CU) of 4 waves. Workgroup (g, m) = KV group g, tokens 64m..64m+63.
Order: LN(x) -> LN(LN(x)) @ w1 -> Q projection -> key tiles 0..21 -> channel MLP -> key tiles 22..31
       -> output projection -> combine. The w2 GEMM and the LN statistics of x1 ride in the attention slack.
Matrix work uses 16x16x32 bf16 MFMA with fp32 accumulation; weights and K/V reach LDS by DMA.
Softmax: every row is shifted by (maximum over its first 16 keys + 25.4) through the MFMA C operand, so the row
  sum cannot underflow. If any row sum of the workgroup is not <= 2^64, L_redo computes the true row maxima and
  repeats the pass with them.
Hand-offs between the 8 workgroups of a token block use write-through stores, sc1 loads and flag words in d_ws;
  each wave resets its words before its workgroup counts itself into d_debug, and peers read them only after that.
L_pad_* / L_hop*: the waves visit upcoming code pages with EXEC = 0 and return at once (instruction prefetch).
"""
hdr = [l.rstrip("\n") for l in open("header.txt")]
hdr = hdr[:[i for i, l in enumerate(hdr) if "@launch" in l][0]]
P.L += hdr + ["; @launch grid=(256,1,1) block=(256,1,1) lds=163840",
              '.amdgcn_target "amdgcn-amd-amdhsa--gfx950"'] + ["; " + l for l in OVERVIEW.strip().split("\n")] + [
              ".text", f".globl {NAME}", ".p2align 8",
              f".type {NAME},@function"]
lab(NAME)
e("s_cmp_lt_u32 s2, 256"); e("s_cbranch_scc1 L_go"); e("s_endpgm")
lab("L_go")
if AMP and AMP[0] < 0: e(f"s_memrealtime {sr(sST,2)}")
e("s_load_dwordx16 s[64:79], s[0:1], 0"); e("s_load_dwordx8 s[80:87], s[0:1], 64"); e("s_load_dwordx2 s[88:89], s[0:1], 96")
PAIR = O_("pair", 0)
NS = 16 if PAIR else 32
sMI, sWV = 90, 91
if PAIR:
    e(f"s_and_b32 s{sG}, s2, 3"); e(f"s_and_b32 s{sT}, s2, 2"); e(f"s_add_u32 s{sG}, s{sG}, s{sT}")
    e(f"s_bfe_u32 s{sT}, s2, 0x10003"); e(f"s_lshl1_add_u32 s{sG}, s{sT}, s{sG}")
    e(f"s_lshr_b32 s{sMI}, s2, 4"); e(f"s_and_b32 s{sM}, s2, 4"); e(f"s_lshl_b32 s{sM}, s{sM}, 2"); e(f"s_add_u32 s{sM}, s{sM}, s{sMI}")
else:
    e(f"s_and_b32 s{sG}, s2, 7"); e(f"s_lshr_b32 s{sM}, s2, 3"); e(f"s_lshr_b32 s{sMI}, s2, 3")
e("v_lshrrev_b32 v1, 6, v0"); e("v_and_b32 v0, 63, v0"); e(f"v_readfirstlane_b32 s{sW}, v1")
e(f"v_lshlrev_b32 v{vBA}, 4, v0"); e(f"v_lshlrev_b32 v{vLANE}, 7, v0")
e(f"s_getpc_b64 {sr(sT+1,2)}")
lab("L_pc")
NCL = 10
e(f"s_lshr_b32 s{sT+3}, s2, 3")
sum_terms(sT, (sT + 3, 512), (sW, 128))
e(f"v_min_u32 v6, {NCL-1}, v0"); e(f"v_lshl_add_u32 v6, v6, 14, s{sT}"); e("v_min_u32 v6, L_end-L_pc, v6")
e(f"v_mov_b32 v{vCODE+1}, s{sT+2}"); e(f"v_add_co_u32 v{vCODE}, vcc, s{sT+1}, v6")
e(f"v_addc_co_u32 v{vCODE+1}, vcc, 0, v{vCODE+1}, vcc")
code_touch = lambda: P.vm(f"global_load_dword a255, {vr(vCODE,2)}, off")
masked(O_("cm", 15), f"global_load_dword a255, {vr(vCODE,2)}, off")
sum_terms(sWV, (sMI, 4), (sW, 1))


def touch_off(d, nrows, lines, stride, base_terms, t):
    per = -(-nrows // (NS * 4))
    assert per * lines <= 64 and lines & (lines - 1) == 0
    sh = lines.bit_length() - 1
    e(f"v_lshrrev_b32 v{d}, {7 + sh}, v{vLANE}"); e(f"v_min_u32 v{d}, {per - 1}, v{d}")
    e(f"s_mul_i32 s{sT}, s{sWV}, {per}"); e(f"v_add_u32 v{d}, s{sT}, v{d}")
    if per * NS * 4 != nrows: e(f"v_min_u32 v{d}, {nrows - 1}, v{d}")
    e(f"v_mul_u32_u24 v{d}, {stride}, v{d}")
    sum_terms(sT, *base_terms)
    if lines > 1:
        e(f"v_and_b32 v{t}, {(lines - 1) * 128}, v{vLANE}"); e(f"v_add3_u32 v{d}, v{d}, v{t}, s{sT}")
    else:
        e(f"v_add_u32 v{d}, s{sT}, v{d}")


WQ0 = O_("wq0", 128)
vTQ, vT1, vTK = T + 11, T + 13, T + 16
touch_off(6, WQ0, 8, 8192, [(sG, 1024)], 7)
touch_off(vT1, 512, 1, 1024, [(sG, 128)], 7)
e("v_and_b32 v2, 3, v0")
e("v_lshrrev_b32 v1, 2, v0")
sum_terms(sT, (sM, 64), (sW, 16))
e(f"v_add_u32 v3, s{sT}, v1"); e("v_lshlrev_b32 v3, 10, v3"); e("v_lshl_add_u32 v3, v2, 4, v3")
e(f"s_bfe_u32 s{sT+1}, s{sG}, {0x10000 + PAIR}"); e(f"s_lshl_b32 s{sT+2}, s{sT+1}, 9")
e(f"v_add_u32 v3, s{sT+2}, v3"); e(f"v_xor_b32 v{G12+13}, 0x200, v3")
if STAMP: e("v_accvgpr_write_b32 a254, 0")
e("s_waitcnt lgkmcnt(0)")
stamp()
if SSET == "ln": stamp(0)
ENT = " nt" * O_("ent", 0)
P.vm(f"global_load_dword a255, v{vT1}, s[76:77]{ENT}")
P.vm(f"global_load_dword a255, v6, s[70:71]{ENT}")
for i in range(8):
    P.vm(f"global_load_dwordx4 {vr(XR+4*i,4)}, v3, s[64:65] offset:{i*64}", ("x", i))
HOP = O_("hop", 1)
hop = lambda n="": It(f"; @hop {n}", "s")
if HOP:
    e("s_branch L_main"); P.raw(".p2align 12")
lab("L_main")
e("v_lshlrev_b32 v4, 1, v2"); e("v_xor_b32 v4, v4, v1"); e("v_lshlrev_b32 v4, 4, v4"); e("v_lshl_add_u32 v4, v2, 8, v4")
sum_terms(sT + 2, (sT + 1, 32768), (sW, 1024))
e(f"v_add_u32 v{vWA}, s{sT+2}, v4"); e(f"v_xor_b32 v{vWA+1}, 0x8000, v{vWA}")
e("v_and_b32 v1, 15, v0"); e("v_lshrrev_b32 v2, 4, v0")
e("v_lshlrev_b32 v4, 1, v2"); e("v_xor_b32 v4, v4, v1"); e("v_lshlrev_b32 v4, 4, v4"); e(f"v_lshl_add_u32 v{vBX}, v2, 8, v4")
e(f"v_add_u32 v3, s{sT}, v1"); e("v_lshlrev_b32 v4, 15, v2"); e(f"v_lshl_add_u32 v{vTOK}, v3, 4, v4")
for d, p in ((SK, 66), (SV, 68)):
    e(f"s_lshl_b32 s{sT}, s{sG}, 19")
    e(f"s_add_u32 s{d}, s{p}, s{sT}"); e(f"s_addc_u32 s{d+1}, s{p+1}, 0"); e(f"s_mov_b32 s{d+2}, 0x80000"); e(f"s_mov_b32 s{d+3}, 0x20000")
for d, p, size in ((SX, 64, 0x200000), (SWQ, 70, 0x400000), (SW1, 76, 0x80000), (SWS, 88, 0x10000000),
                   (SWO, 72, 0x400000), (SW2, 78, 0x80000), (SW3, 80, 1835008), (SW4, 82, 1835008),
                   (SOUT, 84, 0x200000), (SDBG, 86, 256)):
    mk_srd(d, p, size)
sum_terms(sRING, (sW, 8192), RING); sum_terms(sW1K, (sW, 1024)); sum_terms(sW4K, (sW, 4096))
sum_terms(sT, (sG, 1024), (sW, 256)); dma_voff(vDWQ, 8192, True, f"s{sT}", 10)
sum_terms(sT, (sW, 65536), (sG, 128)); dma_voff(vDW1, 1024, True, f"s{sT}", 10); dma_voff(vDW2, 1024, False, f"s{sT}", 10)
for r, v in ((sLO, "0x00003f80"), (sHI, "0x3f800000"), (sONE2, "0x3f803f80"), (sC1, f2u(GK)), (sC2, f2u(GA_)),
             (sNL2E, f2u(-LOG2E / GA_)), (sSPIN, opt.get("spin0", 0)), (sMSK, "0xffff0000")):
    e(f"s_mov_b32 s{r}, {v}")
sum_terms(sF0, (sM, 4096), (sW, 256), WS_FL)
sum_terms(sFL, (sG, 4), (sF0, 1))
sum_terms(sF1, (sM, 4096), (sG, 128), WS_FL + 1024)
e(f"s_add_u32 s{sF2}, s{sF1}, 1024"); e(f"s_add_u32 s{sF3}, s{sF1}, 2048")
sum_terms(sSTC, (sM, 4096), (sW, 1024), WS_SS)
sum_terms(sSTP, (sG, 128), (sSTC, 1))
sum_terms(sPP, (sM, 1 << 19), (sW, 1 << 17), (sG, 1 << 13))
sum_terms(sPC, (sM, 1 << 19), (sG, 1 << 16), (sW, 1 << 11))
e(f"s_lshl_b32 s{sHO}, s{sG}, 18")
e(f"s_and_b32 s{sKS}, s{sG}, 6"); e(f"s_lshl_b32 s{sKS}, s{sKS}, 1"); e(f"s_lshr_b32 s{sT}, s{sW}, 1"); e(f"s_add_u32 s{sKS}, s{sKS}, s{sT}")
e(f"s_and_b32 s{sTB}, s{sG}, 1"); e(f"s_lshl_b32 s{sTB}, s{sTB}, 1"); e(f"s_and_b32 s{sT}, s{sW}, 1"); e(f"s_add_u32 s{sTB}, s{sTB}, s{sT}")
sum_terms(sSTF, (sM, 4096), (sTB, 1024), WS_SS)
sum_terms(sXF, (sM, 65536), (sTB, 16384), (sKS, 64))
e(f"s_and_b32 s{sT}, s{sG}, 1"); sum_terms(sW3B, (sG, 448), (sT, 64)); sum_terms(sRS, (sW, 2048), RING)
e("v_lshrrev_b32 v6, 2, v0"); e("v_and_b32 v7, 3, v0"); e("v_lshlrev_b32 v7, 3, v7"); e("v_lshl_add_u32 v7, v6, 7, v7")
e("v_bfe_u32 v6, v0, 3, 2")
for nb in range(4):
    e(f"v_xor_b32 v10, {nb}, v6"); e("v_lshl_add_u32 v10, v10, 5, v7")
    e(f"v_add_u32 v{vAS+nb}, {RING + 32768}, v10")
    if QPERM:
        e("v_lshrrev_b32 v8, 2, v0"); e("v_and_b32 v9, 6, v8"); e("v_and_b32 v10, 3, v0"); e("v_xor_b32 v9, v9, v10")
        e(f"v_xor_b32 v9, {4*(nb>>1)}, v9"); e("v_lshlrev_b32 v9, 4, v9"); e("v_lshl_add_u32 v10, v8, 7, v9")
        if nb & 1: e("v_add_u32 v10, 8, v10")
    e(f"v_add_u32 v{vAA+nb}, s{sRING}, v10"); e(f"v_add_u32 v{vAA2+nb}, 0x10000, v{vAA+nb}")
e("v_xor_b32 v9, v2, v1")
for s in range(4):
    e(f"v_xor_b32 v10, {4*s}, v9"); e("v_lshlrev_b32 v10, 4, v10"); e(f"v_lshl_add_u32 v{KA(s)}, v1, 8, v10")
e("v_lshrrev_b32 v9, 2, v0"); e("v_lshlrev_b32 v10, 8, v9"); e("v_and_b32 v11, 3, v0")
e("v_lshl_add_u32 v10, v11, 3, v10"); e(f"v_add_u32 v10, {VOFF}, v10"); e("v_and_b32 v9, 7, v9")
for db in range(8):
    e(f"v_xor_b32 v11, {db}, v9"); e(f"v_lshl_add_u32 v{VA(db)}, v11, 5, v10")
e(f"v_lshl_add_u32 v10, v2, 8, s{sW4K}")
for i in range(4):
    e(f"v_add_u32 v9, {4*i}, v2"); e("v_xor_b32 v11, v9, v1"); e(f"v_lshl_add_u32 v{KG(i)}, v11, 4, v10")
    if i < 2:
        e("v_lshlrev_b32 v9, 1, v9"); e("v_xor_b32 v11, v9, v1"); e(f"v_lshl_add_u32 v{VG(i)}, v11, 4, v10")
e(f"v_lshlrev_b32 v{G12+8}, 4, v1")
if WQ0 < 512: touch_off(vTQ, 512 - WQ0, 8, 8192, [(sG, 1024), WQ0 * 8192], 7)
SLIM = O_("slim", 1)
touch_off(vTK, O_("tk", 384), 1, 128, [(sG, 0)], 7)


def late_touch():
    P.vm(f"buffer_load_dword a255, v{vTK}, {srd(SK)}, 0 offen"); P.vm(f"buffer_load_dword a255, v{vTK}, {srd(SV)}, 0 offen")
    if not SLIM:
        P.vm(f"buffer_load_dword a255, v{vT1}, {srd(SW2)}, 0 offen")
        code_touch()


LTG = O_("ltg", 4)
XQ = O_("xq", 3)


w1t = [Tile(SW1, vDW1, k * 4 * 65536, 1024, True, 1 + k, "w1") for k in range(2)]
w2t = [Tile(SW2, vDW2, k * 4 * 65536, 1024, False, 2, ("w2", k)) for k in range(2)]
qt = [Tile(SWQ, vDWQ, (i // 2) * 64 * 8192 + (i % 2) * 128, 8192, True, i % 3, ("wq", i), kp=i // 2, nh=i % 2)
      for i in range(16)] + ([] if SLIM else [None, w2t[0]])
mt = [Tile(SW3, vDW2, kp * 64 * 3584, 3584, False, (2 - i) % 3, ("w3", kp), kp=kp)
      for i, kp in enumerate((4, 5, 6, 7, 0, 1, 2, 3))]
mt += [Tile(SW4, vDW4, (i // 2) * 65536 + (i % 2) * 128, 1024, False, (2 - 8 - i) % 3, ("w4", i), kp=i // 2, nh=i % 2)
       for i in range(8)]
ot = [Tile(SWO, vDWO, ((kp & 1) * 256 + (kp >> 1) * 32) * 1024 + nh * 128, 1024, False, (nh * 8 + i + 2) % 3,
           ("wo", nh, kp), kp=kp, nh=nh, half=128)
      for nh in range(2) for i, kp in enumerate(range(8) if nh == 0 else (2, 3, 4, 0, 5, 1, 6, 7))]

a = G12


def quad_sum(regs):
    for qp in ("[1,0,3,2]", "[2,3,0,1]"):
        for r in regs: e(f"v_add_f32_dpp v{r}, v{r}, v{r} quad_perm:{qp} row_mask:0xf bank_mask:0xf")


def ln_stats(lo, hi):
    for i in range(lo, hi):
        c = lambda r: f"v{r}" if i >= 2 else 0
        e(f"v_dot2_f32_bf16 v{a + i % 2}, v{XR+i}, s{sONE2}, {c(a + i % 2)}", need=[("x", i // 4)])
        e(f"v_dot2_f32_bf16 v{a + 2 + i % 2}, v{XR+i}, v{XR+i}, {c(a + 2 + i % 2)}")


def unpack(k):
    for i in range(4 * k, 4 * k + 4):
        e(f"v_lshlrev_b32 v{2*i}, 16, v{XR+i}"); e(f"v_and_b32 v{2*i+1}, s{sMSK}, v{XR+i}")


def ln_rest():
    ln_stats(32, 64)
    e(f"v_add_f32 v{a}, v{a}, v{a+1}"); e(f"v_add_f32 v{a+2}, v{a+2}, v{a+3}")
    quad_sum([a, a + 2])
    e(f"v_mul_f32 v{a+4}, {f2u(-1/512)}, v{a}"); e(f"v_mul_f32 v{a+2}, {f2u(1/512)}, v{a+2}")
    e(f"v_fma_f32 v{a}, -v{a+4}, v{a+4}, v{a+2}"); e(f"v_max_f32 v{a}, 0, v{a}")
    e(f"v_add_f32 v{a+1}, {f2u(EPS)}, v{a}")
    e(f"v_rsq_f32 v{vRSTD}, v{a+1}")
    unpack(8)
    e(f"v_mul_f32 v{a+2}, {f2u(QSCALE)}, v{vRSTD}"); e(f"v_mul_f32 v{a+3}, v{a+4}, v{a+2}")
    for k in range(17):
        if k < 16:
            for i in range(4 * k, 4 * k + 4):
                e(f"v_pk_fma_f32 {vr(2*i,2)}, {vr(2*i,2)}, {vr(a+2,2)}, {vr(a+2,2)} op_sel:[0,0,1] op_sel_hi:[1,0,1]")
        if k: P.lds(f"ds_write_b128 v{vWA + (k-1)//8}, {vr(XR+4*k-4,4)} offset:{((k-1)%8)*4096}", "xw")
        if k % 2 == 0 and 9 + k // 2 < 16: unpack(9 + k // 2)
        if k < 16:
            for i in range(4 * k, 4 * k + 4): e(f"v_cvt_pk_bf16_f32 v{XR+i}, v{2*i}, v{2*i+1}")
    e(f"v_mul_f32 v{a}, v{a}, v{vRSTD}"); e(f"v_mul_f32 v{a}, v{a}, v{vRSTD}")
    e(f"v_add_f32 v{a}, {f2u(EPS)}, v{a}")
    e(f"v_rsq_f32 v{vSC1}, v{a}")
    e(f"v_mul_f32 v{vRSTD}, s{sC2}, v{vRSTD}")
    e(f"v_mul_f32 v{vSC1}, {f2u(GA_/QSCALE)}, v{vSC1}")
    e(f"v_mul_f32 v{vNMEAN}, v{a+4}, v{vRSTD}")
    e(f"v_add_u32 v{vWA}, s{sW1K}, v{vBX}")


if SSET == "ln": stamp(0)
P.put(hop(O_("hop00", 1)))
wq_rest = lambda: P.vm(f"buffer_load_dword a255, v{vTQ}, {srd(SWQ)}, 0 offen{ENT}") if WQ0 < 512 else None
if LTG == 4: XQ = 4
if XQ == 0: wq_rest()
if LTG == 0: late_touch()
for i in range(8):
    P.vm(f"buffer_load_dwordx4 {vr(XR+32+4*i,4)}, v{G12+13}, {srd(SX)}, 0 offen offset:{i*64}", ("x", 8 + i))
if XQ == 1: wq_rest()
if LTG == 1: late_touch()
if SSET == "ln": stamp(0)
P.put(hop(O_("hop0", 1)))
for k in range(8):
    ln_stats(4 * k, 4 * k + 4); unpack(k)
if O_("hop1", 1): P.put(hop(O_("hop1", 1)))
stamp(2)
if SSET == "ln":
    stamp(0); P.wait([("x", 15)]); stamp(0)
code = cap(ln_rest)
if "l" in opt.get("cut", ""): code = [it for it in code if not (it.t or "").startswith(("v_pk_fma", "v_cvt", "v_lshlrev", "v_and"))]
k = O_("lnat", 40)
P.puts(code[:k])
Q0LN = O_("q0ln", 1)
side = [x + y for t in w1t + qt[:Q0LN] for x, y in t.dma()]
if LTG == 4:
    j = O_("ltpos", 24)
    side[j:j] = [[it] for it in cap(wq_rest) + cap(late_touch)]
interleave(code[k:], side, O_("lnev", 9))
if SSET == "ln":
    stamp(0); P.wait(["w1"]); stamp(0)
for r in (vNMEAN, vRSTD, vSC1): P.lds(f"ds_bpermute_b32 v{r}, v{G12+8}, v{r}", "stat")
xb = [It(f"ds_read_b128 {ar(4*ks,4)}, v{vWA} offset:{ks*4096}", "l", ("xb", ks)) for ks in range(16)]
P.puts(xb[:8])
stamp(2)
P.wait(["xw", "w1"]); e("s_barrier")
stamp()
if SSET == "ln": stamp(0)

g1 = lambda h: shared_ops(range(8 * h, 8 * h + 8), 0, lambda nb: vr(G12 + 4 * nb, 4), True, lambda i: 160 + (i % 16) * 4,
                          lambda ks: ar(4 * ks, 4), lambda ks: [("xb", ks)], "g1", 32 * h)
ops = g1(0) + g1(1)
gaps = {g: [] for g in range(64)}
add1 = lambda g, it: gaps[g].append(it)
for i in range(6, 64): gaps[i - 6] += ops[i][1]
for k in range(8): add1(2 + 3 * k, xb[8 + k])
if not Q0LN:
    for k, grp in enumerate(qt[0].dma()): place(add1, 1 + 3 * k, grp, 3 * k - 2)
for k, it in enumerate((cap(wq_rest) if XQ == 3 else []) + (cap(late_touch) if LTG == 3 else [])): add1(O_("ltat", 0) + 2 * k, it)
add1(31, It("s_barrier", "s"))
for k, grp in enumerate(qt[1].dma()): place(add1, 34 + 3 * k, grp, 31 + 3 * k)
ACC = lambda nh, nb, tb: ((nh * 4 + tb) * 4 + nb) * 4
op = gemm(qt, 0, 16, ACC, [], (64, 96), breg=vBX, opening="get")
for k, it in enumerate(op[4:12]): add1(40 + 2 * k, it)
for k, it in enumerate(op[:4] + op[12:]): add1(58 + k // 2, it)
for i in range(6): P.puts(ops[i][1])
P.run_gaps([m for m, _ in ops], gaps, next_need=[op[0].tag, op[4].tag])
stamp()



def q_side():
    x, t = G12, XR
    P.put(gate(0, 8))
    for i in range(16): e(f"v_mul_f32 v{x+i}, v{x+i}, v{vSC1}", need=["stat"])
    for i in range(16): e(f"v_fma_f32 v{t+i}, -v{x+i}, v{x+i}, -s{sC1}")
    for i in range(16): e(f"v_mul_f32 v{t+i}, v{t+i}, v{x+i}")
    for i in range(16): e(f"v_exp_f32 v{t+i}, v{t+i}", k="v")
    for i in range(16): e(f"v_add_f32 v{t+i}, 1.0, v{t+i}")
    for i in range(16): e(f"v_rcp_f32 v{t+i}, v{t+i}", k="v")
    for i in range(16): e(f"v_mul_f32 v{t+i}, v{t+i}, v{x+i}")
    for i in range(8): e(f"v_cvt_pk_bf16_f32 v{t+16+i}, v{t+2*i}, v{t+2*i+1}")
    e(f"v_lshrrev_b32 v{t}, 5, v{vBA}"); e(f"v_and_b32 v{t+1}, 128, v{vLANE}"); e(f"v_lshl_add_u32 v{t}, v{t}, 10, v{t+1}")
    e(f"v_mov_b32 v{t+1}, 0"); e(f"v_mov_b32 v{t+2}, -1"); e(f"v_mov_b32 v{t+3}, -1"); e(f"v_lshrrev_b32 v{t+4}, 1, v{vBA}")
    for nb in range(4): e(f"v_add_u32 v{vAS+nb}, 32768, v{vAS+nb}")
    e(f"v_mov_b32 v{t+5}, {hex(((127 - OSH) << 7) * 0x10001)}")
    e(f"v_and_b32 v{t+6}, 0xe0, v{vBA}"); e(f"v_cmp_eq_u32 vcc, 0, v{t+6}"); e(f"v_cndmask_b32 v{t+5}, 0, v{t+5}, vcc")
    e(f"v_bfe_i32 v{t+6}, v{vBA}, 4, 1"); e(f"v_and_b32 v{t+6}, 0xaaaaaaaa, v{t+6}"); e(f"v_or_b32 v{t+6}, 0x44444444, v{t+6}")
    if STAMP: e(f"v_accvgpr_write_b32 a253, v{t+6}")
    e(f"v_mov_b32 v{vIDX}, v{t+6}")
    for i in range(16): e(f"v_accvgpr_write_b32 a{LACC(0)+i}, 0")
    for i in range(4): e(f"v_accvgpr_write_b32 a{aONES+i}, v{t+5}")

    P.put(gate(0, O_("hgate", 14 * 32 + 22)))
    if LTG == 2: late_touch()
    for s in range(2):
        e(f"s_add_u32 s{sSF}, s{sHO}, {WS_H + s*PLANE}")
        P.vm(f"buffer_store_dwordx4 {vr(t+16+4*s,4)}, v{vTOK}, {srd(SWS)}, s{sSF} offen sc1", "hst")
    masked(255, f"buffer_store_dword v{t+1}, v{t}, {srd(SWS)}, s{sFL} offen sc1", "hst")
    masked(0xffff, f"buffer_store_dwordx2 {vr(t+2,2)}, v{t+4}, {srd(SWS)}, s{sSTP} offen sc1", "hst")


class Extra:
    def __init__(self, groups): self.groups = groups
    def dma(self): return self.groups


def q_pack(tb, ss):
    for s in ss:
        b = ACC(s // 2, 2 * (s % 2), tb)
        for j in range(4): e(f"v_cvt_pk_bf16_f32 v{Q(tb,s)+j}, v{b+2*j}, v{b+2*j+1}")


assert SLIM and QPERM
fill = cap(q_side) + [gate(0, 15 * 32 + 4)] + [it for tb in range(4) for it in cap(q_pack, tb, (0, 1))]
pending = qt[2].dma()
qt += [Extra(kv_dma("K", 0) + kv_dma("K", 1)), Extra(kv_dma("K", 2))]
gemm(qt, 0, 16, ACC, pending, (64, 96), breg=vBX, fill=fill, opening="done", dma0=2,
     extra={1: [It("s_barrier", "s")], 13 * 32 + 22: [It("s_barrier", "s")]})
assert not pending
P.wait([("K", 1)]); e("s_barrier")
stamp()
if SSET == "pro": stamp(0)

for f in range(8): P.puts(frag_reads(-1, f))
P.drain(fill)
q_pack(0, (2, 3)); q_pack(1, (2, 3))
stamp()
if SSET == "pro": stamp(0)
gaps = {g: [] for g in range(64)}
for k, it in enumerate(cap(q_pack, 2, (2, 3)) + cap(q_pack, 3, (2, 3))): add1(k // 2, it)
for k, grp in enumerate(kv_dma("V", 0)): place(add1, 9 + 2 * k, grp, -1)
P.run_gaps([m for m, _ in qk_mfmas(-1, zero=True)[:16]], gaps)
if SSET == "pro": stamp(0)
for f in range(8, 12): P.puts(frag_reads(-1, f))
for qb in range(4): e(f"v_max3_f32 v{NM(qb)}, v{S(0,0,qb)}, v{S(0,0,qb)+1}, v{S(0,0,qb)+2}")
for qb in range(4): e(f"v_max_f32 v{NM(qb)}, v{NM(qb)}, v{S(0,0,qb)+3}")
allreduce("v_max_f32", [NM(qb) for qb in range(4)], [NM(qb) + 1 for qb in range(4)])
e(f"s_mov_b32 s{sT}, {f2u(float(opt.get('pd', -25.4)))}")
for qb in range(4):
    for i in (1, 2, 3, 0): e(f"v_sub_f32 v{NM(qb)+i}, s{sT}, v{NM(qb)}")


def first_half(shift, gates):
    for kb in range(2):
        P.put(gate(0, gates[kb]))
        for qb in range(4):
            b = S(0, kb, qb)
            if shift and not kb:
                for j in range(4): e(f"v_add_f32 v{b+j}, v{b+j}, v{NM(qb)}")
            for j in range(4): e(f"v_exp_f32 v{b+j}, v{b+j}")
        for qb in range(4):
            b = S(0, kb, qb)
            for j in range(2): e(f"v_cvt_pk_bf16_f32 v{PR(0,0,qb)+2*kb+j}, v{b+2*j}, v{b+2*j+1}")


if SSET == "pro": stamp(0)
gaps = {g: [] for g in range(64)}
for f in range(12, 16): gaps[16 + (f - 12)] += frag_reads(-1, f)
add1(40, It(None, "s", need=["hst"])); add1(41, It("s_barrier", "s"))
for f in range(4):
    gaps[32 + f] += frag_reads(0, f); issued.add((0, f))
for k, grp in enumerate(kv_dma("V", 1) + kv_dma("K", 3)): place(add1, 3 + 6 * k, grp, 6 * k - 3)
fill = cap(first_half, True, (0, 20))
P.run_gaps([m for m, _ in qk_mfmas(-1)[16:]], gaps, fill)
if SSET == "pro": stamp(0)
P.drain(fill)
if SSET == "pro": stamp(0)
e(f"v_mov_b32 v{T}, 1"); e(f"s_lshl_b32 s{sSF}, s{sM}, 3")
e(f"s_cmp_lg_u32 s{sW}, 0"); e("s_cbranch_scc1 L_noarr"); e("s_mov_b64 exec, 1")
e(f"buffer_atomic_add v{T}, off, {srd(SDBG)}, s{sSF} sc1"); e("s_mov_b64 exec, -1")
lab("L_noarr")
P.wait([("K", 2), ("V", 0)] + [("F", 0, f) for f in range(4)]); e("s_barrier")
stamp()

if SSET == "pro": stamp(0)
p_h = flag_poll("h", SDBG, 0, 8)
p_x = flag_poll("x1", SWS, f"s{sF0}", 1)
p_st = Poll("st", [f"buffer_load_dwordx2 {vr(T+2*j,2)}, v{vPA}, {srd(SWS)}, s{(sSTC, sSTF)[j//2]} offen offset:{128*(j%2)} sc1"
                   for j in range(4)],
            [f"v_max3_u32 v{T+8}, v{T}, v{T+1}, v{T+2}", f"v_max3_u32 v{T+8}, v{T+8}, v{T+3}, v{T+4}",
             f"v_max3_u32 v{T+8}, v{T+8}, v{T+5}, v{T+6}", f"v_max_u32 v{T+8}, v{T+8}, v{T+7}",
             f"v_cmp_eq_u32 vcc, -1, v{T+8}"])
p_ph, p_s0, p_s1 = (flag_poll(n, SWS, f"s{r}", 1) for n, r in (("ph", sF1), ("s0", sF2), ("s1", sF3)))


pieces = [(nh, tb, s) for nh in range(2) for tb in range(4) for s in range(2)]


def x_offset(d, bits=11):
    e(f"v_bfe_u32 v{d}, v{vTOK}, 4, {bits}"); e(f"v_lshlrev_b32 v{d}, 10, v{d}")
    e(f"v_bfe_u32 v{d+1}, v{vBA}, 8, 2"); e(f"v_lshl_add_u32 v{d}, v{d+1}, 3, v{d}")


def paced(t, g, step, fns):
    for k, fn in enumerate(fns):
        p = g + k * step
        P.put(gate(t + p // NIT, p % NIT)); fn()


def h_loads(half, t, g):
    e(f"v_bfe_u32 v{T}, v{vTOK}, 4, 11")
    for k, d in enumerate(((-1, 1), (-2, 2))[half]):
        e(f"v_add_u32 v{T+1}, {d}, v{T}"); e(f"v_cmp_gt_u32 vcc, 0x800, v{T+1}")
        e(f"v_add_u32 v{T+1}, {16*d}, v{vTOK}"); e(f"v_mov_b32 v{T+2+k}, 0x7f000000")
        e(f"v_cndmask_b32 v{T+2+k}, v{T+2+k}, v{T+1}, vcc")

    def one(ks):
        e(f"s_mov_b32 s{sSF}, {WS_H + ks*PLANE}")
        P.vm(f"buffer_load_dwordx4 {ar(HB(ks),4)}, v{T + 2 + (ks%8)//4}, {srd(SWS)}, s{sSF} offen sc1", ("h", ks))
    paced(t, g, O_("hstep", 18), [lambda ks=ks: one(ks) for ks in range(8 * half, 8 * half + 8)])


def acc_offset():
    P.lds(f"ds_read_b64_tr_b16 {vr(T+4,2)}, v{VA(0)}", "v0")
    P.put(gate(0, 9))
    for j in range(2):
        e(f"v_lshlrev_b32 v{T+2*j}, 17, v{T+4+j}", need=["v0"]); e(f"v_lshlrev_b32 v{T+2*j+1}, 1, v{T+4+j}")
    for r in (8, 4, 2, 1):
        for j in range(4): e(f"v_max_u32_dpp v{T+j}, v{T+j}, v{T+j} row_ror:{r} row_mask:0xf bank_mask:0xf")
    e(f"v_min3_u32 v{T}, v{T}, v{T+1}, v{T+2}"); e(f"v_min_u32 v{T}, v{T}, v{T+3}")
    allreduce("v_min_u32", [T], [T + 1], k="v")
    e(f"v_lshrrev_b32 v{T}, 24, v{T}"); e(f"v_lshlrev_b32 v{T}, 23, v{T}"); e(f"v_mul_f32 v{T}, {f2u(1.5 * 2.0**OB)}, v{T}")
    for i in range(4): e(f"v_accvgpr_write_b32 a{GA(0)+i}, v{T}")
    e(f"v_readfirstlane_b32 s{sOB}, v{T}")


def side1():
    if SLIM:
        code_touch(); P.vm(f"buffer_load_dword a255, v{vT1}, {srd(SW2)}, 0 offen")
    P.put(gate(0, 64))
    x_offset(T + 5); e(f"s_lshl_b32 s{sSF}, s{sG}, 7")
    for nb in range(4):
        P.vm(f"buffer_load_dwordx2 {vr(T+6+2*nb,2)}, v{T+5}, {srd(SX)}, s{sSF} offen offset:{nb*32}", "xs")
    e(f"v_lshrrev_b32 v{T}, 4, v{vBA}"); e(f"v_min_u32 v{T}, 2, v{T}"); e(f"v_add_u32 v{T}, s{sM}, v{T}")
    e(f"v_add_u32 v{T}, -1, v{T}"); e(f"v_med3_i32 v{T}, v{T}, 0, 31"); e(f"v_lshlrev_b32 v{vPA}, 3, v{T}")
    if O_("kvt1", 0):
        touch_off(T, (T0 - 5) * 128, 1, 128, [(sG, 0), 5 * 16384], T + 1)
        P.vm(f"buffer_load_dword a255, v{T}, {srd(SK)}, 0 offen"); P.vm(f"buffer_load_dword a255, v{T}, {srd(SV)}, 0 offen")
    P.put(gate(2, 0))
    p_h.issue()
    for i in range(8):
        d = T + 2 * (i % 2)
        e(f"v_lshlrev_b32 v{d}, 16, v{T+6+i}", need=["xs"]); e(f"v_and_b32 v{d+1}, 0xffff0000, v{T+6+i}")
        for h in range(2): e(f"v_fma_f32 v{d+h}, v{d+h}, v{vRSTD}, v{vNMEAN}")
        for h in range(2): e(f"v_accvgpr_write_b32 a{aG2+2*i+h}, v{d+h}")
    P.put(gate(3, 0))
    p_h.check(); h_loads(0, 3, 30)
    P.put(gate(6, 0))
    h_loads(1, 6, 24)
    sum_terms(sT, (sW, 128), (sW3B, 1)); dma_voff(vDW2, 3584, False, f"s{sT}", T)
    P.put(gate(8, NIT + 28))
    m, q = vRSTD, vNMEAN
    for i in range(16): e(f"v_accvgpr_read_b32 v{T+i}, a{aG2+i}")
    e(f"v_add_f32 v{m}, v{T}, v{T+1}"); e(f"v_mul_f32 v{q}, v{T}, v{T}")
    for i in range(1, 16):
        e(f"v_fmac_f32 v{q}, v{T+i}, v{T+i}")
        if i > 1: e(f"v_add_f32 v{m}, v{m}, v{T+i}")
    allreduce("v_add_f32", [m, q], [T, T + 1], k="v")
    e(f"v_lshrrev_b32 v{T}, 1, v{vBA}"); e(f"v_min_u32 v{m}, -2, v{m}"); e(f"v_min_u32 v{q}, -2, v{q}")
    masked(0xffff, f"buffer_store_dwordx2 {vr(m,2)}, v{T}, {srd(SWS)}, s{sSTP} offen sc1")
    code_touch()
    e(f"v_and_b32 v{T}, 0xf0, v{vBA}"); e(f"v_lshrrev_b32 v{T}, 1, v{T}"); e(f"v_and_b32 v{T+1}, 0x300, v{vBA}")
    e(f"v_add_u32 v{vPA}, v{T}, v{T+1}")
    P.put(gate(11, 70))
    p_st.issue()
    P.put(gate(12, 60))
    p_st.check()
    u, r = T + 15, T + 16
    e(f"v_add_f32 v{u}, v{T}, v{T+2}"); e(f"v_add_f32 v{r}, v{T+1}, v{T+3}")
    e(f"v_add_f32 v{q}, v{T+4}, v{T+6}"); e(f"v_add_f32 v{m}, v{T+5}, v{T+7}")
    allreduce("v_add_f32", [u, r, q, m], [T, T + 1, T + 2, T + 3], k="v")
    for x in (u, r, q, m): e(f"v_mul_f32 v{x}, {f2u(1/512)}, v{x}")
    for x, y in ((u, r), (q, m)):
        e(f"v_fma_f32 v{y}, -v{x}, v{x}, v{y}"); e(f"v_max_f32 v{y}, 0, v{y}")
        e(f"v_mul_f32 v{y}, {f2u(GA_**-2)}, v{y}"); e(f"v_add_f32 v{y}, {f2u(EPS)}, v{y}")
    e(f"v_rsq_f32 v{r}, v{r}", k="v"); e(f"v_sqrt_f32 v{m}, v{m}", k="v")
    for i in range(15): e(f"v_accvgpr_read_b32 v{T+i}, a{aG2+i}")
    e(f"v_mul_f32 v{u}, v{u}, v{r}")
    for i in range(15): e(f"v_fma_f32 v{T+i}, v{T+i}, v{r}, -v{u}")
    e(f"v_cvt_pk_bf16_f32 v{T}, v{T}, v{T+1}"); e(f"v_cvt_pk_bf16_f32 v{T+1}, v{T+2}, v{T+3}")
    e(f"v_accvgpr_read_b32 v{T+3}, a{aG2+15}"); e(f"v_fma_f32 v{u}, v{T+3}, v{r}, -v{u}")
    for i in range(2, 8): e(f"v_cvt_pk_bf16_f32 v{T+i}, v{T+2*i}, v{T+2*i+1}")
    for s in range(2):
        e(f"s_add_u32 s{sSF}, s{sHO}, {WS_X1 + s*PLANE}")
        P.vm(f"buffer_store_dwordx4 {vr(T+4*s,4)}, v{vTOK}, {srd(SWS)}, s{sSF} offen sc1", "x1st")
    e(f"v_bfe_u32 v{vPA}, v{vBA}, 4, 3"); e(f"v_lshlrev_b32 v{vPA}, 2, v{vPA}")
    P.put(gate(15, 40))
    set_flags(0, 1, ["x1st"])
    touch_off(T, 512, 4, 3584, [(sW3B, 1)], T + 1)
    P.vm(f"buffer_load_dword a255, v{T}, {srd(SW3)}, 0 offen")
    touch_off(T, 2048, 1, 128, [(sW3B, 512)], T + 1)
    P.vm(f"buffer_load_dword a255, v{T}, {srd(SW4)}, 0 offen")
    sum_terms(sT, (sW, 256)); dma_voff(vDW4, 1024, False, f"s{sT}", T)
    sum_terms(sT, (sG, 1 << 19)); e(f"v_add_u32 v{vDWO}, s{sT}, v{vDW4}")
    sum_terms(sT, (sW3B, 512)); e(f"v_add_u32 v{vDW4}, s{sT}, v{vDW4}")
    e(f"s_and_b32 s{sT}, s{sG}, 1"); e(f"s_sub_u32 s{sT}, 4, s{sT}"); e(f"s_mul_i32 s{sT}, s{sT}, s{sW}")
    for nb in range(4):
        e(f"s_and_b32 s{sT+1}, s{sT}, 3"); e(f"s_lshl_b32 s{sT+1}, s{sT+1}, 5"); e(f"v_xor_b32 v{vAA2+nb}, s{sT+1}, v{vAS}")
        e(f"s_lshr_b32 s{sT+1}, s{sT}, 2"); e(f"s_lshl_b32 s{sT+1}, s{sT+1}, 13"); e(f"v_add_u32 v{vAA2+nb}, s{sT+1}, v{vAA2+nb}")
        e(f"v_add_u32 v{vAA+nb}, 0xffff0000, v{vAA2+nb}"); e(f"s_add_u32 s{sT}, s{sT}, 1")
    P.put(gate(17, 60))
    p_x.issue(); code_touch()
    P.put(gate(18, 60))
    p_x.check()
    if XREG:
        def one(ks):
            e(f"s_mov_b32 s{sSF}, {WS_X1 + ks*PLANE}")
            P.vm(f"buffer_load_dwordx4 {ar(aG2 + 4*(ks-4),4)}, v{vTOK}, {srd(SWS)}, s{sSF} offen sc1", "xnl")
        paced(18, 70, 14, [lambda ks=ks: one(ks) for ks in range(4, 8)])
    P.put(gate(19, 0))
    if O_("kvt", 1):
        touch_off(T + 8, (32 - T0) * 128, 1, 128, [(sG, 0), T0 * 16384], T + 9)
        P.vm(f"buffer_load_dword a255, v{T+8}, {srd(SK)}, 0 offen"); P.vm(f"buffer_load_dword a255, v{T+8}, {srd(SV)}, 0 offen")
    if XREG:
        e(f"v_add_u32 v{T+9}, s{sW1K}, v{vBA}")
        paced(T0 - 1, 34, 6, [lambda ks=ks: P.lds(f"ds_write_b128 v{T+9}, {ar(aG2 + 4*(ks-4),4)} offset:{ks*4096}", ("xn", 1), need=["xnl"])
                              for ks in range(4, 8)])


def x1n_dma(j):
    return [([It(f"s_add_u32 m0, s{sW1K}, {ks*4096}", "s"), It(f"s_mov_b32 s{sSO}, {WS_X1 + ks*PLANE}", "s")],
             [It(f"buffer_load_dwordx4 v{vTOK}, {srd(SWS)}, s{sSO} offen sc1 lds", "g", ("xn", j), need=["x1"])])
            for ks in range(4 * j, 4 * j + 4)]


def run_tiles(t0, t1, fill, over, more, endw, ins, must, xtra={}):
    end = T0 - 1 if t0 < T0 else 31
    for t in range(t0, t1):
        groups = (kv_dma("K", t + 4) if t + 4 <= end else []) + (kv_dma("V", t + 3) if t + 3 <= end else [])
        groups = over.get(t, groups) + more.get(t, [])
        attn_iter(t, groups, fill, endw.get(t, ()), ins=ins.get(t), extra=xtra.get(t))
        head = fill[0].at if fill else (99, 0)
        if O_("showfill", 0): print(t, len(fill), head, file=sys.stderr)
        if t in must: assert head and head[0] >= must[t], (t, head, len(fill))


g2 = lambda h: shared_ops(range(8 * h, 8 * h + 8), 8 * h, lambda nb: ar(aG2 + 4 * nb, 4), False, GA,
                          lambda ks: ar(HB(ks), 4), lambda ks: [("h", ks)], f"g2{h}")
op = gemm(mt, 0, 8, ACC, [], (160, 212), opening="get")
opx = {40 + 2 * k: [it] for k, it in enumerate(op[4:12])}
opx.update({58 + k: [it] for k, it in enumerate(op[:4] + op[12:])})
xtra = {T0 - 1: opx}
if OB:
    its = [it for it in cap(acc_offset) if it.at is None]
    xtra[0] = {1: its[:1]}
    for k, it in enumerate(its[1:]): xtra[0].setdefault(11 + (k * 50) // len(its), []).append(it)
fill = cap(side1)
kv = lambda *a: [g for k in a for g in kv_dma(k[0], int(k[1:]))]
run_tiles(0, T0, fill, {0: kv("V2", "K4", "V3")},
          {O_("w2it", 1): w2t[0].dma() if SLIM else [], 6: w2t[1].dma(), 18: mt[0].dma(), 19: x1n_dma(2) + x1n_dma(3),
           20: x1n_dma(0) + mt[1].dma(), 21: [] if XREG else x1n_dma(1)},
          {4: [("w2", 0)], 7: [("w2", 1)], 20: [("xn", 3), mt[0].tag]}, {5: g2(0), 8: g2(1)}, {4: 6, 7: 8, 17: 18, 18: 19, 21: 99}, xtra)
stamp()

def ph_pack(ks):
    for k in ks:
        pack(ACC, *pieces[k])
        for j in range(4): e(f"v_accvgpr_write_b32 a{PHA(k)+j}, v{ACC(pieces[k][0], 2*pieces[k][2], pieces[k][1])+j}")


def own_x1n(per):
    return {4 * per + 2: [It(f"s_lshl2_add_u32 s{sT}, s{sKS}, s{sTB}", "s")],
            4 * per + 6: [It(f"s_lshl_b32 s{sT}, s{sT}, 10", "s"), It(f"v_add_u32 v{T+9}, s{sT}, v{vBA}", "v")],
            7 * per + 3: [It(f"ds_read_b128 {ar(aXN,4)}, v{T+9}", "l", "xnr")],
            7 * per + 7: [It(f"ds_read_b128 {ar(aXN+4,4)}, v{T+9} offset:8192", "l", "xnr")]}


def mlp_tail(act, pending, nstep, bf):
    P.wait(["xnr"]); e("s_barrier")
    stamp()
    interleave(cap(act), [x + y for x, y in pending], 16)
    gemm_pre(mt, 8)
    P.wait(["hw"]); e("s_barrier")
    stamp()
    g = 32 * (nstep - 2)
    fill = [gate(0, g + 20)] + cap(ph_pack, (0, 2, 4, 6)) + [gate(0, g + 36)] + cap(ph_pack, (1, 3, 5, 7))
    pending = []
    gemm(mt[:8 + nstep] + [Extra(kv_dma("K", T0) + kv_dma("K", T0 + 1))], 8, nstep, ACC, pending, bf, fill=fill)
    assert not pending
    P.wait([("K", T0 + 1)]); e("s_barrier")
    stamp()
    for f in range(8): P.puts(frag_reads(T0 - 1, f))
    P.drain(fill)


def mlp_even():
    P.cmt("==== channel MLP, even groups: 256 hidden columns, one private weight tile per wave and step")
    extra = own_x1n(32)
    extra.update({1: [It("s_barrier", "s")], 2 * 32 + 26: [It(None, "s", need=[("xn", 0), ("xn", 1)])],
                  2 * 32 + 27: [It("s_barrier", "s")],
                  7 * 32 + 10: [It(f"s_lshl_b32 s{sT}, s{sW}, 13", "s"), It(f"v_add_u32 v{T+8}, s{sT}, v{vBA}", "v")]})
    pending = mt[2].dma()
    gemm(mt, 0, 8, ACC, pending, (160, 212), extra=extra, opening="done", dma0=2)

    def act():
        for tb in range(4):
            gelu(16 * tb, 16, 64 + 16 * tb, lambda i: 16 * tb + i, first=tb == 0)
            for s in range(2):
                P.lds(f"ds_write_b128 v{T+8}, {vr(16*tb + 4*s,4)} offset:{s*4096 + tb*1024}", "hw")
    mlp_tail(act, pending, 8, (160, 212))


def mlp_odd():
    P.cmt("==== channel MLP, odd groups: 192 hidden columns, three weight tiles per step shared by the four waves")
    AC3 = lambda nb, tb: (tb * 3 + nb) * 4
    af = lambda s, nb, ks: AF(2 * (nb + (nb == 2) * (s & 1)) + ks)
    bf = lambda s, ks, tb: ar((160, 212)[s & 1] + (ks * 4 + tb) * 4, 4)

    def a3(s, nb):
        t = mt[s]
        base, off = (vAA2, 0) if t.slot == 2 else (vAA, t.slot * 32768)
        return [It(f"ds_read_b64_tr_b16 {ar(af(s,nb,ks)+2*h,2)}, v{base+nb} offset:{off + ks*4096 + h*2048}", "l",
                   ("A", t.tag, nb)) for ks in range(2) for h in range(2)]

    def stage(s):
        t = mt[s]
        if s >= 8: return t.dma()
        return [(([It(f"s_add_u32 m0, s{sRS}, {t.slot*32768 + c*8192}", "s")] if i == 0 else []) +
                 [It(f"s_mov_b32 s{sSO}, {t.base + i*8*3584 + c*128 - i*1024}", "s")],
                 [It(f"buffer_load_dwordx4 v{vDW2}, {srd(SW3)}, s{sSO} offen offset:{i*1024} lds", "g", t.tag)])
                for c in range(3) for i in range(2)]

    REL, RAW, DS = O_("rel", 13), O_("raw", 13), O_("ds", 3)
    DG = {(REL + 1 + DS * k) % 24 for k in range(6)}
    ms, gaps = [], own_x1n(24)
    add = lambda g, it: gaps.setdefault(g, []).append(it)
    for s in range(8):
        t, g0 = mt[s], 24 * s
        for nb in range(3):
            for tb in range(4):
                for n, ks in enumerate(range(2) if not tb & 1 else range(1, -1, -1)):
                    d = vr(AC3(nb, tb), 4)
                    ms.append(It(f"{MF} {d}, {ar(af(s,nb,ks),4)}, {bf(s,ks,tb)}, {d if s or n else 0}", "m",
                                 need=[("A", t.tag, nb), ("B", mt[0].tag, s, tb)]))
        if s == 0:
            for k, it in enumerate(a3(0, 1)[2:] + a3(0, 2)): add((0, 0, 1, 1, 2, 2)[k], it)
        add(g0 + REL - 1, It(None, "s", need=[("A", t.tag, nb) for nb in range(3)]))
        add(g0 + REL, It("s_barrier", "s"))
        if s < 7:
            u = mt[s + 1]
            add(g0 + RAW - 1, It(None, "s", need=[u.tag] + ([("xn", 0), ("xn", 1)] if s == 2 else [])))
            if RAW != REL: add(g0 + RAW, It("s_barrier", "s"))
            c = [g for g in range(RAW + 1, 24) if g not in DG]
            rd = a3(s + 1, 0) + a3(s + 1, 2) + a3(s + 1, 1)
            for k, it in enumerate(rd): add(g0 + max(c[k * len(c) // 12], 16 if k >= 8 else 0), it)
            rd = [It(f"ds_read_b128 {bf(s+1,ks,tb)}, v{vBA} offset:{u.kp*8192 + ks*4096 + tb*1024}", "l",
                     ("B", mt[0].tag, s + 1, tb)) for tb in range(4) for ks in range(2)]
            c = [g for g in range(0 if s else 4, RAW + 1) if g not in DG]
            for k, it in enumerate(rd): add(g0 + c[k * len(c) // 8], it)
        add(g0 + 19, hop())
        if O_("jit2", 0): add(g0 + 4, jitter_item())
        if SSET == "odd": add(g0, stamp_item())
    if SSET == "odd": add(len(ms) - 1, stamp_item())
    add(0, It(f"s_mul_i32 s{sT}, s{sW}, {16*3584 - 128}", "s")); add(0, It(f"v_add_u32 v{vDW2}, s{sT}, v{vDW2}", "v"))
    add(1, It("s_barrier", "s"))
    pending, prev = stage(2), 1
    for g in range(3, len(ms)):
        if g % 24 == REL + 1: pending += stage(g // 24 + 3)
        if pending and g - prev >= 2 and (g % 24 in DG or len(pending) > 6 or g < REL):
            place(add, g, pending.pop(0), prev); prev = g
    HW = (T + 8, T + 9, T + 15)

    def addr():
        P.put(gate(0, 7 * 24 + 12))
        e(f"s_mul_i32 s{sT}, s{sW}, 3")
        for nb in range(3):
            e(f"s_lshr_b32 s{sT+1}, s{sT}, 1"); e(f"s_lshl_b32 s{sT+1}, s{sT+1}, 12"); e(f"s_and_b32 s{sT+2}, s{sT}, 1")
            e(f"s_lshl3_add_u32 s{sT+1}, s{sT+2}, s{sT+1}"); e(f"v_add_u32 v{HW[nb]}, s{sT+1}, v{vBA}"); e(f"s_add_u32 s{sT}, s{sT}, 1")
        e(f"s_sub_u32 s{sT}, s{sRING}, {RING + 65536}")
        for nb in range(4):
            e(f"v_add_u32 v{vAA+nb}, s{sT}, v{vAS+nb}"); e(f"v_add_u32 v{vAA2+nb}, 0x10000, v{vAA+nb}")
    fill = cap(addr)
    P.run_gaps(ms, gaps, fill, gmin=4)
    P.drain(fill)

    def act():
        for tb in range(4):
            gelu(12 * tb, 12, 64 + 12 * tb, lambda i: 12 * tb + i, first=tb == 0)
            for nb in range(3):
                P.lds(f"ds_write_b64 v{HW[nb]}, {vr(12*tb + 2*nb,2)} offset:{tb*1024}", "hw")
    mlp_tail(act, pending, 6, (212, 160))


e(f"s_bitcmp1_b32 s{sG}, 0"); e("s_cbranch_scc1 L_odd")
lab("L_even")
state = (list(P.lq), list(P.vq), set(P.used), set(P.ever), nstamp[0])
mlp_even()
after = (list(P.lq), list(P.vq), set(P.used), set(P.ever), nstamp[0])
main, P.L = P.L, []
P.lq, P.vq, P.used, P.ever, nstamp[0] = state
mlp_odd()
e("s_branch L_join")
assert (P.lq, P.vq) == after[:2] and (SSET or nstamp[0] == after[4]), (P.lq, P.vq, after[:2])
odd_text, P.L = P.L, main
P.lq, P.vq, P.used, P.ever, nstamp[0] = after
lab("L_join")
ph_pack(range(8, 10))
gaps = {g: [] for g in range(64)}
for f in range(8, 16): gaps[16 * (f // 4 - 1) + f % 4] += frag_reads(T0 - 1, f)
for f in range(4):
    gaps[48 + f] += frag_reads(T0, f); issued.add((T0, f))
for k, grp in enumerate(kv_dma("V", T0) + kv_dma("K", T0 + 2)): place(add1, 2 + 4 * k, grp, 4 * k - 2)
fill = cap(ph_pack, range(10, 14)) + cap(first_half, False, (20, 36)) + cap(ph_pack, range(14, 16))
P.run_gaps([m for m, _ in qk_mfmas(T0 - 1)], gaps, fill)
P.drain(fill)
P.wait([("K", T0 + 2), ("V", T0)] + [("F", T0, f) for f in range(4)]); e("s_barrier")
stamp()


XF = [244, 245, 246, 247, 248, 249, T + 10, T + 11]


def side2():
    paced(T0, 60, O_("sstep", 22), [lambda k=k: store_piece(ar(PHA(k), 4), WS_PH, *pieces[k], "phs") for k in range(16)])
    touch_off(T + 8, 4096, 1, 128, [(sG, 1 << 19)], T + 9)
    P.vm(f"buffer_load_dword a255, v{T+8}, {srd(SWO)}, 0 offen")
    code_touch()
    P.put(gate(25, O_("phf", 131))); set_flags(1, 2, ["phs"])
    x_offset(T + 8, 4)
    paced(26, 50, 20, [lambda i=i: P.vm(f"buffer_load_dwordx2 {vr(XF[2*i],2)}, v{T+8}, {srd(SX)}, s{sXF} offen "
                                        f"offset:{(i//2)*128 + (i%2)*32}", "xf") for i in range(4)])
    o_addr()
    PH0 = O_("ph0", 40)
    P.put(gate(27 + PH0 // NIT, PH0 % NIT)); p_ph.issue()
    paced(27, PH0 + 110, 1, [p_ph.check])
    paced(27, PH0 + 120, O_("lstep", 22), [lambda k=k: load_piece(WS_PH, ar(PHA(k), 4), k // 2, k % 2, "phl") for k in range(16)])


def o_addr():
    if not PA:
        e(f"v_add_u32 v{T+8}, s{sW4K}, v{vBA}")
        return
    x, y = vDW2, vDW4
    for d, (ro, rb), (co, cb) in ((T + 8, (4, 4), (8, 2)), (T + 9, (6, 4), (4, 2))):
        e(f"v_bfe_u32 v{x}, v{vBA}, {ro}, {rb}"); e(f"v_bfe_u32 v{d}, v{vBA}, {co}, {cb}")
        e(f"v_and_b32 v{y}, 1, v{x}"); e(f"v_xor_b32 v{d}, v{d}, v{y}")
        e(f"v_lshrrev_b32 v{y}, 3, v{x}"); e(f"v_lshlrev_b32 v{y}, 1, v{y}"); e(f"v_xor_b32 v{d}, v{d}, v{y}")
        e(f"v_and_b32 v{y}, 6, v{x}"); e(f"v_lshl_add_u32 v{d}, v{y}, 1, v{d}")
        e(f"v_lshlrev_b32 v{d}, 3, v{d}"); e(f"v_lshl_add_u32 v{d}, v{x}, 7, v{d}")
    e(f"v_add_u32 v{T+8}, s{sW4K}, v{T+8}")


fill = cap(side2)
run_tiles(T0, 31, fill, {T0: kv(f"V{T0+1}", f"K{T0+3}", f"K{T0+4}", f"V{T0+2}"), T0 + 1: kv(f"K{T0+5}", f"V{T0+3}", f"V{T0+4}")}, {O_("wo0", 29): ot[0].dma(), 30: ot[1].dma()}, {}, {}, {30: 99})


vOW, vOR = 208, 212


def o_stage(k, st):
    s, qb = k // 4, k % 4
    b = 8 * (k % 8)
    if "o" in opt.get("cut", "") and k >= 8 and st < 3: return
    if "O" in opt.get("cut", "") and k >= 2: return
    if st == 0:
        for h in range(2):
            for j in range(4): e(f"v_accvgpr_read_b32 v{b+4*h+j}, a{O(2*s+h,qb)+j}")
    elif st == 1:
        for j in range(0, 8, 2):
            e(f"v_pk_fma_f32 {vr(b+j,2)}, {vr(b+j,2)}, {vr(NM(qb) + j%4,2)}, {vr(64 + 4*qb + j%4,2)} neg_lo:[0,0,1] neg_hi:[0,0,1]" if OB else
              f"v_pk_mul_f32 {vr(b+j,2)}, {vr(b+j,2)}, {vr(NM(qb) + j%4,2)}" if PA else
              f"v_pk_mul_f32 {vr(b+j,2)}, {vr(b+j,2)}, {vr(NM(qb),2)} op_sel_hi:[1,0]")
    elif st == 2:
        for j in range(4): e(f"v_cvt_pk_bf16_f32 v{b+j}, v{b+2*j}, v{b+2*j+1}")
    elif PA:
        P.lds(f"ds_write2st64_b64 v{vOW+qb}, {vr(b,2)}, {vr(b+2,2)} offset0:{32*s} offset1:{32*s+4}", "ow")
    else:
        P.lds(f"ds_write_b128 v{T+8}, {vr(b,4)} offset:{s*16384 + qb*1024}", "ow")


vL = 40


def row_sums():
    for qb in range(4):
        for j in range(2): e(f"v_accvgpr_read_b32 v{vL+2*qb+j}, a{LACC(qb)+j}")
    for qb in range(4): e(f"v_add_f32 v{vL+2*qb}, v{vL+2*qb}, v{vL+2*qb+1}")


def row_inverses():
    e(f"v_bfe_u32 v{vL+8}, v{vBA}, 8, 2"); e(f"v_lshlrev_b32 v{vL+8}, 4, v{vL+8}")
    for qb in range(4): e(f"v_rcp_f32 v{vL+2*qb}, v{vL+2*qb}")
    for qb in range(4):
        for r in range(4): P.lds(f"ds_bpermute_b32 v{NM(qb)+r}, v{vL+8}, v{vL+2*qb} offset:{4*r}", "rinv")


def vote():
    v = 56
    P.put(gate(31, 33))
    e(f"s_lshl_b32 s{sT+1}, s{sW}, 2"); e(f"s_add_u32 s{sT+1}, s{sT+1}, {RING + 32768}")
    e(f"v_mov_b32 v{v+4}, {f2u(-1.0 if FORCE_REDO else 2.0**64)}"); e(f"v_mov_b32 v{v+5}, s{sT+1}"); e(f"v_mov_b32 v{v+6}, {RING + 32768}")
    P.put(gate(31, 38))
    row_sums()
    e(f"v_maximum3_f32 v{v}, v{vL}, v{vL+2}, v{vL+4}"); e(f"v_maximum3_f32 v{v}, v{v}, v{vL+6}, v{vL+6}")
    e(f"v_cmp_nle_f32 vcc, v{v}, v{v+4}")
    e(f"s_cmp_lg_u64 vcc, 0\n    s_cselect_b32 s{sT}, 1, 0", k="v")
    e(f"v_mov_b32 v{v}, s{sT}")
    P.lds(f"ds_write_b32 v{v+5}, v{v}", "vote")
    inv = P.rec; k = len(inv) + 6
    row_inverses()
    inv[k:k] = [It(None, "s", need=["vote"]), It("s_barrier", "s"), It(f"ds_read_b128 {vr(v,4)}, v{v+6}", "l", "votes")]
    e(f"v_or3_b32 v{v}, v{v}, v{v+1}, v{v+2}", need=["votes"]); e(f"v_or_b32 v{v}, v{v}, v{v+3}")
    e(f"v_readfirstlane_b32 s{sT}, v{v}")


fill = cap(vote)
if SSET == "oe": stamp(0)
attn_iter(31, [], fill)
if SSET == "oe": stamp(0)
P.drain(fill)
e(f"s_cmp_lg_u32 s{sT}, 0"); e("s_cbranch_scc1 L_redo")
lab("L_att_done")
stamp()
if SSET == "oe": stamp(0)

if PA:
    for qb in range(4):
        e(f"v_xor_b32 v{vOW+qb}, {32*qb}, v{T+8}"); e(f"v_xor_b32 v{vOR+qb}, {32*qb}, v{T+9}")
o_stage(0, 0)
P.wait(["rinv"])
if OB:
    for i in range(16): e(f"v_mul_f32 v{64+i}, s{sOB}, v{vR+i}")
lag = [int(x) for x in opt.get("olag", "0,1,2,3").split(",")]
WG = O_("owg", 1)
for k in range(16 + lag[3] + WG):
    if SSET == "oe" and k % 4 == 0: stamp(0)
    for st in range(3):
        if 0 <= k - lag[st] < 16 and k + st: o_stage(k - lag[st], st)
    if (k - lag[3]) % WG == WG - 1:
        for j in range(k - lag[3] - WG + 1, k - lag[3] + 1):
            if 0 <= j < 16: o_stage(j, 3)
if SSET in ("o", "oe"): stamp(0)
gemm_pre(ot, 0)
P.wait(["ow"]); e("s_barrier")
if SSET in ("o", "oe"): stamp(0)
stamp()
OACC = lambda nh, nb, tb: 64 + ACC(nh, nb, tb)
PSR = lambda g, nh: nh * 32 + g * 4


def o_side():
    if OWN:
        P.put(gate(0, 32 * 7))
        for u in range(2):
            e(f"s_lshl1_add_u32 s{sT}, s{sW}, {u}")
            e(f"s_cmp_eq_u32 s{sT}, s{sG}\n    s_cselect_b32 s{sPO[u]}, 0x7f000000, 0")
            e(f"v_or_b32 v{vPO+u}, s{sPO[u]}, v{vBA}")
        sum_terms(sPX, (sG, 8192), (sPC, 1), WS_PS)
    P.put(gate(0, 32 * 8 + 4))
    for p in pieces[:8]: pack(OACC, *p)
    for p, g in zip(pieces, [int(x) for x in opt.get("s0g", "440,448,456,464,472,480,488,496").split(",")]):
        P.put(gate(0, g))
        store_piece(vr(OACC(0, 2 * p[2], p[1]), 4), WS_PS, *p, "s0s")
    if O_("f0k", 3) < 0:
        P.put(gate(0, O_("f0g", 500))); set_flags(2, 2, ["s0s"])


fill = cap(o_side)
pending = ot[2].dma()
gemm(ot, 0, 16, OACC, pending, (0, 32, 64, 96, (vr, 0), (vr, 32))[:O_("obs", 6)], fill=fill, breg=vOR if PA else vBA, btr=PA)
P.drain(fill)
stamp()
P0K = O_("p0k", -1)
for k, p in enumerate(pieces[8:]):
    pack(OACC, *p); store_piece(vr(OACC(1, 2 * p[2], p[1]), 4), WS_PS, *p, "s1s")
    if k == O_("f0k", 3): set_flags(2, 2, ["s0s"])
    if k == P0K: p_s0.issue()
vY, vS, vG, vX = 64, 80, 96, 112


def gate_values():
    for i in range(8): e(f"v_accvgpr_read_b32 v{vG+i}, a{aXN+i}")
    for i in range(8):
        e(f"v_lshlrev_b32 v{vY+2*i}, 16, v{vG+i}"); e(f"v_and_b32 v{vY+2*i+1}, 0xffff0000, v{vG+i}")
    for i in range(16): e(f"v_fma_f32 v{vY+i}, v{vY+i}, v{vRSTD}, v{vNMEAN}")
    for k in range(17):
        if k < 16:
            for j in range(4): e(f"v_accvgpr_read_b32 v{vG + 4*(k%2) + j}, a{PHA(k)+j}", need=[("phl", k // 2, k % 2)])
        if k: add_piece(vY + 8 * ((k - 1) % 2), vG + 4 * ((k - 1) % 2), False, ())
    for i in range(16): e(f"v_mul_f32 v{vG+i}, s{sNL2E}, v{vY+i}")
    for i in range(16): e(f"v_exp_f32 v{vG+i}, v{vG+i}")
    e(f"s_mov_b32 s{sT}, {f2u(GA_ * 2.0**OSH)}")
    for i in range(16): e(f"v_fma_f32 v{vG+i}, v{vG+i}, s{sT}, s{sT}")
    for i in range(16): e(f"v_rcp_f32 v{vG+i}, v{vG+i}")
    for i in range(0, 16, 2): e(f"v_pk_mul_f32 {vr(vG+i,2)}, {vr(vG+i,2)}, {vr(vY+i,2)}")
    for i in range(8):
        e(f"v_lshlrev_b32 v{vX+2*i}, 16, v{XF[i]}", need=["xf"]); e(f"v_and_b32 v{vX+2*i+1}, 0xffff0000, v{XF[i]}")
    e(f"v_bfe_u32 v200, v{vTOK}, 4, 4"); e("v_lshlrev_b32 v200, 10, v200"); e(f"v_bfe_u32 v201, v{vBA}, 8, 2")
    e("v_lshl_add_u32 v200, v201, 4, v200")


if OWN:
    e(f"v_add_u32 v216, s{sRING}, v{vBA}")
    for u in range(2):
        e(f"s_cmp_eq_u32 s{sPO[u]}, 0"); e(f"s_cbranch_scc1 L_away{u}")
        for nh, tb, s in pieces:
            if tb >> 1 == u: e(f"ds_write_b128 v216, {vr(OACC(nh,2*s,tb),4)} offset:{((tb & 1) + 2*s)*2048 + nh*1024}")
        lab(f"L_away{u}")
    e(f"s_lshr_b32 s{sT}, s{sG}, 1"); sum_terms(sT + 1, (sT, 8192), (sW, 2048), RING); e(f"v_add_u32 v216, s{sT+1}, v{vBA}")
    P.wait_all(vm=False); e("s_barrier")
    for nh in range(2): P.lds(f"ds_read_b128 {vr(192+4*nh,4)}, v216 offset:{nh*1024}", "own")
code = cap(gate_values)
if OWN:
    for nh in range(2): code[40:40] = cap(add_piece, vS + 8 * nh, 192 + 4 * nh, True, ["own"])
k0, k1 = O_("gs0", 232), O_("gs1", 400)
P.puts(code[:k0])
if P0K < 0: p_s0.issue()
P.puts(code[k0:k1])
set_flags(3, 2, ["s1s"])
stamp(2)
p_s0.check()
for g in range(OWN, 8): load_piece(WS_PS, vr(PSR(g, 0), 4), g, 0, "psl")
p_s1.issue()
P.puts(code[k1:])


def finish(nh):
    for g in range(OWN, 8): add_piece(vS + 8 * nh, PSR(g, nh), g == 0, [("psl", g, nh)])
    for i in range(8 * nh, 8 * nh + 8, 2): e(f"v_pk_fma_f32 {vr(vG+i,2)}, {vr(vG+i,2)}, {vr(vS+i,2)}, {vr(vX+i,2)}")
    d = 204 + 4 * nh
    for i in range(4): e(f"v_cvt_pk_bf16_f32 v{d+i}, v{vG+8*nh+2*i}, v{vG+8*nh+2*i+1}")
    for sw in ("v_permlane32_swap_b32", "v_permlane16_swap_b32"):
        for j in range(2): e(f"{sw} v{d+j}, v{d+2+j}")
    P.vm(f"buffer_store_dwordx4 {vr(d,4)}, v200, {srd(SOUT)}, s{sXF} offen offset:{nh*128}")


p_s1.check()
stamp()
for g in range(OWN, 8): load_piece(WS_PS, vr(PSR(g, 1), 4), g, 1, "psl")
finish(0)
finish(1)
if AMP:
    P.wait_all(); stamp()
    e(f"s_sub_u32 s{sST}, s{sST+2}, s{sST}")
    e(f"s_lshr_b32 s{sST}, s{sST}, 5" if AMP[3] else f"s_lshl_b32 s{sST}, s{sST}, {AMP[2]}")
    if "ampsel" in opt:
        e(f"s_lshr_b32 s{sT}, {opt['ampsel']}, s{sG}"); e(f"s_and_b32 s{sT}, s{sT}, 1"); e(f"s_mul_i32 s{sST}, s{sST}, s{sT}")
    e(f"s_memrealtime {sr(sST+2,2)}"); e("s_waitcnt lgkmcnt(0)")
    lab("L_amp")
    e(f"s_memrealtime {sr(sST+4,2)}"); e("s_waitcnt lgkmcnt(0)")
    e(f"s_sub_u32 s{sST+4}, s{sST+4}, s{sST+2}"); e(f"s_cmp_lt_u32 s{sST+4}, s{sST}"); e("s_cbranch_scc1 L_amp")
if STAMP:
    P.wait_all()
    stamp()
    e(f"s_lshl_b32 s{sT}, s2, 2"); e(f"s_add_u32 s{sT}, s{sT}, s{sW}"); e(f"s_lshl_b32 s{sT}, s{sT}, 8")
    e(f"s_add_u32 s{sT}, s{sT}, {WS_ST}"); e(f"v_lshrrev_b32 v0, 2, v{vBA}")
    P.vm(f"buffer_store_dword a254, v0, {srd(SWS)}, s{sT} offen")
e("s_endpgm")

lab("L_side")
NPP = O_("npp", 1)
for p in slow_paths:
    lab(f"L_slow_{p.name}")
    if NPP > 1 and p.name in ("s0", "s1"):
        regs = [f"v{216 + i}" for i in range(NPP)]
        ld = lambda i: e(p.loads[0].replace(f"v{vPOLL},", regs[i % NPP] + ","))
        for i in range(NPP - 1):
            ld(i); e(f"s_sleep {O_('pps', 5)}")
        lab(f"L_spin_{p.name}")
        for i in range(NPP):
            ld(i + NPP - 1); e(f"s_waitcnt vmcnt({NPP - 1})")
            e(p.tests[0].replace(f"v{vPOLL}", regs[i])); e(f"s_cbranch_vccz L_back_{p.name}")
        e(f"s_add_u32 s{sSPIN}, s{sSPIN}, 1"); e(f"s_cmp_gt_u32 s{sSPIN}, 0x200000")
        e(f"s_cbranch_scc0 L_spin_{p.name}"); e(f"s_branch L_back_{p.name}")
        continue
    e("s_sleep 1")
    for l in p.loads: e(l)
    e(f"s_add_u32 s{sSPIN}, s{sSPIN}, 1")
    e("s_waitcnt vmcnt(0)")
    for t in p.tests: e(t)
    e(f"s_cmp_gt_u32 s{sSPIN}, 0x200000"); e(f"s_cbranch_scc1 L_back_{p.name}")
    e(f"s_cbranch_vccnz L_slow_{p.name}")
    e(f"s_branch L_back_{p.name}")

lab("L_redo")
P.lq, P.vq = [], []
e(f"s_mov_b32 s{sOB}, 0")
for s in range(4): e(f"v_add_u32 v{KA(s)}, 49152, v{KA(s)}")
for qb in range(4): e(f"v_mov_b32 v{NM(qb)}, 0xff800000")


def redo_tile(kinds, zero):
    P.used = set()
    P.wait_all(); e("s_barrier")
    for kind, lds in kinds: flush(kv_dma(kind, 0, lds=lds, so=f"s{sCNT}"))
    P.wait_all(); e("s_barrier")
    mf = [m for m, _ in qk_mfmas(2, zero=zero)]
    for half in range(2):
        for f in range(8 * half, 8 * half + 8): P.puts(frag_reads(2, f))
        P.puts(mf[32 * half:32 * half + 32])


e(f"s_mov_b32 s{sCNT}, 0")
lab("L_rmax")
redo_tile([("K", 98304)], True)
for qb in range(4):
    regs = [S(1, kb, qb) + i for kb in range(4) for i in range(4)]
    for i in range(0, 16, 2): e(f"v_max3_f32 v{NM(qb)}, v{NM(qb)}, v{regs[i]}, v{regs[i+1]}")
e(f"s_add_u32 s{sCNT}, s{sCNT}, 16384"); e(f"s_cmp_lt_u32 s{sCNT}, 0x80000"); e("s_cbranch_scc1 L_rmax")
allreduce("v_max_f32", [NM(qb) for qb in range(4)], [NM(qb) + 1 for qb in range(4)])
for qb in range(4):
    for i in (1, 2, 3, 0): e(f"v_sub_f32 v{NM(qb)+i}, 0, v{NM(qb)}")
for i in list(range(128)) + list(range(192, 208)): e(f"v_accvgpr_write_b32 a{i}, 0")
e(f"s_mov_b32 s{sCNT}, 0")
lab("L_rpv")
redo_tile([("K", 98304), ("V", 114688)], False)
for half in range(2):
    ex, post = sm_stream(1, half)
    P.puts(ex); P.puts([x for p in post for x in p])
mf = [m for m, _ in pv_mfmas(3)]
for half in range(2):
    for f in range(16 + 8 * half, 24 + 8 * half): P.puts(frag_reads(3, f))
    P.puts(mf[34 * half:34 * half + 34])
e(f"s_add_u32 s{sCNT}, s{sCNT}, 16384"); e(f"s_cmp_lt_u32 s{sCNT}, 0x80000"); e("s_cbranch_scc1 L_rpv")
row_sums(); row_inverses(); P.wait(["rinv"])
e("s_branch L_att_done")
if HOP: P.raw(".p2align 12")
lab("L_odd")
P.L += odd_text
lab("L_end")
e("s_endpgm")
P.L += ['.section .rodata,"a"', ".p2align 6", f".amdhsa_kernel {NAME}",
        "  .amdhsa_next_free_vgpr 512", "  .amdhsa_next_free_sgpr 102", "  .amdhsa_accum_offset 256",
        "  .amdhsa_group_segment_fixed_size 0", "  .amdhsa_kernarg_size 104", "  .amdhsa_user_sgpr_count 2",
        "  .amdhsa_user_sgpr_kernarg_segment_ptr 1", "  .amdhsa_system_sgpr_workgroup_id_x 1",
        "  .amdhsa_float_denorm_mode_32 3", ".end_amdhsa_kernel"]
lines = "\n".join(P.L).split("\n")
for key, pats in (("kvf", (srd(SK), srd(SV))), ("wf", tuple(srd(x) for x in (SWQ, SWO, SW1, SW2, SW3, SW4)))):
    if opt.get(key):
        lines = [l.replace(" lds", " " + opt[key].replace("+", " ") + " lds") if l.endswith(" lds") and any(x in l for x in pats) else l
                 for l in lines]
if opt.get("xf"): lines = [l + " " + opt["xf"] if "load_dwordx4 v[" in l and (srd(SX) in l or "s[64:65]" in l) else l for l in lines]
ABL = opt.get("abl", "")
if ABL:
    i0 = next(i for i, l in enumerate(lines) if "output projection" in l); i1 = lines.index("L_side:")
    j0 = max(i for i in range(i0, i1) if MF in lines[i])
    keep = []
    for i, l in enumerate(lines):
        if i0 < i < i1:
            if "p" in ABL and "s_cbranch_vccnz L_slow_s" in l: continue
            if "w" in ABL and i > j0 and "vmcnt" in l and "v_dot2" not in lines[i + 1]: continue
            if "l" in ABL and "buffer_load_dwordx4" in l and "sc1" in l: continue
            if "s" in ABL and "buffer_store_dwordx4" in l and "sc1" in l: continue
        keep.append(l)
    lines = keep
if opt.get("tcf"): lines = [l + " " + opt["tcf"] if "_load_dword a255" in l and "sc1" not in l and ", off" not in l else l for l in lines]
lines, added = fix_hazards(lines)
nhop = 0
if HOP: lines, nhop = add_page_hops(lines, sW)
lines = [l for l in lines if "@hop" not in l]
if O_("short", 1): lines = compress(lines)
text = "\n".join(lines) + "\n"
open(OUT_PATH, "w").write(text)
print(f"{OUT_PATH}: {len(lines)} lines, {len(text)} bytes, {added} wait states padded, {nstamp[0]} stamps, {nhop} hops", file=sys.stderr)
```

```python
import math
import struct
import sys
from asmlib6 import *

OUT_PATH = sys.argv[1]
opt = dict(a.split("=") for a in sys.argv[2:])
O_ = lambda k, d: int(opt.get(k, d))
STAMP = O_("stamp", 0)
SSET = opt.get("sset", "")
FORCE_REDO = O_("redo", 0)
QPERM = O_("qperm", 1)
PA = O_("pa", 1)
OB = O_("ob", -19)
sOB = 100
OWN = O_("own", 1)
sPO, vPO, sPX = (3, 101), 218, 65
OSH = O_("osh", 0)
XREG = O_("xreg", 1)
AHEAD = O_("ahead", 10)
AMP = [int(x) for x in opt["amp"].split(",")] if "amp" in opt else None

NAME = "recurrent_scan__gqa_block_cached__mixer_s_mlp__prompt_kernel"
MF = "v_mfma_f32_16x16x32_bf16"
f2u = lambda x: "0x%08x" % struct.unpack("<I", struct.pack("<f", x))[0]
LOG2E = math.log2(math.e)
QSCALE = LOG2E / math.sqrt(128.0)
GC1 = -2.0 * math.sqrt(2.0 / math.pi) * LOG2E
GC2 = GC1 * 0.044715
EPS = 1e-5
GA_ = (-GC2) ** (1.0 / 3.0)
GK = -GC1 / GA_

SX, SK, SV, SWS, SWQ, SWO, SW1, SW2, SW3, SW4, SOUT, SDBG = range(4, 52, 4)
sG, sM, sW = 52, 53, 54
sT = 55
sW1K, sW4K, sRING, sSO = 60, 61, 62, 63
sSF, sCNT, sSPIN, sHO, sPP, sPC, sFL, sF0, sF1, sSTP, sSTC = range(64, 75)
sLO, sHI, sONE2, sC1, sC2, sNL2E, sF2, sMSK, sKS, sF3, sTB, sSTF, sXF, sRS, sW3B = range(75, 90)
sST = 92
srd = lambda b: sr(b, 4)

WS_H, WS_X1, WS_PS, WS_PH, WS_FL, WS_SS, WS_ST = 0, 0x200000, 0x400000, 0x1400000, 0x2400000, 0x2500000, 0x4000000
PLANE = 131072

vBA, vTOK, vNMEAN, vRSTD, vLANE, vSTAMP, vCODE, vAS, vDW2 = 255, 254, 253, 252, 251, 250, 248, 244, 243
T = 226
vAA, vAA2 = T, T + 4
vBX, vWA, vSC1, vDWQ, vDW1 = T + 8, T + 9, T + 12, T + 14, T + 15
vPA, vPOLL, vONE, vDW4, vDWO = T + 16, T + 15, T + 14, T + 13, T + 12
vTC = T + 10
XR = 128
G12 = 192
S = lambda buf, kb, qb: buf * 64 + qb * 16 + kb * 4
PR = lambda buf, ks, qb: buf * 64 + qb * 16 + ks * 4
vIDX = vSTAMP
NIT = 132
Q = lambda qb, s: 128 + (qb * 4 + s) * 4
NM = lambda qb: 192 + 4 * qb
KA = lambda s: 208 + s
VA = lambda db: 212 + db
KG = lambda i: 220 + i
VG = lambda i: 224 + (i & 1)
vR = NM(0)
O = lambda db, qb: (db * 4 + qb) * 4
FR = lambda f: 128 + (f % 8) * 4
HB = lambda ks: 160 + (ks % 8) * 4
LACC = lambda qb: 192 + 4 * qb
aONES, aG2, aXN = 208, 212, 244
GA = lambda i: 228 + (i % 4) * 4
AF = lambda f: 128 + (f % 8) * 4
PHA = lambda k: (160, 212)[k // 8] + (k % 8) * 4
T0 = 22
RING, VOFF = 65536, 65536

P = Prog()
e, lab, cap = P.e, P.lab, P.capture
slow_paths = []
nstamp = [0]


JIT = O_("jitter", 0)
njit = [0]


def jitter():
    i = njit[0]; njit[0] += 1
    e(f"s_memrealtime {sr(96,2)}"); P.wait_all(vm=False)
    e(f"s_lshr_b32 s96, s96, 14"); e(f"s_lshl_b32 s97, s2, 2" if JIT & 1 else "s_mov_b32 s97, s2")
    if JIT & 1: e(f"s_add_u32 s97, s97, s{sW}")
    e(f"s_add_u32 s96, s96, s97"); e(f"s_add_u32 s96, s96, {i * 7919 + 13}"); e("s_mul_i32 s96, s96, 0x9e3779b1")
    e("s_mov_b32 s98, s96")
    e(f"s_lshr_b32 s96, s96, {32 - (JIT >> 1)}")
    lab(f"L_jit{i}")
    e("s_sleep 8"); e("s_sub_u32 s96, s96, 1"); e(f"s_cbranch_scc0 L_jit{i}")


def jitter_item():
    i = njit[0]; njit[0] += 1
    return It(f"s_mul_i32 s98, s98, 0x41c64e6d\n    s_add_u32 s98, s98, 12345\n    s_lshr_b32 s99, s98, 27\n"
              f"    s_sub_u32 s99, s99, 24\n    s_cbranch_scc1 L_jx{i}\nL_jw{i}:\n    s_sleep {O_('jit2', 0)}\n"
              f"    s_sub_u32 s99, s99, 1\n    s_cbranch_scc0 L_jw{i}\nL_jx{i}:", "s")


def stamp(level=1):
    if JIT and level == 1: jitter()
    if AMP and level == 1:
        i = nstamp[0]; nstamp[0] += 1
        if i in AMP[:2]:
            e(f"{'s_memtime' if AMP[3] else 's_memrealtime'} {sr(sST + 2*AMP.index(i),2)}"); P.wait_all(vm=False)
        return
    if STAMP < level or (SSET and level != 0):
        return
    i = nstamp[0]; nstamp[0] += 1
    e(f"s_memtime {sr(sST,2)}"); e(f"s_memrealtime {sr(sST+2,2)}")
    P.wait_all(vm=False)
    e(f"v_accvgpr_read_b32 v{vSTAMP}, a254")
    e(f"v_writelane_b32 v{vSTAMP}, s{sST}, {2*i}")
    e(f"v_writelane_b32 v{vSTAMP}, s{sST+2}, {2*i+1}")
    e(f"v_accvgpr_write_b32 a254, v{vSTAMP}"); e(f"v_accvgpr_read_b32 v{vSTAMP}, a253")


def stamp_item():
    i = nstamp[0]; nstamp[0] += 1
    return It(f"s_memtime {sr(sST,2)}\n    s_memrealtime {sr(sST+2,2)}\n    s_waitcnt lgkmcnt(0)\n"
              f"    v_accvgpr_read_b32 v{vSTAMP}, a254\n"
              f"    v_writelane_b32 v{vSTAMP}, s{sST}, {2*i}\n    v_writelane_b32 v{vSTAMP}, s{sST+2}, {2*i+1}\n"
              f"    v_accvgpr_write_b32 a254, v{vSTAMP}\n    v_accvgpr_read_b32 v{vSTAMP}, a253", "s")


def mk_srd(d, p, size):
    e(f"s_mov_b32 s{d}, s{p}"); e(f"s_mov_b32 s{d+1}, s{p+1}"); e(f"s_mov_b32 s{d+2}, {size}"); e(f"s_mov_b32 s{d+3}, 0x20000")


def sum_terms(dst, *terms):
    first = True
    for t in terms:
        if isinstance(t, int):
            e(f"s_add_u32 s{dst}, s{dst}, {t}"); continue
        r, k = t
        if k == 0:
            e(f"s_mov_b32 s{dst}, 0"); first = False; continue
        d = dst if first else sT + 4
        e(f"s_lshl_b32 s{d}, s{r}, {k.bit_length()-1}" if k & (k - 1) == 0 else f"s_mul_i32 s{d}, s{r}, {k}")
        if not first: e(f"s_add_u32 s{dst}, s{dst}, s{d}")
        first = False


def allreduce(op, regs, tmps, k=None):
    for sw in ("v_permlane32_swap_b32", "v_permlane16_swap_b32"):
        for r, t in zip(regs, tmps): e(f"v_mov_b32 v{t}, v{r}")
        for r, t in zip(regs, tmps): e(f"{sw} v{r}, v{t}", k=k)
        for r, t in zip(regs, tmps): e(f"{op} v{r}, v{r}, v{t}")


def masked(mask, txt, tag=None, lds=False):
    (P.lds if lds else P.vm)(f"s_mov_b64 exec, {mask}\n    {txt}\n    s_mov_b64 exec, -1", tag)


class Poll:
    def __init__(self, name, loads, tests):
        self.name, self.loads, self.tests = name, loads, tests
        slow_paths.append(self)

    def issue(self):
        for l in self.loads: P.vm(l, self.name)

    def check(self):
        for i, t in enumerate(self.tests): e(t, need=[self.name] if i == 0 else ())
        e(f"s_cbranch_vccnz L_slow_{self.name}\nL_back_{self.name}:", k="v")


def flag_poll(name, s_rd, soff, target):
    return Poll(name, [f"buffer_load_dword v{vPOLL}, v{vPA}, {srd(s_rd)}, {soff} offen sc1"],
                [f"v_cmp_gt_u32 vcc, {target}, v{vPOLL}"])


def set_flags(stage, nlanes, need, val=1):
    e(f"v_mov_b32 v{vONE}, {val}")
    e(f"s_add_u32 s{sSF}, s{sFL}, {stage * 1024}")
    P.wait(need)
    masked((1 << nlanes) - 1, f"buffer_store_dword v{vONE}, v{vLANE}, {srd(SWS)}, s{sSF} offen sc1")


def interleave(code, side, every):
    side = list(side)
    for k, it in enumerate(code):
        if side and k % every == 0: P.puts(side.pop(0))
        P.put(it)
    for x in side: P.puts(x)


def gelu(base, n, tmp, dst, first):
    pairs = range(0, n, 2)
    if "g" in opt.get("cut", ""):
        for i in pairs: e(f"v_cvt_pk_bf16_f32 v{dst(i//2)}, v{base+i}, v{base+i+1}")
        return
    if first: e(f"v_mov_b32 v{vTC}, s{sC1}")
    for i in pairs: e(f"v_pk_fma_f32 {vr(tmp+i,2)}, {vr(base+i,2)}, {vr(base+i,2)}, {vr(vTC,2)} op_sel_hi:[1,1,0]")
    for i in pairs: e(f"v_pk_mul_f32 {vr(tmp+i,2)}, {vr(tmp+i,2)}, {vr(base+i,2)} neg_lo:[0,1] neg_hi:[0,1]")
    for i in range(n): e(f"v_exp_f32 v{tmp+i}, v{tmp+i}")
    for i in pairs: e(f"v_pk_add_f32 {vr(tmp+i,2)}, {vr(tmp+i,2)}, 1.0 op_sel_hi:[1,0]")
    for i in range(n): e(f"v_rcp_f32 v{tmp+i}, v{tmp+i}")
    for i in pairs: e(f"v_pk_mul_f32 {vr(tmp+i,2)}, {vr(tmp+i,2)}, {vr(base+i,2)}")
    for i in pairs: e(f"v_cvt_pk_bf16_f32 v{dst(i//2)}, v{tmp+i}, v{tmp+i+1}")


class Tile:
    def __init__(self, s_rd, voff, base, stride, perm, slot, tag, rows=64, kp=0, nh=0, half=32):
        self.__dict__.update(locals())

    def dma(self):
        out = []
        for i in range(self.rows // 8):
            row = ((0, 16, 4, 20)[i & 3] if self.perm else 8 * (i & 3)) + self.half * (i >> 2)
            so = self.base + row * self.stride - (i & 3) * 1024
            pre = [It(f"s_add_u32 m0, s{sRING}, {self.slot * 32768 + (i >> 2) * 4096}", "s")] if i % 4 == 0 else []
            out.append((pre + [It(f"s_mov_b32 s{sSO}, {so}", "s")],
                        [It(f"buffer_load_dwordx4 v{self.voff}, {srd(self.s_rd)}, s{sSO} offen "
                            f"offset:{(i & 3) * 1024} lds", "g", self.tag)]))
        return out


def place(add, g, grp, prev, avoid=()):
    pre, its = grp
    c = [h for h in range(max(prev + 1, 0), g) if h not in avoid][-len(pre):] if pre else []
    for k, it in enumerate(pre): add(c[k] if len(c) == len(pre) else max(g - len(pre) + k, prev + 1, 0), it)
    for it in its: add(g, it)


def dma_voff(dst, stride, perm, s_base, a):
    b = a + 1
    e(f"v_lshrrev_b32 v{a}, 10, v{vLANE}")
    e(f"v_bfe_u32 v{b}, v{vBA}, 4, 3")
    e(f"v_and_b32 v{dst}, 6, v{a}"); e(f"v_xor_b32 v{b}, v{b}, v{dst}")
    if perm:
        e(f"v_and_b32 v{dst}, 4, v{a}"); e(f"v_add_u32 v{a}, v{a}, v{dst}")
    e(f"v_mul_u32_u24 v{a}, {stride}, v{a}")
    e(f"v_lshl_add_u32 v{a}, v{b}, 4, v{a}")
    e(f"v_add_u32 v{dst}, {s_base}, v{a}")


def a_reads(t, ti, nb):
    base = (vAA2 if t.slot == 2 else vAA) + nb
    off = (t.slot % 2) * 32768 if t.slot < 2 else 0
    return [It(f"ds_read_b64_tr_b16 {ar(AF(nb*2+ks) + 2*h, 2)}, v{base} offset:{off + ks*4096 + h*2048}", "l",
               ("A", t.tag, nb), need=[t.tag]) for ks in range(t.rows // 32) for h in range(2)]


def gemm_pre(tiles, i0):
    P.puts(a_reads(tiles[i0], i0, 0))


def gemm(tiles, i0, n, acc, pending, bf, breg=vBA, extra=None, fill=None, over=0, opening=None, dma0=0, btr=False):
    bf = [x if isinstance(x, tuple) else (ar, x) for x in bf]
    BF = lambda s, ks, tb, o=0, w=4: bf[grp[s] % len(bf)][0](bf[grp[s] % len(bf)][1] + (ks * 4 + tb) * 4 + o, w)
    ms, gaps, start, grp, held, fresh = [], {}, [], [], {}, []
    seen = set()
    for s, ti in enumerate(range(i0, i0 + n)):
        t = tiles[ti]
        fresh.append(t.kp not in held)
        if fresh[s]:
            k = max(grp, default=-1) + 1
            while s and k % len(bf) == grp[s - 1] % len(bf): k += 1
            held = {kp: g for kp, g in held.items() if g % len(bf) != k % len(bf)}
            held[t.kp] = k
        grp.append(held[t.kp])
        start.append(len(ms))
        nks = t.rows // 32
        for nb in range(4):
            for tb in range(4):
                for ks in (range(nks) if not tb & 1 else range(nks - 1, -1, -1)):
                    d = vr(acc(t.nh, nb, tb), 4)
                    c = d if (t.nh, nb, tb) in seen else "0"
                    seen.add((t.nh, nb, tb))
                    ms.append(It(f"{MF} {d}, {ar(AF(nb*2+ks),4)}, {BF(s,ks,tb)}, {c}", "m",
                                 need=[("A", t.tag, nb), ("B", tiles[i0].tag, grp[s], tb)]))
    start.append(len(ms))

    def b_reads(s):
        t = tiles[i0 + s]
        if btr:
            return [It(f"ds_read_b64_tr_b16 {BF(s,ks,tb,2*h,2)}, v{breg+tb} offset:{t.kp*8192 + ks*4096 + h*2048}",
                       "l", ("B", tiles[i0].tag, grp[s], tb)) for tb in range(4) for ks in range(2) for h in range(2)]
        return [It(f"ds_read_b128 {BF(s,ks,tb)}, v{breg} offset:{t.kp*8192 + ks*4096 + tb*1024}", "l",
                   ("B", tiles[i0].tag, grp[s], tb)) for tb in range(4) for ks in range(t.rows // 32)]

    add = lambda g, it: gaps.setdefault(g, []).append(it)
    pre = b_reads(0)
    release = {}
    for s in range(n):
        ti = i0 + s; t = tiles[ti]
        per = (start[s + 1] - start[s]) // 4
        for nb in range(4):
            if s == 0 and nb == 0: continue
            rd = a_reads(t, ti, nb)
            for k, it in enumerate(rd):
                g = start[s] + per * nb - 6 - 2 * (len(rd) - 1 - k)
                if g < 0: pre.append(it)
                else: add(g, it)
        if ti + 3 < len(tiles) and tiles[ti + 3]: release[start[s] + 3 * per] = tiles[ti + 3]
        if s + 1 < n and fresh[s + 1]:
            s0 = s - 1 if s and not fresh[s] and grp[s - 1] % len(bf) != grp[s + 1] % len(bf) else s
            rd = b_reads(s + 1)
            cand = [g for g in range(start[s0], start[s + 1] - 6) if g % 4 == 3]
            if btr: cand = sorted(cand * 2)
            if len(cand) < len(rd): cand = sorted(cand + [start[s0] + 2 * k for k in range(len(rd) - len(cand))])
            step = len(cand) / len(rd)
            for k, it in enumerate(rd): add(cand[int(k * step)], it)
    if opening == "get": return a_reads(tiles[i0], i0, 0) + pre
    if opening == "done": pre = []
    prev = dma0 - 1
    for g in range(dma0, len(ms)):
        if g in release: pending += release[g].dma()
        nxt = min([r for r in release if r > g], default=len(ms) + 24)
        if pending and (g % 4 == 1 or (g % 4 == 3 and len(pending) > (nxt - g + 1) // 4)):
            place(add, g, pending.pop(0), prev); prev = g
    for g, its in (extra or {}).items():
        for it in its: add(g, it)
    for g in start[:-1]: add(g + 10, hop())
    if O_("jit2", 0):
        for g in start[:-1]: add(g + 4, jitter_item())
    if SSET == {id(qt): "q", id(ot): "o"}.get(id(tiles), "mlp"):
        for g in start[:-1] + [len(ms) - 1]: add(g, stamp_item())
    P.puts(pre)
    P.run_gaps(ms, gaps, fill, gmin=4, over=over)


def flush(pending):
    while pending:
        a, b = pending.pop(0)
        P.puts(a + b)


def shared_ops(kss, koff, acc, zero, afr, breg, bneed, name, i0=0):
    out = []
    for nb in range(4):
        for ks in kss:
            i = i0 + len(out)
            d = acc(nb)
            out.append((It(f"{MF} {d}, {ar(afr(i),4)}, {breg(ks)}, {0 if zero and not ks else d}", "m",
                           need=[(name, i)] + list(bneed(ks))),
                        [It(f"ds_read_b64_tr_b16 {ar(afr(i)+2*h,2)}, v{vAS+nb} offset:{(ks-koff)*4096 + h*2048}", "l",
                            (name, i)) for h in range(2)]))
    return out


def pack(acc, nh, tb, s, second=False, guard=False):
    a, b = acc(nh, 2 * s, tb), acc(nh, 2 * s + 1, tb)
    order = list(enumerate((a, a + 2, b, b + 2)))
    d = b if second else a
    for j, r in reversed(order) if second else order: e(f"v_cvt_pk_bf16_f32 v{d+j}, v{r}, v{r+1}")
    if guard:
        for j in range(4): e(f"v_min_u32 v{d+j}, -2, v{d+j}")


def store_piece(src, ws_base, nh, tb, s, tag):
    lane = vPO + (tb >> 1) if OWN and ws_base == WS_PS else vBA
    e(f"s_add_u32 s{sSF}, s{sPP}, {ws_base + (tb >> 1)*65536 + ((tb & 1) + 2*s)*2048}")
    P.vm(f"buffer_store_dwordx4 {src}, v{lane}, {srd(SWS)}, s{sSF} offen offset:{nh*1024} sc1", tag)


def load_piece(ws_base, dst, g, nh, tag):
    if OWN and ws_base == WS_PS: e(f"s_xor_b32 s{sSF}, s{sPX}, {g*8192}")
    else: e(f"s_add_u32 s{sSF}, s{sPC}, {ws_base + g*8192}")
    P.vm(f"buffer_load_dwordx4 {dst}, v{vBA}, {srd(SWS)}, s{sSF} offen offset:{nh*1024} sc1", (tag, g, nh))


def add_piece(dst, reg, first, need):
    for j in range(4):
        for h, sel in enumerate((sLO, sHI)):
            d = dst + 2 * j + h
            e(f"v_dot2_f32_bf16 v{d}, v{reg+j}, s{sel}, {0 if first else 'v%d' % d}", need=need)


def frag_reads(t, f, tail=False):
    if f < 16:
        kb, s = f // 4, f % 4
        off = ((t + 1) % 4) * 16384 + kb * 4096
        return [It(f"ds_read_b128 {ar(FR(f),4)}, v{KA(s)} offset:{off}", "l", ("F", t, f))]
    db, ks = ((f - 16) // 2, (f - 16) % 2) if not tail else ((f - 16) % 8, (f - 16) // 8)
    off = (t % 4) * 16384 + ks * 8192
    return [It(f"ds_read_b64_tr_b16 {ar(FR(f)+2*h,2)}, v{VA(db)} offset:{off + 4096*h}", "l", ("F", t, f))
            for h in range(2)]


def qk_mfmas(t, zero=False):
    out = []
    for kb in range(4):
        for qb in range(4):
            for n, s in enumerate(range(4) if not qb & 1 else range(3, -1, -1)):
                d = vr(S((t + 1) & 1, kb, qb), 4)
                c = d if n else ("0" if zero else vr(NM(qb), 4))
                out.append((It(f"{MF} {d}, {ar(FR(kb*4+s),4)}, {vr(Q(qb,s),4)}, {c}", "m",
                               need=[("F", t, kb * 4 + k) for k in range(4)]), kb * 4 + s))
    return out


def pv_one(t, db, qb, ks, f, need, zero=False):
    o = ar(O(db, qb), 4)
    ab = [ar(FR(f), 4), vr(PR(t & 1, ks, qb), 4)][::-1 if PA else 1]
    return (It(f"{MF} {o}, {ab[0]}, {ab[1]}, {(ar(GA(0), 4) if OB else 0) if zero else o}", "m", need=need), f)


def sum_one(t, qb):
    return (It(f"v_smfmac_f32_16x16x64_bf16 {ar(LACC(qb),4)}, {ar(aONES,4)}, {vr(PR(t&1,0,qb),8)}, v{vIDX}", "m"), None)


def pv_mfmas(t, zero=False):
    out = []
    for db in range(8):
        need = [("F", t, 16 + db * 2), ("F", t, 17 + db * 2)]
        for qb in range(4):
            for n, ks in enumerate(range(2) if not qb & 1 else range(1, -1, -1)):
                out.append(pv_one(t, db, qb, ks, 16 + db * 2 + ks, need, zero and not n))
        if db % 2 == 0: out.append(sum_one(t, db // 2))
    return out


def pv_mfmas_tail(t):
    out = []
    for ks in range(2):
        if ks: out += [sum_one(t, qb) for qb in range(4)]
        for db in range(8):
            f = 16 + ks * 8 + db
            out += [pv_one(t, db, qb, ks, f, [("F", t, f)]) for qb in range(4)]
    return out


def sm_stream(buf, half):
    ex, post = [], []
    for qb in range(4):
        b, d = S(buf, 2 * half, qb), PR(buf, half, qb)
        for j in range(8):
            ex.append(It(f"v_exp_f32 v{b+j}, v{b+j}", "x"))
            post.append([It(f"v_cvt_pk_bf16_f32 v{d + j//2}, v{b+j-1}, v{b+j}", "v")] if j & 1 else [])
    return ex, post


def kv_dma(kind, tile, lds=None, so=None):
    reg, s_rd, base = (KG, SK, 0) if kind == "K" else (VG, SV, VOFF)
    lds = base + (tile % 4) * 16384 if lds is None else lds
    out = []
    for i in range(4):
        pre = [It(f"s_add_u32 m0, s{sW4K}, {lds}", "s"),
               It(f"s_mov_b32 s{sSO}, {tile * 16384 if so is None else so}", "s")] if i == 0 else []
        out.append((pre, [It(f"buffer_load_dwordx4 v{reg(i)}, {srd(s_rd)}, s{sSO} offen offset:{i*1024} lds",
                             "g", (kind, tile))]))
    return out


issued = set()
CLUSTER = O_("cluster", 1)
OVER = [int(x) for x in opt.get("overit", "3,9,13").split(",")]
WINS = [int(x) for x in opt.get("wins", "2,18,34,50,75,92,109,124").split(",")]
WPAT = [int(x) for x in opt.get("wpat", "1").split(",")]


def attn_iter(t, groups, fill, endwait=(), extra=None, ins=None):
    end = T0 - 1 if t < T0 else 31
    last = t == end
    mf = pv_mfmas_tail(t) if last else qk_mfmas(t) + pv_mfmas(t, zero=t == 0)
    ms = [m for m, _ in mf]
    n = len(ms)
    first_use, last_use = {}, {}
    for i, (_, f) in enumerate(mf):
        if f is not None:
            first_use.setdefault(f, i); last_use[f] = i
    reads = []
    for f in sorted(first_use):
        if (t, f) in issued: continue
        reads += [(first_use[f] - AHEAD, last_use.get(f - 8, -1), it) for it in frag_reads(t, f, last)]
    nxt_need = ()
    if t < end - 1:
        for f in range(4):
            reads += [(n + f - AHEAD, last_use[24 + f], it) for it in frag_reads(t + 1, f)]
            issued.add((t + 1, f))
        nxt_need = [("F", t + 1, f) for f in range(4)]
    elif t == end - 1:
        for f in range(16, 19):
            reads += [(n + 4 * (f - 16) - AHEAD, last_use[8 + f], it) for it in frag_reads(end, f, True)]
            issued.add((end, f))
        nxt_need = [("F", end, 16)]
    gaps = {}
    add = lambda g, it: gaps.setdefault(g, []).append(it)
    exg = {}
    wins = [] if last or not CLUSTER else WINS[:min(len(WINS), -(-len(groups) // len(WPAT)))]
    quiet = {w + k for w in wins for k in range(WPAT[-1] + 1)}
    dma_gaps = sorted(w + k for w in wins for k in WPAT)
    narrow = {g for g, m in enumerate(ms) if m.t.startswith("v_smfmac")}
    if last:
        ex, post = sm_stream(t & 1, 1)
        for i in range(32): exg[i] = (ex[i], post[i])
    else:
        for (ex, post), lo, hi in ((sm_stream(t & 1, 1), 0, 63), (sm_stream((t + 1) & 1, 0), 64, n - 1)):
            c = [g for g in range(lo, hi) if g not in quiet]
            for i in range(32):
                g = c[(i * (len(c) + 1)) // 32]
                while g in narrow or g in exg or g in quiet: g += 1
                exg[g] = (ex[i], post[i])
    for g, (x, post) in exg.items():
        add(g, x)
    for g, (x, post) in exg.items():
        h = g + 1
        while not last and (h in exg or h in quiet): h += 1
        for it in post: add(h, it)
    room = lambda g: len(gaps.get(g, [])) < (1 if g in narrow else 2)
    free = set(range(n)) if last else {g for g in range(n) if g not in exg and g not in dma_gaps and room(g)}
    prev, pre, avail = n, [], sorted(free)
    for dl, early, it in reversed(reads):
        c = [g for g in free if g <= dl and g < prev]
        if c and max(c) >= early:
            prev = max(c); free.discard(prev); add(prev, it)
        elif early < 0:
            prev = -1; pre.insert(0, it)
        else:
            c = [g for g in avail if early <= g <= dl + AHEAD - 6]
            g = min([g for g in c if room(g)] or c)
            free.discard(g); gaps.setdefault(g, []).insert(0, it)
    if groups:
        def spaced(c):
            out = []
            for g in c:
                if not out or g - out[-1] >= 2: out.append(g)
            return out
        light = spaced([g for g in sorted(free) if 1 <= g < n - 6 and g not in gaps])
        fr = light if len(light) >= len(groups) - len(dma_gaps) + 4 else spaced([g for g in sorted(free) if 1 <= g < n - 6])
        rest = len(groups) - len(dma_gaps)
        if rest > 0:
            fr = [g for g in fr if not {g - 1, g, g + 1} & set(dma_gaps)]
            if len(fr) < rest: fr = spaced([g for g in range(1, n - 6) if g not in exg and not {g - 1, g, g + 1} & set(dma_gaps)])
            assert len(fr) >= rest, (t, len(fr), len(groups))
            dma_gaps = sorted(dma_gaps + [fr[int(k * len(fr) / rest)] for k in range(rest)])
        for k, grp in enumerate(groups): place(add, dma_gaps[k], grp, dma_gaps[k - 1] if k else -1, {u - 1 for u in first_use.values()})
    if not last:
        add(n - 3, It(None, "s", need=[("K", min(t + 3, end)), ("V", end if t == end - 2 else t + 1)] + list(endwait)))
        add(n - 2, It("s_barrier", "s"))
        add(n - 4, hop())
    for g, its in (extra or {}).items():
        for it in its: add(g, it)
    if SSET == "attn": add(0, stamp_item())
    if O_("jit2", 0):
        for g in (1, n // 2, n - 12): add(g, jitter_item())
    if ins:
        for k in range(3):
            for h, it in enumerate(ins[k][1]): add(1 + 4 * k + 2 * h, it)
        pos = {(13 + (k * (n - 24)) // (len(ins) - 1)) | 1: k for k in range(len(ins))}
        assert len(pos) == len(ins)
        ms2, gaps2, old, quiet = [], {}, quiet, set()
        for g, m in enumerate(ms):
            if g in old: quiet.add(len(ms2))
            gaps2[len(ms2)] = gaps.get(g, []); ms2.append(m)
            if g in pos:
                k = pos[g]
                gaps2[len(ms2)] = list(ins[k + 3][1]) if k + 3 < len(ins) else []
                ms2.append(ins[k][0])
        ms, gaps = ms2, gaps2
    P.puts(pre)
    P.run_gaps(ms, gaps, fill, next_need=nxt_need, pos=t, gmin=4, quiet=quiet, over=4 if t in OVER else 0)


OVERVIEW = """
One launch, 256 workgroups (one per CU) of 4 waves. Workgroup (g, m) = KV group g, tokens 64m..64m+63.
Order: LN(x) -> LN(LN(x)) @ w1 -> Q projection -> key tiles 0..21 -> channel MLP -> key tiles 22..31
       -> output projection -> combine. The w2 GEMM and the LN statistics of x1 ride in the attention slack.
Matrix work uses 16x16x32 bf16 MFMA with fp32 accumulation; weights and K/V reach LDS by DMA.
Softmax: every row is shifted by (maximum over its first 16 keys + 25.4) through the MFMA C operand, so the row
  sum cannot underflow. If any row sum of the workgroup is not <= 2^64, L_redo computes the true row maxima and
  repeats the pass with them.
Hand-offs between the 8 workgroups of a token block use write-through stores, sc1 loads and flag words in d_ws;
  each wave resets its words before its workgroup counts itself into d_debug, and peers read them only after that.
L_pad_* / L_hop*: the waves visit upcoming code pages with EXEC = 0 and return at once (instruction prefetch).
"""
hdr = [l.rstrip("\n") for l in open("header.txt")]
hdr = hdr[:[i for i, l in enumerate(hdr) if "@launch" in l][0]]
P.L += hdr + ["; @launch grid=(256,1,1) block=(256,1,1) lds=163840",
              '.amdgcn_target "amdgcn-amd-amdhsa--gfx950"'] + ["; " + l for l in OVERVIEW.strip().split("\n")] + [
              ".text", f".globl {NAME}", ".p2align 8",
              f".type {NAME},@function"]
lab(NAME)
e("s_cmp_lt_u32 s2, 256"); e("s_cbranch_scc1 L_go"); e("s_endpgm")
lab("L_go")
if AMP and AMP[0] < 0: e(f"s_memrealtime {sr(sST,2)}")
e("s_load_dwordx16 s[64:79], s[0:1], 0"); e("s_load_dwordx8 s[80:87], s[0:1], 64"); e("s_load_dwordx2 s[88:89], s[0:1], 96")
PAIR = O_("pair", 0)
NS = 16 if PAIR else 32
sMI, sWV = 90, 91
if PAIR:
    e(f"s_and_b32 s{sG}, s2, 3"); e(f"s_and_b32 s{sT}, s2, 2"); e(f"s_add_u32 s{sG}, s{sG}, s{sT}")
    e(f"s_bfe_u32 s{sT}, s2, 0x10003"); e(f"s_lshl1_add_u32 s{sG}, s{sT}, s{sG}")
    e(f"s_lshr_b32 s{sMI}, s2, 4"); e(f"s_and_b32 s{sM}, s2, 4"); e(f"s_lshl_b32 s{sM}, s{sM}, 2"); e(f"s_add_u32 s{sM}, s{sM}, s{sMI}")
else:
    e(f"s_and_b32 s{sG}, s2, 7"); e(f"s_lshr_b32 s{sM}, s2, 3"); e(f"s_lshr_b32 s{sMI}, s2, 3")
e("v_lshrrev_b32 v1, 6, v0"); e("v_and_b32 v0, 63, v0"); e(f"v_readfirstlane_b32 s{sW}, v1")
e(f"v_lshlrev_b32 v{vBA}, 4, v0"); e(f"v_lshlrev_b32 v{vLANE}, 7, v0")
e(f"s_getpc_b64 {sr(sT+1,2)}")
lab("L_pc")
NCL = 10
e(f"s_lshr_b32 s{sT+3}, s2, 3")
sum_terms(sT, (sT + 3, 512), (sW, 128))
e(f"v_min_u32 v6, {NCL-1}, v0"); e(f"v_lshl_add_u32 v6, v6, 14, s{sT}"); e("v_min_u32 v6, L_end-L_pc, v6")
e(f"v_mov_b32 v{vCODE+1}, s{sT+2}"); e(f"v_add_co_u32 v{vCODE}, vcc, s{sT+1}, v6")
e(f"v_addc_co_u32 v{vCODE+1}, vcc, 0, v{vCODE+1}, vcc")
code_touch = lambda: P.vm(f"global_load_dword a255, {vr(vCODE,2)}, off")
masked(O_("cm", 15), f"global_load_dword a255, {vr(vCODE,2)}, off")
sum_terms(sWV, (sMI, 4), (sW, 1))


def touch_off(d, nrows, lines, stride, base_terms, t):
    per = -(-nrows // (NS * 4))
    assert per * lines <= 64 and lines & (lines - 1) == 0
    sh = lines.bit_length() - 1
    e(f"v_lshrrev_b32 v{d}, {7 + sh}, v{vLANE}"); e(f"v_min_u32 v{d}, {per - 1}, v{d}")
    e(f"s_mul_i32 s{sT}, s{sWV}, {per}"); e(f"v_add_u32 v{d}, s{sT}, v{d}")
    if per * NS * 4 != nrows: e(f"v_min_u32 v{d}, {nrows - 1}, v{d}")
    e(f"v_mul_u32_u24 v{d}, {stride}, v{d}")
    sum_terms(sT, *base_terms)
    if lines > 1:
        e(f"v_and_b32 v{t}, {(lines - 1) * 128}, v{vLANE}"); e(f"v_add3_u32 v{d}, v{d}, v{t}, s{sT}")
    else:
        e(f"v_add_u32 v{d}, s{sT}, v{d}")


WQ0 = O_("wq0", 128)
vTQ, vT1, vTK = T + 11, T + 13, T + 16
touch_off(6, WQ0, 8, 8192, [(sG, 1024)], 7)
touch_off(vT1, 512, 1, 1024, [(sG, 128)], 7)
e("v_and_b32 v2, 3, v0")
e("v_lshrrev_b32 v1, 2, v0")
sum_terms(sT, (sM, 64), (sW, 16))
e(f"v_add_u32 v3, s{sT}, v1"); e("v_lshlrev_b32 v3, 10, v3"); e("v_lshl_add_u32 v3, v2, 4, v3")
e(f"s_bfe_u32 s{sT+1}, s{sG}, {0x10000 + PAIR}"); e(f"s_lshl_b32 s{sT+2}, s{sT+1}, 9")
e(f"v_add_u32 v3, s{sT+2}, v3"); e(f"v_xor_b32 v{G12+13}, 0x200, v3")
if STAMP: e("v_accvgpr_write_b32 a254, 0")
e("s_waitcnt lgkmcnt(0)")
stamp()
if SSET == "ln": stamp(0)
ENT = " nt" * O_("ent", 0)
for i in range(9):
    if i == O_("tat", 0):
        P.vm(f"global_load_dword a255, v{vT1}, s[76:77]{ENT}")
        P.vm(f"global_load_dword a255, v6, s[70:71]{ENT}")
    if i < 8: P.vm(f"global_load_dwordx4 {vr(XR+4*i,4)}, v3, s[64:65] offset:{i*64}", ("x", i))
HOP = O_("hop", 1)
hop = lambda n="": It(f"; @hop {n}", "s")
if HOP:
    e("s_branch L_main"); P.raw(".p2align 12")
lab("L_main")
e("v_lshlrev_b32 v4, 1, v2"); e("v_xor_b32 v4, v4, v1"); e("v_lshlrev_b32 v4, 4, v4"); e("v_lshl_add_u32 v4, v2, 8, v4")
sum_terms(sT + 2, (sT + 1, 32768), (sW, 1024))
e(f"v_add_u32 v{vWA}, s{sT+2}, v4"); e(f"v_xor_b32 v{vWA+1}, 0x8000, v{vWA}")
e("v_and_b32 v1, 15, v0"); e("v_lshrrev_b32 v2, 4, v0")
e("v_lshlrev_b32 v4, 1, v2"); e("v_xor_b32 v4, v4, v1"); e("v_lshlrev_b32 v4, 4, v4"); e(f"v_lshl_add_u32 v{vBX}, v2, 8, v4")
e(f"v_add_u32 v3, s{sT}, v1"); e("v_lshlrev_b32 v4, 15, v2"); e(f"v_lshl_add_u32 v{vTOK}, v3, 4, v4")
for d, p in ((SK, 66), (SV, 68)):
    e(f"s_lshl_b32 s{sT}, s{sG}, 19")
    e(f"s_add_u32 s{d}, s{p}, s{sT}"); e(f"s_addc_u32 s{d+1}, s{p+1}, 0"); e(f"s_mov_b32 s{d+2}, 0x80000"); e(f"s_mov_b32 s{d+3}, 0x20000")
for d, p, size in ((SX, 64, 0x200000), (SWQ, 70, 0x400000), (SW1, 76, 0x80000), (SWS, 88, 0x10000000),
                   (SWO, 72, 0x400000), (SW2, 78, 0x80000), (SW3, 80, 1835008), (SW4, 82, 1835008),
                   (SOUT, 84, 0x200000), (SDBG, 86, 256)):
    mk_srd(d, p, size)
sum_terms(sRING, (sW, 8192), RING); sum_terms(sW1K, (sW, 1024)); sum_terms(sW4K, (sW, 4096))
sum_terms(sT, (sG, 1024), (sW, 256)); dma_voff(vDWQ, 8192, True, f"s{sT}", 10)
sum_terms(sT, (sW, 65536), (sG, 128)); dma_voff(vDW1, 1024, True, f"s{sT}", 10); dma_voff(vDW2, 1024, False, f"s{sT}", 10)
for r, v in ((sLO, "0x00003f80"), (sHI, "0x3f800000"), (sONE2, "0x3f803f80"), (sC1, f2u(GK)), (sC2, f2u(GA_)),
             (sNL2E, f2u(-LOG2E / GA_)), (sSPIN, opt.get("spin0", 0)), (sMSK, "0xffff0000")):
    e(f"s_mov_b32 s{r}, {v}")
sum_terms(sF0, (sM, 4096), (sW, 256), WS_FL)
sum_terms(sFL, (sG, 4), (sF0, 1))
sum_terms(sF1, (sM, 4096), (sG, 128), WS_FL + 1024)
e(f"s_add_u32 s{sF2}, s{sF1}, 1024"); e(f"s_add_u32 s{sF3}, s{sF1}, 2048")
sum_terms(sSTC, (sM, 4096), (sW, 1024), WS_SS)
sum_terms(sSTP, (sG, 128), (sSTC, 1))
sum_terms(sPP, (sM, 1 << 19), (sW, 1 << 17), (sG, 1 << 13))
sum_terms(sPC, (sM, 1 << 19), (sG, 1 << 16), (sW, 1 << 11))
e(f"s_lshl_b32 s{sHO}, s{sG}, 18")
e(f"s_and_b32 s{sKS}, s{sG}, 6"); e(f"s_lshl_b32 s{sKS}, s{sKS}, 1"); e(f"s_lshr_b32 s{sT}, s{sW}, 1"); e(f"s_add_u32 s{sKS}, s{sKS}, s{sT}")
e(f"s_and_b32 s{sTB}, s{sG}, 1"); e(f"s_lshl_b32 s{sTB}, s{sTB}, 1"); e(f"s_and_b32 s{sT}, s{sW}, 1"); e(f"s_add_u32 s{sTB}, s{sTB}, s{sT}")
sum_terms(sSTF, (sM, 4096), (sTB, 1024), WS_SS)
sum_terms(sXF, (sM, 65536), (sTB, 16384), (sKS, 64))
e(f"s_and_b32 s{sT}, s{sG}, 1"); sum_terms(sW3B, (sG, 448), (sT, 64)); sum_terms(sRS, (sW, 2048), RING)
e("v_lshrrev_b32 v6, 2, v0"); e("v_and_b32 v7, 3, v0"); e("v_lshlrev_b32 v7, 3, v7"); e("v_lshl_add_u32 v7, v6, 7, v7")
e("v_bfe_u32 v6, v0, 3, 2")
for nb in range(4):
    e(f"v_xor_b32 v10, {nb}, v6"); e("v_lshl_add_u32 v10, v10, 5, v7")
    e(f"v_add_u32 v{vAS+nb}, {RING + 32768}, v10")
    if QPERM:
        e("v_lshrrev_b32 v8, 2, v0"); e("v_and_b32 v9, 6, v8"); e("v_and_b32 v10, 3, v0"); e("v_xor_b32 v9, v9, v10")
        e(f"v_xor_b32 v9, {4*(nb>>1)}, v9"); e("v_lshlrev_b32 v9, 4, v9"); e("v_lshl_add_u32 v10, v8, 7, v9")
        if nb & 1: e("v_add_u32 v10, 8, v10")
    e(f"v_add_u32 v{vAA+nb}, s{sRING}, v10"); e(f"v_add_u32 v{vAA2+nb}, 0x10000, v{vAA+nb}")
e("v_xor_b32 v9, v2, v1")
for s in range(4):
    e(f"v_xor_b32 v10, {4*s}, v9"); e("v_lshlrev_b32 v10, 4, v10"); e(f"v_lshl_add_u32 v{KA(s)}, v1, 8, v10")
e("v_lshrrev_b32 v9, 2, v0"); e("v_lshlrev_b32 v10, 8, v9"); e("v_and_b32 v11, 3, v0")
e("v_lshl_add_u32 v10, v11, 3, v10"); e(f"v_add_u32 v10, {VOFF}, v10"); e("v_and_b32 v9, 7, v9")
for db in range(8):
    e(f"v_xor_b32 v11, {db}, v9"); e(f"v_lshl_add_u32 v{VA(db)}, v11, 5, v10")
e(f"v_lshl_add_u32 v10, v2, 8, s{sW4K}")
for i in range(4):
    e(f"v_add_u32 v9, {4*i}, v2"); e("v_xor_b32 v11, v9, v1"); e(f"v_lshl_add_u32 v{KG(i)}, v11, 4, v10")
    if i < 2:
        e("v_lshlrev_b32 v9, 1, v9"); e("v_xor_b32 v11, v9, v1"); e(f"v_lshl_add_u32 v{VG(i)}, v11, 4, v10")
e(f"v_lshlrev_b32 v{G12+8}, 4, v1")
if WQ0 < 512: touch_off(vTQ, 512 - WQ0, 8, 8192, [(sG, 1024), WQ0 * 8192], 7)
SLIM = O_("slim", 1)
touch_off(vTK, O_("tk", 384), 1, 128, [(sG, 0)], 7)


def late_touch():
    P.vm(f"buffer_load_dword a255, v{vTK}, {srd(SK)}, 0 offen"); P.vm(f"buffer_load_dword a255, v{vTK}, {srd(SV)}, 0 offen")
    if not SLIM:
        P.vm(f"buffer_load_dword a255, v{vT1}, {srd(SW2)}, 0 offen")
        code_touch()


LTG = O_("ltg", 4)
XQ = O_("xq", 3)


w1t = [Tile(SW1, vDW1, k * 4 * 65536, 1024, True, 1 + k, "w1") for k in range(2)]
w2t = [Tile(SW2, vDW2, k * 4 * 65536, 1024, False, 2, ("w2", k)) for k in range(2)]
qt = [Tile(SWQ, vDWQ, (i // 2) * 64 * 8192 + (i % 2) * 128, 8192, True, i % 3, ("wq", i), kp=i // 2, nh=i % 2)
      for i in range(16)] + ([] if SLIM else [None, w2t[0]])
mt = [Tile(SW3, vDW2, kp * 64 * 3584, 3584, False, (2 - i) % 3, ("w3", kp), kp=kp)
      for i, kp in enumerate((4, 5, 6, 7, 0, 1, 2, 3))]
mt += [Tile(SW4, vDW4, (i // 2) * 65536 + (i % 2) * 128, 1024, False, (2 - 8 - i) % 3, ("w4", i), kp=i // 2, nh=i % 2)
       for i in range(8)]
ot = [Tile(SWO, vDWO, ((kp & 1) * 256 + (kp >> 1) * 32) * 1024 + nh * 128, 1024, False, (nh * 8 + i + 2) % 3,
           ("wo", nh, kp), kp=kp, nh=nh, half=128)
      for nh in range(2) for i, kp in enumerate(range(8) if nh == 0 else (2, 3, 4, 0, 5, 1, 6, 7))]

a = G12


def quad_sum(regs):
    for qp in ("[1,0,3,2]", "[2,3,0,1]"):
        for r in regs: e(f"v_add_f32_dpp v{r}, v{r}, v{r} quad_perm:{qp} row_mask:0xf bank_mask:0xf")


def ln_stats(lo, hi):
    for i in range(lo, hi):
        c = lambda r: f"v{r}" if i >= 2 else 0
        e(f"v_dot2_f32_bf16 v{a + i % 2}, v{XR+i}, s{sONE2}, {c(a + i % 2)}", need=[("x", i // 4)])
        e(f"v_dot2_f32_bf16 v{a + 2 + i % 2}, v{XR+i}, v{XR+i}, {c(a + 2 + i % 2)}")


def unpack(k):
    for i in range(4 * k, 4 * k + 4):
        e(f"v_lshlrev_b32 v{2*i}, 16, v{XR+i}"); e(f"v_and_b32 v{2*i+1}, s{sMSK}, v{XR+i}")


def ln_rest():
    ln_stats(32, 64)
    e(f"v_add_f32 v{a}, v{a}, v{a+1}"); e(f"v_add_f32 v{a+2}, v{a+2}, v{a+3}")
    quad_sum([a, a + 2])
    e(f"v_mul_f32 v{a+4}, {f2u(-1/512)}, v{a}"); e(f"v_mul_f32 v{a+2}, {f2u(1/512)}, v{a+2}")
    e(f"v_fma_f32 v{a}, -v{a+4}, v{a+4}, v{a+2}"); e(f"v_max_f32 v{a}, 0, v{a}")
    e(f"v_add_f32 v{a+1}, {f2u(EPS)}, v{a}")
    e(f"v_rsq_f32 v{vRSTD}, v{a+1}")
    unpack(8)
    e(f"v_mul_f32 v{a+2}, {f2u(QSCALE)}, v{vRSTD}"); e(f"v_mul_f32 v{a+3}, v{a+4}, v{a+2}")
    for k in range(17):
        if k < 16:
            for i in range(4 * k, 4 * k + 4):
                e(f"v_pk_fma_f32 {vr(2*i,2)}, {vr(2*i,2)}, {vr(a+2,2)}, {vr(a+2,2)} op_sel:[0,0,1] op_sel_hi:[1,0,1]")
        if k: P.lds(f"ds_write_b128 v{vWA + (k-1)//8}, {vr(XR+4*k-4,4)} offset:{((k-1)%8)*4096}", "xw")
        if k % 2 == 0 and 9 + k // 2 < 16: unpack(9 + k // 2)
        if k < 16:
            for i in range(4 * k, 4 * k + 4): e(f"v_cvt_pk_bf16_f32 v{XR+i}, v{2*i}, v{2*i+1}")
    e(f"v_mul_f32 v{a}, v{a}, v{vRSTD}"); e(f"v_mul_f32 v{a}, v{a}, v{vRSTD}")
    e(f"v_add_f32 v{a}, {f2u(EPS)}, v{a}")
    e(f"v_rsq_f32 v{vSC1}, v{a}")
    e(f"v_mul_f32 v{vRSTD}, s{sC2}, v{vRSTD}")
    e(f"v_mul_f32 v{vSC1}, {f2u(GA_/QSCALE)}, v{vSC1}")
    e(f"v_mul_f32 v{vNMEAN}, v{a+4}, v{vRSTD}")
    e(f"v_add_u32 v{vWA}, s{sW1K}, v{vBX}")


if SSET == "ln": stamp(0)
P.put(hop(O_("hop00", 1)))
wq_rest = lambda: P.vm(f"buffer_load_dword a255, v{vTQ}, {srd(SWQ)}, 0 offen{ENT}") if WQ0 < 512 else None
if LTG == 4: XQ = 4
if XQ == 0: wq_rest()
if LTG == 0: late_touch()
for i in range(8):
    P.vm(f"buffer_load_dwordx4 {vr(XR+32+4*i,4)}, v{G12+13}, {srd(SX)}, 0 offen offset:{i*64}", ("x", 8 + i))
if XQ == 1: wq_rest()
if LTG == 1: late_touch()
if SSET == "ln": stamp(0)
P.put(hop(O_("hop0", 1)))
for k in range(8):
    ln_stats(4 * k, 4 * k + 4); unpack(k)
if O_("hop1", 1): P.put(hop(O_("hop1", 1)))
stamp(2)
if SSET == "ln":
    stamp(0); P.wait([("x", 15)]); stamp(0)
code = cap(ln_rest)
if "l" in opt.get("cut", ""): code = [it for it in code if not (it.t or "").startswith(("v_pk_fma", "v_cvt", "v_lshlrev", "v_and"))]
k = O_("lnat", 40)
P.puts(code[:k])
Q0LN = O_("q0ln", 1)
side = [x + y for t in w1t + qt[:Q0LN] for x, y in t.dma()]
if LTG == 4:
    j = O_("ltpos", 24)
    side[j:j] = [[it] for it in cap(wq_rest) + cap(late_touch)]
interleave(code[k:], side, O_("lnev", 9))
if SSET == "ln":
    stamp(0); P.wait(["w1"]); stamp(0)
for r in (vNMEAN, vRSTD, vSC1): P.lds(f"ds_bpermute_b32 v{r}, v{G12+8}, v{r}", "stat")
xb = [It(f"ds_read_b128 {ar(4*ks,4)}, v{vWA} offset:{ks*4096}", "l", ("xb", ks)) for ks in range(16)]
P.puts(xb[:8])
stamp(2)
P.wait(["xw", "w1"]); e("s_barrier")
stamp()
if SSET == "ln": stamp(0)

g1 = lambda h: shared_ops(range(8 * h, 8 * h + 8), 0, lambda nb: vr(G12 + 4 * nb, 4), True, lambda i: 160 + (i % 16) * 4,
                          lambda ks: ar(4 * ks, 4), lambda ks: [("xb", ks)], "g1", 32 * h)
ops = g1(0) + g1(1)
gaps = {g: [] for g in range(64)}
add1 = lambda g, it: gaps[g].append(it)
for i in range(6, 64): gaps[i - 6] += ops[i][1]
for k in range(8): add1(2 + 3 * k, xb[8 + k])
if not Q0LN:
    for k, grp in enumerate(qt[0].dma()): place(add1, 1 + 3 * k, grp, 3 * k - 2)
for k, it in enumerate((cap(wq_rest) if XQ == 3 else []) + (cap(late_touch) if LTG == 3 else [])): add1(O_("ltat", 0) + 2 * k, it)
add1(31, It("s_barrier", "s"))
for k, grp in enumerate(qt[1].dma()): place(add1, 34 + 3 * k, grp, 31 + 3 * k)
ACC = lambda nh, nb, tb: ((nh * 4 + tb) * 4 + nb) * 4
op = gemm(qt, 0, 16, ACC, [], (64, 96), breg=vBX, opening="get")
for k, it in enumerate(op[4:12]): add1(40 + 2 * k, it)
for k, it in enumerate(op[:4] + op[12:]): add1(58 + k // 2, it)
for i in range(6): P.puts(ops[i][1])
P.run_gaps([m for m, _ in ops], gaps, next_need=[op[0].tag, op[4].tag])
stamp()



def q_side():
    x, t = G12, XR
    P.put(gate(0, 8))
    for i in range(16): e(f"v_mul_f32 v{x+i}, v{x+i}, v{vSC1}", need=["stat"])
    for i in range(16): e(f"v_fma_f32 v{t+i}, -v{x+i}, v{x+i}, -s{sC1}")
    for i in range(16): e(f"v_mul_f32 v{t+i}, v{t+i}, v{x+i}")
    for i in range(16): e(f"v_exp_f32 v{t+i}, v{t+i}", k="v")
    for i in range(16): e(f"v_add_f32 v{t+i}, 1.0, v{t+i}")
    for i in range(16): e(f"v_rcp_f32 v{t+i}, v{t+i}", k="v")
    for i in range(16): e(f"v_mul_f32 v{t+i}, v{t+i}, v{x+i}")
    for i in range(8): e(f"v_cvt_pk_bf16_f32 v{t+16+i}, v{t+2*i}, v{t+2*i+1}")
    e(f"v_lshrrev_b32 v{t}, 5, v{vBA}"); e(f"v_and_b32 v{t+1}, 128, v{vLANE}"); e(f"v_lshl_add_u32 v{t}, v{t}, 10, v{t+1}")
    e(f"v_mov_b32 v{t+1}, 0"); e(f"v_mov_b32 v{t+2}, -1"); e(f"v_mov_b32 v{t+3}, -1"); e(f"v_lshrrev_b32 v{t+4}, 1, v{vBA}")
    for nb in range(4): e(f"v_add_u32 v{vAS+nb}, 32768, v{vAS+nb}")
    e(f"v_mov_b32 v{t+5}, {hex(((127 - OSH) << 7) * 0x10001)}")
    e(f"v_and_b32 v{t+6}, 0xe0, v{vBA}"); e(f"v_cmp_eq_u32 vcc, 0, v{t+6}"); e(f"v_cndmask_b32 v{t+5}, 0, v{t+5}, vcc")
    e(f"v_bfe_i32 v{t+6}, v{vBA}, 4, 1"); e(f"v_and_b32 v{t+6}, 0xaaaaaaaa, v{t+6}"); e(f"v_or_b32 v{t+6}, 0x44444444, v{t+6}")
    if STAMP: e(f"v_accvgpr_write_b32 a253, v{t+6}")
    e(f"v_mov_b32 v{vIDX}, v{t+6}")
    for i in range(16): e(f"v_accvgpr_write_b32 a{LACC(0)+i}, 0")
    for i in range(4): e(f"v_accvgpr_write_b32 a{aONES+i}, v{t+5}")

    P.put(gate(0, O_("hgate", 14 * 32 + 22)))
    if LTG == 2: late_touch()
    for s in range(2):
        e(f"s_add_u32 s{sSF}, s{sHO}, {WS_H + s*PLANE}")
        P.vm(f"buffer_store_dwordx4 {vr(t+16+4*s,4)}, v{vTOK}, {srd(SWS)}, s{sSF} offen sc1", "hst")
    masked(255, f"buffer_store_dword v{t+1}, v{t}, {srd(SWS)}, s{sFL} offen sc1", "hst")
    masked(0xffff, f"buffer_store_dwordx2 {vr(t+2,2)}, v{t+4}, {srd(SWS)}, s{sSTP} offen sc1", "hst")


class Extra:
    def __init__(self, groups): self.groups = groups
    def dma(self): return self.groups


def q_pack(tb, ss):
    for s in ss:
        b = ACC(s // 2, 2 * (s % 2), tb)
        for j in range(4): e(f"v_cvt_pk_bf16_f32 v{Q(tb,s)+j}, v{b+2*j}, v{b+2*j+1}")


assert SLIM and QPERM
fill = cap(q_side) + [gate(0, 15 * 32 + 4)] + [it for tb in range(4) for it in cap(q_pack, tb, (0, 1))]
pending = qt[2].dma()
qt += [Extra(kv_dma("K", 0) + kv_dma("K", 1)), Extra(kv_dma("K", 2))]
gemm(qt, 0, 16, ACC, pending, (64, 96), breg=vBX, fill=fill, opening="done", dma0=2,
     extra={1: [It("s_barrier", "s")], 13 * 32 + 22: [It("s_barrier", "s")]})
assert not pending
P.wait([("K", 1)]); e("s_barrier")
stamp()
if SSET == "pro": stamp(0)

for f in range(8): P.puts(frag_reads(-1, f))
P.drain(fill)
q_pack(0, (2, 3)); q_pack(1, (2, 3))
stamp()
if SSET == "pro": stamp(0)
gaps = {g: [] for g in range(64)}
for k, it in enumerate(cap(q_pack, 2, (2, 3)) + cap(q_pack, 3, (2, 3))): add1(k // 2, it)
for k, grp in enumerate(kv_dma("V", 0)): place(add1, 9 + 2 * k, grp, -1)
P.run_gaps([m for m, _ in qk_mfmas(-1, zero=True)[:16]], gaps)
if SSET == "pro": stamp(0)
for f in range(8, 12): P.puts(frag_reads(-1, f))
for qb in range(4): e(f"v_max3_f32 v{NM(qb)}, v{S(0,0,qb)}, v{S(0,0,qb)+1}, v{S(0,0,qb)+2}")
for qb in range(4): e(f"v_max_f32 v{NM(qb)}, v{NM(qb)}, v{S(0,0,qb)+3}")
allreduce("v_max_f32", [NM(qb) for qb in range(4)], [NM(qb) + 1 for qb in range(4)])
e(f"s_mov_b32 s{sT}, {f2u(float(opt.get('pd', -25.4)))}")
for qb in range(4):
    for i in (1, 2, 3, 0): e(f"v_sub_f32 v{NM(qb)+i}, s{sT}, v{NM(qb)}")


def first_half(shift, gates):
    for kb in range(2):
        P.put(gate(0, gates[kb]))
        for qb in range(4):
            b = S(0, kb, qb)
            if shift and not kb:
                for j in range(4): e(f"v_add_f32 v{b+j}, v{b+j}, v{NM(qb)}")
            for j in range(4): e(f"v_exp_f32 v{b+j}, v{b+j}")
        for qb in range(4):
            b = S(0, kb, qb)
            for j in range(2): e(f"v_cvt_pk_bf16_f32 v{PR(0,0,qb)+2*kb+j}, v{b+2*j}, v{b+2*j+1}")


if SSET == "pro": stamp(0)
gaps = {g: [] for g in range(64)}
for f in range(12, 16): gaps[16 + (f - 12)] += frag_reads(-1, f)
add1(40, It(None, "s", need=["hst"])); add1(41, It("s_barrier", "s"))
for f in range(4):
    gaps[32 + f] += frag_reads(0, f); issued.add((0, f))
for k, grp in enumerate(kv_dma("V", 1) + kv_dma("K", 3)): place(add1, 3 + 6 * k, grp, 6 * k - 3)
fill = cap(first_half, True, (0, 20))
P.run_gaps([m for m, _ in qk_mfmas(-1)[16:]], gaps, fill)
if SSET == "pro": stamp(0)
P.drain(fill)
if SSET == "pro": stamp(0)
e(f"v_mov_b32 v{T}, 1"); e(f"s_lshl_b32 s{sSF}, s{sM}, 3")
e(f"s_cmp_lg_u32 s{sW}, 0"); e("s_cbranch_scc1 L_noarr"); e("s_mov_b64 exec, 1")
e(f"buffer_atomic_add v{T}, off, {srd(SDBG)}, s{sSF} sc1"); e("s_mov_b64 exec, -1")
lab("L_noarr")
P.wait([("K", 2), ("V", 0)] + [("F", 0, f) for f in range(4)]); e("s_barrier")
stamp()

if SSET == "pro": stamp(0)
p_h = flag_poll("h", SDBG, 0, 8)
p_x = flag_poll("x1", SWS, f"s{sF0}", 1)
p_st = Poll("st", [f"buffer_load_dwordx2 {vr(T+2*j,2)}, v{vPA}, {srd(SWS)}, s{(sSTC, sSTF)[j//2]} offen offset:{128*(j%2)} sc1"
                   for j in range(4)],
            [f"v_max3_u32 v{T+8}, v{T}, v{T+1}, v{T+2}", f"v_max3_u32 v{T+8}, v{T+8}, v{T+3}, v{T+4}",
             f"v_max3_u32 v{T+8}, v{T+8}, v{T+5}, v{T+6}", f"v_max_u32 v{T+8}, v{T+8}, v{T+7}",
             f"v_cmp_eq_u32 vcc, -1, v{T+8}"])
p_ph, p_s0, p_s1 = (flag_poll(n, SWS, f"s{r}", 1) for n, r in (("ph", sF1), ("s0", sF2), ("s1", sF3)))


pieces = [(nh, tb, s) for nh in range(2) for tb in range(4) for s in range(2)]


def x_offset(d, bits=11):
    e(f"v_bfe_u32 v{d}, v{vTOK}, 4, {bits}"); e(f"v_lshlrev_b32 v{d}, 10, v{d}")
    e(f"v_bfe_u32 v{d+1}, v{vBA}, 8, 2"); e(f"v_lshl_add_u32 v{d}, v{d+1}, 3, v{d}")


def paced(t, g, step, fns):
    for k, fn in enumerate(fns):
        p = g + k * step
        P.put(gate(t + p // NIT, p % NIT)); fn()


def h_loads(half, t, g):
    e(f"v_bfe_u32 v{T}, v{vTOK}, 4, 11")
    for k, d in enumerate(((-1, 1), (-2, 2))[half]):
        e(f"v_add_u32 v{T+1}, {d}, v{T}"); e(f"v_cmp_gt_u32 vcc, 0x800, v{T+1}")
        e(f"v_add_u32 v{T+1}, {16*d}, v{vTOK}"); e(f"v_mov_b32 v{T+2+k}, 0x7f000000")
        e(f"v_cndmask_b32 v{T+2+k}, v{T+2+k}, v{T+1}, vcc")

    def one(ks):
        e(f"s_mov_b32 s{sSF}, {WS_H + ks*PLANE}")
        P.vm(f"buffer_load_dwordx4 {ar(HB(ks),4)}, v{T + 2 + (ks%8)//4}, {srd(SWS)}, s{sSF} offen sc1", ("h", ks))
    paced(t, g, O_("hstep", 18), [lambda ks=ks: one(ks) for ks in range(8 * half, 8 * half + 8)])


def acc_offset():
    P.lds(f"ds_read_b64_tr_b16 {vr(T+4,2)}, v{VA(0)}", "v0")
    P.put(gate(0, 9))
    for j in range(2):
        e(f"v_lshlrev_b32 v{T+2*j}, 17, v{T+4+j}", need=["v0"]); e(f"v_lshlrev_b32 v{T+2*j+1}, 1, v{T+4+j}")
    for r in (8, 4, 2, 1):
        for j in range(4): e(f"v_max_u32_dpp v{T+j}, v{T+j}, v{T+j} row_ror:{r} row_mask:0xf bank_mask:0xf")
    e(f"v_min3_u32 v{T}, v{T}, v{T+1}, v{T+2}"); e(f"v_min_u32 v{T}, v{T}, v{T+3}")
    allreduce("v_min_u32", [T], [T + 1], k="v")
    e(f"v_lshrrev_b32 v{T}, 24, v{T}"); e(f"v_lshlrev_b32 v{T}, 23, v{T}"); e(f"v_mul_f32 v{T}, {f2u(1.5 * 2.0**OB)}, v{T}")
    for i in range(4): e(f"v_accvgpr_write_b32 a{GA(0)+i}, v{T}")
    e(f"v_readfirstlane_b32 s{sOB}, v{T}")


def side1():
    if SLIM:
        code_touch(); P.vm(f"buffer_load_dword a255, v{vT1}, {srd(SW2)}, 0 offen")
    P.put(gate(0, 64))
    x_offset(T + 5); e(f"s_lshl_b32 s{sSF}, s{sG}, 7")
    for nb in range(4):
        P.vm(f"buffer_load_dwordx2 {vr(T+6+2*nb,2)}, v{T+5}, {srd(SX)}, s{sSF} offen offset:{nb*32}", "xs")
    e(f"v_lshrrev_b32 v{T}, 4, v{vBA}"); e(f"v_min_u32 v{T}, 2, v{T}"); e(f"v_add_u32 v{T}, s{sM}, v{T}")
    e(f"v_add_u32 v{T}, -1, v{T}"); e(f"v_med3_i32 v{T}, v{T}, 0, 31"); e(f"v_lshlrev_b32 v{vPA}, 3, v{T}")
    if O_("kvt1", 0):
        touch_off(T, (T0 - 5) * 128, 1, 128, [(sG, 0), 5 * 16384], T + 1)
        P.vm(f"buffer_load_dword a255, v{T}, {srd(SK)}, 0 offen"); P.vm(f"buffer_load_dword a255, v{T}, {srd(SV)}, 0 offen")
    P.put(gate(2, 0))
    p_h.issue()
    for i in range(8):
        d = T + 2 * (i % 2)
        e(f"v_lshlrev_b32 v{d}, 16, v{T+6+i}", need=["xs"]); e(f"v_and_b32 v{d+1}, 0xffff0000, v{T+6+i}")
        for h in range(2): e(f"v_fma_f32 v{d+h}, v{d+h}, v{vRSTD}, v{vNMEAN}")
        for h in range(2): e(f"v_accvgpr_write_b32 a{aG2+2*i+h}, v{d+h}")
    P.put(gate(3, 0))
    p_h.check(); h_loads(0, 3, 30)
    P.put(gate(6, 0))
    h_loads(1, 6, 24)
    sum_terms(sT, (sW, 128), (sW3B, 1)); dma_voff(vDW2, 3584, False, f"s{sT}", T)
    P.put(gate(8, NIT + 28))
    m, q = vRSTD, vNMEAN
    for i in range(16): e(f"v_accvgpr_read_b32 v{T+i}, a{aG2+i}")
    e(f"v_add_f32 v{m}, v{T}, v{T+1}"); e(f"v_mul_f32 v{q}, v{T}, v{T}")
    for i in range(1, 16):
        e(f"v_fmac_f32 v{q}, v{T+i}, v{T+i}")
        if i > 1: e(f"v_add_f32 v{m}, v{m}, v{T+i}")
    allreduce("v_add_f32", [m, q], [T, T + 1], k="v")
    e(f"v_lshrrev_b32 v{T}, 1, v{vBA}"); e(f"v_min_u32 v{m}, -2, v{m}"); e(f"v_min_u32 v{q}, -2, v{q}")
    masked(0xffff, f"buffer_store_dwordx2 {vr(m,2)}, v{T}, {srd(SWS)}, s{sSTP} offen sc1")
    code_touch()
    e(f"v_and_b32 v{T}, 0xf0, v{vBA}"); e(f"v_lshrrev_b32 v{T}, 1, v{T}"); e(f"v_and_b32 v{T+1}, 0x300, v{vBA}")
    e(f"v_add_u32 v{vPA}, v{T}, v{T+1}")
    P.put(gate(11, 70))
    p_st.issue()
    P.put(gate(12, 60))
    p_st.check()
    u, r = T + 15, T + 16
    e(f"v_add_f32 v{u}, v{T}, v{T+2}"); e(f"v_add_f32 v{r}, v{T+1}, v{T+3}")
    e(f"v_add_f32 v{q}, v{T+4}, v{T+6}"); e(f"v_add_f32 v{m}, v{T+5}, v{T+7}")
    allreduce("v_add_f32", [u, r, q, m], [T, T + 1, T + 2, T + 3], k="v")
    for x in (u, r, q, m): e(f"v_mul_f32 v{x}, {f2u(1/512)}, v{x}")
    for x, y in ((u, r), (q, m)):
        e(f"v_fma_f32 v{y}, -v{x}, v{x}, v{y}"); e(f"v_max_f32 v{y}, 0, v{y}")
        e(f"v_mul_f32 v{y}, {f2u(GA_**-2)}, v{y}"); e(f"v_add_f32 v{y}, {f2u(EPS)}, v{y}")
    e(f"v_rsq_f32 v{r}, v{r}", k="v"); e(f"v_sqrt_f32 v{m}, v{m}", k="v")
    for i in range(15): e(f"v_accvgpr_read_b32 v{T+i}, a{aG2+i}")
    e(f"v_mul_f32 v{u}, v{u}, v{r}")
    for i in range(15): e(f"v_fma_f32 v{T+i}, v{T+i}, v{r}, -v{u}")
    e(f"v_cvt_pk_bf16_f32 v{T}, v{T}, v{T+1}"); e(f"v_cvt_pk_bf16_f32 v{T+1}, v{T+2}, v{T+3}")
    e(f"v_accvgpr_read_b32 v{T+3}, a{aG2+15}"); e(f"v_fma_f32 v{u}, v{T+3}, v{r}, -v{u}")
    for i in range(2, 8): e(f"v_cvt_pk_bf16_f32 v{T+i}, v{T+2*i}, v{T+2*i+1}")
    for s in range(2):
        e(f"s_add_u32 s{sSF}, s{sHO}, {WS_X1 + s*PLANE}")
        P.vm(f"buffer_store_dwordx4 {vr(T+4*s,4)}, v{vTOK}, {srd(SWS)}, s{sSF} offen sc1", "x1st")
    e(f"v_bfe_u32 v{vPA}, v{vBA}, 4, 3"); e(f"v_lshlrev_b32 v{vPA}, 2, v{vPA}")
    P.put(gate(15, 40))
    set_flags(0, 1, ["x1st"])
    touch_off(T, 512, 4, 3584, [(sW3B, 1)], T + 1)
    P.vm(f"buffer_load_dword a255, v{T}, {srd(SW3)}, 0 offen")
    touch_off(T, 2048, 1, 128, [(sW3B, 512)], T + 1)
    P.vm(f"buffer_load_dword a255, v{T}, {srd(SW4)}, 0 offen")
    sum_terms(sT, (sW, 256)); dma_voff(vDW4, 1024, False, f"s{sT}", T)
    sum_terms(sT, (sG, 1 << 19)); e(f"v_add_u32 v{vDWO}, s{sT}, v{vDW4}")
    sum_terms(sT, (sW3B, 512)); e(f"v_add_u32 v{vDW4}, s{sT}, v{vDW4}")
    e(f"s_and_b32 s{sT}, s{sG}, 1"); e(f"s_sub_u32 s{sT}, 4, s{sT}"); e(f"s_mul_i32 s{sT}, s{sT}, s{sW}")
    for nb in range(4):
        e(f"s_and_b32 s{sT+1}, s{sT}, 3"); e(f"s_lshl_b32 s{sT+1}, s{sT+1}, 5"); e(f"v_xor_b32 v{vAA2+nb}, s{sT+1}, v{vAS}")
        e(f"s_lshr_b32 s{sT+1}, s{sT}, 2"); e(f"s_lshl_b32 s{sT+1}, s{sT+1}, 13"); e(f"v_add_u32 v{vAA2+nb}, s{sT+1}, v{vAA2+nb}")
        e(f"v_add_u32 v{vAA+nb}, 0xffff0000, v{vAA2+nb}"); e(f"s_add_u32 s{sT}, s{sT}, 1")
    P.put(gate(17, 60))
    p_x.issue(); code_touch()
    P.put(gate(18, 60))
    p_x.check()
    if XREG:
        def one(ks):
            e(f"s_mov_b32 s{sSF}, {WS_X1 + ks*PLANE}")
            P.vm(f"buffer_load_dwordx4 {ar(aG2 + 4*(ks-4),4)}, v{vTOK}, {srd(SWS)}, s{sSF} offen sc1", "xnl")
        paced(18, 70, 14, [lambda ks=ks: one(ks) for ks in range(4, 8)])
    P.put(gate(19, 0))
    if O_("kvt", 1):
        touch_off(T + 8, (32 - T0) * 128, 1, 128, [(sG, 0), T0 * 16384], T + 9)
        P.vm(f"buffer_load_dword a255, v{T+8}, {srd(SK)}, 0 offen"); P.vm(f"buffer_load_dword a255, v{T+8}, {srd(SV)}, 0 offen")
    if XREG:
        e(f"v_add_u32 v{T+9}, s{sW1K}, v{vBA}")
        paced(T0 - 1, 34, 6, [lambda ks=ks: P.lds(f"ds_write_b128 v{T+9}, {ar(aG2 + 4*(ks-4),4)} offset:{ks*4096}", ("xn", 1), need=["xnl"])
                              for ks in range(4, 8)])


def x1n_dma(j):
    return [([It(f"s_add_u32 m0, s{sW1K}, {ks*4096}", "s"), It(f"s_mov_b32 s{sSO}, {WS_X1 + ks*PLANE}", "s")],
             [It(f"buffer_load_dwordx4 v{vTOK}, {srd(SWS)}, s{sSO} offen sc1 lds", "g", ("xn", j), need=["x1"])])
            for ks in range(4 * j, 4 * j + 4)]


def run_tiles(t0, t1, fill, over, more, endw, ins, must, xtra={}):
    end = T0 - 1 if t0 < T0 else 31
    for t in range(t0, t1):
        groups = (kv_dma("K", t + 4) if t + 4 <= end else []) + (kv_dma("V", t + 3) if t + 3 <= end else [])
        groups = over.get(t, groups) + more.get(t, [])
        attn_iter(t, groups, fill, endw.get(t, ()), ins=ins.get(t), extra=xtra.get(t))
        head = fill[0].at if fill else (99, 0)
        if O_("showfill", 0): print(t, len(fill), head, file=sys.stderr)
        if t in must: assert head and head[0] >= must[t], (t, head, len(fill))


g2 = lambda h: shared_ops(range(8 * h, 8 * h + 8), 8 * h, lambda nb: ar(aG2 + 4 * nb, 4), False, GA,
                          lambda ks: ar(HB(ks), 4), lambda ks: [("h", ks)], f"g2{h}")
op = gemm(mt, 0, 8, ACC, [], (160, 212), opening="get")
opx = {40 + 2 * k: [it] for k, it in enumerate(op[4:12])}
opx.update({58 + k: [it] for k, it in enumerate(op[:4] + op[12:])})
xtra = {T0 - 1: opx}
if OB:
    its = [it for it in cap(acc_offset) if it.at is None]
    xtra[0] = {1: its[:1]}
    for k, it in enumerate(its[1:]): xtra[0].setdefault(11 + (k * 50) // len(its), []).append(it)
fill = cap(side1)
kv = lambda *a: [g for k in a for g in kv_dma(k[0], int(k[1:]))]
run_tiles(0, T0, fill, {0: kv("V2", "K4", "V3")},
          {O_("w2it", 1): w2t[0].dma() if SLIM else [], 6: w2t[1].dma(), 18: mt[0].dma(), 19: x1n_dma(2) + x1n_dma(3),
           20: x1n_dma(0) + mt[1].dma(), 21: [] if XREG else x1n_dma(1)},
          {4: [("w2", 0)], 7: [("w2", 1)], 20: [("xn", 3), mt[0].tag]}, {5: g2(0), 8: g2(1)}, {4: 6, 7: 8, 17: 18, 18: 19, 21: 99}, xtra)
stamp()

def ph_pack(ks):
    for k in ks:
        pack(ACC, *pieces[k])
        for j in range(4): e(f"v_accvgpr_write_b32 a{PHA(k)+j}, v{ACC(pieces[k][0], 2*pieces[k][2], pieces[k][1])+j}")


def own_x1n(per):
    return {4 * per + 2: [It(f"s_lshl2_add_u32 s{sT}, s{sKS}, s{sTB}", "s")],
            4 * per + 6: [It(f"s_lshl_b32 s{sT}, s{sT}, 10", "s"), It(f"v_add_u32 v{T+9}, s{sT}, v{vBA}", "v")],
            7 * per + 3: [It(f"ds_read_b128 {ar(aXN,4)}, v{T+9}", "l", "xnr")],
            7 * per + 7: [It(f"ds_read_b128 {ar(aXN+4,4)}, v{T+9} offset:8192", "l", "xnr")]}


def mlp_tail(act, pending, nstep, bf):
    P.wait(["xnr"]); e("s_barrier")
    stamp()
    interleave(cap(act), [x + y for x, y in pending], 16)
    gemm_pre(mt, 8)
    P.wait(["hw"]); e("s_barrier")
    stamp()
    g = 32 * (nstep - 2)
    fill = [gate(0, g + 20)] + cap(ph_pack, (0, 2, 4, 6)) + [gate(0, g + 36)] + cap(ph_pack, (1, 3, 5, 7))
    pending = []
    gemm(mt[:8 + nstep] + [Extra(kv_dma("K", T0) + kv_dma("K", T0 + 1))], 8, nstep, ACC, pending, bf, fill=fill)
    assert not pending
    P.wait([("K", T0 + 1)]); e("s_barrier")
    stamp()
    for f in range(8): P.puts(frag_reads(T0 - 1, f))
    P.drain(fill)


def mlp_even():
    P.cmt("==== channel MLP, even groups: 256 hidden columns, one private weight tile per wave and step")
    extra = own_x1n(32)
    extra.update({1: [It("s_barrier", "s")], 2 * 32 + 26: [It(None, "s", need=[("xn", 0), ("xn", 1)])],
                  2 * 32 + 27: [It("s_barrier", "s")],
                  7 * 32 + 10: [It(f"s_lshl_b32 s{sT}, s{sW}, 13", "s"), It(f"v_add_u32 v{T+8}, s{sT}, v{vBA}", "v")]})
    pending = mt[2].dma()
    gemm(mt, 0, 8, ACC, pending, (160, 212), extra=extra, opening="done", dma0=2)

    def act():
        for tb in range(4):
            gelu(16 * tb, 16, 64 + 16 * tb, lambda i: 16 * tb + i, first=tb == 0)
            for s in range(2):
                P.lds(f"ds_write_b128 v{T+8}, {vr(16*tb + 4*s,4)} offset:{s*4096 + tb*1024}", "hw")
    mlp_tail(act, pending, 8, (160, 212))


def mlp_odd():
    P.cmt("==== channel MLP, odd groups: 192 hidden columns, three weight tiles per step shared by the four waves")
    AC3 = lambda nb, tb: (tb * 3 + nb) * 4
    af = lambda s, nb, ks: AF(2 * (nb + (nb == 2) * (s & 1)) + ks)
    bf = lambda s, ks, tb: ar((160, 212)[s & 1] + (ks * 4 + tb) * 4, 4)

    def a3(s, nb):
        t = mt[s]
        base, off = (vAA2, 0) if t.slot == 2 else (vAA, t.slot * 32768)
        return [It(f"ds_read_b64_tr_b16 {ar(af(s,nb,ks)+2*h,2)}, v{base+nb} offset:{off + ks*4096 + h*2048}", "l",
                   ("A", t.tag, nb)) for ks in range(2) for h in range(2)]

    def stage(s):
        t = mt[s]
        if s >= 8: return t.dma()
        return [(([It(f"s_add_u32 m0, s{sRS}, {t.slot*32768 + c*8192}", "s")] if i == 0 else []) +
                 [It(f"s_mov_b32 s{sSO}, {t.base + i*8*3584 + c*128 - i*1024}", "s")],
                 [It(f"buffer_load_dwordx4 v{vDW2}, {srd(SW3)}, s{sSO} offen offset:{i*1024} lds", "g", t.tag)])
                for c in range(3) for i in range(2)]

    REL, RAW, DS = O_("rel", 13), O_("raw", 13), O_("ds", 3)
    DG = {(REL + 1 + DS * k) % 24 for k in range(6)}
    ms, gaps = [], own_x1n(24)
    add = lambda g, it: gaps.setdefault(g, []).append(it)
    for s in range(8):
        t, g0 = mt[s], 24 * s
        for nb in range(3):
            for tb in range(4):
                for n, ks in enumerate(range(2) if not tb & 1 else range(1, -1, -1)):
                    d = vr(AC3(nb, tb), 4)
                    ms.append(It(f"{MF} {d}, {ar(af(s,nb,ks),4)}, {bf(s,ks,tb)}, {d if s or n else 0}", "m",
                                 need=[("A", t.tag, nb), ("B", mt[0].tag, s, tb)]))
        if s == 0:
            for k, it in enumerate(a3(0, 1)[2:] + a3(0, 2)): add((0, 0, 1, 1, 2, 2)[k], it)
        add(g0 + REL - 1, It(None, "s", need=[("A", t.tag, nb) for nb in range(3)]))
        add(g0 + REL, It("s_barrier", "s"))
        if s < 7:
            u = mt[s + 1]
            add(g0 + RAW - 1, It(None, "s", need=[u.tag] + ([("xn", 0), ("xn", 1)] if s == 2 else [])))
            if RAW != REL: add(g0 + RAW, It("s_barrier", "s"))
            c = [g for g in range(RAW + 1, 24) if g not in DG]
            rd = a3(s + 1, 0) + a3(s + 1, 2) + a3(s + 1, 1)
            for k, it in enumerate(rd): add(g0 + max(c[k * len(c) // 12], 16 if k >= 8 else 0), it)
            rd = [It(f"ds_read_b128 {bf(s+1,ks,tb)}, v{vBA} offset:{u.kp*8192 + ks*4096 + tb*1024}", "l",
                     ("B", mt[0].tag, s + 1, tb)) for tb in range(4) for ks in range(2)]
            c = [g for g in range(0 if s else 4, RAW + 1) if g not in DG]
            for k, it in enumerate(rd): add(g0 + c[k * len(c) // 8], it)
        add(g0 + 19, hop())
        if O_("jit2", 0): add(g0 + 4, jitter_item())
        if SSET == "odd": add(g0, stamp_item())
    if SSET == "odd": add(len(ms) - 1, stamp_item())
    add(0, It(f"s_mul_i32 s{sT}, s{sW}, {16*3584 - 128}", "s")); add(0, It(f"v_add_u32 v{vDW2}, s{sT}, v{vDW2}", "v"))
    add(1, It("s_barrier", "s"))
    pending, prev = stage(2), 1
    for g in range(3, len(ms)):
        if g % 24 == REL + 1: pending += stage(g // 24 + 3)
        if pending and g - prev >= 2 and (g % 24 in DG or len(pending) > 6 or g < REL):
            place(add, g, pending.pop(0), prev); prev = g
    HW = (T + 8, T + 9, T + 15)

    def addr():
        P.put(gate(0, 7 * 24 + 12))
        e(f"s_mul_i32 s{sT}, s{sW}, 3")
        for nb in range(3):
            e(f"s_lshr_b32 s{sT+1}, s{sT}, 1"); e(f"s_lshl_b32 s{sT+1}, s{sT+1}, 12"); e(f"s_and_b32 s{sT+2}, s{sT}, 1")
            e(f"s_lshl3_add_u32 s{sT+1}, s{sT+2}, s{sT+1}"); e(f"v_add_u32 v{HW[nb]}, s{sT+1}, v{vBA}"); e(f"s_add_u32 s{sT}, s{sT}, 1")
        e(f"s_sub_u32 s{sT}, s{sRING}, {RING + 65536}")
        for nb in range(4):
            e(f"v_add_u32 v{vAA+nb}, s{sT}, v{vAS+nb}"); e(f"v_add_u32 v{vAA2+nb}, 0x10000, v{vAA+nb}")
    fill = cap(addr)
    P.run_gaps(ms, gaps, fill, gmin=4)
    P.drain(fill)

    def act():
        for tb in range(4):
            gelu(12 * tb, 12, 64 + 12 * tb, lambda i: 12 * tb + i, first=tb == 0)
            for nb in range(3):
                P.lds(f"ds_write_b64 v{HW[nb]}, {vr(12*tb + 2*nb,2)} offset:{tb*1024}", "hw")
    mlp_tail(act, pending, 6, (212, 160))


e(f"s_bitcmp1_b32 s{sG}, 0"); e("s_cbranch_scc1 L_odd")
lab("L_even")
state = (list(P.lq), list(P.vq), set(P.used), set(P.ever), nstamp[0])
mlp_even()
after = (list(P.lq), list(P.vq), set(P.used), set(P.ever), nstamp[0])
main, P.L = P.L, []
P.lq, P.vq, P.used, P.ever, nstamp[0] = state
mlp_odd()
e("s_branch L_join")
assert (P.lq, P.vq) == after[:2] and (SSET or nstamp[0] == after[4]), (P.lq, P.vq, after[:2])
odd_text, P.L = P.L, main
P.lq, P.vq, P.used, P.ever, nstamp[0] = after
lab("L_join")
ph_pack(range(8, 10))
gaps = {g: [] for g in range(64)}
for f in range(8, 16): gaps[16 * (f // 4 - 1) + f % 4] += frag_reads(T0 - 1, f)
for f in range(4):
    gaps[48 + f] += frag_reads(T0, f); issued.add((T0, f))
for k, grp in enumerate(kv_dma("V", T0) + kv_dma("K", T0 + 2)): place(add1, 2 + 4 * k, grp, 4 * k - 2)
fill = cap(ph_pack, range(10, 14)) + cap(first_half, False, (20, 36)) + cap(ph_pack, range(14, 16))
P.run_gaps([m for m, _ in qk_mfmas(T0 - 1)], gaps, fill)
P.drain(fill)
P.wait([("K", T0 + 2), ("V", T0)] + [("F", T0, f) for f in range(4)]); e("s_barrier")
stamp()


XF = [244, 245, 246, 247, 248, 249, T + 10, T + 11]


def side2():
    paced(T0, 60, O_("sstep", 22), [lambda k=k: store_piece(ar(PHA(k), 4), WS_PH, *pieces[k], "phs") for k in range(16)])
    touch_off(T + 8, 4096, 1, 128, [(sG, 1 << 19)], T + 9)
    P.vm(f"buffer_load_dword a255, v{T+8}, {srd(SWO)}, 0 offen")
    code_touch()
    P.put(gate(25, O_("phf", 131))); set_flags(1, 2, ["phs"])
    x_offset(T + 8, 4)
    paced(26, 50, 20, [lambda i=i: P.vm(f"buffer_load_dwordx2 {vr(XF[2*i],2)}, v{T+8}, {srd(SX)}, s{sXF} offen "
                                        f"offset:{(i//2)*128 + (i%2)*32}", "xf") for i in range(4)])
    o_addr()
    PH0 = O_("ph0", 40)
    P.put(gate(27 + PH0 // NIT, PH0 % NIT)); p_ph.issue()
    paced(27, PH0 + 110, 1, [p_ph.check])
    paced(27, PH0 + 120, O_("lstep", 22), [lambda k=k: load_piece(WS_PH, ar(PHA(k), 4), k // 2, k % 2, "phl") for k in range(16)])


def o_addr():
    if not PA:
        e(f"v_add_u32 v{T+8}, s{sW4K}, v{vBA}")
        return
    x, y = vDW2, vDW4
    for d, (ro, rb), (co, cb) in ((T + 8, (4, 4), (8, 2)), (T + 9, (6, 4), (4, 2))):
        e(f"v_bfe_u32 v{x}, v{vBA}, {ro}, {rb}"); e(f"v_bfe_u32 v{d}, v{vBA}, {co}, {cb}")
        e(f"v_and_b32 v{y}, 1, v{x}"); e(f"v_xor_b32 v{d}, v{d}, v{y}")
        e(f"v_lshrrev_b32 v{y}, 3, v{x}"); e(f"v_lshlrev_b32 v{y}, 1, v{y}"); e(f"v_xor_b32 v{d}, v{d}, v{y}")
        e(f"v_and_b32 v{y}, 6, v{x}"); e(f"v_lshl_add_u32 v{d}, v{y}, 1, v{d}")
        e(f"v_lshlrev_b32 v{d}, 3, v{d}"); e(f"v_lshl_add_u32 v{d}, v{x}, 7, v{d}")
    e(f"v_add_u32 v{T+8}, s{sW4K}, v{T+8}")


fill = cap(side2)
run_tiles(T0, 31, fill, {T0: kv(f"V{T0+1}", f"K{T0+3}", f"K{T0+4}", f"V{T0+2}"), T0 + 1: kv(f"K{T0+5}", f"V{T0+3}", f"V{T0+4}")}, {O_("wo0", 29): ot[0].dma(), 30: ot[1].dma()}, {}, {}, {30: 99})


vOW, vOR = 208, 212


def o_stage(k, st):
    s, qb = k // 4, k % 4
    b = 8 * (k % 8)
    if "o" in opt.get("cut", "") and k >= 8 and st < 3: return
    if "O" in opt.get("cut", "") and k >= 2: return
    if st == 0:
        for h in range(2):
            for j in range(4): e(f"v_accvgpr_read_b32 v{b+4*h+j}, a{O(2*s+h,qb)+j}")
    elif st == 1:
        for j in range(0, 8, 2):
            e(f"v_pk_fma_f32 {vr(b+j,2)}, {vr(b+j,2)}, {vr(NM(qb) + j%4,2)}, {vr(64 + 4*qb + j%4,2)} neg_lo:[0,0,1] neg_hi:[0,0,1]" if OB else
              f"v_pk_mul_f32 {vr(b+j,2)}, {vr(b+j,2)}, {vr(NM(qb) + j%4,2)}" if PA else
              f"v_pk_mul_f32 {vr(b+j,2)}, {vr(b+j,2)}, {vr(NM(qb),2)} op_sel_hi:[1,0]")
    elif st == 2:
        for j in range(4): e(f"v_cvt_pk_bf16_f32 v{b+j}, v{b+2*j}, v{b+2*j+1}")
    elif PA:
        P.lds(f"ds_write2st64_b64 v{vOW+qb}, {vr(b,2)}, {vr(b+2,2)} offset0:{32*s} offset1:{32*s+4}", "ow")
    else:
        P.lds(f"ds_write_b128 v{T+8}, {vr(b,4)} offset:{s*16384 + qb*1024}", "ow")


vL = 40


def row_sums():
    for qb in range(4):
        for j in range(2): e(f"v_accvgpr_read_b32 v{vL+2*qb+j}, a{LACC(qb)+j}")
    for qb in range(4): e(f"v_add_f32 v{vL+2*qb}, v{vL+2*qb}, v{vL+2*qb+1}")


def row_inverses():
    e(f"v_bfe_u32 v{vL+8}, v{vBA}, 8, 2"); e(f"v_lshlrev_b32 v{vL+8}, 4, v{vL+8}")
    for qb in range(4): e(f"v_rcp_f32 v{vL+2*qb}, v{vL+2*qb}")
    for qb in range(4):
        for r in range(4): P.lds(f"ds_bpermute_b32 v{NM(qb)+r}, v{vL+8}, v{vL+2*qb} offset:{4*r}", "rinv")


def vote():
    v = 56
    P.put(gate(31, 33))
    e(f"s_lshl_b32 s{sT+1}, s{sW}, 2"); e(f"s_add_u32 s{sT+1}, s{sT+1}, {RING + 32768}")
    e(f"v_mov_b32 v{v+4}, {f2u(-1.0 if FORCE_REDO else 2.0**64)}"); e(f"v_mov_b32 v{v+5}, s{sT+1}"); e(f"v_mov_b32 v{v+6}, {RING + 32768}")
    P.put(gate(31, 38))
    row_sums()
    e(f"v_maximum3_f32 v{v}, v{vL}, v{vL+2}, v{vL+4}"); e(f"v_maximum3_f32 v{v}, v{v}, v{vL+6}, v{vL+6}")
    e(f"v_cmp_nle_f32 vcc, v{v}, v{v+4}")
    e(f"s_cmp_lg_u64 vcc, 0\n    s_cselect_b32 s{sT}, 1, 0", k="v")
    e(f"v_mov_b32 v{v}, s{sT}")
    P.lds(f"ds_write_b32 v{v+5}, v{v}", "vote")
    inv = P.rec; k = len(inv) + 6
    row_inverses()
    inv[k:k] = [It(None, "s", need=["vote"]), It("s_barrier", "s"), It(f"ds_read_b128 {vr(v,4)}, v{v+6}", "l", "votes")]
    e(f"v_or3_b32 v{v}, v{v}, v{v+1}, v{v+2}", need=["votes"]); e(f"v_or_b32 v{v}, v{v}, v{v+3}")
    e(f"v_readfirstlane_b32 s{sT}, v{v}")


fill = cap(vote)
if SSET == "oe": stamp(0)
attn_iter(31, [], fill)
if SSET == "oe": stamp(0)
P.drain(fill)
e(f"s_cmp_lg_u32 s{sT}, 0"); e("s_cbranch_scc1 L_redo")
lab("L_att_done")
stamp()
if SSET == "oe": stamp(0)

if PA:
    for qb in range(4):
        e(f"v_xor_b32 v{vOW+qb}, {32*qb}, v{T+8}"); e(f"v_xor_b32 v{vOR+qb}, {32*qb}, v{T+9}")
o_stage(0, 0)
P.wait(["rinv"])
if OB:
    for i in range(16): e(f"v_mul_f32 v{64+i}, s{sOB}, v{vR+i}")
lag = [int(x) for x in opt.get("olag", "0,1,2,3").split(",")]
WG = O_("owg", 1)
for k in range(16 + lag[3] + WG):
    if SSET == "oe" and k % 4 == 0: stamp(0)
    for st in range(3):
        if 0 <= k - lag[st] < 16 and k + st: o_stage(k - lag[st], st)
    if (k - lag[3]) % WG == WG - 1:
        for j in range(k - lag[3] - WG + 1, k - lag[3] + 1):
            if 0 <= j < 16: o_stage(j, 3)
if SSET in ("o", "oe"): stamp(0)
gemm_pre(ot, 0)
P.wait(["ow"]); e("s_barrier")
if SSET in ("o", "oe"): stamp(0)
stamp()
OACC = lambda nh, nb, tb: 64 + ACC(nh, nb, tb)
PSR = lambda g, nh: nh * 32 + g * 4


def o_side():
    if OWN:
        P.put(gate(0, 32 * 7))
        for u in range(2):
            e(f"s_lshl1_add_u32 s{sT}, s{sW}, {u}")
            e(f"s_cmp_eq_u32 s{sT}, s{sG}\n    s_cselect_b32 s{sPO[u]}, 0x7f000000, 0")
            e(f"v_or_b32 v{vPO+u}, s{sPO[u]}, v{vBA}")
        sum_terms(sPX, (sG, 8192), (sPC, 1), WS_PS)
    P.put(gate(0, 32 * 8 + 4))
    for p in pieces[:8]: pack(OACC, *p)
    for p, g in zip(pieces, [int(x) for x in opt.get("s0g", "440,448,456,464,472,480,488,496").split(",")]):
        P.put(gate(0, g))
        store_piece(vr(OACC(0, 2 * p[2], p[1]), 4), WS_PS, *p, "s0s")
    if O_("f0k", 3) < 0:
        P.put(gate(0, O_("f0g", 500))); set_flags(2, 2, ["s0s"])


fill = cap(o_side)
pending = ot[2].dma()
gemm(ot, 0, 16, OACC, pending, (0, 32, 64, 96, (vr, 0), (vr, 32))[:O_("obs", 6)], fill=fill, breg=vOR if PA else vBA, btr=PA)
P.drain(fill)
stamp()
P0K = O_("p0k", -1)
for k, p in enumerate(pieces[8:]):
    pack(OACC, *p); store_piece(vr(OACC(1, 2 * p[2], p[1]), 4), WS_PS, *p, "s1s")
    if k == O_("f0k", 3): set_flags(2, 2, ["s0s"])
    if k == P0K: p_s0.issue()
vY, vS, vG, vX = 64, 80, 96, 112


def gate_values():
    for i in range(8): e(f"v_accvgpr_read_b32 v{vG+i}, a{aXN+i}")
    for i in range(8):
        e(f"v_lshlrev_b32 v{vY+2*i}, 16, v{vG+i}"); e(f"v_and_b32 v{vY+2*i+1}, 0xffff0000, v{vG+i}")
    for i in range(16): e(f"v_fma_f32 v{vY+i}, v{vY+i}, v{vRSTD}, v{vNMEAN}")
    for k in range(17):
        if k < 16:
            for j in range(4): e(f"v_accvgpr_read_b32 v{vG + 4*(k%2) + j}, a{PHA(k)+j}", need=[("phl", k // 2, k % 2)])
        if k: add_piece(vY + 8 * ((k - 1) % 2), vG + 4 * ((k - 1) % 2), False, ())
    for i in range(16): e(f"v_mul_f32 v{vG+i}, s{sNL2E}, v{vY+i}")
    for i in range(16): e(f"v_exp_f32 v{vG+i}, v{vG+i}")
    e(f"s_mov_b32 s{sT}, {f2u(GA_ * 2.0**OSH)}")
    for i in range(16): e(f"v_fma_f32 v{vG+i}, v{vG+i}, s{sT}, s{sT}")
    for i in range(16): e(f"v_rcp_f32 v{vG+i}, v{vG+i}")
    for i in range(0, 16, 2): e(f"v_pk_mul_f32 {vr(vG+i,2)}, {vr(vG+i,2)}, {vr(vY+i,2)}")
    for i in range(8):
        e(f"v_lshlrev_b32 v{vX+2*i}, 16, v{XF[i]}", need=["xf"]); e(f"v_and_b32 v{vX+2*i+1}, 0xffff0000, v{XF[i]}")
    e(f"v_bfe_u32 v200, v{vTOK}, 4, 4"); e("v_lshlrev_b32 v200, 10, v200"); e(f"v_bfe_u32 v201, v{vBA}, 8, 2")
    e("v_lshl_add_u32 v200, v201, 4, v200")


if OWN:
    e(f"v_add_u32 v216, s{sRING}, v{vBA}")
    for u in range(2):
        e(f"s_cmp_eq_u32 s{sPO[u]}, 0"); e(f"s_cbranch_scc1 L_away{u}")
        for nh, tb, s in pieces:
            if tb >> 1 == u: e(f"ds_write_b128 v216, {vr(OACC(nh,2*s,tb),4)} offset:{((tb & 1) + 2*s)*2048 + nh*1024}")
        lab(f"L_away{u}")
    e(f"s_lshr_b32 s{sT}, s{sG}, 1"); sum_terms(sT + 1, (sT, 8192), (sW, 2048), RING); e(f"v_add_u32 v216, s{sT+1}, v{vBA}")
    P.wait_all(vm=False); e("s_barrier")
    for nh in range(2): P.lds(f"ds_read_b128 {vr(192+4*nh,4)}, v216 offset:{nh*1024}", "own")
code = cap(gate_values)
if OWN:
    for nh in range(2): code[40:40] = cap(add_piece, vS + 8 * nh, 192 + 4 * nh, True, ["own"])
k0, k1 = O_("gs0", 232), O_("gs1", 400)
P.puts(code[:k0])
if P0K < 0: p_s0.issue()
P.puts(code[k0:k1])
set_flags(3, 2, ["s1s"])
stamp(2)
p_s0.check()
for g in range(OWN, 8): load_piece(WS_PS, vr(PSR(g, 0), 4), g, 0, "psl")
p_s1.issue()
P.puts(code[k1:])


def finish(nh):
    for g in range(OWN, 8): add_piece(vS + 8 * nh, PSR(g, nh), g == 0, [("psl", g, nh)])
    for i in range(8 * nh, 8 * nh + 8, 2): e(f"v_pk_fma_f32 {vr(vG+i,2)}, {vr(vG+i,2)}, {vr(vS+i,2)}, {vr(vX+i,2)}")
    d = 204 + 4 * nh
    for i in range(4): e(f"v_cvt_pk_bf16_f32 v{d+i}, v{vG+8*nh+2*i}, v{vG+8*nh+2*i+1}")
    for sw in ("v_permlane32_swap_b32", "v_permlane16_swap_b32"):
        for j in range(2): e(f"{sw} v{d+j}, v{d+2+j}")
    P.vm(f"buffer_store_dwordx4 {vr(d,4)}, v200, {srd(SOUT)}, s{sXF} offen offset:{nh*128}")


p_s1.check()
stamp()
for g in range(OWN, 8): load_piece(WS_PS, vr(PSR(g, 1), 4), g, 1, "psl")
finish(0)
finish(1)
if AMP:
    P.wait_all(); stamp()
    e(f"s_sub_u32 s{sST}, s{sST+2}, s{sST}")
    e(f"s_lshr_b32 s{sST}, s{sST}, 5" if AMP[3] else f"s_lshl_b32 s{sST}, s{sST}, {AMP[2]}")
    if "ampsel" in opt:
        e(f"s_lshr_b32 s{sT}, {opt['ampsel']}, s{sG}"); e(f"s_and_b32 s{sT}, s{sT}, 1"); e(f"s_mul_i32 s{sST}, s{sST}, s{sT}")
    e(f"s_memrealtime {sr(sST+2,2)}"); e("s_waitcnt lgkmcnt(0)")
    lab("L_amp")
    e(f"s_memrealtime {sr(sST+4,2)}"); e("s_waitcnt lgkmcnt(0)")
    e(f"s_sub_u32 s{sST+4}, s{sST+4}, s{sST+2}"); e(f"s_cmp_lt_u32 s{sST+4}, s{sST}"); e("s_cbranch_scc1 L_amp")
if STAMP:
    P.wait_all()
    stamp()
    e(f"s_lshl_b32 s{sT}, s2, 2"); e(f"s_add_u32 s{sT}, s{sT}, s{sW}"); e(f"s_lshl_b32 s{sT}, s{sT}, 8")
    e(f"s_add_u32 s{sT}, s{sT}, {WS_ST}"); e(f"v_lshrrev_b32 v0, 2, v{vBA}")
    P.vm(f"buffer_store_dword a254, v0, {srd(SWS)}, s{sT} offen")
e("s_endpgm")

lab("L_side")
NPP = O_("npp", 1)
for p in slow_paths:
    lab(f"L_slow_{p.name}")
    if NPP > 1 and p.name in ("s0", "s1"):
        regs = [f"v{216 + i}" for i in range(NPP)]
        ld = lambda i: e(p.loads[0].replace(f"v{vPOLL},", regs[i % NPP] + ","))
        for i in range(NPP - 1):
            ld(i); e(f"s_sleep {O_('pps', 5)}")
        lab(f"L_spin_{p.name}")
        for i in range(NPP):
            ld(i + NPP - 1); e(f"s_waitcnt vmcnt({NPP - 1})")
            e(p.tests[0].replace(f"v{vPOLL}", regs[i])); e(f"s_cbranch_vccz L_back_{p.name}")
        e(f"s_add_u32 s{sSPIN}, s{sSPIN}, 1"); e(f"s_cmp_gt_u32 s{sSPIN}, 0x200000")
        e(f"s_cbranch_scc0 L_spin_{p.name}"); e(f"s_branch L_back_{p.name}")
        continue
    e("s_sleep 1")
    for l in p.loads: e(l)
    e(f"s_add_u32 s{sSPIN}, s{sSPIN}, 1")
    e("s_waitcnt vmcnt(0)")
    for t in p.tests: e(t)
    e(f"s_cmp_gt_u32 s{sSPIN}, 0x200000"); e(f"s_cbranch_scc1 L_back_{p.name}")
    e(f"s_cbranch_vccnz L_slow_{p.name}")
    e(f"s_branch L_back_{p.name}")

lab("L_redo")
P.lq, P.vq = [], []
e(f"s_mov_b32 s{sOB}, 0")
for s in range(4): e(f"v_add_u32 v{KA(s)}, 49152, v{KA(s)}")
for qb in range(4): e(f"v_mov_b32 v{NM(qb)}, 0xff800000")


def redo_tile(kinds, zero):
    P.used = set()
    P.wait_all(); e("s_barrier")
    for kind, lds in kinds: flush(kv_dma(kind, 0, lds=lds, so=f"s{sCNT}"))
    P.wait_all(); e("s_barrier")
    mf = [m for m, _ in qk_mfmas(2, zero=zero)]
    for half in range(2):
        for f in range(8 * half, 8 * half + 8): P.puts(frag_reads(2, f))
        P.puts(mf[32 * half:32 * half + 32])


e(f"s_mov_b32 s{sCNT}, 0")
lab("L_rmax")
redo_tile([("K", 98304)], True)
for qb in range(4):
    regs = [S(1, kb, qb) + i for kb in range(4) for i in range(4)]
    for i in range(0, 16, 2): e(f"v_max3_f32 v{NM(qb)}, v{NM(qb)}, v{regs[i]}, v{regs[i+1]}")
e(f"s_add_u32 s{sCNT}, s{sCNT}, 16384"); e(f"s_cmp_lt_u32 s{sCNT}, 0x80000"); e("s_cbranch_scc1 L_rmax")
allreduce("v_max_f32", [NM(qb) for qb in range(4)], [NM(qb) + 1 for qb in range(4)])
for qb in range(4):
    for i in (1, 2, 3, 0): e(f"v_sub_f32 v{NM(qb)+i}, 0, v{NM(qb)}")
for i in list(range(128)) + list(range(192, 208)): e(f"v_accvgpr_write_b32 a{i}, 0")
e(f"s_mov_b32 s{sCNT}, 0")
lab("L_rpv")
redo_tile([("K", 98304), ("V", 114688)], False)
for half in range(2):
    ex, post = sm_stream(1, half)
    P.puts(ex); P.puts([x for p in post for x in p])
mf = [m for m, _ in pv_mfmas(3)]
for half in range(2):
    for f in range(16 + 8 * half, 24 + 8 * half): P.puts(frag_reads(3, f))
    P.puts(mf[34 * half:34 * half + 34])
e(f"s_add_u32 s{sCNT}, s{sCNT}, 16384"); e(f"s_cmp_lt_u32 s{sCNT}, 0x80000"); e("s_cbranch_scc1 L_rpv")
row_sums(); row_inverses(); P.wait(["rinv"])
e("s_branch L_att_done")
if HOP: P.raw(".p2align 12")
lab("L_odd")
P.L += odd_text
lab("L_end")
e("s_endpgm")
P.L += ['.section .rodata,"a"', ".p2align 6", f".amdhsa_kernel {NAME}",
        "  .amdhsa_next_free_vgpr 512", "  .amdhsa_next_free_sgpr 102", "  .amdhsa_accum_offset 256",
        "  .amdhsa_group_segment_fixed_size 0", "  .amdhsa_kernarg_size 104", "  .amdhsa_user_sgpr_count 2",
        "  .amdhsa_user_sgpr_kernarg_segment_ptr 1", "  .amdhsa_system_sgpr_workgroup_id_x 1",
        "  .amdhsa_float_denorm_mode_32 3", ".end_amdhsa_kernel"]
lines = "\n".join(P.L).split("\n")
for key, pats in (("kvf", (srd(SK), srd(SV))), ("wf", tuple(srd(x) for x in (SWQ, SWO, SW1, SW2, SW3, SW4)))):
    if opt.get(key):
        lines = [l.replace(" lds", " " + opt[key].replace("+", " ") + " lds") if l.endswith(" lds") and any(x in l for x in pats) else l
                 for l in lines]
if opt.get("xf"): lines = [l + " " + opt["xf"] if "load_dwordx4 v[" in l and (srd(SX) in l or "s[64:65]" in l) else l for l in lines]
ABL = opt.get("abl", "")
if ABL:
    i0 = next(i for i, l in enumerate(lines) if "output projection" in l); i1 = lines.index("L_side:")
    j0 = max(i for i in range(i0, i1) if MF in lines[i])
    keep = []
    for i, l in enumerate(lines):
        if i0 < i < i1:
            if "p" in ABL and "s_cbranch_vccnz L_slow_s" in l: continue
            if "w" in ABL and i > j0 and "vmcnt" in l and "v_dot2" not in lines[i + 1]: continue
            if "l" in ABL and "buffer_load_dwordx4" in l and "sc1" in l: continue
            if "s" in ABL and "buffer_store_dwordx4" in l and "sc1" in l: continue
        keep.append(l)
    lines = keep
if opt.get("tcf"): lines = [l + " " + opt["tcf"] if "_load_dword a255" in l and "sc1" not in l and ", off" not in l else l for l in lines]
lines, added = fix_hazards(lines)
nhop = 0
if HOP: lines, nhop = add_page_hops(lines, sW)
lines = [l for l in lines if "@hop" not in l]
if O_("short", 1): lines = compress(lines)
text = "\n".join(lines) + "\n"
open(OUT_PATH, "w").write(text)
print(f"{OUT_PATH}: {len(lines)} lines, {len(text)} bytes, {added} wait states padded, {nstamp[0]} stamps, {nhop} hops", file=sys.stderr)
```

```python
import math
import struct
import sys
from asmlib6 import *

OUT_PATH = sys.argv[1]
opt = dict(a.split("=") for a in sys.argv[2:])
O_ = lambda k, d: int(opt.get(k, d))
STAMP = O_("stamp", 0)
SSET = opt.get("sset", "")
FORCE_REDO = O_("redo", 0)
QPERM = O_("qperm", 1)
PA = O_("pa", 1)
OB = O_("ob", 0)
sOB = 100
OWN = O_("own", 1)
sPO, vPO, sPX = (3, 101), 218, 65
OSH = O_("osh", 0)
XREG = O_("xreg", 1)
AHEAD = O_("ahead", 10)
AMP = [int(x) for x in opt["amp"].split(",")] if "amp" in opt else None

NAME = "recurrent_scan__gqa_block_cached__mixer_s_mlp__prompt_kernel"
MF = "v_mfma_f32_16x16x32_bf16"
f2u = lambda x: "0x%08x" % struct.unpack("<I", struct.pack("<f", x))[0]
LOG2E = math.log2(math.e)
QSCALE = LOG2E / math.sqrt(128.0)
GC1 = -2.0 * math.sqrt(2.0 / math.pi) * LOG2E
GC2 = GC1 * 0.044715
EPS = 1e-5
GA_ = (-GC2) ** (1.0 / 3.0)
GK = -GC1 / GA_

SX, SK, SV, SWS, SWQ, SWO, SW1, SW2, SW3, SW4, SOUT, SDBG = range(4, 52, 4)
sG, sM, sW = 52, 53, 54
sT = 55
sW1K, sW4K, sRING, sSO = 60, 61, 62, 63
sSF, sCNT, sSPIN, sHO, sPP, sPC, sFL, sF0, sF1, sSTP, sSTC = range(64, 75)
sLO, sHI, sONE2, sC1, sC2, sNL2E, sF2, sMSK, sKS, sF3, sTB, sSTF, sXF, sRS, sW3B = range(75, 90)
sST = 92
srd = lambda b: sr(b, 4)

WS_H, WS_X1, WS_PS, WS_PH, WS_FL, WS_SS, WS_ST = 0, 0x200000, 0x400000, 0x1400000, 0x2400000, 0x2500000, 0x4000000
PLANE = 131072

vBA, vTOK, vNMEAN, vRSTD, vLANE, vSTAMP, vCODE, vAS, vDW2 = 255, 254, 253, 252, 251, 250, 248, 244, 243
T = 226
vAA, vAA2 = T, T + 4
vBX, vWA, vSC1, vDWQ, vDW1 = T + 8, T + 9, T + 12, T + 14, T + 15
vPA, vPOLL, vONE, vDW4, vDWO = T + 16, T + 15, T + 14, T + 13, T + 12
vTC = T + 10
XR = 128
G12 = 192
S = lambda buf, kb, qb: buf * 64 + qb * 16 + kb * 4
PR = lambda buf, ks, qb: buf * 64 + qb * 16 + ks * 4
vIDX = vSTAMP
NIT = 132
Q = lambda qb, s: 128 + (qb * 4 + s) * 4
NM = lambda qb: 192 + 4 * qb
KA = lambda s: 208 + s
VA = lambda db: 212 + db
KG = lambda i: 220 + i
VG = lambda i: 224 + (i & 1)
vR = NM(0)
O = lambda db, qb: (db * 4 + qb) * 4
FR = lambda f: 128 + (f % 8) * 4
HB = lambda ks: 160 + (ks % 8) * 4
LACC = lambda qb: 192 + 4 * qb
aONES, aG2, aXN = 208, 212, 244
GA = lambda i: 228 + (i % 4) * 4
AF = lambda f: 128 + (f % 8) * 4
PHA = lambda k: (160, 212)[k // 8] + (k % 8) * 4
T0 = 22
RING, VOFF = 65536, 65536

P = Prog()
e, lab, cap = P.e, P.lab, P.capture
slow_paths = []
nstamp = [0]


JIT = O_("jitter", 0)
njit = [0]


def jitter():
    i = njit[0]; njit[0] += 1
    e(f"s_memrealtime {sr(96,2)}"); P.wait_all(vm=False)
    e(f"s_lshr_b32 s96, s96, 14"); e(f"s_lshl_b32 s97, s2, 2" if JIT & 1 else "s_mov_b32 s97, s2")
    if JIT & 1: e(f"s_add_u32 s97, s97, s{sW}")
    e(f"s_add_u32 s96, s96, s97"); e(f"s_add_u32 s96, s96, {i * 7919 + 13}"); e("s_mul_i32 s96, s96, 0x9e3779b1")
    e("s_mov_b32 s98, s96")
    e(f"s_lshr_b32 s96, s96, {32 - (JIT >> 1)}")
    lab(f"L_jit{i}")
    e("s_sleep 8"); e("s_sub_u32 s96, s96, 1"); e(f"s_cbranch_scc0 L_jit{i}")


def jitter_item():
    i = njit[0]; njit[0] += 1
    return It(f"s_mul_i32 s98, s98, 0x41c64e6d\n    s_add_u32 s98, s98, 12345\n    s_lshr_b32 s99, s98, 27\n"
              f"    s_sub_u32 s99, s99, 24\n    s_cbranch_scc1 L_jx{i}\nL_jw{i}:\n    s_sleep {O_('jit2', 0)}\n"
              f"    s_sub_u32 s99, s99, 1\n    s_cbranch_scc0 L_jw{i}\nL_jx{i}:", "s")


def stamp(level=1):
    if JIT and level == 1: jitter()
    if AMP and level == 1:
        i = nstamp[0]; nstamp[0] += 1
        if i in AMP[:2]:
            e(f"{'s_memtime' if AMP[3] else 's_memrealtime'} {sr(sST + 2*AMP.index(i),2)}"); P.wait_all(vm=False)
        return
    if STAMP < level or (SSET and level != 0):
        return
    i = nstamp[0]; nstamp[0] += 1
    e(f"s_memtime {sr(sST,2)}"); e(f"s_memrealtime {sr(sST+2,2)}")
    P.wait_all(vm=False)
    e(f"v_accvgpr_read_b32 v{vSTAMP}, a254")
    e(f"v_writelane_b32 v{vSTAMP}, s{sST}, {2*i}")
    e(f"v_writelane_b32 v{vSTAMP}, s{sST+2}, {2*i+1}")
    e(f"v_accvgpr_write_b32 a254, v{vSTAMP}"); e(f"v_accvgpr_read_b32 v{vSTAMP}, a253")


def stamp_item():
    i = nstamp[0]; nstamp[0] += 1
    return It(f"s_memtime {sr(sST,2)}\n    s_memrealtime {sr(sST+2,2)}\n    s_waitcnt lgkmcnt(0)\n"
              f"    v_accvgpr_read_b32 v{vSTAMP}, a254\n"
              f"    v_writelane_b32 v{vSTAMP}, s{sST}, {2*i}\n    v_writelane_b32 v{vSTAMP}, s{sST+2}, {2*i+1}\n"
              f"    v_accvgpr_write_b32 a254, v{vSTAMP}\n    v_accvgpr_read_b32 v{vSTAMP}, a253", "s")


def mk_srd(d, p, size):
    e(f"s_mov_b32 s{d}, s{p}"); e(f"s_mov_b32 s{d+1}, s{p+1}"); e(f"s_mov_b32 s{d+2}, {size}"); e(f"s_mov_b32 s{d+3}, 0x20000")


def sum_terms(dst, *terms):
    first = True
    for t in terms:
        if isinstance(t, int):
            e(f"s_add_u32 s{dst}, s{dst}, {t}"); continue
        r, k = t
        if k == 0:
            e(f"s_mov_b32 s{dst}, 0"); first = False; continue
        d = dst if first else sT + 4
        e(f"s_lshl_b32 s{d}, s{r}, {k.bit_length()-1}" if k & (k - 1) == 0 else f"s_mul_i32 s{d}, s{r}, {k}")
        if not first: e(f"s_add_u32 s{dst}, s{dst}, s{d}")
        first = False


def allreduce(op, regs, tmps, k=None):
    for sw in ("v_permlane32_swap_b32", "v_permlane16_swap_b32"):
        for r, t in zip(regs, tmps): e(f"v_mov_b32 v{t}, v{r}")
        for r, t in zip(regs, tmps): e(f"{sw} v{r}, v{t}", k=k)
        for r, t in zip(regs, tmps): e(f"{op} v{r}, v{r}, v{t}")


def masked(mask, txt, tag=None, lds=False):
    (P.lds if lds else P.vm)(f"s_mov_b64 exec, {mask}\n    {txt}\n    s_mov_b64 exec, -1", tag)


class Poll:
    def __init__(self, name, loads, tests):
        self.name, self.loads, self.tests = name, loads, tests
        slow_paths.append(self)

    def issue(self):
        for l in self.loads: P.vm(l, self.name)

    def check(self):
        for i, t in enumerate(self.tests): e(t, need=[self.name] if i == 0 else ())
        e(f"s_cbranch_vccnz L_slow_{self.name}\nL_back_{self.name}:", k="v")


def flag_poll(name, s_rd, soff, target):
    return Poll(name, [f"buffer_load_dword v{vPOLL}, v{vPA}, {srd(s_rd)}, {soff} offen sc1"],
                [f"v_cmp_gt_u32 vcc, {target}, v{vPOLL}"])


def set_flags(stage, nlanes, need, val=1):
    e(f"v_mov_b32 v{vONE}, {val}")
    e(f"s_add_u32 s{sSF}, s{sFL}, {stage * 1024}")
    P.wait(need)
    masked((1 << nlanes) - 1, f"buffer_store_dword v{vONE}, v{vLANE}, {srd(SWS)}, s{sSF} offen sc1")


def interleave(code, side, every):
    side = list(side)
    for k, it in enumerate(code):
        if side and k % every == 0: P.puts(side.pop(0))
        P.put(it)
    for x in side: P.puts(x)


def gelu(base, n, tmp, dst, first):
    pairs = range(0, n, 2)
    if "g" in opt.get("cut", ""):
        for i in pairs: e(f"v_cvt_pk_bf16_f32 v{dst(i//2)}, v{base+i}, v{base+i+1}")
        return
    if first: e(f"v_mov_b32 v{vTC}, s{sC1}")
    for i in pairs: e(f"v_pk_fma_f32 {vr(tmp+i,2)}, {vr(base+i,2)}, {vr(base+i,2)}, {vr(vTC,2)} op_sel_hi:[1,1,0]")
    for i in pairs: e(f"v_pk_mul_f32 {vr(tmp+i,2)}, {vr(tmp+i,2)}, {vr(base+i,2)} neg_lo:[0,1] neg_hi:[0,1]")
    for i in range(n): e(f"v_exp_f32 v{tmp+i}, v{tmp+i}")
    for i in pairs: e(f"v_pk_add_f32 {vr(tmp+i,2)}, {vr(tmp+i,2)}, 1.0 op_sel_hi:[1,0]")
    for i in range(n): e(f"v_rcp_f32 v{tmp+i}, v{tmp+i}")
    for i in pairs: e(f"v_pk_mul_f32 {vr(tmp+i,2)}, {vr(tmp+i,2)}, {vr(base+i,2)}")
    for i in pairs: e(f"v_cvt_pk_bf16_f32 v{dst(i//2)}, v{tmp+i}, v{tmp+i+1}")


class Tile:
    def __init__(self, s_rd, voff, base, stride, perm, slot, tag, rows=64, kp=0, nh=0, half=32):
        self.__dict__.update(locals())

    def dma(self):
        out = []
        for i in range(self.rows // 8):
            row = ((0, 16, 4, 20)[i & 3] if self.perm else 8 * (i & 3)) + self.half * (i >> 2)
            so = self.base + row * self.stride - (i & 3) * 1024
            pre = [It(f"s_add_u32 m0, s{sRING}, {self.slot * 32768 + (i >> 2) * 4096}", "s")] if i % 4 == 0 else []
            out.append((pre + [It(f"s_mov_b32 s{sSO}, {so}", "s")],
                        [It(f"buffer_load_dwordx4 v{self.voff}, {srd(self.s_rd)}, s{sSO} offen "
                            f"offset:{(i & 3) * 1024} lds", "g", self.tag)]))
        return out


def place(add, g, grp, prev, avoid=()):
    pre, its = grp
    c = [h for h in range(max(prev + 1, 0), g) if h not in avoid][-len(pre):] if pre else []
    for k, it in enumerate(pre): add(c[k] if len(c) == len(pre) else max(g - len(pre) + k, prev + 1, 0), it)
    for it in its: add(g, it)


def dma_voff(dst, stride, perm, s_base, a):
    b = a + 1
    e(f"v_lshrrev_b32 v{a}, 10, v{vLANE}")
    e(f"v_bfe_u32 v{b}, v{vBA}, 4, 3")
    e(f"v_and_b32 v{dst}, 6, v{a}"); e(f"v_xor_b32 v{b}, v{b}, v{dst}")
    if perm:
        e(f"v_and_b32 v{dst}, 4, v{a}"); e(f"v_add_u32 v{a}, v{a}, v{dst}")
    e(f"v_mul_u32_u24 v{a}, {stride}, v{a}")
    e(f"v_lshl_add_u32 v{a}, v{b}, 4, v{a}")
    e(f"v_add_u32 v{dst}, {s_base}, v{a}")


def a_reads(t, ti, nb):
    base = (vAA2 if t.slot == 2 else vAA) + nb
    off = (t.slot % 2) * 32768 if t.slot < 2 else 0
    return [It(f"ds_read_b64_tr_b16 {ar(AF(nb*2+ks) + 2*h, 2)}, v{base} offset:{off + ks*4096 + h*2048}", "l",
               ("A", t.tag, nb), need=[t.tag]) for ks in range(t.rows // 32) for h in range(2)]


def gemm_pre(tiles, i0):
    P.puts(a_reads(tiles[i0], i0, 0))


def gemm(tiles, i0, n, acc, pending, bf, breg=vBA, extra=None, fill=None, over=0, opening=None, dma0=0, btr=False):
    bf = [x if isinstance(x, tuple) else (ar, x) for x in bf]
    BF = lambda s, ks, tb, o=0, w=4: bf[grp[s] % len(bf)][0](bf[grp[s] % len(bf)][1] + (ks * 4 + tb) * 4 + o, w)
    ms, gaps, start, grp, held, fresh = [], {}, [], [], {}, []
    seen = set()
    for s, ti in enumerate(range(i0, i0 + n)):
        t = tiles[ti]
        fresh.append(t.kp not in held)
        if fresh[s]:
            k = max(grp, default=-1) + 1
            while s and k % len(bf) == grp[s - 1] % len(bf): k += 1
            held = {kp: g for kp, g in held.items() if g % len(bf) != k % len(bf)}
            held[t.kp] = k
        grp.append(held[t.kp])
        start.append(len(ms))
        nks = t.rows // 32
        for nb in range(4):
            for i, tb in enumerate(range(3, -1, -1) if nb & 1 and O_("sng", 1) else range(4)):
                for ks in (range(nks) if not i & 1 else range(nks - 1, -1, -1)):
                    d = vr(acc(t.nh, nb, tb), 4)
                    c = d if (t.nh, nb, tb) in seen else "0"
                    seen.add((t.nh, nb, tb))
                    ms.append(It(f"{MF} {d}, {ar(AF(nb*2+ks),4)}, {BF(s,ks,tb)}, {c}", "m",
                                 need=[("A", t.tag, nb), ("B", tiles[i0].tag, grp[s], tb)]))
    start.append(len(ms))

    def b_reads(s):
        t = tiles[i0 + s]
        if btr:
            return [It(f"ds_read_b64_tr_b16 {BF(s,ks,tb,2*h,2)}, v{breg+tb} offset:{t.kp*8192 + ks*4096 + h*2048}",
                       "l", ("B", tiles[i0].tag, grp[s], tb)) for tb in range(4) for ks in range(2) for h in range(2)]
        return [It(f"ds_read_b128 {BF(s,ks,tb)}, v{breg} offset:{t.kp*8192 + ks*4096 + tb*1024}", "l",
                   ("B", tiles[i0].tag, grp[s], tb)) for tb in range(4) for ks in range(t.rows // 32)]

    add = lambda g, it: gaps.setdefault(g, []).append(it)
    pre = b_reads(0)
    release = {}
    for s in range(n):
        ti = i0 + s; t = tiles[ti]
        per = (start[s + 1] - start[s]) // 4
        for nb in range(4):
            if s == 0 and nb == 0: continue
            rd = a_reads(t, ti, nb)
            for k, it in enumerate(rd):
                g = start[s] + per * nb - 6 - 2 * (len(rd) - 1 - k)
                if g < 0: pre.append(it)
                else: add(g, it)
        if ti + 3 < len(tiles) and tiles[ti + 3]: release[start[s] + 3 * per] = tiles[ti + 3]
        if s + 1 < n and fresh[s + 1]:
            s0 = s - 1 if s and not fresh[s] and grp[s - 1] % len(bf) != grp[s + 1] % len(bf) else s
            rd = b_reads(s + 1)
            cand = [g for g in range(start[s0], start[s + 1] - 6) if g % 4 == 3]
            if btr: cand = sorted(cand * 2)
            if len(cand) < len(rd): cand = sorted(cand + [start[s0] + 2 * k for k in range(len(rd) - len(cand))])
            step = len(cand) / len(rd)
            for k, it in enumerate(rd): add(cand[int(k * step)], it)
    if opening == "get": return a_reads(tiles[i0], i0, 0) + pre
    if opening == "done": pre = []
    prev = dma0 - 1
    for g in range(dma0, len(ms)):
        if g in release: pending += release[g].dma()
        nxt = min([r for r in release if r > g], default=len(ms) + 24)
        if pending and (g % 4 == 1 or (g % 4 == 3 and len(pending) > (nxt - g + 1) // 4)):
            place(add, g, pending.pop(0), prev); prev = g
    for g, its in (extra or {}).items():
        for it in its: add(g, it)
    for g in start[:-1]: add(g + 10, hop())
    if O_("jit2", 0):
        for g in start[:-1]: add(g + 4, jitter_item())
    if SSET == {id(qt): "q", id(ot): "o"}.get(id(tiles), "mlp"):
        for g in start[:-1] + [len(ms) - 1]: add(g, stamp_item())
    P.puts(pre)
    P.run_gaps(ms, gaps, fill, gmin=4, over=over)


def flush(pending):
    while pending:
        a, b = pending.pop(0)
        P.puts(a + b)


def shared_ops(kss, koff, acc, zero, afr, breg, bneed, name, i0=0):
    out = []
    for nb in range(4):
        for ks in kss:
            i = i0 + len(out)
            d = acc(nb)
            out.append((It(f"{MF} {d}, {ar(afr(i),4)}, {breg(ks)}, {0 if zero and not ks else d}", "m",
                           need=[(name, i)] + list(bneed(ks))),
                        [It(f"ds_read_b64_tr_b16 {ar(afr(i)+2*h,2)}, v{vAS+nb} offset:{(ks-koff)*4096 + h*2048}", "l",
                            (name, i)) for h in range(2)]))
    return out


def pack(acc, nh, tb, s, second=False, guard=False):
    a, b = acc(nh, 2 * s, tb), acc(nh, 2 * s + 1, tb)
    order = list(enumerate((a, a + 2, b, b + 2)))
    d = b if second else a
    for j, r in reversed(order) if second else order: e(f"v_cvt_pk_bf16_f32 v{d+j}, v{r}, v{r+1}")
    if guard:
        for j in range(4): e(f"v_min_u32 v{d+j}, -2, v{d+j}")


def store_piece(src, ws_base, nh, tb, s, tag):
    lane = vPO + (tb >> 1) if OWN and ws_base == WS_PS else vBA
    e(f"s_add_u32 s{sSF}, s{sPP}, {ws_base + (tb >> 1)*65536 + ((tb & 1) + 2*s)*2048}")
    P.vm(f"buffer_store_dwordx4 {src}, v{lane}, {srd(SWS)}, s{sSF} offen offset:{nh*1024} sc1", tag)


def load_piece(ws_base, dst, g, nh, tag):
    if OWN and ws_base == WS_PS: e(f"s_xor_b32 s{sSF}, s{sPX}, {g*8192}")
    else: e(f"s_add_u32 s{sSF}, s{sPC}, {ws_base + g*8192}")
    P.vm(f"buffer_load_dwordx4 {dst}, v{vBA}, {srd(SWS)}, s{sSF} offen offset:{nh*1024} sc1", (tag, g, nh))


def add_piece(dst, reg, first, need):
    for j in range(4):
        for h, sel in enumerate((sLO, sHI)):
            d = dst + 2 * j + h
            e(f"v_dot2_f32_bf16 v{d}, v{reg+j}, s{sel}, {0 if first else 'v%d' % d}", need=need)


def frag_reads(t, f, tail=False):
    if f < 16:
        kb, s = f // 4, f % 4
        off = ((t + 1) % 4) * 16384 + kb * 4096
        return [It(f"ds_read_b128 {ar(FR(f),4)}, v{KA(s)} offset:{off}", "l", ("F", t, f))]
    db, ks = ((f - 16) // 2, (f - 16) % 2) if not tail else ((f - 16) % 8, (f - 16) // 8)
    off = (t % 4) * 16384 + ks * 8192
    return [It(f"ds_read_b64_tr_b16 {ar(FR(f)+2*h,2)}, v{VA(db)} offset:{off + 4096*h}", "l", ("F", t, f))
            for h in range(2)]


def qk_mfmas(t, zero=False):
    out = []
    for kb in range(4):
        for i, qb in enumerate(range(3, -1, -1) if kb & 1 and O_("snk", 1) else range(4)):
            for n, s in enumerate(range(4) if not (i & 1 and O_("snq", 1)) else range(3, -1, -1)):
                d = vr(S((t + 1) & 1, kb, qb), 4)
                c = d if n else ("0" if zero else vr(NM(qb), 4))
                out.append((It(f"{MF} {d}, {ar(FR(kb*4+s),4)}, {vr(Q(qb,s),4)}, {c}", "m",
                               need=[("F", t, kb * 4 + k) for k in range(4)]), kb * 4 + s))
    return out


def pv_one(t, db, qb, ks, f, need, zero=False):
    o = ar(O(db, qb), 4)
    ab = [ar(FR(f), 4), vr(PR(t & 1, ks, qb), 4)][::-1 if PA else 1]
    return (It(f"{MF} {o}, {ab[0]}, {ab[1]}, {(ar(GA(0), 4) if OB else 0) if zero else o}", "m", need=need), f)


SUMEND = O_("sumend", 1)


def sum_one(t, qb):
    return (It(f"v_smfmac_f32_16x16x64_bf16 {ar(LACC(qb),4)}, {ar(aONES,4)}, {vr(PR(t&1,0,qb),8)}, v{vIDX}", "m"), None)


def pv_mfmas(t, zero=False):
    out = []
    if O_("pv22", 0):
        for dp in range(4):
            k = 0
            for i, qb in enumerate(range(3, -1, -1) if dp & 1 else range(4)):
                for db in ((2 * dp, 2 * dp + 1) if not i & 1 else (2 * dp + 1, 2 * dp)):
                    need = [("F", t, 16 + db * 2), ("F", t, 17 + db * 2)]
                    for n, ks in enumerate(range(2) if not k & 1 else range(1, -1, -1)):
                        out.append(pv_one(t, db, qb, ks, 16 + db * 2 + ks, need, zero and not n))
                    k += 1
        return out + [sum_one(t, qb) for qb in range(4)]
    for db in range(8):
        need = [("F", t, 16 + db * 2), ("F", t, 17 + db * 2)]
        for i, qb in enumerate(range(3, -1, -1) if db & 1 and O_("snd", 1) else range(4)):
            for n, ks in enumerate(range(2) if not i & 1 else range(1, -1, -1)):
                out.append(pv_one(t, db, qb, ks, 16 + db * 2 + ks, need, zero and not n))
        if db % 2 == 0 and not SUMEND: out.append(sum_one(t, db // 2))
        if SUMEND == 2 and db in (3, 7): out += [sum_one(t, db // 2 - 1), sum_one(t, db // 2)]
    return out + ([sum_one(t, qb) for qb in range(4)] if SUMEND == 1 else [])


def pv_mfmas_tail(t):
    out = []
    for ks in range(2):
        if ks: out += [sum_one(t, qb) for qb in range(4)]
        for db in range(8):
            f = 16 + ks * 8 + db
            out += [pv_one(t, db, qb, ks, f, [("F", t, f)]) for qb in (range(3, -1, -1) if db & 1 else range(4))]
    return out


def sm_stream(buf, half):
    ex, post = [], []
    for qb in range(4):
        b, d = S(buf, 2 * half, qb), PR(buf, half, qb)
        for j in range(8):
            ex.append(It(f"v_exp_f32 v{b+j}, v{b+j}", "x"))
            post.append([It(f"v_cvt_pk_bf16_f32 v{d + j//2}, v{b+j-1}, v{b+j}", "v")] if j & 1 else [])
    return ex, post


def kv_dma(kind, tile, lds=None, so=None):
    reg, s_rd, base = (KG, SK, 0) if kind == "K" else (VG, SV, VOFF)
    lds = base + (tile % 4) * 16384 if lds is None else lds
    out = []
    for i in range(4):
        pre = [It(f"s_add_u32 m0, s{sW4K}, {lds}", "s"),
               It(f"s_mov_b32 s{sSO}, {tile * 16384 if so is None else so}", "s")] if i == 0 else []
        out.append((pre, [It(f"buffer_load_dwordx4 v{reg(i)}, {srd(s_rd)}, s{sSO} offen offset:{i*1024} lds",
                             "g", (kind, tile))]))
    return out


issued = set()
CLUSTER = O_("cluster", 1)
OVER = [int(x) for x in opt.get("overit", "3,9,13").split(",")]
WINS = [int(x) for x in opt.get("wins", ("2,18,34,50,75,92,109,124", "2,18,34,50,74,90,106,122", "2,18,34,50,74,90,108,124")[SUMEND]).split(",")]
WPAT = [int(x) for x in opt.get("wpat", "1").split(",")]


def attn_iter(t, groups, fill, endwait=(), extra=None, ins=None):
    end = T0 - 1 if t < T0 else 31
    last = t == end
    mf = pv_mfmas_tail(t) if last else qk_mfmas(t) + pv_mfmas(t, zero=t == 0)
    ms = [m for m, _ in mf]
    n = len(ms)
    first_use, last_use = {}, {}
    for i, (_, f) in enumerate(mf):
        if f is not None:
            first_use.setdefault(f, i); last_use[f] = i
    reads = []
    for f in sorted(first_use):
        if (t, f) in issued: continue
        reads += [(first_use[f] - AHEAD, last_use.get(f - 8, -1), it) for it in frag_reads(t, f, last)]
    nxt_need = ()
    if t < end - 1:
        for f in range(4):
            reads += [(n + f - AHEAD, last_use[24 + f], it) for it in frag_reads(t + 1, f)]
            issued.add((t + 1, f))
        nxt_need = [("F", t + 1, f) for f in range(4)]
    elif t == end - 1:
        for f in range(16, 19):
            reads += [(n + 4 * (f - 16) - AHEAD, last_use[8 + f], it) for it in frag_reads(end, f, True)]
            issued.add((end, f))
        nxt_need = [("F", end, 16)]
    gaps = {}
    add = lambda g, it: gaps.setdefault(g, []).append(it)
    exg = {}
    wins = [] if last or not CLUSTER else WINS[:min(len(WINS), -(-len(groups) // len(WPAT)))]
    quiet = {w + k for w in wins for k in range(WPAT[-1] + 1)}
    dma_gaps = sorted(w + k for w in wins for k in WPAT)
    narrow = {g for g, m in enumerate(ms) if m.t.startswith("v_smfmac")}
    if last:
        ex, post = sm_stream(t & 1, 1)
        for i in range(32): exg[i] = (ex[i], post[i])
    else:
        for (ex, post), lo, hi in ((sm_stream(t & 1, 1), 0, 63), (sm_stream((t + 1) & 1, 0), 64, n - 1)):
            c = [g for g in range(lo, hi) if g not in quiet and not (SUMEND and g in narrow)]
            for i in range(32):
                g = c[(i * (len(c) + 1)) // 32]
                while g in narrow or g in exg or g in quiet: g += 1
                exg[g] = (ex[i], post[i])
    for g, (x, post) in exg.items():
        add(g, x)
    for g, (x, post) in exg.items():
        h = g + 1
        while not last and (h in exg or h in quiet): h += 1
        for it in post: add(h, it)
    room = lambda g: len(gaps.get(g, [])) < (1 if g in narrow else 2)
    free = set(range(n)) if last else {g for g in range(n) if g not in exg and g not in dma_gaps and room(g)}
    prev, pre, avail = n, [], sorted(free)
    for dl, early, it in reversed(reads):
        c = [g for g in free if g <= dl and g < prev]
        if c and max(c) >= early:
            prev = max(c); free.discard(prev); add(prev, it)
        elif early < 0:
            prev = -1; pre.insert(0, it)
        else:
            c = [g for g in avail if early <= g <= dl + AHEAD - 6]
            g = min([g for g in c if room(g)] or c)
            free.discard(g); gaps.setdefault(g, []).insert(0, it)
    if groups:
        def spaced(c):
            out = []
            for g in c:
                if not out or g - out[-1] >= 2: out.append(g)
            return out
        light = spaced([g for g in sorted(free) if 1 <= g < n - 6 and g not in gaps])
        fr = light if len(light) >= len(groups) - len(dma_gaps) + 4 else spaced([g for g in sorted(free) if 1 <= g < n - 6])
        rest = len(groups) - len(dma_gaps)
        if rest > 0:
            fr = [g for g in fr if not {g - 1, g, g + 1} & set(dma_gaps)]
            if len(fr) < rest: fr = spaced([g for g in range(1, n - 6) if g not in exg and not {g - 1, g, g + 1} & set(dma_gaps)])
            assert len(fr) >= rest, (t, len(fr), len(groups))
            dma_gaps = sorted(dma_gaps + [fr[int(k * len(fr) / rest)] for k in range(rest)])
        for k, grp in enumerate(groups): place(add, dma_gaps[k], grp, dma_gaps[k - 1] if k else -1, {u - 1 for u in first_use.values()})
    if not last:
        add(n - 3, It(None, "s", need=[("K", min(t + 3, end)), ("V", end if t == end - 2 else t + 1)] + list(endwait)))
        add(n - 2, It("s_barrier", "s"))
        add(n - 4, hop())
    for g, its in (extra or {}).items():
        for it in its: add(g, it)
    if SSET == "attn": add(0, stamp_item())
    if O_("jit2", 0):
        for g in (1, n // 2, n - 12): add(g, jitter_item())
    if ins:
        for k in range(3):
            for h, it in enumerate(ins[k][1]): add(1 + 4 * k + 2 * h, it)
        pos = {(13 + (k * (n - 24)) // (len(ins) - 1)) | 1: k for k in range(len(ins))}
        assert len(pos) == len(ins)
        ms2, gaps2, old, quiet = [], {}, quiet, set()
        for g, m in enumerate(ms):
            if g in old: quiet.add(len(ms2))
            gaps2[len(ms2)] = gaps.get(g, []); ms2.append(m)
            if g in pos:
                k = pos[g]
                gaps2[len(ms2)] = list(ins[k + 3][1]) if k + 3 < len(ins) else []
                ms2.append(ins[k][0])
        ms, gaps = ms2, gaps2
    P.puts(pre)
    P.run_gaps(ms, gaps, fill, next_need=nxt_need, pos=t, gmin=4, quiet=quiet, over=4 if t in OVER else 0)


OVERVIEW = """
One launch, 256 workgroups (one per CU) of 4 waves. Workgroup (g, m) = KV group g, tokens 64m..64m+63.
Order: LN(x) -> LN(LN(x)) @ w1 -> Q projection -> key tiles 0..21 -> channel MLP -> key tiles 22..31
       -> output projection -> combine. The w2 GEMM and the LN statistics of x1 ride in the attention slack.
Matrix work uses 16x16x32 bf16 MFMA with fp32 accumulation; weights and K/V reach LDS by DMA.
Softmax: every row is shifted by (maximum over its first 16 keys + 25.4) through the MFMA C operand, so the row
  sum cannot underflow. If any row sum of the workgroup is not <= 2^64, L_redo computes the true row maxima and
  repeats the pass with them.
Hand-offs between the 8 workgroups of a token block use write-through stores, sc1 loads and flag words in d_ws;
  each wave resets its words before its workgroup counts itself into d_debug, and peers read them only after that.
L_pad_* / L_hop*: the waves visit upcoming code pages with EXEC = 0 and return at once (instruction prefetch).
"""
hdr = [l.rstrip("\n") for l in open("header.txt")]
hdr = hdr[:[i for i, l in enumerate(hdr) if "@launch" in l][0]]
P.L += hdr + ["; @launch grid=(256,1,1) block=(256,1,1) lds=163840",
              '.amdgcn_target "amdgcn-amd-amdhsa--gfx950"'] + ["; " + l for l in OVERVIEW.strip().split("\n")] + [
              ".text", f".globl {NAME}", ".p2align 8",
              f".type {NAME},@function"]
lab(NAME)
e("s_cmp_lt_u32 s2, 256"); e("s_cbranch_scc1 L_go"); e("s_endpgm")
lab("L_go")
if AMP and AMP[0] < 0: e(f"s_memrealtime {sr(sST,2)}")
e("s_load_dwordx16 s[64:79], s[0:1], 0"); e("s_load_dwordx8 s[80:87], s[0:1], 64"); e("s_load_dwordx2 s[88:89], s[0:1], 96")
PAIR = O_("pair", 0)
NS = 16 if PAIR else 32
sMI, sWV = 90, 91
if PAIR:
    e(f"s_and_b32 s{sG}, s2, 3"); e(f"s_and_b32 s{sT}, s2, 2"); e(f"s_add_u32 s{sG}, s{sG}, s{sT}")
    e(f"s_bfe_u32 s{sT}, s2, 0x10003"); e(f"s_lshl1_add_u32 s{sG}, s{sT}, s{sG}")
    e(f"s_lshr_b32 s{sMI}, s2, 4"); e(f"s_and_b32 s{sM}, s2, 4"); e(f"s_lshl_b32 s{sM}, s{sM}, 2"); e(f"s_add_u32 s{sM}, s{sM}, s{sMI}")
else:
    e(f"s_and_b32 s{sG}, s2, 7"); e(f"s_lshr_b32 s{sM}, s2, 3"); e(f"s_lshr_b32 s{sMI}, s2, 3")
e("v_lshrrev_b32 v1, 6, v0"); e("v_and_b32 v0, 63, v0"); e(f"v_readfirstlane_b32 s{sW}, v1")
e(f"v_lshlrev_b32 v{vBA}, 4, v0"); e(f"v_lshlrev_b32 v{vLANE}, 7, v0")
e(f"s_getpc_b64 {sr(sT+1,2)}")
lab("L_pc")
NCL = 10
e(f"s_lshr_b32 s{sT+3}, s2, 3")
sum_terms(sT, (sT + 3, 512), (sW, 128))
e(f"v_min_u32 v6, {NCL-1}, v0"); e(f"v_lshl_add_u32 v6, v6, 14, s{sT}"); e("v_min_u32 v6, L_end-L_pc, v6")
e(f"v_mov_b32 v{vCODE+1}, s{sT+2}"); e(f"v_add_co_u32 v{vCODE}, vcc, s{sT+1}, v6")
e(f"v_addc_co_u32 v{vCODE+1}, vcc, 0, v{vCODE+1}, vcc")
code_touch = lambda: P.vm(f"global_load_dword a255, {vr(vCODE,2)}, off")
masked(O_("cm", 15), f"global_load_dword a255, {vr(vCODE,2)}, off")
sum_terms(sWV, (sMI, 4), (sW, 1))


def touch_off(d, nrows, lines, stride, base_terms, t):
    per = -(-nrows // (NS * 4))
    assert per * lines <= 64 and lines & (lines - 1) == 0
    sh = lines.bit_length() - 1
    e(f"v_lshrrev_b32 v{d}, {7 + sh}, v{vLANE}"); e(f"v_min_u32 v{d}, {per - 1}, v{d}")
    e(f"s_mul_i32 s{sT}, s{sWV}, {per}"); e(f"v_add_u32 v{d}, s{sT}, v{d}")
    if per * NS * 4 != nrows: e(f"v_min_u32 v{d}, {nrows - 1}, v{d}")
    e(f"v_mul_u32_u24 v{d}, {stride}, v{d}")
    sum_terms(sT, *base_terms)
    if lines > 1:
        e(f"v_and_b32 v{t}, {(lines - 1) * 128}, v{vLANE}"); e(f"v_add3_u32 v{d}, v{d}, v{t}, s{sT}")
    else:
        e(f"v_add_u32 v{d}, s{sT}, v{d}")


WQ0 = O_("wq0", 128)
vTQ, vT1, vTK = T + 11, T + 13, T + 16
touch_off(6, WQ0, 8, 8192, [(sG, 1024)], 7)
touch_off(vT1, 512, 1, 1024, [(sG, 128)], 7)
e("v_and_b32 v2, 3, v0")
e("v_lshrrev_b32 v1, 2, v0")
sum_terms(sT, (sM, 64), (sW, 16))
e(f"v_add_u32 v3, s{sT}, v1"); e("v_lshlrev_b32 v3, 10, v3"); e("v_lshl_add_u32 v3, v2, 4, v3")
e(f"s_bfe_u32 s{sT+1}, s{sG}, {0x10000 + PAIR}"); e(f"s_lshl_b32 s{sT+2}, s{sT+1}, 9")
e(f"v_add_u32 v3, s{sT+2}, v3"); e(f"v_xor_b32 v{G12+13}, 0x200, v3")
if STAMP: e("v_accvgpr_write_b32 a254, 0")
e("s_waitcnt lgkmcnt(0)")
stamp()
if SSET == "ln": stamp(0)
ENT = " nt" * O_("ent", 0)
for i in range(9):
    if i == O_("tat", 0):
        P.vm(f"global_load_dword a255, v{vT1}, s[76:77]{ENT}")
        P.vm(f"global_load_dword a255, v6, s[70:71]{ENT}")
    if i < 8: P.vm(f"global_load_dwordx4 {vr(XR+4*i,4)}, v3, s[64:65] offset:{i*64}", ("x", i))
HOP = O_("hop", 1)
hop = lambda n="": It(f"; @hop {n}", "s")
if HOP:
    e("s_branch L_main"); P.raw(".p2align 12")
lab("L_main")
e("v_lshlrev_b32 v4, 1, v2"); e("v_xor_b32 v4, v4, v1"); e("v_lshlrev_b32 v4, 4, v4"); e("v_lshl_add_u32 v4, v2, 8, v4")
sum_terms(sT + 2, (sT + 1, 32768), (sW, 1024))
e(f"v_add_u32 v{vWA}, s{sT+2}, v4"); e(f"v_xor_b32 v{vWA+1}, 0x8000, v{vWA}")
e("v_and_b32 v1, 15, v0"); e("v_lshrrev_b32 v2, 4, v0")
e("v_lshlrev_b32 v4, 1, v2"); e("v_xor_b32 v4, v4, v1"); e("v_lshlrev_b32 v4, 4, v4"); e(f"v_lshl_add_u32 v{vBX}, v2, 8, v4")
e(f"v_add_u32 v3, s{sT}, v1"); e("v_lshlrev_b32 v4, 15, v2"); e(f"v_lshl_add_u32 v{vTOK}, v3, 4, v4")
for d, p in ((SK, 66), (SV, 68)):
    e(f"s_lshl_b32 s{sT}, s{sG}, 19")
    e(f"s_add_u32 s{d}, s{p}, s{sT}"); e(f"s_addc_u32 s{d+1}, s{p+1}, 0"); e(f"s_mov_b32 s{d+2}, 0x80000"); e(f"s_mov_b32 s{d+3}, 0x20000")
for d, p, size in ((SX, 64, 0x200000), (SWQ, 70, 0x400000), (SW1, 76, 0x80000), (SWS, 88, 0x10000000),
                   (SWO, 72, 0x400000), (SW2, 78, 0x80000), (SW3, 80, 1835008), (SW4, 82, 1835008),
                   (SOUT, 84, 0x200000), (SDBG, 86, 256)):
    mk_srd(d, p, size)
sum_terms(sRING, (sW, 8192), RING); sum_terms(sW1K, (sW, 1024)); sum_terms(sW4K, (sW, 4096))
sum_terms(sT, (sG, 1024), (sW, 256)); dma_voff(vDWQ, 8192, True, f"s{sT}", 10)
sum_terms(sT, (sW, 65536), (sG, 128)); dma_voff(vDW1, 1024, True, f"s{sT}", 10); dma_voff(vDW2, 1024, False, f"s{sT}", 10)
for r, v in ((sLO, "0x00003f80"), (sHI, "0x3f800000"), (sONE2, "0x3f803f80"), (sC1, f2u(GK)), (sC2, f2u(GA_)),
             (sNL2E, f2u(-LOG2E / GA_)), (sSPIN, opt.get("spin0", 0)), (sMSK, "0xffff0000")):
    e(f"s_mov_b32 s{r}, {v}")
sum_terms(sF0, (sM, 4096), (sW, 256), WS_FL)
sum_terms(sFL, (sG, 4), (sF0, 1))
sum_terms(sF1, (sM, 4096), (sG, 128), WS_FL + 1024)
e(f"s_add_u32 s{sF2}, s{sF1}, 1024"); e(f"s_add_u32 s{sF3}, s{sF1}, 2048")
sum_terms(sSTC, (sM, 4096), (sW, 1024), WS_SS)
sum_terms(sSTP, (sG, 128), (sSTC, 1))
sum_terms(sPP, (sM, 1 << 19), (sW, 1 << 17), (sG, 1 << 13))
sum_terms(sPC, (sM, 1 << 19), (sG, 1 << 16), (sW, 1 << 11))
e(f"s_lshl_b32 s{sHO}, s{sG}, 18")
e(f"s_and_b32 s{sKS}, s{sG}, 6"); e(f"s_lshl_b32 s{sKS}, s{sKS}, 1"); e(f"s_lshr_b32 s{sT}, s{sW}, 1"); e(f"s_add_u32 s{sKS}, s{sKS}, s{sT}")
e(f"s_and_b32 s{sTB}, s{sG}, 1"); e(f"s_lshl_b32 s{sTB}, s{sTB}, 1"); e(f"s_and_b32 s{sT}, s{sW}, 1"); e(f"s_add_u32 s{sTB}, s{sTB}, s{sT}")
sum_terms(sSTF, (sM, 4096), (sTB, 1024), WS_SS)
sum_terms(sXF, (sM, 65536), (sTB, 16384), (sKS, 64))
e(f"s_and_b32 s{sT}, s{sG}, 1"); sum_terms(sW3B, (sG, 448), (sT, 64)); sum_terms(sRS, (sW, 2048), RING)
e("v_lshrrev_b32 v6, 2, v0"); e("v_and_b32 v7, 3, v0"); e("v_lshlrev_b32 v7, 3, v7"); e("v_lshl_add_u32 v7, v6, 7, v7")
e("v_bfe_u32 v6, v0, 3, 2")
for nb in range(4):
    e(f"v_xor_b32 v10, {nb}, v6"); e("v_lshl_add_u32 v10, v10, 5, v7")
    e(f"v_add_u32 v{vAS+nb}, {RING + 32768}, v10")
    if QPERM:
        e("v_lshrrev_b32 v8, 2, v0"); e("v_and_b32 v9, 6, v8"); e("v_and_b32 v10, 3, v0"); e("v_xor_b32 v9, v9, v10")
        e(f"v_xor_b32 v9, {4*(nb>>1)}, v9"); e("v_lshlrev_b32 v9, 4, v9"); e("v_lshl_add_u32 v10, v8, 7, v9")
        if nb & 1: e("v_add_u32 v10, 8, v10")
    e(f"v_add_u32 v{vAA+nb}, s{sRING}, v10"); e(f"v_add_u32 v{vAA2+nb}, 0x10000, v{vAA+nb}")
e("v_xor_b32 v9, v2, v1")
for s in range(4):
    e(f"v_xor_b32 v10, {4*s}, v9"); e("v_lshlrev_b32 v10, 4, v10"); e(f"v_lshl_add_u32 v{KA(s)}, v1, 8, v10")
e("v_lshrrev_b32 v9, 2, v0"); e("v_lshlrev_b32 v10, 8, v9"); e("v_and_b32 v11, 3, v0")
e("v_lshl_add_u32 v10, v11, 3, v10"); e(f"v_add_u32 v10, {VOFF}, v10"); e("v_and_b32 v9, 7, v9")
for db in range(8):
    e(f"v_xor_b32 v11, {db}, v9"); e(f"v_lshl_add_u32 v{VA(db)}, v11, 5, v10")
e(f"v_lshl_add_u32 v10, v2, 8, s{sW4K}")
for i in range(4):
    e(f"v_add_u32 v9, {4*i}, v2"); e("v_xor_b32 v11, v9, v1"); e(f"v_lshl_add_u32 v{KG(i)}, v11, 4, v10")
    if i < 2:
        e("v_lshlrev_b32 v9, 1, v9"); e("v_xor_b32 v11, v9, v1"); e(f"v_lshl_add_u32 v{VG(i)}, v11, 4, v10")
e(f"v_lshlrev_b32 v{G12+8}, 4, v1")
if WQ0 < 512: touch_off(vTQ, 512 - WQ0, 8, 8192, [(sG, 1024), WQ0 * 8192], 7)
SLIM = O_("slim", 1)
touch_off(vTK, O_("tk", 384), 1, 128, [(sG, 0)], 7)


def late_touch():
    P.vm(f"buffer_load_dword a255, v{vTK}, {srd(SK)}, 0 offen"); P.vm(f"buffer_load_dword a255, v{vTK}, {srd(SV)}, 0 offen")
    if not SLIM:
        P.vm(f"buffer_load_dword a255, v{vT1}, {srd(SW2)}, 0 offen")
        code_touch()


LTG = O_("ltg", 4)
XQ = O_("xq", 3)


w1t = [Tile(SW1, vDW1, k * 4 * 65536, 1024, True, 1 + k, "w1") for k in range(2)]
w2t = [Tile(SW2, vDW2, k * 4 * 65536, 1024, False, 2, ("w2", k)) for k in range(2)]
qt = [Tile(SWQ, vDWQ, (i // 2) * 64 * 8192 + (i % 2) * 128, 8192, True, i % 3, ("wq", i), kp=i // 2, nh=i % 2)
      for i in range(16)] + ([] if SLIM else [None, w2t[0]])
mt = [Tile(SW3, vDW2, kp * 64 * 3584, 3584, False, (2 - i) % 3, ("w3", kp), kp=kp)
      for i, kp in enumerate((4, 5, 6, 7, 0, 1, 2, 3))]
mt += [Tile(SW4, vDW4, (i // 2) * 65536 + (i % 2) * 128, 1024, False, (2 - 8 - i) % 3, ("w4", i), kp=i // 2, nh=i % 2)
       for i in range(8)]
ot = [Tile(SWO, vDWO, ((kp & 1) * 256 + (kp >> 1) * 32) * 1024 + nh * 128, 1024, False, (nh * 8 + i + 2) % 3,
           ("wo", nh, kp), kp=kp, nh=nh, half=128)
      for nh in range(2) for i, kp in enumerate(range(8) if nh == 0 else (2, 3, 4, 0, 5, 1, 6, 7))]

a = G12


def quad_sum(regs):
    for qp in ("[1,0,3,2]", "[2,3,0,1]"):
        for r in regs: e(f"v_add_f32_dpp v{r}, v{r}, v{r} quad_perm:{qp} row_mask:0xf bank_mask:0xf")


def ln_stats(lo, hi):
    for i in range(lo, hi):
        c = lambda r: f"v{r}" if i >= 2 else 0
        e(f"v_dot2_f32_bf16 v{a + i % 2}, v{XR+i}, s{sONE2}, {c(a + i % 2)}", need=[("x", i // 4)])
        e(f"v_dot2_f32_bf16 v{a + 2 + i % 2}, v{XR+i}, v{XR+i}, {c(a + 2 + i % 2)}")


def unpack(k):
    for i in range(4 * k, 4 * k + 4):
        e(f"v_lshlrev_b32 v{2*i}, 16, v{XR+i}"); e(f"v_and_b32 v{2*i+1}, s{sMSK}, v{XR+i}")


def ln_rest():
    ln_stats(32, 64)
    e(f"v_add_f32 v{a}, v{a}, v{a+1}"); e(f"v_add_f32 v{a+2}, v{a+2}, v{a+3}")
    quad_sum([a, a + 2])
    e(f"v_mul_f32 v{a+4}, {f2u(-1/512)}, v{a}"); e(f"v_mul_f32 v{a+2}, {f2u(1/512)}, v{a+2}")
    e(f"v_fma_f32 v{a}, -v{a+4}, v{a+4}, v{a+2}"); e(f"v_max_f32 v{a}, 0, v{a}")
    e(f"v_add_f32 v{a+1}, {f2u(EPS)}, v{a}")
    e(f"v_rsq_f32 v{vRSTD}, v{a+1}")
    unpack(8)
    e(f"v_mul_f32 v{a+2}, {f2u(QSCALE)}, v{vRSTD}"); e(f"v_mul_f32 v{a+3}, v{a+4}, v{a+2}")
    for k in range(17):
        if k < 16:
            for i in range(4 * k, 4 * k + 4):
                e(f"v_pk_fma_f32 {vr(2*i,2)}, {vr(2*i,2)}, {vr(a+2,2)}, {vr(a+2,2)} op_sel:[0,0,1] op_sel_hi:[1,0,1]")
        if k: P.lds(f"ds_write_b128 v{vWA + (k-1)//8}, {vr(XR+4*k-4,4)} offset:{((k-1)%8)*4096}", "xw")
        if k % 2 == 0 and 9 + k // 2 < 16: unpack(9 + k // 2)
        if k < 16:
            for i in range(4 * k, 4 * k + 4): e(f"v_cvt_pk_bf16_f32 v{XR+i}, v{2*i}, v{2*i+1}")
    e(f"v_mul_f32 v{a}, v{a}, v{vRSTD}"); e(f"v_mul_f32 v{a}, v{a}, v{vRSTD}")
    e(f"v_add_f32 v{a}, {f2u(EPS)}, v{a}")
    e(f"v_rsq_f32 v{vSC1}, v{a}")
    e(f"v_mul_f32 v{vRSTD}, s{sC2}, v{vRSTD}")
    e(f"v_mul_f32 v{vSC1}, {f2u(GA_/QSCALE)}, v{vSC1}")
    e(f"v_mul_f32 v{vNMEAN}, v{a+4}, v{vRSTD}")
    e(f"v_add_u32 v{vWA}, s{sW1K}, v{vBX}")


if SSET == "ln": stamp(0)
P.put(hop(O_("hop00", 1)))
wq_rest = lambda: P.vm(f"buffer_load_dword a255, v{vTQ}, {srd(SWQ)}, 0 offen{ENT}") if WQ0 < 512 else None
if LTG == 4: XQ = 4
if XQ == 0: wq_rest()
if LTG == 0: late_touch()
for i in range(8):
    P.vm(f"buffer_load_dwordx4 {vr(XR+32+4*i,4)}, v{G12+13}, {srd(SX)}, 0 offen offset:{i*64}", ("x", 8 + i))
if XQ == 1: wq_rest()
if LTG == 1: late_touch()
if SSET == "ln": stamp(0)
P.put(hop(O_("hop0", 1)))
for k in range(8):
    ln_stats(4 * k, 4 * k + 4); unpack(k)
if O_("hop1", 1): P.put(hop(O_("hop1", 1)))
stamp(2)
if SSET == "ln":
    stamp(0); P.wait([("x", 15)]); stamp(0)
code = cap(ln_rest)
if "l" in opt.get("cut", ""): code = [it for it in code if not (it.t or "").startswith(("v_pk_fma", "v_cvt", "v_lshlrev", "v_and"))]
k = O_("lnat", 40)
P.puts(code[:k])
Q0LN = O_("q0ln", 1)
side = [x + y for t in w1t + qt[:Q0LN] for x, y in t.dma()]
if LTG == 4:
    j = O_("ltpos", 24)
    side[j:j] = [[it] for it in cap(wq_rest) + cap(late_touch)]
interleave(code[k:], side, O_("lnev", 9))
if SSET == "ln":
    stamp(0); P.wait(["w1"]); stamp(0)
for r in (vNMEAN, vRSTD, vSC1): P.lds(f"ds_bpermute_b32 v{r}, v{G12+8}, v{r}", "stat")
xb = [It(f"ds_read_b128 {ar(4*ks,4)}, v{vWA} offset:{ks*4096}", "l", ("xb", ks)) for ks in range(16)]
P.puts(xb[:8])
stamp(2)
P.wait(["xw", "w1"]); e("s_barrier")
stamp()
if SSET == "ln": stamp(0)

g1 = lambda h: shared_ops(range(8 * h, 8 * h + 8), 0, lambda nb: vr(G12 + 4 * nb, 4), True, lambda i: 160 + (i % 16) * 4,
                          lambda ks: ar(4 * ks, 4), lambda ks: [("xb", ks)], "g1", 32 * h)
ops = g1(0) + g1(1)
gaps = {g: [] for g in range(64)}
add1 = lambda g, it: gaps[g].append(it)
for i in range(6, 64): gaps[i - 6] += ops[i][1]
for k in range(8): add1(2 + 3 * k, xb[8 + k])
if not Q0LN:
    for k, grp in enumerate(qt[0].dma()): place(add1, 1 + 3 * k, grp, 3 * k - 2)
for k, it in enumerate((cap(wq_rest) if XQ == 3 else []) + (cap(late_touch) if LTG == 3 else [])): add1(O_("ltat", 0) + 2 * k, it)
add1(31, It("s_barrier", "s"))
for k, grp in enumerate(qt[1].dma()): place(add1, 34 + 3 * k, grp, 31 + 3 * k)
ACC = lambda nh, nb, tb: ((nh * 4 + tb) * 4 + nb) * 4
op = gemm(qt, 0, 16, ACC, [], (64, 96), breg=vBX, opening="get")
for k, it in enumerate(op[4:12]): add1(40 + 2 * k, it)
for k, it in enumerate(op[:4] + op[12:]): add1(58 + k // 2, it)
for i in range(6): P.puts(ops[i][1])
P.run_gaps([m for m, _ in ops], gaps, next_need=[op[0].tag, op[4].tag])
stamp()



def q_side():
    x, t = G12, XR
    P.put(gate(0, 8))
    for i in range(16): e(f"v_mul_f32 v{x+i}, v{x+i}, v{vSC1}", need=["stat"])
    for i in range(16): e(f"v_fma_f32 v{t+i}, -v{x+i}, v{x+i}, -s{sC1}")
    for i in range(16): e(f"v_mul_f32 v{t+i}, v{t+i}, v{x+i}")
    for i in range(16): e(f"v_exp_f32 v{t+i}, v{t+i}", k="v")
    for i in range(16): e(f"v_add_f32 v{t+i}, 1.0, v{t+i}")
    for i in range(16): e(f"v_rcp_f32 v{t+i}, v{t+i}", k="v")
    for i in range(16): e(f"v_mul_f32 v{t+i}, v{t+i}, v{x+i}")
    for i in range(8): e(f"v_cvt_pk_bf16_f32 v{t+16+i}, v{t+2*i}, v{t+2*i+1}")
    e(f"v_lshrrev_b32 v{t}, 5, v{vBA}"); e(f"v_and_b32 v{t+1}, 128, v{vLANE}"); e(f"v_lshl_add_u32 v{t}, v{t}, 10, v{t+1}")
    e(f"v_mov_b32 v{t+1}, 0"); e(f"v_mov_b32 v{t+2}, -1"); e(f"v_mov_b32 v{t+3}, -1"); e(f"v_lshrrev_b32 v{t+4}, 1, v{vBA}")
    for nb in range(4): e(f"v_add_u32 v{vAS+nb}, 32768, v{vAS+nb}")
    e(f"v_mov_b32 v{t+5}, {hex(((127 - OSH) << 7) * 0x10001)}")
    e(f"v_and_b32 v{t+6}, 0xe0, v{vBA}"); e(f"v_cmp_eq_u32 vcc, 0, v{t+6}"); e(f"v_cndmask_b32 v{t+5}, 0, v{t+5}, vcc")
    e(f"v_bfe_i32 v{t+6}, v{vBA}, 4, 1"); e(f"v_and_b32 v{t+6}, 0xaaaaaaaa, v{t+6}"); e(f"v_or_b32 v{t+6}, 0x44444444, v{t+6}")
    if STAMP: e(f"v_accvgpr_write_b32 a253, v{t+6}")
    e(f"v_mov_b32 v{vIDX}, v{t+6}")
    for i in range(16): e(f"v_accvgpr_write_b32 a{LACC(0)+i}, 0")
    for i in range(4): e(f"v_accvgpr_write_b32 a{aONES+i}, v{t+5}")

    P.put(gate(0, O_("hgate", 14 * 32 + 22)))
    if LTG == 2: late_touch()
    for s in range(2):
        e(f"s_add_u32 s{sSF}, s{sHO}, {WS_H + s*PLANE}")
        P.vm(f"buffer_store_dwordx4 {vr(t+16+4*s,4)}, v{vTOK}, {srd(SWS)}, s{sSF} offen sc1", "hst")
    masked(255, f"buffer_store_dword v{t+1}, v{t}, {srd(SWS)}, s{sFL} offen sc1", "hst")
    masked(0xffff, f"buffer_store_dwordx2 {vr(t+2,2)}, v{t+4}, {srd(SWS)}, s{sSTP} offen sc1", "hst")


class Extra:
    def __init__(self, groups): self.groups = groups
    def dma(self): return self.groups


def q_pack(tb, ss):
    for s in ss:
        b = ACC(s // 2, 2 * (s % 2), tb)
        for j in range(4): e(f"v_cvt_pk_bf16_f32 v{Q(tb,s)+j}, v{b+2*j}, v{b+2*j+1}")


assert SLIM and QPERM
fill = cap(q_side) + [gate(0, 15 * 32 + 4)] + [it for tb in range(4) for it in cap(q_pack, tb, (0, 1))]
pending = qt[2].dma()
qt += [Extra(kv_dma("K", 0) + kv_dma("K", 1)), Extra(kv_dma("K", 2))]
gemm(qt, 0, 16, ACC, pending, (64, 96), breg=vBX, fill=fill, opening="done", dma0=2,
     extra={1: [It("s_barrier", "s")], 13 * 32 + 22: [It("s_barrier", "s")]})
assert not pending
P.wait([("K", 1)]); e("s_barrier")
stamp()
if SSET == "pro": stamp(0)

for f in range(8): P.puts(frag_reads(-1, f))
P.drain(fill)
q_pack(0, (2, 3)); q_pack(1, (2, 3))
stamp()
if SSET == "pro": stamp(0)
gaps = {g: [] for g in range(64)}
for k, it in enumerate(cap(q_pack, 2, (2, 3)) + cap(q_pack, 3, (2, 3))): add1(k // 2, it)
for k, grp in enumerate(kv_dma("V", 0)): place(add1, 9 + 2 * k, grp, -1)
P.run_gaps([m for m, _ in qk_mfmas(-1, zero=True)[:16]], gaps)
if SSET == "pro": stamp(0)
for f in range(8, 12): P.puts(frag_reads(-1, f))
for qb in range(4): e(f"v_max3_f32 v{NM(qb)}, v{S(0,0,qb)}, v{S(0,0,qb)+1}, v{S(0,0,qb)+2}")
for qb in range(4): e(f"v_max_f32 v{NM(qb)}, v{NM(qb)}, v{S(0,0,qb)+3}")
allreduce("v_max_f32", [NM(qb) for qb in range(4)], [NM(qb) + 1 for qb in range(4)])
e(f"s_mov_b32 s{sT}, {f2u(float(opt.get('pd', -25.4)))}")
for qb in range(4):
    for i in (1, 2, 3, 0): e(f"v_sub_f32 v{NM(qb)+i}, s{sT}, v{NM(qb)}")


def first_half(shift, gates):
    for kb in range(2):
        P.put(gate(0, gates[kb]))
        for qb in range(4):
            b = S(0, kb, qb)
            if shift and not kb:
                for j in range(4): e(f"v_add_f32 v{b+j}, v{b+j}, v{NM(qb)}")
            for j in range(4): e(f"v_exp_f32 v{b+j}, v{b+j}")
        for qb in range(4):
            b = S(0, kb, qb)
            for j in range(2): e(f"v_cvt_pk_bf16_f32 v{PR(0,0,qb)+2*kb+j}, v{b+2*j}, v{b+2*j+1}")


if SSET == "pro": stamp(0)
gaps = {g: [] for g in range(64)}
for f in range(12, 16): gaps[16 + (f - 12)] += frag_reads(-1, f)
add1(40, It(None, "s", need=["hst"])); add1(41, It("s_barrier", "s"))
for f in range(4):
    gaps[32 + f] += frag_reads(0, f); issued.add((0, f))
for k, grp in enumerate(kv_dma("V", 1) + kv_dma("K", 3)): place(add1, 3 + 6 * k, grp, 6 * k - 3)
fill = cap(first_half, True, (0, 20))
P.run_gaps([m for m, _ in qk_mfmas(-1)[16:]], gaps, fill)
if SSET == "pro": stamp(0)
P.drain(fill)
if SSET == "pro": stamp(0)
e(f"v_mov_b32 v{T}, 1"); e(f"s_lshl_b32 s{sSF}, s{sM}, 3")
e(f"s_cmp_lg_u32 s{sW}, 0"); e("s_cbranch_scc1 L_noarr"); e("s_mov_b64 exec, 1")
e(f"buffer_atomic_add v{T}, off, {srd(SDBG)}, s{sSF} sc1"); e("s_mov_b64 exec, -1")
lab("L_noarr")
P.wait([("K", 2), ("V", 0)] + [("F", 0, f) for f in range(4)]); e("s_barrier")
stamp()

if SSET == "pro": stamp(0)
p_h = flag_poll("h", SDBG, 0, 8)
p_x = flag_poll("x1", SWS, f"s{sF0}", 1)
p_st = Poll("st", [f"buffer_load_dwordx2 {vr(T+2*j,2)}, v{vPA}, {srd(SWS)}, s{(sSTC, sSTF)[j//2]} offen offset:{128*(j%2)} sc1"
                   for j in range(4)],
            [f"v_max3_u32 v{T+8}, v{T}, v{T+1}, v{T+2}", f"v_max3_u32 v{T+8}, v{T+8}, v{T+3}, v{T+4}",
             f"v_max3_u32 v{T+8}, v{T+8}, v{T+5}, v{T+6}", f"v_max_u32 v{T+8}, v{T+8}, v{T+7}",
             f"v_cmp_eq_u32 vcc, -1, v{T+8}"])
p_ph, p_s0, p_s1 = (flag_poll(n, SWS, f"s{r}", 1) for n, r in (("ph", sF1), ("s0", sF2), ("s1", sF3)))


pieces = [(nh, tb, s) for nh in range(2) for tb in range(4) for s in range(2)]


def x_offset(d, bits=11):
    e(f"v_bfe_u32 v{d}, v{vTOK}, 4, {bits}"); e(f"v_lshlrev_b32 v{d}, 10, v{d}")
    e(f"v_bfe_u32 v{d+1}, v{vBA}, 8, 2"); e(f"v_lshl_add_u32 v{d}, v{d+1}, 3, v{d}")


def paced(t, g, step, fns):
    for k, fn in enumerate(fns):
        p = g + k * step
        P.put(gate(t + p // NIT, p % NIT)); fn()


def h_loads(half, t, g):
    e(f"v_bfe_u32 v{T}, v{vTOK}, 4, 11")
    for k, d in enumerate(((-1, 1), (-2, 2))[half]):
        e(f"v_add_u32 v{T+1}, {d}, v{T}"); e(f"v_cmp_gt_u32 vcc, 0x800, v{T+1}")
        e(f"v_add_u32 v{T+1}, {16*d}, v{vTOK}"); e(f"v_mov_b32 v{T+2+k}, 0x7f000000")
        e(f"v_cndmask_b32 v{T+2+k}, v{T+2+k}, v{T+1}, vcc")

    def one(ks):
        e(f"s_mov_b32 s{sSF}, {WS_H + ks*PLANE}")
        P.vm(f"buffer_load_dwordx4 {ar(HB(ks),4)}, v{T + 2 + (ks%8)//4}, {srd(SWS)}, s{sSF} offen sc1", ("h", ks))
    paced(t, g, O_("hstep", 18), [lambda ks=ks: one(ks) for ks in range(8 * half, 8 * half + 8)])


def acc_offset():
    P.lds(f"ds_read_b64_tr_b16 {vr(T+4,2)}, v{VA(0)}", "v0")
    P.put(gate(0, 9))
    for j in range(2):
        e(f"v_lshlrev_b32 v{T+2*j}, 17, v{T+4+j}", need=["v0"]); e(f"v_lshlrev_b32 v{T+2*j+1}, 1, v{T+4+j}")
    for r in (8, 4, 2, 1):
        for j in range(4): e(f"v_max_u32_dpp v{T+j}, v{T+j}, v{T+j} row_ror:{r} row_mask:0xf bank_mask:0xf")
    e(f"v_min3_u32 v{T}, v{T}, v{T+1}, v{T+2}"); e(f"v_min_u32 v{T}, v{T}, v{T+3}")
    allreduce("v_min_u32", [T], [T + 1], k="v")
    e(f"v_lshrrev_b32 v{T}, 24, v{T}"); e(f"v_lshlrev_b32 v{T}, 23, v{T}"); e(f"v_mul_f32 v{T}, {f2u(1.5 * 2.0**OB)}, v{T}")
    for i in range(4): e(f"v_accvgpr_write_b32 a{GA(0)+i}, v{T}")
    e(f"v_readfirstlane_b32 s{sOB}, v{T}")


def side1():
    if SLIM:
        code_touch(); P.vm(f"buffer_load_dword a255, v{vT1}, {srd(SW2)}, 0 offen")
    P.put(gate(0, 64))
    x_offset(T + 5); e(f"s_lshl_b32 s{sSF}, s{sG}, 7")
    for nb in range(4):
        P.vm(f"buffer_load_dwordx2 {vr(T+6+2*nb,2)}, v{T+5}, {srd(SX)}, s{sSF} offen offset:{nb*32}", "xs")
    e(f"v_lshrrev_b32 v{T}, 4, v{vBA}"); e(f"v_min_u32 v{T}, 2, v{T}"); e(f"v_add_u32 v{T}, s{sM}, v{T}")
    e(f"v_add_u32 v{T}, -1, v{T}"); e(f"v_med3_i32 v{T}, v{T}, 0, 31"); e(f"v_lshlrev_b32 v{vPA}, 3, v{T}")
    if O_("kvt1", 0):
        touch_off(T, (T0 - 5) * 128, 1, 128, [(sG, 0), 5 * 16384], T + 1)
        P.vm(f"buffer_load_dword a255, v{T}, {srd(SK)}, 0 offen"); P.vm(f"buffer_load_dword a255, v{T}, {srd(SV)}, 0 offen")
    P.put(gate(2, 0))
    p_h.issue()
    for i in range(8):
        d = T + 2 * (i % 2)
        e(f"v_lshlrev_b32 v{d}, 16, v{T+6+i}", need=["xs"]); e(f"v_and_b32 v{d+1}, 0xffff0000, v{T+6+i}")
        for h in range(2): e(f"v_fma_f32 v{d+h}, v{d+h}, v{vRSTD}, v{vNMEAN}")
        for h in range(2): e(f"v_accvgpr_write_b32 a{aG2+2*i+h}, v{d+h}")
    P.put(gate(3, 0))
    p_h.check(); h_loads(0, 3, 30)
    P.put(gate(6, 0))
    h_loads(1, 6, 24)
    sum_terms(sT, (sW, 128), (sW3B, 1)); dma_voff(vDW2, 3584, False, f"s{sT}", T)
    P.put(gate(8, NIT + 28))
    m, q = vRSTD, vNMEAN
    for i in range(16): e(f"v_accvgpr_read_b32 v{T+i}, a{aG2+i}")
    e(f"v_add_f32 v{m}, v{T}, v{T+1}"); e(f"v_mul_f32 v{q}, v{T}, v{T}")
    for i in range(1, 16):
        e(f"v_fmac_f32 v{q}, v{T+i}, v{T+i}")
        if i > 1: e(f"v_add_f32 v{m}, v{m}, v{T+i}")
    allreduce("v_add_f32", [m, q], [T, T + 1], k="v")
    e(f"v_lshrrev_b32 v{T}, 1, v{vBA}"); e(f"v_min_u32 v{m}, -2, v{m}"); e(f"v_min_u32 v{q}, -2, v{q}")
    masked(0xffff, f"buffer_store_dwordx2 {vr(m,2)}, v{T}, {srd(SWS)}, s{sSTP} offen sc1")
    code_touch()
    e(f"v_and_b32 v{T}, 0xf0, v{vBA}"); e(f"v_lshrrev_b32 v{T}, 1, v{T}"); e(f"v_and_b32 v{T+1}, 0x300, v{vBA}")
    e(f"v_add_u32 v{vPA}, v{T}, v{T+1}")
    P.put(gate(11, 70))
    p_st.issue()
    P.put(gate(12, 60))
    p_st.check()
    u, r = T + 15, T + 16
    e(f"v_add_f32 v{u}, v{T}, v{T+2}"); e(f"v_add_f32 v{r}, v{T+1}, v{T+3}")
    e(f"v_add_f32 v{q}, v{T+4}, v{T+6}"); e(f"v_add_f32 v{m}, v{T+5}, v{T+7}")
    allreduce("v_add_f32", [u, r, q, m], [T, T + 1, T + 2, T + 3], k="v")
    for x in (u, r, q, m): e(f"v_mul_f32 v{x}, {f2u(1/512)}, v{x}")
    for x, y in ((u, r), (q, m)):
        e(f"v_fma_f32 v{y}, -v{x}, v{x}, v{y}"); e(f"v_max_f32 v{y}, 0, v{y}")
        e(f"v_mul_f32 v{y}, {f2u(GA_**-2)}, v{y}"); e(f"v_add_f32 v{y}, {f2u(EPS)}, v{y}")
    e(f"v_rsq_f32 v{r}, v{r}", k="v"); e(f"v_sqrt_f32 v{m}, v{m}", k="v")
    for i in range(15): e(f"v_accvgpr_read_b32 v{T+i}, a{aG2+i}")
    e(f"v_mul_f32 v{u}, v{u}, v{r}")
    for i in range(15): e(f"v_fma_f32 v{T+i}, v{T+i}, v{r}, -v{u}")
    e(f"v_cvt_pk_bf16_f32 v{T}, v{T}, v{T+1}"); e(f"v_cvt_pk_bf16_f32 v{T+1}, v{T+2}, v{T+3}")
    e(f"v_accvgpr_read_b32 v{T+3}, a{aG2+15}"); e(f"v_fma_f32 v{u}, v{T+3}, v{r}, -v{u}")
    for i in range(2, 8): e(f"v_cvt_pk_bf16_f32 v{T+i}, v{T+2*i}, v{T+2*i+1}")
    for s in range(2):
        e(f"s_add_u32 s{sSF}, s{sHO}, {WS_X1 + s*PLANE}")
        P.vm(f"buffer_store_dwordx4 {vr(T+4*s,4)}, v{vTOK}, {srd(SWS)}, s{sSF} offen sc1", "x1st")
    e(f"v_bfe_u32 v{vPA}, v{vBA}, 4, 3"); e(f"v_lshlrev_b32 v{vPA}, 2, v{vPA}")
    P.put(gate(15, 40))
    set_flags(0, 1, ["x1st"])
    touch_off(T, 512, 4, 3584, [(sW3B, 1)], T + 1)
    P.vm(f"buffer_load_dword a255, v{T}, {srd(SW3)}, 0 offen")
    touch_off(T, 2048, 1, 128, [(sW3B, 512)], T + 1)
    P.vm(f"buffer_load_dword a255, v{T}, {srd(SW4)}, 0 offen")
    sum_terms(sT, (sW, 256)); dma_voff(vDW4, 1024, False, f"s{sT}", T)
    sum_terms(sT, (sG, 1 << 19)); e(f"v_add_u32 v{vDWO}, s{sT}, v{vDW4}")
    sum_terms(sT, (sW3B, 512)); e(f"v_add_u32 v{vDW4}, s{sT}, v{vDW4}")
    e(f"s_and_b32 s{sT}, s{sG}, 1"); e(f"s_sub_u32 s{sT}, 4, s{sT}"); e(f"s_mul_i32 s{sT}, s{sT}, s{sW}")
    for nb in range(4):
        e(f"s_and_b32 s{sT+1}, s{sT}, 3"); e(f"s_lshl_b32 s{sT+1}, s{sT+1}, 5"); e(f"v_xor_b32 v{vAA2+nb}, s{sT+1}, v{vAS}")
        e(f"s_lshr_b32 s{sT+1}, s{sT}, 2"); e(f"s_lshl_b32 s{sT+1}, s{sT+1}, 13"); e(f"v_add_u32 v{vAA2+nb}, s{sT+1}, v{vAA2+nb}")
        e(f"v_add_u32 v{vAA+nb}, 0xffff0000, v{vAA2+nb}"); e(f"s_add_u32 s{sT}, s{sT}, 1")
    P.put(gate(17, 60))
    p_x.issue(); code_touch()
    P.put(gate(18, 60))
    p_x.check()
    if XREG:
        def one(ks):
            e(f"s_mov_b32 s{sSF}, {WS_X1 + ks*PLANE}")
            P.vm(f"buffer_load_dwordx4 {ar(aG2 + 4*(ks-4),4)}, v{vTOK}, {srd(SWS)}, s{sSF} offen sc1", "xnl")
        paced(18, 70, 14, [lambda ks=ks: one(ks) for ks in range(4, 8)])
    P.put(gate(19, 0))
    if O_("kvt", 1):
        touch_off(T + 8, (32 - T0) * 128, 1, 128, [(sG, 0), T0 * 16384], T + 9)
        P.vm(f"buffer_load_dword a255, v{T+8}, {srd(SK)}, 0 offen"); P.vm(f"buffer_load_dword a255, v{T+8}, {srd(SV)}, 0 offen")
    if XREG:
        e(f"v_add_u32 v{T+9}, s{sW1K}, v{vBA}")
        paced(T0 - 1, 34, 6, [lambda ks=ks: P.lds(f"ds_write_b128 v{T+9}, {ar(aG2 + 4*(ks-4),4)} offset:{ks*4096}", ("xn", 1), need=["xnl"])
                              for ks in range(4, 8)])


def x1n_dma(j):
    return [([It(f"s_add_u32 m0, s{sW1K}, {ks*4096}", "s"), It(f"s_mov_b32 s{sSO}, {WS_X1 + ks*PLANE}", "s")],
             [It(f"buffer_load_dwordx4 v{vTOK}, {srd(SWS)}, s{sSO} offen sc1 lds", "g", ("xn", j), need=["x1"])])
            for ks in range(4 * j, 4 * j + 4)]


def run_tiles(t0, t1, fill, over, more, endw, ins, must, xtra={}):
    end = T0 - 1 if t0 < T0 else 31
    for t in range(t0, t1):
        groups = (kv_dma("K", t + 4) if t + 4 <= end else []) + (kv_dma("V", t + 3) if t + 3 <= end else [])
        groups = over.get(t, groups) + more.get(t, [])
        attn_iter(t, groups, fill, endw.get(t, ()), ins=ins.get(t), extra=xtra.get(t))
        head = fill[0].at if fill else (99, 0)
        if O_("showfill", 0): print(t, len(fill), head, file=sys.stderr)
        if t in must: assert head and head[0] >= must[t], (t, head, len(fill))


g2 = lambda h: shared_ops(range(8 * h, 8 * h + 8), 8 * h, lambda nb: ar(aG2 + 4 * nb, 4), False, GA,
                          lambda ks: ar(HB(ks), 4), lambda ks: [("h", ks)], f"g2{h}")
op = gemm(mt, 0, 8, ACC, [], (160, 212), opening="get")
opx = {40 + 2 * k: [it] for k, it in enumerate(op[4:12])}
opx.update({58 + k: [it] for k, it in enumerate(op[:4] + op[12:])})
xtra = {T0 - 1: opx}
if OB:
    its = [it for it in cap(acc_offset) if it.at is None]
    xtra[0] = {1: its[:1]}
    for k, it in enumerate(its[1:]): xtra[0].setdefault(11 + (k * 50) // len(its), []).append(it)
fill = cap(side1)
kv = lambda *a: [g for k in a for g in kv_dma(k[0], int(k[1:]))]
run_tiles(0, T0, fill, {0: kv("V2", "K4", "V3")},
          {O_("w2it", 1): w2t[0].dma() if SLIM else [], 6: w2t[1].dma(), 18: mt[0].dma(), 19: x1n_dma(2) + x1n_dma(3),
           20: x1n_dma(0) + mt[1].dma(), 21: [] if XREG else x1n_dma(1)},
          {4: [("w2", 0)], 7: [("w2", 1)], 20: [("xn", 3), mt[0].tag]}, {5: g2(0), 8: g2(1)}, {4: 6, 7: 8, 17: 18, 18: 19, 21: 99}, xtra)
stamp()

def ph_pack(ks):
    for k in ks:
        pack(ACC, *pieces[k])
        for j in range(4): e(f"v_accvgpr_write_b32 a{PHA(k)+j}, v{ACC(pieces[k][0], 2*pieces[k][2], pieces[k][1])+j}")


def own_x1n(per):
    return {4 * per + 2: [It(f"s_lshl2_add_u32 s{sT}, s{sKS}, s{sTB}", "s")],
            4 * per + 6: [It(f"s_lshl_b32 s{sT}, s{sT}, 10", "s"), It(f"v_add_u32 v{T+9}, s{sT}, v{vBA}", "v")],
            7 * per + 3: [It(f"ds_read_b128 {ar(aXN,4)}, v{T+9}", "l", "xnr")],
            7 * per + 7: [It(f"ds_read_b128 {ar(aXN+4,4)}, v{T+9} offset:8192", "l", "xnr")]}


def mlp_tail(act, pending, nstep, bf):
    P.wait(["xnr"]); e("s_barrier")
    stamp()
    interleave(cap(act), [x + y for x, y in pending], 16)
    gemm_pre(mt, 8)
    P.wait(["hw"]); e("s_barrier")
    stamp()
    g = 32 * (nstep - 2)
    fill = [gate(0, g + 20)] + cap(ph_pack, (0, 2, 4, 6)) + [gate(0, g + 36)] + cap(ph_pack, (1, 3, 5, 7))
    pending = []
    gemm(mt[:8 + nstep] + [Extra(kv_dma("K", T0) + kv_dma("K", T0 + 1))], 8, nstep, ACC, pending, bf, fill=fill)
    assert not pending
    P.wait([("K", T0 + 1)]); e("s_barrier")
    stamp()
    for f in range(8): P.puts(frag_reads(T0 - 1, f))
    P.drain(fill)


def mlp_even():
    P.cmt("==== channel MLP, even groups: 256 hidden columns, one private weight tile per wave and step")
    extra = own_x1n(32)
    extra.update({1: [It("s_barrier", "s")], 2 * 32 + 26: [It(None, "s", need=[("xn", 0), ("xn", 1)])],
                  2 * 32 + 27: [It("s_barrier", "s")],
                  7 * 32 + 10: [It(f"s_lshl_b32 s{sT}, s{sW}, 13", "s"), It(f"v_add_u32 v{T+8}, s{sT}, v{vBA}", "v")]})
    pending = mt[2].dma()
    gemm(mt, 0, 8, ACC, pending, (160, 212), extra=extra, opening="done", dma0=2)

    def act():
        for tb in range(4):
            gelu(16 * tb, 16, 64 + 16 * tb, lambda i: 16 * tb + i, first=tb == 0)
            for s in range(2):
                P.lds(f"ds_write_b128 v{T+8}, {vr(16*tb + 4*s,4)} offset:{s*4096 + tb*1024}", "hw")
    mlp_tail(act, pending, 8, (160, 212))


def mlp_odd():
    P.cmt("==== channel MLP, odd groups: 192 hidden columns, three weight tiles per step shared by the four waves")
    AC3 = lambda nb, tb: (tb * 3 + nb) * 4
    af = lambda s, nb, ks: AF(2 * (nb + (nb == 2) * (s & 1)) + ks)
    bf = lambda s, ks, tb: ar((160, 212)[s & 1] + (ks * 4 + tb) * 4, 4)

    def a3(s, nb):
        t = mt[s]
        base, off = (vAA2, 0) if t.slot == 2 else (vAA, t.slot * 32768)
        return [It(f"ds_read_b64_tr_b16 {ar(af(s,nb,ks)+2*h,2)}, v{base+nb} offset:{off + ks*4096 + h*2048}", "l",
                   ("A", t.tag, nb)) for ks in range(2) for h in range(2)]

    def stage(s):
        t = mt[s]
        if s >= 8: return t.dma()
        return [(([It(f"s_add_u32 m0, s{sRS}, {t.slot*32768 + c*8192}", "s")] if i == 0 else []) +
                 [It(f"s_mov_b32 s{sSO}, {t.base + i*8*3584 + c*128 - i*1024}", "s")],
                 [It(f"buffer_load_dwordx4 v{vDW2}, {srd(SW3)}, s{sSO} offen offset:{i*1024} lds", "g", t.tag)])
                for c in range(3) for i in range(2)]

    REL, RAW, DS = O_("rel", 13), O_("raw", 13), O_("ds", 3)
    DG = {(REL + 1 + DS * k) % 24 for k in range(6)}
    ms, gaps = [], own_x1n(24)
    add = lambda g, it: gaps.setdefault(g, []).append(it)
    for s in range(8):
        t, g0 = mt[s], 24 * s
        for nb in range(3):
            for i, tb in enumerate(range(3, -1, -1) if nb & 1 else range(4)):
                for n, ks in enumerate(range(2) if not i & 1 else range(1, -1, -1)):
                    d = vr(AC3(nb, tb), 4)
                    ms.append(It(f"{MF} {d}, {ar(af(s,nb,ks),4)}, {bf(s,ks,tb)}, {d if s or n else 0}", "m",
                                 need=[("A", t.tag, nb), ("B", mt[0].tag, s, tb)]))
        if s == 0:
            for k, it in enumerate(a3(0, 1)[2:] + a3(0, 2)): add((0, 0, 1, 1, 2, 2)[k], it)
        add(g0 + REL - 1, It(None, "s", need=[("A", t.tag, nb) for nb in range(3)]))
        add(g0 + REL, It("s_barrier", "s"))
        if s < 7:
            u = mt[s + 1]
            add(g0 + RAW - 1, It(None, "s", need=[u.tag] + ([("xn", 0), ("xn", 1)] if s == 2 else [])))
            if RAW != REL: add(g0 + RAW, It("s_barrier", "s"))
            c = [g for g in range(RAW + 1, 24) if g not in DG]
            rd = a3(s + 1, 0) + a3(s + 1, 2) + a3(s + 1, 1)
            for k, it in enumerate(rd): add(g0 + max(c[k * len(c) // 12], 16 if k >= 8 else 0), it)
            rd = [It(f"ds_read_b128 {bf(s+1,ks,tb)}, v{vBA} offset:{u.kp*8192 + ks*4096 + tb*1024}", "l",
                     ("B", mt[0].tag, s + 1, tb)) for tb in range(4) for ks in range(2)]
            c = [g for g in range(0 if s else 4, RAW + 1) if g not in DG]
            for k, it in enumerate(rd): add(g0 + c[k * len(c) // 8], it)
        add(g0 + 19, hop())
        if O_("jit2", 0): add(g0 + 4, jitter_item())
        if SSET == "odd": add(g0, stamp_item())
    if SSET == "odd": add(len(ms) - 1, stamp_item())
    add(0, It(f"s_mul_i32 s{sT}, s{sW}, {16*3584 - 128}", "s")); add(0, It(f"v_add_u32 v{vDW2}, s{sT}, v{vDW2}", "v"))
    add(1, It("s_barrier", "s"))
    pending, prev = stage(2), 1
    for g in range(3, len(ms)):
        if g % 24 == REL + 1: pending += stage(g // 24 + 3)
        if pending and g - prev >= 2 and (g % 24 in DG or len(pending) > 6 or g < REL):
            place(add, g, pending.pop(0), prev); prev = g
    HW = (T + 8, T + 9, T + 15)

    def addr():
        P.put(gate(0, 7 * 24 + 12))
        e(f"s_mul_i32 s{sT}, s{sW}, 3")
        for nb in range(3):
            e(f"s_lshr_b32 s{sT+1}, s{sT}, 1"); e(f"s_lshl_b32 s{sT+1}, s{sT+1}, 12"); e(f"s_and_b32 s{sT+2}, s{sT}, 1")
            e(f"s_lshl3_add_u32 s{sT+1}, s{sT+2}, s{sT+1}"); e(f"v_add_u32 v{HW[nb]}, s{sT+1}, v{vBA}"); e(f"s_add_u32 s{sT}, s{sT}, 1")
        e(f"s_sub_u32 s{sT}, s{sRING}, {RING + 65536}")
        for nb in range(4):
            e(f"v_add_u32 v{vAA+nb}, s{sT}, v{vAS+nb}"); e(f"v_add_u32 v{vAA2+nb}, 0x10000, v{vAA+nb}")
    fill = cap(addr)
    P.run_gaps(ms, gaps, fill, gmin=4)
    P.drain(fill)

    def act():
        for tb in range(4):
            gelu(12 * tb, 12, 64 + 12 * tb, lambda i: 12 * tb + i, first=tb == 0)
            for nb in range(3):
                P.lds(f"ds_write_b64 v{HW[nb]}, {vr(12*tb + 2*nb,2)} offset:{tb*1024}", "hw")
    mlp_tail(act, pending, 6, (212, 160))


e(f"s_bitcmp1_b32 s{sG}, 0"); e("s_cbranch_scc1 L_odd")
lab("L_even")
state = (list(P.lq), list(P.vq), set(P.used), set(P.ever), nstamp[0])
mlp_even()
after = (list(P.lq), list(P.vq), set(P.used), set(P.ever), nstamp[0])
main, P.L = P.L, []
P.lq, P.vq, P.used, P.ever, nstamp[0] = state
mlp_odd()
e("s_branch L_join")
assert (P.lq, P.vq) == after[:2] and (SSET or nstamp[0] == after[4]), (P.lq, P.vq, after[:2])
odd_text, P.L = P.L, main
P.lq, P.vq, P.used, P.ever, nstamp[0] = after
lab("L_join")
ph_pack(range(8, 10))
gaps = {g: [] for g in range(64)}
for f in range(8, 16): gaps[16 * (f // 4 - 1) + f % 4] += frag_reads(T0 - 1, f)
for f in range(4):
    gaps[48 + f] += frag_reads(T0, f); issued.add((T0, f))
for k, grp in enumerate(kv_dma("V", T0) + kv_dma("K", T0 + 2)): place(add1, 2 + 4 * k, grp, 4 * k - 2)
fill = cap(ph_pack, range(10, 14)) + cap(first_half, False, (20, 36)) + cap(ph_pack, range(14, 16))
P.run_gaps([m for m, _ in qk_mfmas(T0 - 1)], gaps, fill)
P.drain(fill)
P.wait([("K", T0 + 2), ("V", T0)] + [("F", T0, f) for f in range(4)]); e("s_barrier")
stamp()


XF = [244, 245, 246, 247, 248, 249, T + 10, T + 11]


def side2():
    paced(T0, 60, O_("sstep", 22), [lambda k=k: store_piece(ar(PHA(k), 4), WS_PH, *pieces[k], "phs") for k in range(16)])
    touch_off(T + 8, 4096, 1, 128, [(sG, 1 << 19)], T + 9)
    P.vm(f"buffer_load_dword a255, v{T+8}, {srd(SWO)}, 0 offen")
    code_touch()
    P.put(gate(25, O_("phf", 131))); set_flags(1, 2, ["phs"])
    x_offset(T + 8, 4)
    paced(26, 50, 20, [lambda i=i: P.vm(f"buffer_load_dwordx2 {vr(XF[2*i],2)}, v{T+8}, {srd(SX)}, s{sXF} offen "
                                        f"offset:{(i//2)*128 + (i%2)*32}", "xf") for i in range(4)])
    o_addr()
    PH0 = O_("ph0", 40)
    P.put(gate(27 + PH0 // NIT, PH0 % NIT)); p_ph.issue()
    paced(27, PH0 + 110, 1, [p_ph.check])
    paced(27, PH0 + 120, O_("lstep", 22), [lambda k=k: load_piece(WS_PH, ar(PHA(k), 4), k // 2, k % 2, "phl") for k in range(16)])


def o_addr():
    if not PA:
        e(f"v_add_u32 v{T+8}, s{sW4K}, v{vBA}")
        return
    x, y = vDW2, vDW4
    for d, (ro, rb), (co, cb) in ((T + 8, (4, 4), (8, 2)), (T + 9, (6, 4), (4, 2))):
        e(f"v_bfe_u32 v{x}, v{vBA}, {ro}, {rb}"); e(f"v_bfe_u32 v{d}, v{vBA}, {co}, {cb}")
        e(f"v_and_b32 v{y}, 1, v{x}"); e(f"v_xor_b32 v{d}, v{d}, v{y}")
        e(f"v_lshrrev_b32 v{y}, 3, v{x}"); e(f"v_lshlrev_b32 v{y}, 1, v{y}"); e(f"v_xor_b32 v{d}, v{d}, v{y}")
        e(f"v_and_b32 v{y}, 6, v{x}"); e(f"v_lshl_add_u32 v{d}, v{y}, 1, v{d}")
        e(f"v_lshlrev_b32 v{d}, 3, v{d}"); e(f"v_lshl_add_u32 v{d}, v{x}, 7, v{d}")
    e(f"v_add_u32 v{T+8}, s{sW4K}, v{T+8}")


fill = cap(side2)
run_tiles(T0, 31, fill, {T0: kv(f"V{T0+1}", f"K{T0+3}", f"K{T0+4}", f"V{T0+2}"), T0 + 1: kv(f"K{T0+5}", f"V{T0+3}", f"V{T0+4}")}, {O_("wo0", 29): ot[0].dma(), 30: ot[1].dma()}, {}, {}, {30: 99})


vOW, vOR = 208, 212


def o_stage(k, st):
    s, qb = k // 4, k % 4
    b = 8 * (k % 8)
    if "o" in opt.get("cut", "") and k >= 8 and st < 3: return
    if "O" in opt.get("cut", "") and k >= 2: return
    if st == 0:
        for h in range(2):
            for j in range(4): e(f"v_accvgpr_read_b32 v{b+4*h+j}, a{O(2*s+h,qb)+j}")
    elif st == 1:
        for j in range(0, 8, 2):
            e(f"v_pk_fma_f32 {vr(b+j,2)}, {vr(b+j,2)}, {vr(NM(qb) + j%4,2)}, {vr(64 + 4*qb + j%4,2)} neg_lo:[0,0,1] neg_hi:[0,0,1]" if OB else
              f"v_pk_mul_f32 {vr(b+j,2)}, {vr(b+j,2)}, {vr(NM(qb) + j%4,2)}" if PA else
              f"v_pk_mul_f32 {vr(b+j,2)}, {vr(b+j,2)}, {vr(NM(qb),2)} op_sel_hi:[1,0]")
    elif st == 2:
        for j in range(4): e(f"v_cvt_pk_bf16_f32 v{b+j}, v{b+2*j}, v{b+2*j+1}")
    elif PA:
        P.lds(f"ds_write2st64_b64 v{vOW+qb}, {vr(b,2)}, {vr(b+2,2)} offset0:{32*s} offset1:{32*s+4}", "ow")
    else:
        P.lds(f"ds_write_b128 v{T+8}, {vr(b,4)} offset:{s*16384 + qb*1024}", "ow")


vL = 40


def row_sums():
    for qb in range(4):
        for j in range(2): e(f"v_accvgpr_read_b32 v{vL+2*qb+j}, a{LACC(qb)+j}")
    for qb in range(4): e(f"v_add_f32 v{vL+2*qb}, v{vL+2*qb}, v{vL+2*qb+1}")


def row_inverses():
    e(f"v_bfe_u32 v{vL+8}, v{vBA}, 8, 2"); e(f"v_lshlrev_b32 v{vL+8}, 4, v{vL+8}")
    for qb in range(4): e(f"v_rcp_f32 v{vL+2*qb}, v{vL+2*qb}")
    for qb in range(4):
        for r in range(4): P.lds(f"ds_bpermute_b32 v{NM(qb)+r}, v{vL+8}, v{vL+2*qb} offset:{4*r}", "rinv")


def vote():
    v = 56
    P.put(gate(31, 33))
    e(f"s_lshl_b32 s{sT+1}, s{sW}, 2"); e(f"s_add_u32 s{sT+1}, s{sT+1}, {RING + 32768}")
    e(f"v_mov_b32 v{v+4}, {f2u(-1.0 if FORCE_REDO else 2.0**64)}"); e(f"v_mov_b32 v{v+5}, s{sT+1}"); e(f"v_mov_b32 v{v+6}, {RING + 32768}")
    P.put(gate(31, 38))
    row_sums()
    e(f"v_maximum3_f32 v{v}, v{vL}, v{vL+2}, v{vL+4}"); e(f"v_maximum3_f32 v{v}, v{v}, v{vL+6}, v{vL+6}")
    e(f"v_cmp_nle_f32 vcc, v{v}, v{v+4}")
    e(f"s_cmp_lg_u64 vcc, 0\n    s_cselect_b32 s{sT}, 1, 0", k="v")
    e(f"v_mov_b32 v{v}, s{sT}")
    P.lds(f"ds_write_b32 v{v+5}, v{v}", "vote")
    inv = P.rec; k = len(inv) + 6
    row_inverses()
    inv[k:k] = [It(None, "s", need=["vote"]), It("s_barrier", "s"), It(f"ds_read_b128 {vr(v,4)}, v{v+6}", "l", "votes")]
    e(f"v_or3_b32 v{v}, v{v}, v{v+1}, v{v+2}", need=["votes"]); e(f"v_or_b32 v{v}, v{v}, v{v+3}")
    e(f"v_readfirstlane_b32 s{sT}, v{v}")


fill = cap(vote)
if SSET == "oe": stamp(0)
attn_iter(31, [], fill)
if SSET == "oe": stamp(0)
P.drain(fill)
e(f"s_cmp_lg_u32 s{sT}, 0"); e("s_cbranch_scc1 L_redo")
lab("L_att_done")
stamp()
if SSET == "oe": stamp(0)

if PA:
    for qb in range(4):
        e(f"v_xor_b32 v{vOW+qb}, {32*qb}, v{T+8}"); e(f"v_xor_b32 v{vOR+qb}, {32*qb}, v{T+9}")
o_stage(0, 0)
P.wait(["rinv"])
if OB:
    for i in range(16): e(f"v_mul_f32 v{64+i}, s{sOB}, v{vR+i}")
lag = [int(x) for x in opt.get("olag", "0,1,2,3").split(",")]
WG = O_("owg", 1)
for k in range(16 + lag[3] + WG):
    if SSET == "oe" and k % 4 == 0: stamp(0)
    for st in range(3):
        if 0 <= k - lag[st] < 16 and k + st: o_stage(k - lag[st], st)
    if (k - lag[3]) % WG == WG - 1:
        for j in range(k - lag[3] - WG + 1, k - lag[3] + 1):
            if 0 <= j < 16: o_stage(j, 3)
if SSET in ("o", "oe"): stamp(0)
gemm_pre(ot, 0)
P.wait(["ow"]); e("s_barrier")
if SSET in ("o", "oe"): stamp(0)
stamp()
OACC = lambda nh, nb, tb: 64 + ACC(nh, nb, tb)
PSR = lambda g, nh: nh * 32 + g * 4


def o_side():
    if OWN:
        P.put(gate(0, 32 * 7))
        for u in range(2):
            e(f"s_lshl1_add_u32 s{sT}, s{sW}, {u}")
            e(f"s_cmp_eq_u32 s{sT}, s{sG}\n    s_cselect_b32 s{sPO[u]}, 0x7f000000, 0")
            e(f"v_or_b32 v{vPO+u}, s{sPO[u]}, v{vBA}")
        sum_terms(sPX, (sG, 8192), (sPC, 1), WS_PS)
    P.put(gate(0, 32 * 8 + 4))
    for p in pieces[:8]: pack(OACC, *p)
    for p, g in zip(pieces, [int(x) for x in opt.get("s0g", "440,448,456,464,472,480,488,496").split(",")]):
        P.put(gate(0, g))
        store_piece(vr(OACC(0, 2 * p[2], p[1]), 4), WS_PS, *p, "s0s")
    if O_("f0k", 3) < 0:
        P.put(gate(0, O_("f0g", 500))); set_flags(2, 2, ["s0s"])


fill = cap(o_side)
pending = ot[2].dma()
gemm(ot, 0, 16, OACC, pending, (0, 32, 64, 96, (vr, 0), (vr, 32))[:O_("obs", 6)], fill=fill, breg=vOR if PA else vBA, btr=PA)
P.drain(fill)
stamp()
P0K = O_("p0k", -1)
for k, p in enumerate(pieces[8:]):
    pack(OACC, *p); store_piece(vr(OACC(1, 2 * p[2], p[1]), 4), WS_PS, *p, "s1s")
    if k == O_("f0k", 3): set_flags(2, 2, ["s0s"])
    if k == P0K: p_s0.issue()
vY, vS, vG, vX = 64, 80, 96, 112


def gate_values():
    for i in range(8): e(f"v_accvgpr_read_b32 v{vG+i}, a{aXN+i}")
    for i in range(8):
        e(f"v_lshlrev_b32 v{vY+2*i}, 16, v{vG+i}"); e(f"v_and_b32 v{vY+2*i+1}, 0xffff0000, v{vG+i}")
    for i in range(16): e(f"v_fma_f32 v{vY+i}, v{vY+i}, v{vRSTD}, v{vNMEAN}")
    for k in range(17):
        if k < 16:
            for j in range(4): e(f"v_accvgpr_read_b32 v{vG + 4*(k%2) + j}, a{PHA(k)+j}", need=[("phl", k // 2, k % 2)])
        if k: add_piece(vY + 8 * ((k - 1) % 2), vG + 4 * ((k - 1) % 2), False, ())
    for i in range(16): e(f"v_mul_f32 v{vG+i}, s{sNL2E}, v{vY+i}")
    for i in range(16): e(f"v_exp_f32 v{vG+i}, v{vG+i}")
    e(f"s_mov_b32 s{sT}, {f2u(GA_ * 2.0**OSH)}")
    for i in range(16): e(f"v_fma_f32 v{vG+i}, v{vG+i}, s{sT}, s{sT}")
    for i in range(16): e(f"v_rcp_f32 v{vG+i}, v{vG+i}")
    for i in range(0, 16, 2): e(f"v_pk_mul_f32 {vr(vG+i,2)}, {vr(vG+i,2)}, {vr(vY+i,2)}")
    for i in range(8):
        e(f"v_lshlrev_b32 v{vX+2*i}, 16, v{XF[i]}", need=["xf"]); e(f"v_and_b32 v{vX+2*i+1}, 0xffff0000, v{XF[i]}")
    e(f"v_bfe_u32 v200, v{vTOK}, 4, 4"); e("v_lshlrev_b32 v200, 10, v200"); e(f"v_bfe_u32 v201, v{vBA}, 8, 2")
    e("v_lshl_add_u32 v200, v201, 4, v200")


if OWN:
    e(f"v_add_u32 v216, s{sRING}, v{vBA}")
    for u in range(2):
        e(f"s_cmp_eq_u32 s{sPO[u]}, 0"); e(f"s_cbranch_scc1 L_away{u}")
        for nh, tb, s in pieces:
            if tb >> 1 == u: e(f"ds_write_b128 v216, {vr(OACC(nh,2*s,tb),4)} offset:{((tb & 1) + 2*s)*2048 + nh*1024}")
        lab(f"L_away{u}")
    e(f"s_lshr_b32 s{sT}, s{sG}, 1"); sum_terms(sT + 1, (sT, 8192), (sW, 2048), RING); e(f"v_add_u32 v216, s{sT+1}, v{vBA}")
    P.wait_all(vm=False); e("s_barrier")
    for nh in range(2): P.lds(f"ds_read_b128 {vr(192+4*nh,4)}, v216 offset:{nh*1024}", "own")
code = cap(gate_values)
if OWN:
    for nh in range(2): code[40:40] = cap(add_piece, vS + 8 * nh, 192 + 4 * nh, True, ["own"])
k0, k1 = O_("gs0", 60), O_("gs1", 140)
P.puts(code[:k0])
if P0K < 0: p_s0.issue()
P.puts(code[k0:k1])
set_flags(3, 2, ["s1s"])
stamp(2)
p_s0.check()
for g in range(OWN, 8): load_piece(WS_PS, vr(PSR(g, 0), 4), g, 0, "psl")
p_s1.issue()
P.puts(code[k1:])


def finish(nh):
    for g in range(OWN, 8): add_piece(vS + 8 * nh, PSR(g, nh), g == 0, [("psl", g, nh)])
    for i in range(8 * nh, 8 * nh + 8, 2): e(f"v_pk_fma_f32 {vr(vG+i,2)}, {vr(vG+i,2)}, {vr(vS+i,2)}, {vr(vX+i,2)}")
    d = 204 + 4 * nh
    for i in range(4): e(f"v_cvt_pk_bf16_f32 v{d+i}, v{vG+8*nh+2*i}, v{vG+8*nh+2*i+1}")
    for sw in ("v_permlane32_swap_b32", "v_permlane16_swap_b32"):
        for j in range(2): e(f"{sw} v{d+j}, v{d+2+j}")
    P.vm(f"buffer_store_dwordx4 {vr(d,4)}, v200, {srd(SOUT)}, s{sXF} offen offset:{nh*128}")


p_s1.check()
stamp()
for g in range(OWN, 8): load_piece(WS_PS, vr(PSR(g, 1), 4), g, 1, "psl")
finish(0)
finish(1)
if AMP:
    P.wait_all(); stamp()
    e(f"s_sub_u32 s{sST}, s{sST+2}, s{sST}")
    e(f"s_lshr_b32 s{sST}, s{sST}, 5" if AMP[3] else f"s_lshl_b32 s{sST}, s{sST}, {AMP[2]}")
    if "ampsel" in opt:
        e(f"s_lshr_b32 s{sT}, {opt['ampsel']}, s{sG}"); e(f"s_and_b32 s{sT}, s{sT}, 1"); e(f"s_mul_i32 s{sST}, s{sST}, s{sT}")
    e(f"s_memrealtime {sr(sST+2,2)}"); e("s_waitcnt lgkmcnt(0)")
    lab("L_amp")
    e(f"s_memrealtime {sr(sST+4,2)}"); e("s_waitcnt lgkmcnt(0)")
    e(f"s_sub_u32 s{sST+4}, s{sST+4}, s{sST+2}"); e(f"s_cmp_lt_u32 s{sST+4}, s{sST}"); e("s_cbranch_scc1 L_amp")
if STAMP:
    P.wait_all()
    stamp()
    e(f"s_lshl_b32 s{sT}, s2, 2"); e(f"s_add_u32 s{sT}, s{sT}, s{sW}"); e(f"s_lshl_b32 s{sT}, s{sT}, 8")
    e(f"s_add_u32 s{sT}, s{sT}, {WS_ST}"); e(f"v_lshrrev_b32 v0, 2, v{vBA}")
    P.vm(f"buffer_store_dword a254, v0, {srd(SWS)}, s{sT} offen")
e("s_endpgm")

lab("L_side")
NPP = O_("npp", 1)
for p in slow_paths:
    lab(f"L_slow_{p.name}")
    if NPP > 1 and p.name in ("s0", "s1"):
        regs = [f"v{216 + i}" for i in range(NPP)]
        ld = lambda i: e(p.loads[0].replace(f"v{vPOLL},", regs[i % NPP] + ","))
        for i in range(NPP - 1):
            ld(i); e(f"s_sleep {O_('pps', 5)}")
        lab(f"L_spin_{p.name}")
        for i in range(NPP):
            ld(i + NPP - 1); e(f"s_waitcnt vmcnt({NPP - 1})")
            e(p.tests[0].replace(f"v{vPOLL}", regs[i])); e(f"s_cbranch_vccz L_back_{p.name}")
        e(f"s_add_u32 s{sSPIN}, s{sSPIN}, 1"); e(f"s_cmp_gt_u32 s{sSPIN}, 0x200000")
        e(f"s_cbranch_scc0 L_spin_{p.name}"); e(f"s_branch L_back_{p.name}")
        continue
    e("s_sleep 1")
    for l in p.loads: e(l)
    e(f"s_add_u32 s{sSPIN}, s{sSPIN}, 1")
    e("s_waitcnt vmcnt(0)")
    for t in p.tests: e(t)
    e(f"s_cmp_gt_u32 s{sSPIN}, 0x200000"); e(f"s_cbranch_scc1 L_back_{p.name}")
    e(f"s_cbranch_vccnz L_slow_{p.name}")
    e(f"s_branch L_back_{p.name}")

lab("L_redo")
P.lq, P.vq = [], []
e(f"s_mov_b32 s{sOB}, 0")
for s in range(4): e(f"v_add_u32 v{KA(s)}, 49152, v{KA(s)}")
for qb in range(4): e(f"v_mov_b32 v{NM(qb)}, 0xff800000")


def redo_tile(kinds, zero):
    P.used = set()
    P.wait_all(); e("s_barrier")
    for kind, lds in kinds: flush(kv_dma(kind, 0, lds=lds, so=f"s{sCNT}"))
    P.wait_all(); e("s_barrier")
    mf = [m for m, _ in qk_mfmas(2, zero=zero)]
    for half in range(2):
        for f in range(8 * half, 8 * half + 8): P.puts(frag_reads(2, f))
        P.puts(mf[32 * half:32 * half + 32])


e(f"s_mov_b32 s{sCNT}, 0")
lab("L_rmax")
redo_tile([("K", 98304)], True)
for qb in range(4):
    regs = [S(1, kb, qb) + i for kb in range(4) for i in range(4)]
    for i in range(0, 16, 2): e(f"v_max3_f32 v{NM(qb)}, v{NM(qb)}, v{regs[i]}, v{regs[i+1]}")
e(f"s_add_u32 s{sCNT}, s{sCNT}, 16384"); e(f"s_cmp_lt_u32 s{sCNT}, 0x80000"); e("s_cbranch_scc1 L_rmax")
allreduce("v_max_f32", [NM(qb) for qb in range(4)], [NM(qb) + 1 for qb in range(4)])
for qb in range(4):
    for i in (1, 2, 3, 0): e(f"v_sub_f32 v{NM(qb)+i}, 0, v{NM(qb)}")
for i in list(range(128)) + list(range(192, 208)): e(f"v_accvgpr_write_b32 a{i}, 0")
e(f"s_mov_b32 s{sCNT}, 0")
lab("L_rpv")
redo_tile([("K", 98304), ("V", 114688)], False)
for half in range(2):
    ex, post = sm_stream(1, half)
    P.puts(ex); P.puts([x for p in post for x in p])
mf = [m for m, _ in pv_mfmas(3)]
for half in range(2):
    for f in range(16 + 8 * half, 24 + 8 * half): P.puts(frag_reads(3, f))
    cut = 32 if SUMEND == 1 else 34
    P.puts(mf[cut:] if half else mf[:cut])
e(f"s_add_u32 s{sCNT}, s{sCNT}, 16384"); e(f"s_cmp_lt_u32 s{sCNT}, 0x80000"); e("s_cbranch_scc1 L_rpv")
row_sums(); row_inverses(); P.wait(["rinv"])
e("s_branch L_att_done")
if HOP: P.raw(".p2align 12")
lab("L_odd")
P.L += odd_text
lab("L_end")
e("s_endpgm")
P.L += ['.section .rodata,"a"', ".p2align 6", f".amdhsa_kernel {NAME}",
        "  .amdhsa_next_free_vgpr 512", "  .amdhsa_next_free_sgpr 102", "  .amdhsa_accum_offset 256",
        "  .amdhsa_group_segment_fixed_size 0", "  .amdhsa_kernarg_size 104", "  .amdhsa_user_sgpr_count 2",
        "  .amdhsa_user_sgpr_kernarg_segment_ptr 1", "  .amdhsa_system_sgpr_workgroup_id_x 1",
        f"  .amdhsa_float_denorm_mode_32 {O_('dn', 3)}"] + ["  .amdhsa_ieee_mode 0"] * O_("ieee0", 0) + [".end_amdhsa_kernel"]
lines = "\n".join(P.L).split("\n")
for key, pats in (("kvf", (srd(SK), srd(SV))), ("wf", tuple(srd(x) for x in (SWQ, SWO, SW1, SW2, SW3, SW4)))):
    if opt.get(key):
        lines = [l.replace(" lds", " " + opt[key].replace("+", " ") + " lds") if l.endswith(" lds") and any(x in l for x in pats) else l
                 for l in lines]
if opt.get("xf"): lines = [l + " " + opt["xf"] if "load_dwordx4 v[" in l and (srd(SX) in l or "s[64:65]" in l) else l for l in lines]
ABL = opt.get("abl", "")
if ABL:
    i0 = next(i for i, l in enumerate(lines) if "output projection" in l); i1 = lines.index("L_side:")
    j0 = max(i for i in range(i0, i1) if MF in lines[i])
    keep = []
    for i, l in enumerate(lines):
        if i0 < i < i1:
            if "p" in ABL and "s_cbranch_vccnz L_slow_s" in l: continue
            if "w" in ABL and i > j0 and "vmcnt" in l and "v_dot2" not in lines[i + 1]: continue
            if "l" in ABL and "buffer_load_dwordx4" in l and "sc1" in l: continue
            if "s" in ABL and "buffer_store_dwordx4" in l and "sc1" in l: continue
        keep.append(l)
    lines = keep
if opt.get("tcf"): lines = [l + " " + opt["tcf"] if "_load_dword a255" in l and "sc1" not in l and ", off" not in l else l for l in lines]
lines, added = fix_hazards(lines)
nhop = 0
if HOP: lines, nhop = add_page_hops(lines, sW)
lines = [l for l in lines if "@hop" not in l]
if O_("short", 1): lines = compress(lines)
text = "\n".join(lines) + "\n"
open(OUT_PATH, "w").write(text)
print(f"{OUT_PATH}: {len(lines)} lines, {len(text)} bytes, {added} wait states padded, {nstamp[0]} stamps, {nhop} hops", file=sys.stderr)
```

```python
import math
import struct
import sys
from asmlib6 import *

OUT_PATH = sys.argv[1]
opt = dict(a.split("=") for a in sys.argv[2:])
O_ = lambda k, d: int(opt.get(k, d))
STAMP = O_("stamp", 0)
SSET = opt.get("sset", "")
FORCE_REDO = O_("redo", 0)
QPERM = O_("qperm", 1)
PA = O_("pa", 1)
OB = O_("ob", 0)
sOB = 100
OWN = O_("own", 1)
sPO, vPO, sPX = (3, 101), 218, 65
OSH = O_("osh", 0)
XREG = O_("xreg", 1)
AHEAD = O_("ahead", 10)
AMP = [int(x) for x in opt["amp"].split(",")] if "amp" in opt else None

NAME = "recurrent_scan__gqa_block_cached__mixer_s_mlp__prompt_kernel"
MF = "v_mfma_f32_16x16x32_bf16"
f2u = lambda x: "0x%08x" % struct.unpack("<I", struct.pack("<f", x))[0]
LOG2E = math.log2(math.e)
QSCALE = LOG2E / math.sqrt(128.0)
GC1 = -2.0 * math.sqrt(2.0 / math.pi) * LOG2E
GC2 = GC1 * 0.044715
EPS = 1e-5
GA_ = (-GC2) ** (1.0 / 3.0)
GK = -GC1 / GA_

SX, SK, SV, SWS, SWQ, SWO, SW1, SW2, SW3, SW4, SOUT, SDBG = range(4, 52, 4)
sG, sM, sW = 52, 53, 54
sT = 55
sW1K, sW4K, sRING, sSO = 60, 61, 62, 63
sSF, sCNT, sSPIN, sHO, sPP, sPC, sFL, sF0, sF1, sSTP, sSTC = range(64, 75)
sLO, sHI, sONE2, sC1, sC2, sNL2E, sF2, sMSK, sKS, sF3, sTB, sSTF, sXF, sRS, sW3B = range(75, 90)
sST = 92
srd = lambda b: sr(b, 4)

WS_H, WS_X1, WS_PS, WS_PH, WS_FL, WS_SS, WS_ST = 0, 0x200000, 0x400000, 0x1400000, 0x2400000, 0x2500000, 0x4000000
PLANE = 131072

vBA, vTOK, vNMEAN, vRSTD, vLANE, vSTAMP, vCODE, vAS, vDW2 = 255, 254, 253, 252, 251, 250, 248, 244, 243
T = 226
vAA, vAA2 = T, T + 4
vBX, vWA, vSC1, vDWQ, vDW1 = T + 8, T + 9, T + 12, T + 14, T + 15
vPA, vPOLL, vONE, vDW4, vDWO = T + 16, T + 15, T + 14, T + 13, T + 12
vTC = T + 10
XR = 128
G12 = 192
S = lambda buf, kb, qb: buf * 64 + qb * 16 + kb * 4
PR = lambda buf, ks, qb: buf * 64 + qb * 16 + ks * 4
vIDX = vSTAMP
NIT = 132
Q = lambda qb, s: 128 + (qb * 4 + s) * 4
NM = lambda qb: 192 + 4 * qb
KA = lambda s: 208 + s
VA = lambda db: 212 + db
KG = lambda i: 220 + i
VG = lambda i: 224 + (i & 1)
vR = NM(0)
O = lambda db, qb: (db * 4 + qb) * 4
FR = lambda f: 128 + (f % 8) * 4
HB = lambda ks: 160 + (ks % 8) * 4
LACC = lambda qb: 192 + 4 * qb
aONES, aG2, aXN = 208, 212, 244
GA = lambda i: 228 + (i % 4) * 4
AF = lambda f: 128 + (f % 8) * 4
PHA = lambda k: (160, 212)[k // 8] + (k % 8) * 4
T0 = 22
RING, VOFF = 65536, 65536

P = Prog()
e, lab, cap = P.e, P.lab, P.capture
slow_paths = []
nstamp = [0]


JIT = O_("jitter", 0)
njit = [0]


def jitter():
    i = njit[0]; njit[0] += 1
    e(f"s_memrealtime {sr(96,2)}"); P.wait_all(vm=False)
    e(f"s_lshr_b32 s96, s96, 14"); e(f"s_lshl_b32 s97, s2, 2" if JIT & 1 else "s_mov_b32 s97, s2")
    if JIT & 1: e(f"s_add_u32 s97, s97, s{sW}")
    e(f"s_add_u32 s96, s96, s97"); e(f"s_add_u32 s96, s96, {i * 7919 + 13}"); e("s_mul_i32 s96, s96, 0x9e3779b1")
    e("s_mov_b32 s98, s96")
    e(f"s_lshr_b32 s96, s96, {32 - (JIT >> 1)}")
    lab(f"L_jit{i}")
    e("s_sleep 8"); e("s_sub_u32 s96, s96, 1"); e(f"s_cbranch_scc0 L_jit{i}")


def jitter_item():
    i = njit[0]; njit[0] += 1
    return It(f"s_mul_i32 s98, s98, 0x41c64e6d\n    s_add_u32 s98, s98, 12345\n    s_lshr_b32 s99, s98, 27\n"
              f"    s_sub_u32 s99, s99, 24\n    s_cbranch_scc1 L_jx{i}\nL_jw{i}:\n    s_sleep {O_('jit2', 0)}\n"
              f"    s_sub_u32 s99, s99, 1\n    s_cbranch_scc0 L_jw{i}\nL_jx{i}:", "s")


def stamp(level=1):
    if JIT and level == 1: jitter()
    if AMP and level == 1:
        i = nstamp[0]; nstamp[0] += 1
        if i in AMP[:2]:
            e(f"{'s_memtime' if AMP[3] else 's_memrealtime'} {sr(sST + 2*AMP.index(i),2)}"); P.wait_all(vm=False)
        return
    if STAMP < level or (SSET and level != 0):
        return
    i = nstamp[0]; nstamp[0] += 1
    e(f"s_memtime {sr(sST,2)}"); e(f"s_memrealtime {sr(sST+2,2)}")
    P.wait_all(vm=False)
    e(f"v_accvgpr_read_b32 v{vSTAMP}, a254")
    e(f"v_writelane_b32 v{vSTAMP}, s{sST}, {2*i}")
    e(f"v_writelane_b32 v{vSTAMP}, s{sST+2}, {2*i+1}")
    e(f"v_accvgpr_write_b32 a254, v{vSTAMP}"); e(f"v_accvgpr_read_b32 v{vSTAMP}, a253")


def stamp_item():
    i = nstamp[0]; nstamp[0] += 1
    return It(f"s_memtime {sr(sST,2)}\n    s_memrealtime {sr(sST+2,2)}\n    s_waitcnt lgkmcnt(0)\n"
              f"    v_accvgpr_read_b32 v{vSTAMP}, a254\n"
              f"    v_writelane_b32 v{vSTAMP}, s{sST}, {2*i}\n    v_writelane_b32 v{vSTAMP}, s{sST+2}, {2*i+1}\n"
              f"    v_accvgpr_write_b32 a254, v{vSTAMP}\n    v_accvgpr_read_b32 v{vSTAMP}, a253", "s")


def mk_srd(d, p, size):
    e(f"s_mov_b32 s{d}, s{p}"); e(f"s_mov_b32 s{d+1}, s{p+1}"); e(f"s_mov_b32 s{d+2}, {size}"); e(f"s_mov_b32 s{d+3}, 0x20000")


def sum_terms(dst, *terms):
    first = True
    for t in terms:
        if isinstance(t, int):
            e(f"s_add_u32 s{dst}, s{dst}, {t}"); continue
        r, k = t
        if k == 0:
            e(f"s_mov_b32 s{dst}, 0"); first = False; continue
        d = dst if first else sT + 4
        e(f"s_lshl_b32 s{d}, s{r}, {k.bit_length()-1}" if k & (k - 1) == 0 else f"s_mul_i32 s{d}, s{r}, {k}")
        if not first: e(f"s_add_u32 s{dst}, s{dst}, s{d}")
        first = False


def allreduce(op, regs, tmps, k=None):
    for sw in ("v_permlane32_swap_b32", "v_permlane16_swap_b32"):
        for r, t in zip(regs, tmps): e(f"v_mov_b32 v{t}, v{r}")
        for r, t in zip(regs, tmps): e(f"{sw} v{r}, v{t}", k=k)
        for r, t in zip(regs, tmps): e(f"{op} v{r}, v{r}, v{t}")


def masked(mask, txt, tag=None, lds=False):
    (P.lds if lds else P.vm)(f"s_mov_b64 exec, {mask}\n    {txt}\n    s_mov_b64 exec, -1", tag)


class Poll:
    def __init__(self, name, loads, tests):
        self.name, self.loads, self.tests = name, loads, tests
        slow_paths.append(self)

    def issue(self):
        for l in self.loads: P.vm(l, self.name)

    def check(self):
        for i, t in enumerate(self.tests): e(t, need=[self.name] if i == 0 else ())
        e(f"s_cbranch_vccnz L_slow_{self.name}\nL_back_{self.name}:", k="v")


def flag_poll(name, s_rd, soff, target):
    return Poll(name, [f"buffer_load_dword v{vPOLL}, v{vPA}, {srd(s_rd)}, {soff} offen sc1"],
                [f"v_cmp_gt_u32 vcc, {target}, v{vPOLL}"])


def set_flags(stage, nlanes, need, val=1):
    e(f"v_mov_b32 v{vONE}, {val}")
    e(f"s_add_u32 s{sSF}, s{sFL}, {stage * 1024}")
    P.wait(need)
    masked((1 << nlanes) - 1, f"buffer_store_dword v{vONE}, v{vLANE}, {srd(SWS)}, s{sSF} offen sc1")


def interleave(code, side, every):
    side = list(side)
    for k, it in enumerate(code):
        if side and k % every == 0: P.puts(side.pop(0))
        P.put(it)
    for x in side: P.puts(x)


def gelu(base, n, tmp, dst, first):
    pairs = range(0, n, 2)
    if "g" in opt.get("cut", ""):
        for i in pairs: e(f"v_cvt_pk_bf16_f32 v{dst(i//2)}, v{base+i}, v{base+i+1}")
        return
    if first: e(f"v_mov_b32 v{vTC}, s{sC1}")
    for i in pairs: e(f"v_pk_fma_f32 {vr(tmp+i,2)}, {vr(base+i,2)}, {vr(base+i,2)}, {vr(vTC,2)} op_sel_hi:[1,1,0]")
    for i in pairs: e(f"v_pk_mul_f32 {vr(tmp+i,2)}, {vr(tmp+i,2)}, {vr(base+i,2)} neg_lo:[0,1] neg_hi:[0,1]")
    for i in range(n): e(f"v_exp_f32 v{tmp+i}, v{tmp+i}")
    for i in pairs: e(f"v_pk_add_f32 {vr(tmp+i,2)}, {vr(tmp+i,2)}, 1.0 op_sel_hi:[1,0]")
    for i in range(n): e(f"v_rcp_f32 v{tmp+i}, v{tmp+i}")
    for i in pairs: e(f"v_pk_mul_f32 {vr(tmp+i,2)}, {vr(tmp+i,2)}, {vr(base+i,2)}")
    for i in pairs: e(f"v_cvt_pk_bf16_f32 v{dst(i//2)}, v{tmp+i}, v{tmp+i+1}")


class Tile:
    def __init__(self, s_rd, voff, base, stride, perm, slot, tag, rows=64, kp=0, nh=0, half=32):
        self.__dict__.update(locals())

    def dma(self):
        out = []
        for i in range(self.rows // 8):
            row = ((0, 16, 4, 20)[i & 3] if self.perm else 8 * (i & 3)) + self.half * (i >> 2)
            so = self.base + row * self.stride - (i & 3) * 1024
            pre = [It(f"s_add_u32 m0, s{sRING}, {self.slot * 32768 + (i >> 2) * 4096}", "s")] if i % 4 == 0 else []
            out.append((pre + [It(f"s_mov_b32 s{sSO}, {so}", "s")],
                        [It(f"buffer_load_dwordx4 v{self.voff}, {srd(self.s_rd)}, s{sSO} offen "
                            f"offset:{(i & 3) * 1024} lds", "g", self.tag)]))
        return out


def place(add, g, grp, prev, avoid=()):
    pre, its = grp
    c = [h for h in range(max(prev + 1, 0), g) if h not in avoid][-len(pre):] if pre else []
    for k, it in enumerate(pre): add(c[k] if len(c) == len(pre) else max(g - len(pre) + k, prev + 1, 0), it)
    for it in its: add(g, it)


def dma_voff(dst, stride, perm, s_base, a):
    b = a + 1
    e(f"v_lshrrev_b32 v{a}, 10, v{vLANE}")
    e(f"v_bfe_u32 v{b}, v{vBA}, 4, 3")
    e(f"v_and_b32 v{dst}, 6, v{a}"); e(f"v_xor_b32 v{b}, v{b}, v{dst}")
    if perm:
        e(f"v_and_b32 v{dst}, 4, v{a}"); e(f"v_add_u32 v{a}, v{a}, v{dst}")
    e(f"v_mul_u32_u24 v{a}, {stride}, v{a}")
    e(f"v_lshl_add_u32 v{a}, v{b}, 4, v{a}")
    e(f"v_add_u32 v{dst}, {s_base}, v{a}")


def a_reads(t, ti, nb):
    base = (vAA2 if t.slot == 2 else vAA) + nb
    off = (t.slot % 2) * 32768 if t.slot < 2 else 0
    return [It(f"ds_read_b64_tr_b16 {ar(AF(nb*2+ks) + 2*h, 2)}, v{base} offset:{off + ks*4096 + h*2048}", "l",
               ("A", t.tag, nb), need=[t.tag]) for ks in range(t.rows // 32) for h in range(2)]


def gemm_pre(tiles, i0):
    P.puts(a_reads(tiles[i0], i0, 0))


def gemm(tiles, i0, n, acc, pending, bf, breg=vBA, extra=None, fill=None, over=0, opening=None, dma0=0, btr=False):
    bf = [x if isinstance(x, tuple) else (ar, x) for x in bf]
    BF = lambda s, ks, tb, o=0, w=4: bf[grp[s] % len(bf)][0](bf[grp[s] % len(bf)][1] + (ks * 4 + tb) * 4 + o, w)
    ms, gaps, start, grp, held, fresh = [], {}, [], [], {}, []
    seen = set()
    for s, ti in enumerate(range(i0, i0 + n)):
        t = tiles[ti]
        fresh.append(t.kp not in held)
        if fresh[s]:
            k = max(grp, default=-1) + 1
            while s and k % len(bf) == grp[s - 1] % len(bf): k += 1
            held = {kp: g for kp, g in held.items() if g % len(bf) != k % len(bf)}
            held[t.kp] = k
        grp.append(held[t.kp])
        start.append(len(ms))
        nks = t.rows // 32
        for nb in range(4):
            for i, tb in enumerate(range(3, -1, -1) if nb & 1 and O_("sng", 1) else range(4)):
                for ks in (range(nks) if not i & 1 else range(nks - 1, -1, -1)):
                    d = vr(acc(t.nh, nb, tb), 4)
                    c = d if (t.nh, nb, tb) in seen else "0"
                    seen.add((t.nh, nb, tb))
                    ms.append(It(f"{MF} {d}, {ar(AF(nb*2+ks),4)}, {BF(s,ks,tb)}, {c}", "m",
                                 need=[("A", t.tag, nb), ("B", tiles[i0].tag, grp[s], tb)]))
    start.append(len(ms))

    def b_reads(s):
        t = tiles[i0 + s]
        if btr:
            return [It(f"ds_read_b64_tr_b16 {BF(s,ks,tb,2*h,2)}, v{breg+tb} offset:{t.kp*8192 + ks*4096 + h*2048}",
                       "l", ("B", tiles[i0].tag, grp[s], tb)) for tb in range(4) for ks in range(2) for h in range(2)]
        return [It(f"ds_read_b128 {BF(s,ks,tb)}, v{breg} offset:{t.kp*8192 + ks*4096 + tb*1024}", "l",
                   ("B", tiles[i0].tag, grp[s], tb)) for tb in range(4) for ks in range(t.rows // 32)]

    add = lambda g, it: gaps.setdefault(g, []).append(it)
    pre = b_reads(0)
    release = {}
    for s in range(n):
        ti = i0 + s; t = tiles[ti]
        per = (start[s + 1] - start[s]) // 4
        for nb in range(4):
            if s == 0 and nb == 0: continue
            rd = a_reads(t, ti, nb)
            for k, it in enumerate(rd):
                g = start[s] + per * nb - 6 - 2 * (len(rd) - 1 - k)
                if g < 0: pre.append(it)
                else: add(g, it)
        if ti + 3 < len(tiles) and tiles[ti + 3]: release[start[s] + 3 * per] = tiles[ti + 3]
        if s + 1 < n and fresh[s + 1]:
            s0 = s - 1 if s and not fresh[s] and grp[s - 1] % len(bf) != grp[s + 1] % len(bf) else s
            rd = b_reads(s + 1)
            cand = [g for g in range(start[s0], start[s + 1] - 6) if g % 4 == 3]
            if btr: cand = sorted(cand * 2)
            if len(cand) < len(rd): cand = sorted(cand + [start[s0] + 2 * k for k in range(len(rd) - len(cand))])
            step = len(cand) / len(rd)
            for k, it in enumerate(rd): add(cand[int(k * step)], it)
    if opening == "get": return a_reads(tiles[i0], i0, 0) + pre
    if opening == "done": pre = []
    prev = dma0 - 1
    for g in range(dma0, len(ms)):
        if g in release: pending += release[g].dma()
        nxt = min([r for r in release if r > g], default=len(ms) + 24)
        if pending and (g % 4 == 1 or (g % 4 == 3 and len(pending) > (nxt - g + 1) // 4)):
            place(add, g, pending.pop(0), prev); prev = g
    for g, its in (extra or {}).items():
        for it in its: add(g, it)
    for g in start[:-1]: add(g + 10, hop())
    if O_("jit2", 0):
        for g in start[:-1]: add(g + 4, jitter_item())
    if SSET == {id(qt): "q", id(ot): "o"}.get(id(tiles), "mlp"):
        for g in start[:-1] + [len(ms) - 1]: add(g, stamp_item())
    P.puts(pre)
    P.run_gaps(ms, gaps, fill, gmin=4, over=over)


def flush(pending):
    while pending:
        a, b = pending.pop(0)
        P.puts(a + b)


def shared_ops(kss, koff, acc, zero, afr, breg, bneed, name, i0=0):
    out = []
    for nb in range(4):
        for ks in kss:
            i = i0 + len(out)
            d = acc(nb)
            out.append((It(f"{MF} {d}, {ar(afr(i),4)}, {breg(ks)}, {0 if zero and not ks else d}", "m",
                           need=[(name, i)] + list(bneed(ks))),
                        [It(f"ds_read_b64_tr_b16 {ar(afr(i)+2*h,2)}, v{vAS+nb} offset:{(ks-koff)*4096 + h*2048}", "l",
                            (name, i)) for h in range(2)]))
    return out


def pack(acc, nh, tb, s, second=False, guard=False):
    a, b = acc(nh, 2 * s, tb), acc(nh, 2 * s + 1, tb)
    order = list(enumerate((a, a + 2, b, b + 2)))
    d = b if second else a
    for j, r in reversed(order) if second else order: e(f"v_cvt_pk_bf16_f32 v{d+j}, v{r}, v{r+1}")
    if guard:
        for j in range(4): e(f"v_min_u32 v{d+j}, -2, v{d+j}")


def store_piece(src, ws_base, nh, tb, s, tag):
    lane = vPO + (tb >> 1) if OWN and ws_base == WS_PS else vBA
    e(f"s_add_u32 s{sSF}, s{sPP}, {ws_base + (tb >> 1)*65536 + ((tb & 1) + 2*s)*2048}")
    P.vm(f"buffer_store_dwordx4 {src}, v{lane}, {srd(SWS)}, s{sSF} offen offset:{nh*1024} sc1", tag)


def load_piece(ws_base, dst, g, nh, tag):
    if OWN and ws_base == WS_PS: e(f"s_xor_b32 s{sSF}, s{sPX}, {g*8192}")
    else: e(f"s_add_u32 s{sSF}, s{sPC}, {ws_base + g*8192}")
    P.vm(f"buffer_load_dwordx4 {dst}, v{vBA}, {srd(SWS)}, s{sSF} offen offset:{nh*1024} sc1", (tag, g, nh))


def add_piece(dst, reg, first, need):
    for j in range(4):
        for h, sel in enumerate((sLO, sHI)):
            d = dst + 2 * j + h
            e(f"v_dot2_f32_bf16 v{d}, v{reg+j}, s{sel}, {0 if first else 'v%d' % d}", need=need)


def frag_reads(t, f, tail=False):
    if f < 16:
        kb, s = f // 4, f % 4
        off = ((t + 1) % 4) * 16384 + kb * 4096
        return [It(f"ds_read_b128 {ar(FR(f),4)}, v{KA(s)} offset:{off}", "l", ("F", t, f))]
    db, ks = ((f - 16) // 2, (f - 16) % 2) if not tail else ((f - 16) % 8, (f - 16) // 8)
    off = (t % 4) * 16384 + ks * 8192
    return [It(f"ds_read_b64_tr_b16 {ar(FR(f)+2*h,2)}, v{VA(db)} offset:{off + 4096*h}", "l", ("F", t, f))
            for h in range(2)]


def qk_mfmas(t, zero=False):
    out = []
    for kb in range(4):
        for i, qb in enumerate(range(3, -1, -1) if kb & 1 and O_("snk", 1) else range(4)):
            for n, s in enumerate(range(4) if not (i & 1 and O_("snq", 1)) else range(3, -1, -1)):
                d = vr(S((t + 1) & 1, kb, qb), 4)
                c = d if n else ("0" if zero else vr(NM(qb), 4))
                out.append((It(f"{MF} {d}, {ar(FR(kb*4+s),4)}, {vr(Q(qb,s),4)}, {c}", "m",
                               need=[("F", t, kb * 4 + k) for k in range(4)]), kb * 4 + s))
    return out


def pv_one(t, db, qb, ks, f, need, zero=False):
    o = ar(O(db, qb), 4)
    ab = [ar(FR(f), 4), vr(PR(t & 1, ks, qb), 4)][::-1 if PA else 1]
    return (It(f"{MF} {o}, {ab[0]}, {ab[1]}, {(ar(GA(0), 4) if OB else 0) if zero else o}", "m", need=need), f)


SUMEND = O_("sumend", 1)


def sum_one(t, qb):
    return (It(f"v_smfmac_f32_16x16x64_bf16 {ar(LACC(qb),4)}, {ar(aONES,4)}, {vr(PR(t&1,0,qb),8)}, v{vIDX}", "m"), None)


def pv_mfmas(t, zero=False):
    out = []
    if O_("pv22", 0):
        for dp in range(4):
            k = 0
            for i, qb in enumerate(range(3, -1, -1) if dp & 1 else range(4)):
                for db in ((2 * dp, 2 * dp + 1) if not i & 1 else (2 * dp + 1, 2 * dp)):
                    need = [("F", t, 16 + db * 2), ("F", t, 17 + db * 2)]
                    for n, ks in enumerate(range(2) if not k & 1 else range(1, -1, -1)):
                        out.append(pv_one(t, db, qb, ks, 16 + db * 2 + ks, need, zero and not n))
                    k += 1
        return out + [sum_one(t, qb) for qb in range(4)]
    for db in range(8):
        need = [("F", t, 16 + db * 2), ("F", t, 17 + db * 2)]
        for i, qb in enumerate(range(3, -1, -1) if db & 1 and O_("snd", 1) else range(4)):
            for n, ks in enumerate(range(2) if not i & 1 else range(1, -1, -1)):
                out.append(pv_one(t, db, qb, ks, 16 + db * 2 + ks, need, zero and not n))
        if db % 2 == 0 and not SUMEND: out.append(sum_one(t, db // 2))
        if SUMEND == 2 and db in (3, 7): out += [sum_one(t, db // 2 - 1), sum_one(t, db // 2)]
    return out + ([sum_one(t, qb) for qb in range(4)] if SUMEND == 1 else [])


def pv_mfmas_tail(t):
    out = []
    for ks in range(2):
        if ks: out += [sum_one(t, qb) for qb in range(4)]
        for db in range(8):
            f = 16 + ks * 8 + db
            out += [pv_one(t, db, qb, ks, f, [("F", t, f)]) for qb in (range(3, -1, -1) if db & 1 else range(4))]
    return out


def sm_stream(buf, half):
    ex, post = [], []
    for qb in range(4):
        b, d = S(buf, 2 * half, qb), PR(buf, half, qb)
        for j in range(8):
            ex.append(It(f"v_exp_f32 v{b+j}, v{b+j}", "x"))
            post.append([It(f"v_cvt_pk_bf16_f32 v{d + j//2}, v{b+j-1}, v{b+j}", "v")] if j & 1 else [])
    return ex, post


def kv_dma(kind, tile, lds=None, so=None):
    reg, s_rd, base = (KG, SK, 0) if kind == "K" else (VG, SV, VOFF)
    lds = base + (tile % 4) * 16384 if lds is None else lds
    out = []
    for i in range(4):
        pre = [It(f"s_add_u32 m0, s{sW4K}, {lds}", "s"),
               It(f"s_mov_b32 s{sSO}, {tile * 16384 if so is None else so}", "s")] if i == 0 else []
        out.append((pre, [It(f"buffer_load_dwordx4 v{reg(i)}, {srd(s_rd)}, s{sSO} offen offset:{i*1024} lds",
                             "g", (kind, tile))]))
    return out


issued = set()
CLUSTER = O_("cluster", 1)
OVER = [int(x) for x in opt.get("overit", "3,9,13").split(",")]
WINS = [int(x) for x in opt.get("wins", ("2,18,34,50,75,92,109,124", "2,18,34,50,74,90,106,122", "2,18,34,50,74,90,108,124")[SUMEND]).split(",")]
WPAT = [int(x) for x in opt.get("wpat", "1").split(",")]


def attn_iter(t, groups, fill, endwait=(), extra=None, ins=None):
    end = T0 - 1 if t < T0 else 31
    last = t == end
    mf = pv_mfmas_tail(t) if last else qk_mfmas(t) + pv_mfmas(t, zero=t == 0)
    ms = [m for m, _ in mf]
    n = len(ms)
    first_use, last_use = {}, {}
    for i, (_, f) in enumerate(mf):
        if f is not None:
            first_use.setdefault(f, i); last_use[f] = i
    reads = []
    for f in sorted(first_use):
        if (t, f) in issued: continue
        reads += [(first_use[f] - AHEAD, last_use.get(f - 8, -1), it) for it in frag_reads(t, f, last)]
    nxt_need = ()
    if t < end - 1:
        for f in range(4):
            reads += [(n + f - AHEAD, last_use[24 + f], it) for it in frag_reads(t + 1, f)]
            issued.add((t + 1, f))
        nxt_need = [("F", t + 1, f) for f in range(4)]
    elif t == end - 1:
        for f in range(16, 19):
            reads += [(n + 4 * (f - 16) - AHEAD, last_use[8 + f], it) for it in frag_reads(end, f, True)]
            issued.add((end, f))
        nxt_need = [("F", end, 16)]
    gaps = {}
    add = lambda g, it: gaps.setdefault(g, []).append(it)
    exg = {}
    wins = [] if last or not CLUSTER else WINS[:min(len(WINS), -(-len(groups) // len(WPAT)))]
    quiet = {w + k for w in wins for k in range(WPAT[-1] + 1)}
    dma_gaps = sorted(w + k for w in wins for k in WPAT)
    narrow = {g for g, m in enumerate(ms) if m.t.startswith("v_smfmac")}
    if last:
        ex, post = sm_stream(t & 1, 1)
        for i in range(32): exg[i] = (ex[i], post[i])
    else:
        for (ex, post), lo, hi in ((sm_stream(t & 1, 1), 0, 63), (sm_stream((t + 1) & 1, 0), 64, n - 1)):
            c = [g for g in range(lo, hi) if g not in quiet and not (SUMEND and g in narrow)]
            for i in range(32):
                g = c[(i * (len(c) + 1)) // 32]
                while g in narrow or g in exg or g in quiet: g += 1
                exg[g] = (ex[i], post[i])
    for g, (x, post) in exg.items():
        add(g, x)
    for g, (x, post) in exg.items():
        h = g + 1
        while not last and (h in exg or h in quiet): h += 1
        for it in post: add(h, it)
    room = lambda g: len(gaps.get(g, [])) < (1 if g in narrow else 2)
    free = set(range(n)) if last else {g for g in range(n) if g not in exg and g not in dma_gaps and room(g)}
    prev, pre, avail = n, [], sorted(free)
    for dl, early, it in reversed(reads):
        c = [g for g in free if g <= dl and g < prev]
        if c and max(c) >= early:
            prev = max(c); free.discard(prev); add(prev, it)
        elif early < 0:
            prev = -1; pre.insert(0, it)
        else:
            c = [g for g in avail if early <= g <= dl + AHEAD - 6]
            g = min([g for g in c if room(g)] or c)
            free.discard(g); gaps.setdefault(g, []).insert(0, it)
    if groups:
        def spaced(c):
            out = []
            for g in c:
                if not out or g - out[-1] >= 2: out.append(g)
            return out
        light = spaced([g for g in sorted(free) if 1 <= g < n - 6 and g not in gaps])
        fr = light if len(light) >= len(groups) - len(dma_gaps) + 4 else spaced([g for g in sorted(free) if 1 <= g < n - 6])
        rest = len(groups) - len(dma_gaps)
        if rest > 0:
            fr = [g for g in fr if not {g - 1, g, g + 1} & set(dma_gaps)]
            if len(fr) < rest: fr = spaced([g for g in range(1, n - 6) if g not in exg and not {g - 1, g, g + 1} & set(dma_gaps)])
            assert len(fr) >= rest, (t, len(fr), len(groups))
            dma_gaps = sorted(dma_gaps + [fr[int(k * len(fr) / rest)] for k in range(rest)])
        for k, grp in enumerate(groups): place(add, dma_gaps[k], grp, dma_gaps[k - 1] if k else -1, {u - 1 for u in first_use.values()})
    if not last:
        add(n - 3, It(None, "s", need=[("K", min(t + 3, end)), ("V", end if t == end - 2 else t + 1)] + list(endwait)))
        add(n - 2, It("s_barrier", "s"))
        add(n - 4, hop())
    for g, its in (extra or {}).items():
        for it in its: add(g, it)
    if SSET == "attn": add(0, stamp_item())
    if O_("jit2", 0):
        for g in (1, n // 2, n - 12): add(g, jitter_item())
    if ins:
        for k in range(3):
            for h, it in enumerate(ins[k][1]): add(1 + 4 * k + 2 * h, it)
        pos = {(13 + (k * (n - 24)) // (len(ins) - 1)) | 1: k for k in range(len(ins))}
        assert len(pos) == len(ins)
        ms2, gaps2, old, quiet = [], {}, quiet, set()
        for g, m in enumerate(ms):
            if g in old: quiet.add(len(ms2))
            gaps2[len(ms2)] = gaps.get(g, []); ms2.append(m)
            if g in pos:
                k = pos[g]
                gaps2[len(ms2)] = list(ins[k + 3][1]) if k + 3 < len(ins) else []
                ms2.append(ins[k][0])
        ms, gaps = ms2, gaps2
    P.puts(pre)
    P.run_gaps(ms, gaps, fill, next_need=nxt_need, pos=t, gmin=4, quiet=quiet, over=4 if t in OVER else 0)


OVERVIEW = """
One launch, 256 workgroups (one per CU) of 4 waves. Workgroup (g, m) = KV group g, tokens 64m..64m+63.
Order: LN(x) -> LN(LN(x)) @ w1 -> Q projection -> key tiles 0..21 -> channel MLP -> key tiles 22..31
       -> output projection -> combine. The w2 GEMM and the LN statistics of x1 ride in the attention slack.
Matrix work uses 16x16x32 bf16 MFMA with fp32 accumulation; weights and K/V reach LDS by DMA.
Softmax: every row is shifted by (maximum over its first 16 keys + 25.4) through the MFMA C operand, so the row
  sum cannot underflow. If any row sum of the workgroup is not <= 2^64, L_redo computes the true row maxima and
  repeats the pass with them.
Hand-offs between the 8 workgroups of a token block use write-through stores, sc1 loads and flag words in d_ws;
  each wave resets its words before its workgroup counts itself into d_debug, and peers read them only after that.
L_pad_* / L_hop*: the waves visit upcoming code pages with EXEC = 0 and return at once (instruction prefetch).
"""
hdr = [l.rstrip("\n") for l in open("header.txt")]
hdr = hdr[:[i for i, l in enumerate(hdr) if "@launch" in l][0]]
P.L += hdr + ["; @launch grid=(256,1,1) block=(256,1,1) lds=163840",
              '.amdgcn_target "amdgcn-amd-amdhsa--gfx950"'] + ["; " + l for l in OVERVIEW.strip().split("\n")] + [
              ".text", f".globl {NAME}", ".p2align 8",
              f".type {NAME},@function"]
lab(NAME)
e("s_cmp_lt_u32 s2, 256"); e("s_cbranch_scc1 L_go"); e("s_endpgm")
lab("L_go")
if AMP and AMP[0] < 0: e(f"s_memrealtime {sr(sST,2)}")
e("s_load_dwordx16 s[64:79], s[0:1], 0"); e("s_load_dwordx8 s[80:87], s[0:1], 64"); e("s_load_dwordx2 s[88:89], s[0:1], 96")
PAIR = O_("pair", 0)
NS = 16 if PAIR else 32
sMI, sWV = 90, 91
if PAIR:
    e(f"s_and_b32 s{sG}, s2, 3"); e(f"s_and_b32 s{sT}, s2, 2"); e(f"s_add_u32 s{sG}, s{sG}, s{sT}")
    e(f"s_bfe_u32 s{sT}, s2, 0x10003"); e(f"s_lshl1_add_u32 s{sG}, s{sT}, s{sG}")
    e(f"s_lshr_b32 s{sMI}, s2, 4"); e(f"s_and_b32 s{sM}, s2, 4"); e(f"s_lshl_b32 s{sM}, s{sM}, 2"); e(f"s_add_u32 s{sM}, s{sM}, s{sMI}")
else:
    e(f"s_and_b32 s{sG}, s2, 7"); e(f"s_lshr_b32 s{sM}, s2, 3"); e(f"s_lshr_b32 s{sMI}, s2, 3")
e("v_lshrrev_b32 v1, 6, v0"); e("v_and_b32 v0, 63, v0"); e(f"v_readfirstlane_b32 s{sW}, v1")
e(f"v_lshlrev_b32 v{vBA}, 4, v0"); e(f"v_lshlrev_b32 v{vLANE}, 7, v0")
e(f"s_getpc_b64 {sr(sT+1,2)}")
lab("L_pc")
NCL = 10
e(f"s_lshr_b32 s{sT+3}, s2, 3")
sum_terms(sT, (sT + 3, 512), (sW, 128))
e(f"v_min_u32 v6, {NCL-1}, v0"); e(f"v_lshl_add_u32 v6, v6, 14, s{sT}"); e("v_min_u32 v6, L_end-L_pc, v6")
e(f"v_mov_b32 v{vCODE+1}, s{sT+2}"); e(f"v_add_co_u32 v{vCODE}, vcc, s{sT+1}, v6")
e(f"v_addc_co_u32 v{vCODE+1}, vcc, 0, v{vCODE+1}, vcc")
code_touch = lambda: P.vm(f"global_load_dword a255, {vr(vCODE,2)}, off")
masked(O_("cm", 15), f"global_load_dword a255, {vr(vCODE,2)}, off")
sum_terms(sWV, (sMI, 4), (sW, 1))


def touch_off(d, nrows, lines, stride, base_terms, t):
    per = -(-nrows // (NS * 4))
    assert per * lines <= 64 and lines & (lines - 1) == 0
    sh = lines.bit_length() - 1
    e(f"v_lshrrev_b32 v{d}, {7 + sh}, v{vLANE}"); e(f"v_min_u32 v{d}, {per - 1}, v{d}")
    e(f"s_mul_i32 s{sT}, s{sWV}, {per}"); e(f"v_add_u32 v{d}, s{sT}, v{d}")
    if per * NS * 4 != nrows: e(f"v_min_u32 v{d}, {nrows - 1}, v{d}")
    e(f"v_mul_u32_u24 v{d}, {stride}, v{d}")
    sum_terms(sT, *base_terms)
    if lines > 1:
        e(f"v_and_b32 v{t}, {(lines - 1) * 128}, v{vLANE}"); e(f"v_add3_u32 v{d}, v{d}, v{t}, s{sT}")
    else:
        e(f"v_add_u32 v{d}, s{sT}, v{d}")


WQ0 = O_("wq0", 128)
vTQ, vT1, vTK = T + 11, T + 13, T + 16
touch_off(6, WQ0, 8, 8192, [(sG, 1024)], 7)
touch_off(vT1, 512, 1, 1024, [(sG, 128)], 7)
e("v_and_b32 v2, 3, v0")
e("v_lshrrev_b32 v1, 2, v0")
sum_terms(sT, (sM, 64), (sW, 16))
e(f"v_add_u32 v3, s{sT}, v1"); e("v_lshlrev_b32 v3, 10, v3"); e("v_lshl_add_u32 v3, v2, 4, v3")
e(f"s_bfe_u32 s{sT+1}, s{sG}, {0x10000 + PAIR}"); e(f"s_lshl_b32 s{sT+2}, s{sT+1}, 9")
e(f"v_add_u32 v3, s{sT+2}, v3"); e(f"v_xor_b32 v{G12+13}, 0x200, v3")
if STAMP: e("v_accvgpr_write_b32 a254, 0")
e("s_waitcnt lgkmcnt(0)")
stamp()
if SSET == "ln": stamp(0)
ENT = " nt" * O_("ent", 0)
for i in range(9):
    if i == O_("tat", 0):
        P.vm(f"global_load_dword a255, v{vT1}, s[76:77]{ENT}")
        P.vm(f"global_load_dword a255, v6, s[70:71]{ENT}")
    if i < 8: P.vm(f"global_load_dwordx4 {vr(XR+4*i,4)}, v3, s[64:65] offset:{i*64}", ("x", i))
HOP = O_("hop", 1)
hop = lambda n="": It(f"; @hop {n}", "s")
if HOP:
    e("s_branch L_main"); P.raw(".p2align 12")
lab("L_main")
e("v_lshlrev_b32 v4, 1, v2"); e("v_xor_b32 v4, v4, v1"); e("v_lshlrev_b32 v4, 4, v4"); e("v_lshl_add_u32 v4, v2, 8, v4")
sum_terms(sT + 2, (sT + 1, 32768), (sW, 1024))
e(f"v_add_u32 v{vWA}, s{sT+2}, v4"); e(f"v_xor_b32 v{vWA+1}, 0x8000, v{vWA}")
e("v_and_b32 v1, 15, v0"); e("v_lshrrev_b32 v2, 4, v0")
e("v_lshlrev_b32 v4, 1, v2"); e("v_xor_b32 v4, v4, v1"); e("v_lshlrev_b32 v4, 4, v4"); e(f"v_lshl_add_u32 v{vBX}, v2, 8, v4")
e(f"v_add_u32 v3, s{sT}, v1"); e("v_lshlrev_b32 v4, 15, v2"); e(f"v_lshl_add_u32 v{vTOK}, v3, 4, v4")
for d, p in ((SK, 66), (SV, 68)):
    e(f"s_lshl_b32 s{sT}, s{sG}, 19")
    e(f"s_add_u32 s{d}, s{p}, s{sT}"); e(f"s_addc_u32 s{d+1}, s{p+1}, 0"); e(f"s_mov_b32 s{d+2}, 0x80000"); e(f"s_mov_b32 s{d+3}, 0x20000")
for d, p, size in ((SX, 64, 0x200000), (SWQ, 70, 0x400000), (SW1, 76, 0x80000), (SWS, 88, 0x10000000),
                   (SWO, 72, 0x400000), (SW2, 78, 0x80000), (SW3, 80, 1835008), (SW4, 82, 1835008),
                   (SOUT, 84, 0x200000), (SDBG, 86, 256)):
    mk_srd(d, p, size)
sum_terms(sRING, (sW, 8192), RING); sum_terms(sW1K, (sW, 1024)); sum_terms(sW4K, (sW, 4096))
sum_terms(sT, (sG, 1024), (sW, 256)); dma_voff(vDWQ, 8192, True, f"s{sT}", 10)
sum_terms(sT, (sW, 65536), (sG, 128)); dma_voff(vDW1, 1024, True, f"s{sT}", 10); dma_voff(vDW2, 1024, False, f"s{sT}", 10)
for r, v in ((sLO, "0x00003f80"), (sHI, "0x3f800000"), (sONE2, "0x3f803f80"), (sC1, f2u(GK)), (sC2, f2u(GA_)),
             (sNL2E, f2u(-LOG2E / GA_)), (sSPIN, opt.get("spin0", 0)), (sMSK, "0xffff0000")):
    e(f"s_mov_b32 s{r}, {v}")
sum_terms(sF0, (sM, 4096), (sW, 256), WS_FL)
sum_terms(sFL, (sG, 4), (sF0, 1))
sum_terms(sF1, (sM, 4096), (sG, 128), WS_FL + 1024)
e(f"s_add_u32 s{sF2}, s{sF1}, 1024"); e(f"s_add_u32 s{sF3}, s{sF1}, 2048")
sum_terms(sSTC, (sM, 4096), (sW, 1024), WS_SS)
sum_terms(sSTP, (sG, 128), (sSTC, 1))
sum_terms(sPP, (sM, 1 << 19), (sW, 1 << 17), (sG, 1 << 13))
sum_terms(sPC, (sM, 1 << 19), (sG, 1 << 16), (sW, 1 << 11))
e(f"s_lshl_b32 s{sHO}, s{sG}, 18")
e(f"s_and_b32 s{sKS}, s{sG}, 6"); e(f"s_lshl_b32 s{sKS}, s{sKS}, 1"); e(f"s_lshr_b32 s{sT}, s{sW}, 1"); e(f"s_add_u32 s{sKS}, s{sKS}, s{sT}")
e(f"s_and_b32 s{sTB}, s{sG}, 1"); e(f"s_lshl_b32 s{sTB}, s{sTB}, 1"); e(f"s_and_b32 s{sT}, s{sW}, 1"); e(f"s_add_u32 s{sTB}, s{sTB}, s{sT}")
sum_terms(sSTF, (sM, 4096), (sTB, 1024), WS_SS)
sum_terms(sXF, (sM, 65536), (sTB, 16384), (sKS, 64))
e(f"s_and_b32 s{sT}, s{sG}, 1"); sum_terms(sW3B, (sG, 448), (sT, 64)); sum_terms(sRS, (sW, 2048), RING)
e("v_lshrrev_b32 v6, 2, v0"); e("v_and_b32 v7, 3, v0"); e("v_lshlrev_b32 v7, 3, v7"); e("v_lshl_add_u32 v7, v6, 7, v7")
e("v_bfe_u32 v6, v0, 3, 2")
for nb in range(4):
    e(f"v_xor_b32 v10, {nb}, v6"); e("v_lshl_add_u32 v10, v10, 5, v7")
    e(f"v_add_u32 v{vAS+nb}, {RING + 32768}, v10")
    if QPERM:
        e("v_lshrrev_b32 v8, 2, v0"); e("v_and_b32 v9, 6, v8"); e("v_and_b32 v10, 3, v0"); e("v_xor_b32 v9, v9, v10")
        e(f"v_xor_b32 v9, {4*(nb>>1)}, v9"); e("v_lshlrev_b32 v9, 4, v9"); e("v_lshl_add_u32 v10, v8, 7, v9")
        if nb & 1: e("v_add_u32 v10, 8, v10")
    e(f"v_add_u32 v{vAA+nb}, s{sRING}, v10"); e(f"v_add_u32 v{vAA2+nb}, 0x10000, v{vAA+nb}")
e("v_xor_b32 v9, v2, v1")
for s in range(4):
    e(f"v_xor_b32 v10, {4*s}, v9"); e("v_lshlrev_b32 v10, 4, v10"); e(f"v_lshl_add_u32 v{KA(s)}, v1, 8, v10")
e("v_lshrrev_b32 v9, 2, v0"); e("v_lshlrev_b32 v10, 8, v9"); e("v_and_b32 v11, 3, v0")
e("v_lshl_add_u32 v10, v11, 3, v10"); e(f"v_add_u32 v10, {VOFF}, v10"); e("v_and_b32 v9, 7, v9")
for db in range(8):
    e(f"v_xor_b32 v11, {db}, v9"); e(f"v_lshl_add_u32 v{VA(db)}, v11, 5, v10")
e(f"v_lshl_add_u32 v10, v2, 8, s{sW4K}")
for i in range(4):
    e(f"v_add_u32 v9, {4*i}, v2"); e("v_xor_b32 v11, v9, v1"); e(f"v_lshl_add_u32 v{KG(i)}, v11, 4, v10")
    if i < 2:
        e("v_lshlrev_b32 v9, 1, v9"); e("v_xor_b32 v11, v9, v1"); e(f"v_lshl_add_u32 v{VG(i)}, v11, 4, v10")
e(f"v_lshlrev_b32 v{G12+8}, 4, v1")
if WQ0 < 512: touch_off(vTQ, 512 - WQ0, 8, 8192, [(sG, 1024), WQ0 * 8192], 7)
SLIM = O_("slim", 1)
touch_off(vTK, O_("tk", 384), 1, 128, [(sG, 0)], 7)


def late_touch():
    P.vm(f"buffer_load_dword a255, v{vTK}, {srd(SK)}, 0 offen"); P.vm(f"buffer_load_dword a255, v{vTK}, {srd(SV)}, 0 offen")
    if not SLIM:
        P.vm(f"buffer_load_dword a255, v{vT1}, {srd(SW2)}, 0 offen")
        code_touch()


LTG = O_("ltg", 4)
XQ = O_("xq", 3)


w1t = [Tile(SW1, vDW1, k * 4 * 65536, 1024, True, 1 + k, "w1") for k in range(2)]
w2t = [Tile(SW2, vDW2, k * 4 * 65536, 1024, False, 2, ("w2", k)) for k in range(2)]
qt = [Tile(SWQ, vDWQ, (i // 2) * 64 * 8192 + (i % 2) * 128, 8192, True, i % 3, ("wq", i), kp=i // 2, nh=i % 2)
      for i in range(16)] + ([] if SLIM else [None, w2t[0]])
mt = [Tile(SW3, vDW2, kp * 64 * 3584, 3584, False, (2 - i) % 3, ("w3", kp), kp=kp)
      for i, kp in enumerate((4, 5, 6, 7, 0, 1, 2, 3))]
mt += [Tile(SW4, vDW4, (i // 2) * 65536 + (i % 2) * 128, 1024, False, (2 - 8 - i) % 3, ("w4", i), kp=i // 2, nh=i % 2)
       for i in range(8)]
ot = [Tile(SWO, vDWO, ((kp & 1) * 256 + (kp >> 1) * 32) * 1024 + nh * 128, 1024, False, (nh * 8 + i + 2) % 3,
           ("wo", nh, kp), kp=kp, nh=nh, half=128)
      for nh in range(2) for i, kp in enumerate(range(8) if nh == 0 else (2, 3, 4, 0, 5, 1, 6, 7))]

a = G12


def quad_sum(regs):
    for qp in ("[1,0,3,2]", "[2,3,0,1]"):
        for r in regs: e(f"v_add_f32_dpp v{r}, v{r}, v{r} quad_perm:{qp} row_mask:0xf bank_mask:0xf")


def ln_stats(lo, hi):
    for i in range(lo, hi):
        c = lambda r: f"v{r}" if i >= 2 else 0
        e(f"v_dot2_f32_bf16 v{a + i % 2}, v{XR+i}, s{sONE2}, {c(a + i % 2)}", need=[("x", i // 4)])
        e(f"v_dot2_f32_bf16 v{a + 2 + i % 2}, v{XR+i}, v{XR+i}, {c(a + 2 + i % 2)}")


def unpack(k):
    for i in range(4 * k, 4 * k + 4):
        e(f"v_lshlrev_b32 v{2*i}, 16, v{XR+i}"); e(f"v_and_b32 v{2*i+1}, s{sMSK}, v{XR+i}")


def ln_rest():
    ln_stats(32, 64)
    e(f"v_add_f32 v{a}, v{a}, v{a+1}"); e(f"v_add_f32 v{a+2}, v{a+2}, v{a+3}")
    quad_sum([a, a + 2])
    e(f"v_mul_f32 v{a+4}, {f2u(-1/512)}, v{a}"); e(f"v_mul_f32 v{a+2}, {f2u(1/512)}, v{a+2}")
    e(f"v_fma_f32 v{a}, -v{a+4}, v{a+4}, v{a+2}"); e(f"v_max_f32 v{a}, 0, v{a}")
    e(f"v_add_f32 v{a+1}, {f2u(EPS)}, v{a}")
    e(f"v_rsq_f32 v{vRSTD}, v{a+1}")
    unpack(8)
    e(f"v_mul_f32 v{a+2}, {f2u(QSCALE)}, v{vRSTD}"); e(f"v_mul_f32 v{a+3}, v{a+4}, v{a+2}")
    for k in range(17):
        if k < 16:
            for i in range(4 * k, 4 * k + 4):
                e(f"v_pk_fma_f32 {vr(2*i,2)}, {vr(2*i,2)}, {vr(a+2,2)}, {vr(a+2,2)} op_sel:[0,0,1] op_sel_hi:[1,0,1]")
        if k: P.lds(f"ds_write_b128 v{vWA + (k-1)//8}, {vr(XR+4*k-4,4)} offset:{((k-1)%8)*4096}", "xw")
        if k % 2 == 0 and 9 + k // 2 < 16: unpack(9 + k // 2)
        if k < 16:
            for i in range(4 * k, 4 * k + 4): e(f"v_cvt_pk_bf16_f32 v{XR+i}, v{2*i}, v{2*i+1}")
    e(f"v_mul_f32 v{a}, v{a}, v{vRSTD}"); e(f"v_mul_f32 v{a}, v{a}, v{vRSTD}")
    e(f"v_add_f32 v{a}, {f2u(EPS)}, v{a}")
    e(f"v_rsq_f32 v{vSC1}, v{a}")
    e(f"v_mul_f32 v{vRSTD}, s{sC2}, v{vRSTD}")
    e(f"v_mul_f32 v{vSC1}, {f2u(GA_/QSCALE)}, v{vSC1}")
    e(f"v_mul_f32 v{vNMEAN}, v{a+4}, v{vRSTD}")
    e(f"v_add_u32 v{vWA}, s{sW1K}, v{vBX}")


if SSET == "ln": stamp(0)
P.put(hop(O_("hop00", 1)))
wq_rest = lambda: P.vm(f"buffer_load_dword a255, v{vTQ}, {srd(SWQ)}, 0 offen{ENT}") if WQ0 < 512 else None
if LTG == 4: XQ = 4
if XQ == 0: wq_rest()
if LTG == 0: late_touch()
for i in range(8):
    P.vm(f"buffer_load_dwordx4 {vr(XR+32+4*i,4)}, v{G12+13}, {srd(SX)}, 0 offen offset:{i*64}", ("x", 8 + i))
if XQ == 1: wq_rest()
if LTG == 1: late_touch()
if SSET == "ln": stamp(0)
P.put(hop(O_("hop0", 1)))
XW = O_("xw", 0)
early_w = [x + y for t in w1t + qt[:1] for x, y in t.dma()][:XW]
for k in range(8):
    ln_stats(4 * k, 4 * k + 4); unpack(k)
    for grp in early_w[k * XW // 8:(k + 1) * XW // 8]: P.puts(grp)
if O_("hop1", 1): P.put(hop(O_("hop1", 1)))
stamp(2)
if SSET == "ln":
    stamp(0); P.wait([("x", 15)]); stamp(0)
code = cap(ln_rest)
if "l" in opt.get("cut", ""): code = [it for it in code if not (it.t or "").startswith(("v_pk_fma", "v_cvt", "v_lshlrev", "v_and"))]
k = O_("lnat", 40)
P.puts(code[:k])
Q0LN = O_("q0ln", 1)
side = [x + y for t in w1t + qt[:Q0LN] for x, y in t.dma()][XW:]
if LTG == 4:
    j = O_("ltpos", 24) - XW
    side[j:j] = [[it] for it in cap(wq_rest) + cap(late_touch)]
interleave(code[k:], side, O_("lnev", 9))
if SSET == "ln":
    stamp(0); P.wait(["w1"]); stamp(0)
for r in (vNMEAN, vRSTD, vSC1): P.lds(f"ds_bpermute_b32 v{r}, v{G12+8}, v{r}", "stat")
xb = [It(f"ds_read_b128 {ar(4*ks,4)}, v{vWA} offset:{ks*4096}", "l", ("xb", ks)) for ks in range(16)]
P.puts(xb[:8])
stamp(2)
P.wait(["xw", "w1"]); e("s_barrier")
stamp()
if SSET == "ln": stamp(0)

g1 = lambda h: shared_ops(range(8 * h, 8 * h + 8), 0, lambda nb: vr(G12 + 4 * nb, 4), True, lambda i: 160 + (i % 16) * 4,
                          lambda ks: ar(4 * ks, 4), lambda ks: [("xb", ks)], "g1", 32 * h)
ops = g1(0) + g1(1)
gaps = {g: [] for g in range(64)}
add1 = lambda g, it: gaps[g].append(it)
for i in range(6, 64): gaps[i - 6] += ops[i][1]
for k in range(8): add1(2 + 3 * k, xb[8 + k])
if not Q0LN:
    for k, grp in enumerate(qt[0].dma()): place(add1, 1 + 3 * k, grp, 3 * k - 2)
for k, it in enumerate((cap(wq_rest) if XQ == 3 else []) + (cap(late_touch) if LTG == 3 else [])): add1(O_("ltat", 0) + 2 * k, it)
add1(31, It("s_barrier", "s"))
for k, grp in enumerate(qt[1].dma()): place(add1, 34 + 3 * k, grp, 31 + 3 * k)
ACC = lambda nh, nb, tb: ((nh * 4 + tb) * 4 + nb) * 4
op = gemm(qt, 0, 16, ACC, [], (64, 96), breg=vBX, opening="get")
for k, it in enumerate(op[4:12]): add1(40 + 2 * k, it)
for k, it in enumerate(op[:4] + op[12:]): add1(58 + k // 2, it)
for i in range(6): P.puts(ops[i][1])
P.run_gaps([m for m, _ in ops], gaps, next_need=[op[0].tag, op[4].tag])
stamp()



def q_side():
    x, t = G12, XR
    P.put(gate(0, 8))
    for i in range(16): e(f"v_mul_f32 v{x+i}, v{x+i}, v{vSC1}", need=["stat"])
    for i in range(16): e(f"v_fma_f32 v{t+i}, -v{x+i}, v{x+i}, -s{sC1}")
    for i in range(16): e(f"v_mul_f32 v{t+i}, v{t+i}, v{x+i}")
    for i in range(16): e(f"v_exp_f32 v{t+i}, v{t+i}", k="v")
    for i in range(16): e(f"v_add_f32 v{t+i}, 1.0, v{t+i}")
    for i in range(16): e(f"v_rcp_f32 v{t+i}, v{t+i}", k="v")
    for i in range(16): e(f"v_mul_f32 v{t+i}, v{t+i}, v{x+i}")
    for i in range(8): e(f"v_cvt_pk_bf16_f32 v{t+16+i}, v{t+2*i}, v{t+2*i+1}")
    e(f"v_lshrrev_b32 v{t}, 5, v{vBA}"); e(f"v_and_b32 v{t+1}, 128, v{vLANE}"); e(f"v_lshl_add_u32 v{t}, v{t}, 10, v{t+1}")
    e(f"v_mov_b32 v{t+1}, 0"); e(f"v_mov_b32 v{t+2}, -1"); e(f"v_mov_b32 v{t+3}, -1"); e(f"v_lshrrev_b32 v{t+4}, 1, v{vBA}")
    for nb in range(4): e(f"v_add_u32 v{vAS+nb}, 32768, v{vAS+nb}")
    e(f"v_mov_b32 v{t+5}, {hex(((127 - OSH) << 7) * 0x10001)}")
    e(f"v_and_b32 v{t+6}, 0xe0, v{vBA}"); e(f"v_cmp_eq_u32 vcc, 0, v{t+6}"); e(f"v_cndmask_b32 v{t+5}, 0, v{t+5}, vcc")
    e(f"v_bfe_i32 v{t+6}, v{vBA}, 4, 1"); e(f"v_and_b32 v{t+6}, 0xaaaaaaaa, v{t+6}"); e(f"v_or_b32 v{t+6}, 0x44444444, v{t+6}")
    if STAMP: e(f"v_accvgpr_write_b32 a253, v{t+6}")
    e(f"v_mov_b32 v{vIDX}, v{t+6}")
    for i in range(16): e(f"v_accvgpr_write_b32 a{LACC(0)+i}, 0")
    for i in range(4): e(f"v_accvgpr_write_b32 a{aONES+i}, v{t+5}")

    P.put(gate(0, O_("hgate", 14 * 32 + 22)))
    if LTG == 2: late_touch()
    for s in range(2):
        e(f"s_add_u32 s{sSF}, s{sHO}, {WS_H + s*PLANE}")
        P.vm(f"buffer_store_dwordx4 {vr(t+16+4*s,4)}, v{vTOK}, {srd(SWS)}, s{sSF} offen sc1", "hst")
    masked(255, f"buffer_store_dword v{t+1}, v{t}, {srd(SWS)}, s{sFL} offen sc1", "hst")
    masked(0xffff, f"buffer_store_dwordx2 {vr(t+2,2)}, v{t+4}, {srd(SWS)}, s{sSTP} offen sc1", "hst")


class Extra:
    def __init__(self, groups): self.groups = groups
    def dma(self): return self.groups


def q_pack(tb, ss):
    for s in ss:
        b = ACC(s // 2, 2 * (s % 2), tb)
        for j in range(4): e(f"v_cvt_pk_bf16_f32 v{Q(tb,s)+j}, v{b+2*j}, v{b+2*j+1}")


assert SLIM and QPERM
fill = cap(q_side) + [gate(0, 15 * 32 + 4)] + [it for tb in range(4) for it in cap(q_pack, tb, (0, 1))]
pending = qt[2].dma()
qt += [Extra(kv_dma("K", 0) + kv_dma("K", 1)), Extra(kv_dma("K", 2))]
gemm(qt, 0, 16, ACC, pending, (64, 96), breg=vBX, fill=fill, opening="done", dma0=2,
     extra={1: [It("s_barrier", "s")], 13 * 32 + 22: [It("s_barrier", "s")]})
assert not pending
P.wait([("K", 1)]); e("s_barrier")
stamp()
if SSET == "pro": stamp(0)

for f in range(8): P.puts(frag_reads(-1, f))
P.drain(fill)
q_pack(0, (2, 3)); q_pack(1, (2, 3))
stamp()
if SSET == "pro": stamp(0)
gaps = {g: [] for g in range(64)}
for k, it in enumerate(cap(q_pack, 2, (2, 3)) + cap(q_pack, 3, (2, 3))): add1(k // 2, it)
for k, grp in enumerate(kv_dma("V", 0)): place(add1, 9 + 2 * k, grp, -1)
P.run_gaps([m for m, _ in qk_mfmas(-1, zero=True)[:16]], gaps)
if SSET == "pro": stamp(0)
for f in range(8, 12): P.puts(frag_reads(-1, f))
for qb in range(4): e(f"v_max3_f32 v{NM(qb)}, v{S(0,0,qb)}, v{S(0,0,qb)+1}, v{S(0,0,qb)+2}")
for qb in range(4): e(f"v_max_f32 v{NM(qb)}, v{NM(qb)}, v{S(0,0,qb)+3}")
allreduce("v_max_f32", [NM(qb) for qb in range(4)], [NM(qb) + 1 for qb in range(4)])
e(f"s_mov_b32 s{sT}, {f2u(float(opt.get('pd', -25.4)))}")
for qb in range(4):
    for i in (1, 2, 3, 0): e(f"v_sub_f32 v{NM(qb)+i}, s{sT}, v{NM(qb)}")


def first_half(shift, gates):
    for kb in range(2):
        P.put(gate(0, gates[kb]))
        for qb in range(4):
            b = S(0, kb, qb)
            if shift and not kb:
                for j in range(4): e(f"v_add_f32 v{b+j}, v{b+j}, v{NM(qb)}")
            for j in range(4): e(f"v_exp_f32 v{b+j}, v{b+j}")
        for qb in range(4):
            b = S(0, kb, qb)
            for j in range(2): e(f"v_cvt_pk_bf16_f32 v{PR(0,0,qb)+2*kb+j}, v{b+2*j}, v{b+2*j+1}")


if SSET == "pro": stamp(0)
gaps = {g: [] for g in range(64)}
for f in range(12, 16): gaps[16 + (f - 12)] += frag_reads(-1, f)
add1(40, It(None, "s", need=["hst"])); add1(41, It("s_barrier", "s"))
for f in range(4):
    gaps[32 + f] += frag_reads(0, f); issued.add((0, f))
for k, grp in enumerate(kv_dma("V", 1) + kv_dma("K", 3)): place(add1, 3 + 6 * k, grp, 6 * k - 3)
fill = cap(first_half, True, (0, 20))
P.run_gaps([m for m, _ in qk_mfmas(-1)[16:]], gaps, fill)
if SSET == "pro": stamp(0)
P.drain(fill)
if SSET == "pro": stamp(0)
e(f"v_mov_b32 v{T}, 1"); e(f"s_lshl_b32 s{sSF}, s{sM}, 3")
e(f"s_cmp_lg_u32 s{sW}, 0"); e("s_cbranch_scc1 L_noarr"); e("s_mov_b64 exec, 1")
e(f"buffer_atomic_add v{T}, off, {srd(SDBG)}, s{sSF} sc1"); e("s_mov_b64 exec, -1")
lab("L_noarr")
P.wait([("K", 2), ("V", 0)] + [("F", 0, f) for f in range(4)]); e("s_barrier")
stamp()

if SSET == "pro": stamp(0)
p_h = flag_poll("h", SDBG, 0, 8)
p_x = flag_poll("x1", SWS, f"s{sF0}", 1)
p_st = Poll("st", [f"buffer_load_dwordx2 {vr(T+2*j,2)}, v{vPA}, {srd(SWS)}, s{(sSTC, sSTF)[j//2]} offen offset:{128*(j%2)} sc1"
                   for j in range(4)],
            [f"v_max3_u32 v{T+8}, v{T}, v{T+1}, v{T+2}", f"v_max3_u32 v{T+8}, v{T+8}, v{T+3}, v{T+4}",
             f"v_max3_u32 v{T+8}, v{T+8}, v{T+5}, v{T+6}", f"v_max_u32 v{T+8}, v{T+8}, v{T+7}",
             f"v_cmp_eq_u32 vcc, -1, v{T+8}"])
p_ph, p_s0, p_s1 = (flag_poll(n, SWS, f"s{r}", 1) for n, r in (("ph", sF1), ("s0", sF2), ("s1", sF3)))


pieces = [(nh, tb, s) for nh in range(2) for tb in range(4) for s in range(2)]


def x_offset(d, bits=11):
    e(f"v_bfe_u32 v{d}, v{vTOK}, 4, {bits}"); e(f"v_lshlrev_b32 v{d}, 10, v{d}")
    e(f"v_bfe_u32 v{d+1}, v{vBA}, 8, 2"); e(f"v_lshl_add_u32 v{d}, v{d+1}, 3, v{d}")


def paced(t, g, step, fns):
    for k, fn in enumerate(fns):
        p = g + k * step
        P.put(gate(t + p // NIT, p % NIT)); fn()


def h_loads(half, t, g):
    e(f"v_bfe_u32 v{T}, v{vTOK}, 4, 11")
    for k, d in enumerate(((-1, 1), (-2, 2))[half]):
        e(f"v_add_u32 v{T+1}, {d}, v{T}"); e(f"v_cmp_gt_u32 vcc, 0x800, v{T+1}")
        e(f"v_add_u32 v{T+1}, {16*d}, v{vTOK}"); e(f"v_mov_b32 v{T+2+k}, 0x7f000000")
        e(f"v_cndmask_b32 v{T+2+k}, v{T+2+k}, v{T+1}, vcc")

    def one(ks):
        e(f"s_mov_b32 s{sSF}, {WS_H + ks*PLANE}")
        P.vm(f"buffer_load_dwordx4 {ar(HB(ks),4)}, v{T + 2 + (ks%8)//4}, {srd(SWS)}, s{sSF} offen sc1", ("h", ks))
    paced(t, g, O_("hstep", 18), [lambda ks=ks: one(ks) for ks in range(8 * half, 8 * half + 8)])


def acc_offset():
    P.lds(f"ds_read_b64_tr_b16 {vr(T+4,2)}, v{VA(0)}", "v0")
    P.put(gate(0, 9))
    for j in range(2):
        e(f"v_lshlrev_b32 v{T+2*j}, 17, v{T+4+j}", need=["v0"]); e(f"v_lshlrev_b32 v{T+2*j+1}, 1, v{T+4+j}")
    for r in (8, 4, 2, 1):
        for j in range(4): e(f"v_max_u32_dpp v{T+j}, v{T+j}, v{T+j} row_ror:{r} row_mask:0xf bank_mask:0xf")
    e(f"v_min3_u32 v{T}, v{T}, v{T+1}, v{T+2}"); e(f"v_min_u32 v{T}, v{T}, v{T+3}")
    allreduce("v_min_u32", [T], [T + 1], k="v")
    e(f"v_lshrrev_b32 v{T}, 24, v{T}"); e(f"v_lshlrev_b32 v{T}, 23, v{T}"); e(f"v_mul_f32 v{T}, {f2u(1.5 * 2.0**OB)}, v{T}")
    for i in range(4): e(f"v_accvgpr_write_b32 a{GA(0)+i}, v{T}")
    e(f"v_readfirstlane_b32 s{sOB}, v{T}")


def side1():
    if SLIM:
        code_touch(); P.vm(f"buffer_load_dword a255, v{vT1}, {srd(SW2)}, 0 offen")
    P.put(gate(0, 64))
    x_offset(T + 5); e(f"s_lshl_b32 s{sSF}, s{sG}, 7")
    for nb in range(4):
        P.vm(f"buffer_load_dwordx2 {vr(T+6+2*nb,2)}, v{T+5}, {srd(SX)}, s{sSF} offen offset:{nb*32}", "xs")
    e(f"v_lshrrev_b32 v{T}, 4, v{vBA}"); e(f"v_min_u32 v{T}, 2, v{T}"); e(f"v_add_u32 v{T}, s{sM}, v{T}")
    e(f"v_add_u32 v{T}, -1, v{T}"); e(f"v_med3_i32 v{T}, v{T}, 0, 31"); e(f"v_lshlrev_b32 v{vPA}, 3, v{T}")
    if O_("kvt1", 0):
        touch_off(T, (T0 - 5) * 128, 1, 128, [(sG, 0), 5 * 16384], T + 1)
        P.vm(f"buffer_load_dword a255, v{T}, {srd(SK)}, 0 offen"); P.vm(f"buffer_load_dword a255, v{T}, {srd(SV)}, 0 offen")
    P.put(gate(2, 0))
    p_h.issue()
    for i in range(8):
        d = T + 2 * (i % 2)
        e(f"v_lshlrev_b32 v{d}, 16, v{T+6+i}", need=["xs"]); e(f"v_and_b32 v{d+1}, 0xffff0000, v{T+6+i}")
        for h in range(2): e(f"v_fma_f32 v{d+h}, v{d+h}, v{vRSTD}, v{vNMEAN}")
        for h in range(2): e(f"v_accvgpr_write_b32 a{aG2+2*i+h}, v{d+h}")
    P.put(gate(3, 0))
    p_h.check(); h_loads(0, 3, 30)
    P.put(gate(6, 0))
    h_loads(1, 6, 24)
    sum_terms(sT, (sW, 128), (sW3B, 1)); dma_voff(vDW2, 3584, False, f"s{sT}", T)
    P.put(gate(8, NIT + 28))
    m, q = vRSTD, vNMEAN
    for i in range(16): e(f"v_accvgpr_read_b32 v{T+i}, a{aG2+i}")
    e(f"v_add_f32 v{m}, v{T}, v{T+1}"); e(f"v_mul_f32 v{q}, v{T}, v{T}")
    for i in range(1, 16):
        e(f"v_fmac_f32 v{q}, v{T+i}, v{T+i}")
        if i > 1: e(f"v_add_f32 v{m}, v{m}, v{T+i}")
    allreduce("v_add_f32", [m, q], [T, T + 1], k="v")
    e(f"v_lshrrev_b32 v{T}, 1, v{vBA}"); e(f"v_min_u32 v{m}, -2, v{m}"); e(f"v_min_u32 v{q}, -2, v{q}")
    masked(0xffff, f"buffer_store_dwordx2 {vr(m,2)}, v{T}, {srd(SWS)}, s{sSTP} offen sc1")
    code_touch()
    e(f"v_and_b32 v{T}, 0xf0, v{vBA}"); e(f"v_lshrrev_b32 v{T}, 1, v{T}"); e(f"v_and_b32 v{T+1}, 0x300, v{vBA}")
    e(f"v_add_u32 v{vPA}, v{T}, v{T+1}")
    P.put(gate(11, 70))
    p_st.issue()
    P.put(gate(12, 60))
    p_st.check()
    u, r = T + 15, T + 16
    e(f"v_add_f32 v{u}, v{T}, v{T+2}"); e(f"v_add_f32 v{r}, v{T+1}, v{T+3}")
    e(f"v_add_f32 v{q}, v{T+4}, v{T+6}"); e(f"v_add_f32 v{m}, v{T+5}, v{T+7}")
    allreduce("v_add_f32", [u, r, q, m], [T, T + 1, T + 2, T + 3], k="v")
    for x in (u, r, q, m): e(f"v_mul_f32 v{x}, {f2u(1/512)}, v{x}")
    for x, y in ((u, r), (q, m)):
        e(f"v_fma_f32 v{y}, -v{x}, v{x}, v{y}"); e(f"v_max_f32 v{y}, 0, v{y}")
        e(f"v_mul_f32 v{y}, {f2u(GA_**-2)}, v{y}"); e(f"v_add_f32 v{y}, {f2u(EPS)}, v{y}")
    e(f"v_rsq_f32 v{r}, v{r}", k="v"); e(f"v_sqrt_f32 v{m}, v{m}", k="v")
    for i in range(15): e(f"v_accvgpr_read_b32 v{T+i}, a{aG2+i}")
    e(f"v_mul_f32 v{u}, v{u}, v{r}")
    for i in range(15): e(f"v_fma_f32 v{T+i}, v{T+i}, v{r}, -v{u}")
    e(f"v_cvt_pk_bf16_f32 v{T}, v{T}, v{T+1}"); e(f"v_cvt_pk_bf16_f32 v{T+1}, v{T+2}, v{T+3}")
    e(f"v_accvgpr_read_b32 v{T+3}, a{aG2+15}"); e(f"v_fma_f32 v{u}, v{T+3}, v{r}, -v{u}")
    for i in range(2, 8): e(f"v_cvt_pk_bf16_f32 v{T+i}, v{T+2*i}, v{T+2*i+1}")
    for s in range(2):
        e(f"s_add_u32 s{sSF}, s{sHO}, {WS_X1 + s*PLANE}")
        P.vm(f"buffer_store_dwordx4 {vr(T+4*s,4)}, v{vTOK}, {srd(SWS)}, s{sSF} offen sc1", "x1st")
    e(f"v_bfe_u32 v{vPA}, v{vBA}, 4, 3"); e(f"v_lshlrev_b32 v{vPA}, 2, v{vPA}")
    P.put(gate(15, 40))
    set_flags(0, 1, ["x1st"])
    touch_off(T, 512, 4, 3584, [(sW3B, 1)], T + 1)
    P.vm(f"buffer_load_dword a255, v{T}, {srd(SW3)}, 0 offen")
    touch_off(T, 2048, 1, 128, [(sW3B, 512)], T + 1)
    P.vm(f"buffer_load_dword a255, v{T}, {srd(SW4)}, 0 offen")
    sum_terms(sT, (sW, 256)); dma_voff(vDW4, 1024, False, f"s{sT}", T)
    sum_terms(sT, (sG, 1 << 19)); e(f"v_add_u32 v{vDWO}, s{sT}, v{vDW4}")
    sum_terms(sT, (sW3B, 512)); e(f"v_add_u32 v{vDW4}, s{sT}, v{vDW4}")
    e(f"s_and_b32 s{sT}, s{sG}, 1"); e(f"s_sub_u32 s{sT}, 4, s{sT}"); e(f"s_mul_i32 s{sT}, s{sT}, s{sW}")
    for nb in range(4):
        e(f"s_and_b32 s{sT+1}, s{sT}, 3"); e(f"s_lshl_b32 s{sT+1}, s{sT+1}, 5"); e(f"v_xor_b32 v{vAA2+nb}, s{sT+1}, v{vAS}")
        e(f"s_lshr_b32 s{sT+1}, s{sT}, 2"); e(f"s_lshl_b32 s{sT+1}, s{sT+1}, 13"); e(f"v_add_u32 v{vAA2+nb}, s{sT+1}, v{vAA2+nb}")
        e(f"v_add_u32 v{vAA+nb}, 0xffff0000, v{vAA2+nb}"); e(f"s_add_u32 s{sT}, s{sT}, 1")
    P.put(gate(17, 60))
    p_x.issue(); code_touch()
    P.put(gate(18, 60))
    p_x.check()
    if XREG:
        def one(ks):
            e(f"s_mov_b32 s{sSF}, {WS_X1 + ks*PLANE}")
            P.vm(f"buffer_load_dwordx4 {ar(aG2 + 4*(ks-4),4)}, v{vTOK}, {srd(SWS)}, s{sSF} offen sc1", "xnl")
        paced(18, 70, 14, [lambda ks=ks: one(ks) for ks in range(4, 8)])
    P.put(gate(19, 0))
    if O_("kvt", 1):
        touch_off(T + 8, (32 - T0) * 128, 1, 128, [(sG, 0), T0 * 16384], T + 9)
        P.vm(f"buffer_load_dword a255, v{T+8}, {srd(SK)}, 0 offen"); P.vm(f"buffer_load_dword a255, v{T+8}, {srd(SV)}, 0 offen")
    if XREG:
        e(f"v_add_u32 v{T+9}, s{sW1K}, v{vBA}")
        paced(T0 - 1, 34, 6, [lambda ks=ks: P.lds(f"ds_write_b128 v{T+9}, {ar(aG2 + 4*(ks-4),4)} offset:{ks*4096}", ("xn", 1), need=["xnl"])
                              for ks in range(4, 8)])


def x1n_dma(j):
    return [([It(f"s_add_u32 m0, s{sW1K}, {ks*4096}", "s"), It(f"s_mov_b32 s{sSO}, {WS_X1 + ks*PLANE}", "s")],
             [It(f"buffer_load_dwordx4 v{vTOK}, {srd(SWS)}, s{sSO} offen sc1 lds", "g", ("xn", j), need=["x1"])])
            for ks in range(4 * j, 4 * j + 4)]


def run_tiles(t0, t1, fill, over, more, endw, ins, must, xtra={}):
    end = T0 - 1 if t0 < T0 else 31
    for t in range(t0, t1):
        groups = (kv_dma("K", t + 4) if t + 4 <= end else []) + (kv_dma("V", t + 3) if t + 3 <= end else [])
        groups = over.get(t, groups) + more.get(t, [])
        attn_iter(t, groups, fill, endw.get(t, ()), ins=ins.get(t), extra=xtra.get(t))
        head = fill[0].at if fill else (99, 0)
        if O_("showfill", 0): print(t, len(fill), head, file=sys.stderr)
        if t in must: assert head and head[0] >= must[t], (t, head, len(fill))


g2 = lambda h: shared_ops(range(8 * h, 8 * h + 8), 8 * h, lambda nb: ar(aG2 + 4 * nb, 4), False, GA,
                          lambda ks: ar(HB(ks), 4), lambda ks: [("h", ks)], f"g2{h}")
op = gemm(mt, 0, 8, ACC, [], (160, 212), opening="get")
opx = {40 + 2 * k: [it] for k, it in enumerate(op[4:12])}
opx.update({58 + k: [it] for k, it in enumerate(op[:4] + op[12:])})
xtra = {T0 - 1: opx}
if OB:
    its = [it for it in cap(acc_offset) if it.at is None]
    xtra[0] = {1: its[:1]}
    for k, it in enumerate(its[1:]): xtra[0].setdefault(11 + (k * 50) // len(its), []).append(it)
fill = cap(side1)
kv = lambda *a: [g for k in a for g in kv_dma(k[0], int(k[1:]))]
run_tiles(0, T0, fill, {0: kv("V2", "K4", "V3")},
          {O_("w2it", 1): w2t[0].dma() if SLIM else [], 6: w2t[1].dma(), 18: mt[0].dma(), 19: x1n_dma(2) + x1n_dma(3),
           20: x1n_dma(0) + mt[1].dma(), 21: [] if XREG else x1n_dma(1)},
          {4: [("w2", 0)], 7: [("w2", 1)], 20: [("xn", 3), mt[0].tag]}, {5: g2(0), 8: g2(1)}, {4: 6, 7: 8, 17: 18, 18: 19, 21: 99}, xtra)
stamp()

def ph_pack(ks):
    for k in ks:
        pack(ACC, *pieces[k])
        for j in range(4): e(f"v_accvgpr_write_b32 a{PHA(k)+j}, v{ACC(pieces[k][0], 2*pieces[k][2], pieces[k][1])+j}")


def own_x1n(per):
    return {4 * per + 2: [It(f"s_lshl2_add_u32 s{sT}, s{sKS}, s{sTB}", "s")],
            4 * per + 6: [It(f"s_lshl_b32 s{sT}, s{sT}, 10", "s"), It(f"v_add_u32 v{T+9}, s{sT}, v{vBA}", "v")],
            7 * per + 3: [It(f"ds_read_b128 {ar(aXN,4)}, v{T+9}", "l", "xnr")],
            7 * per + 7: [It(f"ds_read_b128 {ar(aXN+4,4)}, v{T+9} offset:8192", "l", "xnr")]}


def mlp_tail(act, pending, nstep, bf):
    P.wait(["xnr"]); e("s_barrier")
    stamp()
    interleave(cap(act), [x + y for x, y in pending], 16)
    gemm_pre(mt, 8)
    P.wait(["hw"]); e("s_barrier")
    stamp()
    g = 32 * (nstep - 2)
    fill = [gate(0, g + 20)] + cap(ph_pack, (0, 2, 4, 6)) + [gate(0, g + 36)] + cap(ph_pack, (1, 3, 5, 7))
    pending = []
    gemm(mt[:8 + nstep] + [Extra(kv_dma("K", T0) + kv_dma("K", T0 + 1))], 8, nstep, ACC, pending, bf, fill=fill)
    assert not pending
    P.wait([("K", T0 + 1)]); e("s_barrier")
    stamp()
    for f in range(8): P.puts(frag_reads(T0 - 1, f))
    P.drain(fill)


def mlp_even():
    P.cmt("==== channel MLP, even groups: 256 hidden columns, one private weight tile per wave and step")
    extra = own_x1n(32)
    extra.update({1: [It("s_barrier", "s")], 2 * 32 + 26: [It(None, "s", need=[("xn", 0), ("xn", 1)])],
                  2 * 32 + 27: [It("s_barrier", "s")],
                  7 * 32 + 10: [It(f"s_lshl_b32 s{sT}, s{sW}, 13", "s"), It(f"v_add_u32 v{T+8}, s{sT}, v{vBA}", "v")]})
    pending = mt[2].dma()
    gemm(mt, 0, 8, ACC, pending, (160, 212), extra=extra, opening="done", dma0=2)

    def act():
        for tb in range(4):
            gelu(16 * tb, 16, 64 + 16 * tb, lambda i: 16 * tb + i, first=tb == 0)
            for s in range(2):
                P.lds(f"ds_write_b128 v{T+8}, {vr(16*tb + 4*s,4)} offset:{s*4096 + tb*1024}", "hw")
    mlp_tail(act, pending, 8, (160, 212))


def mlp_odd():
    P.cmt("==== channel MLP, odd groups: 192 hidden columns, three weight tiles per step shared by the four waves")
    AC3 = lambda nb, tb: (tb * 3 + nb) * 4
    af = lambda s, nb, ks: AF(2 * (nb + (nb == 2) * (s & 1)) + ks)
    bf = lambda s, ks, tb: ar((160, 212)[s & 1] + (ks * 4 + tb) * 4, 4)

    def a3(s, nb):
        t = mt[s]
        base, off = (vAA2, 0) if t.slot == 2 else (vAA, t.slot * 32768)
        return [It(f"ds_read_b64_tr_b16 {ar(af(s,nb,ks)+2*h,2)}, v{base+nb} offset:{off + ks*4096 + h*2048}", "l",
                   ("A", t.tag, nb)) for ks in range(2) for h in range(2)]

    def stage(s):
        t = mt[s]
        if s >= 8: return t.dma()
        return [(([It(f"s_add_u32 m0, s{sRS}, {t.slot*32768 + c*8192}", "s")] if i == 0 else []) +
                 [It(f"s_mov_b32 s{sSO}, {t.base + i*8*3584 + c*128 - i*1024}", "s")],
                 [It(f"buffer_load_dwordx4 v{vDW2}, {srd(SW3)}, s{sSO} offen offset:{i*1024} lds", "g", t.tag)])
                for c in range(3) for i in range(2)]

    REL, RAW, DS = O_("rel", 13), O_("raw", 13), O_("ds", 3)
    DG = {(REL + 1 + DS * k) % 24 for k in range(6)}
    ms, gaps = [], own_x1n(24)
    add = lambda g, it: gaps.setdefault(g, []).append(it)
    for s in range(8):
        t, g0 = mt[s], 24 * s
        for nb in range(3):
            for i, tb in enumerate(range(3, -1, -1) if nb & 1 else range(4)):
                for n, ks in enumerate(range(2) if not i & 1 else range(1, -1, -1)):
                    d = vr(AC3(nb, tb), 4)
                    ms.append(It(f"{MF} {d}, {ar(af(s,nb,ks),4)}, {bf(s,ks,tb)}, {d if s or n else 0}", "m",
                                 need=[("A", t.tag, nb), ("B", mt[0].tag, s, tb)]))
        if s == 0:
            for k, it in enumerate(a3(0, 1)[2:] + a3(0, 2)): add((0, 0, 1, 1, 2, 2)[k], it)
        add(g0 + REL - 1, It(None, "s", need=[("A", t.tag, nb) for nb in range(3)]))
        add(g0 + REL, It("s_barrier", "s"))
        if s < 7:
            u = mt[s + 1]
            add(g0 + RAW - 1, It(None, "s", need=[u.tag] + ([("xn", 0), ("xn", 1)] if s == 2 else [])))
            if RAW != REL: add(g0 + RAW, It("s_barrier", "s"))
            c = [g for g in range(RAW + 1, 24) if g not in DG]
            rd = a3(s + 1, 0) + a3(s + 1, 2) + a3(s + 1, 1)
            for k, it in enumerate(rd): add(g0 + max(c[k * len(c) // 12], 16 if k >= 8 else 0), it)
            rd = [It(f"ds_read_b128 {bf(s+1,ks,tb)}, v{vBA} offset:{u.kp*8192 + ks*4096 + tb*1024}", "l",
                     ("B", mt[0].tag, s + 1, tb)) for tb in range(4) for ks in range(2)]
            c = [g for g in range(0 if s else 4, RAW + 1) if g not in DG]
            for k, it in enumerate(rd): add(g0 + c[k * len(c) // 8], it)
        add(g0 + 19, hop())
        if O_("jit2", 0): add(g0 + 4, jitter_item())
        if SSET == "odd": add(g0, stamp_item())
    if SSET == "odd": add(len(ms) - 1, stamp_item())
    add(0, It(f"s_mul_i32 s{sT}, s{sW}, {16*3584 - 128}", "s")); add(0, It(f"v_add_u32 v{vDW2}, s{sT}, v{vDW2}", "v"))
    add(1, It("s_barrier", "s"))
    pending, prev = stage(2), 1
    for g in range(3, len(ms)):
        if g % 24 == REL + 1: pending += stage(g // 24 + 3)
        if pending and g - prev >= 2 and (g % 24 in DG or len(pending) > 6 or g < REL):
            place(add, g, pending.pop(0), prev); prev = g
    HW = (T + 8, T + 9, T + 15)

    def addr():
        P.put(gate(0, 7 * 24 + 12))
        e(f"s_mul_i32 s{sT}, s{sW}, 3")
        for nb in range(3):
            e(f"s_lshr_b32 s{sT+1}, s{sT}, 1"); e(f"s_lshl_b32 s{sT+1}, s{sT+1}, 12"); e(f"s_and_b32 s{sT+2}, s{sT}, 1")
            e(f"s_lshl3_add_u32 s{sT+1}, s{sT+2}, s{sT+1}"); e(f"v_add_u32 v{HW[nb]}, s{sT+1}, v{vBA}"); e(f"s_add_u32 s{sT}, s{sT}, 1")
        e(f"s_sub_u32 s{sT}, s{sRING}, {RING + 65536}")
        for nb in range(4):
            e(f"v_add_u32 v{vAA+nb}, s{sT}, v{vAS+nb}"); e(f"v_add_u32 v{vAA2+nb}, 0x10000, v{vAA+nb}")
    fill = cap(addr)
    P.run_gaps(ms, gaps, fill, gmin=4)
    P.drain(fill)

    def act():
        for tb in range(4):
            gelu(12 * tb, 12, 64 + 12 * tb, lambda i: 12 * tb + i, first=tb == 0)
            for nb in range(3):
                P.lds(f"ds_write_b64 v{HW[nb]}, {vr(12*tb + 2*nb,2)} offset:{tb*1024}", "hw")
    mlp_tail(act, pending, 6, (212, 160))


e(f"s_bitcmp1_b32 s{sG}, 0"); e("s_cbranch_scc1 L_odd")
lab("L_even")
state = (list(P.lq), list(P.vq), set(P.used), set(P.ever), nstamp[0])
mlp_even()
after = (list(P.lq), list(P.vq), set(P.used), set(P.ever), nstamp[0])
main, P.L = P.L, []
P.lq, P.vq, P.used, P.ever, nstamp[0] = state
mlp_odd()
e("s_branch L_join")
assert (P.lq, P.vq) == after[:2] and (SSET or nstamp[0] == after[4]), (P.lq, P.vq, after[:2])
odd_text, P.L = P.L, main
P.lq, P.vq, P.used, P.ever, nstamp[0] = after
lab("L_join")
ph_pack(range(8, 10))
gaps = {g: [] for g in range(64)}
for f in range(8, 16): gaps[16 * (f // 4 - 1) + f % 4] += frag_reads(T0 - 1, f)
for f in range(4):
    gaps[48 + f] += frag_reads(T0, f); issued.add((T0, f))
for k, grp in enumerate(kv_dma("V", T0) + kv_dma("K", T0 + 2)): place(add1, 2 + 4 * k, grp, 4 * k - 2)
fill = cap(ph_pack, range(10, 14)) + cap(first_half, False, (20, 36)) + cap(ph_pack, range(14, 16))
P.run_gaps([m for m, _ in qk_mfmas(T0 - 1)], gaps, fill)
P.drain(fill)
P.wait([("K", T0 + 2), ("V", T0)] + [("F", T0, f) for f in range(4)]); e("s_barrier")
stamp()


XF = [244, 245, 246, 247, 248, 249, T + 10, T + 11]


def side2():
    paced(T0, 60, O_("sstep", 22), [lambda k=k: store_piece(ar(PHA(k), 4), WS_PH, *pieces[k], "phs") for k in range(16)])
    touch_off(T + 8, 4096, 1, 128, [(sG, 1 << 19)], T + 9)
    P.vm(f"buffer_load_dword a255, v{T+8}, {srd(SWO)}, 0 offen")
    code_touch()
    P.put(gate(25, O_("phf", 131))); set_flags(1, 2, ["phs"])
    x_offset(T + 8, 4)
    paced(26, 50, 20, [lambda i=i: P.vm(f"buffer_load_dwordx2 {vr(XF[2*i],2)}, v{T+8}, {srd(SX)}, s{sXF} offen "
                                        f"offset:{(i//2)*128 + (i%2)*32}", "xf") for i in range(4)])
    o_addr()
    PH0 = O_("ph0", 40)
    P.put(gate(27 + PH0 // NIT, PH0 % NIT)); p_ph.issue()
    paced(27, PH0 + 110, 1, [p_ph.check])
    paced(27, PH0 + 120, O_("lstep", 22), [lambda k=k: load_piece(WS_PH, ar(PHA(k), 4), k // 2, k % 2, "phl") for k in range(16)])


def o_addr():
    if not PA:
        e(f"v_add_u32 v{T+8}, s{sW4K}, v{vBA}")
        return
    x, y = vDW2, vDW4
    for d, (ro, rb), (co, cb) in ((T + 8, (4, 4), (8, 2)), (T + 9, (6, 4), (4, 2))):
        e(f"v_bfe_u32 v{x}, v{vBA}, {ro}, {rb}"); e(f"v_bfe_u32 v{d}, v{vBA}, {co}, {cb}")
        e(f"v_and_b32 v{y}, 1, v{x}"); e(f"v_xor_b32 v{d}, v{d}, v{y}")
        e(f"v_lshrrev_b32 v{y}, 3, v{x}"); e(f"v_lshlrev_b32 v{y}, 1, v{y}"); e(f"v_xor_b32 v{d}, v{d}, v{y}")
        e(f"v_and_b32 v{y}, 6, v{x}"); e(f"v_lshl_add_u32 v{d}, v{y}, 1, v{d}")
        e(f"v_lshlrev_b32 v{d}, 3, v{d}"); e(f"v_lshl_add_u32 v{d}, v{x}, 7, v{d}")
    e(f"v_add_u32 v{T+8}, s{sW4K}, v{T+8}")


fill = cap(side2)
run_tiles(T0, 31, fill, {T0: kv(f"V{T0+1}", f"K{T0+3}", f"K{T0+4}", f"V{T0+2}"), T0 + 1: kv(f"K{T0+5}", f"V{T0+3}", f"V{T0+4}")}, {O_("wo0", 29): ot[0].dma(), 30: ot[1].dma()}, {}, {}, {30: 99})


vOW, vOR = 208, 212


def o_stage(k, st):
    s, qb = k // 4, k % 4
    b = 8 * (k % 8)
    if "o" in opt.get("cut", "") and k >= 8 and st < 3: return
    if "O" in opt.get("cut", "") and k >= 2: return
    if st == 0:
        for h in range(2):
            for j in range(4): e(f"v_accvgpr_read_b32 v{b+4*h+j}, a{O(2*s+h,qb)+j}")
    elif st == 1:
        for j in range(0, 8, 2):
            e(f"v_pk_fma_f32 {vr(b+j,2)}, {vr(b+j,2)}, {vr(NM(qb) + j%4,2)}, {vr(64 + 4*qb + j%4,2)} neg_lo:[0,0,1] neg_hi:[0,0,1]" if OB else
              f"v_pk_mul_f32 {vr(b+j,2)}, {vr(b+j,2)}, {vr(NM(qb) + j%4,2)}" if PA else
              f"v_pk_mul_f32 {vr(b+j,2)}, {vr(b+j,2)}, {vr(NM(qb),2)} op_sel_hi:[1,0]")
    elif st == 2:
        for j in range(4): e(f"v_cvt_pk_bf16_f32 v{b+j}, v{b+2*j}, v{b+2*j+1}")
    elif PA:
        P.lds(f"ds_write2st64_b64 v{vOW+qb}, {vr(b,2)}, {vr(b+2,2)} offset0:{32*s} offset1:{32*s+4}", "ow")
    else:
        P.lds(f"ds_write_b128 v{T+8}, {vr(b,4)} offset:{s*16384 + qb*1024}", "ow")


vL = 40


def row_sums():
    for qb in range(4):
        for j in range(2): e(f"v_accvgpr_read_b32 v{vL+2*qb+j}, a{LACC(qb)+j}")
    for qb in range(4): e(f"v_add_f32 v{vL+2*qb}, v{vL+2*qb}, v{vL+2*qb+1}")


def row_inverses():
    e(f"v_bfe_u32 v{vL+8}, v{vBA}, 8, 2"); e(f"v_lshlrev_b32 v{vL+8}, 4, v{vL+8}")
    for qb in range(4): e(f"v_rcp_f32 v{vL+2*qb}, v{vL+2*qb}")
    for qb in range(4):
        for r in range(4): P.lds(f"ds_bpermute_b32 v{NM(qb)+r}, v{vL+8}, v{vL+2*qb} offset:{4*r}", "rinv")


def vote():
    v = 56
    P.put(gate(31, 33))
    e(f"s_lshl_b32 s{sT+1}, s{sW}, 2"); e(f"s_add_u32 s{sT+1}, s{sT+1}, {RING + 32768}")
    e(f"v_mov_b32 v{v+4}, {f2u(-1.0 if FORCE_REDO else 2.0**64)}"); e(f"v_mov_b32 v{v+5}, s{sT+1}"); e(f"v_mov_b32 v{v+6}, {RING + 32768}")
    P.put(gate(31, 38))
    row_sums()
    e(f"v_maximum3_f32 v{v}, v{vL}, v{vL+2}, v{vL+4}"); e(f"v_maximum3_f32 v{v}, v{v}, v{vL+6}, v{vL+6}")
    e(f"v_cmp_nle_f32 vcc, v{v}, v{v+4}")
    e(f"s_cmp_lg_u64 vcc, 0\n    s_cselect_b32 s{sT}, 1, 0", k="v")
    e(f"v_mov_b32 v{v}, s{sT}")
    P.lds(f"ds_write_b32 v{v+5}, v{v}", "vote")
    inv = P.rec; k = len(inv) + 6
    row_inverses()
    inv[k:k] = [It(None, "s", need=["vote"]), It("s_barrier", "s"), It(f"ds_read_b128 {vr(v,4)}, v{v+6}", "l", "votes")]
    e(f"v_or3_b32 v{v}, v{v}, v{v+1}, v{v+2}", need=["votes"]); e(f"v_or_b32 v{v}, v{v}, v{v+3}")
    e(f"v_readfirstlane_b32 s{sT}, v{v}")


fill = cap(vote)
if SSET == "oe": stamp(0)
attn_iter(31, [], fill)
if SSET == "oe": stamp(0)
P.drain(fill)
e(f"s_cmp_lg_u32 s{sT}, 0"); e("s_cbranch_scc1 L_redo")
lab("L_att_done")
stamp()
if SSET == "oe": stamp(0)

if PA:
    for qb in range(4):
        e(f"v_xor_b32 v{vOW+qb}, {32*qb}, v{T+8}"); e(f"v_xor_b32 v{vOR+qb}, {32*qb}, v{T+9}")
o_stage(0, 0)
P.wait(["rinv"])
if OB:
    for i in range(16): e(f"v_mul_f32 v{64+i}, s{sOB}, v{vR+i}")
lag = [int(x) for x in opt.get("olag", "0,1,2,3").split(",")]
WG = O_("owg", 1)
for k in range(16 + lag[3] + WG):
    if SSET == "oe" and k % 4 == 0: stamp(0)
    for st in range(3):
        if 0 <= k - lag[st] < 16 and k + st: o_stage(k - lag[st], st)
    if (k - lag[3]) % WG == WG - 1:
        for j in range(k - lag[3] - WG + 1, k - lag[3] + 1):
            if 0 <= j < 16: o_stage(j, 3)
if SSET in ("o", "oe"): stamp(0)
gemm_pre(ot, 0)
P.wait(["ow"]); e("s_barrier")
if SSET in ("o", "oe"): stamp(0)
stamp()
OACC = lambda nh, nb, tb: 64 + ACC(nh, nb, tb)
PSR = lambda g, nh: nh * 32 + g * 4


def o_side():
    if OWN:
        P.put(gate(0, 32 * 7))
        for u in range(2):
            e(f"s_lshl1_add_u32 s{sT}, s{sW}, {u}")
            e(f"s_cmp_eq_u32 s{sT}, s{sG}\n    s_cselect_b32 s{sPO[u]}, 0x7f000000, 0")
            e(f"v_or_b32 v{vPO+u}, s{sPO[u]}, v{vBA}")
        sum_terms(sPX, (sG, 8192), (sPC, 1), WS_PS)
    P.put(gate(0, 32 * 8 + 4))
    for p in pieces[:8]: pack(OACC, *p)
    for p, g in zip(pieces, [int(x) for x in opt.get("s0g", "440,448,456,464,472,480,488,496").split(",")]):
        P.put(gate(0, g))
        store_piece(vr(OACC(0, 2 * p[2], p[1]), 4), WS_PS, *p, "s0s")
    if O_("f0k", 3) < 0:
        P.put(gate(0, O_("f0g", 500))); set_flags(2, 2, ["s0s"])


fill = cap(o_side)
pending = ot[2].dma()
gemm(ot, 0, 16, OACC, pending, (0, 32, 64, 96, (vr, 0), (vr, 32))[:O_("obs", 6)], fill=fill, breg=vOR if PA else vBA, btr=PA)
P.drain(fill)
stamp()
P0K = O_("p0k", -1)
for k, p in enumerate(pieces[8:]):
    pack(OACC, *p); store_piece(vr(OACC(1, 2 * p[2], p[1]), 4), WS_PS, *p, "s1s")
    if k == O_("f0k", 3): set_flags(2, 2, ["s0s"])
    if k == P0K: p_s0.issue()
vY, vS, vG, vX = 64, 80, 96, 112


def gate_values():
    for i in range(8): e(f"v_accvgpr_read_b32 v{vG+i}, a{aXN+i}")
    for i in range(8):
        e(f"v_lshlrev_b32 v{vY+2*i}, 16, v{vG+i}"); e(f"v_and_b32 v{vY+2*i+1}, 0xffff0000, v{vG+i}")
    for i in range(16): e(f"v_fma_f32 v{vY+i}, v{vY+i}, v{vRSTD}, v{vNMEAN}")
    for k in range(17):
        if k < 16:
            for j in range(4): e(f"v_accvgpr_read_b32 v{vG + 4*(k%2) + j}, a{PHA(k)+j}", need=[("phl", k // 2, k % 2)])
        if k: add_piece(vY + 8 * ((k - 1) % 2), vG + 4 * ((k - 1) % 2), False, ())
    for i in range(16): e(f"v_mul_f32 v{vG+i}, s{sNL2E}, v{vY+i}")
    for i in range(16): e(f"v_exp_f32 v{vG+i}, v{vG+i}")
    e(f"s_mov_b32 s{sT}, {f2u(GA_ * 2.0**OSH)}")
    for i in range(16): e(f"v_fma_f32 v{vG+i}, v{vG+i}, s{sT}, s{sT}")
    for i in range(16): e(f"v_rcp_f32 v{vG+i}, v{vG+i}")
    for i in range(0, 16, 2): e(f"v_pk_mul_f32 {vr(vG+i,2)}, {vr(vG+i,2)}, {vr(vY+i,2)}")
    for i in range(8):
        e(f"v_lshlrev_b32 v{vX+2*i}, 16, v{XF[i]}", need=["xf"]); e(f"v_and_b32 v{vX+2*i+1}, 0xffff0000, v{XF[i]}")
    e(f"v_bfe_u32 v200, v{vTOK}, 4, 4"); e("v_lshlrev_b32 v200, 10, v200"); e(f"v_bfe_u32 v201, v{vBA}, 8, 2")
    e("v_lshl_add_u32 v200, v201, 4, v200")


if OWN:
    e(f"v_add_u32 v216, s{sRING}, v{vBA}")
    for u in range(2):
        e(f"s_cmp_eq_u32 s{sPO[u]}, 0"); e(f"s_cbranch_scc1 L_away{u}")
        for nh, tb, s in pieces:
            if tb >> 1 == u: e(f"ds_write_b128 v216, {vr(OACC(nh,2*s,tb),4)} offset:{((tb & 1) + 2*s)*2048 + nh*1024}")
        lab(f"L_away{u}")
    e(f"s_lshr_b32 s{sT}, s{sG}, 1"); sum_terms(sT + 1, (sT, 8192), (sW, 2048), RING); e(f"v_add_u32 v216, s{sT+1}, v{vBA}")
    P.wait_all(vm=False); e("s_barrier")
    for nh in range(2): P.lds(f"ds_read_b128 {vr(192+4*nh,4)}, v216 offset:{nh*1024}", "own")
code = cap(gate_values)
if OWN:
    for nh in range(2): code[40:40] = cap(add_piece, vS + 8 * nh, 192 + 4 * nh, True, ["own"])
k0, k1 = O_("gs0", 60), O_("gs1", 140)
P.puts(code[:k0])
if P0K < 0: p_s0.issue()
P.puts(code[k0:k1])
set_flags(3, 2, ["s1s"])
stamp(2)
p_s0.check()
for g in range(OWN, 8): load_piece(WS_PS, vr(PSR(g, 0), 4), g, 0, "psl")
p_s1.issue()
P.puts(code[k1:])


def finish(nh):
    for g in range(OWN, 8): add_piece(vS + 8 * nh, PSR(g, nh), g == 0, [("psl", g, nh)])
    for i in range(8 * nh, 8 * nh + 8, 2): e(f"v_pk_fma_f32 {vr(vG+i,2)}, {vr(vG+i,2)}, {vr(vS+i,2)}, {vr(vX+i,2)}")
    d = 204 + 4 * nh
    for i in range(4): e(f"v_cvt_pk_bf16_f32 v{d+i}, v{vG+8*nh+2*i}, v{vG+8*nh+2*i+1}")
    for sw in ("v_permlane32_swap_b32", "v_permlane16_swap_b32"):
        for j in range(2): e(f"{sw} v{d+j}, v{d+2+j}")
    P.vm(f"buffer_store_dwordx4 {vr(d,4)}, v200, {srd(SOUT)}, s{sXF} offen offset:{nh*128}")


p_s1.check()
stamp()
for g in range(OWN, 8): load_piece(WS_PS, vr(PSR(g, 1), 4), g, 1, "psl")
finish(0)
finish(1)
if AMP:
    P.wait_all(); stamp()
    e(f"s_sub_u32 s{sST}, s{sST+2}, s{sST}")
    e(f"s_lshr_b32 s{sST}, s{sST}, 5" if AMP[3] else f"s_lshl_b32 s{sST}, s{sST}, {AMP[2]}")
    if "ampsel" in opt:
        e(f"s_lshr_b32 s{sT}, {opt['ampsel']}, s{sG}"); e(f"s_and_b32 s{sT}, s{sT}, 1"); e(f"s_mul_i32 s{sST}, s{sST}, s{sT}")
    e(f"s_memrealtime {sr(sST+2,2)}"); e("s_waitcnt lgkmcnt(0)")
    lab("L_amp")
    e(f"s_memrealtime {sr(sST+4,2)}"); e("s_waitcnt lgkmcnt(0)")
    e(f"s_sub_u32 s{sST+4}, s{sST+4}, s{sST+2}"); e(f"s_cmp_lt_u32 s{sST+4}, s{sST}"); e("s_cbranch_scc1 L_amp")
if STAMP:
    P.wait_all()
    stamp()
    e(f"s_lshl_b32 s{sT}, s2, 2"); e(f"s_add_u32 s{sT}, s{sT}, s{sW}"); e(f"s_lshl_b32 s{sT}, s{sT}, 8")
    e(f"s_add_u32 s{sT}, s{sT}, {WS_ST}"); e(f"v_lshrrev_b32 v0, 2, v{vBA}")
    P.vm(f"buffer_store_dword a254, v0, {srd(SWS)}, s{sT} offen")
e("s_endpgm")

lab("L_side")
NPP = O_("npp", 1)
for p in slow_paths:
    lab(f"L_slow_{p.name}")
    if NPP > 1 and p.name in ("s0", "s1"):
        regs = [f"v{216 + i}" for i in range(NPP)]
        ld = lambda i: e(p.loads[0].replace(f"v{vPOLL},", regs[i % NPP] + ","))
        for i in range(NPP - 1):
            ld(i); e(f"s_sleep {O_('pps', 5)}")
        lab(f"L_spin_{p.name}")
        for i in range(NPP):
            ld(i + NPP - 1); e(f"s_waitcnt vmcnt({NPP - 1})")
            e(p.tests[0].replace(f"v{vPOLL}", regs[i])); e(f"s_cbranch_vccz L_back_{p.name}")
        e(f"s_add_u32 s{sSPIN}, s{sSPIN}, 1"); e(f"s_cmp_gt_u32 s{sSPIN}, 0x200000")
        e(f"s_cbranch_scc0 L_spin_{p.name}"); e(f"s_branch L_back_{p.name}")
        continue
    e("s_sleep 1")
    for l in p.loads: e(l)
    e(f"s_add_u32 s{sSPIN}, s{sSPIN}, 1")
    e("s_waitcnt vmcnt(0)")
    for t in p.tests: e(t)
    e(f"s_cmp_gt_u32 s{sSPIN}, 0x200000"); e(f"s_cbranch_scc1 L_back_{p.name}")
    e(f"s_cbranch_vccnz L_slow_{p.name}")
    e(f"s_branch L_back_{p.name}")

lab("L_redo")
P.lq, P.vq = [], []
e(f"s_mov_b32 s{sOB}, 0")
for s in range(4): e(f"v_add_u32 v{KA(s)}, 49152, v{KA(s)}")
for qb in range(4): e(f"v_mov_b32 v{NM(qb)}, 0xff800000")


def redo_tile(kinds, zero):
    P.used = set()
    P.wait_all(); e("s_barrier")
    for kind, lds in kinds: flush(kv_dma(kind, 0, lds=lds, so=f"s{sCNT}"))
    P.wait_all(); e("s_barrier")
    mf = [m for m, _ in qk_mfmas(2, zero=zero)]
    for half in range(2):
        for f in range(8 * half, 8 * half + 8): P.puts(frag_reads(2, f))
        P.puts(mf[32 * half:32 * half + 32])


e(f"s_mov_b32 s{sCNT}, 0")
lab("L_rmax")
redo_tile([("K", 98304)], True)
for qb in range(4):
    regs = [S(1, kb, qb) + i for kb in range(4) for i in range(4)]
    for i in range(0, 16, 2): e(f"v_max3_f32 v{NM(qb)}, v{NM(qb)}, v{regs[i]}, v{regs[i+1]}")
e(f"s_add_u32 s{sCNT}, s{sCNT}, 16384"); e(f"s_cmp_lt_u32 s{sCNT}, 0x80000"); e("s_cbranch_scc1 L_rmax")
allreduce("v_max_f32", [NM(qb) for qb in range(4)], [NM(qb) + 1 for qb in range(4)])
for qb in range(4):
    for i in (1, 2, 3, 0): e(f"v_sub_f32 v{NM(qb)+i}, 0, v{NM(qb)}")
for i in list(range(128)) + list(range(192, 208)): e(f"v_accvgpr_write_b32 a{i}, 0")
e(f"s_mov_b32 s{sCNT}, 0")
lab("L_rpv")
redo_tile([("K", 98304), ("V", 114688)], False)
for half in range(2):
    ex, post = sm_stream(1, half)
    P.puts(ex); P.puts([x for p in post for x in p])
mf = [m for m, _ in pv_mfmas(3)]
for half in range(2):
    for f in range(16 + 8 * half, 24 + 8 * half): P.puts(frag_reads(3, f))
    cut = 32 if SUMEND == 1 else 34
    P.puts(mf[cut:] if half else mf[:cut])
e(f"s_add_u32 s{sCNT}, s{sCNT}, 16384"); e(f"s_cmp_lt_u32 s{sCNT}, 0x80000"); e("s_cbranch_scc1 L_rpv")
row_sums(); row_inverses(); P.wait(["rinv"])
e("s_branch L_att_done")
if HOP: P.raw(".p2align 12")
lab("L_odd")
P.L += odd_text
lab("L_end")
e("s_endpgm")
P.L += ['.section .rodata,"a"', ".p2align 6", f".amdhsa_kernel {NAME}",
        "  .amdhsa_next_free_vgpr 512", "  .amdhsa_next_free_sgpr 102", "  .amdhsa_accum_offset 256",
        "  .amdhsa_group_segment_fixed_size 0", "  .amdhsa_kernarg_size 104", "  .amdhsa_user_sgpr_count 2",
        "  .amdhsa_user_sgpr_kernarg_segment_ptr 1", "  .amdhsa_system_sgpr_workgroup_id_x 1",
        f"  .amdhsa_float_denorm_mode_32 {O_('dn', 3)}"] + ["  .amdhsa_ieee_mode 0"] * O_("ieee0", 0) + [".end_amdhsa_kernel"]
lines = "\n".join(P.L).split("\n")
for key, pats in (("kvf", (srd(SK), srd(SV))), ("wf", tuple(srd(x) for x in (SWQ, SWO, SW1, SW2, SW3, SW4)))):
    if opt.get(key):
        lines = [l.replace(" lds", " " + opt[key].replace("+", " ") + " lds") if l.endswith(" lds") and any(x in l for x in pats) else l
                 for l in lines]
if opt.get("xf"): lines = [l + " " + opt["xf"] if "load_dwordx4 v[" in l and (srd(SX) in l or "s[64:65]" in l) else l for l in lines]
ABL = opt.get("abl", "")
if ABL:
    i0 = next(i for i, l in enumerate(lines) if "output projection" in l); i1 = lines.index("L_side:")
    j0 = max(i for i in range(i0, i1) if MF in lines[i])
    keep = []
    for i, l in enumerate(lines):
        if i0 < i < i1:
            if "p" in ABL and "s_cbranch_vccnz L_slow_s" in l: continue
            if "w" in ABL and i > j0 and "vmcnt" in l and "v_dot2" not in lines[i + 1]: continue
            if "l" in ABL and "buffer_load_dwordx4" in l and "sc1" in l: continue
            if "s" in ABL and "buffer_store_dwordx4" in l and "sc1" in l: continue
        keep.append(l)
    lines = keep
if opt.get("tcf"): lines = [l + " " + opt["tcf"] if "_load_dword a255" in l and "sc1" not in l and ", off" not in l else l for l in lines]
lines, added = fix_hazards(lines)
nhop = 0
if HOP: lines, nhop = add_page_hops(lines, sW)
lines = [l for l in lines if "@hop" not in l]
if O_("short", 1): lines = compress(lines)
text = "\n".join(lines) + "\n"
open(OUT_PATH, "w").write(text)
print(f"{OUT_PATH}: {len(lines)} lines, {len(text)} bytes, {added} wait states padded, {nstamp[0]} stamps, {nhop} hops", file=sys.stderr)
```
